```python
import torch

def _softmax(x, axis=-1):
    return torch.softmax(x, dim=axis)

def _gelu(x):
    return torch.nn.functional.gelu(x, approximate='tanh')

def _silu(x):
    return torch.nn.functional.silu(x)

def _sigmoid(x):
    return torch.sigmoid(x)

def _layernorm(x, axis=-1, eps=1e-05):
    m = x.mean(dim=axis, keepdim=True)
    v = x.var(dim=axis, keepdim=True, unbiased=False)
    return (x - m) / torch.sqrt(v + eps)

def _scatter_add(tgt, idx, src, axis=0):
    return tgt.clone().index_add_(axis, idx, src)

def _segment_sum(src, seg, n):
    out = torch.zeros((n,) + src.shape[1:], dtype=src.dtype)
    return out.index_add_(0, seg, src)

def _pad(x, pw):
    flat = tuple((v for pair in reversed(pw) for v in pair))
    return torch.nn.functional.pad(x, flat)
kernel_name = 'adaLN_cond__linear_kernel_hedgehog__glu_gated_reglu__prompt'

def setup_inputs():

    _w = lambda a: (lambda t: t.to(torch.bfloat16) if t.is_floating_point() else t)(torch.as_tensor(a))

    def _A_setup():
        B, S, D, H = (1, 2048, 512, 32)
        Dh = D // H
        return {'x': _w((lambda *s: torch.randn(*s, dtype=torch.bfloat16) * 0.05)(B, S, D)), 'wqkv': _w((lambda *s: torch.randn(*s, dtype=torch.bfloat16) * 0.4)(D, 3 * D)), 'w_phi': _w((lambda *s: torch.randn(*s, dtype=torch.bfloat16) * 0.4)(H, Dh, Dh) * Dh ** (-0.5)), 'wo': _w((lambda *s: torch.randn(*s, dtype=torch.bfloat16) * 0.05)(D, D))}
    _A_in = _A_setup()

    def _B_setup():
        B, S, D, F = (1, 2048, 512, 1792)
        return {'x': _w((lambda *s: torch.randn(*s, dtype=torch.bfloat16) * 0.05)(B, S, D)), 'W_gate': _w((lambda *s: torch.randn(*s, dtype=torch.bfloat16) * 0.8)(D, F) * (2.0 / D) ** 0.5), 'W_up': _w((lambda *s: torch.randn(*s, dtype=torch.bfloat16) * 0.8)(D, F) * (2.0 / D) ** 0.5), 'W_down': _w((lambda *s: torch.randn(*s, dtype=torch.bfloat16) * 0.8)(F, D) * (1.0 / F) ** 0.5)}
    _B_in = _B_setup()
    return {'A_x': _A_in['x'], 'A_wqkv': _A_in['wqkv'], 'A_w_phi': _A_in['w_phi'], 'A_wo': _A_in['wo'], 'B_x': _B_in['x'], 'B_W_gate': _B_in['W_gate'], 'B_W_up': _B_in['W_up'], 'B_W_down': _B_in['W_down'], 'c': _w((lambda *s: torch.randn(*s, dtype=torch.bfloat16) * 0.2)(1, 512) * 8.0), 'w_mod': _w((lambda *s: torch.randn(*s, dtype=torch.bfloat16) * 0.2)(512, 6 * 512) * 512 ** (-0.5) * 8.0)}

def reference(A_x, A_wqkv, A_w_phi, A_wo, B_x, B_W_gate, B_W_up, B_W_down, c, w_mod):

    def _A_ref(x, wqkv, w_phi, wo):
        B, S, D = x.shape
        H = 32
        Dh = D // H
        qkv = (lambda x, *d: x.permute(*d))((x @ wqkv).reshape(B, S, 3, H, Dh), 2, 0, 3, 1, 4)
        q, k, v = (qkv[0], qkv[1], qkv[2])
        pq = torch.einsum('bhsd,hdf->bhsf', q, w_phi)
        pk = torch.einsum('bhsd,hdf->bhsf', k, w_phi)
        phi_q = torch.concatenate([_softmax(pq, axis=-1), _softmax(-pq, axis=-1)], axis=-1)
        phi_k = torch.concatenate([_softmax(pk, axis=-1), _softmax(-pk, axis=-1)], axis=-1)
        kv = torch.einsum('bhsf,bhsd->bhfd', phi_k, v)
        z = torch.einsum('bhsf->bhf', phi_k)
        num = torch.einsum('bhqf,bhfd->bhqd', phi_q, kv)
        den = torch.einsum('bhqf,bhf->bhq', phi_q, z)[..., None] + 1e-06
        o = num / den
        return (lambda x, *d: x.permute(*d))(o, 0, 2, 1, 3).reshape(B, S, D) @ wo

    def _B_ref(x, W_gate, W_up, W_down):
        gate = torch.einsum('bsd,df->bsf', x, W_gate)
        up = torch.einsum('bsd,df->bsf', x, W_up)
        gate = gate * (lambda x, dt: x.to(dt))(gate > 0, gate.dtype)
        h = gate * up
        return torch.einsum('bsf,fd->bsd', h, W_down)
    x = A_x
    mod = (_silu(c) @ w_mod).reshape(c.shape[0], 6, 1, -1)
    sa, ca, ga, sb, cb, gb = (mod[:, 0].clone(), mod[:, 1].clone(), mod[:, 2].clone(), mod[:, 3].clone(), mod[:, 4].clone(), mod[:, 5].clone())
    h = _layernorm(x, axis=-1) * (1 + ca) + sa
    x = x + ga * _A_ref(h, A_wqkv, A_w_phi, A_wo)
    h = _layernorm(x, axis=-1) * (1 + cb) + sb
    x = x + gb * _B_ref(h, B_W_gate, B_W_up, B_W_down)
    return x
```

```python
import re

REG_RE = re.compile(r"^(-?)(?:abs\()?([vas])(?:(\d+)|\[(\d+):(\d+)\])\)?$")
TRANS = ("v_exp_f32", "v_log_f32", "v_rcp_f32", "v_rsq_f32", "v_sqrt_f32", "v_sin_f32", "v_cos_f32")


def regs_of(op):
    op = op.strip()
    if op in ("vcc", "vcc_lo", "vcc_hi"):
        return {"vcc"}
    if op in ("exec", "exec_lo", "exec_hi"):
        return {"exec"}
    if op == "m0":
        return {"m0"}
    m = REG_RE.match(op)
    if not m:
        return set()
    k = m.group(2)
    if m.group(3) is not None:
        return {k + m.group(3)}
    return {k + str(i) for i in range(int(m.group(4)), int(m.group(5)) + 1)}


class Ins:
    __slots__ = ("text", "mn", "ops", "kind", "wr", "rd", "A", "B", "C", "passes", "store_data", "ws")

    def __init__(self, text):
        self.text = text
        t = text.split(";")[0].strip()
        parts = t.split(None, 1)
        self.mn = mn = parts[0]
        rest = parts[1] if len(parts) > 1 else ""
        listmods = " ".join(re.findall(r"\b\w+:\[[^\]]*\]", rest))
        rest = re.sub(r"\b(op_sel|op_sel_hi|neg_lo|neg_hi|quad_perm):\[[^\]]*\]", "", rest).strip()
        ops = [o.strip() for o in rest.split(",")] if rest else []
        mods = ""
        if ops:
            last = ops[-1].split(None, 1)
            ops[-1] = last[0]
            mods = last[1] if len(last) > 1 else ""
        self.ops = ops
        self.wr, self.rd = set(), set()
        self.A = self.B = self.C = None
        self.passes = 0
        self.store_data = set()
        self.ws = 1
        R = regs_of
        if mn == "s_nop":
            self.kind = "nop"
            self.ws = int(ops[0], 0) + 1
        elif mn.startswith("v_mfma"):
            self.kind = "mfma"
            self.wr = R(ops[0])
            self.A, self.B, self.C = R(ops[1]), R(ops[2]), R(ops[3])
            self.rd = self.A | self.B | self.C
            self.passes = 8 if "32x32" in mn else 4
        elif mn.startswith("v_"):
            self.kind = "valu"
            if mn.startswith("v_cmp"):
                self.wr = R(ops[0])
                for o in ops[1:]:
                    self.rd |= R(o)
            elif mn.startswith("v_permlane") and "swap" in mn:
                self.wr = R(ops[0]) | R(ops[1])
                self.rd = set(self.wr)
            else:
                self.wr = R(ops[0])
                start = 1
                if "_co_" in mn:
                    self.wr |= R(ops[1])
                    start = 2
                for o in ops[start:]:
                    self.rd |= R(o)
                if mn.startswith(("v_fmac", "v_dot2c", "v_pk_fmac")):
                    self.rd |= R(ops[0])
        elif mn.startswith("ds_"):
            self.kind = "ds"
            if mn.startswith("ds_read") or mn.startswith("ds_bpermute") or mn.startswith("ds_swizzle"):
                self.wr = R(ops[0])
                for o in ops[1:]:
                    self.rd |= R(o)
            else:
                for o in ops:
                    self.rd |= R(o)
        elif mn.startswith(("buffer_", "global_")):
            self.kind = "vmem"
            allm = (mods + " " + " ".join(ops))
            if mn.startswith("buffer_inv") or mn.startswith("buffer_wbl2"):
                pass
            elif "load" in mn:
                if re.search(r"\blds\b", mods) or "_lds_" in mn:
                    for o in ops:
                        self.rd |= R(o)
                    self.rd.add("m0")
                else:
                    self.wr = R(ops[0])
                    for o in ops[1:]:
                        self.rd |= R(o)
            else:
                for o in ops:
                    self.rd |= R(o)
                if mn.startswith("buffer_"):
                    data = R(ops[0])
                else:
                    data = R(ops[1])
                if "x3" in mn or "x4" in mn:
                    self.store_data = data
                if "atomic" in mn and re.search(r"\bsc0\b", mods):
                    self.wr = data
        elif mn.startswith("s_"):
            self.kind = "salu"
            if mn.startswith(("s_cmp", "s_cbranch", "s_branch", "s_waitcnt", "s_barrier", "s_endpgm", "s_setprio", "s_sleep")):
                for o in ops:
                    self.rd |= R(o)
            else:
                if ops:
                    self.wr = R(ops[0])
                for o in ops[1:]:
                    self.rd |= R(o)
                if "saveexec" in mn:
                    self.wr.add("exec")
        else:
            raise ValueError("unknown instruction: " + text)

    def is_trans(self):
        return self.mn.replace("_e32", "").replace("_e64", "") in TRANS

    def is_dot(self):
        return self.mn.startswith("v_dot")

    def base(self):
        return self.mn.replace("_e32", "").replace("_e64", "")


def isv(r):
    return r[0] in "va" and r != "vcc"


def need(prev, cur):
    n = 0
    pk, ck = prev.kind, cur.kind
    if pk == "valu":
        wv = {r for r in prev.wr if isv(r)}
        ws = prev.wr - wv
        if ck == "mfma" and wv & cur.rd:
            n = max(n, 2)
        if ck == "valu":
            if prev.is_trans() and not cur.is_trans() and wv & cur.rd:
                n = max(n, 1)
            if cur.mn.startswith("v_permlane") and wv & cur.rd:
                n = max(n, 2)
            if cur.mn.startswith(("v_readlane", "v_readfirstlane")) and wv & cur.rd:
                n = max(n, 1)
            if ("dpp" in cur.text or "row_" in cur.text or "quad_perm" in cur.text) and wv & cur.rd:
                n = max(n, 2)
            if ws & cur.rd:
                n = max(n, 4 if cur.mn.startswith(("v_readlane", "v_writelane")) else 2)
            if "sdwa" in prev.mn and wv & (cur.rd | cur.wr):
                n = max(n, 1)
        if prev.is_dot() and ck in ("valu", "mfma", "vmem", "ds") and wv & (cur.rd | cur.wr):
            same_acc = ck == "valu" and cur.base() == prev.base() and not (wv & (cur.rd - cur.wr))
            if not same_acc:
                n = max(n, 3)
        if ck == "vmem" and ws & cur.rd:
            n = max(n, 5)
        if ck == "salu" and ws & cur.rd:
            n = max(n, 1)
    if pk == "mfma":
        p8 = prev.passes == 8
        D = prev.wr
        if ck == "mfma":
            if D & (cur.A | cur.B):
                n = max(n, 12 if p8 else 8)
            if D & cur.C:
                if not (cur.C == D and cur.passes == prev.passes):
                    n = max(n, 10 if p8 else 6)
            if D & cur.wr and not (cur.C == D and cur.wr == D):
                n = max(n, 10 if p8 else 6)
        elif ck in ("valu", "vmem", "ds"):
            if D & (cur.rd | cur.wr):
                n = max(n, 12 if p8 else 8)
            if ck == "valu" and prev.C & cur.wr:
                n = max(n, 7 if p8 else 3)
    if pk == "salu" and "m0" in prev.wr and ck == "vmem" and "m0" in cur.rd:
        n = max(n, 1)
    if pk == "vmem" and prev.store_data & cur.wr and ck in ("valu", "mfma"):
        n = max(n, 2)
    if pk == "vmem" and prev.store_data & cur.wr and ck in ("ds", "vmem"):
        n = max(n, 1)
    return n


class Asm:
    WINDOW = 24

    def __init__(self):
        self.out = []
        self.hist = []
        self.vmq = []
        self.lgq = []
        self.nops = 0
        self.uid = 0
        self.cond = 0

    def raw(self, s):
        self.out.append(s)

    def comment(self, s):
        self.out.append("; " + s)

    def label(self, name):
        self.out.append(name + ":")

    def newlabel(self, stem):
        self.uid += 1
        return f"L_{stem}_{self.uid}"

    def I(self, text, tag=None):
        for t in text.strip().split("\n"):
            t = t.strip()
            if t:
                self._one(t, tag)

    def _one(self, text, tag):
        ins = Ins(text)
        pad = 0
        dist = 0
        for prev in reversed(self.hist):
            req = need(prev, ins) - dist
            pad = max(pad, req)
            dist += prev.ws
            if dist >= 20:
                break
        while pad > 0:
            k = min(pad, 16)
            nop = Ins(f"s_nop {k-1}")
            self.out.append("\t" + nop.text)
            self.hist.append(nop)
            self.nops += 1
            pad -= k
        self.out.append("\t" + text)
        self.hist.append(ins)
        if len(self.hist) > self.WINDOW:
            self.hist = self.hist[-self.WINDOW:]
        if ins.kind == "vmem" and not self.cond:
            self.vmq.append(tag)
        elif ins.kind == "ds" and not self.cond:
            self.lgq.append(tag)

    def cond_begin(self):
        self.cond += 1

    def cond_end(self):
        self.cond -= 1

    def _wait(self, q, tags, name, maxn):
        if isinstance(tags, str):
            tags = [tags]
        idx = -1
        for i, t in enumerate(q):
            if t in tags:
                idx = i
        if idx < 0:
            return q
        n = min(len(q) - 1 - idx, maxn - 1)
        self.I(f"s_waitcnt {name}({n})")
        return q[idx + 1:]

    def wait_vm(self, tags):
        self.vmq = self._wait(self.vmq, tags, "vmcnt", 63)

    def wait_lg(self, tags):
        self.lgq = self._wait(self.lgq, tags, "lgkmcnt", 15)

    def wait_vm_all(self):
        self.I("s_waitcnt vmcnt(0)")
        self.vmq = []

    def wait_lg_all(self):
        self.I("s_waitcnt lgkmcnt(0)")
        self.lgq = []

    def barrier(self):
        self.I("s_barrier")

    def text(self):
        return "\n".join(self.out) + "\n"
```

```python
import sys
from asmlib import Asm

NAME = "adaLN_cond__linear_kernel_hedgehog__glu_gated_reglu__prompt"

WS_E = 0
WS_MODG = 0x1000
WS_FKV = 0x4000
WS_FO = 0xC000
WS_FY = 0x14000
WS_FA = 0x1C000
WS_STAMP = 0x30000
WS_WEXT = 0x40000
WS_STATS = 0x80000
WS_KVP = 0x100000
WS_O = 0x200000
WS_Y = 0x400000
WS_ACT = 0x800000

L_XI = 0
L_WI = 0
L_WM = 131072
L_S = 147456
L_GP = 148480
L_CT = 149504
L_PHI = 153600
L_ZERO = 154624
L_RED = 98304
L_KVF = 116736
L_Z = 118784
L_UB = 0
L_CS = 32768
L_WO = 0
L_OI = 65536
SLAB = 14592
UOFF = 7296
LDS_BYTES = 163840

S_X, S_WQKV, S_WPHI, S_WO, S_WG, S_WU, S_WD, S_C, S_WMOD, S_OUT, S_WS = 4, 8, 12, 16, 20, 24, 28, 32, 36, 40, 44
S_XCD, S_I, S_M, S_J, S_W, S_TAG, S_MASK = 48, 49, 50, 51, 52, 53, 54
S_T0, S_T1, S_T2, S_T3, S_T4 = 55, 56, 57, 58, 59
S_CLK = 60
S_L2E = 62
S_SPIN = 64
S_OFF = 65
S_VALID = 66
S_EX = 68
S_STAMP = 70
S_SEL = 92
S_HP = S_J

LOG2E = 0x3FB8AA3B
SPIN_MAX = 200000


def srd(i):
    return f"s[{i}:{i+3}]"


def v(i, n=1):
    return f"v{i}" if n == 1 else f"v[{i}:{i+n-1}]"


def a_(i, n=1):
    return f"a{i}" if n == 1 else f"a[{i}:{i+n-1}]"


def s(i, n=1):
    return f"s{i}" if n == 1 else f"s[{i}:{i+n-1}]"


V_LANE, V_L16, V_TAG = 1, 2, 3


class K(Asm):
    def __init__(self, diag=False, stop=None):
        super().__init__()
        self.diag = diag
        self.stop = stop
        self.nstamp = 0

    def stamp(self, name):
        if not self.diag:
            return
        self.wait_lg_all()
        self.I(f"s_memrealtime {s(S_CLK, 2)}")
        self.I("s_waitcnt lgkmcnt(0)")
        self.I(f"s_mov_b32 {s(S_STAMP + self.nstamp)}, {s(S_CLK)}")
        self.stamp_names = getattr(self, "stamp_names", []) + [name]
        self.nstamp += 1
        assert self.nstamp <= 20

    def wave_is(self, w, label_else):
        self.I(f"s_cmp_eq_u32 {s(S_W)}, {w}")
        self.I(f"s_cbranch_scc0 {label_else}")

    def mfma32(self, d, a, b, c=None):
        c = d if c is None else c
        self.I(f"v_mfma_f32_32x32x16_bf16 {d}, {a}, {b}, {c}")

    def spin_init(self):
        self.I(f"s_mov_b32 {s(S_SPIN)}, {SPIN_MAX}")

    def spin_back(self, loop, done):
        self.I(f"s_cbranch_vccz {done}")
        self.I(f"s_sub_u32 {s(S_SPIN)}, {s(S_SPIN)}, 1")
        self.I(f"s_cmp_lg_u32 {s(S_SPIN)}, 0")
        self.I(f"s_cbranch_scc1 {loop}")

    def unpack(self, lo, hi, src):
        self.I(f"v_lshlrev_b32 {v(lo)}, 16, {v(src)}")
        self.I(f"v_and_b32 {v(hi)}, {s(S_MASK)}, {v(src)}")

    def half_total(self, r, tmp):
        self.I(f"v_mov_b32 {v(tmp)}, {v(r)}")
        self.I(f"v_permlane32_swap_b32 {v(r)}, {v(tmp)}")
        self.I(f"v_add_f32 {v(r)}, {v(r)}, {v(tmp)}")

    def dma(self, voff, rsrc, soff, sc1=False):
        self.I(f"buffer_load_dwordx4 {v(voff)}, {srd(rsrc)}, {soff} offen{' sc1' if sc1 else ''} lds", tag=self._tag)

    _tag = None

    def poll_flags(self, base_sreg, n, stem, tmp=14):
        done = self.newlabel(stem + "_skip")
        loop = self.newlabel(stem + "_loop")
        ok = self.newlabel(stem + "_ok")
        self.wave_is(0, done)
        self.cond_begin()
        self.I(f"v_min_u32 {v(tmp)}, {n-1}, {v(V_LANE)}")
        self.I(f"v_lshlrev_b32 {v(tmp)}, 7, {v(tmp)}")
        self.I(f"v_add_u32 {v(tmp)}, {s(base_sreg)}, {v(tmp)}")
        self.spin_init()
        self.label(loop)
        self.I(f"buffer_load_dword {v(tmp+1)}, {v(tmp)}, {srd(S_WS)}, 0 offen sc1")
        self.I("s_waitcnt vmcnt(0)")
        self.I(f"v_cmp_ne_u32 vcc, {s(S_TAG)}, {v(tmp+1)}")
        self.spin_back(loop, ok)
        self.label(ok)
        self.cond_end()
        self.label(done)
        self.barrier()

    def signal(self, off_sreg, stem, tmp=14):
        self.barrier()
        done = self.newlabel(stem + "_sig")
        self.wave_is(0, done)
        self.cond_begin()
        self.I(f"v_mov_b32 {v(tmp)}, {s(off_sreg)}")
        self.I(f"s_mov_b64 exec, 1")
        self.I(f"buffer_store_dword {v(V_TAG)}, {v(tmp)}, {srd(S_WS)}, 0 offen sc1")
        self.I(f"s_mov_b64 exec, -1")
        self.cond_end()
        self.label(done)

    def load_granules_checked(self, regs, addr_regs, stem, width=2, tagpos=(1,), imm=None):
        loop = self.newlabel(stem + "_loop")
        ok = self.newlabel(stem + "_ok")
        self.spin_init()
        self.label(loop)
        self.cond_begin()
        sfx = {2: "dwordx2", 4: "dwordx4"}[width]
        for i, (r, ad) in enumerate(zip(regs, addr_regs)):
            off = imm[i] if imm else 0
            self.I(f"buffer_load_{sfx} {v(r, width)}, {v(ad)}, {srd(S_WS)}, 0 offen offset:{off} sc1")
        self.I("s_waitcnt vmcnt(0)")
        self.vmq = []
        first = True
        for r in regs:
            for tp in tagpos:
                if first:
                    self.I(f"v_cmp_ne_u32 vcc, {s(S_TAG)}, {v(r+tp)}")
                    first = False
                else:
                    self.I(f"v_cmp_ne_u32 {s(S_EX, 2)}, {s(S_TAG)}, {v(r+tp)}")
                    self.I(f"s_nop 0")
                    self.I(f"s_or_b64 vcc, vcc, {s(S_EX, 2)}")
        self.spin_back(loop, ok)
        self.label(ok)
        self.cond_end()


def prologue(k):
    k.I("s_cmp_ge_u32 s2, 256")
    k.I("s_cbranch_scc1 L_end")
    k.I("s_load_dwordx16 s[64:79], s[0:1], 0")
    k.I("s_load_dwordx8 s[80:87], s[0:1], 64")
    k.I("s_load_dwordx2 s[88:89], s[0:1], 96")
    k.I(f"v_and_b32 {v(V_LANE)}, 63, v0")
    k.I("v_lshrrev_b32 v4, 6, v0")
    k.I(f"v_lshlrev_b32 {v(V_L16)}, 4, {v(V_LANE)}")
    k.I(f"v_readfirstlane_b32 {s(S_W)}, v4")
    k.I(f"s_and_b32 {s(S_XCD)}, s2, 7")
    k.I(f"s_lshr_b32 {s(S_I)}, s2, 3")
    k.I(f"s_lshr_b32 {s(S_T0)}, {s(S_I)}, 4")
    k.I(f"s_lshl_b32 {s(S_M)}, {s(S_XCD)}, 1")
    k.I(f"s_add_u32 {s(S_M)}, {s(S_M)}, {s(S_T0)}")
    k.I(f"s_and_b32 {s(S_J)}, {s(S_I)}, 15")
    k.I(f"s_mov_b32 {s(S_MASK)}, 0xffff0000")
    k.I(f"s_mov_b32 {s(S_L2E)}, {LOG2E:#x}")
    k.I(f"s_mov_b32 {s(S_L2E+1)}, {LOG2E:#x}")
    k.I("s_waitcnt lgkmcnt(0)")
    bufs = [(S_X, 64, 2097152), (S_WQKV, 66, 1572864), (S_WPHI, 68, 16384), (S_WO, 70, 524288),
            (S_WG, 74, 1835008), (S_WU, 76, 1835008), (S_WD, 78, 1835008), (S_C, 80, 1024),
            (S_WMOD, 82, 3145728), (S_OUT, 84, 2097152), (S_WS, 88, 268435456)]
    for r, p, n in bufs:
        k.I(f"s_mov_b32 {s(r)}, {s(p)}")
        k.I(f"s_mov_b32 {s(r+1)}, {s(p+1)}")
        k.I(f"s_mov_b32 {s(r+2)}, {n}")
        k.I(f"s_mov_b32 {s(r+3)}, 0x20000")
    k.I("v_mov_b32 v4, 0")
    k.I(f"buffer_load_dword {v(V_TAG)}, v4, {srd(S_WS)}, 0 offen sc1", tag="E")
    k.stamp("start")


def p0_issue(k):
    skip = k.newlabel("p0i_skip")
    k.I("s_cmp_ge_u32 s2, 192")
    k.I(f"s_cbranch_scc1 {skip}")
    k.cond_begin()
    k.I(f"s_lshr_b32 {s(S_T0)}, {s(S_I)}, 2")
    k.I(f"s_lshl_b32 {s(S_T0)}, {s(S_T0)}, 3")
    k.I(f"s_add_u32 {s(S_T0)}, {s(S_T0)}, {s(S_XCD)}")
    k.I(f"s_lshl_b32 {s(S_T0)}, {s(S_T0)}, 2")
    k.I(f"s_and_b32 {s(S_T1)}, {s(S_I)}, 3")
    k.I(f"s_add_u32 {s(S_T4)}, {s(S_T0)}, {s(S_T1)}")
    k.I("v_lshlrev_b32 v5, 2, v0")
    k.I(f"buffer_load_dword v6, v5, {srd(S_C)}, 0 offen")
    k.I(f"v_lshrrev_b32 v7, 1, {v(V_LANE)}")
    k.I("v_mul_u32_u24 v7, 6144, v7")
    k.I(f"v_and_b32 v8, 1, {v(V_LANE)}")
    k.I("v_lshlrev_b32 v8, 4, v8")
    k.I(f"s_lshl_b32 {s(S_T0)}, {s(S_T4)}, 5")
    k.I(f"v_add3_u32 v7, v7, v8, {s(S_T0)}")
    k.I(f"s_mul_i32 {s(S_OFF)}, {s(S_W)}, {4*196608}")
    k.I(f"s_lshl_b32 {s(S_T0)}, {s(S_W)}, 12")
    k.I(f"s_add_u32 m0, {s(S_T0)}, {L_WM}")
    for n in range(4):
        k.dma(7, S_WMOD, s(S_OFF))
        if n < 3:
            k.I(f"s_add_u32 m0, m0, 1024")
            k.I(f"s_add_u32 {s(S_OFF)}, {s(S_OFF)}, 196608")
    k.cond_end()
    k.label(skip)


def x_issue(k):
    k.I(f"s_lshl_b32 {s(S_T0)}, {s(S_M)}, 2")
    k.I(f"s_add_u32 {s(S_T0)}, {s(S_T0)}, {s(S_W)}")
    k.I(f"s_lshl_b32 {s(S_OFF)}, {s(S_T0)}, 15")
    k.I(f"s_lshl_b32 {s(S_T0)}, {s(S_W)}, 15")
    k.I(f"s_add_u32 m0, {s(S_T0)}, {L_XI}")
    k._tag = "x"
    for r in range(32):
        if r & 15:
            k.I(f"v_xor_b32 v9, {(r & 15) * 16}, {v(V_L16)}")
            k.dma(9, S_X, s(S_OFF))
        else:
            k.dma(V_L16, S_X, s(S_OFF))
        if r < 31:
            k.I("s_add_u32 m0, m0, 1024")
            k.I(f"s_add_u32 {s(S_OFF)}, {s(S_OFF)}, 1024")
    k._tag = None


def p0_compute(k):
    skip = k.newlabel("p0c_skip")
    k.I("s_cmp_ge_u32 s2, 192")
    k.I(f"s_cbranch_scc1 {skip}")
    k.cond_begin()
    k.I("s_waitcnt vmcnt(32)")
    k.unpack(8, 9, 6)
    k.I(f"v_mul_f32 v10, {s(S_L2E)}, v8")
    k.I(f"v_mul_f32 v11, {s(S_L2E)}, v9")
    k.I("v_exp_f32 v10, -v10")
    k.I("v_exp_f32 v11, -v11")
    k.I("v_add_f32 v10, 1.0, v10")
    k.I("v_add_f32 v11, 1.0, v11")
    k.I("v_rcp_f32 v10, v10")
    k.I("v_rcp_f32 v11, v11")
    k.I("v_mul_f32 v8, v8, v10")
    k.I("v_mul_f32 v9, v9, v11")
    k.I("v_cvt_pk_bf16_f32 v8, v8, v9")
    k.I(f"v_add_u32 v5, {L_S}, v5")
    k.I("ds_write_b32 v5, v8")
    k.I("s_waitcnt lgkmcnt(0)")
    k.barrier()
    k.I(f"v_lshrrev_b32 v8, 4, {v(V_LANE)}")
    k.I("v_lshlrev_b32 v8, 3, v8")
    k.I(f"s_lshl_b32 {s(S_T0)}, {s(S_W)}, 8")
    k.I(f"s_add_u32 {s(S_T0)}, {s(S_T0)}, {L_S}")
    k.I(f"v_add_u32 v8, {s(S_T0)}, v8")
    k.I(f"v_lshlrev_b32 v9, 3, {v(V_LANE)}")
    k.I(f"s_lshl_b32 {s(S_T0)}, {s(S_W)}, 12")
    k.I(f"s_add_u32 {s(S_T0)}, {s(S_T0)}, {L_WM}")
    k.I(f"v_add_u32 v9, {s(S_T0)}, v9")
    for q in range(4):
        k.I(f"ds_read_b64 {v(144+8*q, 2)}, v8 offset:{q*64}")
        k.I(f"ds_read_b64 {v(146+8*q, 2)}, v8 offset:{q*64+32}")
        k.I(f"ds_read_b64_tr_b16 {v(148+8*q, 2)}, v9 offset:{q*1024}")
        k.I(f"ds_read_b64_tr_b16 {v(150+8*q, 2)}, v9 offset:{q*1024+512}")
        if q == 2:
            k.I("s_waitcnt lgkmcnt(8)")
    k.I("s_waitcnt lgkmcnt(0)")
    for q in range(4):
        c = "0" if q == 0 else v(176, 4)
        k.I(f"v_mfma_f32_16x16x32_bf16 {v(176, 4)}, {v(144+8*q, 4)}, {v(148+8*q, 4)}, {c}")
    k.I(f"v_and_b32 v8, 15, {v(V_LANE)}")
    k.I("v_lshlrev_b32 v8, 2, v8")
    k.I(f"s_lshl_b32 {s(S_T0)}, {s(S_W)}, 6")
    k.I(f"s_add_u32 {s(S_T0)}, {s(S_T0)}, {L_GP}")
    k.I(f"v_add_u32 v8, {s(S_T0)}, v8")
    k.I("ds_write_b32 v8, v176")
    k.I("s_waitcnt lgkmcnt(0)")
    k.barrier()
    w0 = k.newlabel("p0c_w0")
    k.wave_is(0, w0)
    k.I(f"v_and_b32 v8, 7, {v(V_LANE)}")
    k.I("v_lshlrev_b32 v8, 3, v8")
    k.I(f"v_add_u32 v9, {L_GP}, v8")
    for w in range(4):
        k.I(f"ds_read_b64 {v(144+2*w, 2)}, v9 offset:{w*64}")
    k.I("s_waitcnt lgkmcnt(0)")
    k.I("v_pk_add_f32 v[144:145], v[144:145], v[146:147]")
    k.I("v_pk_add_f32 v[148:149], v[148:149], v[150:151]")
    k.I("v_pk_add_f32 v[144:145], v[144:145], v[148:149]")
    k.I("v_cvt_pk_bf16_f32 v144, v144, v145")
    k.I(f"v_add_u32 v145, 1, {v(V_TAG)}")
    k.I(f"s_lshl_b32 {s(S_T0)}, {s(S_T4)}, 6")
    k.I(f"s_add_u32 {s(S_T0)}, {s(S_T0)}, {WS_MODG}")
    k.I(f"v_add_u32 v8, {s(S_T0)}, v8")
    k.I("s_mov_b64 exec, 0xff")
    k.I(f"buffer_store_dwordx2 v[144:145], v8, {srd(S_WS)}, 0 offen sc1")
    k.I("s_mov_b64 exec, -1")
    k.label(w0)
    k.cond_end()
    k.label(skip)


X0 = 16
AQ, AK, AV = 144, 160, 176
CB = (192, 208)
HB = (224, 228)
TT = 232
RP, NP = 240, 242
V_TR0, V_TR1, V_CT = 244, 245, 246


def lane_fields(k, t_r=None, s_=None, r_=None, c_=None, nh=None):
    if s_ is not None:
        k.I(f"v_lshrrev_b32 {v(s_)}, 5, {v(V_LANE)}")
    if nh is not None:
        k.I(f"v_bfe_u32 {v(nh)}, {v(V_LANE)}, 4, 1")
    if r_ is not None:
        k.I(f"v_bfe_u32 {v(r_)}, {v(V_LANE)}, 2, 2")
    if c_ is not None:
        k.I(f"v_and_b32 {v(c_)}, 3, {v(V_LANE)}")


def lbase_bytes(k, dst, nh, c, t0, t1):
    k.I(f"v_and_b32 {v(t0)}, 1, {v(c)}")
    k.I(f"v_lshlrev_b32 {v(t0)}, 5, {v(t0)}")
    k.I(f"v_lshrrev_b32 {v(t1)}, 1, {v(c)}")
    k.I(f"v_lshlrev_b32 {v(t1)}, 3, {v(t1)}")
    k.I(f"v_lshl_add_u32 {v(dst)}, {v(nh)}, 4, {v(t0)}")
    k.I(f"v_add_u32 {v(dst)}, {v(dst)}, {v(t1)}")


def p1_prologue(k):
    k.wait_vm("E")
    k.I(f"v_add_u32 {v(V_TAG)}, 1, {v(V_TAG)}")
    k.I(f"v_readfirstlane_b32 {s(S_TAG)}, {v(V_TAG)}")
    k.I(f"s_lshl_b32 {s(S_OFF)}, {s(S_HP)}, 10")
    k.I(f"s_mov_b32 m0, {L_PHI}")
    k._tag = "phi"
    k.dma(V_L16, S_WPHI, s(S_OFF))
    k._tag = None
    k.I("v_mov_b32 v8, 0")
    k.I(f"v_lshlrev_b32 v9, 2, {v(V_LANE)}")
    k.I(f"v_and_b32 v9, 60, v9")
    k.I(f"ds_write_b32 v9, v8 offset:{L_ZERO}" if L_ZERO < 65536 else f"v_add_u32 v9, {L_ZERO}, v9\nds_write_b32 v9, v8")
    k.I(f"v_and_b32 v8, 31, {v(V_LANE)}")
    k.I(f"s_lshl_b32 {s(S_T0)}, {s(S_W)}, 5")
    k.I(f"v_add_u32 v9, {s(S_T0)}, v8")
    k.I("v_lshlrev_b32 v9, 10, v9")
    k.I("v_and_b32 v8, 15, v8")
    k.I(f"v_lshrrev_b32 v10, 5, {v(V_LANE)}")
    for q in range(8):
        k.I(f"v_add_u32 v11, {2*q}, v10")
        k.I("v_xor_b32 v11, v11, v8")
        k.I(f"v_lshl_add_u32 {v(192+q)}, v11, 4, v9")
    k.wait_vm("x")
    for j in range(32):
        k.I(f"ds_read_b128 {v(X0+4*j, 4)}, {v(192+(j&7))} offset:{L_XI + (j>>3)*256}", tag="xf")
        if j % 8 == 7 and j < 31:
            k.I("s_waitcnt lgkmcnt(4)")
    k.wait_lg_all()
    k.barrier()
    k.stamp("x in regs")
    for u in range(3):
        k.I(f"v_add_u32 v8, {64*u}, {v(V_LANE)}")
        k.I("v_mul_u32_u24 v9, 5462, v8")
        k.I("v_lshrrev_b32 v9, 16, v9")
        k.I("v_mul_u32_u24 v10, 12, v9")
        k.I("v_sub_u32 v10, v8, v10")
        k.I("v_lshrrev_b32 v11, 2, v10")
        k.I("v_lshlrev_b32 v11, 10, v11")
        k.I("v_and_b32 v10, 3, v10")
        k.I("v_lshl_add_u32 v11, v10, 4, v11")
        k.I("v_mul_u32_u24 v9, 3072, v9")
        k.I(f"s_lshl_b32 {s(S_T0)}, {s(S_HP)}, 6")
        k.I(f"v_add3_u32 {v(200+u)}, v9, v11, {s(S_T0)}")
    for z in range(192):
        assert (z * 5462) >> 16 == z // 12
    k.I(f"s_mul_i32 {s(S_OFF)}, {s(S_W)}, {128*3072}")
    k.I(f"s_mul_i32 {s(S_T0)}, {s(S_W)}, {24*1024}")
    k.I(f"s_add_u32 m0, {s(S_T0)}, {L_WI}")
    k._tag = "w"
    for gi in range(8):
        for u in range(3):
            k.dma(200 + u, S_WQKV, s(S_OFF))
            if not (gi == 7 and u == 2):
                k.I("s_add_u32 m0, m0, 1024")
        if gi < 7:
            k.I(f"s_add_u32 {s(S_OFF)}, {s(S_OFF)}, {16*3072}")
    k._tag = None
    k.I("v_mov_b32 v8, 0x3f803f80")
    for r in range(10, 14):
        k.I(f"v_mov_b32 {v(r)}, 0")
    for i in range(128):
        k.I(f"v_dot2c_f32_bf16 {v(10 + (i & 1))}, {v(X0+i)}, v8")
        k.I(f"v_dot2c_f32_bf16 {v(12 + (i & 1))}, {v(X0+i)}, {v(X0+i)}")
    k.I("v_add_f32 v10, v10, v11")
    k.I("v_add_f32 v12, v12, v13")
    k.half_total(10, 11)
    k.half_total(12, 13)
    k.I(f"v_mul_f32 v10, {1.0/512:.10g}, v10" if False else "v_mul_f32 v10, 0x3b000000, v10")
    k.I("v_mul_f32 v12, 0x3b000000, v12")
    k.I("v_fma_f32 v12, -v10, v10, v12")
    k.I("v_max_f32 v12, 0, v12")
    k.I("v_add_f32 v12, 0x3727c5ac, v12")
    k.I(f"v_rsq_f32 {v(RP)}, v12")
    k.I(f"v_mul_f32 {v(NP)}, -v10, {v(RP)}" if False else f"v_mul_f32 {v(NP)}, v10, {v(RP)}")
    k.I(f"v_mov_b32 {v(RP+1)}, {v(RP)}")
    k.I(f"v_sub_f32 {v(NP)}, 0, {v(NP)}")
    k.I(f"v_mov_b32 {v(NP+1)}, {v(NP)}")
    k.stamp("stats")
    lane_fields(k, s_=8, r_=9, c_=10, nh=11)
    lbase_bytes(k, 12, 11, 10, 13, 14)
    k.I("v_lshl_add_u32 v8, v8, 3, v9")
    k.I("v_mul_u32_u24 v8, 192, v8")
    k.I(f"v_add_u32 {v(V_TR0)}, v8, v12")
    k.I(f"v_add_u32 {v(V_TR1)}, 49152, {v(V_TR0)}")
    k.I(f"v_lshrrev_b32 v8, 5, {v(V_LANE)}")
    k.I("v_lshlrev_b32 v8, 6, v8")
    k.I(f"v_add_u32 {v(V_CT)}, {L_CT}, v8")
    k.I("v_lshlrev_b32 v8, 3, v0")
    k.I(f"v_add_u32 v8, {WS_MODG}, v8")
    k.load_granules_checked([10, 12], [8, 8], "modA", imm=[0, 2048])
    k.stamp("mod arrived")
    k.unpack(192, 193, 12)
    k.I("v_add_f32 v192, 1.0, v192")
    k.I("v_add_f32 v193, 1.0, v193")
    k.I("v_cvt_pk_bf16_f32 v12, v192, v193")
    k.unpack(192, 193, 12)
    k.unpack(194, 195, 10)
    k.I("v_lshrrev_b32 v8, 3, v0")
    k.I("v_lshlrev_b32 v8, 7, v8")
    k.I("v_bfe_u32 v9, v0, 2, 1")
    k.I("v_lshl_add_u32 v8, v9, 6, v8")
    k.I("v_and_b32 v9, 3, v0")
    k.I("v_lshl_add_u32 v8, v9, 3, v8")
    k.I(f"v_add_u32 v8, {L_CT}, v8")
    k.I("ds_write_b64 v8, v[192:193]")
    k.I("ds_write_b64 v8, v[194:195] offset:32")
    k.wait_vm_all()
    k.wait_lg_all()
    k.barrier()
    k.stamp("P1 ready")


def p1_main(k):
    def lds_c(j):
        b = CB[j & 1]
        for q in range(4):
            k.I(f"ds_read_b128 {v(b+4*q, 4)}, {v(V_CT)} offset:{j*128 + 16*q}", tag=f"c{j}")

    def lds_w(j):
        base = V_TR0 if j < 16 else V_TR1
        for p in range(3):
            for rd in range(2):
                k.I(f"ds_read_b64_tr_b16 {a_(12*(j&1) + 4*p + 2*rd, 2)}, {v(base)} offset:{L_WI + (j & 15)*3072 + rd*768 + p*64}", tag=f"w{j}")

    def norm(j, part):
        cb, h = CB[j & 1], HB[j & 1]
        for d in part:
            t = TT + 2 * d
            k.unpack(t, t + 1, X0 + 4 * j + d)
        for d in part:
            t = TT + 2 * d
            k.I(f"v_pk_fma_f32 {v(t,2)}, {v(t,2)}, {v(RP,2)}, {v(NP,2)}")
        for d in part:
            t = TT + 2 * d
            k.I(f"v_pk_fma_f32 {v(t,2)}, {v(t,2)}, {v(cb+2*d,2)}, {v(cb+8+2*d,2)}")
        for d in part:
            t = TT + 2 * d
            k.I(f"v_cvt_pk_bf16_f32 {v(h+d)}, {v(t)}, {v(t+1)}")

    lds_c(0)
    lds_c(1)
    lds_w(0)
    k.wait_lg("c0")
    norm(0, (0, 1, 2, 3))
    for j in range(32):
        k.wait_lg([f"w{j}", f"c{j+1}"])
        if j + 2 < 32:
            lds_c(j + 2)
        if j + 1 < 32:
            lds_w(j + 1)
        h = v(HB[j & 1], 4)
        wq, wk, wv = (a_(12 * (j & 1) + 4 * p, 4) for p in range(3))
        c0 = "0" if j == 0 else None
        k.mfma32(v(AK, 16), wk, h, c0)
        if j + 1 < 32:
            norm(j + 1, (0, 1))
        k.mfma32(v(AV, 16), h, wv, c0)
        if j + 1 < 32:
            norm(j + 1, (2, 3))
        k.mfma32(v(AQ, 16), wq, h, c0)


def softmax16(k, P, E, outp, outn, t):
    mx, mn = t, t + 2
    k.I(f"v_max3_f32 {v(mx)}, {v(P)}, {v(P+1)}, {v(P+2)}")
    k.I(f"v_min3_f32 {v(mn)}, {v(P)}, {v(P+1)}, {v(P+2)}")
    for i in range(3, 15, 2):
        k.I(f"v_max3_f32 {v(mx)}, {v(mx)}, {v(P+i)}, {v(P+i+1)}")
        k.I(f"v_min3_f32 {v(mn)}, {v(mn)}, {v(P+i)}, {v(P+i+1)}")
    k.I(f"v_max_f32 {v(mx)}, {v(mx)}, {v(P+15)}")
    k.I(f"v_min_f32 {v(mn)}, {v(mn)}, {v(P+15)}")
    k.I(f"v_mul_f32 {v(mx)}, {s(S_L2E)}, {v(mx)}")
    k.I(f"v_mul_f32 {v(mn)}, {s(S_L2E)}, {v(mn)}")
    for sign, m, out in ((+1, mx, outp), (-1, mn, outn)):
        for i in range(0, 16, 2):
            if sign > 0:
                k.I(f"v_pk_fma_f32 {v(E+i,2)}, {v(P+i,2)}, {s(S_L2E,2)}, {v(m,2)} op_sel_hi:[1,1,0] neg_lo:[0,0,1] neg_hi:[0,0,1]")
            else:
                k.I(f"v_pk_fma_f32 {v(E+i,2)}, {v(P+i,2)}, {s(S_L2E,2)}, {v(m,2)} op_sel_hi:[1,1,0] neg_lo:[1,0,0] neg_hi:[1,0,0]")
        for i in range(16):
            k.I(f"v_exp_f32 {v(E+i)}, {v(E+i)}")
        sm = t + 4
        k.I(f"v_pk_add_f32 {v(sm,2)}, {v(E,2)}, {v(E+2,2)}")
        for i in range(4, 16, 2):
            k.I(f"v_pk_add_f32 {v(sm,2)}, {v(sm,2)}, {v(E+i,2)}")
        k.I(f"v_add_f32 {v(sm)}, {v(sm)}, {v(sm+1)}")
        k.I(f"v_rcp_f32 {v(sm)}, {v(sm)}")
        for i in range(0, 16, 2):
            k.I(f"v_pk_mul_f32 {v(E+i,2)}, {v(E+i,2)}, {v(sm,2)} op_sel_hi:[1,0]")
        for i in range(8):
            k.I(f"v_cvt_pk_bf16_f32 {v(out+i)}, {v(E+2*i)}, {v(E+2*i+1)}")


PHI_A, PHI_B = 16, 20
SEL0, SEL1, SELN0, SELN1 = 24, 28, 32, 36
PK = 40
PP = 48
EE = 64
FP, FN = 80, 88
QP, QN = 96, 104
TP, TN = 112, 128
TMP = 192
VP = 200
KVA, KVB = 208, 224


def p1_consts(k):
    k.wait_vm("phi")
    lane_fields(k, s_=8, r_=9, c_=10, nh=11)
    k.I("v_lshlrev_b32 v12, 9, v8")
    k.I("v_lshl_add_u32 v12, v9, 5, v12")
    k.I("v_lshlrev_b32 v13, 1, v11")
    k.I("v_lshrrev_b32 v14, 1, v10")
    k.I("v_add_u32 v13, v13, v14")
    k.I("v_lshl_add_u32 v12, v13, 3, v12")
    k.I(f"v_add_u32 v12, {L_PHI}, v12")
    k.I("v_and_b32 v13, 1, v10")
    k.I("v_cmp_eq_u32 vcc, v13, v8")
    for a in range(2):
        for rd in range(2):
            k.I(f"v_add_u32 v14, {(8*a+4*rd)*32}, v12")
            k.I(f"v_mov_b32 v15, {L_ZERO}")
            k.I("v_cndmask_b32 v14, v15, v14, vcc")
            k.I(f"ds_read_b64_tr_b16 {v(PHI_A + 4*a + 2*rd, 2)}, v14", tag="phif")
    k.I(f"v_bfe_u32 v8, {v(V_LANE)}, 3, 1")
    k.I(f"v_and_b32 v9, 3, {v(V_LANE)}")
    k.I("v_lshl_add_u32 v8, v8, 2, v9")
    k.I("v_and_b32 v9, 1, v8")
    k.I("v_lshlrev_b32 v9, 4, v9")
    k.I("v_mov_b32 v10, 0x3f80")
    k.I("v_lshlrev_b32 v9, v9, v10")
    k.I("v_lshrrev_b32 v8, 1, v8")
    k.I(f"v_bfe_u32 v10, {v(V_LANE)}, 4, 1")
    k.I(f"v_bfe_u32 v11, {v(V_LANE)}, 2, 1")
    k.I(f"v_lshrrev_b32 v12, 5, {v(V_LANE)}")
    k.I("v_xor_b32 v11, v11, v12")
    k.I(f"v_cmp_eq_u32 {s(S_VALID,2)}, 0, v11")
    for neg, base in ((0, SEL0), (1, SELN0)):
        for a in range(2):
            for d in range(4):
                k.I("v_lshlrev_b32 v13, 2, v10")
                k.I("v_add_u32 v13, v13, v8")
                k.I("v_lshl_add_u32 v13, v11, 3, v13")
                k.I(f"v_cmp_eq_u32 vcc, {8*neg + 4*a + d}, v13")
                k.I(f"v_cndmask_b32 {v(base + 4*a + d)}, 0, v9, vcc")
    k.wait_lg("phif")


def p1_epilogue(k):
    p1_consts(k)
    for i in range(8):
        k.I(f"v_cvt_pk_bf16_f32 {v(PK+i)}, {v(AK+2*i)}, {v(AK+2*i+1)}")
    k.mfma32(v(PP, 16), v(PHI_A, 4), v(PK, 4), "0")
    k.mfma32(v(PP, 16), v(PHI_B, 4), v(PK + 4, 4))
    for i in range(8):
        k.I(f"v_cvt_pk_bf16_f32 {v(VP+i)}, {v(AV+2*i)}, {v(AV+2*i+1)}")
    softmax16(k, PP, EE, FP, FN, TMP)
    k.mfma32(v(TP, 16), v(FP, 4), v(SEL0, 4), "0")
    k.mfma32(v(TP, 16), v(FP + 4, 4), v(SEL1, 4))
    k.mfma32(v(TN, 16), v(FN, 4), v(SELN0, 4), "0")
    k.mfma32(v(TN, 16), v(FN + 4, 4), v(SELN1, 4))
    for i in range(8):
        k.I(f"v_cvt_pk_bf16_f32 {v(PK+i)}, {v(AQ+2*i)}, {v(AQ+2*i+1)}")
    k.mfma32(v(PP, 16), v(PHI_A, 4), v(PK, 4), "0")
    k.mfma32(v(PP, 16), v(PHI_B, 4), v(PK + 4, 4))
    for src, pk, z in ((TP, FP, TMP), (TN, FN, TMP + 2)):
        for i in range(8):
            k.I(f"v_cvt_pk_bf16_f32 {v(pk+i)}, {v(src+2*i)}, {v(src+2*i+1)}")
        k.I(f"v_pk_add_f32 {v(z,2)}, {v(src,2)}, {v(src+2,2)}")
        for i in range(4, 16, 2):
            k.I(f"v_pk_add_f32 {v(z,2)}, {v(z,2)}, {v(src+i,2)}")
    k.I(f"v_add_f32 {v(TMP+4)}, {v(TMP)}, {v(TMP+1)}")
    k.I(f"v_add_f32 {v(TMP+5)}, {v(TMP+2)}, {v(TMP+3)}")
    k.mfma32(v(KVA, 16), v(FP, 4), v(VP, 4), "0")
    k.mfma32(v(KVA, 16), v(FP + 4, 4), v(VP + 4, 4))
    k.mfma32(v(KVB, 16), v(FN, 4), v(VP, 4), "0")
    k.mfma32(v(KVB, 16), v(FN + 4, 4), v(VP + 4, 4))
    for i in range(16):
        k.I(f"v_cndmask_b32 {v(KVA+i)}, {v(KVB+i)}, {v(KVA+i)}, {s(S_VALID,2)}")
    k.I(f"s_mul_i32 {s(S_T0)}, {s(S_W)}, 4608")
    k.I(f"s_add_u32 {s(S_T0)}, {s(S_T0)}, {L_RED}")
    k.I(f"v_add_u32 v8, {s(S_T0)}, {v(V_L16)}")
    for q in range(4):
        k.I(f"ds_write_b128 v8, {v(KVA+4*q,4)} offset:{q*1024}")
    k.I(f"v_lshlrev_b32 v9, 3, {v(V_LANE)}")
    k.I(f"v_add_u32 v9, {s(S_T0)}, v9")
    k.I(f"ds_write_b64 v9, {v(TMP+4,2)} offset:4096")
    k.wait_lg_all()
    k.barrier()
    k.I(f"s_lshl_b32 {s(S_T0)}, {s(S_W)}, 10")
    k.I(f"s_add_u32 {s(S_T0)}, {s(S_T0)}, {L_RED}")
    k.I(f"v_add_u32 v8, {s(S_T0)}, {v(V_L16)}")
    for ww in range(4):
        k.I(f"ds_read_b128 {v(KVA+4*ww,4)}, v8 offset:{ww*4608}")
    k.I(f"v_lshlrev_b32 v9, 3, {v(V_LANE)}")
    k.I(f"v_add_u32 v9, {L_RED + 4096}, v9")
    for ww in range(4):
        k.I(f"ds_read_b64 {v(KVB+2*ww,2)}, v9 offset:{ww*4608}")
    k.wait_lg_all()
    for h in (0, 2):
        k.I(f"v_pk_add_f32 {v(KVA+h,2)}, {v(KVA+h,2)}, {v(KVA+4+h,2)}")
        k.I(f"v_pk_add_f32 {v(KVA+8+h,2)}, {v(KVA+8+h,2)}, {v(KVA+12+h,2)}")
        k.I(f"v_pk_add_f32 {v(KVA+h,2)}, {v(KVA+h,2)}, {v(KVA+8+h,2)}")
    k.I(f"v_cvt_pk_bf16_f32 {v(KVA)}, {v(KVA)}, {v(KVA+1)}")
    k.I(f"v_cvt_pk_bf16_f32 {v(KVA+1)}, {v(KVA+2)}, {v(KVA+3)}")
    k.I(f"v_pk_add_f32 {v(KVB,2)}, {v(KVB,2)}, {v(KVB+2,2)}")
    k.I(f"v_pk_add_f32 {v(KVB+4,2)}, {v(KVB+4,2)}, {v(KVB+6,2)}")
    k.I(f"v_pk_add_f32 {v(KVB,2)}, {v(KVB,2)}, {v(KVB+4,2)}")
    k.I(f"v_cvt_pk_bf16_f32 {v(KVB)}, {v(KVB)}, {v(KVB+1)}")
    k.I(f"s_lshl_b32 {s(S_T0)}, {s(S_HP)}, 4")
    k.I(f"s_add_u32 {s(S_T0)}, {s(S_T0)}, {s(S_M)}")
    k.I(f"s_lshl_b32 {s(S_T1)}, {s(S_T0)}, 12")
    k.I(f"s_add_u32 {s(S_T1)}, {s(S_T1)}, {WS_KVP}")
    k.I(f"s_lshl_b32 {s(S_T2)}, {s(S_W)}, 9")
    k.I(f"s_add_u32 {s(S_T2)}, {s(S_T2)}, {s(S_T1)}")
    k.I(f"v_lshlrev_b32 v9, 3, {v(V_LANE)}")
    k.I(f"v_add_u32 v9, {s(S_T2)}, v9")
    k.I(f"buffer_store_dwordx2 {v(KVA,2)}, v9, {srd(S_WS)}, 0 offen sc1", tag="kvst")
    w0 = k.newlabel("kvz")
    k.wave_is(0, w0)
    k.cond_begin()
    k.I(f"v_lshlrev_b32 v9, 2, {v(V_LANE)}")
    k.I(f"v_add_u32 v9, {s(S_T1)}, v9")
    k.I(f"buffer_store_dword {v(KVB)}, v9, {srd(S_WS)}, 0 offen offset:2048 sc1")
    k.cond_end()
    k.label(w0)
    k.wait_vm_all()
    k.I(f"s_lshl_b32 {s(S_T0)}, {s(S_T0)}, 7")
    k.I(f"s_add_u32 {s(S_T0)}, {s(S_T0)}, {WS_FKV}")
    k.signal(S_T0, "fkv")
    k.stamp("kv published")
    softmax16(k, PP, EE, QP, QN, TMP)
    k.stamp("q softmax")


def ub_part(k):
    skip = k.newlabel("ub_skip")
    k.barrier()
    k.I("s_cmp_ge_u32 s2, 112")
    k.I(f"s_cbranch_scc1 {skip}")
    k.cond_begin()
    k.I("s_cmp_lt_u32 s2, 56")
    for i in range(4):
        k.I(f"s_cselect_b32 {s(S_SEL+i)}, {s(S_WG+i)}, {s(S_WU+i)}")
    k.I(f"s_sub_u32 {s(S_T0)}, s2, 56")
    k.I("s_cmp_lt_u32 s2, 56")
    k.I(f"s_cselect_b32 {s(S_T0)}, s2, {s(S_T0)}")
    k.I(f"s_lshl_b32 {s(S_T0)}, {s(S_T0)}, 6")
    k.I(f"v_lshrrev_b32 v8, 2, {v(V_LANE)}")
    k.I("v_mul_u32_u24 v8, 3584, v8")
    k.I(f"v_and_b32 v9, 3, {v(V_LANE)}")
    k.I("v_lshl_add_u32 v8, v9, 4, v8")
    k.I(f"v_add_u32 v8, {s(S_T0)}, v8")
    k.I(f"s_mul_i32 {s(S_OFF)}, {s(S_W)}, {128*3584}")
    k.I(f"s_lshl_b32 {s(S_T0)}, {s(S_W)}, 13")
    k.I(f"s_add_u32 m0, {s(S_T0)}, {L_UB}")
    for n in range(8):
        k.dma(8, S_SEL, s(S_OFF))
        if n < 7:
            k.I("s_add_u32 m0, m0, 1024")
            k.I(f"s_add_u32 {s(S_OFF)}, {s(S_OFF)}, {16*3584}")
    k.I("v_lshlrev_b32 v8, 3, v0")
    k.I(f"v_add_u32 v8, {WS_MODG + 768*8}, v8")
    k.load_granules_checked([10, 12], [8, 8], "modU", imm=[0, 2048])
    k.cond_begin()
    k.unpack(14, 15, 12)
    k.I("v_add_f32 v14, 1.0, v14")
    k.I("v_add_f32 v15, 1.0, v15")
    k.I("v_cvt_pk_bf16_f32 v12, v14, v15")
    k.I("v_lshlrev_b32 v8, 2, v0")
    k.I(f"v_add_u32 v8, {L_CS}, v8")
    k.I("v_mov_b32 v9, 0")
    k.I("ds_write_b32 v8, v12")
    k.I("ds_write_b32 v8, v10 offset:1024")
    k.I("ds_write_b32 v8, v9 offset:2048")
    k.I("s_waitcnt vmcnt(0) lgkmcnt(0)")
    k.barrier()
    w0 = k.newlabel("ub_w")
    k.wave_is(3, w0)
    k.I(f"v_and_b32 v8, 31, {v(V_LANE)}")
    k.I("v_min_u32 v8, 2, v8")
    k.I("v_lshlrev_b32 v8, 10, v8")
    k.I(f"v_lshrrev_b32 v9, 5, {v(V_LANE)}")
    k.I("v_lshl_add_u32 v8, v9, 4, v8")
    k.I(f"v_add_u32 v8, {L_CS}, v8")
    lane_fields(k, s_=9, r_=10, c_=11, nh=12)
    k.I("v_lshl_add_u32 v9, v9, 3, v10")
    k.I("v_lshlrev_b32 v9, 6, v9")
    k.I("v_lshl_add_u32 v9, v12, 5, v9")
    k.I("v_lshl_add_u32 v9, v11, 3, v9")
    for j in range(32):
        b = 112 + 8 * (j & 3)
        k.I(f"ds_read_b128 {v(b,4)}, v8 offset:{j*32}")
        k.I(f"ds_read_b64_tr_b16 {v(b+4,2)}, v9 offset:{L_UB + j*1024}")
        k.I(f"ds_read_b64_tr_b16 {v(b+6,2)}, v9 offset:{L_UB + j*1024 + 256}")
        if j >= 2:
            k.I("s_waitcnt lgkmcnt(6)")
            bb = 112 + 8 * ((j - 2) & 3)
            k.mfma32(v(144, 16), v(bb, 4), v(bb + 4, 4), "0" if j == 2 else None)
    for j in (30, 31):
        k.I(f"s_waitcnt lgkmcnt({3 if j == 30 else 0})")
        bb = 112 + 8 * (j & 3)
        k.mfma32(v(144, 16), v(bb, 4), v(bb + 4, 4))
    k.I("v_cvt_pk_bf16_f32 v160, v144, v145")
    k.unpack(162, 163, 160)
    k.I("v_sub_f32 v164, v144, v162")
    k.I("v_sub_f32 v165, v145, v163")
    k.I("v_cvt_pk_bf16_f32 v161, v164, v165")
    k.I(f"s_mov_b32 {s(S_T0)}, 0x05040100")
    k.I(f"s_mov_b32 {s(S_T1)}, 0x07060302")
    k.I(f"v_perm_b32 v168, v161, v160, {s(S_T0)}")
    k.I("v_mov_b32 v169, v160")
    k.I(f"v_perm_b32 v170, v160, v161, {s(S_T1)}")
    k.I(f"v_mov_b32 v171, {v(V_TAG)}")
    k.I(f"s_lshl_b32 {s(S_T0)}, s2, 9")
    k.I(f"s_add_u32 {s(S_T0)}, {s(S_T0)}, {WS_WEXT}")
    k.I(f"v_add_u32 v8, {s(S_T0)}, {v(V_L16)}")
    k.I("s_mov_b32 exec_hi, 0")
    k.I(f"buffer_store_dwordx4 v[168:171], v8, {srd(S_WS)}, 0 offen sc1")
    k.I("s_mov_b64 exec, -1")
    k.label(w0)
    k.cond_end()
    k.cond_end()
    k.label(skip)
    k.barrier()


def wo_issue(k):
    k.I(f"s_and_b32 {s(S_T0)}, {s(S_J)}, 7")
    k.I(f"s_lshl_b32 {s(S_T0)}, {s(S_T0)}, 7")
    k.I(f"v_lshrrev_b32 v8, 3, {v(V_LANE)}")
    k.I("v_lshlrev_b32 v8, 10, v8")
    k.I(f"v_and_b32 v9, 7, {v(V_LANE)}")
    k.I(f"v_bfe_u32 v10, {v(V_LANE)}, 4, 1")
    k.I("v_lshlrev_b32 v10, 2, v10")
    k.I("v_xor_b32 v9, v9, v10")
    k.I("v_lshl_add_u32 v8, v9, 4, v8")
    k.I(f"v_add_u32 v8, {s(S_T0)}, v8")
    k.I(f"s_lshl_b32 {s(S_OFF)}, {s(S_W)}, 17")
    k.I(f"s_lshl_b32 {s(S_T0)}, {s(S_W)}, 14")
    k.I(f"s_add_u32 m0, {s(S_T0)}, {L_WO}")
    k._tag = "wo"
    for n in range(16):
        k.dma(8, S_WO, s(S_OFF))
        if n < 15:
            k.I("s_add_u32 m0, m0, 1024")
            k.I(f"s_add_u32 {s(S_OFF)}, {s(S_OFF)}, 8192")
    k._tag = None


def swz128_base(k, dst, cbk_sreg=None, cbk_imm=None, s_mul=16):
    lane_fields(k, s_=8, r_=9, c_=10, nh=11)
    lbase_bytes(k, 12, 11, 10, 13, 14)
    k.I(f"v_mul_u32_u24 v8, {s_mul}, v8")
    k.I("v_add_u32 v8, v8, v9")
    k.I("v_lshlrev_b32 v8, 7, v8")
    k.I("v_lshrrev_b32 v9, 1, v9")
    if cbk_sreg is not None:
        k.I(f"v_xor_b32 v9, {s(cbk_sreg)}, v9")
    elif cbk_imm:
        k.I(f"v_xor_b32 v9, {cbk_imm}, v9")
    k.I("v_lshl_add_u32 v8, v9, 6, v8")
    k.I(f"v_add_u32 {v(dst)}, v8, v12")


def kv_combine_and_o(k):
    k.I(f"s_lshl_b32 {s(S_T0)}, {s(S_HP)}, 11")
    k.I(f"s_add_u32 {s(S_T0)}, {s(S_T0)}, {WS_FKV}")
    k.poll_flags(S_T0, 16, "pkv")
    k.stamp("kv flags seen")
    k.I(f"s_lshl_b32 {s(S_T1)}, {s(S_HP)}, 16")
    k.I(f"s_add_u32 {s(S_T1)}, {s(S_T1)}, {WS_KVP}")
    k.I(f"s_lshl_b32 {s(S_T2)}, {s(S_W)}, 9")
    k.I(f"s_add_u32 {s(S_T2)}, {s(S_T2)}, {s(S_T1)}")
    k.I(f"v_lshlrev_b32 v8, 3, {v(V_LANE)}")
    k.I(f"s_mov_b32 {s(S_OFF)}, {s(S_T2)}")
    for mm in range(16):
        k.I(f"buffer_load_dwordx2 {v(112+2*mm,2)}, v8, {srd(S_WS)}, {s(S_OFF)} offen sc1", tag="kvp")
        k.I(f"s_add_u32 {s(S_OFF)}, {s(S_OFF)}, 4096")
    k.I(f"v_lshlrev_b32 v9, 2, {v(V_LANE)}")
    k.I(f"s_add_u32 {s(S_OFF)}, {s(S_T1)}, 2048")
    for mm in range(16):
        k.I(f"buffer_load_dword {v(144+mm)}, v9, {srd(S_WS)}, {s(S_OFF)} offen sc1", tag="kvz")
        k.I(f"s_add_u32 {s(S_OFF)}, {s(S_OFF)}, 4096")
    k.I("v_mov_b32 v10, 0x3f80")
    k.I("v_mov_b32 v11, 0x3f800000")
    for r in range(160, 166):
        k.I(f"v_mov_b32 {v(r)}, 0")
    k.wait_vm("kvp")
    for mm in range(16):
        for d in range(2):
            k.I(f"v_dot2c_f32_bf16 {v(160+2*d)}, {v(112+2*mm+d)}, v10")
            k.I(f"v_dot2c_f32_bf16 {v(161+2*d)}, {v(112+2*mm+d)}, v11")
    k.wait_vm("kvz")
    for mm in range(16):
        k.I(f"v_dot2c_f32_bf16 v164, {v(144+mm)}, v10")
        k.I(f"v_dot2c_f32_bf16 v165, {v(144+mm)}, v11")
    k.I("v_cvt_pk_bf16_f32 v160, v160, v161")
    k.I("v_cvt_pk_bf16_f32 v161, v162, v163")
    k.I(f"v_lshlrev_b32 v8, 5, {v(V_LANE)}")
    k.I(f"s_lshl_b32 {s(S_T0)}, {s(S_W)}, 3")
    k.I(f"s_add_u32 {s(S_T0)}, {s(S_T0)}, {L_KVF}")
    k.I(f"v_add_u32 v8, {s(S_T0)}, v8")
    k.I("ds_write_b64 v8, v[160:161]")
    k.half_total(164, 166)
    k.half_total(165, 166)
    k.I("v_cvt_pk_bf16_f32 v164, v164, v165")
    k.I(f"v_bfe_u32 v8, {v(V_LANE)}, 2, 1")
    k.I(f"v_bfe_u32 v9, {v(V_LANE)}, 3, 2")
    k.I(f"v_and_b32 v10, 3, {v(V_LANE)}")
    k.I("v_lshl_add_u32 v9, v9, 2, v10")
    k.I("v_lshlrev_b32 v9, 1, v9")
    k.I("v_lshl_add_u32 v10, v8, 5, v9")
    k.I(f"v_add_u32 v10, {L_Z}, v10")
    k.I("v_xor_b32 v8, 1, v8")
    k.I("v_lshl_add_u32 v11, v8, 5, v9")
    k.I(f"v_add_u32 v11, {L_Z + 64}, v11")
    w0 = k.newlabel("zw")
    k.wave_is(0, w0)
    k.cond_begin()
    k.I("ds_write_b16 v10, v164")
    k.I("ds_write_b16_d16_hi v11, v164")
    k.cond_end()
    k.label(w0)
    k.wait_lg_all()
    k.barrier()
    k.I(f"v_lshlrev_b32 v8, 5, {v(V_LANE)}")
    k.I(f"v_add_u32 v8, {L_KVF}, v8")
    k.I(f"v_xor_b32 v9, 32, {v(V_LANE)}")
    k.I("v_lshlrev_b32 v9, 5, v9")
    k.I(f"v_add_u32 v9, {L_KVF}, v9")
    k.I(f"v_mov_b32 v10, {L_ZERO}")
    k.I(f"v_cndmask_b32 v8, v10, v8, {s(S_VALID,2)}")
    k.I(f"v_cndmask_b32 v9, v10, v9, {s(S_VALID,2)}")
    k.I(f"v_lshrrev_b32 v10, 5, {v(V_LANE)}")
    k.I("v_lshlrev_b32 v10, 5, v10")
    k.I(f"v_add_u32 v10, {L_Z}, v10")
    PF, NF, ZP, ZN = 112, 120, 128, 136
    k.I(f"ds_read_b128 {v(PF,4)}, v8")
    k.I(f"ds_read_b128 {v(PF+4,4)}, v8 offset:16")
    k.I(f"ds_read_b128 {v(NF,4)}, v9")
    k.I(f"ds_read_b128 {v(NF+4,4)}, v9 offset:16")
    k.I(f"ds_read_b128 {v(ZP,4)}, v10")
    k.I(f"ds_read_b128 {v(ZP+4,4)}, v10 offset:16")
    k.I(f"ds_read_b128 {v(ZN,4)}, v10 offset:64")
    k.I(f"ds_read_b128 {v(ZN+4,4)}, v10 offset:80")
    k.wait_lg_all()
    NUM = 144
    k.mfma32(v(NUM, 16), v(PF, 4), v(QP, 4), "0")
    k.mfma32(v(NUM, 16), v(PF + 4, 4), v(QP + 4, 4))
    k.mfma32(v(NUM, 16), v(NF, 4), v(QN, 4))
    k.mfma32(v(NUM, 16), v(NF + 4, 4), v(QN + 4, 4))
    k.I("v_mov_b32 v10, 0")
    k.I("v_mov_b32 v11, 0")
    for i in range(8):
        k.I(f"v_dot2c_f32_bf16 v10, {v(QP+i)}, {v(ZP+i)}")
        k.I(f"v_dot2c_f32_bf16 v11, {v(QN+i)}, {v(ZN+i)}")
    k.I("v_add_f32 v10, v10, v11")
    k.I("v_add_f32 v10, 0x358637bd, v10")
    k.I("v_rcp_f32 v10, v10")
    for i in range(0, 16, 2):
        k.I(f"v_pk_mul_f32 {v(NUM+i,2)}, {v(NUM+i,2)}, v[10:11] op_sel_hi:[1,0]")
    for i in range(8):
        k.I(f"v_cvt_pk_bf16_f32 {v(160+i)}, {v(NUM+2*i)}, {v(NUM+2*i+1)}")
    k.I(f"s_lshl_b32 {s(S_T0)}, {s(S_M)}, 2")
    k.I(f"s_add_u32 {s(S_T0)}, {s(S_T0)}, {s(S_W)}")
    k.I(f"s_lshl_b32 {s(S_T0)}, {s(S_T0)}, 15")
    k.I(f"s_lshl_b32 {s(S_T1)}, {s(S_HP)}, 11")
    k.I(f"s_add_u32 {s(S_T0)}, {s(S_T0)}, {s(S_T1)}")
    k.I(f"s_add_u32 {s(S_T0)}, {s(S_T0)}, {WS_O}")
    k.I(f"v_add_u32 v8, {s(S_T0)}, {v(V_L16)}")
    k.I(f"buffer_store_dwordx4 v[160:163], v8, {srd(S_WS)}, 0 offen sc1")
    k.I(f"buffer_store_dwordx4 v[164:167], v8, {srd(S_WS)}, 0 offen offset:1024 sc1")
    k.wait_vm_all()
    k.I(f"s_lshl_b32 {s(S_T0)}, {s(S_M)}, 4")
    k.I(f"s_add_u32 {s(S_T0)}, {s(S_T0)}, {s(S_J)}")
    k.I(f"s_lshl_b32 {s(S_T0)}, {s(S_T0)}, 7")
    k.I(f"s_add_u32 {s(S_T0)}, {s(S_T0)}, {WS_FO}")
    k.signal(S_T0, "fo")
    k.stamp("o published")


S_TBL, S_CBK, S_TB, S_B32 = 96, 97, 98, 99


def quad_ids(k):
    k.I(f"s_and_b32 {s(S_TBL)}, {s(S_W)}, 1")
    k.I(f"s_lshr_b32 {s(S_CBK)}, {s(S_W)}, 1")
    k.I(f"s_lshr_b32 {s(S_T0)}, {s(S_J)}, 3")
    k.I(f"s_lshl_b32 {s(S_T0)}, {s(S_T0)}, 1")
    k.I(f"s_lshl_b32 {s(S_TB)}, {s(S_M)}, 2")
    k.I(f"s_add_u32 {s(S_TB)}, {s(S_TB)}, {s(S_T0)}")
    k.I(f"s_add_u32 {s(S_TB)}, {s(S_TB)}, {s(S_TBL)}")
    k.I(f"s_and_b32 {s(S_B32)}, {s(S_J)}, 7")
    k.I(f"s_lshl_b32 {s(S_B32)}, {s(S_B32)}, 1")
    k.I(f"s_add_u32 {s(S_B32)}, {s(S_B32)}, {s(S_CBK)}")


def mod16(k, dst_regs, gran0, stem):
    k.I(f"v_lshrrev_b32 v8, 5, {v(V_LANE)}")
    k.I("v_lshlrev_b32 v8, 6, v8")
    k.I(f"s_lshl_b32 {s(S_T0)}, {s(S_B32)}, 7")
    k.I(f"s_add_u32 {s(S_T0)}, {s(S_T0)}, {WS_MODG + gran0*8}")
    k.I(f"v_add_u32 v8, {s(S_T0)}, v8")
    k.load_granules_checked([dst_regs + 4 * i for i in range(4)], [8] * 4, stem, width=4, tagpos=(1, 3), imm=[0, 16, 32, 48])


def p2(k):
    quad_ids(k)
    swz128_base(k, 15, cbk_sreg=S_CBK)
    k.wait_vm_all()
    k.barrier()
    for kap in range(32):
        hp, a = kap >> 1, kap & 1
        for rd in range(2):
            k.I(f"ds_read_b64_tr_b16 {a_(4*kap + 2*rd, 2)}, v15 offset:{L_WO + (32*hp + 8*a + 4*rd)*128}", tag="wof")
        if kap % 4 == 3:
            k.I("s_waitcnt lgkmcnt(4)")
    k.I(f"v_and_b32 v8, 31, {v(V_LANE)}")
    k.I("v_lshlrev_b32 v8, 10, v8")
    k.I(f"v_lshrrev_b32 v9, 5, {v(V_LANE)}")
    k.I("v_lshl_add_u32 v8, v9, 5, v8")
    k.I(f"s_lshl_b32 {s(S_T0)}, {s(S_TB)}, 15")
    k.I(f"s_lshl_b32 {s(S_T1)}, {s(S_B32)}, 6")
    k.I(f"s_add_u32 {s(S_T0)}, {s(S_T0)}, {s(S_T1)}")
    k.I(f"v_add_u32 v8, {s(S_T0)}, v8")
    XR, GA, CBR = 64, 72, 88
    k.I(f"buffer_load_dwordx4 {v(XR,4)}, v8, {srd(S_X)}, 0 offen", tag="xr")
    k.I(f"buffer_load_dwordx4 {v(XR+4,4)}, v8, {srd(S_X)}, 0 offen offset:16", tag="xr")
    mod16(k, GA, 512, "ga")
    mod16(k, CBR, 1024, "cb")
    k.wait_lg_all()
    k.I(f"s_lshl_b32 {s(S_T0)}, {s(S_M)}, 11")
    k.I(f"s_add_u32 {s(S_T0)}, {s(S_T0)}, {WS_FO}")
    k.poll_flags(S_T0, 16, "po")
    k.stamp("o flags seen")
    k.I(f"s_sub_u32 {s(S_T0)}, {s(S_TB)}, {s(S_TBL)}")
    k.I(f"s_lshl_b32 {s(S_T0)}, {s(S_T0)}, 15")
    k.I(f"s_lshl_b32 {s(S_T1)}, {s(S_W)}, 14")
    k.I(f"s_add_u32 {s(S_OFF)}, {s(S_T0)}, {s(S_T1)}")
    k.I(f"s_add_u32 {s(S_OFF)}, {s(S_OFF)}, {WS_O}")
    k.I(f"s_add_u32 m0, {s(S_T1)}, {L_OI}")
    k._tag = "of"
    for n in range(16):
        k.dma(V_L16, S_WS, s(S_OFF), sc1=True)
        if n < 15:
            k.I("s_add_u32 m0, m0, 1024")
            k.I(f"s_add_u32 {s(S_OFF)}, {s(S_OFF)}, 1024")
    k._tag = None
    k.I(f"s_lshl_b32 {s(S_T0)}, {s(S_TBL)}, 15")
    k.I(f"s_add_u32 {s(S_T0)}, {s(S_T0)}, {L_OI}")
    k.I(f"v_add_u32 v14, {s(S_T0)}, {v(V_L16)}")
    k.wait_vm_all()
    k.barrier()
    ACC = 112
    nb = 6
    for kap in range(32 + nb - 2):
        if kap < 32:
            k.I(f"ds_read_b128 {v(16 + 4*(kap % nb), 4)}, v14 offset:{kap*1024}", tag=f"o{kap}")
        q = kap - (nb - 2)
        if q >= 0:
            k.wait_lg(f"o{q}")
            k.mfma32(v(ACC, 16), a_(4 * q, 4), v(16 + 4 * (q % nb), 4), "0" if q == 0 else None)
    k.stamp("wo gemm")
    T = 128
    X1 = 136
    YP = 144
    k.I("v_mov_b32 v10, 0")
    k.I("v_mov_b32 v11, 0")
    k.I("v_mov_b32 v12, 0x3f803f80")
    for i in range(8):
        g = GA + 4 * (i >> 1) + 2 * (i & 1)
        c = CBR + 4 * (i >> 1) + 2 * (i & 1)
        k.unpack(T, T + 1, g)
        k.unpack(T + 2, T + 3, XR + i)
        k.I(f"v_pk_fma_f32 {v(T+2,2)}, {v(T,2)}, {v(ACC+2*i,2)}, {v(T+2,2)}")
        k.I(f"v_cvt_pk_bf16_f32 {v(X1+i)}, {v(T+2)}, {v(T+3)}")
        k.unpack(T + 4, T + 5, c)
        k.I(f"v_pk_add_f32 {v(T+4,2)}, {v(T+4,2)}, 1.0 op_sel_hi:[1,0]")
        k.I(f"v_cvt_pk_bf16_f32 {v(T+4)}, {v(T+4)}, {v(T+5)}")
        k.unpack(T + 6, T + 7, T + 4)
        k.unpack(T + 2, T + 3, X1 + i)
        k.I(f"v_pk_mul_f32 {v(T+2,2)}, {v(T+2,2)}, {v(T+6,2)}")
        k.I(f"v_cvt_pk_bf16_f32 {v(YP+i)}, {v(T+2)}, {v(T+3)}")
        k.I(f"v_dot2c_f32_bf16 v10, {v(X1+i)}, v12")
        k.I(f"v_dot2c_f32_bf16 v11, {v(X1+i)}, {v(X1+i)}")
    k.I(f"s_lshl_b32 {s(S_T0)}, {s(S_TB)}, 15")
    k.I(f"s_lshl_b32 {s(S_T1)}, {s(S_B32)}, 11")
    k.I(f"s_add_u32 {s(S_T0)}, {s(S_T0)}, {s(S_T1)}")
    k.I(f"s_add_u32 {s(S_T0)}, {s(S_T0)}, {WS_Y}")
    k.I(f"v_add_u32 v8, {s(S_T0)}, {v(V_L16)}")
    k.I(f"buffer_store_dwordx4 {v(YP,4)}, v8, {srd(S_WS)}, 0 offen sc1")
    k.I(f"buffer_store_dwordx4 {v(YP+4,4)}, v8, {srd(S_WS)}, 0 offen offset:1024 sc1")
    k.half_total(10, 13)
    k.half_total(11, 13)
    k.I(f"s_lshl_b32 {s(S_T0)}, {s(S_TB)}, 4")
    k.I(f"s_add_u32 {s(S_T0)}, {s(S_T0)}, {s(S_B32)}")
    k.I(f"s_lshl_b32 {s(S_T0)}, {s(S_T0)}, 8")
    k.I(f"s_add_u32 {s(S_T0)}, {s(S_T0)}, {WS_STATS}")
    k.I(f"v_lshlrev_b32 v8, 3, {v(V_LANE)}")
    k.I(f"v_add_u32 v8, {s(S_T0)}, v8")
    k.I("s_mov_b32 exec_hi, 0")
    k.I(f"buffer_store_dwordx2 v[10:11], v8, {srd(S_WS)}, 0 offen sc1")
    k.I("s_mov_b64 exec, -1")
    for i in range(8):
        k.I(f"v_accvgpr_write_b32 {a_(240+i)}, {v(X1+i)}")
    k.wait_vm_all()
    k.I(f"s_lshl_b32 {s(S_T0)}, {s(S_M)}, 4")
    k.I(f"s_add_u32 {s(S_T0)}, {s(S_T0)}, {s(S_J)}")
    k.I(f"s_lshl_b32 {s(S_T0)}, {s(S_T0)}, 7")
    k.I(f"s_add_u32 {s(S_T0)}, {s(S_T0)}, {WS_FY}")
    k.signal(S_T0, "fy")
    noe = k.newlabel("noepoch")
    k.I("s_cmp_eq_u32 s2, 0")
    k.I(f"s_cbranch_scc0 {noe}")
    k.wave_is(0, noe)
    k.cond_begin()
    k.I("v_mov_b32 v8, 0")
    k.I("s_mov_b64 exec, 1")
    k.I(f"buffer_store_dword {v(V_TAG)}, v8, {srd(S_WS)}, 0 offen sc1")
    k.I("s_mov_b64 exec, -1")
    k.cond_end()
    k.label(noe)
    k.stamp("y published")


def p3(k):
    Y0, ACC = 16, 144
    VTR = (4, 5, 6)
    VD = 7
    k.I(f"s_and_b32 {s(S_T0)}, {s(S_W)}, 1")
    k.I(f"s_cmp_eq_u32 {s(S_T0)}, 0")
    for i in range(4):
        k.I(f"s_cselect_b32 {s(S_SEL+i)}, {s(S_WG+i)}, {s(S_WU+i)}")
    for n in range(7):
        k.I(f"v_add_u32 v14, {64*n}, {v(V_LANE)}")
        k.I("v_mul_u32_u24 v15, 4682, v14")
        k.I("v_lshrrev_b32 v15, 16, v15")
        k.I(f"v_mul_u32_u24 {v(VD+n)}, 14, v15")
        k.I(f"v_sub_u32 v14, v14, {v(VD+n)}")
        k.I("v_mul_u32_u24 v15, 3584, v15")
        k.I("v_lshl_add_u32 v15, v14, 4, v15")
        k.I(f"s_mul_i32 {s(S_T0)}, {s(S_J)}, 224")
        k.I(f"v_add_u32 {v(VD+n)}, {s(S_T0)}, v15")
    for z in range(448):
        assert (z * 4682) >> 16 == z // 14
    S_M0, S_SO = S_T3, S_T4
    k.I(f"s_lshr_b32 {s(S_T0)}, {s(S_W)}, 1")
    k.I(f"s_mul_i32 {s(S_M0)}, {s(S_T0)}, {SLAB}")
    k.I(f"s_and_b32 {s(S_T1)}, {s(S_W)}, 1")
    k.I(f"s_mul_i32 {s(S_T1)}, {s(S_T1)}, {UOFF}")
    k.I(f"s_add_u32 {s(S_M0)}, {s(S_M0)}, {s(S_T1)}")
    k.I(f"s_mul_i32 {s(S_SO)}, {s(S_T0)}, {32*3584}")

    def dma_pair(P):
        k._tag = f"W{P}"
        k.I(f"s_add_u32 m0, {s(S_M0)}, {(P % 5) * 2 * SLAB}")
        k.I(f"s_add_u32 {s(S_OFF)}, {s(S_SO)}, {P * 2 * 32 * 3584}")
        for n in range(7):
            k.dma(VD + n, S_SEL, s(S_OFF))
            if n < 6:
                k.I("s_add_u32 m0, m0, 1024")
        k._tag = None

    for P in range(5):
        dma_pair(P)
    lane_fields(k, s_=14, r_=15)
    k.I("v_lshl_add_u32 v14, v14, 4, v15")
    k.I("v_mul_u32_u24 v14, 224, v14")
    k.I(f"v_bfe_u32 v15, {v(V_LANE)}, 4, 1")
    k.I(f"v_mul_u32_u24 v15, {UOFF}, v15")
    k.I("v_add_u32 v14, v14, v15")
    k.I(f"v_and_b32 v15, 1, {v(V_LANE)}")
    k.I("v_lshl_add_u32 v14, v15, 4, v14")
    k.I(f"v_bfe_u32 v15, {v(V_LANE)}, 1, 1")
    k.I(f"v_lshl_add_u32 {v(VTR[0])}, v15, 3, v14")
    k.I(f"v_add_u32 {v(VTR[1])}, {4*SLAB}, {v(VTR[0])}")
    k.I(f"v_add_u32 {v(VTR[2])}, {8*SLAB}, {v(VTR[0])}")
    k.I(f"s_lshl_b32 {s(S_T0)}, {s(S_M)}, 11")
    k.I(f"s_add_u32 {s(S_T0)}, {s(S_T0)}, {WS_FY}")
    k.poll_flags(S_T0, 16, "py")
    k.wait_vm_all()
    k.stamp("y flags seen")
    S_TB3 = S_T2
    k.I(f"s_lshl_b32 {s(S_TB3)}, {s(S_M)}, 2")
    k.I(f"s_add_u32 {s(S_TB3)}, {s(S_TB3)}, {s(S_W)}")
    k.I(f"s_lshl_b32 {s(S_OFF)}, {s(S_TB3)}, 15")
    k.I(f"s_add_u32 {s(S_OFF)}, {s(S_OFF)}, {WS_Y}")
    for kap in range(32):
        k.I(f"buffer_load_dwordx4 {v(Y0+4*kap,4)}, {v(V_L16)}, {srd(S_WS)}, {s(S_OFF)} offen offset:{(kap&3)*1024} sc1", tag=f"y{kap}")
        if kap & 3 == 3 and kap < 31:
            k.I(f"s_add_u32 {s(S_OFF)}, {s(S_OFF)}, 4096")

    def lds_w(kap):
        B, a = kap >> 1, kap & 1
        P = B >> 1
        slot = (P % 5) * 2 + (B & 1)
        base = VTR[slot >> 2]
        for beta in range(7):
            for rd in range(2):
                off = (slot & 3) * SLAB + (8 * a + 4 * rd) * 224 + 32 * beta
                k.I(f"ds_read_b64_tr_b16 {a_(28*(kap&1) + 4*beta + 2*rd, 2)}, {v(base)} offset:{off}", tag=f"w{kap}")

    for P in range(8):
        k.wait_vm(f"W{P}")
        k.wait_lg_all()
        k.barrier()
        if P >= 1 and P + 4 < 8:
            dma_pair(P + 4)
        lds_w(4 * P)
        for kap in range(4 * P, 4 * P + 4):
            k.wait_lg(f"w{kap}")
            k.wait_vm(f"y{kap}")
            for beta in range(7):
                k.mfma32(v(ACC + 16 * beta, 16), a_(28 * (kap & 1) + 4 * beta, 4), v(Y0 + 4 * kap, 4), "0" if kap == 0 else None)
                if beta == 0 and kap + 1 < 4 * P + 4:
                    lds_w(kap + 1)
    k.stamp("gate/up gemm")
    k.I(f"s_lshl_b32 {s(S_T0)}, {s(S_TB3)}, 12")
    k.I(f"s_add_u32 {s(S_T0)}, {s(S_T0)}, {WS_STATS}")
    k.I(f"v_and_b32 v14, 31, {v(V_LANE)}")
    k.I("v_lshlrev_b32 v14, 3, v14")
    k.I(f"v_lshrrev_b32 v15, 5, {v(V_LANE)}")
    k.I("v_lshl_add_u32 v14, v15, 11, v14")
    k.I(f"v_add_u32 v14, {s(S_T0)}, v14")
    for i in range(8):
        k.I(f"buffer_load_dwordx2 {v(16+2*i,2)}, v14, {srd(S_WS)}, 0 offen offset:{i*256} sc1", tag="st")
    k.I(f"v_bfe_u32 v14, {v(V_LANE)}, 2, 1")
    k.I("v_lshlrev_b32 v14, 3, v14")
    k.I(f"v_bfe_u32 v15, {v(V_LANE)}, 3, 1")
    k.I("v_lshl_add_u32 v14, v15, 2, v14")
    k.I(f"v_and_b32 v15, 3, {v(V_LANE)}")
    k.I("v_add_u32 v14, v14, v15")
    k.I(f"v_bfe_u32 v15, {v(V_LANE)}, 4, 1")
    k.I("v_mul_u32_u24 v15, 1792, v15")
    k.I("v_add_u32 v14, v14, v15")
    k.I(f"s_mul_i32 {s(S_T0)}, {s(S_J)}, 112")
    k.I(f"v_add_u32 v14, {s(S_T0)}, v14")
    k.I("v_lshlrev_b32 v14, 4, v14")
    k.I(f"v_add_u32 v14, {WS_WEXT}, v14")
    k.wait_vm("st")
    for i in range(1, 8):
        k.I(f"v_pk_add_f32 v[16:17], v[16:17], {v(16+2*i,2)}")
    AE = 48
    k.load_granules_checked([AE + 4 * b for b in range(7)], [14] * 7, "wext", width=4, tagpos=(3,), imm=[256 * b for b in range(7)])
    k.half_total(16, 18)
    k.half_total(17, 18)
    k.I("v_mul_f32 v16, 0x3b000000, v16")
    k.I("v_mul_f32 v17, 0x3b000000, v17")
    k.I("v_fma_f32 v17, -v16, v16, v17")
    k.I("v_max_f32 v17, 0, v17")
    k.I("v_add_f32 v17, 0x3727c5ac, v17")
    k.I("v_rsq_f32 v18, v17")
    k.I("v_sub_f32 v16, 0, v16")
    k.I("v_mul_f32 v19, v17, v18")
    k.I("v_mul_f32 v20, v18, v18")
    k.I("v_cvt_pk_bf16_f32 v22, v16, v19")
    k.unpack(24, 25, 22)
    k.I("v_sub_f32 v24, v16, v24")
    k.I("v_sub_f32 v25, v19, v25")
    k.I("v_cvt_pk_bf16_f32 v23, v24, v25")
    BE = 28
    k.I(f"s_mov_b32 {s(S_T0)}, 0x01000100")
    k.I(f"s_mov_b32 {s(S_T1)}, 0x07060100")
    k.I(f"s_mov_b32 {s(S_T3)}, 0x07060302")
    k.I(f"v_perm_b32 {v(BE)}, v22, v22, {s(S_T0)}")
    k.I(f"v_perm_b32 {v(BE+1)}, v22, v23, {s(S_T1)}")
    k.I(f"v_perm_b32 {v(BE+2)}, v23, v22, {s(S_T3)}")
    k.I(f"v_mov_b32 {v(BE+3)}, 0")
    k.I(f"v_cmp_gt_u32 vcc, 32, {v(V_LANE)}")
    for i in range(3):
        k.I(f"v_cndmask_b32 {v(BE+i)}, 0, {v(BE+i)}, vcc")
    for b in range(7):
        k.I(f"v_mov_b32 {v(AE+4*b+3)}, 0")
    for b in range(7):
        k.mfma32(v(ACC + 16 * b, 16), v(AE + 4 * b, 4), v(BE, 4))
    k.I(f"s_mul_i32 {s(S_T0)}, {s(S_TB3)}, 112")
    k.I(f"s_mul_i32 {s(S_T1)}, {s(S_J)}, 7")
    k.I(f"s_add_u32 {s(S_T0)}, {s(S_T0)}, {s(S_T1)}")
    k.I(f"s_lshl_b32 {s(S_T0)}, {s(S_T0)}, 10")
    k.I(f"s_add_u32 {s(S_OFF)}, {s(S_T0)}, {WS_ACT}")
    for b in range(7):
        G = ACC + 16 * b
        U = G + 8
        o = 80 + 4 * b
        for e in range(0, 8, 2):
            k.I(f"v_pk_mul_f32 {v(U+e,2)}, {v(U+e,2)}, v[20:21] op_sel_hi:[1,0]")
        for e in range(8):
            k.I(f"v_max_f32 {v(G+e)}, 0, {v(G+e)}")
        for e in range(0, 8, 2):
            k.I(f"v_pk_mul_f32 {v(G+e,2)}, {v(G+e,2)}, {v(U+e,2)}")
        for e in range(0, 8, 2):
            k.I(f"v_cvt_pk_bf16_f32 {v(o+e//2)}, {v(G+e)}, {v(G+e+1)}")
        k.I(f"buffer_store_dwordx4 {v(o,4)}, {v(V_L16)}, {srd(S_WS)}, {s(S_OFF)} offen offset:{(b&3)*1024} sc1")
        if b == 3:
            k.I(f"s_add_u32 {s(S_OFF)}, {s(S_OFF)}, 4096")
    k.wait_vm_all()
    k.I(f"s_lshl_b32 {s(S_T0)}, {s(S_M)}, 4")
    k.I(f"s_add_u32 {s(S_T0)}, {s(S_T0)}, {s(S_J)}")
    k.I(f"s_lshl_b32 {s(S_T0)}, {s(S_T0)}, 7")
    k.I(f"s_add_u32 {s(S_T0)}, {s(S_T0)}, {WS_FA}")
    k.signal(S_T0, "fa")
    k.stamp("act published")


def p4(k):
    k.I(f"s_and_b32 {s(S_T0)}, {s(S_J)}, 7")
    k.I(f"s_lshl_b32 {s(S_T0)}, {s(S_T0)}, 7")
    k.I(f"v_lshrrev_b32 v4, 3, {v(V_LANE)}")
    k.I("v_lshlrev_b32 v4, 10, v4")
    k.I(f"v_and_b32 v5, 7, {v(V_LANE)}")
    k.I(f"v_bfe_u32 v6, {v(V_LANE)}, 4, 1")
    k.I("v_lshlrev_b32 v6, 2, v6")
    k.I("v_xor_b32 v5, v5, v6")
    k.I("v_lshl_add_u32 v4, v5, 4, v4")
    k.I(f"v_add_u32 v4, {s(S_T0)}, v4")
    swz128_base(k, 5, cbk_imm=0, s_mul=8)
    swz128_base(k, 6, cbk_imm=1, s_mul=8)
    k.I(f"s_mul_i32 {s(S_T3)}, {s(S_W)}, 28672")
    k.I(f"v_add_u32 v5, {s(S_T3)}, v5")
    k.I(f"v_add_u32 v6, {s(S_T3)}, v6")
    for rnd in range(2):
        k.I(f"s_mul_i32 {s(S_OFF)}, {s(S_W)}, {448*1024}")
        if rnd:
            k.I(f"s_add_u32 {s(S_OFF)}, {s(S_OFF)}, {224*1024}")
        k.I(f"s_mov_b32 m0, {s(S_T3)}")
        k._tag = "wd"
        for n in range(28):
            k.dma(4, S_WD, s(S_OFF))
            if n < 27:
                k.I("s_add_u32 m0, m0, 1024")
                k.I(f"s_add_u32 {s(S_OFF)}, {s(S_OFF)}, 8192")
        k._tag = None
        k.wait_vm("wd")
        for kl in range(14):
            for cbk in range(2):
                for rd in range(2):
                    k.I(f"ds_read_b64_tr_b16 {a_((2*(14*rnd + kl) + cbk)*4 + 2*rd, 2)}, {v(5+cbk)} offset:{kl*2048 + rd*512}")
            if kl % 2 == 1:
                k.I("s_waitcnt lgkmcnt(4)")
        k.wait_lg_all()
    mod16(k, 176, 1280, "gb")
    GB = 176
    k.I(f"s_lshl_b32 {s(S_T0)}, {s(S_M)}, 11")
    k.I(f"s_add_u32 {s(S_T0)}, {s(S_T0)}, {WS_FA}")
    k.poll_flags(S_T0, 16, "pa")
    k.stamp("act flags seen")
    k.I(f"s_sub_u32 {s(S_T0)}, {s(S_TB)}, {s(S_TBL)}")
    k.I(f"s_mul_i32 {s(S_T0)}, {s(S_T0)}, {112*1024}")
    k.I(f"s_mul_i32 {s(S_T1)}, {s(S_W)}, {28*1024}")
    k.I(f"s_add_u32 {s(S_T0)}, {s(S_T0)}, {s(S_T1)}")
    S_A0, S_A1 = S_T3, S_T4
    k.I(f"s_add_u32 {s(S_A0)}, {s(S_T0)}, {WS_ACT}")
    k.I(f"s_add_u32 {s(S_A1)}, {s(S_A0)}, {112*1024}")
    NB = 18
    AB = 16
    ACC = 192

    def ld(kl):
        for tbl in range(2):
            r = AB + 8 * (kl % NB) + 4 * tbl
            k.I(f"buffer_load_dwordx4 {v(r,4)}, {v(V_L16)}, {srd(S_WS)}, {s(S_A0 + tbl)} offen offset:{(kl&3)*1024} sc1", tag=f"a{kl}")
        if kl & 3 == 3:
            k.I(f"s_add_u32 {s(S_A0)}, {s(S_A0)}, 4096")
            k.I(f"s_add_u32 {s(S_A1)}, {s(S_A1)}, 4096")

    for kl in range(NB):
        ld(kl)
    for kl in range(28):
        k.wait_vm(f"a{kl}")
        for tbl in range(2):
            for cbk in range(2):
                r = AB + 8 * (kl % NB) + 4 * tbl
                k.mfma32(v(ACC + 16 * (2 * cbk + tbl), 16), a_((2 * kl + cbk) * 4, 4), v(r, 4), "0" if kl == 0 else None)
        if kl + NB < 28:
            ld(kl + NB)
    k.stamp("down gemm")
    k.barrier()
    k.I(f"s_lshl_b32 {s(S_T0)}, {s(S_W)}, 12")
    k.I(f"v_add_u32 v8, {s(S_T0)}, {v(V_L16)}")
    k.I(f"v_add_u32 v9, 32768, v8")
    for q in range(4):
        sk = k.newlabel("r4w")
        k.I(f"s_cmp_eq_u32 {s(S_W)}, {q}")
        k.I(f"s_cbranch_scc1 {sk}")
        k.cond_begin()
        for i in range(4):
            base = 8 if q < 2 else 9
            k.I(f"ds_write_b128 {v(base)}, {v(ACC+16*q+4*i,4)} offset:{(q&1)*16384 + i*1024}")
        k.cond_end()
        k.label(sk)
    k.wait_lg_all()
    k.barrier()
    for q in range(4):
        sk = k.newlabel("r4m")
        k.I(f"s_cmp_eq_u32 {s(S_W)}, {q}")
        k.I(f"s_cbranch_scc0 {sk}")
        for i in range(0, 16, 2):
            k.I(f"v_pk_mul_f32 {v(16+i,2)}, {v(ACC+16*q+i,2)}, 1.0 op_sel_hi:[1,0]")
        k.label(sk)
    k.I(f"s_lshl_b32 {s(S_T0)}, {s(S_W)}, 14")
    k.I(f"v_add_u32 v8, {s(S_T0)}, {v(V_L16)}")
    for d in range(1, 4):
        k.I(f"s_add_u32 {s(S_T1)}, {s(S_W)}, {d}")
        k.I(f"s_and_b32 {s(S_T1)}, {s(S_T1)}, 3")
        k.I(f"s_lshl_b32 {s(S_T1)}, {s(S_T1)}, 12")
        k.I(f"v_add_u32 v9, {s(S_T1)}, v8")
        for i in range(4):
            k.I(f"ds_read_b128 {v(32+16*(d-1)+4*i,4)}, v9 offset:{i*1024}")
    k.wait_lg_all()
    for d in range(3):
        for i in range(0, 16, 2):
            k.I(f"v_pk_add_f32 {v(16+i,2)}, {v(16+i,2)}, {v(32+16*d+i,2)}")
    for i in range(8):
        g = GB + 4 * (i >> 1) + 2 * (i & 1)
        k.I(f"v_accvgpr_read_b32 v84, {a_(240+i)}")
        k.unpack(80, 81, g)
        k.unpack(82, 83, 84)
        k.I(f"v_pk_fma_f32 v[82:83], v[80:81], {v(16+2*i,2)}, v[82:83]")
        k.I(f"v_cvt_pk_bf16_f32 {v(88+i)}, v82, v83")
    k.I(f"v_and_b32 v8, 31, {v(V_LANE)}")
    k.I("v_lshlrev_b32 v8, 10, v8")
    k.I(f"v_lshrrev_b32 v9, 5, {v(V_LANE)}")
    k.I("v_lshl_add_u32 v8, v9, 5, v8")
    k.I(f"s_lshl_b32 {s(S_T0)}, {s(S_TB)}, 15")
    k.I(f"s_lshl_b32 {s(S_T1)}, {s(S_B32)}, 6")
    k.I(f"s_add_u32 {s(S_T0)}, {s(S_T0)}, {s(S_T1)}")
    k.I(f"v_add_u32 v8, {s(S_T0)}, v8")
    k.I(f"buffer_store_dwordx4 v[88:91], v8, {srd(S_OUT)}, 0 offen")
    k.I(f"buffer_store_dwordx4 v[92:95], v8, {srd(S_OUT)}, 0 offen offset:16")
    k.stamp("out stored")


def finish(k):
    if k.diag:
        sk = k.newlabel("fin")
        k.wave_is(0, sk)
        k.I(f"s_lshl_b32 {s(S_T0)}, s2, 7")
        k.I(f"s_add_u32 {s(S_T0)}, {s(S_T0)}, {WS_STAMP}")
        k.I(f"v_mov_b32 v8, {s(S_T0)}")
        k.I("s_mov_b64 exec, 1")
        for i in range(k.nstamp):
            k.I(f"v_mov_b32 v9, {s(S_STAMP+i)}")
            k.I(f"buffer_store_dword v9, v8, {srd(S_WS)}, 0 offen offset:{4*i}")
        k.label(sk)
    k.label("L_end")
    k.I("s_endpgm")


def build(diag=False, stop=None):
    k = K(diag, stop)
    phases = [prologue, p0_issue, x_issue, p0_compute, p1_prologue, p1_main, p1_epilogue, ub_part, wo_issue,
              kv_combine_and_o, p2, p3, p4]
    for ph in phases:
        k.comment(f"======== {ph.__name__} ========")
        ph(k)
        if stop == ph.__name__:
            break
    finish(k)
    hdr = open("cdna_kernels/" + NAME + ".s.ref").read().split("; Override launch geometry")[0]
    txt = hdr
    txt += f"; @launch grid=(256,1,1) block=(256,1,1) lds={LDS_BYTES}\n"
    txt += '.amdgcn_target "amdgcn-amd-amdhsa--gfx950"\n.text\n'
    txt += f".globl {NAME}_kernel\n.p2align 8\n.type {NAME}_kernel,@function\n{NAME}_kernel:\n"
    txt += k.text()
    txt += f""".section .rodata,"a"
.p2align 6
.amdhsa_kernel {NAME}_kernel
  .amdhsa_next_free_vgpr 512
  .amdhsa_next_free_sgpr 102
  .amdhsa_accum_offset 256
  .amdhsa_group_segment_fixed_size 0
  .amdhsa_kernarg_size 104
  .amdhsa_user_sgpr_count 2
  .amdhsa_user_sgpr_kernarg_segment_ptr 1
  .amdhsa_system_sgpr_workgroup_id_x 1
.end_amdhsa_kernel
"""
    return txt, k


if __name__ == "__main__":
    out = sys.argv[1] if len(sys.argv) > 1 else "k.s"
    diag = "--diag" in sys.argv
    stop = None
    for a in sys.argv:
        if a.startswith("--stop="):
            stop = a.split("=")[1]
    txt, k = build(diag, stop)
    open(out, "w").write(txt)
    if diag:
        open(out + ".stamps", "w").write("\n".join(k.stamp_names) + "\n")
    print(f"wrote {out}: {len(txt)} bytes, {sum(1 for l in k.out if l.startswith(chr(9)))} instructions, {k.nops} hazard nops")
```

```python
import sys
from asmlib import Asm

NAME = "adaLN_cond__linear_kernel_hedgehog__glu_gated_reglu__prompt"

WS_E = 0
WS_MODG = 0x1000
WS_FKV = 0x4000
WS_FO = 0xC000
WS_FY = 0x14000
WS_FA = 0x1C000
WS_STAMP = 0x30000
WS_WEXT = 0x40000
WS_STATS = 0x80000
WS_KVP = 0x100000
WS_O = 0x200000
WS_Y = 0x400000
WS_ACT = 0x800000

L_XI = 0
L_WI = 0
L_WM = 131072
L_S = 147456
L_GP = 148480
L_CT = 149504
L_PHI = 153600
L_ZERO = 154624
L_RED = 98304
L_KVF = 116736
L_Z = 118784
L_UB = 0
L_CS = 32768
L_WO = 0
L_OI = 65536
SLAB = 14592
UOFF = 7296
LDS_BYTES = 163840

S_X, S_WQKV, S_WPHI, S_WO, S_WG, S_WU, S_WD, S_C, S_WMOD, S_OUT, S_WS = 4, 8, 12, 16, 20, 24, 28, 32, 36, 40, 44
S_XCD, S_I, S_M, S_J, S_W, S_TAG, S_MASK = 48, 49, 50, 51, 52, 53, 54
S_T0, S_T1, S_T2, S_T3, S_T4 = 55, 56, 57, 58, 59
S_CLK = 60
S_L2E = 62
S_SPIN = 64
S_OFF = 65
S_VALID = 66
S_EX = 68
S_STAMP = 70
S_SEL = 92
S_HP = S_J

LOG2E = 0x3FB8AA3B
SPIN_MAX = 200000


def srd(i):
    return f"s[{i}:{i+3}]"


def v(i, n=1):
    return f"v{i}" if n == 1 else f"v[{i}:{i+n-1}]"


def a_(i, n=1):
    return f"a{i}" if n == 1 else f"a[{i}:{i+n-1}]"


def s(i, n=1):
    return f"s{i}" if n == 1 else f"s[{i}:{i+n-1}]"


V_LANE, V_L16, V_TAG = 1, 2, 3


class K(Asm):
    def __init__(self, diag=False, stop=None):
        super().__init__()
        self.diag = diag
        self.stop = stop
        self.nstamp = 0

    def stamp(self, name):
        if not self.diag:
            return
        self.wait_lg_all()
        self.I(f"s_memrealtime {s(S_CLK, 2)}")
        self.I("s_waitcnt lgkmcnt(0)")
        self.I(f"s_mov_b32 {s(S_STAMP + self.nstamp)}, {s(S_CLK)}")
        self.stamp_names = getattr(self, "stamp_names", []) + [name]
        self.nstamp += 1
        assert self.nstamp <= 20

    def wave_is(self, w, label_else):
        self.I(f"s_cmp_eq_u32 {s(S_W)}, {w}")
        self.I(f"s_cbranch_scc0 {label_else}")

    def mfma32(self, d, a, b, c=None):
        c = d if c is None else c
        self.I(f"v_mfma_f32_32x32x16_bf16 {d}, {a}, {b}, {c}")

    def spin_init(self):
        self.I(f"s_mov_b32 {s(S_SPIN)}, {SPIN_MAX}")

    def spin_back(self, loop, done):
        self.I(f"s_cbranch_vccz {done}")
        self.I(f"s_sub_u32 {s(S_SPIN)}, {s(S_SPIN)}, 1")
        self.I(f"s_cmp_lg_u32 {s(S_SPIN)}, 0")
        self.I(f"s_cbranch_scc1 {loop}")

    def unpack(self, lo, hi, src):
        self.I(f"v_lshlrev_b32 {v(lo)}, 16, {v(src)}")
        self.I(f"v_and_b32 {v(hi)}, {s(S_MASK)}, {v(src)}")

    def half_total(self, r, tmp):
        self.I(f"v_mov_b32 {v(tmp)}, {v(r)}")
        self.I(f"v_permlane32_swap_b32 {v(r)}, {v(tmp)}")
        self.I(f"v_add_f32 {v(r)}, {v(r)}, {v(tmp)}")

    def dma(self, voff, rsrc, soff, sc1=False):
        self.I(f"buffer_load_dwordx4 {v(voff)}, {srd(rsrc)}, {soff} offen{' sc1' if sc1 else ''} lds", tag=self._tag)

    _tag = None

    def poll_flags(self, base_sreg, n, stem, tmp=14):
        done = self.newlabel(stem + "_skip")
        loop = self.newlabel(stem + "_loop")
        ok = self.newlabel(stem + "_ok")
        self.wave_is(0, done)
        self.cond_begin()
        self.I(f"v_min_u32 {v(tmp)}, {n-1}, {v(V_LANE)}")
        self.I(f"v_lshlrev_b32 {v(tmp)}, 7, {v(tmp)}")
        self.I(f"v_add_u32 {v(tmp)}, {s(base_sreg)}, {v(tmp)}")
        self.spin_init()
        self.label(loop)
        self.I(f"buffer_load_dword {v(tmp+1)}, {v(tmp)}, {srd(S_WS)}, 0 offen sc1")
        self.I("s_waitcnt vmcnt(0)")
        self.I(f"v_cmp_ne_u32 vcc, {s(S_TAG)}, {v(tmp+1)}")
        self.spin_back(loop, ok)
        self.label(ok)
        self.cond_end()
        self.label(done)
        self.barrier()

    def signal(self, off_sreg, stem, tmp=14):
        self.barrier()
        done = self.newlabel(stem + "_sig")
        self.wave_is(0, done)
        self.cond_begin()
        self.I(f"v_mov_b32 {v(tmp)}, {s(off_sreg)}")
        self.I(f"s_mov_b64 exec, 1")
        self.I(f"buffer_store_dword {v(V_TAG)}, {v(tmp)}, {srd(S_WS)}, 0 offen sc1")
        self.I(f"s_mov_b64 exec, -1")
        self.cond_end()
        self.label(done)

    def load_granules_checked(self, regs, addr_regs, stem, width=2, tagpos=(1,), imm=None):
        loop = self.newlabel(stem + "_loop")
        ok = self.newlabel(stem + "_ok")
        self.spin_init()
        self.label(loop)
        self.cond_begin()
        sfx = {2: "dwordx2", 4: "dwordx4"}[width]
        for i, (r, ad) in enumerate(zip(regs, addr_regs)):
            off = imm[i] if imm else 0
            self.I(f"buffer_load_{sfx} {v(r, width)}, {v(ad)}, {srd(S_WS)}, 0 offen offset:{off} sc1")
        self.I("s_waitcnt vmcnt(0)")
        self.vmq = []
        first = True
        for r in regs:
            for tp in tagpos:
                if first:
                    self.I(f"v_cmp_ne_u32 vcc, {s(S_TAG)}, {v(r+tp)}")
                    first = False
                else:
                    self.I(f"v_cmp_ne_u32 {s(S_EX, 2)}, {s(S_TAG)}, {v(r+tp)}")
                    self.I(f"s_nop 0")
                    self.I(f"s_or_b64 vcc, vcc, {s(S_EX, 2)}")
        self.spin_back(loop, ok)
        self.label(ok)
        self.cond_end()


def prologue(k):
    k.I("s_cmp_ge_u32 s2, 256")
    k.I("s_cbranch_scc1 L_end")
    k.I("s_load_dwordx16 s[64:79], s[0:1], 0")
    k.I("s_load_dwordx8 s[80:87], s[0:1], 64")
    k.I("s_load_dwordx2 s[88:89], s[0:1], 96")
    k.I(f"v_and_b32 {v(V_LANE)}, 63, v0")
    k.I("v_lshrrev_b32 v4, 6, v0")
    k.I(f"v_lshlrev_b32 {v(V_L16)}, 4, {v(V_LANE)}")
    k.I(f"v_readfirstlane_b32 {s(S_W)}, v4")
    k.I(f"s_and_b32 {s(S_XCD)}, s2, 7")
    k.I(f"s_lshr_b32 {s(S_I)}, s2, 3")
    k.I(f"s_lshr_b32 {s(S_T0)}, {s(S_I)}, 4")
    k.I(f"s_lshl_b32 {s(S_M)}, {s(S_XCD)}, 1")
    k.I(f"s_add_u32 {s(S_M)}, {s(S_M)}, {s(S_T0)}")
    k.I(f"s_and_b32 {s(S_J)}, {s(S_I)}, 15")
    k.I(f"s_mov_b32 {s(S_MASK)}, 0xffff0000")
    k.I(f"s_mov_b32 {s(S_L2E)}, {LOG2E:#x}")
    k.I(f"s_mov_b32 {s(S_L2E+1)}, {LOG2E:#x}")
    k.I("s_waitcnt lgkmcnt(0)")
    bufs = [(S_X, 64, 2097152), (S_WQKV, 66, 1572864), (S_WPHI, 68, 16384), (S_WO, 70, 524288),
            (S_WG, 74, 1835008), (S_WU, 76, 1835008), (S_WD, 78, 1835008), (S_C, 80, 1024),
            (S_WMOD, 82, 3145728), (S_OUT, 84, 2097152), (S_WS, 88, 268435456)]
    for r, p, n in bufs:
        k.I(f"s_mov_b32 {s(r)}, {s(p)}")
        k.I(f"s_mov_b32 {s(r+1)}, {s(p+1)}")
        k.I(f"s_mov_b32 {s(r+2)}, {n}")
        k.I(f"s_mov_b32 {s(r+3)}, 0x20000")
    k.I("v_mov_b32 v4, 0")
    k.I(f"buffer_load_dword {v(V_TAG)}, v4, {srd(S_WS)}, 0 offen sc1", tag="E")
    k.stamp("start")


def p0_issue(k):
    skip = k.newlabel("p0i_skip")
    k.I("s_cmp_ge_u32 s2, 192")
    k.I(f"s_cbranch_scc1 {skip}")
    k.cond_begin()
    k.I(f"s_lshr_b32 {s(S_T0)}, {s(S_I)}, 2")
    k.I(f"s_lshl_b32 {s(S_T0)}, {s(S_T0)}, 3")
    k.I(f"s_add_u32 {s(S_T0)}, {s(S_T0)}, {s(S_XCD)}")
    k.I(f"s_lshl_b32 {s(S_T0)}, {s(S_T0)}, 2")
    k.I(f"s_and_b32 {s(S_T1)}, {s(S_I)}, 3")
    k.I(f"s_add_u32 {s(S_T4)}, {s(S_T0)}, {s(S_T1)}")
    k.I("v_lshlrev_b32 v5, 2, v0")
    k.I(f"buffer_load_dword v6, v5, {srd(S_C)}, 0 offen")
    k.I(f"v_lshrrev_b32 v7, 1, {v(V_LANE)}")
    k.I("v_mul_u32_u24 v7, 6144, v7")
    k.I(f"v_and_b32 v8, 1, {v(V_LANE)}")
    k.I("v_lshlrev_b32 v8, 4, v8")
    k.I(f"s_lshl_b32 {s(S_T0)}, {s(S_T4)}, 5")
    k.I(f"v_add3_u32 v7, v7, v8, {s(S_T0)}")
    k.I(f"s_mul_i32 {s(S_OFF)}, {s(S_W)}, {4*196608}")
    k.I(f"s_lshl_b32 {s(S_T0)}, {s(S_W)}, 12")
    k.I(f"s_add_u32 m0, {s(S_T0)}, {L_WM}")
    for n in range(4):
        k.dma(7, S_WMOD, s(S_OFF))
        if n < 3:
            k.I(f"s_add_u32 m0, m0, 1024")
            k.I(f"s_add_u32 {s(S_OFF)}, {s(S_OFF)}, 196608")
    k.cond_end()
    k.label(skip)


def x_issue(k):
    k.I(f"s_lshl_b32 {s(S_T0)}, {s(S_M)}, 2")
    k.I(f"s_add_u32 {s(S_T0)}, {s(S_T0)}, {s(S_W)}")
    k.I(f"s_lshl_b32 {s(S_OFF)}, {s(S_T0)}, 15")
    k.I(f"s_lshl_b32 {s(S_T0)}, {s(S_W)}, 15")
    k.I(f"s_add_u32 m0, {s(S_T0)}, {L_XI}")
    k._tag = "x"
    for r in range(32):
        if r & 15:
            k.I(f"v_xor_b32 v9, {(r & 15) * 16}, {v(V_L16)}")
            k.dma(9, S_X, s(S_OFF))
        else:
            k.dma(V_L16, S_X, s(S_OFF))
        if r < 31:
            k.I("s_add_u32 m0, m0, 1024")
            k.I(f"s_add_u32 {s(S_OFF)}, {s(S_OFF)}, 1024")
    k._tag = None


def p0_compute(k):
    skip = k.newlabel("p0c_skip")
    k.I("s_cmp_ge_u32 s2, 192")
    k.I(f"s_cbranch_scc1 {skip}")
    k.cond_begin()
    k.I("s_waitcnt vmcnt(32)")
    k.unpack(8, 9, 6)
    k.I(f"v_mul_f32 v10, {s(S_L2E)}, v8")
    k.I(f"v_mul_f32 v11, {s(S_L2E)}, v9")
    k.I("v_exp_f32 v10, -v10")
    k.I("v_exp_f32 v11, -v11")
    k.I("v_add_f32 v10, 1.0, v10")
    k.I("v_add_f32 v11, 1.0, v11")
    k.I("v_rcp_f32 v10, v10")
    k.I("v_rcp_f32 v11, v11")
    k.I("v_mul_f32 v8, v8, v10")
    k.I("v_mul_f32 v9, v9, v11")
    k.I("v_cvt_pk_bf16_f32 v8, v8, v9")
    k.I(f"v_add_u32 v5, {L_S}, v5")
    k.I("ds_write_b32 v5, v8")
    k.I("s_waitcnt lgkmcnt(0)")
    k.barrier()
    k.I(f"v_lshrrev_b32 v8, 4, {v(V_LANE)}")
    k.I("v_lshlrev_b32 v8, 3, v8")
    k.I(f"s_lshl_b32 {s(S_T0)}, {s(S_W)}, 8")
    k.I(f"s_add_u32 {s(S_T0)}, {s(S_T0)}, {L_S}")
    k.I(f"v_add_u32 v8, {s(S_T0)}, v8")
    k.I(f"v_lshlrev_b32 v9, 3, {v(V_LANE)}")
    k.I(f"s_lshl_b32 {s(S_T0)}, {s(S_W)}, 12")
    k.I(f"s_add_u32 {s(S_T0)}, {s(S_T0)}, {L_WM}")
    k.I(f"v_add_u32 v9, {s(S_T0)}, v9")
    for q in range(4):
        k.I(f"ds_read_b64 {v(144+8*q, 2)}, v8 offset:{q*64}")
        k.I(f"ds_read_b64 {v(146+8*q, 2)}, v8 offset:{q*64+32}")
        k.I(f"ds_read_b64_tr_b16 {v(148+8*q, 2)}, v9 offset:{q*1024}")
        k.I(f"ds_read_b64_tr_b16 {v(150+8*q, 2)}, v9 offset:{q*1024+512}")
        if q == 2:
            k.I("s_waitcnt lgkmcnt(8)")
    k.I("s_waitcnt lgkmcnt(0)")
    for q in range(4):
        c = "0" if q == 0 else v(176, 4)
        k.I(f"v_mfma_f32_16x16x32_bf16 {v(176, 4)}, {v(144+8*q, 4)}, {v(148+8*q, 4)}, {c}")
    k.I(f"v_and_b32 v8, 15, {v(V_LANE)}")
    k.I("v_lshlrev_b32 v8, 2, v8")
    k.I(f"s_lshl_b32 {s(S_T0)}, {s(S_W)}, 6")
    k.I(f"s_add_u32 {s(S_T0)}, {s(S_T0)}, {L_GP}")
    k.I(f"v_add_u32 v8, {s(S_T0)}, v8")
    k.I("ds_write_b32 v8, v176")
    k.I("s_waitcnt lgkmcnt(0)")
    k.barrier()
    w0 = k.newlabel("p0c_w0")
    k.wave_is(0, w0)
    k.I(f"v_and_b32 v8, 7, {v(V_LANE)}")
    k.I("v_lshlrev_b32 v8, 3, v8")
    k.I(f"v_add_u32 v9, {L_GP}, v8")
    for w in range(4):
        k.I(f"ds_read_b64 {v(144+2*w, 2)}, v9 offset:{w*64}")
    k.I("s_waitcnt lgkmcnt(0)")
    k.I("v_pk_add_f32 v[144:145], v[144:145], v[146:147]")
    k.I("v_pk_add_f32 v[148:149], v[148:149], v[150:151]")
    k.I("v_pk_add_f32 v[144:145], v[144:145], v[148:149]")
    k.I("v_cvt_pk_bf16_f32 v144, v144, v145")
    k.I(f"v_add_u32 v145, 1, {v(V_TAG)}")
    k.I(f"s_lshl_b32 {s(S_T0)}, {s(S_T4)}, 6")
    k.I(f"s_add_u32 {s(S_T0)}, {s(S_T0)}, {WS_MODG}")
    k.I(f"v_add_u32 v8, {s(S_T0)}, v8")
    k.I("s_mov_b64 exec, 0xff")
    k.I(f"buffer_store_dwordx2 v[144:145], v8, {srd(S_WS)}, 0 offen sc1")
    k.I("s_mov_b64 exec, -1")
    k.label(w0)
    k.cond_end()
    k.label(skip)


X0 = 16
AQ, AK, AV = 144, 160, 176
CB = (192, 208)
HB = (224, 228)
TT = 232
RP, NP = 240, 242
V_TR0, V_TR1, V_CT = 244, 245, 246


def lane_fields(k, t_r=None, s_=None, r_=None, c_=None, nh=None):
    if s_ is not None:
        k.I(f"v_lshrrev_b32 {v(s_)}, 5, {v(V_LANE)}")
    if nh is not None:
        k.I(f"v_bfe_u32 {v(nh)}, {v(V_LANE)}, 4, 1")
    if r_ is not None:
        k.I(f"v_bfe_u32 {v(r_)}, {v(V_LANE)}, 2, 2")
    if c_ is not None:
        k.I(f"v_and_b32 {v(c_)}, 3, {v(V_LANE)}")


def lbase_bytes(k, dst, nh, c, t0, t1):
    k.I(f"v_and_b32 {v(t0)}, 1, {v(c)}")
    k.I(f"v_lshlrev_b32 {v(t0)}, 5, {v(t0)}")
    k.I(f"v_lshrrev_b32 {v(t1)}, 1, {v(c)}")
    k.I(f"v_lshlrev_b32 {v(t1)}, 3, {v(t1)}")
    k.I(f"v_lshl_add_u32 {v(dst)}, {v(nh)}, 4, {v(t0)}")
    k.I(f"v_add_u32 {v(dst)}, {v(dst)}, {v(t1)}")


def p1_prologue(k):
    k.wait_vm("E")
    k.I(f"v_add_u32 {v(V_TAG)}, 1, {v(V_TAG)}")
    k.I(f"v_readfirstlane_b32 {s(S_TAG)}, {v(V_TAG)}")
    k.I(f"s_lshl_b32 {s(S_OFF)}, {s(S_HP)}, 10")
    k.I(f"s_mov_b32 m0, {L_PHI}")
    k._tag = "phi"
    k.dma(V_L16, S_WPHI, s(S_OFF))
    k._tag = None
    k.I("v_mov_b32 v8, 0")
    k.I(f"v_lshlrev_b32 v9, 2, {v(V_LANE)}")
    k.I(f"v_and_b32 v9, 60, v9")
    k.I(f"ds_write_b32 v9, v8 offset:{L_ZERO}" if L_ZERO < 65536 else f"v_add_u32 v9, {L_ZERO}, v9\nds_write_b32 v9, v8")
    k.I(f"v_and_b32 v8, 31, {v(V_LANE)}")
    k.I(f"s_lshl_b32 {s(S_T0)}, {s(S_W)}, 5")
    k.I(f"v_add_u32 v9, {s(S_T0)}, v8")
    k.I("v_lshlrev_b32 v9, 10, v9")
    k.I("v_and_b32 v8, 15, v8")
    k.I(f"v_lshrrev_b32 v10, 5, {v(V_LANE)}")
    for q in range(8):
        k.I(f"v_add_u32 v11, {2*q}, v10")
        k.I("v_xor_b32 v11, v11, v8")
        k.I(f"v_lshl_add_u32 {v(192+q)}, v11, 4, v9")
    k.wait_vm("x")
    for j in range(32):
        k.I(f"ds_read_b128 {v(X0+4*j, 4)}, {v(192+(j&7))} offset:{L_XI + (j>>3)*256}", tag="xf")
        if j % 8 == 7 and j < 31:
            k.I("s_waitcnt lgkmcnt(4)")
    k.wait_lg_all()
    k.barrier()
    k.stamp("x in regs")
    for u in range(3):
        k.I(f"v_add_u32 v8, {64*u}, {v(V_LANE)}")
        k.I("v_mul_u32_u24 v9, 5462, v8")
        k.I("v_lshrrev_b32 v9, 16, v9")
        k.I("v_mul_u32_u24 v10, 12, v9")
        k.I("v_sub_u32 v10, v8, v10")
        k.I("v_lshrrev_b32 v11, 2, v10")
        k.I("v_lshlrev_b32 v11, 10, v11")
        k.I("v_and_b32 v10, 3, v10")
        k.I("v_lshl_add_u32 v11, v10, 4, v11")
        k.I("v_mul_u32_u24 v9, 3072, v9")
        k.I(f"s_lshl_b32 {s(S_T0)}, {s(S_HP)}, 6")
        k.I(f"v_add3_u32 {v(200+u)}, v9, v11, {s(S_T0)}")
    for z in range(192):
        assert (z * 5462) >> 16 == z // 12
    k.I(f"s_mul_i32 {s(S_OFF)}, {s(S_W)}, {128*3072}")
    k.I(f"s_mul_i32 {s(S_T0)}, {s(S_W)}, {24*1024}")
    k.I(f"s_add_u32 m0, {s(S_T0)}, {L_WI}")
    k._tag = "w"
    for gi in range(8):
        for u in range(3):
            k.dma(200 + u, S_WQKV, s(S_OFF))
            if not (gi == 7 and u == 2):
                k.I("s_add_u32 m0, m0, 1024")
        if gi < 7:
            k.I(f"s_add_u32 {s(S_OFF)}, {s(S_OFF)}, {16*3072}")
    k._tag = None
    k.I("v_mov_b32 v8, 0x3f803f80")
    for r in range(10, 14):
        k.I(f"v_mov_b32 {v(r)}, 0")
    for i in range(128):
        k.I(f"v_dot2c_f32_bf16 {v(10 + (i & 1))}, {v(X0+i)}, v8")
        k.I(f"v_dot2c_f32_bf16 {v(12 + (i & 1))}, {v(X0+i)}, {v(X0+i)}")
    k.I("v_add_f32 v10, v10, v11")
    k.I("v_add_f32 v12, v12, v13")
    k.half_total(10, 11)
    k.half_total(12, 13)
    k.I(f"v_mul_f32 v10, {1.0/512:.10g}, v10" if False else "v_mul_f32 v10, 0x3b000000, v10")
    k.I("v_mul_f32 v12, 0x3b000000, v12")
    k.I("v_fma_f32 v12, -v10, v10, v12")
    k.I("v_max_f32 v12, 0, v12")
    k.I("v_add_f32 v12, 0x3727c5ac, v12")
    k.I(f"v_rsq_f32 {v(RP)}, v12")
    k.I(f"v_mul_f32 {v(NP)}, -v10, {v(RP)}" if False else f"v_mul_f32 {v(NP)}, v10, {v(RP)}")
    k.I(f"v_mov_b32 {v(RP+1)}, {v(RP)}")
    k.I(f"v_sub_f32 {v(NP)}, 0, {v(NP)}")
    k.I(f"v_mov_b32 {v(NP+1)}, {v(NP)}")
    k.stamp("stats")
    lane_fields(k, s_=8, r_=9, c_=10, nh=11)
    lbase_bytes(k, 12, 11, 10, 13, 14)
    k.I("v_lshl_add_u32 v8, v8, 3, v9")
    k.I("v_mul_u32_u24 v8, 192, v8")
    k.I(f"v_add_u32 {v(V_TR0)}, v8, v12")
    k.I(f"v_add_u32 {v(V_TR1)}, 49152, {v(V_TR0)}")
    k.I(f"v_lshrrev_b32 v8, 5, {v(V_LANE)}")
    k.I("v_lshlrev_b32 v8, 6, v8")
    k.I(f"v_add_u32 {v(V_CT)}, {L_CT}, v8")
    k.I("v_lshlrev_b32 v8, 3, v0")
    k.I(f"v_add_u32 v8, {WS_MODG}, v8")
    k.load_granules_checked([10, 12], [8, 8], "modA", imm=[0, 2048])
    k.stamp("mod arrived")
    k.unpack(192, 193, 12)
    k.I("v_add_f32 v192, 1.0, v192")
    k.I("v_add_f32 v193, 1.0, v193")
    k.I("v_cvt_pk_bf16_f32 v12, v192, v193")
    k.unpack(192, 193, 12)
    k.unpack(194, 195, 10)
    k.I("v_lshrrev_b32 v8, 3, v0")
    k.I("v_lshlrev_b32 v8, 7, v8")
    k.I("v_bfe_u32 v9, v0, 2, 1")
    k.I("v_lshl_add_u32 v8, v9, 6, v8")
    k.I("v_and_b32 v9, 3, v0")
    k.I("v_lshl_add_u32 v8, v9, 3, v8")
    k.I(f"v_add_u32 v8, {L_CT}, v8")
    k.I("ds_write_b64 v8, v[192:193]")
    k.I("ds_write_b64 v8, v[194:195] offset:32")
    k.wait_vm_all()
    k.wait_lg_all()
    k.barrier()
    k.stamp("P1 ready")


def p1_main(k):
    def lds_c(j):
        b = CB[j & 1]
        for q in range(4):
            k.I(f"ds_read_b128 {v(b+4*q, 4)}, {v(V_CT)} offset:{j*128 + 16*q}", tag=f"c{j}")

    def lds_w(j):
        base = V_TR0 if j < 16 else V_TR1
        for p in range(3):
            for rd in range(2):
                k.I(f"ds_read_b64_tr_b16 {a_(12*(j&1) + 4*p + 2*rd, 2)}, {v(base)} offset:{L_WI + (j & 15)*3072 + rd*768 + p*64}", tag=f"w{j}")

    def norm(j, part):
        cb, h = CB[j & 1], HB[j & 1]
        for d in part:
            t = TT + 2 * d
            k.unpack(t, t + 1, X0 + 4 * j + d)
        for d in part:
            t = TT + 2 * d
            k.I(f"v_pk_fma_f32 {v(t,2)}, {v(t,2)}, {v(RP,2)}, {v(NP,2)}")
        for d in part:
            t = TT + 2 * d
            k.I(f"v_pk_fma_f32 {v(t,2)}, {v(t,2)}, {v(cb+2*d,2)}, {v(cb+8+2*d,2)}")
        for d in part:
            t = TT + 2 * d
            k.I(f"v_cvt_pk_bf16_f32 {v(h+d)}, {v(t)}, {v(t+1)}")

    lds_c(0)
    lds_c(1)
    lds_w(0)
    k.wait_lg("c0")
    norm(0, (0, 1, 2, 3))
    for j in range(32):
        k.wait_lg([f"w{j}", f"c{j+1}"])
        if j + 2 < 32:
            lds_c(j + 2)
        if j + 1 < 32:
            lds_w(j + 1)
        h = v(HB[j & 1], 4)
        wq, wk, wv = (a_(12 * (j & 1) + 4 * p, 4) for p in range(3))
        c0 = "0" if j == 0 else None
        k.mfma32(v(AK, 16), wk, h, c0)
        if j + 1 < 32:
            norm(j + 1, (0, 1))
        k.mfma32(v(AV, 16), h, wv, c0)
        if j + 1 < 32:
            norm(j + 1, (2, 3))
        k.mfma32(v(AQ, 16), wq, h, c0)


def softmax16(k, P, E, outp, outn, t):
    mx, mn = t, t + 2
    k.I(f"v_max3_f32 {v(mx)}, {v(P)}, {v(P+1)}, {v(P+2)}")
    k.I(f"v_min3_f32 {v(mn)}, {v(P)}, {v(P+1)}, {v(P+2)}")
    for i in range(3, 15, 2):
        k.I(f"v_max3_f32 {v(mx)}, {v(mx)}, {v(P+i)}, {v(P+i+1)}")
        k.I(f"v_min3_f32 {v(mn)}, {v(mn)}, {v(P+i)}, {v(P+i+1)}")
    k.I(f"v_max_f32 {v(mx)}, {v(mx)}, {v(P+15)}")
    k.I(f"v_min_f32 {v(mn)}, {v(mn)}, {v(P+15)}")
    k.I(f"v_mul_f32 {v(mx)}, {s(S_L2E)}, {v(mx)}")
    k.I(f"v_mul_f32 {v(mn)}, {s(S_L2E)}, {v(mn)}")
    for sign, m, out in ((+1, mx, outp), (-1, mn, outn)):
        for i in range(0, 16, 2):
            if sign > 0:
                k.I(f"v_pk_fma_f32 {v(E+i,2)}, {v(P+i,2)}, {s(S_L2E,2)}, {v(m,2)} op_sel_hi:[1,1,0] neg_lo:[0,0,1] neg_hi:[0,0,1]")
            else:
                k.I(f"v_pk_fma_f32 {v(E+i,2)}, {v(P+i,2)}, {s(S_L2E,2)}, {v(m,2)} op_sel_hi:[1,1,0] neg_lo:[1,0,0] neg_hi:[1,0,0]")
        for i in range(16):
            k.I(f"v_exp_f32 {v(E+i)}, {v(E+i)}")
        sm = t + 4
        k.I(f"v_pk_add_f32 {v(sm,2)}, {v(E,2)}, {v(E+2,2)}")
        for i in range(4, 16, 2):
            k.I(f"v_pk_add_f32 {v(sm,2)}, {v(sm,2)}, {v(E+i,2)}")
        k.I(f"v_add_f32 {v(sm)}, {v(sm)}, {v(sm+1)}")
        k.I(f"v_rcp_f32 {v(sm)}, {v(sm)}")
        for i in range(0, 16, 2):
            k.I(f"v_pk_mul_f32 {v(E+i,2)}, {v(E+i,2)}, {v(sm,2)} op_sel_hi:[1,0]")
        for i in range(8):
            k.I(f"v_cvt_pk_bf16_f32 {v(out+i)}, {v(E+2*i)}, {v(E+2*i+1)}")


PHI_A, PHI_B = 16, 20
SEL0, SEL1, SELN0, SELN1 = 24, 28, 32, 36
PK = 40
PP = 48
EE = 64
FP, FN = 80, 88
QP, QN = 96, 104
TP, TN = 112, 128
TMP = 192
VP = 200
KVA, KVB = 208, 224


def p1_consts(k):
    k.wait_vm("phi")
    lane_fields(k, s_=8, r_=9, c_=10, nh=11)
    k.I("v_lshlrev_b32 v12, 9, v8")
    k.I("v_lshl_add_u32 v12, v9, 5, v12")
    k.I("v_lshlrev_b32 v13, 1, v11")
    k.I("v_lshrrev_b32 v14, 1, v10")
    k.I("v_add_u32 v13, v13, v14")
    k.I("v_lshl_add_u32 v12, v13, 3, v12")
    k.I(f"v_add_u32 v12, {L_PHI}, v12")
    k.I("v_and_b32 v13, 1, v10")
    k.I("v_cmp_eq_u32 vcc, v13, v8")
    for a in range(2):
        for rd in range(2):
            k.I(f"v_add_u32 v14, {(8*a+4*rd)*32}, v12")
            k.I(f"v_mov_b32 v15, {L_ZERO}")
            k.I("v_cndmask_b32 v14, v15, v14, vcc")
            k.I(f"ds_read_b64_tr_b16 {v(PHI_A + 4*a + 2*rd, 2)}, v14", tag="phif")
    k.I(f"v_bfe_u32 v8, {v(V_LANE)}, 3, 1")
    k.I(f"v_and_b32 v9, 3, {v(V_LANE)}")
    k.I("v_lshl_add_u32 v8, v8, 2, v9")
    k.I("v_and_b32 v9, 1, v8")
    k.I("v_lshlrev_b32 v9, 4, v9")
    k.I("v_mov_b32 v10, 0x3f80")
    k.I("v_lshlrev_b32 v9, v9, v10")
    k.I("v_lshrrev_b32 v8, 1, v8")
    k.I(f"v_bfe_u32 v10, {v(V_LANE)}, 4, 1")
    k.I(f"v_bfe_u32 v11, {v(V_LANE)}, 2, 1")
    k.I(f"v_lshrrev_b32 v12, 5, {v(V_LANE)}")
    k.I("v_xor_b32 v11, v11, v12")
    k.I(f"v_cmp_eq_u32 {s(S_VALID,2)}, 0, v11")
    for neg, base in ((0, SEL0), (1, SELN0)):
        for a in range(2):
            for d in range(4):
                k.I("v_lshlrev_b32 v13, 2, v10")
                k.I("v_add_u32 v13, v13, v8")
                k.I("v_lshl_add_u32 v13, v11, 3, v13")
                k.I(f"v_cmp_eq_u32 vcc, {8*neg + 4*a + d}, v13")
                k.I(f"v_cndmask_b32 {v(base + 4*a + d)}, 0, v9, vcc")
    k.wait_lg("phif")


def p1_epilogue(k):
    p1_consts(k)
    for i in range(8):
        k.I(f"v_cvt_pk_bf16_f32 {v(PK+i)}, {v(AK+2*i)}, {v(AK+2*i+1)}")
    k.mfma32(v(PP, 16), v(PHI_A, 4), v(PK, 4), "0")
    k.mfma32(v(PP, 16), v(PHI_B, 4), v(PK + 4, 4))
    for i in range(8):
        k.I(f"v_cvt_pk_bf16_f32 {v(VP+i)}, {v(AV+2*i)}, {v(AV+2*i+1)}")
    softmax16(k, PP, EE, FP, FN, TMP)
    k.mfma32(v(TP, 16), v(FP, 4), v(SEL0, 4), "0")
    k.mfma32(v(TP, 16), v(FP + 4, 4), v(SEL1, 4))
    k.mfma32(v(TN, 16), v(FN, 4), v(SELN0, 4), "0")
    k.mfma32(v(TN, 16), v(FN + 4, 4), v(SELN1, 4))
    for i in range(8):
        k.I(f"v_cvt_pk_bf16_f32 {v(PK+i)}, {v(AQ+2*i)}, {v(AQ+2*i+1)}")
    k.mfma32(v(PP, 16), v(PHI_A, 4), v(PK, 4), "0")
    k.mfma32(v(PP, 16), v(PHI_B, 4), v(PK + 4, 4))
    for src, pk, z in ((TP, FP, TMP), (TN, FN, TMP + 2)):
        for i in range(8):
            k.I(f"v_cvt_pk_bf16_f32 {v(pk+i)}, {v(src+2*i)}, {v(src+2*i+1)}")
        k.I(f"v_pk_add_f32 {v(z,2)}, {v(src,2)}, {v(src+2,2)}")
        for i in range(4, 16, 2):
            k.I(f"v_pk_add_f32 {v(z,2)}, {v(z,2)}, {v(src+i,2)}")
    k.I(f"v_add_f32 {v(TMP+4)}, {v(TMP)}, {v(TMP+1)}")
    k.I(f"v_add_f32 {v(TMP+5)}, {v(TMP+2)}, {v(TMP+3)}")
    k.mfma32(v(KVA, 16), v(FP, 4), v(VP, 4), "0")
    k.mfma32(v(KVA, 16), v(FP + 4, 4), v(VP + 4, 4))
    k.mfma32(v(KVB, 16), v(FN, 4), v(VP, 4), "0")
    k.mfma32(v(KVB, 16), v(FN + 4, 4), v(VP + 4, 4))
    for i in range(16):
        k.I(f"v_cndmask_b32 {v(KVA+i)}, {v(KVB+i)}, {v(KVA+i)}, {s(S_VALID,2)}")
    k.I(f"s_mul_i32 {s(S_T0)}, {s(S_W)}, 4608")
    k.I(f"s_add_u32 {s(S_T0)}, {s(S_T0)}, {L_RED}")
    k.I(f"v_add_u32 v8, {s(S_T0)}, {v(V_L16)}")
    for q in range(4):
        k.I(f"ds_write_b128 v8, {v(KVA+4*q,4)} offset:{q*1024}")
    k.I(f"v_lshlrev_b32 v9, 3, {v(V_LANE)}")
    k.I(f"v_add_u32 v9, {s(S_T0)}, v9")
    k.I(f"ds_write_b64 v9, {v(TMP+4,2)} offset:4096")
    k.wait_lg_all()
    k.barrier()
    k.I(f"s_lshl_b32 {s(S_T0)}, {s(S_W)}, 10")
    k.I(f"s_add_u32 {s(S_T0)}, {s(S_T0)}, {L_RED}")
    k.I(f"v_add_u32 v8, {s(S_T0)}, {v(V_L16)}")
    for ww in range(4):
        k.I(f"ds_read_b128 {v(KVA+4*ww,4)}, v8 offset:{ww*4608}")
    k.I(f"v_lshlrev_b32 v9, 3, {v(V_LANE)}")
    k.I(f"v_add_u32 v9, {L_RED + 4096}, v9")
    for ww in range(4):
        k.I(f"ds_read_b64 {v(KVB+2*ww,2)}, v9 offset:{ww*4608}")
    k.wait_lg_all()
    for h in (0, 2):
        k.I(f"v_pk_add_f32 {v(KVA+h,2)}, {v(KVA+h,2)}, {v(KVA+4+h,2)}")
        k.I(f"v_pk_add_f32 {v(KVA+8+h,2)}, {v(KVA+8+h,2)}, {v(KVA+12+h,2)}")
        k.I(f"v_pk_add_f32 {v(KVA+h,2)}, {v(KVA+h,2)}, {v(KVA+8+h,2)}")
    k.I(f"v_cvt_pk_bf16_f32 {v(KVA)}, {v(KVA)}, {v(KVA+1)}")
    k.I(f"v_cvt_pk_bf16_f32 {v(KVA+1)}, {v(KVA+2)}, {v(KVA+3)}")
    k.I(f"v_pk_add_f32 {v(KVB,2)}, {v(KVB,2)}, {v(KVB+2,2)}")
    k.I(f"v_pk_add_f32 {v(KVB+4,2)}, {v(KVB+4,2)}, {v(KVB+6,2)}")
    k.I(f"v_pk_add_f32 {v(KVB,2)}, {v(KVB,2)}, {v(KVB+4,2)}")
    k.I(f"v_cvt_pk_bf16_f32 {v(KVB)}, {v(KVB)}, {v(KVB+1)}")
    k.I(f"s_lshl_b32 {s(S_T0)}, {s(S_HP)}, 4")
    k.I(f"s_add_u32 {s(S_T0)}, {s(S_T0)}, {s(S_M)}")
    k.I(f"s_lshl_b32 {s(S_T1)}, {s(S_T0)}, 12")
    k.I(f"s_add_u32 {s(S_T1)}, {s(S_T1)}, {WS_KVP}")
    k.I(f"s_lshl_b32 {s(S_T2)}, {s(S_W)}, 9")
    k.I(f"s_add_u32 {s(S_T2)}, {s(S_T2)}, {s(S_T1)}")
    k.I(f"v_lshlrev_b32 v9, 3, {v(V_LANE)}")
    k.I(f"v_add_u32 v9, {s(S_T2)}, v9")
    k.I(f"buffer_store_dwordx2 {v(KVA,2)}, v9, {srd(S_WS)}, 0 offen sc1", tag="kvst")
    w0 = k.newlabel("kvz")
    k.wave_is(0, w0)
    k.cond_begin()
    k.I(f"v_lshlrev_b32 v9, 2, {v(V_LANE)}")
    k.I(f"v_add_u32 v9, {s(S_T1)}, v9")
    k.I(f"buffer_store_dword {v(KVB)}, v9, {srd(S_WS)}, 0 offen offset:2048 sc1")
    k.cond_end()
    k.label(w0)
    k.wait_vm_all()
    k.I(f"s_lshl_b32 {s(S_T0)}, {s(S_T0)}, 7")
    k.I(f"s_add_u32 {s(S_T0)}, {s(S_T0)}, {WS_FKV}")
    k.signal(S_T0, "fkv")
    k.stamp("kv published")
    softmax16(k, PP, EE, QP, QN, TMP)
    k.stamp("q softmax")


def ub_part(k):
    skip = k.newlabel("ub_skip")
    k.barrier()
    k.I("s_cmp_ge_u32 s2, 112")
    k.I(f"s_cbranch_scc1 {skip}")
    k.cond_begin()
    k.I("s_cmp_lt_u32 s2, 56")
    for i in range(4):
        k.I(f"s_cselect_b32 {s(S_SEL+i)}, {s(S_WG+i)}, {s(S_WU+i)}")
    k.I(f"s_sub_u32 {s(S_T0)}, s2, 56")
    k.I("s_cmp_lt_u32 s2, 56")
    k.I(f"s_cselect_b32 {s(S_T0)}, s2, {s(S_T0)}")
    k.I(f"s_lshl_b32 {s(S_T0)}, {s(S_T0)}, 6")
    k.I(f"v_lshrrev_b32 v8, 2, {v(V_LANE)}")
    k.I("v_mul_u32_u24 v8, 3584, v8")
    k.I(f"v_and_b32 v9, 3, {v(V_LANE)}")
    k.I("v_lshl_add_u32 v8, v9, 4, v8")
    k.I(f"v_add_u32 v8, {s(S_T0)}, v8")
    k.I(f"s_mul_i32 {s(S_OFF)}, {s(S_W)}, {128*3584}")
    k.I(f"s_lshl_b32 {s(S_T0)}, {s(S_W)}, 13")
    k.I(f"s_add_u32 m0, {s(S_T0)}, {L_UB}")
    for n in range(8):
        k.dma(8, S_SEL, s(S_OFF))
        if n < 7:
            k.I("s_add_u32 m0, m0, 1024")
            k.I(f"s_add_u32 {s(S_OFF)}, {s(S_OFF)}, {16*3584}")
    k.I("v_lshlrev_b32 v8, 3, v0")
    k.I(f"v_add_u32 v8, {WS_MODG + 768*8}, v8")
    k.load_granules_checked([10, 12], [8, 8], "modU", imm=[0, 2048])
    k.cond_begin()
    k.unpack(14, 15, 12)
    k.I("v_add_f32 v14, 1.0, v14")
    k.I("v_add_f32 v15, 1.0, v15")
    k.I("v_cvt_pk_bf16_f32 v12, v14, v15")
    k.I("v_lshlrev_b32 v8, 2, v0")
    k.I(f"v_add_u32 v8, {L_CS}, v8")
    k.I("v_mov_b32 v9, 0")
    k.I("ds_write_b32 v8, v12")
    k.I("ds_write_b32 v8, v10 offset:1024")
    k.I("ds_write_b32 v8, v9 offset:2048")
    k.I("s_waitcnt vmcnt(0) lgkmcnt(0)")
    k.barrier()
    w0 = k.newlabel("ub_w")
    k.wave_is(3, w0)
    k.I(f"v_and_b32 v8, 31, {v(V_LANE)}")
    k.I("v_min_u32 v8, 2, v8")
    k.I("v_lshlrev_b32 v8, 10, v8")
    k.I(f"v_lshrrev_b32 v9, 5, {v(V_LANE)}")
    k.I("v_lshl_add_u32 v8, v9, 4, v8")
    k.I(f"v_add_u32 v8, {L_CS}, v8")
    lane_fields(k, s_=9, r_=10, c_=11, nh=12)
    k.I("v_lshl_add_u32 v9, v9, 3, v10")
    k.I("v_lshlrev_b32 v9, 6, v9")
    k.I("v_lshl_add_u32 v9, v12, 5, v9")
    k.I("v_lshl_add_u32 v9, v11, 3, v9")
    for j in range(32):
        b = 112 + 8 * (j & 3)
        k.I(f"ds_read_b128 {v(b,4)}, v8 offset:{j*32}")
        k.I(f"ds_read_b64_tr_b16 {v(b+4,2)}, v9 offset:{L_UB + j*1024}")
        k.I(f"ds_read_b64_tr_b16 {v(b+6,2)}, v9 offset:{L_UB + j*1024 + 256}")
        if j >= 2:
            k.I("s_waitcnt lgkmcnt(6)")
            bb = 112 + 8 * ((j - 2) & 3)
            k.mfma32(v(144, 16), v(bb, 4), v(bb + 4, 4), "0" if j == 2 else None)
    for j in (30, 31):
        k.I(f"s_waitcnt lgkmcnt({3 if j == 30 else 0})")
        bb = 112 + 8 * (j & 3)
        k.mfma32(v(144, 16), v(bb, 4), v(bb + 4, 4))
    k.I("v_cvt_pk_bf16_f32 v160, v144, v145")
    k.unpack(162, 163, 160)
    k.I("v_sub_f32 v164, v144, v162")
    k.I("v_sub_f32 v165, v145, v163")
    k.I("v_cvt_pk_bf16_f32 v161, v164, v165")
    k.I(f"s_mov_b32 {s(S_T0)}, 0x05040100")
    k.I(f"s_mov_b32 {s(S_T1)}, 0x07060302")
    k.I(f"v_perm_b32 v168, v161, v160, {s(S_T0)}")
    k.I("v_mov_b32 v169, v160")
    k.I(f"v_perm_b32 v170, v160, v161, {s(S_T1)}")
    k.I(f"v_mov_b32 v171, {v(V_TAG)}")
    k.I(f"s_lshl_b32 {s(S_T0)}, s2, 9")
    k.I(f"s_add_u32 {s(S_T0)}, {s(S_T0)}, {WS_WEXT}")
    k.I(f"v_add_u32 v8, {s(S_T0)}, {v(V_L16)}")
    k.I("s_mov_b32 exec_hi, 0")
    k.I(f"buffer_store_dwordx4 v[168:171], v8, {srd(S_WS)}, 0 offen sc1")
    k.I("s_mov_b64 exec, -1")
    k.label(w0)
    k.cond_end()
    k.cond_end()
    k.label(skip)
    k.barrier()


def wo_issue(k):
    k.I(f"s_and_b32 {s(S_T0)}, {s(S_J)}, 7")
    k.I(f"s_lshl_b32 {s(S_T0)}, {s(S_T0)}, 7")
    k.I(f"v_lshrrev_b32 v8, 3, {v(V_LANE)}")
    k.I("v_lshlrev_b32 v8, 10, v8")
    k.I(f"v_and_b32 v9, 7, {v(V_LANE)}")
    k.I(f"v_bfe_u32 v10, {v(V_LANE)}, 4, 1")
    k.I("v_lshlrev_b32 v10, 2, v10")
    k.I("v_xor_b32 v9, v9, v10")
    k.I("v_lshl_add_u32 v8, v9, 4, v8")
    k.I(f"v_add_u32 v8, {s(S_T0)}, v8")
    k.I(f"s_lshl_b32 {s(S_OFF)}, {s(S_W)}, 17")
    k.I(f"s_lshl_b32 {s(S_T0)}, {s(S_W)}, 14")
    k.I(f"s_add_u32 m0, {s(S_T0)}, {L_WO}")
    k._tag = "wo"
    for n in range(16):
        k.dma(8, S_WO, s(S_OFF))
        if n < 15:
            k.I("s_add_u32 m0, m0, 1024")
            k.I(f"s_add_u32 {s(S_OFF)}, {s(S_OFF)}, 8192")
    k._tag = None


def swz128_base(k, dst, cbk_sreg=None, cbk_imm=None, s_mul=16):
    lane_fields(k, s_=8, r_=9, c_=10, nh=11)
    lbase_bytes(k, 12, 11, 10, 13, 14)
    k.I(f"v_mul_u32_u24 v8, {s_mul}, v8")
    k.I("v_add_u32 v8, v8, v9")
    k.I("v_lshlrev_b32 v8, 7, v8")
    k.I("v_lshrrev_b32 v9, 1, v9")
    if cbk_sreg is not None:
        k.I(f"v_xor_b32 v9, {s(cbk_sreg)}, v9")
    elif cbk_imm:
        k.I(f"v_xor_b32 v9, {cbk_imm}, v9")
    k.I("v_lshl_add_u32 v8, v9, 6, v8")
    k.I(f"v_add_u32 {v(dst)}, v8, v12")


def kv_combine_and_o(k):
    k.I(f"s_lshl_b32 {s(S_T0)}, {s(S_HP)}, 11")
    k.I(f"s_add_u32 {s(S_T0)}, {s(S_T0)}, {WS_FKV}")
    k.poll_flags(S_T0, 16, "pkv")
    k.stamp("kv flags seen")
    k.I(f"s_lshl_b32 {s(S_T1)}, {s(S_HP)}, 16")
    k.I(f"s_add_u32 {s(S_T1)}, {s(S_T1)}, {WS_KVP}")
    k.I(f"s_lshl_b32 {s(S_T2)}, {s(S_W)}, 9")
    k.I(f"s_add_u32 {s(S_T2)}, {s(S_T2)}, {s(S_T1)}")
    k.I(f"v_lshlrev_b32 v8, 3, {v(V_LANE)}")
    k.I(f"s_mov_b32 {s(S_OFF)}, {s(S_T2)}")
    for mm in range(16):
        k.I(f"buffer_load_dwordx2 {v(112+2*mm,2)}, v8, {srd(S_WS)}, {s(S_OFF)} offen sc1", tag="kvp")
        k.I(f"s_add_u32 {s(S_OFF)}, {s(S_OFF)}, 4096")
    k.I(f"v_lshlrev_b32 v9, 2, {v(V_LANE)}")
    k.I(f"s_add_u32 {s(S_OFF)}, {s(S_T1)}, 2048")
    for mm in range(16):
        k.I(f"buffer_load_dword {v(144+mm)}, v9, {srd(S_WS)}, {s(S_OFF)} offen sc1", tag="kvz")
        k.I(f"s_add_u32 {s(S_OFF)}, {s(S_OFF)}, 4096")
    k.I("v_mov_b32 v10, 0x3f80")
    k.I("v_mov_b32 v11, 0x3f800000")
    for r in range(160, 166):
        k.I(f"v_mov_b32 {v(r)}, 0")
    k.wait_vm("kvp")
    for mm in range(16):
        for d in range(2):
            k.I(f"v_dot2c_f32_bf16 {v(160+2*d)}, {v(112+2*mm+d)}, v10")
            k.I(f"v_dot2c_f32_bf16 {v(161+2*d)}, {v(112+2*mm+d)}, v11")
    k.wait_vm("kvz")
    for mm in range(16):
        k.I(f"v_dot2c_f32_bf16 v164, {v(144+mm)}, v10")
        k.I(f"v_dot2c_f32_bf16 v165, {v(144+mm)}, v11")
    k.I("v_cvt_pk_bf16_f32 v160, v160, v161")
    k.I("v_cvt_pk_bf16_f32 v161, v162, v163")
    k.I(f"v_lshlrev_b32 v8, 5, {v(V_LANE)}")
    k.I(f"s_lshl_b32 {s(S_T0)}, {s(S_W)}, 3")
    k.I(f"s_add_u32 {s(S_T0)}, {s(S_T0)}, {L_KVF}")
    k.I(f"v_add_u32 v8, {s(S_T0)}, v8")
    k.I("ds_write_b64 v8, v[160:161]")
    k.half_total(164, 166)
    k.half_total(165, 166)
    k.I("v_cvt_pk_bf16_f32 v164, v164, v165")
    k.I(f"v_bfe_u32 v8, {v(V_LANE)}, 2, 1")
    k.I(f"v_bfe_u32 v9, {v(V_LANE)}, 3, 2")
    k.I(f"v_and_b32 v10, 3, {v(V_LANE)}")
    k.I("v_lshl_add_u32 v9, v9, 2, v10")
    k.I("v_lshlrev_b32 v9, 1, v9")
    k.I("v_lshl_add_u32 v10, v8, 5, v9")
    k.I(f"v_add_u32 v10, {L_Z}, v10")
    k.I("v_xor_b32 v8, 1, v8")
    k.I("v_lshl_add_u32 v11, v8, 5, v9")
    k.I(f"v_add_u32 v11, {L_Z + 64}, v11")
    w0 = k.newlabel("zw")
    k.wave_is(0, w0)
    k.cond_begin()
    k.I("ds_write_b16 v10, v164")
    k.I("ds_write_b16_d16_hi v11, v164")
    k.cond_end()
    k.label(w0)
    k.wait_lg_all()
    k.barrier()
    k.I(f"v_lshlrev_b32 v8, 5, {v(V_LANE)}")
    k.I(f"v_add_u32 v8, {L_KVF}, v8")
    k.I(f"v_xor_b32 v9, 32, {v(V_LANE)}")
    k.I("v_lshlrev_b32 v9, 5, v9")
    k.I(f"v_add_u32 v9, {L_KVF}, v9")
    k.I(f"v_mov_b32 v10, {L_ZERO}")
    k.I(f"v_cndmask_b32 v8, v10, v8, {s(S_VALID,2)}")
    k.I(f"v_cndmask_b32 v9, v10, v9, {s(S_VALID,2)}")
    k.I(f"v_lshrrev_b32 v10, 5, {v(V_LANE)}")
    k.I("v_lshlrev_b32 v10, 5, v10")
    k.I(f"v_add_u32 v10, {L_Z}, v10")
    PF, NF, ZP, ZN = 112, 120, 128, 136
    k.I(f"ds_read_b128 {v(PF,4)}, v8")
    k.I(f"ds_read_b128 {v(PF+4,4)}, v8 offset:16")
    k.I(f"ds_read_b128 {v(NF,4)}, v9")
    k.I(f"ds_read_b128 {v(NF+4,4)}, v9 offset:16")
    k.I(f"ds_read_b128 {v(ZP,4)}, v10")
    k.I(f"ds_read_b128 {v(ZP+4,4)}, v10 offset:16")
    k.I(f"ds_read_b128 {v(ZN,4)}, v10 offset:64")
    k.I(f"ds_read_b128 {v(ZN+4,4)}, v10 offset:80")
    k.wait_lg_all()
    NUM = 144
    k.mfma32(v(NUM, 16), v(PF, 4), v(QP, 4), "0")
    k.mfma32(v(NUM, 16), v(PF + 4, 4), v(QP + 4, 4))
    k.mfma32(v(NUM, 16), v(NF, 4), v(QN, 4))
    k.mfma32(v(NUM, 16), v(NF + 4, 4), v(QN + 4, 4))
    k.I("v_mov_b32 v10, 0")
    k.I("v_mov_b32 v11, 0")
    for i in range(8):
        k.I(f"v_dot2c_f32_bf16 v10, {v(QP+i)}, {v(ZP+i)}")
        k.I(f"v_dot2c_f32_bf16 v11, {v(QN+i)}, {v(ZN+i)}")
    k.I("v_add_f32 v10, v10, v11")
    k.I("v_add_f32 v10, 0x358637bd, v10")
    k.I("v_rcp_f32 v10, v10")
    for i in range(0, 16, 2):
        k.I(f"v_pk_mul_f32 {v(NUM+i,2)}, {v(NUM+i,2)}, v[10:11] op_sel_hi:[1,0]")
    for i in range(8):
        k.I(f"v_cvt_pk_bf16_f32 {v(160+i)}, {v(NUM+2*i)}, {v(NUM+2*i+1)}")
    k.I(f"s_lshl_b32 {s(S_T0)}, {s(S_M)}, 2")
    k.I(f"s_add_u32 {s(S_T0)}, {s(S_T0)}, {s(S_W)}")
    k.I(f"s_lshl_b32 {s(S_T0)}, {s(S_T0)}, 15")
    k.I(f"s_lshl_b32 {s(S_T1)}, {s(S_HP)}, 11")
    k.I(f"s_add_u32 {s(S_T0)}, {s(S_T0)}, {s(S_T1)}")
    k.I(f"s_add_u32 {s(S_T0)}, {s(S_T0)}, {WS_O}")
    k.I(f"v_add_u32 v8, {s(S_T0)}, {v(V_L16)}")
    k.I(f"buffer_store_dwordx4 v[160:163], v8, {srd(S_WS)}, 0 offen sc1")
    k.I(f"buffer_store_dwordx4 v[164:167], v8, {srd(S_WS)}, 0 offen offset:1024 sc1")
    k.wait_vm_all()
    k.I(f"s_lshl_b32 {s(S_T0)}, {s(S_M)}, 4")
    k.I(f"s_add_u32 {s(S_T0)}, {s(S_T0)}, {s(S_J)}")
    k.I(f"s_lshl_b32 {s(S_T0)}, {s(S_T0)}, 7")
    k.I(f"s_add_u32 {s(S_T0)}, {s(S_T0)}, {WS_FO}")
    k.signal(S_T0, "fo")
    k.stamp("o published")


S_TBL, S_CBK, S_TB, S_B32 = 96, 97, 98, 99


def quad_ids(k):
    k.I(f"s_and_b32 {s(S_TBL)}, {s(S_W)}, 1")
    k.I(f"s_lshr_b32 {s(S_CBK)}, {s(S_W)}, 1")
    k.I(f"s_lshr_b32 {s(S_T0)}, {s(S_J)}, 3")
    k.I(f"s_lshl_b32 {s(S_T0)}, {s(S_T0)}, 1")
    k.I(f"s_lshl_b32 {s(S_TB)}, {s(S_M)}, 2")
    k.I(f"s_add_u32 {s(S_TB)}, {s(S_TB)}, {s(S_T0)}")
    k.I(f"s_add_u32 {s(S_TB)}, {s(S_TB)}, {s(S_TBL)}")
    k.I(f"s_and_b32 {s(S_B32)}, {s(S_J)}, 7")
    k.I(f"s_lshl_b32 {s(S_B32)}, {s(S_B32)}, 1")
    k.I(f"s_add_u32 {s(S_B32)}, {s(S_B32)}, {s(S_CBK)}")


def mod16(k, dst_regs, gran0, stem):
    k.I(f"v_lshrrev_b32 v8, 5, {v(V_LANE)}")
    k.I("v_lshlrev_b32 v8, 6, v8")
    k.I(f"s_lshl_b32 {s(S_T0)}, {s(S_B32)}, 7")
    k.I(f"s_add_u32 {s(S_T0)}, {s(S_T0)}, {WS_MODG + gran0*8}")
    k.I(f"v_add_u32 v8, {s(S_T0)}, v8")
    k.load_granules_checked([dst_regs + 4 * i for i in range(4)], [8] * 4, stem, width=4, tagpos=(1, 3), imm=[0, 16, 32, 48])


def p2(k):
    quad_ids(k)
    swz128_base(k, 15, cbk_sreg=S_CBK)
    k.wait_vm_all()
    k.barrier()
    for kap in range(32):
        hp, a = kap >> 1, kap & 1
        for rd in range(2):
            k.I(f"ds_read_b64_tr_b16 {a_(4*kap + 2*rd, 2)}, v15 offset:{L_WO + (32*hp + 8*a + 4*rd)*128}", tag="wof")
        if kap % 4 == 3:
            k.I("s_waitcnt lgkmcnt(4)")
    k.I(f"v_and_b32 v8, 31, {v(V_LANE)}")
    k.I("v_lshlrev_b32 v8, 10, v8")
    k.I(f"v_lshrrev_b32 v9, 5, {v(V_LANE)}")
    k.I("v_lshl_add_u32 v8, v9, 5, v8")
    k.I(f"s_lshl_b32 {s(S_T0)}, {s(S_TB)}, 15")
    k.I(f"s_lshl_b32 {s(S_T1)}, {s(S_B32)}, 6")
    k.I(f"s_add_u32 {s(S_T0)}, {s(S_T0)}, {s(S_T1)}")
    k.I(f"v_add_u32 v8, {s(S_T0)}, v8")
    XR, GA, CBR = 64, 72, 88
    k.I(f"buffer_load_dwordx4 {v(XR,4)}, v8, {srd(S_X)}, 0 offen", tag="xr")
    k.I(f"buffer_load_dwordx4 {v(XR+4,4)}, v8, {srd(S_X)}, 0 offen offset:16", tag="xr")
    mod16(k, GA, 512, "ga")
    mod16(k, CBR, 1024, "cb")
    k.wait_lg_all()
    k.I(f"s_lshl_b32 {s(S_T0)}, {s(S_M)}, 11")
    k.I(f"s_add_u32 {s(S_T0)}, {s(S_T0)}, {WS_FO}")
    k.poll_flags(S_T0, 16, "po")
    k.stamp("o flags seen")
    k.I(f"s_sub_u32 {s(S_T0)}, {s(S_TB)}, {s(S_TBL)}")
    k.I(f"s_lshl_b32 {s(S_T0)}, {s(S_T0)}, 15")
    k.I(f"s_lshl_b32 {s(S_T1)}, {s(S_W)}, 14")
    k.I(f"s_add_u32 {s(S_OFF)}, {s(S_T0)}, {s(S_T1)}")
    k.I(f"s_add_u32 {s(S_OFF)}, {s(S_OFF)}, {WS_O}")
    k.I(f"s_add_u32 m0, {s(S_T1)}, {L_OI}")
    k._tag = "of"
    for n in range(16):
        k.dma(V_L16, S_WS, s(S_OFF), sc1=True)
        if n < 15:
            k.I("s_add_u32 m0, m0, 1024")
            k.I(f"s_add_u32 {s(S_OFF)}, {s(S_OFF)}, 1024")
    k._tag = None
    k.I(f"s_lshl_b32 {s(S_T0)}, {s(S_TBL)}, 15")
    k.I(f"s_add_u32 {s(S_T0)}, {s(S_T0)}, {L_OI}")
    k.I(f"v_add_u32 v14, {s(S_T0)}, {v(V_L16)}")
    k.wait_vm_all()
    k.barrier()
    ACC = 112
    nb = 6
    for kap in range(32 + nb - 2):
        if kap < 32:
            k.I(f"ds_read_b128 {v(16 + 4*(kap % nb), 4)}, v14 offset:{kap*1024}", tag=f"o{kap}")
        q = kap - (nb - 2)
        if q >= 0:
            k.wait_lg(f"o{q}")
            k.mfma32(v(ACC, 16), a_(4 * q, 4), v(16 + 4 * (q % nb), 4), "0" if q == 0 else None)
    k.stamp("wo gemm")
    T = 128
    X1 = 136
    YP = 144
    k.I("v_mov_b32 v10, 0")
    k.I("v_mov_b32 v11, 0")
    k.I("v_mov_b32 v12, 0x3f803f80")
    for i in range(8):
        g = GA + 4 * (i >> 1) + 2 * (i & 1)
        c = CBR + 4 * (i >> 1) + 2 * (i & 1)
        k.unpack(T, T + 1, g)
        k.unpack(T + 2, T + 3, XR + i)
        k.I(f"v_pk_fma_f32 {v(T+2,2)}, {v(T,2)}, {v(ACC+2*i,2)}, {v(T+2,2)}")
        k.I(f"v_cvt_pk_bf16_f32 {v(X1+i)}, {v(T+2)}, {v(T+3)}")
        k.unpack(T + 4, T + 5, c)
        k.I(f"v_pk_add_f32 {v(T+4,2)}, {v(T+4,2)}, 1.0 op_sel_hi:[1,0]")
        k.I(f"v_cvt_pk_bf16_f32 {v(T+4)}, {v(T+4)}, {v(T+5)}")
        k.unpack(T + 6, T + 7, T + 4)
        k.unpack(T + 2, T + 3, X1 + i)
        k.I(f"v_pk_mul_f32 {v(T+2,2)}, {v(T+2,2)}, {v(T+6,2)}")
        k.I(f"v_cvt_pk_bf16_f32 {v(YP+i)}, {v(T+2)}, {v(T+3)}")
        k.I(f"v_dot2c_f32_bf16 v10, {v(X1+i)}, v12")
        k.I(f"v_dot2c_f32_bf16 v11, {v(X1+i)}, {v(X1+i)}")
    k.I(f"s_lshl_b32 {s(S_T0)}, {s(S_TB)}, 15")
    k.I(f"s_lshl_b32 {s(S_T1)}, {s(S_B32)}, 11")
    k.I(f"s_add_u32 {s(S_T0)}, {s(S_T0)}, {s(S_T1)}")
    k.I(f"s_add_u32 {s(S_T0)}, {s(S_T0)}, {WS_Y}")
    k.I(f"v_add_u32 v8, {s(S_T0)}, {v(V_L16)}")
    k.I(f"buffer_store_dwordx4 {v(YP,4)}, v8, {srd(S_WS)}, 0 offen sc1")
    k.I(f"buffer_store_dwordx4 {v(YP+4,4)}, v8, {srd(S_WS)}, 0 offen offset:1024 sc1")
    k.half_total(10, 13)
    k.half_total(11, 13)
    k.I(f"s_lshl_b32 {s(S_T0)}, {s(S_TB)}, 4")
    k.I(f"s_add_u32 {s(S_T0)}, {s(S_T0)}, {s(S_B32)}")
    k.I(f"s_lshl_b32 {s(S_T0)}, {s(S_T0)}, 8")
    k.I(f"s_add_u32 {s(S_T0)}, {s(S_T0)}, {WS_STATS}")
    k.I(f"v_lshlrev_b32 v8, 3, {v(V_LANE)}")
    k.I(f"v_add_u32 v8, {s(S_T0)}, v8")
    k.I("s_mov_b32 exec_hi, 0")
    k.I(f"buffer_store_dwordx2 v[10:11], v8, {srd(S_WS)}, 0 offen sc1")
    k.I("s_mov_b64 exec, -1")
    for i in range(8):
        k.I(f"v_accvgpr_write_b32 {a_(240+i)}, {v(X1+i)}")
    k.wait_vm_all()
    k.I(f"s_lshl_b32 {s(S_T0)}, {s(S_M)}, 4")
    k.I(f"s_add_u32 {s(S_T0)}, {s(S_T0)}, {s(S_J)}")
    k.I(f"s_lshl_b32 {s(S_T0)}, {s(S_T0)}, 7")
    k.I(f"s_add_u32 {s(S_T0)}, {s(S_T0)}, {WS_FY}")
    k.signal(S_T0, "fy")
    noe = k.newlabel("noepoch")
    k.I("s_cmp_eq_u32 s2, 0")
    k.I(f"s_cbranch_scc0 {noe}")
    k.wave_is(0, noe)
    k.cond_begin()
    k.I("v_mov_b32 v8, 0")
    k.I("s_mov_b64 exec, 1")
    k.I(f"buffer_store_dword {v(V_TAG)}, v8, {srd(S_WS)}, 0 offen sc1")
    k.I("s_mov_b64 exec, -1")
    k.cond_end()
    k.label(noe)
    k.stamp("y published")


def p3(k):
    Y0, ACC = 16, 144
    VTR = (4, 5, 6)
    VD = 7
    k.I(f"s_and_b32 {s(S_T0)}, {s(S_W)}, 1")
    k.I(f"s_cmp_eq_u32 {s(S_T0)}, 0")
    for i in range(4):
        k.I(f"s_cselect_b32 {s(S_SEL+i)}, {s(S_WG+i)}, {s(S_WU+i)}")
    for n in range(7):
        k.I(f"v_add_u32 v14, {64*n}, {v(V_LANE)}")
        k.I("v_mul_u32_u24 v15, 4682, v14")
        k.I("v_lshrrev_b32 v15, 16, v15")
        k.I(f"v_mul_u32_u24 {v(VD+n)}, 14, v15")
        k.I(f"v_sub_u32 v14, v14, {v(VD+n)}")
        k.I("v_mul_u32_u24 v15, 3584, v15")
        k.I("v_lshl_add_u32 v15, v14, 4, v15")
        k.I(f"s_mul_i32 {s(S_T0)}, {s(S_J)}, 224")
        k.I(f"v_add_u32 {v(VD+n)}, {s(S_T0)}, v15")
    for z in range(448):
        assert (z * 4682) >> 16 == z // 14
    S_M0, S_SO = S_T3, S_T4
    k.I(f"s_lshr_b32 {s(S_T0)}, {s(S_W)}, 1")
    k.I(f"s_mul_i32 {s(S_M0)}, {s(S_T0)}, {SLAB}")
    k.I(f"s_and_b32 {s(S_T1)}, {s(S_W)}, 1")
    k.I(f"s_mul_i32 {s(S_T1)}, {s(S_T1)}, {UOFF}")
    k.I(f"s_add_u32 {s(S_M0)}, {s(S_M0)}, {s(S_T1)}")
    k.I(f"s_mul_i32 {s(S_SO)}, {s(S_T0)}, {32*3584}")

    def dma_pair(P):
        k._tag = f"W{P}"
        k.I(f"s_add_u32 m0, {s(S_M0)}, {(P % 5) * 2 * SLAB}")
        k.I(f"s_add_u32 {s(S_OFF)}, {s(S_SO)}, {P * 2 * 32 * 3584}")
        for n in range(7):
            k.dma(VD + n, S_SEL, s(S_OFF))
            if n < 6:
                k.I("s_add_u32 m0, m0, 1024")
        k._tag = None

    for P in range(5):
        dma_pair(P)
    lane_fields(k, s_=14, r_=15)
    k.I("v_lshl_add_u32 v14, v14, 4, v15")
    k.I("v_mul_u32_u24 v14, 224, v14")
    k.I(f"v_bfe_u32 v15, {v(V_LANE)}, 4, 1")
    k.I(f"v_mul_u32_u24 v15, {UOFF}, v15")
    k.I("v_add_u32 v14, v14, v15")
    k.I(f"v_and_b32 v15, 1, {v(V_LANE)}")
    k.I("v_lshl_add_u32 v14, v15, 4, v14")
    k.I(f"v_bfe_u32 v15, {v(V_LANE)}, 1, 1")
    k.I(f"v_lshl_add_u32 {v(VTR[0])}, v15, 3, v14")
    k.I(f"v_add_u32 {v(VTR[1])}, {4*SLAB}, {v(VTR[0])}")
    k.I(f"v_add_u32 {v(VTR[2])}, {8*SLAB}, {v(VTR[0])}")
    k.I(f"s_lshl_b32 {s(S_T0)}, {s(S_M)}, 11")
    k.I(f"s_add_u32 {s(S_T0)}, {s(S_T0)}, {WS_FY}")
    k.poll_flags(S_T0, 16, "py")
    k.wait_vm_all()
    k.stamp("y flags seen")
    S_TB3 = S_T2
    k.I(f"s_lshl_b32 {s(S_TB3)}, {s(S_M)}, 2")
    k.I(f"s_add_u32 {s(S_TB3)}, {s(S_TB3)}, {s(S_W)}")
    k.I(f"s_lshl_b32 {s(S_OFF)}, {s(S_TB3)}, 15")
    k.I(f"s_add_u32 {s(S_OFF)}, {s(S_OFF)}, {WS_Y}")
    for kap in range(32):
        k.I(f"buffer_load_dwordx4 {v(Y0+4*kap,4)}, {v(V_L16)}, {srd(S_WS)}, {s(S_OFF)} offen offset:{(kap&3)*1024} sc1", tag=f"y{kap}")
        if kap & 3 == 3 and kap < 31:
            k.I(f"s_add_u32 {s(S_OFF)}, {s(S_OFF)}, 4096")

    def lds_w(kap):
        B, a = kap >> 1, kap & 1
        P = B >> 1
        slot = (P % 5) * 2 + (B & 1)
        base = VTR[slot >> 2]
        for beta in range(7):
            for rd in range(2):
                off = (slot & 3) * SLAB + (8 * a + 4 * rd) * 224 + 32 * beta
                k.I(f"ds_read_b64_tr_b16 {a_(28*(kap&1) + 4*beta + 2*rd, 2)}, {v(base)} offset:{off}", tag=f"w{kap}")

    for P in range(8):
        k.wait_vm(f"W{P}")
        k.wait_lg_all()
        k.barrier()
        if P >= 1 and P + 4 < 8:
            dma_pair(P + 4)
        lds_w(4 * P)
        for kap in range(4 * P, 4 * P + 4):
            k.wait_lg(f"w{kap}")
            k.wait_vm(f"y{kap}")
            for beta in range(7):
                k.mfma32(v(ACC + 16 * beta, 16), a_(28 * (kap & 1) + 4 * beta, 4), v(Y0 + 4 * kap, 4), "0" if kap == 0 else None)
                if beta == 0 and kap + 1 < 4 * P + 4:
                    lds_w(kap + 1)
    k.stamp("gate/up gemm")
    k.I(f"s_lshl_b32 {s(S_T0)}, {s(S_TB3)}, 12")
    k.I(f"s_add_u32 {s(S_T0)}, {s(S_T0)}, {WS_STATS}")
    k.I(f"v_and_b32 v14, 31, {v(V_LANE)}")
    k.I("v_lshlrev_b32 v14, 3, v14")
    k.I(f"v_lshrrev_b32 v15, 5, {v(V_LANE)}")
    k.I("v_lshl_add_u32 v14, v15, 11, v14")
    k.I(f"v_add_u32 v14, {s(S_T0)}, v14")
    for i in range(8):
        k.I(f"buffer_load_dwordx2 {v(16+2*i,2)}, v14, {srd(S_WS)}, 0 offen offset:{i*256} sc1", tag="st")
    k.I(f"v_bfe_u32 v14, {v(V_LANE)}, 2, 1")
    k.I("v_lshlrev_b32 v14, 3, v14")
    k.I(f"v_bfe_u32 v15, {v(V_LANE)}, 3, 1")
    k.I("v_lshl_add_u32 v14, v15, 2, v14")
    k.I(f"v_and_b32 v15, 3, {v(V_LANE)}")
    k.I("v_add_u32 v14, v14, v15")
    k.I(f"v_bfe_u32 v15, {v(V_LANE)}, 4, 1")
    k.I("v_mul_u32_u24 v15, 1792, v15")
    k.I("v_add_u32 v14, v14, v15")
    k.I(f"s_mul_i32 {s(S_T0)}, {s(S_J)}, 112")
    k.I(f"v_add_u32 v14, {s(S_T0)}, v14")
    k.I("v_lshlrev_b32 v14, 4, v14")
    k.I(f"v_add_u32 v14, {WS_WEXT}, v14")
    k.wait_vm("st")
    for i in range(1, 8):
        k.I(f"v_pk_add_f32 v[16:17], v[16:17], {v(16+2*i,2)}")
    AE = 48
    k.load_granules_checked([AE + 4 * b for b in range(7)], [14] * 7, "wext", width=4, tagpos=(3,), imm=[256 * b for b in range(7)])
    k.half_total(16, 18)
    k.half_total(17, 18)
    k.I("v_mul_f32 v16, 0x3b000000, v16")
    k.I("v_mul_f32 v17, 0x3b000000, v17")
    k.I("v_fma_f32 v17, -v16, v16, v17")
    k.I("v_max_f32 v17, 0, v17")
    k.I("v_add_f32 v17, 0x3727c5ac, v17")
    k.I("v_rsq_f32 v18, v17")
    k.I("v_sub_f32 v16, 0, v16")
    k.I("v_mul_f32 v19, v17, v18")
    k.I("v_mul_f32 v20, v18, v18")
    k.I("v_cvt_pk_bf16_f32 v22, v16, v19")
    k.unpack(24, 25, 22)
    k.I("v_sub_f32 v24, v16, v24")
    k.I("v_sub_f32 v25, v19, v25")
    k.I("v_cvt_pk_bf16_f32 v23, v24, v25")
    BE = 28
    k.I(f"s_mov_b32 {s(S_T0)}, 0x01000100")
    k.I(f"s_mov_b32 {s(S_T1)}, 0x07060100")
    k.I(f"s_mov_b32 {s(S_T3)}, 0x07060302")
    k.I(f"v_perm_b32 {v(BE)}, v22, v22, {s(S_T0)}")
    k.I(f"v_perm_b32 {v(BE+1)}, v22, v23, {s(S_T1)}")
    k.I(f"v_perm_b32 {v(BE+2)}, v23, v22, {s(S_T3)}")
    k.I(f"v_mov_b32 {v(BE+3)}, 0")
    k.I(f"v_cmp_gt_u32 vcc, 32, {v(V_LANE)}")
    for i in range(3):
        k.I(f"v_cndmask_b32 {v(BE+i)}, 0, {v(BE+i)}, vcc")
    for b in range(7):
        k.I(f"v_mov_b32 {v(AE+4*b+3)}, 0")
    for b in range(7):
        k.mfma32(v(ACC + 16 * b, 16), v(AE + 4 * b, 4), v(BE, 4))
    k.I(f"s_mul_i32 {s(S_T0)}, {s(S_TB3)}, 112")
    k.I(f"s_mul_i32 {s(S_T1)}, {s(S_J)}, 7")
    k.I(f"s_add_u32 {s(S_T0)}, {s(S_T0)}, {s(S_T1)}")
    k.I(f"s_lshl_b32 {s(S_T0)}, {s(S_T0)}, 10")
    k.I(f"s_add_u32 {s(S_OFF)}, {s(S_T0)}, {WS_ACT}")
    for b in range(7):
        G = ACC + 16 * b
        U = G + 8
        o = 80 + 4 * b
        for e in range(0, 8, 2):
            k.I(f"v_pk_mul_f32 {v(U+e,2)}, {v(U+e,2)}, v[20:21] op_sel_hi:[1,0]")
        for e in range(8):
            k.I(f"v_max_f32 {v(G+e)}, 0, {v(G+e)}")
        for e in range(0, 8, 2):
            k.I(f"v_pk_mul_f32 {v(G+e,2)}, {v(G+e,2)}, {v(U+e,2)}")
        for e in range(0, 8, 2):
            k.I(f"v_cvt_pk_bf16_f32 {v(o+e//2)}, {v(G+e)}, {v(G+e+1)}")
        k.I(f"buffer_store_dwordx4 {v(o,4)}, {v(V_L16)}, {srd(S_WS)}, {s(S_OFF)} offen offset:{(b&3)*1024} sc1")
        if b == 3:
            k.I(f"s_add_u32 {s(S_OFF)}, {s(S_OFF)}, 4096")
    k.wait_vm_all()
    k.I(f"s_lshl_b32 {s(S_T0)}, {s(S_M)}, 4")
    k.I(f"s_add_u32 {s(S_T0)}, {s(S_T0)}, {s(S_J)}")
    k.I(f"s_lshl_b32 {s(S_T0)}, {s(S_T0)}, 7")
    k.I(f"s_add_u32 {s(S_T0)}, {s(S_T0)}, {WS_FA}")
    k.signal(S_T0, "fa")
    k.stamp("act published")


def p4(k):
    k.I(f"s_and_b32 {s(S_T0)}, {s(S_J)}, 7")
    k.I(f"s_lshl_b32 {s(S_T0)}, {s(S_T0)}, 7")
    k.I(f"v_lshrrev_b32 v4, 3, {v(V_LANE)}")
    k.I("v_lshlrev_b32 v4, 10, v4")
    k.I(f"v_and_b32 v5, 7, {v(V_LANE)}")
    k.I(f"v_bfe_u32 v6, {v(V_LANE)}, 4, 1")
    k.I("v_lshlrev_b32 v6, 2, v6")
    k.I("v_xor_b32 v5, v5, v6")
    k.I("v_lshl_add_u32 v4, v5, 4, v4")
    k.I(f"v_add_u32 v4, {s(S_T0)}, v4")
    swz128_base(k, 5, cbk_imm=0, s_mul=8)
    swz128_base(k, 6, cbk_imm=1, s_mul=8)
    k.I(f"s_mul_i32 {s(S_T3)}, {s(S_W)}, 28672")
    k.I(f"v_add_u32 v5, {s(S_T3)}, v5")
    k.I(f"v_add_u32 v6, {s(S_T3)}, v6")
    for rnd in range(2):
        k.I(f"s_mul_i32 {s(S_OFF)}, {s(S_W)}, {448*1024}")
        if rnd:
            k.I(f"s_add_u32 {s(S_OFF)}, {s(S_OFF)}, {224*1024}")
        k.I(f"s_mov_b32 m0, {s(S_T3)}")
        k._tag = "wd"
        for n in range(28):
            k.dma(4, S_WD, s(S_OFF))
            if n < 27:
                k.I("s_add_u32 m0, m0, 1024")
                k.I(f"s_add_u32 {s(S_OFF)}, {s(S_OFF)}, 8192")
        k._tag = None
        k.wait_vm("wd")
        for kl in range(14):
            for cbk in range(2):
                for rd in range(2):
                    k.I(f"ds_read_b64_tr_b16 {a_((2*(14*rnd + kl) + cbk)*4 + 2*rd, 2)}, {v(5+cbk)} offset:{kl*2048 + rd*512}")
            if kl % 2 == 1:
                k.I("s_waitcnt lgkmcnt(4)")
        k.wait_lg_all()
    mod16(k, 176, 1280, "gb")
    GB = 176
    k.I(f"s_lshl_b32 {s(S_T0)}, {s(S_M)}, 11")
    k.I(f"s_add_u32 {s(S_T0)}, {s(S_T0)}, {WS_FA}")
    k.poll_flags(S_T0, 16, "pa")
    k.stamp("act flags seen")
    k.I(f"s_sub_u32 {s(S_T0)}, {s(S_TB)}, {s(S_TBL)}")
    k.I(f"s_mul_i32 {s(S_T0)}, {s(S_T0)}, {112*1024}")
    k.I(f"s_mul_i32 {s(S_T1)}, {s(S_W)}, {28*1024}")
    k.I(f"s_add_u32 {s(S_T0)}, {s(S_T0)}, {s(S_T1)}")
    S_A0, S_A1 = S_T3, S_T4
    k.I(f"s_add_u32 {s(S_A0)}, {s(S_T0)}, {WS_ACT}")
    k.I(f"s_add_u32 {s(S_A1)}, {s(S_A0)}, {112*1024}")
    NB = 18
    AB = 16
    ACC = 192

    def ld(kl):
        for tbl in range(2):
            r = AB + 8 * (kl % NB) + 4 * tbl
            k.I(f"buffer_load_dwordx4 {v(r,4)}, {v(V_L16)}, {srd(S_WS)}, {s(S_A0 + tbl)} offen offset:{(kl&3)*1024} sc1", tag=f"a{kl}")
        if kl & 3 == 3:
            k.I(f"s_add_u32 {s(S_A0)}, {s(S_A0)}, 4096")
            k.I(f"s_add_u32 {s(S_A1)}, {s(S_A1)}, 4096")

    for kl in range(NB):
        ld(kl)
    for kl in range(28):
        k.wait_vm(f"a{kl}")
        for tbl in range(2):
            for cbk in range(2):
                r = AB + 8 * (kl % NB) + 4 * tbl
                k.mfma32(v(ACC + 16 * (2 * cbk + tbl), 16), a_((2 * kl + cbk) * 4, 4), v(r, 4), "0" if kl == 0 else None)
        if kl + NB < 28:
            ld(kl + NB)
    k.stamp("down gemm")
    k.barrier()
    k.I(f"s_lshl_b32 {s(S_T0)}, {s(S_W)}, 12")
    k.I(f"v_add_u32 v8, {s(S_T0)}, {v(V_L16)}")
    k.I(f"v_add_u32 v9, 32768, v8")
    for q in range(4):
        sk = k.newlabel("r4w")
        k.I(f"s_cmp_eq_u32 {s(S_W)}, {q}")
        k.I(f"s_cbranch_scc1 {sk}")
        k.cond_begin()
        for i in range(4):
            base = 8 if q < 2 else 9
            k.I(f"ds_write_b128 {v(base)}, {v(ACC+16*q+4*i,4)} offset:{(q&1)*16384 + i*1024}")
        k.cond_end()
        k.label(sk)
    k.wait_lg_all()
    k.barrier()
    for q in range(4):
        sk = k.newlabel("r4m")
        k.I(f"s_cmp_eq_u32 {s(S_W)}, {q}")
        k.I(f"s_cbranch_scc0 {sk}")
        for i in range(0, 16, 2):
            k.I(f"v_pk_mul_f32 {v(16+i,2)}, {v(ACC+16*q+i,2)}, 1.0 op_sel_hi:[1,0]")
        k.label(sk)
    k.I(f"s_lshl_b32 {s(S_T0)}, {s(S_W)}, 14")
    k.I(f"v_add_u32 v8, {s(S_T0)}, {v(V_L16)}")
    for d in range(1, 4):
        k.I(f"s_add_u32 {s(S_T1)}, {s(S_W)}, {d}")
        k.I(f"s_and_b32 {s(S_T1)}, {s(S_T1)}, 3")
        k.I(f"s_lshl_b32 {s(S_T1)}, {s(S_T1)}, 12")
        k.I(f"v_add_u32 v9, {s(S_T1)}, v8")
        for i in range(4):
            k.I(f"ds_read_b128 {v(32+16*(d-1)+4*i,4)}, v9 offset:{i*1024}")
    k.wait_lg_all()
    for d in range(3):
        for i in range(0, 16, 2):
            k.I(f"v_pk_add_f32 {v(16+i,2)}, {v(16+i,2)}, {v(32+16*d+i,2)}")
    for i in range(8):
        g = GB + 4 * (i >> 1) + 2 * (i & 1)
        k.I(f"v_accvgpr_read_b32 v84, {a_(240+i)}")
        k.unpack(80, 81, g)
        k.unpack(82, 83, 84)
        k.I(f"v_pk_fma_f32 v[82:83], v[80:81], {v(16+2*i,2)}, v[82:83]")
        k.I(f"v_cvt_pk_bf16_f32 {v(88+i)}, v82, v83")
    k.I(f"v_and_b32 v8, 31, {v(V_LANE)}")
    k.I("v_lshlrev_b32 v8, 10, v8")
    k.I(f"v_lshrrev_b32 v9, 5, {v(V_LANE)}")
    k.I("v_lshl_add_u32 v8, v9, 5, v8")
    k.I(f"s_lshl_b32 {s(S_T0)}, {s(S_TB)}, 15")
    k.I(f"s_lshl_b32 {s(S_T1)}, {s(S_B32)}, 6")
    k.I(f"s_add_u32 {s(S_T0)}, {s(S_T0)}, {s(S_T1)}")
    k.I(f"v_add_u32 v8, {s(S_T0)}, v8")
    k.I(f"buffer_store_dwordx4 v[88:91], v8, {srd(S_OUT)}, 0 offen")
    k.I(f"buffer_store_dwordx4 v[92:95], v8, {srd(S_OUT)}, 0 offen offset:16")
    k.stamp("out stored")


def finish(k):
    if k.diag == "dbg":
        sk = k.newlabel("fin")
        k.wave_is(0, sk)
        k.I("s_load_dwordx2 s[92:93], s[0:1], 88")
        k.I("s_waitcnt lgkmcnt(0)")
        k.I("s_mov_b32 s94, 256")
        k.I("s_mov_b32 s95, 0x20000")
        k.I("s_mov_b64 exec, 1")
        sel = k.dbg_sel
        for slot, i in enumerate(sel):
            k.I(f"v_mov_b32 v9, {s(S_STAMP+i)}")
            if slot == 0:
                k.I("v_not_b32 v9, v9")
            k.I(f"v_mov_b32 v8, {4*slot}")
            k.I(f"buffer_atomic_umax v9, v8, s[92:95], 0 offen")
        k.label(sk)
    elif k.diag:
        sk = k.newlabel("fin")
        k.wave_is(0, sk)
        k.I(f"s_lshl_b32 {s(S_T0)}, s2, 7")
        k.I(f"s_add_u32 {s(S_T0)}, {s(S_T0)}, {WS_STAMP}")
        k.I(f"v_mov_b32 v8, {s(S_T0)}")
        k.I("s_mov_b64 exec, 1")
        for i in range(k.nstamp):
            k.I(f"v_mov_b32 v9, {s(S_STAMP+i)}")
            k.I(f"buffer_store_dword v9, v8, {srd(S_WS)}, 0 offen offset:{4*i}")
        k.label(sk)
    k.label("L_end")
    k.I("s_endpgm")


def build(diag=False, stop=None):
    k = K(diag, stop)
    phases = [prologue, p0_issue, x_issue, p0_compute, p1_prologue, p1_main, p1_epilogue, ub_part, wo_issue,
              kv_combine_and_o, p2, p3, p4]
    for ph in phases:
        k.comment(f"======== {ph.__name__} ========")
        ph(k)
        if stop == ph.__name__:
            break
    k.dbg_sel = list(range(min(k.nstamp, 16)))
    if k.nstamp > 16:
        k.dbg_sel = [0, 1, 3, 4, 5, 7, 8, 9, 10, 11, 12, 13, 14, 15, 16, 17][:16]
    finish(k)
    hdr = open("cdna_kernels/" + NAME + ".s.ref").read().split("; Override launch geometry")[0]
    txt = hdr
    txt += f"; @launch grid=(256,1,1) block=(256,1,1) lds={LDS_BYTES}\n"
    txt += '.amdgcn_target "amdgcn-amd-amdhsa--gfx950"\n.text\n'
    txt += f".globl {NAME}_kernel\n.p2align 8\n.type {NAME}_kernel,@function\n{NAME}_kernel:\n"
    txt += k.text()
    txt += f""".section .rodata,"a"
.p2align 6
.amdhsa_kernel {NAME}_kernel
  .amdhsa_next_free_vgpr 512
  .amdhsa_next_free_sgpr 102
  .amdhsa_accum_offset 256
  .amdhsa_group_segment_fixed_size 0
  .amdhsa_kernarg_size 104
  .amdhsa_user_sgpr_count 2
  .amdhsa_user_sgpr_kernarg_segment_ptr 1
  .amdhsa_system_sgpr_workgroup_id_x 1
.end_amdhsa_kernel
"""
    return txt, k


if __name__ == "__main__":
    out = sys.argv[1] if len(sys.argv) > 1 else "k.s"
    diag = "--diag" in sys.argv
    if "--dbg" in sys.argv:
        diag = "dbg"
    stop = None
    for a in sys.argv:
        if a.startswith("--stop="):
            stop = a.split("=")[1]
    txt, k = build(diag, stop)
    open(out, "w").write(txt)
    if diag:
        open(out + ".stamps", "w").write("\n".join(k.stamp_names) + "\n")
    print(f"wrote {out}: {len(txt)} bytes, {sum(1 for l in k.out if l.startswith(chr(9)))} instructions, {k.nops} hazard nops")
```

```python
import sys
from asmlib import Asm

NAME = "adaLN_cond__linear_kernel_hedgehog__glu_gated_reglu__prompt"

WS_E = 0
WS_MODG = 0x1000
WS_FKV = 0x4000
WS_FO = 0xC000
WS_FY = 0x14000
WS_FA = 0x1C000
WS_STAMP = 0x30000
WS_WEXT = 0x40000
WS_STATS = 0x80000
WS_KVP = 0x100000
WS_O = 0x200000
WS_Y = 0x400000
WS_ACT = 0x800000

L_XI = 0
L_WI = 0
L_WM = 131072
L_S = 147456
L_GP = 148480
L_CT = 139264
L_PHI = 153600
L_ZERO = 154624
L_RED = 114688
L_KVF = 149504
L_Z = 151552
L_UB = 98304
L_CS = 155648
L_WO = 0
L_OI = 98304
SLAB = 14592
UOFF = 7296
LDS_BYTES = 163840

S_X, S_WQKV, S_WPHI, S_WO, S_WG, S_WU, S_WD, S_C, S_WMOD, S_OUT, S_WS = 4, 8, 12, 16, 20, 24, 28, 32, 36, 40, 44
S_XCD, S_I, S_M, S_J, S_W, S_TAG, S_MASK = 48, 49, 50, 51, 52, 53, 54
S_T0, S_T1, S_T2, S_T3, S_T4 = 55, 56, 57, 58, 59
S_CLK = 60
S_L2E = 62
S_SPIN = 64
S_OFF = 65
S_VALID = 66
S_EX = 68
S_M2, S_J2 = 70, 71
S_STAMP = 72
S_SEL = 92
S_HP = S_J

LOG2E = 0x3FB8AA3B
SPIN_MAX = 200000


def srd(i):
    return f"s[{i}:{i+3}]"


def v(i, n=1):
    return f"v{i}" if n == 1 else f"v[{i}:{i+n-1}]"


def a_(i, n=1):
    return f"a{i}" if n == 1 else f"a[{i}:{i+n-1}]"


def s(i, n=1):
    return f"s{i}" if n == 1 else f"s[{i}:{i+n-1}]"


V_LANE, V_L16, V_TAG = 1, 2, 3
V_DUMMY = 15
OPT = dict(touch=1, nx0=4, rot=1, tw0=0, mall=0)


import os
STAMPS = os.environ.get('STAMPS', 'start,wmod landed,x in regs,mod arrived,P1 ready,p1 main,kv published,q softmax,kv flags seen,o published,o flags seen,wo gemm,y published,y flags seen,gate/up gemm,act published,act flags seen,out stored').split(',')


class K(Asm):
    def __init__(self, diag=False, stop=None):
        super().__init__()
        self.diag = diag
        self.stop = stop
        self.nstamp = 0

    def stamp(self, name, cyc=False):
        if not self.diag:
            return
        if STAMPS is not None and name not in STAMPS:
            return
        if cyc:
            self.wait_lg_all()
            self.I(f"s_memtime {s(S_CLK, 2)}")
            self.I("s_waitcnt lgkmcnt(0)")
            self.I(f"s_mov_b32 {s(S_STAMP + self.nstamp)}, {s(S_CLK)}")
            self.stamp_names = getattr(self, "stamp_names", []) + [name + " (cyc)"]
            self.nstamp += 1
            return
        self.wait_lg_all()
        self.I(f"s_memrealtime {s(S_CLK, 2)}")
        self.I("s_waitcnt lgkmcnt(0)")
        self.I(f"s_mov_b32 {s(S_STAMP + self.nstamp)}, {s(S_CLK)}")
        self.stamp_names = getattr(self, "stamp_names", []) + [name]
        self.nstamp += 1
        assert self.nstamp <= 18, self.stamp_names

    def wave_is(self, w, label_else):
        self.I(f"s_cmp_eq_u32 {s(S_W)}, {w}")
        self.I(f"s_cbranch_scc0 {label_else}")

    def mfma32(self, d, a, b, c=None):
        c = d if c is None else c
        self.I(f"v_mfma_f32_32x32x16_bf16 {d}, {a}, {b}, {c}")

    def spin_init(self):
        self.I(f"s_mov_b32 {s(S_SPIN)}, {SPIN_MAX}")

    def spin_back(self, loop, done):
        self.I(f"s_cbranch_vccz {done}")
        self.I(f"s_sub_u32 {s(S_SPIN)}, {s(S_SPIN)}, 1")
        self.I(f"s_cmp_lg_u32 {s(S_SPIN)}, 0")
        self.I(f"s_cbranch_scc1 {loop}")

    def unpack(self, lo, hi, src):
        self.I(f"v_lshlrev_b32 {v(lo)}, 16, {v(src)}")
        self.I(f"v_and_b32 {v(hi)}, {s(S_MASK)}, {v(src)}")

    def half_total(self, r, tmp):
        self.I(f"v_mov_b32 {v(tmp)}, {v(r)}")
        self.I(f"v_permlane32_swap_b32 {v(r)}, {v(tmp)}")
        self.I(f"v_add_f32 {v(r)}, {v(r)}, {v(tmp)}")

    def dma(self, voff, rsrc, soff, sc1=False):
        self.I(f"buffer_load_dwordx4 {v(voff)}, {srd(rsrc)}, {soff} offen{' sc1' if sc1 else ''} lds", tag=self._tag)

    _tag = None

    def touch(self, rsrc, voff, soff, tag="t", dst=None):
        self.I(f"buffer_load_dword {v(V_DUMMY if dst is None else dst)}, {v(voff)}, {srd(rsrc)}, {soff} offen", tag=tag)

    def poll_flags(self, base_sreg, n, stem, tmp=14):
        done = self.newlabel(stem + "_skip")
        loop = self.newlabel(stem + "_loop")
        ok = self.newlabel(stem + "_ok")
        self.wave_is(0, done)
        self.cond_begin()
        self.I(f"v_min_u32 {v(tmp)}, {n-1}, {v(V_LANE)}")
        self.I(f"v_lshlrev_b32 {v(tmp)}, 7, {v(tmp)}")
        self.I(f"v_add_u32 {v(tmp)}, {s(base_sreg)}, {v(tmp)}")
        self.spin_init()
        self.label(loop)
        self.I(f"buffer_load_dword {v(tmp+1)}, {v(tmp)}, {srd(S_WS)}, 0 offen sc1")
        self.I("s_waitcnt vmcnt(0)")
        self.I(f"v_cmp_ne_u32 vcc, {s(S_TAG)}, {v(tmp+1)}")
        self.spin_back(loop, ok)
        self.label(ok)
        self.cond_end()
        self.label(done)
        self.barrier()

    def signal(self, off_sreg, stem, tmp=14):
        self.barrier()
        done = self.newlabel(stem + "_sig")
        self.wave_is(0, done)
        self.cond_begin()
        self.I(f"v_mov_b32 {v(tmp)}, {s(off_sreg)}")
        self.I(f"s_mov_b64 exec, 1")
        self.I(f"buffer_store_dword {v(V_TAG)}, {v(tmp)}, {srd(S_WS)}, 0 offen sc1")
        self.I(f"s_mov_b64 exec, -1")
        self.cond_end()
        self.label(done)

    def granule_loads(self, regs, addr_regs, width, imm, tag):
        sfx = {2: "dwordx2", 4: "dwordx4"}[width]
        for i, (r, ad) in enumerate(zip(regs, addr_regs)):
            off = imm[i] if imm else 0
            self.I(f"buffer_load_{sfx} {v(r, width)}, {v(ad)}, {srd(S_WS)}, 0 offen offset:{off} sc1", tag=tag)

    def granule_verify(self, regs, addr_regs, stem, width, tagpos, imm, tag):
        loop = self.newlabel(stem + "_loop")
        chk = self.newlabel(stem + "_chk")
        ok = self.newlabel(stem + "_ok")
        self.spin_init()
        if self.cond:
            self.I("s_waitcnt vmcnt(0)")
        else:
            self.wait_vm(tag)
        self.I(f"s_branch {chk}")
        self.label(loop)
        self.cond_begin()
        self.granule_loads(regs, addr_regs, width, imm, None)
        self.I("s_waitcnt vmcnt(0)")
        self.cond_end()
        self.label(chk)
        first = True
        for r in regs:
            for tp in tagpos:
                if first:
                    self.I(f"v_cmp_ne_u32 vcc, {s(S_TAG)}, {v(r+tp)}")
                    first = False
                else:
                    self.I(f"v_cmp_ne_u32 {s(S_EX, 2)}, {s(S_TAG)}, {v(r+tp)}")
                    self.I(f"s_or_b64 vcc, vcc, {s(S_EX, 2)}")
        self.spin_back(loop, ok)
        self.label(ok)

    def load_granules_checked(self, regs, addr_regs, stem, width=2, tagpos=(1,), imm=None):
        self.granule_loads(regs, addr_regs, width, imm, stem)
        self.granule_verify(regs, addr_regs, stem, width, tagpos, imm, stem)


def prologue(k):
    k.I("s_cmp_ge_u32 s2, 256")
    k.I("s_cbranch_scc1 L_end")
    k.I("s_load_dwordx16 s[64:79], s[0:1], 0")
    k.I("s_load_dwordx8 s[80:87], s[0:1], 64")
    k.I("s_load_dwordx2 s[88:89], s[0:1], 96")
    k.I(f"v_and_b32 {v(V_LANE)}, 63, v0")
    k.I("v_lshrrev_b32 v4, 6, v0")
    k.I(f"v_lshlrev_b32 {v(V_L16)}, 4, {v(V_LANE)}")
    k.I(f"v_readfirstlane_b32 {s(S_W)}, v4")
    k.I(f"s_and_b32 {s(S_XCD)}, s2, 7")
    k.I(f"s_lshr_b32 {s(S_I)}, s2, 3")
    k.I(f"s_lshr_b32 {s(S_T0)}, {s(S_XCD)}, 1")
    k.I(f"s_lshl_b32 {s(S_T0)}, {s(S_T0)}, 2")
    k.I(f"s_lshr_b32 {s(S_T1)}, {s(S_I)}, 3")
    k.I(f"s_add_u32 {s(S_M)}, {s(S_T0)}, {s(S_T1)}")
    k.I(f"s_and_b32 {s(S_T0)}, {s(S_XCD)}, 1")
    k.I(f"s_lshl_b32 {s(S_T0)}, {s(S_T0)}, 3")
    k.I(f"s_and_b32 {s(S_T1)}, {s(S_I)}, 7")
    k.I(f"s_add_u32 {s(S_J)}, {s(S_T0)}, {s(S_T1)}")
    k.I(f"s_mov_b32 {s(S_MASK)}, 0xffff0000")
    k.I(f"s_mov_b32 {s(S_L2E)}, {LOG2E:#x}")
    k.I(f"s_mov_b32 {s(S_L2E+1)}, {LOG2E:#x}")
    k.I("s_waitcnt lgkmcnt(0)")
    bufs = [(S_X, 64, 2097152), (S_WQKV, 66, 1572864), (S_WPHI, 68, 16384), (S_WO, 70, 524288),
            (S_WG, 74, 1835008), (S_WU, 76, 1835008), (S_WD, 78, 1835008), (S_C, 80, 1024),
            (S_WMOD, 82, 3145728), (S_OUT, 84, 2097152), (S_WS, 88, 268435456)]
    for r, p, n in bufs:
        k.I(f"s_mov_b32 {s(r)}, {s(p)}")
        k.I(f"s_mov_b32 {s(r+1)}, {s(p+1)}")
        k.I(f"s_mov_b32 {s(r+2)}, {n}")
        k.I(f"s_mov_b32 {s(r+3)}, 0x20000")
    k.I(f"s_lshr_b32 {s(S_T0)}, {s(S_I)}, 4")
    k.I(f"s_lshl_b32 {s(S_M2)}, {s(S_XCD)}, 1")
    k.I(f"s_add_u32 {s(S_M2)}, {s(S_M2)}, {s(S_T0)}")
    k.I(f"s_and_b32 {s(S_J2)}, {s(S_I)}, 15")
    k.I("v_mov_b32 v4, 0")
    k.I(f"buffer_load_dword {v(V_TAG)}, v4, {srd(S_WS)}, 0 offen sc1", tag="E")
    k.stamp("start")


S_G = 100


def x_rows(k, r0, r1):
    k._tag = "x"
    for r in range(r0, r1):
        k.I(f"s_add_u32 {s(S_T0)}, {s(S_T3)}, {r}")
        k.I(f"s_and_b32 {s(S_T0)}, {s(S_T0)}, 31")
        k.I(f"s_and_b32 {s(S_T1)}, {s(S_T0)}, 15")
        k.I(f"s_lshl_b32 {s(S_T1)}, {s(S_T1)}, 4")
        k.I(f"v_xor_b32 v9, {s(S_T1)}, {v(V_L16)}")
        k.I(f"s_lshl_b32 {s(S_T0)}, {s(S_T0)}, 10")
        k.I(f"s_add_u32 m0, {s(S_T0)}, {s(S_T4)}")
        k.I(f"s_add_u32 {s(S_OFF)}, {s(S_T0)}, {s(S_T2)}")
        k.dma(9, S_X, s(S_OFF))
    k._tag = None


def start_phase(k):
    k.I(f"s_sub_u32 {s(S_T1)}, {s(S_I)}, 8")
    k.I(f"s_cmp_ge_u32 {s(S_I)}, 24")
    k.I(f"s_cselect_b32 {s(S_T2)}, {s(S_T1)}, {s(S_I)}")
    k.I(f"s_lshr_b32 {s(S_T0)}, {s(S_T2)}, 2")
    k.I(f"s_lshl_b32 {s(S_T0)}, {s(S_T0)}, 3")
    k.I(f"s_add_u32 {s(S_T0)}, {s(S_T0)}, {s(S_XCD)}")
    k.I(f"s_lshl_b32 {s(S_T0)}, {s(S_T0)}, 2")
    k.I(f"s_and_b32 {s(S_T1)}, {s(S_T2)}, 3")
    k.I(f"s_add_u32 {s(S_G)}, {s(S_T0)}, {s(S_T1)}")
    k.I("v_lshlrev_b32 v5, 2, v0")
    k.I(f"buffer_load_dword v6, v5, {srd(S_C)}, 0 offen", tag="c")
    k.I(f"v_lshrrev_b32 v7, 1, {v(V_LANE)}")
    k.I("v_mul_u32_u24 v7, 6144, v7")
    k.I(f"v_and_b32 v8, 1, {v(V_LANE)}")
    k.I("v_lshlrev_b32 v8, 4, v8")
    k.I(f"s_lshl_b32 {s(S_T0)}, {s(S_G)}, 5")
    k.I(f"v_add3_u32 v7, v7, v8, {s(S_T0)}")
    k.I(f"s_mul_i32 {s(S_OFF)}, {s(S_W)}, {4*196608}")
    k.I(f"s_lshl_b32 {s(S_T0)}, {s(S_W)}, 12")
    k.I(f"s_add_u32 m0, {s(S_T0)}, {L_WM}")
    k._tag = "wm"
    for n in range(4):
        k.dma(7, S_WMOD, s(S_OFF))
        if n < 3:
            k.I(f"s_add_u32 m0, m0, 1024")
            k.I(f"s_add_u32 {s(S_OFF)}, {s(S_OFF)}, 196608")
    k._tag = None
    k.I(f"s_lshl_b32 {s(S_T2)}, {s(S_M)}, 2")
    k.I(f"s_add_u32 {s(S_T2)}, {s(S_T2)}, {s(S_W)}")
    k.I(f"s_lshl_b32 {s(S_T2)}, {s(S_T2)}, 15")
    if OPT["rot"]:
        k.I(f"s_and_b32 {s(S_T3)}, {s(S_J)}, 7")
        k.I(f"s_lshl_b32 {s(S_T3)}, {s(S_T3)}, 2")
    else:
        k.I(f"s_mov_b32 {s(S_T3)}, 0")
    k.I(f"s_lshl_b32 {s(S_T4)}, {s(S_W)}, 15")
    if L_XI:
        k.I(f"s_add_u32 {s(S_T4)}, {s(S_T4)}, {L_XI}")
    x_rows(k, 0, OPT["nx0"])
    if OPT["mall"]:
        k.I(f"s_cmp_eq_u32 {s(S_W)}, 0")
        k.I(f"s_cselect_b32 {s(S_T0)}, 16, 56")
        k.I(f"s_mul_i32 {s(S_OFF)}, {s(S_T0)}, s2")
        k.I(f"s_lshl_b32 {s(S_OFF)}, {s(S_OFF)}, 7")
        k.I(f"s_sub_u32 {s(S_T0)}, {s(S_T0)}, 1")
        k.I(f"v_min_u32 v9, {s(S_T0)}, {v(V_LANE)}")
        k.I(f"v_lshlrev_b32 v9, 7, v9")
        for w, r in enumerate((S_WO, S_WG, S_WU, S_WD)):
            sk = k.newlabel("tw")
            k.I(f"s_cmp_eq_u32 {s(S_W)}, {w}")
            k.I(f"s_cbranch_scc0 {sk}")
            k.cond_begin()
            k.touch(r, 9, s(S_OFF))
            k.cond_end()
            k.label(sk)
    k.wait_vm("c")
    k.unpack(8, 9, 6)
    k.I(f"v_mul_f32 v10, {s(S_L2E)}, v8")
    k.I(f"v_mul_f32 v11, {s(S_L2E)}, v9")
    k.I("v_exp_f32 v10, -v10")
    k.I("v_exp_f32 v11, -v11")
    k.I("v_add_f32 v10, 1.0, v10")
    k.I("v_add_f32 v11, 1.0, v11")
    k.I("v_rcp_f32 v10, v10")
    k.I("v_rcp_f32 v11, v11")
    k.I("v_mul_f32 v8, v8, v10")
    k.I("v_mul_f32 v9, v9, v11")
    k.I("v_cvt_pk_bf16_f32 v8, v8, v9")
    k.I(f"v_add_u32 v5, {L_S}, v5")
    k.I("ds_write_b32 v5, v8")
    k.I(f"v_add_u32 {v(V_TAG)}, 1, {v(V_TAG)}")
    k.I(f"v_readfirstlane_b32 {s(S_TAG)}, {v(V_TAG)}")
    k.I(f"v_lshrrev_b32 v8, 4, {v(V_LANE)}")
    k.I("v_lshlrev_b32 v8, 3, v8")
    k.I(f"s_lshl_b32 {s(S_T0)}, {s(S_W)}, 8")
    k.I(f"s_add_u32 {s(S_T0)}, {s(S_T0)}, {L_S}")
    k.I(f"v_add_u32 v8, {s(S_T0)}, v8")
    k.I(f"v_lshlrev_b32 v10, 3, {v(V_LANE)}")
    k.I(f"s_lshl_b32 {s(S_T0)}, {s(S_W)}, 12")
    k.I(f"s_add_u32 {s(S_T0)}, {s(S_T0)}, {L_WM}")
    k.I(f"v_add_u32 v10, {s(S_T0)}, v10")
    k.wait_vm("wm")
    k.wait_lg_all()
    k.barrier()
    k.stamp("wmod landed")
    if OPT["touch"]:
        k.I(f"v_lshrrev_b32 v11, 2, {v(V_LANE)}")
        k.I("v_mul_u32_u24 v11, 3072, v11")
        k.I(f"v_and_b32 v12, 3, {v(V_LANE)}")
        k.I("v_lshl_add_u32 v11, v12, 7, v11")
        k.I(f"s_mul_i32 {s(S_OFF)}, {s(S_I)}, {16*3072}")
        k.I(f"s_min_u32 {s(S_T0)}, {s(S_W)}, 2")
        k.I(f"s_lshl_b32 {s(S_T0)}, {s(S_T0)}, 10")
        k.I(f"s_add_u32 {s(S_OFF)}, {s(S_OFF)}, {s(S_T0)}")
        k.I(f"s_and_b32 {s(S_T0)}, {s(S_XCD)}, 1")
        k.I(f"s_lshl_b32 {s(S_T0)}, {s(S_T0)}, 9")
        k.I(f"s_add_u32 {s(S_OFF)}, {s(S_OFF)}, {s(S_T0)}")
        k.touch(S_WQKV, 11, s(S_OFF))
    for q in range(4):
        k.I(f"ds_read_b64_tr_b16 {v(148+8*q, 2)}, v10 offset:{q*1024}")
        k.I(f"ds_read_b64_tr_b16 {v(150+8*q, 2)}, v10 offset:{q*1024+512}")
    for q in range(4):
        k.I(f"ds_read_b64 {v(144+8*q, 2)}, v8 offset:{q*64}")
        k.I(f"ds_read_b64 {v(146+8*q, 2)}, v8 offset:{q*64+32}")
    k.wait_lg_all()
    for q in range(4):
        c = "0" if q == 0 else v(176, 4)
        k.I(f"v_mfma_f32_16x16x32_bf16 {v(176, 4)}, {v(144+8*q, 4)}, {v(148+8*q, 4)}, {c}")
    k.I(f"v_and_b32 v8, 15, {v(V_LANE)}")
    k.I("v_lshlrev_b32 v8, 2, v8")
    k.I(f"s_lshl_b32 {s(S_T0)}, {s(S_W)}, 6")
    k.I(f"s_add_u32 {s(S_T0)}, {s(S_T0)}, {L_GP}")
    k.I(f"v_add_u32 v8, {s(S_T0)}, v8")
    k.I("ds_write_b32 v8, v176")
    k.wait_lg_all()
    k.barrier()
    w0 = k.newlabel("p0c_w0")
    k.wave_is(0, w0)
    k.I("s_cmp_ge_u32 s2, 192")
    k.I(f"s_cbranch_scc1 {w0}")
    k.cond_begin()
    k.I(f"v_and_b32 v8, 7, {v(V_LANE)}")
    k.I("v_lshlrev_b32 v8, 3, v8")
    k.I(f"v_add_u32 v10, {L_GP}, v8")
    for w in range(4):
        k.I(f"ds_read_b64 {v(144+2*w, 2)}, v10 offset:{w*64}")
    k.I("s_waitcnt lgkmcnt(0)")
    k.I("v_pk_add_f32 v[144:145], v[144:145], v[146:147]")
    k.I("v_pk_add_f32 v[148:149], v[148:149], v[150:151]")
    k.I("v_pk_add_f32 v[144:145], v[144:145], v[148:149]")
    k.I("v_cvt_pk_bf16_f32 v144, v144, v145")
    k.I(f"v_mov_b32 v145, {v(V_TAG)}")
    k.I(f"s_lshl_b32 {s(S_T0)}, {s(S_G)}, 6")
    k.I(f"s_add_u32 {s(S_T0)}, {s(S_T0)}, {WS_MODG}")
    k.I(f"v_add_u32 v8, {s(S_T0)}, v8")
    k.I("s_mov_b64 exec, 0xff")
    k.I(f"buffer_store_dwordx2 v[144:145], v8, {srd(S_WS)}, 0 offen sc1")
    k.I("s_mov_b64 exec, -1")
    k.cond_end()
    k.label(w0)
    k.stamp("mod published")
    x_rows(k, OPT['nx0'], 32)

X0 = 16
AQ, AK, AV = 144, 160, 176
DM = 144
DG = 192
EB = (200, 204)
BEXT = 208
MSK = 212
V_TR0, V_TR1, V_TAB, V_R = 220, 221, 222, 223


def lane_fields(k, t_r=None, s_=None, r_=None, c_=None, nh=None):
    if s_ is not None:
        k.I(f"v_lshrrev_b32 {v(s_)}, 5, {v(V_LANE)}")
    if nh is not None:
        k.I(f"v_bfe_u32 {v(nh)}, {v(V_LANE)}, 4, 1")
    if r_ is not None:
        k.I(f"v_bfe_u32 {v(r_)}, {v(V_LANE)}, 2, 2")
    if c_ is not None:
        k.I(f"v_and_b32 {v(c_)}, 3, {v(V_LANE)}")


def lbase_bytes(k, dst, nh, c, t0, t1):
    k.I(f"v_and_b32 {v(t0)}, 1, {v(c)}")
    k.I(f"v_lshlrev_b32 {v(t0)}, 5, {v(t0)}")
    k.I(f"v_lshrrev_b32 {v(t1)}, 1, {v(c)}")
    k.I(f"v_lshlrev_b32 {v(t1)}, 3, {v(t1)}")
    k.I(f"v_lshl_add_u32 {v(dst)}, {v(nh)}, 4, {v(t0)}")
    k.I(f"v_add_u32 {v(dst)}, {v(dst)}, {v(t1)}")


def p1_prologue(k):
    k.I(f"s_lshl_b32 {s(S_OFF)}, {s(S_HP)}, 10")
    k.I(f"s_mov_b32 m0, {L_PHI}")
    k._tag = "phi"
    k.dma(V_L16, S_WPHI, s(S_OFF))
    k._tag = None
    k.I("v_mov_b32 v8, 0")
    k.I(f"v_lshlrev_b32 v9, 2, {v(V_LANE)}")
    k.I(f"v_and_b32 v9, 60, v9")
    k.I(f"ds_write_b32 v9, v8 offset:{L_ZERO}" if L_ZERO < 65536 else f"v_add_u32 v9, {L_ZERO}, v9\nds_write_b32 v9, v8")
    k.I(f"v_and_b32 v8, 31, {v(V_LANE)}")
    k.I(f"s_lshl_b32 {s(S_T0)}, {s(S_W)}, 5")
    k.I(f"v_add_u32 v9, {s(S_T0)}, v8")
    k.I("v_lshlrev_b32 v9, 10, v9")
    k.I("v_and_b32 v8, 15, v8")
    k.I(f"v_lshrrev_b32 v10, 5, {v(V_LANE)}")
    for q in range(8):
        k.I(f"v_add_u32 v11, {2*q}, v10")
        k.I("v_xor_b32 v11, v11, v8")
        k.I(f"v_lshl_add_u32 {v(192+q)}, v11, 4, v9")
    k.wait_vm("x")
    for j in range(32):
        k.I(f"ds_read_b128 {v(X0+4*j, 4)}, {v(192+(j&7))} offset:{L_XI + (j>>3)*256}", tag="xf")
        if j % 8 == 7 and j < 31:
            k.I("s_waitcnt lgkmcnt(4)")
    k.wait_lg_all()
    k.barrier()
    k.stamp("x in regs")
    for u in range(3):
        k.I(f"v_add_u32 v8, {64*u}, {v(V_LANE)}")
        k.I("v_mul_u32_u24 v9, 5462, v8")
        k.I("v_lshrrev_b32 v9, 16, v9")
        k.I("v_mul_u32_u24 v10, 12, v9")
        k.I("v_sub_u32 v10, v8, v10")
        k.I("v_lshrrev_b32 v11, 2, v10")
        k.I("v_lshlrev_b32 v11, 10, v11")
        k.I("v_and_b32 v10, 3, v10")
        k.I("v_lshl_add_u32 v11, v10, 4, v11")
        k.I("v_mul_u32_u24 v9, 3072, v9")
        k.I(f"s_lshl_b32 {s(S_T0)}, {s(S_HP)}, 6")
        k.I(f"v_add3_u32 {v(200+u)}, v9, v11, {s(S_T0)}")
    for z in range(192):
        assert (z * 5462) >> 16 == z // 12
    k.I(f"s_mul_i32 {s(S_T2)}, {s(S_W)}, {128*3072}")
    k.I(f"s_mul_i32 {s(S_T3)}, {s(S_W)}, {24*1024}")
    if L_WI:
        k.I(f"s_add_u32 {s(S_T3)}, {s(S_T3)}, {L_WI}")
    k.I("v_mov_b32 v8, 0x3f803f80")
    for r in range(10, 14):
        k.I(f"v_mov_b32 {v(r)}, 0")
    dots = []
    for i in range(128):
        dots.append(f"v_dot2c_f32_bf16 {v(10 + (i & 1))}, {v(X0+i)}, v8")
        dots.append(f"v_dot2c_f32_bf16 {v(12 + (i & 1))}, {v(X0+i)}, {v(X0+i)}")
    k._tag = "w"
    for gi in range(8):
        k.I(f"s_add_u32 {s(S_OFF)}, {s(S_T2)}, {gi*16*3072}")
        k.I(f"s_add_u32 m0, {s(S_T3)}, {gi*3072}")
        for u in range(3):
            k.dma(200 + u, S_WQKV, s(S_OFF))
            if u < 2:
                k.I("s_add_u32 m0, m0, 1024")
            for _ in range(8):
                k.I(dots.pop(0))
    k._tag = None
    for t in dots:
        k.I(t)
    k.I("v_add_f32 v10, v10, v11")
    k.I("v_add_f32 v12, v12, v13")
    k.half_total(10, 11)
    k.half_total(12, 13)
    k.I("v_mul_f32 v10, 0x3b000000, v10")
    k.I("v_mul_f32 v12, 0x3b000000, v12")
    k.I("v_fma_f32 v12, -v10, v10, v12")
    k.I("v_max_f32 v12, 0, v12")
    k.I("v_add_f32 v12, 0x3727c5ac, v12")
    k.I(f"v_rsq_f32 {v(V_R)}, v12")
    k.I("v_sub_f32 v10, 0, v10")
    k.I(f"v_mul_f32 v11, v12, {v(V_R)}")
    k.I("v_cvt_pk_bf16_f32 v12, v10, v11")
    k.unpack(8, 9, 12)
    k.I("v_sub_f32 v8, v10, v8")
    k.I("v_sub_f32 v9, v11, v9")
    k.I("v_cvt_pk_bf16_f32 v13, v8, v9")
    k.I(f"s_mov_b32 {s(S_T0)}, 0x01000100")
    k.I(f"s_mov_b32 {s(S_T1)}, 0x03020302")
    k.I(f"v_perm_b32 {v(BEXT)}, v12, v12, {s(S_T0)}")
    k.I(f"v_perm_b32 {v(BEXT+1)}, v13, v13, {s(S_T0)}")
    k.I(f"v_perm_b32 {v(BEXT+2)}, v12, v12, {s(S_T1)}")
    k.I(f"v_perm_b32 {v(BEXT+3)}, v13, v13, {s(S_T1)}")
    k.I(f"v_cmp_gt_u32 vcc, 32, {v(V_LANE)}")
    for i in range(4):
        k.I(f"v_cndmask_b32 {v(BEXT+i)}, 0, {v(BEXT+i)}, vcc")
    k.I(f"v_bfe_u32 v8, {v(V_LANE)}, 1, 2")
    k.I(f"v_bfe_u32 v9, {v(V_LANE)}, 4, 1")
    k.I("v_lshl_add_u32 v8, v9, 2, v8")
    k.I(f"v_bfe_u32 v9, {v(V_LANE)}, 3, 1")
    k.I(f"v_lshrrev_b32 v10, 5, {v(V_LANE)}")
    k.I("v_xor_b32 v9, v9, v10")
    k.I("v_lshl_add_u32 v8, v9, 3, v8")
    for i in range(8):
        k.I(f"v_cmp_eq_u32 vcc, {i}, v8")
        k.I(f"v_cndmask_b32 {v(MSK+i)}, 0, -1, vcc")
    k.stamp("stats")
    lane_fields(k, s_=8, r_=9, c_=10, nh=11)
    lbase_bytes(k, 12, 11, 10, 13, 14)
    k.I("v_lshl_add_u32 v8, v8, 2, v9")
    k.I("v_mul_u32_u24 v8, 192, v8")
    k.I(f"v_add_u32 {v(V_TR0)}, v8, v12")
    k.I(f"v_add_u32 {v(V_TR1)}, 49152, {v(V_TR0)}")
    k.I(f"v_and_b32 v8, 31, {v(V_LANE)}")
    k.I("v_lshlrev_b32 v8, 4, v8")
    k.I(f"v_add_u32 {v(V_TAB)}, {L_CT}, v8")
    p1_consts(k)
    k.I("v_lshlrev_b32 v8, 3, v0")
    k.I(f"v_add_u32 v8, {WS_MODG}, v8")
    k.load_granules_checked([10, 12], [8, 8], "modA", imm=[0, 2048])
    k.stamp("mod arrived")
    k.unpack(192, 193, 12)
    k.I("v_add_f32 v192, 1.0, v192")
    k.I("v_add_f32 v193, 1.0, v193")
    k.I("v_cvt_pk_bf16_f32 v12, v192, v193")
    k.I("v_and_b32 v192, 0xffff, v12")
    k.I("v_and_b32 v194, 0xffff, v10")
    k.I(f"v_and_b32 v196, {s(S_MASK)}, v12")
    k.I(f"v_and_b32 v198, {s(S_MASK)}, v10")
    for r in (192, 194, 196, 198):
        k.I(f"v_mov_b32 {v(r+1)}, {v(r)}")
    k.I("v_lshlrev_b32 v8, 5, v0")
    k.I(f"v_add_u32 v8, {L_CT}, v8")
    k.I("ds_write_b128 v8, v[192:195]")
    k.I("ds_write_b128 v8, v[196:199] offset:16")
    k.wait_vm_all()
    k.wait_lg_all()
    k.barrier()
    k.stamp("P1 ready")
    k.stamp("c0", cyc=True) if STAMPS and "c0" in STAMPS else None


def p1_w(j, p):
    base = V_TR0 if j < 16 else V_TR1
    return base, L_WI + (j & 15) * 3072 + p * 64


def p1_main(k):
    def rd_e(B):
        return [(f"ds_read_b128 {v(EB[B & 1], 4)}, {v(V_TAB)} offset:{B*512}", f"e{B}")]

    def rd_w(B):
        out = []
        for a in range(2):
            for pi, p in enumerate((1, 2)):
                base, off = p1_w(2 * B + a, p)
                for rd in range(2):
                    out.append((f"ds_read_b64_tr_b16 {a_(16*(B&1) + 8*a + 4*pi + 2*rd, 2)}, {v(base)} offset:{off + rd*1536}", f"w{B}_{a}{pi}"))
        return out

    def diag(B):
        return [f"v_and_b32 {v(DG+i)}, {v(EB[B & 1])}, {v(MSK+i)}" for i in range(8)]

    def pack(B):
        return [f"v_cvt_pk_bf16_f32 {v(X0 + 8*B + i)}, {v(DM + 2*i)}, {v(DM + 2*i + 1)}" for i in range(8)]

    def mod_mfma(B, i):
        if i < 2:
            k.mfma32(v(DM, 16), v(DG + 4 * i, 4), v(X0 + 8 * B + 4 * i, 4), "0" if i == 0 else None)
        else:
            k.mfma32(v(DM, 16), v(EB[B & 1], 4), v(BEXT, 4))

    def emit(items):
        for it in items:
            if isinstance(it, tuple):
                k.I(it[0], tag=it[1])
            else:
                k.I(it)

    if OPT["touch"]:
        touch_setup(k)
    emit(rd_e(0) + rd_e(1) + rd_w(0))
    k.wait_lg("e0")
    emit(diag(0))
    for i in range(3):
        mod_mfma(0, i)
    k.wait_lg("e1")
    emit(diag(1))
    emit(pack(0))
    for B in range(16):
        nxt = B + 1 < 16
        w = rd_w(B + 1) if nxt else []
        e = rd_e(B + 2) if B + 2 < 16 else []
        dg = diag(B + 2) if B + 2 < 16 else []
        pk = pack(B + 1) if nxt else []

        def g(a, pi):
            k.wait_lg(f"w{B}_{a}{pi}")
            wf = a_(16 * (B & 1) + 8 * a + 4 * pi, 4)
            h = v(X0 + 8 * B + 4 * a, 4)
            c0 = "0" if (B == 0 and a == 0) else None
            if pi == 0:
                k.mfma32(v(AK, 16), wf, h, c0)
            else:
                k.mfma32(v(AV, 16), h, wf, c0)

        if nxt:
            mod_mfma(B + 1, 0)
        emit(w[0:2])
        if nxt:
            mod_mfma(B + 1, 1)
        emit(w[2:4] + e)
        if nxt:
            mod_mfma(B + 1, 2)
        emit(w[4:6])
        g(0, 0)
        emit(w[6:8])
        if dg:
            k.wait_lg(f"e{B+2}")
        emit(dg[0:3])
        g(0, 1)
        emit(dg[3:8])
        g(1, 0)
        emit(pk[0:4])
        g(1, 1)
        emit(pk[4:8])
        if OPT["touch"] and B in (1, 5, 9):
            k.touch({1: S_WO, 5: S_WG, 9: S_WU}[B], 12 if B == 1 else 13, "0", dst=0)
    k.stamp("p1 main")
    k.stamp("c1", cyc=True) if STAMPS and "c1" in STAMPS else None


def p1_q(k):
    def rd(j):
        base, off = p1_w(j, 0)
        return [(f"ds_read_b64_tr_b16 {a_(4*(j % 6) + 2*rd, 2)}, {v(base)} offset:{off + rd*1536}", f"q{j}") for rd in range(2)]
    for j in range(32 + 4):
        if j < 32:
            for t, tg in rd(j):
                k.I(t, tag=tg)
        q = j - 4
        if q >= 0:
            k.wait_lg(f"q{q}")
            k.mfma32(v(AQ, 16), a_(4 * (q % 6), 4), v(X0 + 4 * q, 4), "0" if q == 0 else None)


def softmax16(k, P, E, outp, outn, t):
    mx, mn = t, t + 2
    k.I(f"v_max3_f32 {v(mx)}, {v(P)}, {v(P+1)}, {v(P+2)}")
    k.I(f"v_min3_f32 {v(mn)}, {v(P)}, {v(P+1)}, {v(P+2)}")
    for i in range(3, 15, 2):
        k.I(f"v_max3_f32 {v(mx)}, {v(mx)}, {v(P+i)}, {v(P+i+1)}")
        k.I(f"v_min3_f32 {v(mn)}, {v(mn)}, {v(P+i)}, {v(P+i+1)}")
    k.I(f"v_max_f32 {v(mx)}, {v(mx)}, {v(P+15)}")
    k.I(f"v_min_f32 {v(mn)}, {v(mn)}, {v(P+15)}")
    k.I(f"v_mul_f32 {v(mx)}, {s(S_L2E)}, {v(mx)}")
    k.I(f"v_mul_f32 {v(mn)}, {s(S_L2E)}, {v(mn)}")
    for sign, m, out in ((+1, mx, outp), (-1, mn, outn)):
        for i in range(0, 16, 2):
            if sign > 0:
                k.I(f"v_pk_fma_f32 {v(E+i,2)}, {v(P+i,2)}, {s(S_L2E,2)}, {v(m,2)} op_sel_hi:[1,1,0] neg_lo:[0,0,1] neg_hi:[0,0,1]")
            else:
                k.I(f"v_pk_fma_f32 {v(E+i,2)}, {v(P+i,2)}, {s(S_L2E,2)}, {v(m,2)} op_sel_hi:[1,1,0] neg_lo:[1,0,0] neg_hi:[1,0,0]")
        for i in range(16):
            k.I(f"v_exp_f32 {v(E+i)}, {v(E+i)}")
        sm = t + 4
        k.I(f"v_pk_add_f32 {v(sm,2)}, {v(E,2)}, {v(E+2,2)}")
        for i in range(4, 16, 2):
            k.I(f"v_pk_add_f32 {v(sm,2)}, {v(sm,2)}, {v(E+i,2)}")
        k.I(f"v_add_f32 {v(sm)}, {v(sm)}, {v(sm+1)}")
        k.I(f"v_rcp_f32 {v(sm)}, {v(sm)}")
        for i in range(0, 16, 2):
            k.I(f"v_pk_mul_f32 {v(E+i,2)}, {v(E+i,2)}, {v(sm,2)} op_sel_hi:[1,0]")
        for i in range(8):
            k.I(f"v_cvt_pk_bf16_f32 {v(out+i)}, {v(E+2*i)}, {v(E+2*i+1)}")


PHI_A, PHI_B = 224, 228
SEL0, SEL1, SELN0, SELN1 = 232, 236, 240, 244
RV = 224
PK, VP = 144, 152
PP = 160
EE = 192
TMP = 208
FP, FN = 224, 232
TP, TN = 176, 160
KVA, KVB = 192, 240
QP, QN = 96, 104


def p1_consts(k):
    k.wait_vm("phi")
    lane_fields(k, s_=8, r_=9, c_=10, nh=11)
    k.I("v_lshlrev_b32 v12, 9, v8")
    k.I("v_lshl_add_u32 v12, v9, 5, v12")
    k.I("v_lshlrev_b32 v13, 1, v11")
    k.I("v_lshrrev_b32 v14, 1, v10")
    k.I("v_add_u32 v13, v13, v14")
    k.I("v_lshl_add_u32 v12, v13, 3, v12")
    k.I(f"v_add_u32 v12, {L_PHI}, v12")
    k.I("v_and_b32 v13, 1, v10")
    k.I("v_cmp_eq_u32 vcc, v13, v8")
    for a in range(2):
        for rd in range(2):
            k.I(f"v_add_u32 v14, {(8*a+4*rd)*32}, v12")
            k.I(f"v_mov_b32 v15, {L_ZERO}")
            k.I("v_cndmask_b32 v14, v15, v14, vcc")
            k.I(f"ds_read_b64_tr_b16 {a_(PHI_A + 4*a + 2*rd, 2)}, v14", tag="phif")
    k.I(f"v_and_b32 v8, 31, {v(V_LANE)}")
    k.I("v_lshlrev_b32 v8, 2, v8")
    k.I(f"s_lshl_b32 {s(S_T0)}, {s(S_W)}, 7")
    k.I(f"s_add_u32 {s(S_T0)}, {s(S_T0)}, {L_S}")
    k.I(f"v_add_u32 v8, {s(S_T0)}, v8")
    k.I(f"ds_write_b32 v8, {v(V_R)}", tag="rw")
    k.I(f"v_lshrrev_b32 v9, 5, {v(V_LANE)}")
    k.I("v_lshlrev_b32 v9, 4, v9")
    k.I(f"v_add_u32 v9, {s(S_T0)}, v9")
    k.wait_lg("rw")
    for q in range(4):
        k.I(f"ds_read_b128 {v(RV+4*q,4)}, v9 offset:{32*q}", tag="rv")
    k.I(f"v_bfe_u32 v8, {v(V_LANE)}, 3, 1")
    k.I(f"v_and_b32 v9, 3, {v(V_LANE)}")
    k.I("v_lshl_add_u32 v8, v8, 2, v9")
    k.I("v_and_b32 v9, 1, v8")
    k.I("v_lshlrev_b32 v9, 4, v9")
    k.I("v_mov_b32 v10, 0x3f80")
    k.I("v_lshlrev_b32 v9, v9, v10")
    k.I("v_lshrrev_b32 v8, 1, v8")
    k.I(f"v_bfe_u32 v10, {v(V_LANE)}, 4, 1")
    k.I(f"v_bfe_u32 v11, {v(V_LANE)}, 2, 1")
    k.I(f"v_lshrrev_b32 v12, 5, {v(V_LANE)}")
    k.I("v_xor_b32 v11, v11, v12")
    k.I(f"v_cmp_eq_u32 {s(S_VALID,2)}, 0, v11")
    k.I("v_lshl_add_u32 v13, v10, 2, v8")
    k.I("v_lshl_add_u32 v13, v11, 3, v13")
    for neg, base in ((0, SEL0), (1, SELN0)):
        for a in range(2):
            for d in range(4):
                k.I(f"v_cmp_eq_u32 vcc, {8*neg + 4*a + d}, v13")
                k.I(f"v_cndmask_b32 v14, 0, v9, vcc")
                k.I(f"v_accvgpr_write_b32 {a_(base + 4*a + d)}, v14")
    k.wait_lg_all()


def p1_epilogue(k):
    for i in range(16):
        k.I(f"v_mul_f32 {v(AK+i)}, {v(V_R)}, {v(AK+i)}")
    for i in range(8):
        k.I(f"v_cvt_pk_bf16_f32 {v(PK+i)}, {v(AK+2*i)}, {v(AK+2*i+1)}")
    k.mfma32(v(PP, 16), a_(PHI_A, 4), v(PK, 4), "0")
    k.mfma32(v(PP, 16), a_(PHI_B, 4), v(PK + 4, 4))
    for i in range(16):
        k.I(f"v_mul_f32 {v(AV+i)}, {v(RV+i)}, {v(AV+i)}")
    for i in range(8):
        k.I(f"v_cvt_pk_bf16_f32 {v(VP+i)}, {v(AV+2*i)}, {v(AV+2*i+1)}")
    k.stamp("k proj")
    softmax16(k, PP, EE, FP, FN, TMP)
    k.stamp("k softmax")
    k.mfma32(v(TP, 16), v(FP, 4), a_(SEL0, 4), "0")
    k.mfma32(v(TN, 16), v(FN, 4), a_(SELN0, 4), "0")
    k.mfma32(v(TP, 16), v(FP + 4, 4), a_(SEL1, 4))
    k.mfma32(v(TN, 16), v(FN + 4, 4), a_(SELN1, 4))
    for src, pk, z in ((TP, FP, TMP), (TN, FN, TMP + 2)):
        for i in range(8):
            k.I(f"v_cvt_pk_bf16_f32 {v(pk+i)}, {v(src+2*i)}, {v(src+2*i+1)}")
        if src == TP:
            k.mfma32(v(KVA, 16), v(FP, 4), v(VP, 4), "0")
            k.mfma32(v(KVA, 16), v(FP + 4, 4), v(VP + 4, 4))
        else:
            k.mfma32(v(KVB, 16), v(FN, 4), v(VP, 4), "0")
            k.mfma32(v(KVB, 16), v(FN + 4, 4), v(VP + 4, 4))
    for src, z in ((TP, TMP), (TN, TMP + 2)):
        k.I(f"v_add_f32 {v(z)}, {v(src)}, {v(src+1)}")
        k.I(f"v_add_f32 {v(z+1)}, {v(src+2)}, {v(src+3)}")
        for i in range(4, 16, 2):
            k.I(f"v_add_f32 {v(z)}, {v(z)}, {v(src+i)}")
            k.I(f"v_add_f32 {v(z+1)}, {v(z+1)}, {v(src+i+1)}")
    k.I(f"v_add_f32 {v(TMP+4)}, {v(TMP)}, {v(TMP+1)}")
    k.I(f"v_add_f32 {v(TMP+5)}, {v(TMP+2)}, {v(TMP+3)}")
    for i in range(16):
        k.I(f"v_cndmask_b32 {v(KVA+i)}, {v(KVB+i)}, {v(KVA+i)}, {s(S_VALID,2)}")
    k.stamp("kv mfma")
    k.I(f"s_mul_i32 {s(S_T0)}, {s(S_W)}, 4608")
    k.I(f"s_add_u32 {s(S_T0)}, {s(S_T0)}, {L_RED}")
    k.I(f"v_add_u32 v8, {s(S_T0)}, {v(V_L16)}")
    for q in range(4):
        k.I(f"ds_write_b128 v8, {v(KVA+4*q,4)} offset:{q*1024}")
    k.I(f"v_lshlrev_b32 v9, 3, {v(V_LANE)}")
    k.I(f"v_add_u32 v9, {s(S_T0)}, v9")
    k.I(f"ds_write_b64 v9, {v(TMP+4,2)} offset:4096")
    k.wait_lg_all()
    k.barrier()
    k.stamp("red barrier")
    k.I(f"s_lshl_b32 {s(S_T0)}, {s(S_W)}, 10")
    k.I(f"s_add_u32 {s(S_T0)}, {s(S_T0)}, {L_RED}")
    k.I(f"v_add_u32 v8, {s(S_T0)}, {v(V_L16)}")
    for ww in range(4):
        k.I(f"ds_read_b128 {v(KVA+4*ww,4)}, v8 offset:{ww*4608}")
    k.I(f"v_lshlrev_b32 v9, 3, {v(V_LANE)}")
    k.I(f"v_add_u32 v9, {L_RED + 4096}, v9")
    for ww in range(4):
        k.I(f"ds_read_b64 {v(KVB+2*ww,2)}, v9 offset:{ww*4608}")
    k.wait_lg_all()
    for h in (0, 2):
        k.I(f"v_pk_add_f32 {v(KVA+h,2)}, {v(KVA+h,2)}, {v(KVA+4+h,2)}")
        k.I(f"v_pk_add_f32 {v(KVA+8+h,2)}, {v(KVA+8+h,2)}, {v(KVA+12+h,2)}")
        k.I(f"v_pk_add_f32 {v(KVA+h,2)}, {v(KVA+h,2)}, {v(KVA+8+h,2)}")
    k.I(f"v_cvt_pk_bf16_f32 {v(KVA)}, {v(KVA)}, {v(KVA+1)}")
    k.I(f"v_cvt_pk_bf16_f32 {v(KVA+1)}, {v(KVA+2)}, {v(KVA+3)}")
    k.I(f"v_pk_add_f32 {v(KVB,2)}, {v(KVB,2)}, {v(KVB+2,2)}")
    k.I(f"v_pk_add_f32 {v(KVB+4,2)}, {v(KVB+4,2)}, {v(KVB+6,2)}")
    k.I(f"v_pk_add_f32 {v(KVB,2)}, {v(KVB,2)}, {v(KVB+4,2)}")
    k.I(f"v_cvt_pk_bf16_f32 {v(KVB)}, {v(KVB)}, {v(KVB+1)}")
    k.I(f"s_lshl_b32 {s(S_T0)}, {s(S_HP)}, 4")
    k.I(f"s_add_u32 {s(S_T0)}, {s(S_T0)}, {s(S_M)}")
    k.I(f"s_lshl_b32 {s(S_T1)}, {s(S_T0)}, 12")
    k.I(f"s_add_u32 {s(S_T1)}, {s(S_T1)}, {WS_KVP}")
    k.I(f"s_lshl_b32 {s(S_T2)}, {s(S_W)}, 9")
    k.I(f"s_add_u32 {s(S_T2)}, {s(S_T2)}, {s(S_T1)}")
    k.I(f"v_lshlrev_b32 v9, 3, {v(V_LANE)}")
    k.I(f"v_add_u32 v9, {s(S_T2)}, v9")
    k.I(f"buffer_store_dwordx2 {v(KVA,2)}, v9, {srd(S_WS)}, 0 offen sc1", tag="kvst")
    w0 = k.newlabel("kvz")
    k.wave_is(0, w0)
    k.cond_begin()
    k.I(f"v_lshlrev_b32 v9, 2, {v(V_LANE)}")
    k.I(f"v_add_u32 v9, {s(S_T1)}, v9")
    k.I(f"buffer_store_dword {v(KVB)}, v9, {srd(S_WS)}, 0 offen offset:2048 sc1")
    k.cond_end()
    k.label(w0)
    k.I(f"s_lshl_b32 {s(S_T2)}, {s(S_T0)}, 7")
    k.I(f"s_add_u32 {s(S_T2)}, {s(S_T2)}, {WS_FKV}")
    k.wait_vm("kvst")
    k.signal(S_T2, "fkv")
    k.stamp("kv published")
    p1_q(k)
    k.stamp("q gemm")
    k.barrier()
    k.stamp("q barrier")
    wo_issue(k)
    k.stamp("wo issued")
    for i in range(16):
        k.I(f"v_mul_f32 {v(AQ+i)}, {v(V_R)}, {v(AQ+i)}")
    for i in range(8):
        k.I(f"v_cvt_pk_bf16_f32 {v(160+i)}, {v(AQ+2*i)}, {v(AQ+2*i+1)}")
    k.mfma32(v(176, 16), a_(PHI_A, 4), v(160, 4), "0")
    k.mfma32(v(176, 16), a_(PHI_B, 4), v(164, 4))
    softmax16(k, 176, EE, QP, QN, TMP)
    k.stamp("q softmax")
    ub_compute(k)
    k.stamp("ub")


S_UB = 101


def ub_issue(k):
    if OPT.get("x_noub"):
        return
    skip = k.newlabel("ubi_skip")
    k.I("s_cmp_ge_u32 s2, 224")
    k.I(f"s_cbranch_scc1 {skip}")
    k.cond_begin()
    k.I(f"s_sub_u32 {s(S_T0)}, s2, 112")
    k.I("s_cmp_lt_u32 s2, 112")
    k.I(f"s_cselect_b32 {s(S_UB)}, s2, {s(S_T0)}")
    k.I(f"s_cselect_b32 {s(S_T2)}, 0, {256*3584}")
    k.I(f"s_cmp_lt_u32 {s(S_UB)}, 56")
    for i in range(4):
        k.I(f"s_cselect_b32 {s(S_SEL+i)}, {s(S_WG+i)}, {s(S_WU+i)}")
    k.I(f"s_sub_u32 {s(S_T0)}, {s(S_UB)}, 56")
    k.I(f"s_cmp_lt_u32 {s(S_UB)}, 56")
    k.I(f"s_cselect_b32 {s(S_T0)}, {s(S_UB)}, {s(S_T0)}")
    k.I(f"s_lshl_b32 {s(S_T0)}, {s(S_T0)}, 6")
    k.I(f"v_lshrrev_b32 v8, 2, {v(V_LANE)}")
    k.I("v_mul_u32_u24 v8, 3584, v8")
    k.I(f"v_and_b32 v9, 3, {v(V_LANE)}")
    k.I("v_lshl_add_u32 v8, v9, 4, v8")
    k.I(f"v_add_u32 v8, {s(S_T0)}, v8")
    k.I(f"s_mul_i32 {s(S_OFF)}, {s(S_W)}, {64*3584}")
    k.I(f"s_add_u32 {s(S_OFF)}, {s(S_OFF)}, {s(S_T2)}")
    k.I(f"s_lshl_b32 {s(S_T0)}, {s(S_W)}, 12")
    k.I(f"s_add_u32 m0, {s(S_T0)}, {L_UB}")
    for n in range(4):
        k.dma(8, S_SEL, s(S_OFF))
        if n < 3:
            k.I("s_add_u32 m0, m0, 1024")
            k.I(f"s_add_u32 {s(S_OFF)}, {s(S_OFF)}, {16*3584}")
    k.cond_end()
    k.label(skip)


def ub_compute(k):
    skip = k.newlabel("ubc_skip")
    k.I("s_cmp_ge_u32 s2, 224")
    k.I(f"s_cbranch_scc1 {skip}")
    k.wave_is(3, skip)
    k.cond_begin()
    k.I(f"v_lshlrev_b32 v8, 5, {v(V_LANE)}")
    k.I(f"v_add_u32 v8, {WS_MODG + 768*8}, v8")
    k.load_granules_checked([112, 116, 120, 124], [8] * 4, "modU", width=4, tagpos=(1, 3), imm=[0, 16, 2048, 2064])
    for i, r in enumerate((120, 122, 124, 126)):
        k.unpack(14, 15, r)
        k.I("v_add_f32 v14, 1.0, v14")
        k.I("v_add_f32 v15, 1.0, v15")
        k.I(f"v_cvt_pk_bf16_f32 {v(128+i)}, v14, v15")
    for i, r in enumerate((112, 114, 116, 118)):
        k.I(f"v_mov_b32 {v(132+i)}, {v(r)}")
        k.I(f"v_mov_b32 {v(136+i)}, 0")
    k.I(f"v_add_u32 v8, {L_CS}, {v(V_L16)}")
    k.I("ds_write_b128 v8, v[128:131]")
    k.I("ds_write_b128 v8, v[132:135] offset:1024")
    k.I("ds_write_b128 v8, v[136:139] offset:2048")
    k.I(f"v_and_b32 v8, 31, {v(V_LANE)}")
    k.I("v_min_u32 v8, 2, v8")
    k.I("v_lshlrev_b32 v8, 10, v8")
    k.I(f"v_lshrrev_b32 v9, 5, {v(V_LANE)}")
    k.I("v_lshl_add_u32 v8, v9, 4, v8")
    k.I("s_cmp_lt_u32 s2, 112")
    k.I(f"s_cselect_b32 {s(S_T0)}, 0, 512")
    k.I(f"s_add_u32 {s(S_T0)}, {s(S_T0)}, {L_CS}")
    k.I(f"v_add_u32 v8, {s(S_T0)}, v8")
    lane_fields(k, s_=9, r_=10, c_=11, nh=12)
    k.I("v_lshl_add_u32 v9, v9, 3, v10")
    k.I("v_lshlrev_b32 v9, 6, v9")
    k.I("v_lshl_add_u32 v9, v12, 5, v9")
    k.I("v_lshl_add_u32 v9, v11, 3, v9")
    k.I(f"v_add_u32 v9, {L_UB}, v9")
    k.I("s_waitcnt lgkmcnt(0)")
    for j in range(16 + 2):
        if j < 16:
            b = 112 + 8 * (j & 3)
            k.I(f"ds_read_b128 {v(b,4)}, v8 offset:{j*32}")
            k.I(f"ds_read_b64_tr_b16 {v(b+4,2)}, v9 offset:{j*1024}")
            k.I(f"ds_read_b64_tr_b16 {v(b+6,2)}, v9 offset:{j*1024 + 256}")
        if j >= 2:
            k.I(f"s_waitcnt lgkmcnt({6 if j < 16 else (3 if j == 16 else 0)})")
            bb = 112 + 8 * ((j - 2) & 3)
            k.mfma32(v(144, 16), v(bb, 4), v(bb + 4, 4), "0" if j == 2 else None)
    k.I("v_cvt_pk_bf16_f32 v160, v144, v145")
    k.unpack(162, 163, 160)
    k.I("v_sub_f32 v164, v144, v162")
    k.I("v_sub_f32 v165, v145, v163")
    k.I("v_cvt_pk_bf16_f32 v161, v164, v165")
    k.I(f"s_mov_b32 {s(S_T0)}, 0x05040100")
    k.I(f"s_mov_b32 {s(S_T1)}, 0x07060302")
    k.I(f"v_perm_b32 v168, v161, v160, {s(S_T0)}")
    k.I("v_mov_b32 v169, v160")
    k.I(f"v_perm_b32 v170, v160, v161, {s(S_T1)}")
    k.I(f"v_mov_b32 v171, {v(V_TAG)}")
    k.I(f"s_lshl_b32 {s(S_T0)}, s2, 9")
    k.I(f"s_add_u32 {s(S_T0)}, {s(S_T0)}, {WS_WEXT}")
    k.I(f"v_add_u32 v8, {s(S_T0)}, {v(V_L16)}")
    k.I("s_mov_b32 exec_hi, 0")
    k.I(f"buffer_store_dwordx4 v[168:171], v8, {srd(S_WS)}, 0 offen sc1")
    k.I("s_mov_b64 exec, -1")
    k.cond_end()
    k.label(skip)


def touch_setup(k):
    k.I(f"v_and_b32 v12, 31, {v(V_LANE)}")
    k.I("v_lshlrev_b32 v12, 7, v12")
    k.I(f"s_lshl_b32 {s(S_T0)}, {s(S_I)}, 2")
    k.I(f"s_add_u32 {s(S_T0)}, {s(S_T0)}, {s(S_W)}")
    k.I(f"s_lshl_b32 {s(S_T1)}, {s(S_T0)}, 12")
    k.I(f"v_add_u32 v12, {s(S_T1)}, v12")
    k.I(f"v_min_u32 v13, 55, {v(V_LANE)}")
    k.I("v_mul_u32_u24 v14, 4682, v13")
    k.I("v_lshrrev_b32 v14, 16, v14")
    k.I("v_mul_u32_u24 v11, 14, v14")
    k.I("v_sub_u32 v13, v13, v11")
    k.I("v_lshlrev_b32 v13, 7, v13")
    k.I("v_mul_u32_u24 v14, 3584, v14")
    k.I("v_add_u32 v13, v13, v14")
    k.I(f"s_mul_i32 {s(S_T0)}, {s(S_T0)}, {4*3584}")
    k.I(f"s_and_b32 {s(S_T1)}, {s(S_XCD)}, 1")
    k.I(f"s_mul_i32 {s(S_T1)}, {s(S_T1)}, 1792")
    k.I(f"s_add_u32 {s(S_T0)}, {s(S_T0)}, {s(S_T1)}")
    k.I(f"v_add_u32 v13, {s(S_T0)}, v13")


def wo_issue(k):
    k.I(f"s_and_b32 {s(S_T0)}, {s(S_J2)}, 7")
    k.I(f"s_lshl_b32 {s(S_T0)}, {s(S_T0)}, 7")
    k.I(f"v_lshrrev_b32 v8, 3, {v(V_LANE)}")
    k.I("v_lshlrev_b32 v8, 10, v8")
    k.I(f"v_and_b32 v9, 7, {v(V_LANE)}")
    k.I(f"v_bfe_u32 v10, {v(V_LANE)}, 4, 1")
    k.I("v_lshlrev_b32 v10, 2, v10")
    k.I("v_xor_b32 v9, v9, v10")
    k.I("v_lshl_add_u32 v8, v9, 4, v8")
    k.I(f"v_add_u32 v8, {s(S_T0)}, v8")
    k.I(f"s_lshl_b32 {s(S_OFF)}, {s(S_W)}, 17")
    k.I(f"s_lshl_b32 {s(S_T0)}, {s(S_W)}, 14")
    k.I(f"s_add_u32 m0, {s(S_T0)}, {L_WO}")
    k._tag = "wo"
    for n in range(16):
        k.dma(8, S_WO, s(S_OFF))
        if n < 15:
            k.I("s_add_u32 m0, m0, 1024")
            k.I(f"s_add_u32 {s(S_OFF)}, {s(S_OFF)}, 8192")
    k._tag = None


def swz128_base(k, dst, cbk_sreg=None, cbk_imm=None, s_mul=16):
    lane_fields(k, s_=8, r_=9, c_=10, nh=11)
    lbase_bytes(k, 12, 11, 10, 13, 14)
    k.I(f"v_mul_u32_u24 v8, {s_mul}, v8")
    k.I("v_add_u32 v8, v8, v9")
    k.I("v_lshlrev_b32 v8, 7, v8")
    k.I("v_lshrrev_b32 v9, 1, v9")
    if cbk_sreg is not None:
        k.I(f"v_xor_b32 v9, {s(cbk_sreg)}, v9")
    elif cbk_imm:
        k.I(f"v_xor_b32 v9, {cbk_imm}, v9")
    k.I("v_lshl_add_u32 v8, v9, 6, v8")
    k.I(f"v_add_u32 {v(dst)}, v8, v12")


def kv_combine_and_o(k):
    k.I(f"s_lshl_b32 {s(S_T0)}, {s(S_HP)}, 11")
    k.I(f"s_add_u32 {s(S_T0)}, {s(S_T0)}, {WS_FKV}")
    k.wait_vm("wo")
    k.poll_flags(S_T0, 16, "pkv")
    k.stamp("kv flags seen")
    k.I(f"s_lshl_b32 {s(S_T1)}, {s(S_HP)}, 16")
    k.I(f"s_add_u32 {s(S_T1)}, {s(S_T1)}, {WS_KVP}")
    k.I(f"s_lshl_b32 {s(S_T2)}, {s(S_W)}, 9")
    k.I(f"s_add_u32 {s(S_T2)}, {s(S_T2)}, {s(S_T1)}")
    k.I(f"v_lshlrev_b32 v8, 3, {v(V_LANE)}")
    k.I(f"s_mov_b32 {s(S_OFF)}, {s(S_T2)}")
    for mm in range(16):
        k.I(f"buffer_load_dwordx2 {v(112+2*mm,2)}, v8, {srd(S_WS)}, {s(S_OFF)} offen sc1", tag="kvp")
        k.I(f"s_add_u32 {s(S_OFF)}, {s(S_OFF)}, 4096")
    k.I(f"v_lshlrev_b32 v9, 2, {v(V_LANE)}")
    k.I(f"s_add_u32 {s(S_OFF)}, {s(S_T1)}, 2048")
    for mm in range(16):
        k.I(f"buffer_load_dword {v(144+mm)}, v9, {srd(S_WS)}, {s(S_OFF)} offen sc1", tag="kvz")
        k.I(f"s_add_u32 {s(S_OFF)}, {s(S_OFF)}, 4096")
    k.stamp("kvp issued")
    quad_ids(k)
    swz128_base(k, 15, cbk_sreg=S_CBK)
    for kap in range(32):
        hp, a = kap >> 1, kap & 1
        for rd in range(2):
            k.I(f"ds_read_b64_tr_b16 {a_(4*kap + 2*rd, 2)}, v15 offset:{L_WO + (32*hp + 8*a + 4*rd)*128}", tag="wof")
        if kap % 4 == 3:
            k.I("s_waitcnt lgkmcnt(6)")
    k.stamp("wof read")
    k.I("v_mov_b32 v10, 0x3f80")
    k.I("v_mov_b32 v11, 0x3f800000")
    for r in range(160, 166):
        k.I(f"v_mov_b32 {v(r)}, 0")
    k.wait_vm("kvp")
    k.stamp("kvp landed")
    for mm in range(16):
        for d in range(2):
            k.I(f"v_dot2c_f32_bf16 {v(160+2*d)}, {v(112+2*mm+d)}, v10")
            k.I(f"v_dot2c_f32_bf16 {v(161+2*d)}, {v(112+2*mm+d)}, v11")
    k.wait_vm("kvz")
    for mm in range(16):
        k.I(f"v_dot2c_f32_bf16 v164, {v(144+mm)}, v10")
        k.I(f"v_dot2c_f32_bf16 v165, {v(144+mm)}, v11")
    k.I("v_cvt_pk_bf16_f32 v160, v160, v161")
    k.I("v_cvt_pk_bf16_f32 v161, v162, v163")
    k.I(f"v_lshlrev_b32 v8, 5, {v(V_LANE)}")
    k.I(f"s_lshl_b32 {s(S_T0)}, {s(S_W)}, 3")
    k.I(f"s_add_u32 {s(S_T0)}, {s(S_T0)}, {L_KVF}")
    k.I(f"v_add_u32 v8, {s(S_T0)}, v8")
    k.I("ds_write_b64 v8, v[160:161]")
    k.half_total(164, 166)
    k.half_total(165, 166)
    k.I("v_cvt_pk_bf16_f32 v164, v164, v165")
    k.I(f"v_bfe_u32 v8, {v(V_LANE)}, 2, 1")
    k.I(f"v_bfe_u32 v9, {v(V_LANE)}, 3, 2")
    k.I(f"v_and_b32 v10, 3, {v(V_LANE)}")
    k.I("v_lshl_add_u32 v9, v9, 2, v10")
    k.I("v_lshlrev_b32 v9, 1, v9")
    k.I("v_lshl_add_u32 v10, v8, 5, v9")
    k.I(f"v_add_u32 v10, {L_Z}, v10")
    k.I("v_xor_b32 v8, 1, v8")
    k.I("v_lshl_add_u32 v11, v8, 5, v9")
    k.I(f"v_add_u32 v11, {L_Z + 64}, v11")
    w0 = k.newlabel("zw")
    k.wave_is(0, w0)
    k.cond_begin()
    k.I("ds_write_b16 v10, v164")
    k.I("ds_write_b16_d16_hi v11, v164")
    k.cond_end()
    k.label(w0)
    k.wait_lg_all()
    k.barrier()
    k.stamp("kvf barrier")
    k.I(f"v_lshlrev_b32 v8, 5, {v(V_LANE)}")
    k.I(f"v_add_u32 v8, {L_KVF}, v8")
    k.I(f"v_xor_b32 v9, 32, {v(V_LANE)}")
    k.I("v_lshlrev_b32 v9, 5, v9")
    k.I(f"v_add_u32 v9, {L_KVF}, v9")
    k.I(f"v_mov_b32 v10, {L_ZERO}")
    k.I(f"v_cndmask_b32 v8, v10, v8, {s(S_VALID,2)}")
    k.I(f"v_cndmask_b32 v9, v10, v9, {s(S_VALID,2)}")
    k.I(f"v_lshrrev_b32 v10, 5, {v(V_LANE)}")
    k.I("v_lshlrev_b32 v10, 5, v10")
    k.I(f"v_add_u32 v10, {L_Z}, v10")
    PF, NF, ZP, ZN = 112, 120, 128, 136
    k.I(f"ds_read_b128 {v(PF,4)}, v8")
    k.I(f"ds_read_b128 {v(PF+4,4)}, v8 offset:16")
    k.I(f"ds_read_b128 {v(NF,4)}, v9")
    k.I(f"ds_read_b128 {v(NF+4,4)}, v9 offset:16")
    k.I(f"ds_read_b128 {v(ZP,4)}, v10")
    k.I(f"ds_read_b128 {v(ZP+4,4)}, v10 offset:16")
    k.I(f"ds_read_b128 {v(ZN,4)}, v10 offset:64")
    k.I(f"ds_read_b128 {v(ZN+4,4)}, v10 offset:80")
    k.wait_lg_all()
    NUM = 144
    k.mfma32(v(NUM, 16), v(PF, 4), v(QP, 4), "0")
    k.mfma32(v(NUM, 16), v(PF + 4, 4), v(QP + 4, 4))
    k.mfma32(v(NUM, 16), v(NF, 4), v(QN, 4))
    k.mfma32(v(NUM, 16), v(NF + 4, 4), v(QN + 4, 4))
    k.I("v_mov_b32 v10, 0")
    k.I("v_mov_b32 v11, 0")
    for i in range(8):
        k.I(f"v_dot2c_f32_bf16 v10, {v(QP+i)}, {v(ZP+i)}")
        k.I(f"v_dot2c_f32_bf16 v11, {v(QN+i)}, {v(ZN+i)}")
    k.I("v_add_f32 v10, v10, v11")
    k.I("v_add_f32 v10, 0x358637bd, v10")
    k.I("v_rcp_f32 v10, v10")
    for i in range(0, 16, 2):
        k.I(f"v_pk_mul_f32 {v(NUM+i,2)}, {v(NUM+i,2)}, v[10:11] op_sel_hi:[1,0]")
    for i in range(8):
        k.I(f"v_cvt_pk_bf16_f32 {v(160+i)}, {v(NUM+2*i)}, {v(NUM+2*i+1)}")
    k.stamp("o computed")
    k.I(f"s_lshl_b32 {s(S_T0)}, {s(S_M)}, 2")
    k.I(f"s_add_u32 {s(S_T0)}, {s(S_T0)}, {s(S_W)}")
    k.I(f"s_lshl_b32 {s(S_T0)}, {s(S_T0)}, 15")
    k.I(f"s_lshl_b32 {s(S_T1)}, {s(S_HP)}, 11")
    k.I(f"s_add_u32 {s(S_T0)}, {s(S_T0)}, {s(S_T1)}")
    k.I(f"s_add_u32 {s(S_T0)}, {s(S_T0)}, {WS_O}")
    k.I(f"v_add_u32 v8, {s(S_T0)}, {v(V_L16)}")
    k.I(f"buffer_store_dwordx4 v[160:163], v8, {srd(S_WS)}, 0 offen sc1")
    k.I(f"buffer_store_dwordx4 v[164:167], v8, {srd(S_WS)}, 0 offen offset:1024 sc1")
    k.wait_vm_all()
    k.I(f"s_lshl_b32 {s(S_T0)}, {s(S_M)}, 4")
    k.I(f"s_add_u32 {s(S_T0)}, {s(S_T0)}, {s(S_J)}")
    k.I(f"s_lshl_b32 {s(S_T0)}, {s(S_T0)}, 7")
    k.I(f"s_add_u32 {s(S_T0)}, {s(S_T0)}, {WS_FO}")
    k.signal(S_T0, "fo")
    k.stamp("o published")


S_TBL, S_CBK, S_TB, S_B32 = 96, 97, 98, 99


def quad_ids(k):
    k.I(f"s_and_b32 {s(S_TBL)}, {s(S_W)}, 1")
    k.I(f"s_lshr_b32 {s(S_CBK)}, {s(S_W)}, 1")
    k.I(f"s_lshr_b32 {s(S_T0)}, {s(S_J2)}, 3")
    k.I(f"s_lshl_b32 {s(S_T0)}, {s(S_T0)}, 1")
    k.I(f"s_lshl_b32 {s(S_TB)}, {s(S_M2)}, 2")
    k.I(f"s_add_u32 {s(S_TB)}, {s(S_TB)}, {s(S_T0)}")
    k.I(f"s_add_u32 {s(S_TB)}, {s(S_TB)}, {s(S_TBL)}")
    k.I(f"s_and_b32 {s(S_B32)}, {s(S_J2)}, 7")
    k.I(f"s_lshl_b32 {s(S_B32)}, {s(S_B32)}, 1")
    k.I(f"s_add_u32 {s(S_B32)}, {s(S_B32)}, {s(S_CBK)}")


def mod16(k, dst_regs, gran0, stem):
    k.I(f"v_lshrrev_b32 v8, 5, {v(V_LANE)}")
    k.I("v_lshlrev_b32 v8, 6, v8")
    k.I(f"s_lshl_b32 {s(S_T0)}, {s(S_B32)}, 7")
    k.I(f"s_add_u32 {s(S_T0)}, {s(S_T0)}, {WS_MODG + gran0*8}")
    k.I(f"v_add_u32 v8, {s(S_T0)}, v8")
    k.load_granules_checked([dst_regs + 4 * i for i in range(4)], [8] * 4, stem, width=4, tagpos=(1, 3), imm=[0, 16, 32, 48])


VD = 4
S_M0, S_SO = 90, 91


def ring_setup(k):
    k.I(f"s_and_b32 {s(S_T0)}, {s(S_W)}, 1")
    k.I(f"s_cmp_eq_u32 {s(S_T0)}, 0")
    for i in range(4):
        k.I(f"s_cselect_b32 {s(S_SEL+i)}, {s(S_WG+i)}, {s(S_WU+i)}")
    for n in range(7):
        k.I(f"v_add_u32 v14, {64*n}, {v(V_LANE)}")
        k.I("v_mul_u32_u24 v15, 4682, v14")
        k.I("v_lshrrev_b32 v15, 16, v15")
        k.I(f"v_mul_u32_u24 {v(VD+n)}, 14, v15")
        k.I(f"v_sub_u32 v14, v14, {v(VD+n)}")
        k.I("v_mul_u32_u24 v15, 3584, v15")
        k.I("v_lshl_add_u32 v15, v14, 4, v15")
        k.I(f"s_mul_i32 {s(S_T0)}, {s(S_J)}, 224")
        k.I(f"v_add_u32 {v(VD+n)}, {s(S_T0)}, v15")
    for z in range(448):
        assert (z * 4682) >> 16 == z // 14
    k.I(f"s_lshr_b32 {s(S_T0)}, {s(S_W)}, 1")
    k.I(f"s_mul_i32 {s(S_M0)}, {s(S_T0)}, {SLAB}")
    k.I(f"s_and_b32 {s(S_T1)}, {s(S_W)}, 1")
    k.I(f"s_mul_i32 {s(S_T1)}, {s(S_T1)}, {UOFF}")
    k.I(f"s_add_u32 {s(S_M0)}, {s(S_M0)}, {s(S_T1)}")
    k.I(f"s_mul_i32 {s(S_SO)}, {s(S_T0)}, {32*3584}")


def ring_pair(k, P, as_list=False):
    out = [(f"s_add_u32 m0, {s(S_M0)}, {(P % 5) * 2 * SLAB}", None),
           (f"s_add_u32 {s(S_OFF)}, {s(S_SO)}, {P * 2 * 32 * 3584}", None)]
    for n in range(7):
        out.append((f"buffer_load_dwordx4 {v(VD+n)}, {srd(S_SEL)}, {s(S_OFF)} offen lds", f"W{P}"))
        if n < 6:
            out.append(("s_add_u32 m0, m0, 1024", None))
    if as_list:
        return out
    for t, tg in out:
        k.I(t, tag=tg)


def p2(k):
    XR, GA, CBR = 64, 72, 88
    ring_setup(k)
    w0 = k.newlabel("ring_a")
    k.I(f"s_cmp_eq_u32 {s(S_W)}, 0")
    k.I(f"s_cbranch_scc1 {w0}")
    k.cond_begin()
    for P in range(3):
        ring_pair(k, P)
    k.cond_end()
    k.label(w0)
    k.stamp("ring a")
    k.I(f"v_and_b32 v12, 31, {v(V_LANE)}")
    k.I("v_lshlrev_b32 v12, 10, v12")
    k.I(f"v_lshrrev_b32 v13, 5, {v(V_LANE)}")
    k.I("v_lshl_add_u32 v12, v13, 5, v12")
    k.I(f"s_lshl_b32 {s(S_T0)}, {s(S_TB)}, 15")
    k.I(f"s_lshl_b32 {s(S_T1)}, {s(S_B32)}, 6")
    k.I(f"s_add_u32 {s(S_T0)}, {s(S_T0)}, {s(S_T1)}")
    k.I(f"v_add_u32 v12, {s(S_T0)}, v12")
    k.I(f"s_lshl_b32 {s(S_T0)}, {s(S_M2)}, 11")
    k.I(f"s_add_u32 {s(S_T0)}, {s(S_T0)}, {WS_FO}")
    k.poll_flags(S_T0, 16, "po")
    k.stamp("o flags seen")
    k.I(f"s_sub_u32 {s(S_T0)}, {s(S_TB)}, {s(S_TBL)}")
    k.I(f"s_lshl_b32 {s(S_T0)}, {s(S_T0)}, 15")
    k.I(f"s_lshl_b32 {s(S_T1)}, {s(S_W)}, 14")
    k.I(f"s_add_u32 {s(S_OFF)}, {s(S_T0)}, {s(S_T1)}")
    k.I(f"s_add_u32 {s(S_OFF)}, {s(S_OFF)}, {WS_O}")
    k.I(f"s_add_u32 m0, {s(S_T1)}, {L_OI}")
    k._tag = "of"
    for n in range(16):
        k.dma(V_L16, S_WS, s(S_OFF), sc1=True)
        if n < 15:
            k.I("s_add_u32 m0, m0, 1024")
            k.I(f"s_add_u32 {s(S_OFF)}, {s(S_OFF)}, 1024")
    k._tag = None
    k.I(f"buffer_load_dwordx4 {v(XR,4)}, v12, {srd(S_X)}, 0 offen", tag="xr")
    k.I(f"buffer_load_dwordx4 {v(XR+4,4)}, v12, {srd(S_X)}, 0 offen offset:16", tag="xr")
    k.I(f"v_lshrrev_b32 v13, 5, {v(V_LANE)}")
    k.I("v_lshlrev_b32 v13, 6, v13")
    k.I(f"s_lshl_b32 {s(S_T0)}, {s(S_B32)}, 7")
    k.I(f"s_add_u32 {s(S_T0)}, {s(S_T0)}, {WS_MODG}")
    k.I(f"v_add_u32 v13, {s(S_T0)}, v13")
    k.I(f"v_add_u32 v12, {512*8}, v13")
    k.I(f"v_add_u32 v13, {1024*8}, v13")
    gr = ([GA + 4 * i for i in range(4)] + [CBR + 4 * i for i in range(4)], [12] * 4 + [13] * 4)
    gimm = [0, 16, 32, 48] * 2
    k.granule_loads(gr[0], gr[1], 4, gimm, "gacb")
    w0 = k.newlabel("ring_b")
    k.wave_is(0, w0)
    k.cond_begin()
    for P in range(3):
        ring_pair(k, P)
    k.cond_end()
    k.label(w0)
    k.I(f"s_lshl_b32 {s(S_T0)}, {s(S_TBL)}, 15")
    k.I(f"s_add_u32 {s(S_T0)}, {s(S_T0)}, {L_OI}")
    k.I(f"v_add_u32 v14, {s(S_T0)}, {v(V_L16)}")
    w1 = k.newlabel("ow_a")
    w2 = k.newlabel("ow_b")
    k.wave_is(0, w1)
    k.I("s_waitcnt vmcnt(31)")
    k.I(f"s_branch {w2}")
    k.label(w1)
    k.I("s_waitcnt vmcnt(10)")
    k.label(w2)
    k.vmq = [t for t in k.vmq if t != "of"]
    k.barrier()
    k.stamp("o landed")
    ACC = 112
    nb = 6
    for kap in range(32 + nb - 2):
        if kap < 32:
            k.I(f"ds_read_b128 {v(16 + 4*(kap % nb), 4)}, v14 offset:{kap*1024}", tag=f"o{kap}")
        q = kap - (nb - 2)
        if q >= 0:
            k.wait_lg(f"o{q}")
            k.mfma32(v(ACC, 16), a_(4 * q, 4), v(16 + 4 * (q % nb), 4), "0" if q == 0 else None)
    k.stamp("wo gemm")
    k.I("s_waitcnt vmcnt(0)")
    k.vmq = [t for t in k.vmq if t == "gacb"]
    k.granule_verify(gr[0], gr[1], "gacb", 4, (1, 3), gimm, "gacb")
    k.vmq = []
    k.barrier()
    k.stamp("gacb ok")
    T = 128
    X1 = 136
    YP = 144
    k.I("v_mov_b32 v40, 0")
    k.I("v_mov_b32 v41, 0")
    k.I("v_mov_b32 v42, 0x3f803f80")
    for i in range(8):
        g = GA + 4 * (i >> 1) + 2 * (i & 1)
        c = CBR + 4 * (i >> 1) + 2 * (i & 1)
        k.unpack(T, T + 1, g)
        k.unpack(T + 2, T + 3, XR + i)
        k.unpack(T + 4, T + 5, c)
        k.I(f"v_pk_fma_f32 {v(T+2,2)}, {v(T,2)}, {v(ACC+2*i,2)}, {v(T+2,2)}")
        k.I(f"v_pk_add_f32 {v(T+4,2)}, {v(T+4,2)}, 1.0 op_sel_hi:[1,0]")
        k.I(f"v_cvt_pk_bf16_f32 {v(X1+i)}, {v(T+2)}, {v(T+3)}")
        k.I(f"v_cvt_pk_bf16_f32 {v(T+4)}, {v(T+4)}, {v(T+5)}")
        k.unpack(T + 2, T + 3, X1 + i)
        k.unpack(T + 6, T + 7, T + 4)
        k.I(f"v_dot2c_f32_bf16 v40, {v(X1+i)}, v42")
        k.I(f"v_pk_mul_f32 {v(T+2,2)}, {v(T+2,2)}, {v(T+6,2)}")
        k.I(f"v_dot2c_f32_bf16 v41, {v(X1+i)}, {v(X1+i)}")
        k.I(f"v_cvt_pk_bf16_f32 {v(YP+i)}, {v(T+2)}, {v(T+3)}")
    k.I(f"s_lshl_b32 {s(S_T0)}, {s(S_TB)}, 15")
    k.I(f"s_lshl_b32 {s(S_T1)}, {s(S_B32)}, 11")
    k.I(f"s_add_u32 {s(S_T0)}, {s(S_T0)}, {s(S_T1)}")
    k.I(f"s_add_u32 {s(S_T0)}, {s(S_T0)}, {WS_Y}")
    k.I(f"v_add_u32 v12, {s(S_T0)}, {v(V_L16)}")
    k.I(f"buffer_store_dwordx4 {v(YP,4)}, v12, {srd(S_WS)}, 0 offen sc1", tag="yst")
    k.I(f"buffer_store_dwordx4 {v(YP+4,4)}, v12, {srd(S_WS)}, 0 offen offset:1024 sc1", tag="yst")
    k.half_total(40, 43)
    k.half_total(41, 43)
    k.I(f"s_lshl_b32 {s(S_T0)}, {s(S_TB)}, 4")
    k.I(f"s_add_u32 {s(S_T0)}, {s(S_T0)}, {s(S_B32)}")
    k.I(f"s_lshl_b32 {s(S_T0)}, {s(S_T0)}, 8")
    k.I(f"s_add_u32 {s(S_T0)}, {s(S_T0)}, {WS_STATS}")
    k.I(f"v_lshlrev_b32 v12, 3, {v(V_LANE)}")
    k.I(f"v_add_u32 v12, {s(S_T0)}, v12")
    k.I("s_mov_b32 exec_hi, 0")
    k.I(f"buffer_store_dwordx2 v[40:41], v12, {srd(S_WS)}, 0 offen sc1", tag="yst")
    k.I("s_mov_b64 exec, -1")
    k.stamp("y stored")
    for P in (3, 4):
        ring_pair(k, P)
    k.stamp("ring b")
    for i in range(8):
        k.I(f"v_accvgpr_write_b32 {a_(248+i)}, {v(X1+i)}")
    k.wait_vm("yst")
    k.I(f"s_lshl_b32 {s(S_T0)}, {s(S_M2)}, 4")
    k.I(f"s_add_u32 {s(S_T0)}, {s(S_T0)}, {s(S_J2)}")
    k.I(f"s_lshl_b32 {s(S_T0)}, {s(S_T0)}, 7")
    k.I(f"s_add_u32 {s(S_T0)}, {s(S_T0)}, {WS_FY}")
    k.signal(S_T0, "fy")
    noe = k.newlabel("noepoch")
    k.I("s_cmp_eq_u32 s2, 0")
    k.I(f"s_cbranch_scc0 {noe}")
    k.wave_is(0, noe)
    k.cond_begin()
    k.I("v_mov_b32 v12, 0")
    k.I("s_mov_b64 exec, 1")
    k.I(f"buffer_store_dword {v(V_TAG)}, v12, {srd(S_WS)}, 0 offen sc1")
    k.I("s_mov_b64 exec, -1")
    k.cond_end()
    k.label(noe)
    k.stamp("y published")


def p3(k):
    Y0, ACC = 16, 144
    VTR = (11, 12, 13)
    lane_fields(k, s_=14, r_=15)
    k.I("v_lshl_add_u32 v14, v14, 4, v15")
    k.I("v_mul_u32_u24 v14, 224, v14")
    k.I(f"v_bfe_u32 v15, {v(V_LANE)}, 4, 1")
    k.I(f"v_mul_u32_u24 v15, {UOFF}, v15")
    k.I("v_add_u32 v14, v14, v15")
    k.I(f"v_and_b32 v15, 1, {v(V_LANE)}")
    k.I("v_lshl_add_u32 v14, v15, 4, v14")
    k.I(f"v_bfe_u32 v15, {v(V_LANE)}, 1, 1")
    k.I(f"v_lshl_add_u32 {v(VTR[0])}, v15, 3, v14")
    k.I(f"v_add_u32 {v(VTR[1])}, {4*SLAB}, {v(VTR[0])}")
    k.I(f"v_add_u32 {v(VTR[2])}, {8*SLAB}, {v(VTR[0])}")
    k.I(f"s_lshl_b32 {s(S_T0)}, {s(S_M)}, 11")
    k.I(f"s_add_u32 {s(S_T0)}, {s(S_T0)}, {WS_FY}")
    k.wait_vm_all()
    k.poll_flags(S_T0, 16, "py")
    k.stamp("y flags seen")
    S_TB3 = S_T2
    k.I(f"s_lshl_b32 {s(S_TB3)}, {s(S_M)}, 2")
    k.I(f"s_add_u32 {s(S_TB3)}, {s(S_TB3)}, {s(S_W)}")
    k.I(f"s_lshl_b32 {s(S_T3)}, {s(S_TB3)}, 15")
    k.I(f"s_add_u32 {s(S_T3)}, {s(S_T3)}, {WS_Y}")

    def ld_y(kap):
        out = []
        if kap and kap & 3 == 0:
            out.append((f"s_add_u32 {s(S_T3)}, {s(S_T3)}, 4096", None))
        out.append((f"buffer_load_dwordx4 {v(Y0+4*kap,4)}, {v(V_L16)}, {srd(S_WS)}, {s(S_T3)} offen offset:{(kap&3)*1024} sc1", f"y{kap}"))
        return out

    NY0 = 12
    for kap in range(NY0):
        for t, tg in ld_y(kap):
            k.I(t, tag=tg)

    def rd_w(kap, beta):
        B, a = kap >> 1, kap & 1
        P = B >> 1
        slot = (P % 5) * 2 + (B & 1)
        base = VTR[slot >> 2]
        return [(f"ds_read_b64_tr_b16 {a_(28*(kap&1) + 4*beta + 2*rd, 2)}, {v(base)} offset:{(slot & 3) * SLAB + (8*a + 4*rd)*224 + 32*beta}", f"w{kap}_{beta}") for rd in range(2)]

    for beta in range(7):
        for t, tg in rd_w(0, beta):
            k.I(t, tag=tg)
    side = []
    ST, AE = 16, 32
    for kap in range(32):
        P = kap >> 2
        if kap & 3 == 3 and P < 7:
            k.wait_vm(f"W{P+1}")
            k.barrier()
            if 1 <= P <= 3:
                side += ring_pair(k, P + 4, as_list=True)
        if kap + NY0 < 32:
            side = ld_y(kap + NY0) + side
        if OPT["touch"] and kap == 26:
            side.append((f"s_lshl_b32 {s(S_T0)}, {s(S_I)}, 2", None))
            side.append((f"s_add_u32 {s(S_T0)}, {s(S_T0)}, {s(S_W)}", None))
            side.append((f"s_mul_i32 {s(S_T0)}, {s(S_T0)}, {112*128}", None))
            side.append((f"v_min_u32 v4, 55, {v(V_LANE)}", None))
            side.append(("v_lshlrev_b32 v4, 7, v4", None))
            side.append((f"buffer_load_dword v0, v4, {srd(S_WD)}, {s(S_T0)} offen", "t"))
            side.append((f"s_add_u32 {s(S_T0)}, {s(S_T0)}, {56*128}", None))
            side.append((f"buffer_load_dword v0, v4, {srd(S_WD)}, {s(S_T0)} offen", "t"))
        if kap == 18:
            side.append((f"s_lshl_b32 {s(S_T0)}, {s(S_TB3)}, 12", None))
            side.append((f"s_add_u32 {s(S_T0)}, {s(S_T0)}, {WS_STATS}", None))
            side.append((f"v_and_b32 v14, 31, {v(V_LANE)}", None))
            side.append(("v_lshlrev_b32 v14, 3, v14", None))
            side.append((f"v_lshrrev_b32 v15, 5, {v(V_LANE)}", None))
            side.append(("v_lshl_add_u32 v14, v15, 11, v14", None))
            side.append((f"v_add_u32 v14, {s(S_T0)}, v14", None))
            for i in range(8):
                side.append((f"buffer_load_dwordx2 {v(ST+2*i,2)}, v14, {srd(S_WS)}, 0 offen offset:{i*256} sc1", "st"))
        if kap == 22:
            for t in (f"v_bfe_u32 v14, {v(V_LANE)}, 2, 1", "v_lshlrev_b32 v14, 3, v14", f"v_bfe_u32 v15, {v(V_LANE)}, 3, 1",
                      "v_lshl_add_u32 v14, v15, 2, v14", f"v_and_b32 v15, 3, {v(V_LANE)}", "v_add_u32 v14, v14, v15",
                      f"v_bfe_u32 v15, {v(V_LANE)}, 4, 1", "v_mul_u32_u24 v15, 1792, v15", "v_add_u32 v14, v14, v15",
                      f"s_mul_i32 {s(S_T0)}, {s(S_J)}, 112", f"v_add_u32 v14, {s(S_T0)}, v14", "v_lshlrev_b32 v14, 4, v14",
                      f"v_add_u32 v14, {WS_WEXT}, v14", f"v_add_u32 v15, {3584*16}, v14"):
                side.append((t, None))
            for h in range(2):
                for b in range(7):
                    side.append((f"buffer_load_dwordx4 {v(AE+28*h+4*b,4)}, {v(14+h)}, {srd(S_WS)}, 0 offen offset:{256*b} sc1", "wext"))
        k.wait_vm(f"y{kap}")
        if kap in (1, 8, 16, 24):
            k.stamp(f"p3 k{kap}")
        for beta in range(7):
            k.wait_lg(f"w{kap}_{beta}")
            k.mfma32(v(ACC + 16 * beta, 16), a_(28 * (kap & 1) + 4 * beta, 4), v(Y0 + 4 * kap, 4), "0" if kap == 0 else None)
            if kap + 1 < 32:
                for t, tg in rd_w(kap + 1, beta):
                    k.I(t, tag=tg)
            nvm = 0
            while side and nvm < 1:
                t, tg = side.pop(0)
                k.I(t, tag=tg)
                if t.startswith("buffer_"):
                    nvm += 1
    for t, tg in side:
        k.I(t, tag=tg)
    k.stamp("gate/up gemm")
    k.barrier()
    k.wait_vm("st")
    k.stamp("st landed")
    for i in range(1, 8):
        k.I(f"v_pk_add_f32 v[16:17], v[16:17], {v(ST+2*i,2)}")
    k.half_total(16, 18)
    k.half_total(17, 18)
    k.I("v_mul_f32 v16, 0x3b000000, v16")
    k.I("v_mul_f32 v17, 0x3b000000, v17")
    k.I("v_fma_f32 v17, -v16, v16, v17")
    k.I("v_max_f32 v17, 0, v17")
    k.I("v_add_f32 v17, 0x3727c5ac, v17")
    k.I("v_rsq_f32 v18, v17")
    k.I("v_sub_f32 v16, 0, v16")
    k.I("v_mul_f32 v19, v17, v18")
    k.I("v_mul_f32 v20, v18, v18")
    k.I("v_cvt_pk_bf16_f32 v22, v16, v19")
    k.unpack(24, 25, 22)
    k.I("v_sub_f32 v24, v16, v24")
    k.I("v_sub_f32 v25, v19, v25")
    k.I("v_cvt_pk_bf16_f32 v23, v24, v25")
    BE = 28
    k.I(f"s_mov_b32 {s(S_T0)}, 0x01000100")
    k.I(f"s_mov_b32 {s(S_T1)}, 0x07060100")
    k.I(f"s_mov_b32 {s(S_T3)}, 0x07060302")
    k.I(f"v_perm_b32 {v(BE)}, v22, v22, {s(S_T0)}")
    k.I(f"v_perm_b32 {v(BE+1)}, v22, v23, {s(S_T1)}")
    k.I(f"v_perm_b32 {v(BE+2)}, v23, v22, {s(S_T3)}")
    k.I(f"v_mov_b32 {v(BE+3)}, 0")
    k.I(f"v_cmp_gt_u32 vcc, 32, {v(V_LANE)}")
    for i in range(3):
        k.I(f"v_cndmask_b32 {v(BE+i)}, 0, {v(BE+i)}, vcc")
    regs = [AE + 28 * h + 4 * b for h in range(2) for b in range(7)]
    k.granule_verify(regs, [14] * 7 + [15] * 7, "wext", 4, (3,), [256 * b for b in range(7)] * 2, "wext")
    k.stamp("wext ok")
    for r in regs:
        k.I(f"v_mov_b32 {v(r+3)}, 0")
    for h in range(2):
        for b in range(7):
            k.mfma32(v(ACC + 16 * b, 16), v(AE + 28 * h + 4 * b, 4), v(BE, 4))
    k.stamp("ext mfma")
    k.I(f"s_mul_i32 {s(S_T0)}, {s(S_TB3)}, 112")
    k.I(f"s_mul_i32 {s(S_T1)}, {s(S_J)}, 7")
    k.I(f"s_add_u32 {s(S_T0)}, {s(S_T0)}, {s(S_T1)}")
    k.I(f"s_lshl_b32 {s(S_T0)}, {s(S_T0)}, 10")
    k.I(f"s_add_u32 {s(S_OFF)}, {s(S_T0)}, {WS_ACT}")
    for b in range(7):
        G = ACC + 16 * b
        U = G + 8
        o = 96 + 4 * b
        for e in range(0, 8, 2):
            k.I(f"v_pk_mul_f32 {v(U+e,2)}, {v(U+e,2)}, v[20:21] op_sel_hi:[1,0]")
        for e in range(8):
            k.I(f"v_max_f32 {v(G+e)}, 0, {v(G+e)}")
        for e in range(0, 8, 2):
            k.I(f"v_pk_mul_f32 {v(G+e,2)}, {v(G+e,2)}, {v(U+e,2)}")
        for e in range(0, 8, 2):
            k.I(f"v_cvt_pk_bf16_f32 {v(o+e//2)}, {v(G+e)}, {v(G+e+1)}")
        k.I(f"buffer_store_dwordx4 {v(o,4)}, {v(V_L16)}, {srd(S_WS)}, {s(S_OFF)} offen offset:{(b&3)*1024} sc1", tag="ast")
        if b == 3:
            k.I(f"s_add_u32 {s(S_OFF)}, {s(S_OFF)}, 4096")
    k.stamp("act stored")
    wd_setup(k)
    wd_round(k, 0)
    k.stamp("wd0 issued")
    k.wait_vm("ast")
    k.I(f"s_lshl_b32 {s(S_T0)}, {s(S_M)}, 4")
    k.I(f"s_add_u32 {s(S_T0)}, {s(S_T0)}, {s(S_J)}")
    k.I(f"s_lshl_b32 {s(S_T0)}, {s(S_T0)}, 7")
    k.I(f"s_add_u32 {s(S_T0)}, {s(S_T0)}, {WS_FA}")
    k.signal(S_T0, "fa")
    k.stamp("act published")


WD_A = 18
S_WDB = 90


def wd_setup(k):
    k.I(f"s_and_b32 {s(S_T0)}, {s(S_J2)}, 7")
    k.I(f"s_lshl_b32 {s(S_T0)}, {s(S_T0)}, 7")
    k.I(f"v_lshrrev_b32 v4, 3, {v(V_LANE)}")
    k.I("v_lshlrev_b32 v4, 10, v4")
    k.I(f"v_and_b32 v5, 7, {v(V_LANE)}")
    k.I(f"v_bfe_u32 v6, {v(V_LANE)}, 4, 1")
    k.I("v_lshlrev_b32 v6, 2, v6")
    k.I("v_xor_b32 v5, v5, v6")
    k.I("v_lshl_add_u32 v4, v5, 4, v4")
    k.I(f"v_add_u32 v4, {s(S_T0)}, v4")
    swz128_base(k, 5, cbk_imm=0, s_mul=8)
    k.I(f"s_mul_i32 {s(S_WDB)}, {s(S_W)}, {WD_A*2048}")
    k.I(f"v_add_u32 v5, {s(S_WDB)}, v5")
    k.I("v_xor_b32 v6, 64, v5")


def wd_round(k, rnd):
    k0, k1 = (0, WD_A) if rnd == 0 else (WD_A, 28)
    k.I(f"s_mul_i32 {s(S_OFF)}, {s(S_W)}, {448*1024}")
    if k0:
        k.I(f"s_add_u32 {s(S_OFF)}, {s(S_OFF)}, {k0*16*1024}")
    k.I(f"s_mov_b32 m0, {s(S_WDB)}")
    k._tag = f"wd{rnd}"
    n = 2 * (k1 - k0)
    for i in range(n):
        k.dma(4, S_WD, s(S_OFF))
        if i < n - 1:
            k.I("s_add_u32 m0, m0, 1024")
            k.I(f"s_add_u32 {s(S_OFF)}, {s(S_OFF)}, 8192")
    k._tag = None


def wd_reads(rnd):
    k0, k1 = (0, WD_A) if rnd == 0 else (WD_A, 28)
    out = []
    for kl in range(k0, k1):
        for cbk in range(2):
            for rd in range(2):
                out.append((f"ds_read_b64_tr_b16 {a_((2*kl + cbk)*4 + 2*rd, 2)}, {v(5+cbk)} offset:{(kl-k0)*2048 + rd*512}", f"wf{kl}"))
    return out


def p4(k):
    GB = 176
    k.I(f"v_lshrrev_b32 v8, 5, {v(V_LANE)}")
    k.I("v_lshlrev_b32 v8, 6, v8")
    k.I(f"s_lshl_b32 {s(S_T0)}, {s(S_B32)}, 7")
    k.I(f"s_add_u32 {s(S_T0)}, {s(S_T0)}, {WS_MODG + 1280*8}")
    k.I(f"v_add_u32 v8, {s(S_T0)}, v8")
    greg = [GB + 4 * i for i in range(4)]
    k.wait_vm("wd0")
    k.stamp("wd0 landed")
    rds = wd_reads(0)
    for i, (t, tg) in enumerate(rds):
        k.I(t, tag=tg)
        if i % 8 == 7:
            k.I("s_waitcnt lgkmcnt(4)")
    k.wait_lg_all()
    k.stamp("wf0 read")
    w0 = k.newlabel("wd_a")
    k.I(f"s_cmp_eq_u32 {s(S_W)}, 0")
    k.I(f"s_cbranch_scc1 {w0}")
    k.cond_begin()
    wd_round(k, 1)
    k.cond_end()
    k.label(w0)
    k.I(f"s_lshl_b32 {s(S_T0)}, {s(S_M2)}, 11")
    k.I(f"s_add_u32 {s(S_T0)}, {s(S_T0)}, {WS_FA}")
    k.poll_flags(S_T0, 16, "pa")
    k.stamp("act flags seen")
    w0 = k.newlabel("wd_b")
    k.wave_is(0, w0)
    k.cond_begin()
    wd_round(k, 1)
    k.cond_end()
    k.label(w0)
    k.vmq += ["wd1"] * (2 * (28 - WD_A))
    k.I(f"s_sub_u32 {s(S_T0)}, {s(S_TB)}, {s(S_TBL)}")
    k.I(f"s_mul_i32 {s(S_T0)}, {s(S_T0)}, {112*1024}")
    k.I(f"s_mul_i32 {s(S_T1)}, {s(S_W)}, {28*1024}")
    k.I(f"s_add_u32 {s(S_T0)}, {s(S_T0)}, {s(S_T1)}")
    S_A0, S_A1 = S_T3, S_T4
    k.I(f"s_add_u32 {s(S_A0)}, {s(S_T0)}, {WS_ACT}")
    k.I(f"s_add_u32 {s(S_A1)}, {s(S_A0)}, {112*1024}")
    NB = 12
    AB = 16
    ACC = 192

    def ld(kl):
        out = []
        for tbl in range(2):
            r = AB + 8 * (kl % NB) + 4 * tbl
            out.append((f"buffer_load_dwordx4 {v(r,4)}, {v(V_L16)}, {srd(S_WS)}, {s(S_A0 + tbl)} offen offset:{(kl&3)*1024} sc1", f"a{kl}"))
        if kl & 3 == 3:
            out.append((f"s_add_u32 {s(S_A0)}, {s(S_A0)}, 4096", None))
            out.append((f"s_add_u32 {s(S_A1)}, {s(S_A1)}, 4096", None))
        return out

    for kl in range(NB):
        for t, tg in ld(kl):
            k.I(t, tag=tg)
    k.granule_loads(greg, [8] * 4, 4, [0, 16, 32, 48], "gb")
    rds = wd_reads(1)
    for kl in range(28):
        k.wait_vm(f"a{kl}")
        if kl in (1, 7, 14, 21):
            k.stamp(f"p4 k{kl}")
        if kl == 6:
            k.wait_vm("wd1")
        if kl >= WD_A:
            k.wait_lg(f"wf{kl}")
        nxt = ld(kl + NB) if kl + NB < 28 else []
        for tbl in range(2):
            for cbk in range(2):
                r = AB + 8 * (kl % NB) + 4 * tbl
                k.mfma32(v(ACC + 16 * (2 * cbk + tbl), 16), a_((2 * kl + cbk) * 4, 4), v(r, 4), "0" if kl == 0 else None)
                if kl >= 6 and rds:
                    t, tg = rds.pop(0)
                    k.I(t, tag=tg)
                if tbl == 1 and nxt:
                    t, tg = nxt.pop(0)
                    k.I(t, tag=tg)
        for t, tg in nxt:
            k.I(t, tag=tg)
    assert not rds
    k.stamp("down gemm")
    k.granule_verify(greg, [8] * 4, "gb", 4, (1, 3), [0, 16, 32, 48], "gb")
    k.wait_lg_all()
    k.barrier()
    k.I(f"s_lshl_b32 {s(S_T0)}, {s(S_W)}, 12")
    k.I(f"v_add_u32 v8, {s(S_T0)}, {v(V_L16)}")
    k.I(f"v_add_u32 v9, 32768, v8")
    for q in range(4):
        sk = k.newlabel("r4w")
        k.I(f"s_cmp_eq_u32 {s(S_W)}, {q}")
        k.I(f"s_cbranch_scc1 {sk}")
        k.cond_begin()
        for i in range(4):
            base = 8 if q < 2 else 9
            k.I(f"ds_write_b128 {v(base)}, {v(ACC+16*q+4*i,4)} offset:{(q&1)*16384 + i*1024}")
        k.cond_end()
        k.label(sk)
    k.wait_lg_all()
    k.barrier()
    k.I(f"s_lshl_b32 {s(S_T0)}, {s(S_W)}, 14")
    k.I(f"v_add_u32 v8, {s(S_T0)}, {v(V_L16)}")
    for d in range(1, 4):
        k.I(f"s_add_u32 {s(S_T1)}, {s(S_W)}, {d}")
        k.I(f"s_and_b32 {s(S_T1)}, {s(S_T1)}, 3")
        k.I(f"s_lshl_b32 {s(S_T1)}, {s(S_T1)}, 12")
        k.I(f"v_add_u32 v9, {s(S_T1)}, v8")
        for i in range(4):
            k.I(f"ds_read_b128 {v(32+16*(d-1)+4*i,4)}, v9 offset:{i*1024}")
    for q in range(4):
        sk = k.newlabel("r4m")
        k.I(f"s_cmp_eq_u32 {s(S_W)}, {q}")
        k.I(f"s_cbranch_scc0 {sk}")
        for i in range(0, 16, 2):
            k.I(f"v_pk_mul_f32 {v(16+i,2)}, {v(ACC+16*q+i,2)}, 1.0 op_sel_hi:[1,0]")
        k.label(sk)
    k.wait_lg_all()
    for d in range(3):
        for i in range(0, 16, 2):
            k.I(f"v_pk_add_f32 {v(16+i,2)}, {v(16+i,2)}, {v(32+16*d+i,2)}")
    for i in range(8):
        g = GB + 4 * (i >> 1) + 2 * (i & 1)
        k.I(f"v_accvgpr_read_b32 v84, {a_(248+i)}")
        k.unpack(80, 81, g)
        k.unpack(82, 83, 84)
        k.I(f"v_pk_fma_f32 v[82:83], v[80:81], {v(16+2*i,2)}, v[82:83]")
        k.I(f"v_cvt_pk_bf16_f32 {v(88+i)}, v82, v83")
    k.I(f"v_and_b32 v8, 31, {v(V_LANE)}")
    k.I("v_lshlrev_b32 v8, 10, v8")
    k.I(f"v_lshrrev_b32 v9, 5, {v(V_LANE)}")
    k.I("v_lshl_add_u32 v8, v9, 5, v8")
    k.I(f"s_lshl_b32 {s(S_T0)}, {s(S_TB)}, 15")
    k.I(f"s_lshl_b32 {s(S_T1)}, {s(S_B32)}, 6")
    k.I(f"s_add_u32 {s(S_T0)}, {s(S_T0)}, {s(S_T1)}")
    k.I(f"v_add_u32 v8, {s(S_T0)}, v8")
    k.I(f"buffer_store_dwordx4 v[88:91], v8, {srd(S_OUT)}, 0 offen")
    k.I(f"buffer_store_dwordx4 v[92:95], v8, {srd(S_OUT)}, 0 offen offset:16")
    k.stamp("out stored")


def finish(k):
    if k.diag == "dbg":
        sk = k.newlabel("fin")
        k.wave_is(0, sk)
        k.I("s_load_dwordx2 s[92:93], s[0:1], 88")
        k.I("s_waitcnt lgkmcnt(0)")
        k.I("s_mov_b32 s94, 256")
        k.I("s_mov_b32 s95, 0x20000")
        k.I("s_mov_b64 exec, 1")
        sel = k.dbg_sel
        for slot, i in enumerate(sel):
            k.I(f"v_mov_b32 v9, {s(S_STAMP+i)}")
            if slot == 0:
                k.I("v_not_b32 v9, v9")
            k.I(f"v_mov_b32 v8, {4*slot}")
            k.I(f"buffer_atomic_umax v9, v8, s[92:95], 0 offen")
        k.label(sk)
    elif k.diag:
        sk = k.newlabel("fin")
        k.wave_is(0, sk)
        k.I(f"s_lshl_b32 {s(S_T0)}, s2, 7")
        k.I(f"s_add_u32 {s(S_T0)}, {s(S_T0)}, {WS_STAMP}")
        k.I(f"v_mov_b32 v8, {s(S_T0)}")
        k.I("s_mov_b64 exec, 1")
        for i in range(k.nstamp):
            k.I(f"v_mov_b32 v9, {s(S_STAMP+i)}")
            k.I(f"buffer_store_dword v9, v8, {srd(S_WS)}, 0 offen offset:{4*i}")
        k.label(sk)
    k.label("L_end")
    k.I("s_endpgm")


def build(diag=False, stop=None):
    k = K(diag, stop)
    phases = [prologue, start_phase, p1_prologue, ub_issue, p1_main, p1_epilogue,
              kv_combine_and_o, p2, p3, p4]
    for ph in phases:
        k.comment(f"======== {ph.__name__} ========")
        ph(k)
        if stop == ph.__name__:
            break
    k.dbg_sel = list(range(min(k.nstamp, 16)))
    if k.nstamp > 16:
        k.dbg_sel = [0, 1, 3, 4, 5, 7, 8, 9, 10, 11, 12, 13, 14, 15, 16, 17][:16]
    finish(k)
    hdr = open("cdna_kernels/" + NAME + ".s.ref").read().split("; Override launch geometry")[0]
    txt = hdr
    txt += f"; @launch grid=(256,1,1) block=(256,1,1) lds={LDS_BYTES}\n"
    txt += '.amdgcn_target "amdgcn-amd-amdhsa--gfx950"\n.text\n'
    txt += f".globl {NAME}_kernel\n.p2align 8\n.type {NAME}_kernel,@function\n{NAME}_kernel:\n"
    txt += k.text()
    txt += f""".section .rodata,"a"
.p2align 6
.amdhsa_kernel {NAME}_kernel
  .amdhsa_next_free_vgpr 512
  .amdhsa_next_free_sgpr 102
  .amdhsa_accum_offset 256
  .amdhsa_group_segment_fixed_size 0
  .amdhsa_kernarg_size 104
  .amdhsa_user_sgpr_count 2
  .amdhsa_user_sgpr_kernarg_segment_ptr 1
  .amdhsa_system_sgpr_workgroup_id_x 1
.end_amdhsa_kernel
"""
    return txt, k


if __name__ == "__main__":
    out = sys.argv[1] if len(sys.argv) > 1 else "k.s"
    for a in sys.argv:
        if a.startswith("--opt="):
            for kv in a[6:].split(","):
                kk, vv = kv.split("=")
                OPT[kk] = int(vv)
    diag = "--diag" in sys.argv
    if "--dbg" in sys.argv:
        diag = "dbg"
    stop = None
    for a in sys.argv:
        if a.startswith("--stop="):
            stop = a.split("=")[1]
    txt, k = build(diag, stop)
    open(out, "w").write(txt)
    if diag:
        open(out + ".stamps", "w").write("\n".join(k.stamp_names) + "\n")
    print(f"wrote {out}: {len(txt)} bytes, {sum(1 for l in k.out if l.startswith(chr(9)))} instructions, {k.nops} hazard nops")
```

```python
import sys
from asmlib import Asm

NAME = "adaLN_cond__linear_kernel_hedgehog__glu_gated_reglu__prompt"

WS_E = 0
WS_MODG = 0x1000
WS_FKV = 0x4000
WS_FO = 0xC000
WS_FY = 0x14000
WS_FA = 0x1C000
WS_STAMP = 0x30000
WS_WEXT = 0x40000
WS_STATS = 0x80000
WS_MODC = 0x60000
WS_KVP = 0x100000
WS_O = 0x200000
WS_Y = 0x400000
WS_ACT = 0x800000

L_XI = 0
L_WI = 0
L_WM = 131072
L_S = 158720
L_RT = 159744
L_WMN = 114688
L_KVI = 0
L_QI = 65536
L_GP = 148480
L_CT = 139264
L_PHI = 153600
L_ZERO = 154624
L_RED = 0
L_KVF = 149504
L_Z = 151552
L_UB = 145920
L_CS = 162304
L_WO = 0
L_OI = 98304
SLAB = 14592
UOFF = 7296
LDS_BYTES = 163840

S_X, S_WQKV, S_WPHI, S_WO, S_WG, S_WU, S_WD, S_C, S_WMOD, S_OUT, S_WS = 4, 8, 12, 16, 20, 24, 28, 32, 36, 40, 44
S_XCD, S_I, S_M, S_J, S_W, S_TAG, S_MASK = 48, 49, 50, 51, 52, 53, 54
S_T0, S_T1, S_T2, S_T3, S_T4 = 55, 56, 57, 58, 59
S_CLK = 60
S_L2E = 62
S_SPIN = 64
S_OFF = 65
S_VALID = 66
S_EX = 68
S_M2, S_J2 = 70, 71
S_STAMP = 72
S_SEL = 92
S_HP = S_J

LOG2E = 0x3FB8AA3B
SPIN_MAX = 200000


def srd(i):
    return f"s[{i}:{i+3}]"


def v(i, n=1):
    return f"v{i}" if n == 1 else f"v[{i}:{i+n-1}]"


def a_(i, n=1):
    return f"a{i}" if n == 1 else f"a[{i}:{i+n-1}]"


def s(i, n=1):
    return f"s{i}" if n == 1 else f"s[{i}:{i+n-1}]"


V_LANE, V_L16, V_TAG = 1, 2, 3
V_DUMMY = 15
OPT = dict(touch=1, tw0=1, mall=0, nt_wm=1, tmn_nt=0)


import os
STAMPS = os.environ.get('STAMPS', 'start,wmod landed,x in regs,mod arrived,P1 ready,p1 main,kv published,q softmax,kv flags seen,o published,o flags seen,wo gemm,y published,y flags seen,gate/up gemm,act published,act flags seen,out stored').split(',')


class K(Asm):
    def __init__(self, diag=False, stop=None):
        super().__init__()
        self.diag = diag
        self.stop = stop
        self.nstamp = 0

    def stamp(self, name, cyc=False):
        if not self.diag:
            return
        if STAMPS is not None and name not in STAMPS:
            return
        if cyc:
            self.wait_lg_all()
            self.I(f"s_memtime {s(S_CLK, 2)}")
            self.I("s_waitcnt lgkmcnt(0)")
            self.I(f"s_mov_b32 {s(S_STAMP + self.nstamp)}, {s(S_CLK)}")
            self.stamp_names = getattr(self, "stamp_names", []) + [name + " (cyc)"]
            self.nstamp += 1
            return
        self.wait_lg_all()
        self.I(f"s_memrealtime {s(S_CLK, 2)}")
        self.I("s_waitcnt lgkmcnt(0)")
        self.I(f"s_mov_b32 {s(S_STAMP + self.nstamp)}, {s(S_CLK)}")
        self.stamp_names = getattr(self, "stamp_names", []) + [name]
        self.nstamp += 1
        assert self.nstamp <= 18, self.stamp_names

    def wave_is(self, w, label_else):
        self.I(f"s_cmp_eq_u32 {s(S_W)}, {w}")
        self.I(f"s_cbranch_scc0 {label_else}")

    def mfma32(self, d, a, b, c=None):
        c = d if c is None else c
        self.I(f"v_mfma_f32_32x32x16_bf16 {d}, {a}, {b}, {c}")

    def spin_init(self):
        self.I(f"s_mov_b32 {s(S_SPIN)}, {SPIN_MAX}")

    def spin_back(self, loop, done):
        self.I(f"s_cbranch_vccz {done}")
        self.I(f"s_sub_u32 {s(S_SPIN)}, {s(S_SPIN)}, 1")
        self.I(f"s_cmp_lg_u32 {s(S_SPIN)}, 0")
        self.I(f"s_cbranch_scc1 {loop}")

    def unpack(self, lo, hi, src):
        self.I(f"v_lshlrev_b32 {v(lo)}, 16, {v(src)}")
        self.I(f"v_and_b32 {v(hi)}, {s(S_MASK)}, {v(src)}")

    def half_total(self, r, tmp):
        self.I(f"v_mov_b32 {v(tmp)}, {v(r)}")
        self.I(f"v_permlane32_swap_b32 {v(r)}, {v(tmp)}")
        self.I(f"v_add_f32 {v(r)}, {v(r)}, {v(tmp)}")

    def dma(self, voff, rsrc, soff, sc1=False):
        nt = " nt" if OPT.get("nt_" + str(self._tag)) else ""
        self.I(f"buffer_load_dwordx4 {v(voff)}, {srd(rsrc)}, {soff} offen{' sc1' if sc1 else ''}{nt} lds", tag=self._tag)

    _tag = None

    def touch(self, rsrc, voff, soff, tag="t", dst=None):
        nt = " nt" if OPT.get("nt_t") else ""
        self.I(f"buffer_load_dword {v(V_DUMMY if dst is None else dst)}, {v(voff)}, {srd(rsrc)}, {soff} offen{nt}", tag=tag)

    def poll_flags(self, base_sreg, n, stem, tmp=14):
        done = self.newlabel(stem + "_skip")
        loop = self.newlabel(stem + "_loop")
        ok = self.newlabel(stem + "_ok")
        self.wave_is(0, done)
        self.cond_begin()
        self.I(f"v_min_u32 {v(tmp)}, {n-1}, {v(V_LANE)}")
        self.I(f"v_lshlrev_b32 {v(tmp)}, 7, {v(tmp)}")
        self.I(f"v_add_u32 {v(tmp)}, {s(base_sreg)}, {v(tmp)}")
        self.spin_init()
        self.label(loop)
        self.I(f"buffer_load_dword {v(tmp+1)}, {v(tmp)}, {srd(S_WS)}, 0 offen sc1")
        self.I("s_waitcnt vmcnt(0)")
        self.I(f"v_cmp_ne_u32 vcc, {s(S_TAG)}, {v(tmp+1)}")
        self.spin_back(loop, ok)
        self.label(ok)
        self.cond_end()
        self.label(done)
        self.barrier()

    def signal(self, off_sreg, stem, tmp=14):
        self.barrier()
        done = self.newlabel(stem + "_sig")
        self.wave_is(0, done)
        self.cond_begin()
        self.I(f"v_mov_b32 {v(tmp)}, {s(off_sreg)}")
        self.I(f"s_mov_b64 exec, 1")
        self.I(f"buffer_store_dword {v(V_TAG)}, {v(tmp)}, {srd(S_WS)}, 0 offen sc1")
        self.I(f"s_mov_b64 exec, -1")
        self.cond_end()
        self.label(done)

    def granule_loads(self, regs, addr_regs, width, imm, tag):
        sfx = {2: "dwordx2", 4: "dwordx4"}[width]
        for i, (r, ad) in enumerate(zip(regs, addr_regs)):
            off = imm[i] if imm else 0
            self.I(f"buffer_load_{sfx} {v(r, width)}, {v(ad)}, {srd(S_WS)}, 0 offen offset:{off} sc1", tag=tag)

    def granule_verify(self, regs, addr_regs, stem, width, tagpos, imm, tag):
        loop = self.newlabel(stem + "_loop")
        chk = self.newlabel(stem + "_chk")
        ok = self.newlabel(stem + "_ok")
        self.spin_init()
        if self.cond:
            self.I("s_waitcnt vmcnt(0)")
        else:
            self.wait_vm(tag)
        self.I(f"s_branch {chk}")
        self.label(loop)
        self.cond_begin()
        self.granule_loads(regs, addr_regs, width, imm, None)
        self.I("s_waitcnt vmcnt(0)")
        self.cond_end()
        self.label(chk)
        first = True
        for r in regs:
            for tp in tagpos:
                if first:
                    self.I(f"v_cmp_ne_u32 vcc, {s(S_TAG)}, {v(r+tp)}")
                    first = False
                else:
                    self.I(f"v_cmp_ne_u32 {s(S_EX, 2)}, {s(S_TAG)}, {v(r+tp)}")
                    self.I(f"s_or_b64 vcc, vcc, {s(S_EX, 2)}")
        self.spin_back(loop, ok)
        self.label(ok)

    def load_granules_checked(self, regs, addr_regs, stem, width=2, tagpos=(1,), imm=None):
        self.granule_loads(regs, addr_regs, width, imm, stem)
        self.granule_verify(regs, addr_regs, stem, width, tagpos, imm, stem)


def prologue(k):
    k.I("s_cmp_ge_u32 s2, 256")
    k.I("s_cbranch_scc1 L_end")
    k.I("s_load_dwordx16 s[64:79], s[0:1], 0")
    k.I("s_load_dwordx8 s[80:87], s[0:1], 64")
    k.I("s_load_dwordx2 s[88:89], s[0:1], 96")
    k.I(f"v_and_b32 {v(V_LANE)}, 63, v0")
    k.I("v_lshrrev_b32 v4, 6, v0")
    k.I(f"v_lshlrev_b32 {v(V_L16)}, 4, {v(V_LANE)}")
    k.I(f"v_readfirstlane_b32 {s(S_W)}, v4")
    k.I(f"s_and_b32 {s(S_XCD)}, s2, 7")
    k.I(f"s_lshr_b32 {s(S_I)}, s2, 3")
    k.I(f"s_lshr_b32 {s(S_T0)}, {s(S_XCD)}, 1")
    k.I(f"s_lshl_b32 {s(S_T0)}, {s(S_T0)}, 2")
    k.I(f"s_lshr_b32 {s(S_T1)}, {s(S_I)}, 3")
    k.I(f"s_add_u32 {s(S_M)}, {s(S_T0)}, {s(S_T1)}")
    k.I(f"s_and_b32 {s(S_T0)}, {s(S_XCD)}, 1")
    k.I(f"s_lshl_b32 {s(S_T0)}, {s(S_T0)}, 3")
    k.I(f"s_and_b32 {s(S_T1)}, {s(S_I)}, 7")
    k.I(f"s_add_u32 {s(S_J)}, {s(S_T0)}, {s(S_T1)}")
    k.I(f"s_mov_b32 {s(S_MASK)}, 0xffff0000")
    k.I(f"s_mov_b32 {s(S_L2E)}, {LOG2E:#x}")
    k.I(f"s_mov_b32 {s(S_L2E+1)}, {LOG2E:#x}")
    k.I("s_waitcnt lgkmcnt(0)")
    bufs = [(S_X, 64, 2097152), (S_WQKV, 66, 1572864), (S_WPHI, 68, 16384), (S_WO, 70, 524288),
            (S_WG, 74, 1835008), (S_WU, 76, 1835008), (S_WD, 78, 1835008), (S_C, 80, 1024),
            (S_WMOD, 82, 3145728), (S_OUT, 84, 2097152), (S_WS, 88, 268435456)]
    for r, p, n in bufs:
        k.I(f"s_mov_b32 {s(r)}, {s(p)}")
        k.I(f"s_mov_b32 {s(r+1)}, {s(p+1)}")
        k.I(f"s_mov_b32 {s(r+2)}, {n}")
        k.I(f"s_mov_b32 {s(r+3)}, 0x20000")
    k.I(f"s_lshr_b32 {s(S_T0)}, {s(S_I)}, 4")
    k.I(f"s_lshl_b32 {s(S_M2)}, {s(S_XCD)}, 1")
    k.I(f"s_add_u32 {s(S_M2)}, {s(S_M2)}, {s(S_T0)}")
    k.I(f"s_and_b32 {s(S_J2)}, {s(S_I)}, 15")
    k.I("v_mov_b32 v4, 0")
    k.I(f"buffer_load_dword {v(V_TAG)}, v4, {srd(S_WS)}, 0 offen sc1", tag="E")
    k.stamp("start")


S_G = 100
S_GC = 3


def x_rows(k):
    k.I(f"s_lshl_b32 {s(S_T2)}, {s(S_M)}, 17")
    k.I(f"s_and_b32 {s(S_T3)}, {s(S_J)}, 7")
    k.I(f"s_lshl_b32 {s(S_T3)}, {s(S_T3)}, 4")
    k.I(f"s_add_u32 {s(S_T3)}, {s(S_T3)}, {s(S_W)}")
    k.I(f"s_sub_u32 {s(S_T3)}, {s(S_T3)}, 1")
    k._tag = "x"
    for n in range(43):
        if n == 42:
            last = k.newlabel("xlast")
            k.I(f"s_cmp_eq_u32 {s(S_W)}, 3")
            k.I(f"s_cbranch_scc1 {last}")
        k.I(f"s_and_b32 {s(S_T0)}, {s(S_T3)}, 127")
        k.I(f"s_and_b32 {s(S_T1)}, {s(S_T0)}, 15")
        k.I(f"s_lshl_b32 {s(S_T1)}, {s(S_T1)}, 4")
        k.I(f"v_xor_b32 v9, {s(S_T1)}, {v(V_L16)}")
        k.I(f"s_lshl_b32 m0, {s(S_T0)}, 10")
        k.I(f"s_add_u32 {s(S_OFF)}, m0, {s(S_T2)}")
        k.dma(9, S_X, s(S_OFF))
        if n < 42:
            k.I(f"s_add_u32 {s(S_T3)}, {s(S_T3)}, 3")
    k.label(last)
    k._tag = None


def touch_wqkv(k):
    if OPT["touch"]:
        k.I(f"v_lshrrev_b32 v13, 2, {v(V_LANE)}")
        k.I("v_mul_u32_u24 v13, 3072, v13")
        k.I(f"v_and_b32 v14, 3, {v(V_LANE)}")
        k.I("v_lshl_add_u32 v13, v14, 7, v13")
        k.I(f"s_mul_i32 {s(S_OFF)}, {s(S_I)}, {16*3072}")
        k.I(f"s_sub_u32 {s(S_T0)}, {s(S_W)}, 1")
        k.I(f"s_lshl_b32 {s(S_T0)}, {s(S_T0)}, 10")
        k.I(f"s_add_u32 {s(S_OFF)}, {s(S_OFF)}, {s(S_T0)}")
        k.I(f"s_and_b32 {s(S_T0)}, {s(S_XCD)}, 1")
        k.I(f"s_lshl_b32 {s(S_T0)}, {s(S_T0)}, 9")
        k.I(f"s_add_u32 {s(S_OFF)}, {s(S_OFF)}, {s(S_T0)}")
        k.touch(S_WQKV, 13, s(S_OFF), dst=176)


def mod_group(k):
    k.I(f"s_lshr_b32 {s(S_T0)}, {s(S_I)}, 2")
    k.I(f"s_lshl_b32 {s(S_T0)}, {s(S_T0)}, 3")
    k.I(f"s_add_u32 {s(S_T0)}, {s(S_T0)}, {s(S_XCD)}")
    k.I(f"s_lshl_b32 {s(S_T0)}, {s(S_T0)}, 2")
    k.I(f"s_and_b32 {s(S_T1)}, {s(S_I)}, 3")
    k.I(f"s_add_u32 {s(S_G)}, {s(S_T0)}, {s(S_T1)}")


def wm_voff(k, dst, tmp):
    k.I(f"v_lshrrev_b32 {v(dst)}, 1, {v(V_LANE)}")
    k.I(f"v_mul_u32_u24 {v(dst)}, 6144, {v(dst)}")
    k.I(f"v_and_b32 {v(tmp)}, 1, {v(V_LANE)}")
    k.I(f"v_lshlrev_b32 {v(tmp)}, 4, {v(tmp)}")
    k.I(f"s_lshl_b32 {s(S_T0)}, {s(S_G)}, 5")
    k.I(f"v_add3_u32 {v(dst)}, {v(dst)}, {v(tmp)}, {s(S_T0)}")


def gemv16(k, lds_base, nq=16, partial=False, nbuf=112):
    k.I(f"v_lshrrev_b32 v8, 4, {v(V_LANE)}")
    k.I("v_lshlrev_b32 v8, 3, v8")
    k.I(f"v_add_u32 v8, {L_S}, v8")
    if partial:
        k.I(f"s_and_b32 {s(S_T0)}, {s(S_I)}, 3")
        k.I(f"s_lshl_b32 {s(S_T0)}, {s(S_T0)}, 8")
        k.I(f"v_add_u32 v8, {s(S_T0)}, v8")
    k.I(f"v_lshlrev_b32 v10, 3, {v(V_LANE)}")
    k.I(f"v_add_u32 v10, {lds_base}, v10")
    for q in range(nq + 2):
        if q < nq:
            b = nbuf + 8 * (q & 3)
            k.I(f"ds_read_b64_tr_b16 {v(b+4, 2)}, v10 offset:{q*1024}")
            k.I(f"ds_read_b64_tr_b16 {v(b+6, 2)}, v10 offset:{q*1024+512}")
            k.I(f"ds_read_b64 {v(b, 2)}, v8 offset:{q*64}")
            k.I(f"ds_read_b64 {v(b+2, 2)}, v8 offset:{q*64+32}")
        if q >= 2:
            k.I(f"s_waitcnt lgkmcnt({8 if q < nq else (4 if q == nq else 0)})")
            bb = nbuf + 8 * ((q - 2) & 3)
            acc = 144 + 4 * (q & 1)
            c = "0" if q < 4 else v(acc, 4)
            k.I(f"v_mfma_f32_16x16x32_bf16 {v(acc, 4)}, {v(bb, 4)}, {v(bb+4, 4)}, {c}")
    k.I("v_add_f32 v144, v144, v148")
    k.I("v_mov_b32_dpp v145, v144 quad_perm:[1,0,3,2] row_mask:0xf bank_mask:0xf")
    if partial:
        k.I(f"v_mov_b32 v146, {v(V_TAG)}")
        k.I("v_mov_b32 v147, 0")
        k.I(f"v_lshlrev_b32 v8, 3, {v(V_LANE)}")
        k.I(f"s_and_b32 {s(S_T0)}, {s(S_I)}, 3")
        k.I(f"s_lshl_b32 {s(S_T0)}, {s(S_T0)}, 13")
        k.I(f"s_lshl_b32 {s(S_T1)}, {s(S_GC)}, 7")
        k.I(f"s_add_u32 {s(S_T0)}, {s(S_T0)}, {s(S_T1)}")
        k.I(f"s_add_u32 {s(S_T0)}, {s(S_T0)}, {WS_MODC}")
        k.I(f"v_add_u32 v8, {s(S_T0)}, v8")
        k.I("s_mov_b64 exec, 0x5555")
        k.I(f"buffer_store_dwordx4 v[144:147], v8, {srd(S_WS)}, 0 offen sc1")
    else:
        k.I("v_cvt_pk_bf16_f32 v144, v144, v145")
        k.I(f"v_mov_b32 v145, {v(V_TAG)}")
        k.I(f"v_lshlrev_b32 v8, 2, {v(V_LANE)}")
        k.I(f"s_lshl_b32 {s(S_T0)}, {s(S_G)}, 6")
        k.I(f"s_add_u32 {s(S_T0)}, {s(S_T0)}, {WS_MODG}")
        k.I(f"v_add_u32 v8, {s(S_T0)}, v8")
        k.I("s_mov_b64 exec, 0x5555")
        k.I(f"buffer_store_dwordx2 v[144:145], v8, {srd(S_WS)}, 0 offen sc1")
    k.I("s_mov_b64 exec, -1")


def mall_touch(k):
    k.I(f"v_min_u32 v9, 55, {v(V_LANE)}")
    k.I("v_lshlrev_b32 v9, 7, v9")
    k.I(f"s_mul_i32 {s(S_OFF)}, s2, {56*128}")
    for r in (S_WG, S_WU, S_WD):
        k.touch(r, 9, s(S_OFF), dst=176)
    k.I(f"v_and_b32 v9, 15, {v(V_LANE)}")
    k.I("v_lshlrev_b32 v9, 7, v9")
    k.I(f"s_lshl_b32 {s(S_OFF)}, s2, 11")
    k.touch(S_WO, 9, s(S_OFF), dst=176)
    k.I(f"v_lshrrev_b32 v9, 5, {v(V_LANE)}")
    k.I("v_mul_u32_u24 v9, 6144, v9")
    k.I(f"v_and_b32 v10, 31, {v(V_LANE)}")
    k.I("v_lshl_add_u32 v9, v10, 7, v9")
    k.I(f"s_mul_i32 {s(S_OFF)}, s2, {2*6144}")
    k.I(f"s_add_u32 {s(S_OFF)}, {s(S_OFF)}, 2048")
    k.touch(S_WMOD, 9, s(S_OFF), dst=176)


def start_phase(k):
    mod_group(k)
    k.I(f"s_lshr_b32 {s(S_T0)}, {s(S_I)}, 4")
    k.I(f"s_lshl_b32 {s(S_T0)}, {s(S_T0)}, 3")
    k.I(f"s_add_u32 {s(S_T0)}, {s(S_T0)}, {s(S_XCD)}")
    k.I(f"s_lshl_b32 {s(S_T0)}, {s(S_T0)}, 2")
    k.I(f"s_bfe_u32 {s(S_T1)}, {s(S_I)}, {(2 << 16) | 2}")
    k.I(f"s_add_u32 {s(S_GC)}, {s(S_T0)}, {s(S_T1)}")
    k.cond_begin()
    wa, wb = k.newlabel("st_b"), k.newlabel("st_j")
    k.wave_is(0, wa)
    k.I(f"buffer_load_dwordx4 v[24:27], {v(V_L16)}, {srd(S_C)}, 0 offen")
    k.I(f"v_lshrrev_b32 v7, 1, {v(V_LANE)}")
    k.I("v_mul_u32_u24 v7, 6144, v7")
    k.I(f"v_and_b32 v8, 1, {v(V_LANE)}")
    k.I("v_lshlrev_b32 v8, 4, v8")
    k.I(f"s_lshl_b32 {s(S_T0)}, {s(S_GC)}, 5")
    k.I(f"v_add3_u32 v7, v7, v8, {s(S_T0)}")
    k.I(f"s_and_b32 {s(S_OFF)}, {s(S_I)}, 3")
    k.I(f"s_mul_i32 {s(S_OFF)}, {s(S_OFF)}, {128*6144}")
    k.I(f"s_mov_b32 m0, {L_WM}")
    k._tag = "wm"
    for n in range(4):
        k.dma(7, S_WMOD, s(S_OFF))
        if n < 3:
            k.I(f"s_add_u32 m0, m0, 1024")
            k.I(f"s_add_u32 {s(S_OFF)}, {s(S_OFF)}, 196608")
    k._tag = None
    k.I(f"s_branch {wb}")
    k.label(wa)
    k.I(f"s_lshl_b32 {s(S_OFF)}, {s(S_HP)}, 10")
    k.I(f"s_mov_b32 m0, {L_PHI}")
    k.dma(V_L16, S_WPHI, s(S_OFF))
    touch_wqkv(k)
    x_rows(k)
    k.label(wb)
    k.cond_end()
    k.vmq = []


def start_finish(k):
    k.cond_begin()
    wa, wb = k.newlabel("sf_b"), k.newlabel("sf_j")
    k.wave_is(0, wa)
    k.I("s_waitcnt vmcnt(4)")
    k.I(f"v_add_u32 {v(V_TAG)}, 1, {v(V_TAG)}")
    for i in range(4):
        k.unpack(28 + 2 * i, 29 + 2 * i, 24 + i)
    for i in range(8):
        k.I(f"v_mul_f32 {v(36+i)}, {s(S_L2E)}, {v(28+i)}")
    for i in range(8):
        k.I(f"v_exp_f32 {v(36+i)}, -{v(36+i)}")
    for i in range(8):
        k.I(f"v_add_f32 {v(36+i)}, 1.0, {v(36+i)}")
    for i in range(8):
        k.I(f"v_rcp_f32 {v(36+i)}, {v(36+i)}")
    for i in range(8):
        k.I(f"v_mul_f32 {v(28+i)}, {v(28+i)}, {v(36+i)}")
    for i in range(4):
        k.I(f"v_cvt_pk_bf16_f32 {v(24+i)}, {v(28+2*i)}, {v(29+2*i)}")
    k.I(f"v_add_u32 v8, {L_S}, {v(V_L16)}")
    k.I("ds_write_b128 v8, v[24:27]")
    k.I("s_waitcnt vmcnt(0) lgkmcnt(0)")
    gemv16(k, L_WM, nq=4, partial=True)
    if OPT["mall"]:
        mall_touch(k)
    k.I(f"s_branch {wb}")
    k.label(wa)
    k.I("s_waitcnt vmcnt(0)")
    k.I(f"v_add_u32 {v(V_TAG)}, 1, {v(V_TAG)}")
    k.label(wb)
    k.cond_end()
    k.I(f"v_readfirstlane_b32 {s(S_TAG)}, {v(V_TAG)}")
    k.stamp("mod published")
    k.lgq = []
    k.barrier()


def modn_compute(k):
    skip = k.newlabel("mn_c")
    k.I("s_sub_u32 s55, s2, 64")
    k.I("s_cmp_ge_u32 s55, 128")
    k.I(f"s_cbranch_scc1 {skip}")
    k.wave_is(2, skip)
    k.cond_begin()
    gemv16(k, L_WMN)
    k.cond_end()
    k.label(skip)


X0 = 16
AQ, AK, AV = 144, 160, 176
DM = 144
DG = 192
EB = (200, 204)
BEXT = 208
MSK = 212
V_TRK, V_TRV, V_TAB, V_R, V_TRQ = 220, 221, 222, 223, 4


def lane_fields(k, t_r=None, s_=None, r_=None, c_=None, nh=None):
    if s_ is not None:
        k.I(f"v_lshrrev_b32 {v(s_)}, 5, {v(V_LANE)}")
    if nh is not None:
        k.I(f"v_bfe_u32 {v(nh)}, {v(V_LANE)}, 4, 1")
    if r_ is not None:
        k.I(f"v_bfe_u32 {v(r_)}, {v(V_LANE)}, 2, 2")
    if c_ is not None:
        k.I(f"v_and_b32 {v(c_)}, 3, {v(V_LANE)}")


def lbase_bytes(k, dst, nh, c, t0, t1):
    k.I(f"v_and_b32 {v(t0)}, 1, {v(c)}")
    k.I(f"v_lshlrev_b32 {v(t0)}, 5, {v(t0)}")
    k.I(f"v_lshrrev_b32 {v(t1)}, 1, {v(c)}")
    k.I(f"v_lshlrev_b32 {v(t1)}, 3, {v(t1)}")
    k.I(f"v_lshl_add_u32 {v(dst)}, {v(nh)}, 4, {v(t0)}")
    k.I(f"v_add_u32 {v(dst)}, {v(dst)}, {v(t1)}")


MODA_REGS = [144 + 4 * i for i in range(8)]
MODA_ADDR = [202, 203, 204, 205, 206, 207, 241, 242]


def p1_prologue(k):
    k.I("v_mov_b32 v8, 0")
    k.I(f"v_lshlrev_b32 v9, 2, {v(V_LANE)}")
    k.I(f"v_and_b32 v9, 60, v9")
    k.I(f"v_add_u32 v9, {L_ZERO}, v9")
    k.I("ds_write_b32 v9, v8")
    p1_static(k)
    k.I(f"v_and_b32 v8, 31, {v(V_LANE)}")
    k.I(f"s_lshl_b32 {s(S_T0)}, {s(S_W)}, 5")
    k.I(f"v_add_u32 v9, {s(S_T0)}, v8")
    k.I("v_lshlrev_b32 v9, 10, v9")
    k.I("v_and_b32 v8, 15, v8")
    k.I(f"v_lshrrev_b32 v10, 5, {v(V_LANE)}")
    for q in range(8):
        k.I(f"v_add_u32 v11, {2*q}, v10")
        k.I("v_xor_b32 v11, v11, v8")
        k.I(f"v_lshl_add_u32 {v(192+q)}, v11, 4, v9")
    k.I(f"v_lshrrev_b32 v8, 3, {v(V_LANE)}")
    k.I("v_mul_u32_u24 v8, 3072, v8")
    k.I(f"v_and_b32 v9, 7, {v(V_LANE)}")
    k.I(f"v_bfe_u32 v10, {v(V_LANE)}, 4, 1")
    k.I("v_lshlrev_b32 v10, 2, v10")
    k.I("v_xor_b32 v9, v9, v10")
    k.I("v_lshrrev_b32 v10, 2, v9")
    k.I("v_lshlrev_b32 v10, 10, v10")
    k.I("v_and_b32 v9, 3, v9")
    k.I("v_lshl_add_u32 v10, v9, 4, v10")
    k.I(f"s_lshl_b32 {s(S_T0)}, {s(S_HP)}, 6")
    k.I(f"s_add_u32 {s(S_T1)}, {s(S_T0)}, 1024")
    k.I(f"v_add3_u32 v200, v8, v10, {s(S_T1)}")
    k.I(f"v_lshrrev_b32 v8, 2, {v(V_LANE)}")
    k.I("v_mul_u32_u24 v8, 3072, v8")
    k.I(f"v_and_b32 v9, 3, {v(V_LANE)}")
    k.I("v_lshl_add_u32 v8, v9, 4, v8")
    k.I(f"v_add_u32 v6, {s(S_T0)}, v8")
    k.I("v_lshlrev_b32 v202, 4, v0")
    k.I(f"v_add_u32 v202, {WS_MODC}, v202")
    k.I(f"v_add_u32 v203, 8192, v202")
    k.I(f"v_add_u32 v204, 16384, v202")
    k.I(f"v_add_u32 v205, 24576, v202")
    k.I(f"v_add_u32 v206, 4096, v202")
    k.I(f"v_add_u32 v207, 4096, v203")
    k.I(f"v_add_u32 v241, 4096, v204")
    k.I(f"v_add_u32 v242, 4096, v205")
    start_finish(k)
    for j in range(32):
        k.I(f"ds_read_b128 {v(X0+4*j, 4)}, {v(192+(j&7))} offset:{L_XI + (j>>3)*256}", tag="xf")
        if j % 8 == 7 and j < 31:
            k.I("s_waitcnt lgkmcnt(4)")
    k.wait_lg_all()
    k.barrier()
    k.stamp("x in regs")
    k.I(f"s_mul_i32 {s(S_T2)}, {s(S_W)}, {128*3072}")
    k.I(f"s_lshl_b32 {s(S_T3)}, {s(S_W)}, 14")
    if L_KVI:
        k.I(f"s_add_u32 {s(S_T3)}, {s(S_T3)}, {L_KVI}")
    k.I("v_mov_b32 v8, 0x3f803f80")
    for r in range(10, 14):
        k.I(f"v_mov_b32 {v(r)}, 0")
    dots = []
    for i in range(128):
        dots.append(f"v_dot2c_f32_bf16 {v(10 + (i & 1))}, {v(X0+i)}, v8")
        dots.append(f"v_dot2c_f32_bf16 {v(12 + (i & 1))}, {v(X0+i)}, {v(X0+i)}")
    k._tag = "w"
    for n in range(16):
        k.I(f"s_add_u32 {s(S_OFF)}, {s(S_T2)}, {n*8*3072}")
        k.I(f"s_add_u32 m0, {s(S_T3)}, {n*1024}")
        k.dma(200, S_WQKV, s(S_OFF))
        for _ in range(10):
            k.I(dots.pop(0))
    k._tag = None
    for r, ad in zip(MODA_REGS, MODA_ADDR):
        k.granule_loads([r], [ad], 4, None, "modA")
        for _ in range(8):
            k.I(dots.pop(0))
    for it in p1_side(k, regs=(243, 244, 245, 246)):
        for t, tg in it:
            k.I(t, tag=tg)
        for _ in range(6):
            k.I(dots.pop(0))
    for t in dots:
        k.I(t)
    k.I("v_add_f32 v10, v10, v11")
    k.I("v_add_f32 v12, v12, v13")
    k.half_total(10, 11)
    k.half_total(12, 13)
    k.I("v_mul_f32 v10, 0x3b000000, v10")
    k.I("v_mul_f32 v12, 0x3b000000, v12")
    k.I("v_fma_f32 v12, -v10, v10, v12")
    k.I("v_max_f32 v12, 0, v12")
    k.I("v_add_f32 v12, 0x3727c5ac, v12")
    k.I(f"v_rsq_f32 {v(V_R)}, v12")
    k.I("v_sub_f32 v10, 0, v10")
    k.I(f"v_mul_f32 v11, v12, {v(V_R)}")
    k.I("v_cvt_pk_bf16_f32 v12, v10, v11")
    k.unpack(8, 9, 12)
    k.I("v_sub_f32 v8, v10, v8")
    k.I("v_sub_f32 v9, v11, v9")
    k.I("v_cvt_pk_bf16_f32 v13, v8, v9")
    k.I(f"s_mov_b32 {s(S_T0)}, 0x01000100")
    k.I(f"s_mov_b32 {s(S_T1)}, 0x03020302")
    k.I(f"v_perm_b32 {v(BEXT)}, v12, v12, {s(S_T0)}")
    k.I(f"v_perm_b32 {v(BEXT+1)}, v13, v13, {s(S_T0)}")
    k.I(f"v_perm_b32 {v(BEXT+2)}, v12, v12, {s(S_T1)}")
    k.I(f"v_perm_b32 {v(BEXT+3)}, v13, v13, {s(S_T1)}")
    k.I(f"v_cmp_gt_u32 vcc, 32, {v(V_LANE)}")
    for i in range(4):
        k.I(f"v_cndmask_b32 {v(BEXT+i)}, 0, {v(BEXT+i)}, vcc")
    k.stamp("stats")
    p1_rv(k)
    k.granule_verify(MODA_REGS, MODA_ADDR, "modA", 4, (2,), None, "modA")
    k.stamp("mod arrived")
    for base in (144, 160):
        k.I(f"v_pk_add_f32 {v(base,2)}, {v(base,2)}, {v(base+4,2)}")
        k.I(f"v_pk_add_f32 {v(base+8,2)}, {v(base+8,2)}, {v(base+12,2)}")
        k.I(f"v_pk_add_f32 {v(base,2)}, {v(base,2)}, {v(base+8,2)}")
    k.I("v_cvt_pk_bf16_f32 v204, v144, v145")
    k.I("v_cvt_pk_bf16_f32 v206, v160, v161")
    k.unpack(192, 193, 206)
    k.I("v_add_f32 v192, 1.0, v192")
    k.I("v_add_f32 v193, 1.0, v193")
    k.I("v_cvt_pk_bf16_f32 v12, v192, v193")
    k.I("v_and_b32 v192, 0xffff, v12")
    k.I("v_and_b32 v194, 0xffff, v204")
    k.I(f"v_and_b32 v196, {s(S_MASK)}, v12")
    k.I(f"v_and_b32 v198, {s(S_MASK)}, v204")
    for r in (192, 194, 196, 198):
        k.I(f"v_mov_b32 {v(r+1)}, {v(r)}")
    k.I("v_lshlrev_b32 v8, 5, v0")
    k.I(f"v_add_u32 v8, {L_CT}, v8")
    k.I("ds_write_b128 v8, v[192:195]")
    k.I("ds_write_b128 v8, v[196:199] offset:16")
    k.vmq = []
    k.wait_lg_all()
    k.barrier()
    k.stamp("P1 ready")
    k.stamp("c0", cyc=True) if STAMPS and "c0" in STAMPS else None


def p1_static(k):
    k.I(f"v_bfe_u32 v8, {v(V_LANE)}, 1, 2")
    k.I(f"v_bfe_u32 v9, {v(V_LANE)}, 4, 1")
    k.I("v_lshl_add_u32 v8, v9, 2, v8")
    k.I(f"v_bfe_u32 v9, {v(V_LANE)}, 3, 1")
    k.I(f"v_lshrrev_b32 v10, 5, {v(V_LANE)}")
    k.I("v_xor_b32 v9, v9, v10")
    k.I("v_lshl_add_u32 v8, v9, 3, v8")
    for i in range(8):
        k.I(f"v_cmp_eq_u32 vcc, {i}, v8")
        k.I(f"v_cndmask_b32 {v(MSK+i)}, 0, -1, vcc")
    lane_fields(k, s_=8, r_=9, c_=10, nh=11)
    lbase_bytes(k, 12, 11, 10, 13, 14)
    k.I("v_lshl_add_u32 v8, v8, 2, v9")
    k.I("v_lshlrev_b32 v13, 7, v8")
    k.I("v_lshrrev_b32 v9, 1, v9")
    k.I("v_lshl_add_u32 v13, v9, 6, v13")
    k.I(f"v_add_u32 {v(V_TRK)}, v13, v12")
    k.I(f"v_xor_b32 {v(V_TRV)}, 64, {v(V_TRK)}")
    k.I("v_lshlrev_b32 v13, 6, v8")
    k.I("v_add_u32 v13, v13, v12")
    k.I(f"v_add_u32 {v(V_TRQ)}, {L_QI}, v13")
    k.I(f"v_and_b32 v8, 31, {v(V_LANE)}")
    k.I("v_lshlrev_b32 v8, 4, v8")
    k.I(f"v_add_u32 {v(V_TAB)}, {L_CT}, v8")
    p1_sel(k)


def p1_w(j, p):
    if p == 0:
        return V_TRQ, j * 1024, 512
    return (V_TRK if p == 1 else V_TRV), L_KVI + j * 2048, 1024


def p1_main(k):
    def rd_e(B):
        return [(f"ds_read_b128 {v(EB[B & 1], 4)}, {v(V_TAB)} offset:{B*512}", f"e{B}")]

    def rd_w(B):
        out = []
        for a in range(2):
            for pi, p in enumerate((1, 2)):
                base, off, st = p1_w(2 * B + a, p)
                for rd in range(2):
                    out.append((f"ds_read_b64_tr_b16 {a_(16*(B&1) + 8*a + 4*pi + 2*rd, 2)}, {v(base)} offset:{off + rd*st}", f"w{B}_{a}{pi}"))
        return out

    def diag(B):
        return [f"v_and_b32 {v(DG+i)}, {v(EB[B & 1])}, {v(MSK+i)}" for i in range(8)]

    def pack(B):
        return [f"v_cvt_pk_bf16_f32 {v(X0 + 8*B + i)}, {v(DM + 2*i)}, {v(DM + 2*i + 1)}" for i in range(8)]

    def mod_mfma(B, i):
        if i < 2:
            k.mfma32(v(DM, 16), v(DG + 4 * i, 4), v(X0 + 8 * B + 4 * i, 4), "0" if i == 0 else None)
        else:
            k.mfma32(v(DM, 16), v(EB[B & 1], 4), v(BEXT, 4))

    def emit(items):
        for it in items:
            if isinstance(it, tuple):
                k.I(it[0], tag=it[1])
            else:
                k.I(it)

    side = []
    emit(rd_e(0) + rd_e(1) + rd_w(0))
    k.wait_lg("e0")
    emit(diag(0))
    for i in range(3):
        mod_mfma(0, i)
    k.wait_lg("e1")
    emit(diag(1))
    emit(pack(0))
    for B in range(16):
        nxt = B + 1 < 16
        w = rd_w(B + 1) if nxt else []
        e = rd_e(B + 2) if B + 2 < 16 else []
        dg = diag(B + 2) if B + 2 < 16 else []
        pk = pack(B + 1) if nxt else []

        def g(a, pi):
            k.wait_lg(f"w{B}_{a}{pi}")
            wf = a_(16 * (B & 1) + 8 * a + 4 * pi, 4)
            h = v(X0 + 8 * B + 4 * a, 4)
            c0 = "0" if (B == 0 and a == 0) else None
            if pi == 0:
                k.mfma32(v(AK, 16), wf, h, c0)
            else:
                k.mfma32(v(AV, 16), h, wf, c0)

        if nxt:
            mod_mfma(B + 1, 0)
        emit(e + w[0:2])
        if nxt:
            mod_mfma(B + 1, 1)
        emit(w[2:4])
        if nxt:
            mod_mfma(B + 1, 2)
        emit(w[4:6])
        g(0, 0)
        emit(w[6:8])
        if dg:
            k.wait_lg(f"e{B+2}")
        emit(dg[0:3])
        g(0, 1)
        emit(dg[3:8])
        g(1, 0)
        emit(pk[0:4])
        g(1, 1)
        emit(pk[4:8])
        if side:
            emit(side.pop(0))
    assert not side
    k.stamp("p1 main")
    k.stamp("c1", cyc=True) if STAMPS and "c1" in STAMPS else None


def p1_q(k):
    def rd(j):
        base, off, st = p1_w(j, 0)
        return [(f"ds_read_b64_tr_b16 {a_(4*(j % 6) + 2*rd, 2)}, {v(base)} offset:{off + rd*st}", f"q{j}") for rd in range(2)]
    for j in range(32 + 4):
        if j < 32:
            for t, tg in rd(j):
                k.I(t, tag=tg)
        q = j - 4
        if q >= 0:
            k.wait_lg(f"q{q}")
            k.mfma32(v(AQ, 16), a_(4 * (q % 6), 4), v(X0 + 4 * q, 4), "0" if q == 0 else None)


def softmax16(k, P, E, outp, outn, t, filler=None, every=4):
    mx, mn = t, t + 2
    k.I(f"v_max3_f32 {v(mx)}, {v(P)}, {v(P+1)}, {v(P+2)}")
    k.I(f"v_min3_f32 {v(mn)}, {v(P)}, {v(P+1)}, {v(P+2)}")
    for i in range(3, 15, 2):
        k.I(f"v_max3_f32 {v(mx)}, {v(mx)}, {v(P+i)}, {v(P+i+1)}")
        k.I(f"v_min3_f32 {v(mn)}, {v(mn)}, {v(P+i)}, {v(P+i+1)}")
    k.I(f"v_max_f32 {v(mx)}, {v(mx)}, {v(P+15)}")
    k.I(f"v_min_f32 {v(mn)}, {v(mn)}, {v(P+15)}")
    k.I(f"v_mul_f32 {v(mx)}, {s(S_L2E)}, {v(mx)}")
    k.I(f"v_mul_f32 {v(mn)}, {s(S_L2E)}, {v(mn)}")
    for sign, m, out in ((+1, mx, outp), (-1, mn, outn)):
        for i in range(0, 16, 2):
            if sign > 0:
                k.I(f"v_pk_fma_f32 {v(E+i,2)}, {v(P+i,2)}, {s(S_L2E,2)}, {v(m,2)} op_sel_hi:[1,1,0] neg_lo:[0,0,1] neg_hi:[0,0,1]")
            else:
                k.I(f"v_pk_fma_f32 {v(E+i,2)}, {v(P+i,2)}, {s(S_L2E,2)}, {v(m,2)} op_sel_hi:[1,1,0] neg_lo:[1,0,0] neg_hi:[1,0,0]")
        for i in range(16):
            k.I(f"v_exp_f32 {v(E+i)}, {v(E+i)}")
            if filler and i % every == every - 1:
                for tt, tg in filler.pop(0):
                    k.I(tt, tag=tg)
        sm = t + 4
        k.I(f"v_pk_add_f32 {v(sm,2)}, {v(E,2)}, {v(E+2,2)}")
        for i in range(4, 16, 2):
            k.I(f"v_pk_add_f32 {v(sm,2)}, {v(sm,2)}, {v(E+i,2)}")
        k.I(f"v_add_f32 {v(sm)}, {v(sm)}, {v(sm+1)}")
        k.I(f"v_rcp_f32 {v(sm)}, {v(sm)}")
        for i in range(0, 16, 2):
            k.I(f"v_pk_mul_f32 {v(E+i,2)}, {v(E+i,2)}, {v(sm,2)} op_sel_hi:[1,0]")
        for i in range(8):
            k.I(f"v_cvt_pk_bf16_f32 {v(out+i)}, {v(E+2*i)}, {v(E+2*i+1)}")


PHI_A, PHI_B = 224, 228
SEL0, SEL1, SELN0, SELN1 = 232, 236, 240, 244
RV = 224
PK, VP = 144, 152
PP = 160
EE = 192
TMP = 208
FP, FN = 224, 232
TP, TN = 176, 160
KVA, KVB = 192, 240
QP, QN = 96, 104


def p1_sel(k):
    k.I(f"v_bfe_u32 v8, {v(V_LANE)}, 3, 1")
    k.I(f"v_and_b32 v9, 3, {v(V_LANE)}")
    k.I("v_lshl_add_u32 v8, v8, 2, v9")
    k.I("v_and_b32 v9, 1, v8")
    k.I("v_lshlrev_b32 v9, 4, v9")
    k.I("v_mov_b32 v10, 0x3f80")
    k.I("v_lshlrev_b32 v9, v9, v10")
    k.I("v_lshrrev_b32 v8, 1, v8")
    k.I(f"v_bfe_u32 v10, {v(V_LANE)}, 4, 1")
    k.I(f"v_bfe_u32 v11, {v(V_LANE)}, 2, 1")
    k.I(f"v_lshrrev_b32 v12, 5, {v(V_LANE)}")
    k.I("v_xor_b32 v11, v11, v12")
    k.I(f"v_cmp_eq_u32 {s(S_VALID,2)}, 0, v11")
    k.I("v_lshl_add_u32 v13, v10, 2, v8")
    k.I("v_lshl_add_u32 v13, v11, 3, v13")
    for neg, base in ((0, SEL0), (1, SELN0)):
        for a in range(2):
            for d in range(4):
                k.I(f"v_cmp_eq_u32 vcc, {8*neg + 4*a + d}, v13")
                k.I(f"v_cndmask_b32 v14, 0, v9, vcc")
                k.I(f"v_accvgpr_write_b32 {a_(base + 4*a + d)}, v14")


def p1_rv(k):
    k.wait_vm("phi")
    lane_fields(k, s_=8, r_=9, c_=10, nh=11)
    k.I("v_lshlrev_b32 v12, 9, v8")
    k.I("v_lshl_add_u32 v12, v9, 5, v12")
    k.I("v_lshlrev_b32 v13, 1, v11")
    k.I("v_lshrrev_b32 v14, 1, v10")
    k.I("v_add_u32 v13, v13, v14")
    k.I("v_lshl_add_u32 v12, v13, 3, v12")
    k.I(f"v_add_u32 v12, {L_PHI}, v12")
    k.I("v_and_b32 v13, 1, v10")
    k.I("v_cmp_eq_u32 vcc, v13, v8")
    for a in range(2):
        for rd in range(2):
            k.I(f"v_add_u32 v14, {(8*a+4*rd)*32}, v12")
            k.I(f"v_mov_b32 v15, {L_ZERO}")
            k.I("v_cndmask_b32 v14, v15, v14, vcc")
            k.I(f"ds_read_b64_tr_b16 {a_(PHI_A + 4*a + 2*rd, 2)}, v14", tag="phif")
    k.I(f"v_and_b32 v8, 31, {v(V_LANE)}")
    k.I("v_lshlrev_b32 v8, 2, v8")
    k.I(f"s_lshl_b32 {s(S_T0)}, {s(S_W)}, 7")
    k.I(f"s_add_u32 {s(S_T0)}, {s(S_T0)}, {L_RT}")
    k.I(f"v_add_u32 v8, {s(S_T0)}, v8")
    k.I(f"ds_write_b32 v8, {v(V_R)}", tag="rw")
    k.I(f"v_lshrrev_b32 v9, 5, {v(V_LANE)}")
    k.I("v_lshlrev_b32 v9, 4, v9")
    k.I(f"v_add_u32 v9, {s(S_T0)}, v9")
    k.wait_lg("rw")
    for q in range(4):
        k.I(f"ds_read_b128 {v(RV+4*q,4)}, v9 offset:{32*q}", tag="rv")
    k.wait_lg_all()


def p1_epilogue(k):
    k.barrier()
    for i in range(16):
        k.I(f"v_mul_f32 {v(AK+i)}, {v(V_R)}, {v(AK+i)}")
    for i in range(8):
        k.I(f"v_cvt_pk_bf16_f32 {v(PK+i)}, {v(AK+2*i)}, {v(AK+2*i+1)}")
    k.mfma32(v(PP, 16), a_(PHI_A, 4), v(PK, 4), "0")
    k.mfma32(v(PP, 16), a_(PHI_B, 4), v(PK + 4, 4))
    for i in range(16):
        k.I(f"v_mul_f32 {v(AV+i)}, {v(RV+i)}, {v(AV+i)}")
    for i in range(8):
        k.I(f"v_cvt_pk_bf16_f32 {v(VP+i)}, {v(AV+2*i)}, {v(AV+2*i+1)}")
    k.stamp("k proj")
    softmax16(k, PP, EE, FP, FN, TMP, filler=q_image_items(k))
    k.stamp("k softmax")
    k.mfma32(v(TP, 16), v(FP, 4), a_(SEL0, 4), "0")
    k.mfma32(v(TN, 16), v(FN, 4), a_(SELN0, 4), "0")
    k.mfma32(v(TP, 16), v(FP + 4, 4), a_(SEL1, 4))
    k.mfma32(v(TN, 16), v(FN + 4, 4), a_(SELN1, 4))
    for src, pk, z in ((TP, FP, TMP), (TN, FN, TMP + 2)):
        for i in range(8):
            k.I(f"v_cvt_pk_bf16_f32 {v(pk+i)}, {v(src+2*i)}, {v(src+2*i+1)}")
        if src == TP:
            k.mfma32(v(KVA, 16), v(FP, 4), v(VP, 4), "0")
            k.mfma32(v(KVA, 16), v(FP + 4, 4), v(VP + 4, 4))
        else:
            k.mfma32(v(KVB, 16), v(FN, 4), v(VP, 4), "0")
            k.mfma32(v(KVB, 16), v(FN + 4, 4), v(VP + 4, 4))
    for src, z in ((TP, TMP), (TN, TMP + 2)):
        k.I(f"v_add_f32 {v(z)}, {v(src)}, {v(src+1)}")
        k.I(f"v_add_f32 {v(z+1)}, {v(src+2)}, {v(src+3)}")
        for i in range(4, 16, 2):
            k.I(f"v_add_f32 {v(z)}, {v(z)}, {v(src+i)}")
            k.I(f"v_add_f32 {v(z+1)}, {v(z+1)}, {v(src+i+1)}")
    k.I(f"v_add_f32 {v(TMP+4)}, {v(TMP)}, {v(TMP+1)}")
    k.I(f"v_add_f32 {v(TMP+5)}, {v(TMP+2)}, {v(TMP+3)}")
    for i in range(16):
        k.I(f"v_cndmask_b32 {v(KVA+i)}, {v(KVB+i)}, {v(KVA+i)}, {s(S_VALID,2)}")
    k.stamp("kv mfma")
    k.I(f"s_mul_i32 {s(S_T0)}, {s(S_W)}, 4608")
    k.I(f"s_add_u32 {s(S_T0)}, {s(S_T0)}, {L_RED}")
    k.I(f"v_add_u32 v8, {s(S_T0)}, {v(V_L16)}")
    for q in range(4):
        k.I(f"ds_write_b128 v8, {v(KVA+4*q,4)} offset:{q*1024}")
    k.I(f"v_lshlrev_b32 v9, 3, {v(V_LANE)}")
    k.I(f"v_add_u32 v9, {s(S_T0)}, v9")
    k.I(f"ds_write_b64 v9, {v(TMP+4,2)} offset:4096")
    k.wait_lg_all()
    k.barrier()
    k.stamp("red barrier")
    k.I(f"s_lshl_b32 {s(S_T0)}, {s(S_W)}, 10")
    k.I(f"s_add_u32 {s(S_T0)}, {s(S_T0)}, {L_RED}")
    k.I(f"v_add_u32 v8, {s(S_T0)}, {v(V_L16)}")
    for ww in range(4):
        k.I(f"ds_read_b128 {v(KVA+4*ww,4)}, v8 offset:{ww*4608}")
    k.I(f"v_lshlrev_b32 v9, 3, {v(V_LANE)}")
    k.I(f"v_add_u32 v9, {L_RED + 4096}, v9")
    for ww in range(4):
        k.I(f"ds_read_b64 {v(KVB+2*ww,2)}, v9 offset:{ww*4608}")
    k.wait_lg_all()
    for h in (0, 2):
        k.I(f"v_pk_add_f32 {v(KVA+h,2)}, {v(KVA+h,2)}, {v(KVA+4+h,2)}")
        k.I(f"v_pk_add_f32 {v(KVA+8+h,2)}, {v(KVA+8+h,2)}, {v(KVA+12+h,2)}")
        k.I(f"v_pk_add_f32 {v(KVA+h,2)}, {v(KVA+h,2)}, {v(KVA+8+h,2)}")
    k.I(f"v_cvt_pk_bf16_f32 {v(KVA)}, {v(KVA)}, {v(KVA+1)}")
    k.I(f"v_cvt_pk_bf16_f32 {v(KVA+1)}, {v(KVA+2)}, {v(KVA+3)}")
    k.I(f"v_pk_add_f32 {v(KVB,2)}, {v(KVB,2)}, {v(KVB+2,2)}")
    k.I(f"v_pk_add_f32 {v(KVB+4,2)}, {v(KVB+4,2)}, {v(KVB+6,2)}")
    k.I(f"v_pk_add_f32 {v(KVB,2)}, {v(KVB,2)}, {v(KVB+4,2)}")
    k.I(f"v_cvt_pk_bf16_f32 {v(KVB)}, {v(KVB)}, {v(KVB+1)}")
    k.I(f"s_lshl_b32 {s(S_T0)}, {s(S_HP)}, 4")
    k.I(f"s_add_u32 {s(S_T0)}, {s(S_T0)}, {s(S_M)}")
    k.I(f"s_lshl_b32 {s(S_T1)}, {s(S_T0)}, 12")
    k.I(f"s_add_u32 {s(S_T1)}, {s(S_T1)}, {WS_KVP}")
    k.I(f"s_lshl_b32 {s(S_T2)}, {s(S_W)}, 9")
    k.I(f"s_add_u32 {s(S_T2)}, {s(S_T2)}, {s(S_T1)}")
    k.I(f"v_lshlrev_b32 v9, 3, {v(V_LANE)}")
    k.I(f"v_add_u32 v9, {s(S_T2)}, v9")
    k.I(f"buffer_store_dwordx2 {v(KVA,2)}, v9, {srd(S_WS)}, 0 offen sc1", tag="kvst")
    w0 = k.newlabel("kvz")
    k.wave_is(0, w0)
    k.cond_begin()
    k.I(f"v_lshlrev_b32 v9, 2, {v(V_LANE)}")
    k.I(f"v_add_u32 v9, {s(S_T1)}, v9")
    k.I(f"buffer_store_dword {v(KVB)}, v9, {srd(S_WS)}, 0 offen offset:2048 sc1")
    k.cond_end()
    k.label(w0)
    k.I(f"s_lshl_b32 {s(S_T2)}, {s(S_T0)}, 7")
    k.I(f"s_add_u32 {s(S_T2)}, {s(S_T2)}, {WS_FKV}")
    k.wait_vm_all()
    k.signal(S_T2, "fkv")
    k.stamp("kv published")
    modn_issue(k)
    p1_q(k)
    k.stamp("q gemm")
    for i in range(16):
        k.I(f"v_mul_f32 {v(AQ+i)}, {v(V_R)}, {v(AQ+i)}")
    for i in range(8):
        k.I(f"v_cvt_pk_bf16_f32 {v(160+i)}, {v(AQ+2*i)}, {v(AQ+2*i+1)}")
    k.mfma32(v(176, 16), a_(PHI_A, 4), v(160, 4), "0")
    k.mfma32(v(176, 16), a_(PHI_B, 4), v(164, 4))
    quad_ids(k)
    softmax16(k, 176, EE, QP, QN, TMP, filler=wo_items(k), every=2)
    k.stamp("q softmax")


S_UB = 101


S_UBO, S_MNO = 90, 91


def p1_side(k, regs):
    ra, rb, rc, rt = regs
    touch_setup(k, ra, rb, rc, rt)
    k.I(f"v_and_b32 {v(rc)}, 31, {v(V_LANE)}")
    k.I(f"v_mul_u32_u24 {v(rc)}, 6144, {v(rc)}")
    k.I(f"s_lshr_b32 {s(S_T0)}, {s(S_G)}, 2")
    k.I(f"s_lshl_b32 {s(S_T0)}, {s(S_T0)}, 7")
    k.I(f"s_and_b32 {s(S_T1)}, {s(S_G)}, 3")
    k.I(f"s_lshl_b32 {s(S_T1)}, {s(S_T1)}, 2")
    k.I(f"s_add_u32 {s(S_T1)}, {s(S_T1)}, {s(S_W)}")
    k.I(f"s_mul_i32 {s(S_T1)}, {s(S_T1)}, {32*6144}")
    k.I(f"s_add_u32 {s(S_MNO)}, {s(S_T0)}, {s(S_T1)}")
    k.I("s_sub_u32 s55, s2, 64")
    k.I("s_cmp_ge_u32 s55, 128")
    k.I(f"s_cselect_b32 {s(S_MNO)}, 0x7ff00000, {s(S_MNO)}")
    items = []
    if OPT["touch"]:
        if OPT.get("tmn", 1):
            items.append([(f"buffer_load_dword v5, {v(rc)}, {srd(S_WMOD)}, {s(S_MNO)} offen{' nt' if OPT.get('tmn_nt', 1) else ''}", "t")])
        for r, a in ((S_WO, ra), (S_WG, rb), (S_WU, rb)):
            items.append([(f"buffer_load_dword v5, {v(a)}, {srd(r)}, 0 offen", "t")])
        if OPT.get("twd", 0):
            items.append([(f"s_lshl_b32 {s(S_T0)}, s2, 2", None), (f"s_add_u32 {s(S_T0)}, {s(S_T0)}, {s(S_W)}", None),
                          (f"s_mul_i32 {s(S_T0)}, {s(S_T0)}, {14*128}", None), (f"v_min_u32 {v(rt)}, 13, {v(V_LANE)}", None),
                          (f"v_lshlrev_b32 {v(rt)}, 7, {v(rt)}", None),
                          (f"buffer_load_dword v5, {v(rt)}, {srd(S_WD)}, {s(S_T0)} offen", "t")])
    return items


def q_image_items(k):
    k.I(f"s_mul_i32 {s(S_T3)}, {s(S_W)}, {128*3072}")
    k.I(f"s_lshl_b32 {s(S_T4)}, {s(S_W)}, 13")
    k.I(f"s_add_u32 {s(S_T4)}, {s(S_T4)}, {L_QI}")
    return [[(f"s_add_u32 {s(S_OFF)}, {s(S_T3)}, {n*16*3072}", None), (f"s_add_u32 m0, {s(S_T4)}, {n*1024}", None),
             (f"buffer_load_dwordx4 v6, {srd(S_WQKV)}, {s(S_OFF)} offen lds", "wq")] for n in range(8)]


def modn_issue(k):
    skip = k.newlabel("mn_i")
    k.I("s_sub_u32 s55, s2, 64")
    k.I("s_cmp_ge_u32 s55, 128")
    k.I(f"s_cbranch_scc1 {skip}")
    k.cond_begin()
    wm_voff(k, 7, 8)
    k.I(f"s_mul_i32 {s(S_OFF)}, {s(S_W)}, {4*196608}")
    k.I(f"s_lshl_b32 {s(S_T0)}, {s(S_W)}, 12")
    k.I(f"s_add_u32 m0, {s(S_T0)}, {L_WMN}")
    for n in range(4):
        k.I(f"buffer_load_dwordx4 v7, {srd(S_WMOD)}, {s(S_OFF)} offen lds")
        if n < 3:
            k.I(f"s_add_u32 m0, m0, 1024")
            k.I(f"s_add_u32 {s(S_OFF)}, {s(S_OFF)}, 196608")
    k.cond_end()
    k.label(skip)


def ub_compute(k):
    skip = k.newlabel("ubc_skip")
    k.I(f"s_cmp_ge_u32 {s(S_I)}, 28")
    k.I(f"s_cbranch_scc1 {skip}")
    k.wave_is(3, skip)
    k.cond_begin()
    S_JOB, S_KH, S_BLK = S_T2, S_T3, S_T4
    k.I(f"s_lshr_b32 {s(S_T0)}, {s(S_XCD)}, 1")
    k.I(f"s_mul_i32 {s(S_JOB)}, {s(S_T0)}, 28")
    k.I(f"s_add_u32 {s(S_JOB)}, {s(S_JOB)}, {s(S_I)}")
    k.I(f"s_cmp_ge_u32 {s(S_JOB)}, 56")
    k.I(f"s_cselect_b32 {s(S_KH)}, 1, 0")
    k.I(f"s_mul_i32 {s(S_T0)}, {s(S_KH)}, 56")
    k.I(f"s_sub_u32 {s(S_BLK)}, {s(S_JOB)}, {s(S_T0)}")
    k.I(f"s_cmp_lt_u32 {s(S_BLK)}, 28")
    for i in range(4):
        k.I(f"s_cselect_b32 {s(S_UBS+i)}, {s(S_WG+i)}, {s(S_WU+i)}")
    k.I(f"s_cselect_b32 {s(S_T0)}, 0, 28")
    k.I(f"s_cselect_b32 {s(S_T1)}, 0, 56")
    k.I(f"s_sub_u32 {s(S_BLK)}, {s(S_BLK)}, {s(S_T0)}")
    k.I(f"s_and_b32 {s(S_T0)}, {s(S_XCD)}, 1")
    k.I(f"s_mul_i32 {s(S_T0)}, {s(S_T0)}, 28")
    k.I(f"s_add_u32 {s(S_BLK)}, {s(S_BLK)}, {s(S_T0)}")
    k.I(f"s_add_u32 {s(S_JOB)}, {s(S_BLK)}, {s(S_T1)}")
    k.I(f"v_lshrrev_b32 v112, 2, {v(V_LANE)}")
    k.I("v_mul_u32_u24 v112, 3584, v112")
    k.I(f"v_and_b32 v113, 3, {v(V_LANE)}")
    k.I("v_lshl_add_u32 v112, v113, 4, v112")
    k.I(f"s_lshl_b32 {s(S_T0)}, {s(S_BLK)}, 6")
    k.I(f"v_add_u32 v112, {s(S_T0)}, v112")
    k.I(f"s_mul_i32 {s(S_OFF)}, {s(S_KH)}, {256*3584}")
    k.I(f"s_mov_b32 m0, {L_UB}")
    for n in range(16):
        k.dma(112, S_UBS, s(S_OFF))
        if n < 15:
            k.I("s_add_u32 m0, m0, 1024")
            k.I(f"s_add_u32 {s(S_OFF)}, {s(S_OFF)}, {16*3584}")
    k.I(f"s_lshl_b32 {s(S_T0)}, {s(S_KH)}, 10")
    k.I(f"v_add_u32 v114, {s(S_T0)}, {v(V_L16)}")
    k.I(f"v_add_u32 v114, {WS_MODG + 768*8}, v114")
    k.load_granules_checked([116, 120], [114] * 2, "modU", width=4, tagpos=(1, 3), imm=[0, 2048])
    for i, r in enumerate((120, 122)):
        k.unpack(124, 125, r)
        k.I("v_add_f32 v124, 1.0, v124")
        k.I("v_add_f32 v125, 1.0, v125")
        k.I(f"v_cvt_pk_bf16_f32 {v(128+i)}, v124, v125")
    k.I("v_mov_b32 v130, v116")
    k.I("v_mov_b32 v131, v118")
    k.I("v_mov_b32 v132, 0")
    k.I("v_mov_b32 v133, 0")
    k.I(f"v_lshlrev_b32 v113, 3, {v(V_LANE)}")
    k.I(f"v_add_u32 v113, {L_CS}, v113")
    k.I("ds_write_b64 v113, v[128:129]")
    k.I("ds_write_b64 v113, v[130:131] offset:512")
    k.I("ds_write_b64 v113, v[132:133] offset:1024")
    k.I(f"v_and_b32 v113, 31, {v(V_LANE)}")
    k.I("v_min_u32 v113, 2, v113")
    k.I("v_lshlrev_b32 v113, 9, v113")
    k.I(f"v_lshrrev_b32 v114, 5, {v(V_LANE)}")
    k.I("v_lshl_add_u32 v113, v114, 4, v113")
    k.I(f"v_add_u32 v113, {L_CS}, v113")
    lane_fields(k, s_=114, r_=115, c_=116, nh=117)
    k.I("v_lshl_add_u32 v114, v114, 3, v115")
    k.I("v_lshlrev_b32 v114, 6, v114")
    k.I("v_lshl_add_u32 v114, v117, 5, v114")
    k.I("v_lshl_add_u32 v114, v116, 3, v114")
    k.I(f"v_add_u32 v114, {L_UB}, v114")
    k.I("s_waitcnt vmcnt(0) lgkmcnt(0)")
    for j in range(16 + 2):
        if j < 16:
            b = 116 + 8 * (j & 3)
            k.I(f"ds_read_b64_tr_b16 {v(b+4,2)}, v114 offset:{j*1024}")
            k.I(f"ds_read_b64_tr_b16 {v(b+6,2)}, v114 offset:{j*1024 + 256}")
            k.I(f"ds_read_b128 {v(b,4)}, v113 offset:{j*32}")
        if j >= 2:
            k.I(f"s_waitcnt lgkmcnt({6 if j < 16 else (3 if j == 16 else 0)})")
            bb = 116 + 8 * ((j - 2) & 3)
            k.mfma32(v(152, 16), v(bb, 4), v(bb + 4, 4), "0" if j == 2 else None)
    k.I("v_cvt_pk_bf16_f32 v168, v152, v153")
    k.unpack(170, 171, 168)
    k.I("v_sub_f32 v172, v152, v170")
    k.I("v_sub_f32 v173, v153, v171")
    k.I("v_cvt_pk_bf16_f32 v169, v172, v173")
    k.I(f"s_mov_b32 {s(S_T0)}, 0x05040100")
    k.I(f"s_mov_b32 {s(S_T1)}, 0x07060302")
    k.I(f"v_perm_b32 v176, v169, v168, {s(S_T0)}")
    k.I("v_mov_b32 v177, v168")
    k.I(f"v_perm_b32 v178, v168, v169, {s(S_T1)}")
    k.I(f"v_mov_b32 v179, {v(V_TAG)}")
    k.I(f"s_mul_i32 {s(S_T0)}, {s(S_KH)}, {3584*16}")
    k.I(f"s_lshl_b32 {s(S_T1)}, {s(S_JOB)}, 9")
    k.I(f"s_add_u32 {s(S_T0)}, {s(S_T0)}, {s(S_T1)}")
    k.I(f"s_add_u32 {s(S_T0)}, {s(S_T0)}, {WS_WEXT}")
    k.I(f"v_add_u32 v113, {s(S_T0)}, {v(V_L16)}")
    k.I("s_mov_b32 exec_hi, 0")
    k.I(f"buffer_store_dwordx4 v[176:179], v113, {srd(S_WS)}, 0 offen sc1")
    k.I("s_mov_b64 exec, -1")
    k.cond_end()
    k.label(skip)


S_UBS = 12


def touch_setup(k, ra, rb, rc, rt):
    k.I(f"v_and_b32 {v(ra)}, 31, {v(V_LANE)}")
    k.I(f"v_lshlrev_b32 {v(ra)}, 7, {v(ra)}")
    k.I(f"s_lshl_b32 {s(S_T0)}, {s(S_I)}, 2")
    k.I(f"s_add_u32 {s(S_T0)}, {s(S_T0)}, {s(S_W)}")
    k.I(f"s_lshl_b32 {s(S_T1)}, {s(S_T0)}, 12")
    k.I(f"v_add_u32 {v(ra)}, {s(S_T1)}, {v(ra)}")
    k.I(f"v_min_u32 {v(rb)}, 55, {v(V_LANE)}")
    k.I(f"v_mul_u32_u24 {v(rc)}, 4682, {v(rb)}")
    k.I(f"v_lshrrev_b32 {v(rc)}, 16, {v(rc)}")
    k.I(f"v_mul_u32_u24 {v(rt)}, 14, {v(rc)}")
    k.I(f"v_sub_u32 {v(rb)}, {v(rb)}, {v(rt)}")
    k.I(f"v_lshlrev_b32 {v(rb)}, 7, {v(rb)}")
    k.I(f"v_mul_u32_u24 {v(rc)}, 3584, {v(rc)}")
    k.I(f"v_add_u32 {v(rb)}, {v(rb)}, {v(rc)}")
    k.I(f"s_mul_i32 {s(S_T0)}, {s(S_T0)}, {4*3584}")
    k.I(f"s_and_b32 {s(S_T1)}, {s(S_XCD)}, 1")
    k.I(f"s_mul_i32 {s(S_T1)}, {s(S_T1)}, 1792")
    k.I(f"s_add_u32 {s(S_T0)}, {s(S_T0)}, {s(S_T1)}")
    k.I(f"v_add_u32 {v(rb)}, {s(S_T0)}, {v(rb)}")


def wo_items(k):
    k.I(f"s_and_b32 {s(S_T0)}, {s(S_J2)}, 7")
    k.I(f"s_lshl_b32 {s(S_T0)}, {s(S_T0)}, 7")
    k.I(f"v_lshrrev_b32 v8, 3, {v(V_LANE)}")
    k.I("v_lshlrev_b32 v8, 10, v8")
    k.I(f"v_and_b32 v9, 7, {v(V_LANE)}")
    k.I(f"v_bfe_u32 v10, {v(V_LANE)}, 4, 1")
    k.I("v_lshlrev_b32 v10, 2, v10")
    k.I("v_xor_b32 v9, v9, v10")
    k.I("v_lshl_add_u32 v8, v9, 4, v8")
    k.I(f"v_add_u32 v8, {s(S_T0)}, v8")
    k.I(f"s_lshl_b32 {s(S_T3)}, {s(S_W)}, 17")
    k.I(f"s_lshl_b32 {s(S_T4)}, {s(S_W)}, 14")
    if L_WO:
        k.I(f"s_add_u32 {s(S_T4)}, {s(S_T4)}, {L_WO}")
    return [[(f"s_add_u32 {s(S_OFF)}, {s(S_T3)}, {n*8192}", None), (f"s_add_u32 m0, {s(S_T4)}, {n*1024}", None),
             (f"buffer_load_dwordx4 v8, {srd(S_WO)}, {s(S_OFF)} offen lds", "wo")] for n in range(16)]


def swz128_base(k, dst, cbk_sreg=None, cbk_imm=None, s_mul=16):
    lane_fields(k, s_=8, r_=9, c_=10, nh=11)
    lbase_bytes(k, 12, 11, 10, 13, 14)
    k.I(f"v_mul_u32_u24 v8, {s_mul}, v8")
    k.I("v_add_u32 v8, v8, v9")
    k.I("v_lshlrev_b32 v8, 7, v8")
    k.I("v_lshrrev_b32 v9, 1, v9")
    if cbk_sreg is not None:
        k.I(f"v_xor_b32 v9, {s(cbk_sreg)}, v9")
    elif cbk_imm:
        k.I(f"v_xor_b32 v9, {cbk_imm}, v9")
    k.I("v_lshl_add_u32 v8, v9, 6, v8")
    k.I(f"v_add_u32 {v(dst)}, v8, v12")


def kv_combine_and_o(k):
    k.I(f"s_lshl_b32 {s(S_T0)}, {s(S_HP)}, 11")
    k.I(f"s_add_u32 {s(S_T0)}, {s(S_T0)}, {WS_FKV}")
    k.poll_flags(S_T0, 16, "pkv")
    k.stamp("kv flags seen")
    k.I(f"s_lshl_b32 {s(S_T1)}, {s(S_HP)}, 16")
    k.I(f"s_add_u32 {s(S_T1)}, {s(S_T1)}, {WS_KVP}")
    k.I(f"s_lshl_b32 {s(S_T2)}, {s(S_W)}, 9")
    k.I(f"s_add_u32 {s(S_T2)}, {s(S_T2)}, {s(S_T1)}")
    k.I(f"v_lshlrev_b32 v8, 3, {v(V_LANE)}")
    k.I(f"s_mov_b32 {s(S_OFF)}, {s(S_T2)}")
    for mm in range(16):
        k.I(f"buffer_load_dwordx2 {v(112+2*mm,2)}, v8, {srd(S_WS)}, {s(S_OFF)} offen sc1", tag="kvp")
        k.I(f"s_add_u32 {s(S_OFF)}, {s(S_OFF)}, 4096")
    k.I(f"v_lshlrev_b32 v9, 2, {v(V_LANE)}")
    k.I(f"s_add_u32 {s(S_OFF)}, {s(S_T1)}, 2048")
    for mm in range(16):
        k.I(f"buffer_load_dword {v(144+mm)}, v9, {srd(S_WS)}, {s(S_OFF)} offen sc1", tag="kvz")
        k.I(f"s_add_u32 {s(S_OFF)}, {s(S_OFF)}, 4096")
    k.stamp("kvp issued")
    k.I("v_mov_b32 v10, 0x3f80")
    k.I("v_mov_b32 v11, 0x3f800000")
    for r in range(160, 166):
        k.I(f"v_mov_b32 {v(r)}, 0")
    k.wait_vm("kvp")
    k.stamp("kvp landed")
    for mm in range(16):
        for d in range(2):
            k.I(f"v_dot2c_f32_bf16 {v(160+2*d)}, {v(112+2*mm+d)}, v10")
            k.I(f"v_dot2c_f32_bf16 {v(161+2*d)}, {v(112+2*mm+d)}, v11")
    k.wait_vm("kvz")
    for mm in range(16):
        k.I(f"v_dot2c_f32_bf16 v164, {v(144+mm)}, v10")
        k.I(f"v_dot2c_f32_bf16 v165, {v(144+mm)}, v11")
    k.I("v_cvt_pk_bf16_f32 v160, v160, v161")
    k.I("v_cvt_pk_bf16_f32 v161, v162, v163")
    k.I(f"v_lshlrev_b32 v8, 5, {v(V_LANE)}")
    k.I(f"s_lshl_b32 {s(S_T0)}, {s(S_W)}, 3")
    k.I(f"s_add_u32 {s(S_T0)}, {s(S_T0)}, {L_KVF}")
    k.I(f"v_add_u32 v8, {s(S_T0)}, v8")
    k.I("ds_write_b64 v8, v[160:161]")
    k.half_total(164, 166)
    k.half_total(165, 166)
    k.I("v_cvt_pk_bf16_f32 v164, v164, v165")
    k.I(f"v_bfe_u32 v8, {v(V_LANE)}, 2, 1")
    k.I(f"v_bfe_u32 v9, {v(V_LANE)}, 3, 2")
    k.I(f"v_and_b32 v10, 3, {v(V_LANE)}")
    k.I("v_lshl_add_u32 v9, v9, 2, v10")
    k.I("v_lshlrev_b32 v9, 1, v9")
    k.I("v_lshl_add_u32 v10, v8, 5, v9")
    k.I(f"v_add_u32 v10, {L_Z}, v10")
    k.I("v_xor_b32 v8, 1, v8")
    k.I("v_lshl_add_u32 v11, v8, 5, v9")
    k.I(f"v_add_u32 v11, {L_Z + 64}, v11")
    w0 = k.newlabel("zw")
    k.wave_is(0, w0)
    k.cond_begin()
    k.I("ds_write_b16 v10, v164")
    k.I("ds_write_b16_d16_hi v11, v164")
    k.cond_end()
    k.label(w0)
    k.wait_lg_all()
    k.barrier()
    k.stamp("kvf barrier")
    k.I(f"v_lshlrev_b32 v8, 5, {v(V_LANE)}")
    k.I(f"v_add_u32 v8, {L_KVF}, v8")
    k.I(f"v_xor_b32 v9, 32, {v(V_LANE)}")
    k.I("v_lshlrev_b32 v9, 5, v9")
    k.I(f"v_add_u32 v9, {L_KVF}, v9")
    k.I(f"v_mov_b32 v10, {L_ZERO}")
    k.I(f"v_cndmask_b32 v8, v10, v8, {s(S_VALID,2)}")
    k.I(f"v_cndmask_b32 v9, v10, v9, {s(S_VALID,2)}")
    k.I(f"v_lshrrev_b32 v10, 5, {v(V_LANE)}")
    k.I("v_lshlrev_b32 v10, 5, v10")
    k.I(f"v_add_u32 v10, {L_Z}, v10")
    PF, NF, ZP, ZN = 112, 120, 128, 136
    k.I(f"ds_read_b128 {v(PF,4)}, v8")
    k.I(f"ds_read_b128 {v(PF+4,4)}, v8 offset:16")
    k.I(f"ds_read_b128 {v(NF,4)}, v9")
    k.I(f"ds_read_b128 {v(NF+4,4)}, v9 offset:16")
    k.I(f"ds_read_b128 {v(ZP,4)}, v10")
    k.I(f"ds_read_b128 {v(ZP+4,4)}, v10 offset:16")
    k.I(f"ds_read_b128 {v(ZN,4)}, v10 offset:64")
    k.I(f"ds_read_b128 {v(ZN+4,4)}, v10 offset:80")
    k.wait_lg_all()
    NUM = 144
    k.mfma32(v(NUM, 16), v(PF, 4), v(QP, 4), "0")
    k.mfma32(v(NUM, 16), v(PF + 4, 4), v(QP + 4, 4))
    k.mfma32(v(NUM, 16), v(NF, 4), v(QN, 4))
    k.mfma32(v(NUM, 16), v(NF + 4, 4), v(QN + 4, 4))
    k.I("v_mov_b32 v10, 0")
    k.I("v_mov_b32 v11, 0")
    for i in range(8):
        k.I(f"v_dot2c_f32_bf16 v10, {v(QP+i)}, {v(ZP+i)}")
        k.I(f"v_dot2c_f32_bf16 v11, {v(QN+i)}, {v(ZN+i)}")
    k.I("v_add_f32 v10, v10, v11")
    k.I("v_add_f32 v10, 0x358637bd, v10")
    k.I("v_rcp_f32 v10, v10")
    for i in range(0, 16, 2):
        k.I(f"v_pk_mul_f32 {v(NUM+i,2)}, {v(NUM+i,2)}, v[10:11] op_sel_hi:[1,0]")
    for i in range(8):
        k.I(f"v_cvt_pk_bf16_f32 {v(160+i)}, {v(NUM+2*i)}, {v(NUM+2*i+1)}")
    k.stamp("o computed")
    k.I(f"s_lshl_b32 {s(S_T0)}, {s(S_M)}, 2")
    k.I(f"s_add_u32 {s(S_T0)}, {s(S_T0)}, {s(S_W)}")
    k.I(f"s_lshl_b32 {s(S_T0)}, {s(S_T0)}, 15")
    k.I(f"s_lshl_b32 {s(S_T1)}, {s(S_HP)}, 11")
    k.I(f"s_add_u32 {s(S_T0)}, {s(S_T0)}, {s(S_T1)}")
    k.I(f"s_add_u32 {s(S_T0)}, {s(S_T0)}, {WS_O}")
    k.I(f"v_add_u32 v8, {s(S_T0)}, {v(V_L16)}")
    k.I(f"buffer_store_dwordx4 v[160:163], v8, {srd(S_WS)}, 0 offen sc1")
    k.I(f"buffer_store_dwordx4 v[164:167], v8, {srd(S_WS)}, 0 offen offset:1024 sc1")
    k.wait_vm_all()
    k.I(f"s_lshl_b32 {s(S_T0)}, {s(S_M)}, 4")
    k.I(f"s_add_u32 {s(S_T0)}, {s(S_T0)}, {s(S_J)}")
    k.I(f"s_lshl_b32 {s(S_T0)}, {s(S_T0)}, 7")
    k.I(f"s_add_u32 {s(S_T0)}, {s(S_T0)}, {WS_FO}")
    k.signal(S_T0, "fo")
    k.stamp("o published")


S_TBL, S_CBK, S_TB, S_B32 = 96, 97, 98, 99


def quad_ids(k):
    k.I(f"s_and_b32 {s(S_TBL)}, {s(S_W)}, 1")
    k.I(f"s_lshr_b32 {s(S_CBK)}, {s(S_W)}, 1")
    k.I(f"s_lshr_b32 {s(S_T0)}, {s(S_J2)}, 3")
    k.I(f"s_lshl_b32 {s(S_T0)}, {s(S_T0)}, 1")
    k.I(f"s_lshl_b32 {s(S_TB)}, {s(S_M2)}, 2")
    k.I(f"s_add_u32 {s(S_TB)}, {s(S_TB)}, {s(S_T0)}")
    k.I(f"s_add_u32 {s(S_TB)}, {s(S_TB)}, {s(S_TBL)}")
    k.I(f"s_and_b32 {s(S_B32)}, {s(S_J2)}, 7")
    k.I(f"s_lshl_b32 {s(S_B32)}, {s(S_B32)}, 1")
    k.I(f"s_add_u32 {s(S_B32)}, {s(S_B32)}, {s(S_CBK)}")


def mod16(k, dst_regs, gran0, stem):
    k.I(f"v_lshrrev_b32 v8, 5, {v(V_LANE)}")
    k.I("v_lshlrev_b32 v8, 6, v8")
    k.I(f"s_lshl_b32 {s(S_T0)}, {s(S_B32)}, 7")
    k.I(f"s_add_u32 {s(S_T0)}, {s(S_T0)}, {WS_MODG + gran0*8}")
    k.I(f"v_add_u32 v8, {s(S_T0)}, v8")
    k.load_granules_checked([dst_regs + 4 * i for i in range(4)], [8] * 4, stem, width=4, tagpos=(1, 3), imm=[0, 16, 32, 48])


VD = 4
S_M0, S_SO = 90, 91


def ring_setup(k):
    k.I(f"s_and_b32 {s(S_T0)}, {s(S_W)}, 1")
    k.I(f"s_cmp_eq_u32 {s(S_T0)}, 0")
    for i in range(4):
        k.I(f"s_cselect_b32 {s(S_SEL+i)}, {s(S_WG+i)}, {s(S_WU+i)}")
    for n in range(7):
        k.I(f"v_add_u32 v14, {64*n}, {v(V_LANE)}")
        k.I("v_mul_u32_u24 v15, 4682, v14")
        k.I("v_lshrrev_b32 v15, 16, v15")
        k.I(f"v_mul_u32_u24 {v(VD+n)}, 14, v15")
        k.I(f"v_sub_u32 v14, v14, {v(VD+n)}")
        k.I("v_mul_u32_u24 v15, 3584, v15")
        k.I("v_lshl_add_u32 v15, v14, 4, v15")
        k.I(f"s_mul_i32 {s(S_T0)}, {s(S_J)}, 224")
        k.I(f"v_add_u32 {v(VD+n)}, {s(S_T0)}, v15")
    for z in range(448):
        assert (z * 4682) >> 16 == z // 14
    k.I(f"s_lshr_b32 {s(S_T0)}, {s(S_W)}, 1")
    k.I(f"s_mul_i32 {s(S_M0)}, {s(S_T0)}, {SLAB}")
    k.I(f"s_and_b32 {s(S_T1)}, {s(S_W)}, 1")
    k.I(f"s_mul_i32 {s(S_T1)}, {s(S_T1)}, {UOFF}")
    k.I(f"s_add_u32 {s(S_M0)}, {s(S_M0)}, {s(S_T1)}")
    k.I(f"s_mul_i32 {s(S_SO)}, {s(S_T0)}, {32*3584}")


def ring_pair(k, P, as_list=False):
    out = [(f"s_add_u32 m0, {s(S_M0)}, {(P % 5) * 2 * SLAB}", None),
           (f"s_add_u32 {s(S_OFF)}, {s(S_SO)}, {P * 2 * 32 * 3584}", None)]
    for n in range(7):
        out.append((f"buffer_load_dwordx4 {v(VD+n)}, {srd(S_SEL)}, {s(S_OFF)} offen lds", f"W{P}"))
        if n < 6:
            out.append(("s_add_u32 m0, m0, 1024", None))
    if as_list:
        return out
    for t, tg in out:
        k.I(t, tag=tg)


def p2(k):
    XR, GA, CBR = 64, 72, 88
    k.I(f"v_and_b32 v12, 31, {v(V_LANE)}")
    k.I("v_lshlrev_b32 v12, 10, v12")
    k.I(f"v_lshrrev_b32 v13, 5, {v(V_LANE)}")
    k.I("v_lshl_add_u32 v12, v13, 5, v12")
    k.I(f"s_lshl_b32 {s(S_T0)}, {s(S_TB)}, 15")
    k.I(f"s_lshl_b32 {s(S_T1)}, {s(S_B32)}, 6")
    k.I(f"s_add_u32 {s(S_T0)}, {s(S_T0)}, {s(S_T1)}")
    k.I(f"v_add_u32 v12, {s(S_T0)}, v12")
    k.I(f"buffer_load_dwordx4 {v(XR,4)}, v12, {srd(S_X)}, 0 offen", tag="xr")
    k.I(f"buffer_load_dwordx4 {v(XR+4,4)}, v12, {srd(S_X)}, 0 offen offset:16", tag="xr")
    swz128_base(k, 15, cbk_sreg=S_CBK)
    for kap in range(32):
        hp, a = kap >> 1, kap & 1
        for rd in range(2):
            k.I(f"ds_read_b64_tr_b16 {a_(4*kap + 2*rd, 2)}, v15 offset:{L_WO + (32*hp + 8*a + 4*rd)*128}", tag="wof")
        if kap % 4 == 3:
            k.I("s_waitcnt lgkmcnt(6)")
    k.wait_lg_all()
    k.stamp("wof read")
    modn_compute(k)
    k.stamp("modn")
    ring_setup(k)
    k.I(f"v_lshrrev_b32 v13, 5, {v(V_LANE)}")
    k.I("v_lshlrev_b32 v13, 6, v13")
    k.I(f"s_lshl_b32 {s(S_T0)}, {s(S_B32)}, 7")
    k.I(f"s_add_u32 {s(S_T0)}, {s(S_T0)}, {WS_MODG}")
    k.I(f"v_add_u32 v13, {s(S_T0)}, v13")
    k.I(f"v_add_u32 v12, {512*8}, v13")
    k.I(f"v_add_u32 v13, {1024*8}, v13")
    gr = ([GA + 4 * i for i in range(4)] + [CBR + 4 * i for i in range(4)], [12] * 4 + [13] * 4)
    gimm = [0, 16, 32, 48] * 2
    k.I(f"s_lshl_b32 {s(S_T0)}, {s(S_M2)}, 11")
    k.I(f"s_add_u32 {s(S_T0)}, {s(S_T0)}, {WS_FO}")
    k.poll_flags(S_T0, 16, "po")
    k.stamp("o flags seen")
    k.I(f"s_sub_u32 {s(S_T0)}, {s(S_TB)}, {s(S_TBL)}")
    k.I(f"s_lshl_b32 {s(S_T0)}, {s(S_T0)}, 15")
    k.I(f"s_lshl_b32 {s(S_T1)}, {s(S_W)}, 14")
    k.I(f"s_add_u32 {s(S_T2)}, {s(S_T0)}, {s(S_T1)}")
    k.I(f"s_add_u32 {s(S_T2)}, {s(S_T2)}, {WS_O}")
    k.I(f"s_add_u32 {s(S_T3)}, {s(S_T1)}, {L_OI}")
    k.I(f"s_and_b32 {s(S_T4)}, {s(S_J2)}, 7")
    k.I(f"s_lshl_b32 {s(S_T4)}, {s(S_T4)}, 11")
    k._tag = "of"
    for n in range(16):
        k.I(f"s_add_u32 {s(S_T0)}, {s(S_T4)}, {n*1024}")
        k.I(f"s_and_b32 {s(S_T0)}, {s(S_T0)}, 0x3fff")
        k.I(f"s_add_u32 m0, {s(S_T3)}, {s(S_T0)}")
        k.I(f"s_add_u32 {s(S_OFF)}, {s(S_T2)}, {s(S_T0)}")
        k.dma(V_L16, S_WS, s(S_OFF), sc1=True)
    k._tag = None
    k.granule_loads(gr[0], gr[1], 4, gimm, "gacb")
    ring_a = []
    for P in range(3):
        cur = []
        for t, tg in ring_pair(k, P, as_list=True):
            cur.append((t, tg))
            if t.startswith("buffer_"):
                ring_a.append(cur)
                cur = []
    k.I(f"s_lshl_b32 {s(S_T0)}, {s(S_TBL)}, 15")
    k.I(f"s_add_u32 {s(S_T0)}, {s(S_T0)}, {L_OI}")
    k.I(f"v_add_u32 v14, {s(S_T0)}, {v(V_L16)}")
    k.wait_vm("of")
    k.barrier()
    k.stamp("o landed")
    ACC = 112
    nb = 6
    for kap in range(32 + nb - 2):
        if kap < 32:
            k.I(f"ds_read_b128 {v(16 + 4*(kap % nb), 4)}, v14 offset:{kap*1024}", tag=f"o{kap}")
        q = kap - (nb - 2)
        if q >= 0:
            k.wait_lg(f"o{q}")
            k.mfma32(v(ACC, 16), a_(4 * q, 4), v(16 + 4 * (q % nb), 4), "0" if q == 0 else None)
            if ring_a and q % 3 != 2:
                for t, tg in ring_a.pop(0):
                    k.I(t, tag=tg)
    assert not ring_a
    k.stamp("wo gemm")
    k.granule_verify(gr[0], gr[1], "gacb", 4, (1, 3), gimm, "gacb")
    k.barrier()
    k.stamp("gacb ok")
    ring = []
    for P in range(3, 5):
        items = ring_pair(k, P, as_list=True)
        cur = []
        for t, tg in items:
            cur.append((t, tg))
            if t.startswith("buffer_"):
                ring.append(cur)
                cur = []

    def ring_some(n):
        for _ in range(min(n, len(ring))):
            for t, tg in ring.pop(0):
                k.I(t, tag=tg)

    T = 128
    X1 = 136
    YP = 144
    k.I("v_mov_b32 v40, 0")
    k.I("v_mov_b32 v41, 0")
    k.I("v_mov_b32 v42, 0x3f803f80")
    for i in range(8):
        g = GA + 4 * (i >> 1) + 2 * (i & 1)
        c = CBR + 4 * (i >> 1) + 2 * (i & 1)
        k.unpack(T, T + 1, g)
        k.unpack(T + 2, T + 3, XR + i)
        k.unpack(T + 4, T + 5, c)
        k.I(f"v_pk_fma_f32 {v(T+2,2)}, {v(T,2)}, {v(ACC+2*i,2)}, {v(T+2,2)}")
        k.I(f"v_pk_add_f32 {v(T+4,2)}, {v(T+4,2)}, 1.0 op_sel_hi:[1,0]")
        k.I(f"v_cvt_pk_bf16_f32 {v(X1+i)}, {v(T+2)}, {v(T+3)}")
        k.I(f"v_cvt_pk_bf16_f32 {v(T+4)}, {v(T+4)}, {v(T+5)}")
        k.unpack(T + 2, T + 3, X1 + i)
        k.unpack(T + 6, T + 7, T + 4)
        k.I(f"v_dot2c_f32_bf16 v40, {v(X1+i)}, v42")
        k.I(f"v_pk_mul_f32 {v(T+2,2)}, {v(T+2,2)}, {v(T+6,2)}")
        k.I(f"v_dot2c_f32_bf16 v41, {v(X1+i)}, {v(X1+i)}")
        k.I(f"v_cvt_pk_bf16_f32 {v(YP+i)}, {v(T+2)}, {v(T+3)}")
        ring_some(OPT.get("ring_mix", 1))
    k.I(f"s_lshl_b32 {s(S_T0)}, {s(S_TB)}, 15")
    k.I(f"s_lshl_b32 {s(S_T1)}, {s(S_B32)}, 11")
    k.I(f"s_add_u32 {s(S_T0)}, {s(S_T0)}, {s(S_T1)}")
    k.I(f"s_add_u32 {s(S_T0)}, {s(S_T0)}, {WS_Y}")
    k.I(f"v_add_u32 v12, {s(S_T0)}, {v(V_L16)}")
    k.I(f"buffer_store_dwordx4 {v(YP,4)}, v12, {srd(S_WS)}, 0 offen sc1", tag="yst")
    k.I(f"buffer_store_dwordx4 {v(YP+4,4)}, v12, {srd(S_WS)}, 0 offen offset:1024 sc1", tag="yst")
    k.half_total(40, 43)
    k.half_total(41, 43)
    k.I(f"s_lshl_b32 {s(S_T0)}, {s(S_TB)}, 4")
    k.I(f"s_add_u32 {s(S_T0)}, {s(S_T0)}, {s(S_B32)}")
    k.I(f"s_lshl_b32 {s(S_T0)}, {s(S_T0)}, 8")
    k.I(f"s_add_u32 {s(S_T0)}, {s(S_T0)}, {WS_STATS}")
    k.I(f"v_lshlrev_b32 v12, 3, {v(V_LANE)}")
    k.I(f"v_add_u32 v12, {s(S_T0)}, v12")
    k.I("s_mov_b32 exec_hi, 0")
    k.I(f"buffer_store_dwordx2 v[40:41], v12, {srd(S_WS)}, 0 offen sc1", tag="yst")
    k.I("s_mov_b64 exec, -1")
    k.stamp("y stored")
    ring_some(OPT.get("ring_pre", 6))
    k.stamp("ring b")
    for i in range(8):
        k.I(f"v_accvgpr_write_b32 {a_(248+i)}, {v(X1+i)}")
    k.wait_vm("yst")
    k.I(f"s_lshl_b32 {s(S_T0)}, {s(S_M2)}, 4")
    k.I(f"s_add_u32 {s(S_T0)}, {s(S_T0)}, {s(S_J2)}")
    k.I(f"s_lshl_b32 {s(S_T0)}, {s(S_T0)}, 7")
    k.I(f"s_add_u32 {s(S_T0)}, {s(S_T0)}, {WS_FY}")
    k.signal(S_T0, "fy")
    noe = k.newlabel("noepoch")
    k.I("s_cmp_eq_u32 s2, 0")
    k.I(f"s_cbranch_scc0 {noe}")
    k.wave_is(0, noe)
    k.cond_begin()
    k.I("v_mov_b32 v12, 0")
    k.I("s_mov_b64 exec, 1")
    k.I(f"buffer_store_dword {v(V_TAG)}, v12, {srd(S_WS)}, 0 offen sc1")
    k.I("s_mov_b64 exec, -1")
    k.cond_end()
    k.label(noe)
    k.stamp("y published")
    ring_some(len(ring))
    ub_compute(k)
    k.stamp("ub")


def p3_tail(k, ST, AE, BE):
    it = [lambda: k.wait_vm("st")]
    for i in range(1, 8):
        it.append(f"v_add_f32 v16, v16, {v(ST+2*i)}")
        it.append(f"v_add_f32 v17, v17, {v(ST+2*i+1)}")
    for r in (16, 17):
        it += [f"v_mov_b32 v18, {v(r)}", "s_nop 1", f"v_permlane32_swap_b32 {v(r)}, v18", f"v_add_f32 {v(r)}, {v(r)}, v18"]
    it += ["v_mul_f32 v16, 0x3b000000, v16", "v_mul_f32 v17, 0x3b000000, v17", "v_fma_f32 v17, -v16, v16, v17",
           "v_max_f32 v17, 0, v17", "v_add_f32 v17, 0x3727c5ac, v17", "v_rsq_f32 v18, v17", "v_sub_f32 v16, 0, v16",
           "v_mul_f32 v19, v17, v18", "v_mul_f32 v20, v18, v18", "v_cvt_pk_bf16_f32 v22, v16, v19",
           "v_lshlrev_b32 v24, 16, v22", f"v_and_b32 v25, {s(S_MASK)}, v22", "v_sub_f32 v24, v16, v24", "v_sub_f32 v25, v19, v25",
           "v_cvt_pk_bf16_f32 v23, v24, v25",
           f"s_mov_b32 {s(S_T1)}, 0x01000100", f"v_perm_b32 {v(BE)}, v22, v22, {s(S_T1)}",
           f"s_mov_b32 {s(S_T1)}, 0x07060100", f"v_perm_b32 {v(BE+1)}, v22, v23, {s(S_T1)}",
           f"s_mov_b32 {s(S_T1)}, 0x07060302", f"v_perm_b32 {v(BE+2)}, v23, v22, {s(S_T1)}",
           f"v_mov_b32 {v(BE+3)}, 0", f"v_cmp_gt_u32 vcc, 32, {v(V_LANE)}"]
    it.append(lambda: [k.I(f"v_cndmask_b32 {v(BE+i)}, 0, {v(BE+i)}, vcc") for i in range(3)])
    regs = [AE + 28 * h + 4 * b for h in range(2) for b in range(7)]
    it.append(lambda: k.granule_verify(regs, [14] * 7 + [15] * 7, "wext", 4, (3,), [256 * b for b in range(7)] * 2, "wext"))
    it += [f"v_mov_b32 {v(r+3)}, 0" for r in regs]
    return it


def p3(k):
    Y0, ACC = 16, 144
    VTR = (11, 12, 13)
    lane_fields(k, s_=14, r_=15)
    k.I("v_lshl_add_u32 v14, v14, 4, v15")
    k.I("v_mul_u32_u24 v14, 224, v14")
    k.I(f"v_bfe_u32 v15, {v(V_LANE)}, 4, 1")
    k.I(f"v_mul_u32_u24 v15, {UOFF}, v15")
    k.I("v_add_u32 v14, v14, v15")
    k.I(f"v_and_b32 v15, 1, {v(V_LANE)}")
    k.I("v_lshl_add_u32 v14, v15, 4, v14")
    k.I(f"v_bfe_u32 v15, {v(V_LANE)}, 1, 1")
    k.I(f"v_lshl_add_u32 {v(VTR[0])}, v15, 3, v14")
    k.I(f"v_add_u32 {v(VTR[1])}, {4*SLAB}, {v(VTR[0])}")
    k.I(f"v_add_u32 {v(VTR[2])}, {8*SLAB}, {v(VTR[0])}")
    k.I(f"s_lshl_b32 {s(S_T0)}, {s(S_M)}, 11")
    k.I(f"s_add_u32 {s(S_T0)}, {s(S_T0)}, {WS_FY}")
    k.wait_vm_all()
    k.poll_flags(S_T0, 16, "py")
    k.stamp("y flags seen")
    S_TB3 = S_T2
    k.I(f"s_lshl_b32 {s(S_TB3)}, {s(S_M)}, 2")
    k.I(f"s_add_u32 {s(S_TB3)}, {s(S_TB3)}, {s(S_W)}")
    k.I(f"s_lshl_b32 {s(S_T3)}, {s(S_TB3)}, 15")
    k.I(f"s_add_u32 {s(S_T3)}, {s(S_T3)}, {WS_Y}")

    def ld_y(kap):
        out = []
        if kap and kap & 3 == 0:
            out.append((f"s_add_u32 {s(S_T3)}, {s(S_T3)}, 4096", None))
        out.append((f"buffer_load_dwordx4 {v(Y0+4*kap,4)}, {v(V_L16)}, {srd(S_WS)}, {s(S_T3)} offen offset:{(kap&3)*1024} sc1", f"y{kap}"))
        return out

    if OPT.get("coop", 0):
        k.I(f"v_and_b32 v14, 31, {v(V_LANE)}")
        k.I("v_lshlrev_b32 v14, 7, v14")
        k.I(f"s_and_b32 {s(S_T0)}, {s(S_J)}, 7")
        k.I(f"s_lshl_b32 {s(S_T0)}, {s(S_T0)}, 12")
        k.I(f"v_add_u32 v14, {s(S_T0)}, v14")
        k.I(f"buffer_load_dword v0, v14, {srd(S_WS)}, {s(S_T3)} offen", tag="t")
    NY0 = OPT.get('ny0', 20)
    for kap in range(NY0):
        for t, tg in ld_y(kap):
            k.I(t, tag=tg)

    def rd_w(kap, beta):
        B, a = kap >> 1, kap & 1
        P = B >> 1
        slot = (P % 5) * 2 + (B & 1)
        base = VTR[slot >> 2]
        return [(f"ds_read_b64_tr_b16 {a_(28*(kap&1) + 4*beta + 2*rd, 2)}, {v(base)} offset:{(slot & 3) * SLAB + (8*a + 4*rd)*224 + 32*beta}", f"w{kap}_{beta}") for rd in range(2)]

    for beta in range(7):
        for t, tg in rd_w(0, beta):
            k.I(t, tag=tg)
    side = []
    tail = []
    ST, AE, BE = 16, 32, 28
    for kap in range(32):
        P = kap >> 2
        if kap & 3 == 3 and P < 7:
            k.wait_vm(f"W{P+1}")
            if not OPT.get("x_nobar"):
                k.barrier()
            if 1 <= P <= 3 and not OPT.get("x_noring"):
                side += ring_pair(k, P + 4, as_list=True)
        if kap + NY0 < 32:
            side = ld_y(kap + NY0) + side
        if OPT["touch"] and kap == OPT.get("twdk", 24):
            side.append((f"s_lshl_b32 {s(S_T0)}, {s(S_I)}, 2", None))
            side.append((f"s_add_u32 {s(S_T0)}, {s(S_T0)}, {s(S_W)}", None))
            side.append((f"s_mul_i32 {s(S_T0)}, {s(S_T0)}, {112*128}", None))
            side.append((f"v_min_u32 v14, 55, {v(V_LANE)}", None))
            side.append(("v_lshlrev_b32 v14, 7, v14", None))
            side.append((f"buffer_load_dword v0, v14, {srd(S_WD)}, {s(S_T0)} offen", "t"))
            side.append((f"s_add_u32 {s(S_T0)}, {s(S_T0)}, {56*128}", None))
            side.append((f"buffer_load_dword v0, v14, {srd(S_WD)}, {s(S_T0)} offen", "t"))
        if kap == 18:
            side.append((f"s_lshl_b32 {s(S_T0)}, {s(S_TB3)}, 12", None))
            side.append((f"s_add_u32 {s(S_T0)}, {s(S_T0)}, {WS_STATS}", None))
            side.append((f"v_and_b32 v14, 31, {v(V_LANE)}", None))
            side.append(("v_lshlrev_b32 v14, 3, v14", None))
            side.append((f"v_lshrrev_b32 v15, 5, {v(V_LANE)}", None))
            side.append(("v_lshl_add_u32 v14, v15, 11, v14", None))
            side.append((f"v_add_u32 v14, {s(S_T0)}, v14", None))
            for i in range(8):
                side.append((f"buffer_load_dwordx2 {v(ST+2*i,2)}, v14, {srd(S_WS)}, 0 offen offset:{i*256} sc1", "st"))
        if kap == 22:
            for t in (f"v_bfe_u32 v14, {v(V_LANE)}, 2, 1", "v_lshlrev_b32 v14, 3, v14", f"v_bfe_u32 v15, {v(V_LANE)}, 3, 1",
                      "v_lshl_add_u32 v14, v15, 2, v14", f"v_and_b32 v15, 3, {v(V_LANE)}", "v_add_u32 v14, v14, v15",
                      f"v_bfe_u32 v15, {v(V_LANE)}, 4, 1", "v_mul_u32_u24 v15, 1792, v15", "v_add_u32 v14, v14, v15",
                      f"s_mul_i32 {s(S_T0)}, {s(S_J)}, 112", f"v_add_u32 v14, {s(S_T0)}, v14", "v_lshlrev_b32 v14, 4, v14",
                      f"v_add_u32 v14, {WS_WEXT}, v14", f"v_add_u32 v15, {3584*16}, v14"):
                side.append((t, None))
            for h in range(2):
                for b in range(7):
                    side.append((f"buffer_load_dwordx4 {v(AE+28*h+4*b,4)}, {v(14+h)}, {srd(S_WS)}, 0 offen offset:{256*b} sc1", "wext"))
        if kap == 20:
            side += [(t, None) for t in wd_setup_items()]
        if kap == 23 and OPT.get("g0loop"):
            for it in wd_dma(0, WD_G1):
                side += it
        if kap == 26:
            tail = p3_tail(k, ST, AE, BE)
        k.wait_vm(f"y{kap}")
        if kap in (1, 8, 16, 24):
            k.stamp(f"p3 k{kap}")
        for beta in range(7):
            k.wait_lg(f"w{kap}_{beta}")
            k.mfma32(v(ACC + 16 * beta, 16), a_(28 * (kap & 1) + 4 * beta, 4), v(Y0 + 4 * kap, 4), "0" if kap == 0 else None)
            if kap + 1 < 32 and not OPT.get("x_notr"):
                for t, tg in rd_w(kap + 1, beta):
                    k.I(t, tag=tg)
            for _ in range(2):
                if tail:
                    it = tail.pop(0)
                    it() if callable(it) else k.I(it)
            nvm = 0
            while side and nvm < 1:
                t, tg = side.pop(0)
                k.I(t, tag=tg)
                if t.startswith("buffer_"):
                    nvm += 1
    for t, tg in side:
        k.I(t, tag=tg)
    assert not tail
    for h in range(2):
        for b in range(7):
            k.mfma32(v(ACC + 16 * b, 16), v(AE + 28 * h + 4 * b, 4), v(BE, 4))
    k.stamp("gate/up gemm")
    k.barrier()
    wd_bases(k)
    dm = wd_dma(WD_G1, WD_G2) if OPT.get("g0loop") else wd_dma(0, WD_G2)
    k.I(f"s_mul_i32 {s(S_T0)}, {s(S_TB3)}, 112")
    k.I(f"s_mul_i32 {s(S_T1)}, {s(S_J)}, 7")
    k.I(f"s_add_u32 {s(S_T0)}, {s(S_T0)}, {s(S_T1)}")
    k.I(f"s_lshl_b32 {s(S_T0)}, {s(S_T0)}, 10")
    k.I(f"s_add_u32 {s(S_AO)}, {s(S_T0)}, {WS_ACT}")

    def dma_some(n):
        for _ in range(n):
            for t, tg in dm.pop(0):
                k.I(t, tag=tg)

    for b in range(7):
        G = ACC + 16 * b
        U = G + 8
        o = 96 + 4 * b
        for e in range(0, 8, 2):
            k.I(f"v_pk_mul_f32 {v(U+e,2)}, {v(U+e,2)}, v[20:21] op_sel_hi:[1,0]")
        for e in range(8):
            k.I(f"v_max_f32 {v(G+e)}, 0, {v(G+e)}")
        for e in range(0, 8, 2):
            k.I(f"v_pk_mul_f32 {v(G+e,2)}, {v(G+e,2)}, {v(U+e,2)}")
        for e in range(0, 8, 2):
            k.I(f"v_cvt_pk_bf16_f32 {v(o+e//2)}, {v(G+e)}, {v(G+e+1)}")
        k.I(f"buffer_store_dwordx4 {v(o,4)}, {v(V_L16)}, {srd(S_WS)}, {s(S_AO)} offen offset:{(b&3)*1024} sc1", tag="ast")
        if b == 3:
            k.I(f"s_add_u32 {s(S_AO)}, {s(S_AO)}, 4096")
        if b < 6:
            dma_some(OPT.get("wd_mix", 2))
    k.stamp("act stored")
    dma_some(OPT.get("wd_pre", 8))

    def g0_reads():
        k.wait_vm(f"wd{WD_G1-1}")
        for kl in range(WD_G1):
            for t, tg in wd_reads(kl):
                k.I(t, tag=tg)
            if kl % 2 == 1:
                k.I("s_waitcnt lgkmcnt(4)")
    k.wait_vm("ast")
    k.I(f"s_lshl_b32 {s(S_T0)}, {s(S_M)}, 4")
    k.I(f"s_add_u32 {s(S_T0)}, {s(S_T0)}, {s(S_J)}")
    k.I(f"s_lshl_b32 {s(S_T0)}, {s(S_T0)}, 7")
    k.I(f"s_add_u32 {s(S_T0)}, {s(S_T0)}, {WS_FA}")
    k.signal(S_T0, "fa")
    k.stamp("act published")
    dma_some(len(dm))
    g0_reads()
    k.wait_lg_all()
    k.stamp("wf0 read")


S_AO = 91


S_WDB, S_WDT = 90, 12
S_WDO = 3
WD_TOP = 87552
WD_G1, WD_G2 = 9, 19
V_WD = 4
V_WB, V_WT = 5, 10


def wd_setup_items():
    return [f"s_and_b32 {s(S_T0)}, {s(S_J2)}, 7", f"s_lshl_b32 {s(S_T0)}, {s(S_T0)}, 7",
            f"v_lshrrev_b32 v4, 3, {v(V_LANE)}", "v_lshlrev_b32 v4, 10, v4", f"v_and_b32 v5, 7, {v(V_LANE)}",
            f"v_bfe_u32 v6, {v(V_LANE)}, 4, 1", "v_lshlrev_b32 v6, 2, v6", "v_xor_b32 v5, v5, v6",
            "v_lshl_add_u32 v4, v5, 4, v4", f"v_add_u32 v4, {s(S_T0)}, v4",
            f"s_mul_i32 {s(S_WDB)}, {s(S_W)}, 20480", f"s_mul_i32 {s(S_WDT)}, {s(S_W)}, 18432",
            f"s_add_u32 {s(S_WDT)}, {s(S_WDT)}, {WD_TOP}", f"s_mul_i32 {s(S_WDO)}, {s(S_W)}, {448*1024}"]


def wd_bases(k):
    swz128_base(k, 5, cbk_imm=0, s_mul=8)
    k.I(f"v_add_u32 v10, {s(S_WDT)}, v5")
    k.I("v_xor_b32 v11, 64, v10")
    k.I(f"v_add_u32 v5, {s(S_WDB)}, v5")
    k.I("v_xor_b32 v6, 64, v5")


def wd_slot(kl):
    if kl < WD_G1:
        return S_WDT, V_WT, kl * 2048
    if kl < WD_G2:
        return S_WDB, V_WB, (kl - WD_G1) * 2048
    return S_WDT, V_WT, (kl - WD_G2) * 2048


def wd_dma(k0, k1):
    out = []
    for kl in range(k0, k1):
        sb, _, off = wd_slot(kl)
        for h in range(2):
            out.append([(f"s_add_u32 {s(S_OFF)}, {s(S_WDO)}, {(16*kl + 8*h)*1024}", None),
                        (f"s_add_u32 m0, {s(sb)}, {off + h*1024}", None),
                        (f"buffer_load_dwordx4 v4, {srd(S_WD)}, {s(S_OFF)} offen lds", f"wd{kl}")])
    return out


def wd_reads(kl):
    _, vb, off = wd_slot(kl)
    return [(f"ds_read_b64_tr_b16 {a_((2*kl + cbk)*4 + 2*rd, 2)}, {v(vb+cbk)} offset:{off + rd*512}", f"wf{kl}")
            for cbk in range(2) for rd in range(2)]


def p4(k):
    GB = 176
    k.I(f"v_lshrrev_b32 v8, 5, {v(V_LANE)}")
    k.I("v_lshlrev_b32 v8, 6, v8")
    k.I(f"s_lshl_b32 {s(S_T0)}, {s(S_B32)}, 7")
    k.I(f"s_add_u32 {s(S_T0)}, {s(S_T0)}, {WS_MODG + 1280*8}")
    k.I(f"v_add_u32 v8, {s(S_T0)}, v8")
    greg = [GB + 4 * i for i in range(4)]
    for it in wd_dma(WD_G2, 28):
        for t, tg in it:
            k.I(t, tag=tg)
    k.I(f"s_lshl_b32 {s(S_T0)}, {s(S_M2)}, 11")
    k.I(f"s_add_u32 {s(S_T0)}, {s(S_T0)}, {WS_FA}")
    k.poll_flags(S_T0, 16, "pa")
    k.stamp("act flags seen")
    k.I(f"s_sub_u32 {s(S_T0)}, {s(S_TB)}, {s(S_TBL)}")
    k.I(f"s_mul_i32 {s(S_T0)}, {s(S_T0)}, {112*1024}")
    k.I(f"s_mul_i32 {s(S_T1)}, {s(S_W)}, {28*1024}")
    k.I(f"s_add_u32 {s(S_T0)}, {s(S_T0)}, {s(S_T1)}")
    S_A0, S_A1 = S_T3, S_T4
    k.I(f"s_add_u32 {s(S_A0)}, {s(S_T0)}, {WS_ACT}")
    k.I(f"s_add_u32 {s(S_A1)}, {s(S_A0)}, {112*1024}")
    NB = OPT.get("nb4", 12)
    AB = 16
    ACC = 192

    def ld(kl):
        out = []
        for tbl in range(2):
            r = AB + 8 * (kl % NB) + 4 * tbl
            out.append((f"buffer_load_dwordx4 {v(r,4)}, {v(V_L16)}, {srd(S_WS)}, {s(S_A0 + tbl)} offen offset:{(kl&3)*1024} sc1", f"a{kl}"))
        if kl & 3 == 3:
            out.append((f"s_add_u32 {s(S_A0)}, {s(S_A0)}, 4096", None))
            out.append((f"s_add_u32 {s(S_A1)}, {s(S_A1)}, 4096", None))
        return out

    for kl in range(NB):
        for t, tg in ld(kl):
            k.I(t, tag=tg)
    k.granule_loads(greg, [8] * 4, 4, [0, 16, 32, 48], "gb")
    for kl in range(28):
        k.wait_vm(f"a{kl}")
        if kl in (1, 7, 14, 21):
            k.stamp(f"p4 k{kl}")
        rds = wd_reads(kl + 3) if WD_G1 <= kl + 3 < 28 else []
        if kl >= WD_G1:
            k.wait_lg(f"wf{kl}")
        nxt = ld(kl + NB) if kl + NB < 28 else []
        for tbl in range(2):
            for cbk in range(2):
                r = AB + 8 * (kl % NB) + 4 * tbl
                k.mfma32(v(ACC + 16 * (2 * cbk + tbl), 16), a_((2 * kl + cbk) * 4, 4), v(r, 4), "0" if kl == 0 else None)
                if rds:
                    t, tg = rds.pop(0)
                    k.I(t, tag=tg)
                if tbl == 1 and nxt:
                    t, tg = nxt.pop(0)
                    k.I(t, tag=tg)
        for t, tg in nxt:
            k.I(t, tag=tg)
    k.stamp("down gemm")
    k.granule_verify(greg, [8] * 4, "gb", 4, (1, 3), [0, 16, 32, 48], "gb")
    k.wait_lg_all()
    k.barrier()
    k.I(f"s_lshl_b32 {s(S_T0)}, {s(S_W)}, 12")
    k.I(f"v_add_u32 v8, {s(S_T0)}, {v(V_L16)}")
    k.I(f"v_add_u32 v9, 32768, v8")
    for q in range(4):
        sk = k.newlabel("r4w")
        k.I(f"s_cmp_eq_u32 {s(S_W)}, {q}")
        k.I(f"s_cbranch_scc1 {sk}")
        k.cond_begin()
        for i in range(4):
            base = 8 if q < 2 else 9
            k.I(f"ds_write_b128 {v(base)}, {v(ACC+16*q+4*i,4)} offset:{(q&1)*16384 + i*1024}")
        k.cond_end()
        k.label(sk)
    k.wait_lg_all()
    k.barrier()
    k.I(f"s_lshl_b32 {s(S_T0)}, {s(S_W)}, 14")
    k.I(f"v_add_u32 v8, {s(S_T0)}, {v(V_L16)}")
    for d in range(1, 4):
        k.I(f"s_add_u32 {s(S_T1)}, {s(S_W)}, {d}")
        k.I(f"s_and_b32 {s(S_T1)}, {s(S_T1)}, 3")
        k.I(f"s_lshl_b32 {s(S_T1)}, {s(S_T1)}, 12")
        k.I(f"v_add_u32 v9, {s(S_T1)}, v8")
        for i in range(4):
            k.I(f"ds_read_b128 {v(32+16*(d-1)+4*i,4)}, v9 offset:{i*1024}")
    for q in range(4):
        sk = k.newlabel("r4m")
        k.I(f"s_cmp_eq_u32 {s(S_W)}, {q}")
        k.I(f"s_cbranch_scc0 {sk}")
        for i in range(0, 16, 2):
            k.I(f"v_pk_mul_f32 {v(16+i,2)}, {v(ACC+16*q+i,2)}, 1.0 op_sel_hi:[1,0]")
        k.label(sk)
    k.wait_lg_all()
    for d in range(3):
        for i in range(0, 16, 2):
            k.I(f"v_pk_add_f32 {v(16+i,2)}, {v(16+i,2)}, {v(32+16*d+i,2)}")
    for i in range(8):
        g = GB + 4 * (i >> 1) + 2 * (i & 1)
        k.I(f"v_accvgpr_read_b32 v84, {a_(248+i)}")
        k.unpack(80, 81, g)
        k.unpack(82, 83, 84)
        k.I(f"v_pk_fma_f32 v[82:83], v[80:81], {v(16+2*i,2)}, v[82:83]")
        k.I(f"v_cvt_pk_bf16_f32 {v(88+i)}, v82, v83")
    k.I(f"v_and_b32 v8, 31, {v(V_LANE)}")
    k.I("v_lshlrev_b32 v8, 10, v8")
    k.I(f"v_lshrrev_b32 v9, 5, {v(V_LANE)}")
    k.I("v_lshl_add_u32 v8, v9, 5, v8")
    k.I(f"s_lshl_b32 {s(S_T0)}, {s(S_TB)}, 15")
    k.I(f"s_lshl_b32 {s(S_T1)}, {s(S_B32)}, 6")
    k.I(f"s_add_u32 {s(S_T0)}, {s(S_T0)}, {s(S_T1)}")
    k.I(f"v_add_u32 v8, {s(S_T0)}, v8")
    fl = {0: "", 1: " sc1", 2: " nt", 3: " sc0 sc1"}[OPT.get("outst", 0)]
    k.I(f"buffer_store_dwordx4 v[88:91], v8, {srd(S_OUT)}, 0 offen{fl}")
    k.I(f"buffer_store_dwordx4 v[92:95], v8, {srd(S_OUT)}, 0 offen offset:16{fl}")
    k.stamp("out stored")


def finish(k):
    if k.diag == "dbg":
        sk = k.newlabel("fin")
        k.wave_is(0, sk)
        k.I("s_load_dwordx2 s[92:93], s[0:1], 88")
        k.I("s_waitcnt lgkmcnt(0)")
        k.I("s_mov_b32 s94, 256")
        k.I("s_mov_b32 s95, 0x20000")
        k.I("s_mov_b64 exec, 1")
        sel = k.dbg_sel
        for slot, i in enumerate(sel):
            k.I(f"v_mov_b32 v9, {s(S_STAMP+i)}")
            if slot == 0:
                k.I("v_not_b32 v9, v9")
            k.I(f"v_mov_b32 v8, {4*slot}")
            k.I(f"buffer_atomic_umax v9, v8, s[92:95], 0 offen")
        k.label(sk)
    elif k.diag:
        sk = k.newlabel("fin")
        k.wave_is(0, sk)
        k.I(f"s_lshl_b32 {s(S_T0)}, s2, 7")
        k.I(f"s_add_u32 {s(S_T0)}, {s(S_T0)}, {WS_STAMP}")
        k.I(f"v_mov_b32 v8, {s(S_T0)}")
        k.I("s_mov_b64 exec, 1")
        for i in range(k.nstamp):
            k.I(f"v_mov_b32 v9, {s(S_STAMP+i)}")
            k.I(f"buffer_store_dword v9, v8, {srd(S_WS)}, 0 offen offset:{4*i}")
        k.label(sk)
    k.label("L_end")
    k.I("s_endpgm")


def build(diag=False, stop=None):
    k = K(diag, stop)
    phases = [prologue, start_phase, p1_prologue, p1_main, p1_epilogue,
              kv_combine_and_o, p2, p3, p4]
    for ph in phases:
        k.comment(f"======== {ph.__name__} ========")
        ph(k)
        if stop == ph.__name__:
            break
    k.dbg_sel = list(range(min(k.nstamp, 16)))
    if k.nstamp > 16:
        k.dbg_sel = [0, 1, 3, 4, 5, 7, 8, 9, 10, 11, 12, 13, 14, 15, 16, 17][:16]
    finish(k)
    hdr = open("cdna_kernels/" + NAME + ".s.ref").read().split("; Override launch geometry")[0]
    txt = hdr
    txt += f"; @launch grid=(256,1,1) block=(256,1,1) lds={LDS_BYTES}\n"
    txt += '.amdgcn_target "amdgcn-amd-amdhsa--gfx950"\n.text\n'
    txt += f".globl {NAME}_kernel\n.p2align 8\n.type {NAME}_kernel,@function\n{NAME}_kernel:\n"
    txt += k.text()
    txt += f""".section .rodata,"a"
.p2align 6
.amdhsa_kernel {NAME}_kernel
  .amdhsa_next_free_vgpr 512
  .amdhsa_next_free_sgpr 102
  .amdhsa_accum_offset 256
  .amdhsa_group_segment_fixed_size 0
  .amdhsa_kernarg_size 104
  .amdhsa_user_sgpr_count 2
  .amdhsa_user_sgpr_kernarg_segment_ptr 1
  .amdhsa_system_sgpr_workgroup_id_x 1
.end_amdhsa_kernel
"""
    return txt, k


if __name__ == "__main__":
    out = sys.argv[1] if len(sys.argv) > 1 else "k.s"
    for a in sys.argv:
        if a.startswith("--opt="):
            for kv in a[6:].split(","):
                kk, vv = kv.split("=")
                OPT[kk] = int(vv)
    diag = "--diag" in sys.argv
    if "--dbg" in sys.argv:
        diag = "dbg"
    stop = None
    for a in sys.argv:
        if a.startswith("--stop="):
            stop = a.split("=")[1]
    txt, k = build(diag, stop)
    open(out, "w").write(txt)
    if diag:
        open(out + ".stamps", "w").write("\n".join(k.stamp_names) + "\n")
    print(f"wrote {out}: {len(txt)} bytes, {sum(1 for l in k.out if l.startswith(chr(9)))} instructions, {k.nops} hazard nops")
```

```python
import sys
from asmlib import Asm

NAME = "adaLN_cond__linear_kernel_hedgehog__glu_gated_reglu__prompt"

WS_E = 0
WS_MODG = 0x1000
WS_FKV = 0x4000
WS_FO = 0xC000
WS_FY = 0x14000
WS_FA = 0x1C000
WS_STAMP = 0x30000
WS_WEXT = 0x40000
WS_STATS = 0x80000
WS_MODC = 0x60000
WS_KVP = 0x100000
WS_O = 0x200000
WS_Y = 0x400000
WS_ACT = 0x800000

L_XI = 0
L_WI = 0
L_WM = 131072
L_S = 158720
L_RT = 159744
L_WMN = 114688
L_KVI = 0
L_QI = 65536
L_GP = 148480
L_CT = 139264
L_PHI = 153600
L_ZERO = 154624
L_RED = 0
L_KVF = 149504
L_Z = 151552
L_UB = 145920
L_CS = 162304
L_WO = 0
L_OI = 98304
SLAB = 14592
UOFF = 7296
LDS_BYTES = 163840

S_X, S_WQKV, S_WPHI, S_WO, S_WG, S_WU, S_WD, S_C, S_WMOD, S_OUT, S_WS = 4, 8, 12, 16, 20, 24, 28, 32, 36, 40, 44
S_XCD, S_I, S_M, S_J, S_W, S_TAG, S_MASK = 48, 49, 50, 51, 52, 53, 54
S_T0, S_T1, S_T2, S_T3, S_T4 = 55, 56, 57, 58, 59
S_CLK = 60
S_L2E = 62
S_SPIN = 64
S_OFF = 65
S_VALID = 66
S_EX = 68
S_M2, S_J2 = 70, 71
S_STAMP = 72
S_SEL = 92
S_HP = S_J

LOG2E = 0x3FB8AA3B
SPIN_MAX = 200000


def srd(i):
    return f"s[{i}:{i+3}]"


def v(i, n=1):
    return f"v{i}" if n == 1 else f"v[{i}:{i+n-1}]"


def a_(i, n=1):
    return f"a{i}" if n == 1 else f"a[{i}:{i+n-1}]"


def s(i, n=1):
    return f"s{i}" if n == 1 else f"s[{i}:{i+n-1}]"


V_LANE, V_L16, V_TAG = 1, 2, 3
V_DUMMY = 15
OPT = dict(touch=1, tw0=1, mall=0, nt_wm=1, tmn_nt=0)


import os
STAMPS = os.environ.get('STAMPS', 'start,wmod landed,x in regs,mod arrived,P1 ready,p1 main,kv published,q softmax,kv flags seen,o published,o flags seen,wo gemm,y published,y flags seen,gate/up gemm,act published,act flags seen,out stored').split(',')


class K(Asm):
    def __init__(self, diag=False, stop=None):
        super().__init__()
        self.diag = diag
        self.stop = stop
        self.nstamp = 0

    def stamp(self, name, cyc=False):
        if not self.diag:
            return
        if STAMPS is not None and name not in STAMPS:
            return
        if cyc:
            self.wait_lg_all()
            self.I(f"s_memtime {s(S_CLK, 2)}")
            self.I("s_waitcnt lgkmcnt(0)")
            self.I(f"s_mov_b32 {s(S_STAMP + self.nstamp)}, {s(S_CLK)}")
            self.stamp_names = getattr(self, "stamp_names", []) + [name + " (cyc)"]
            self.nstamp += 1
            return
        self.wait_lg_all()
        self.I(f"s_memrealtime {s(S_CLK, 2)}")
        self.I("s_waitcnt lgkmcnt(0)")
        self.I(f"s_mov_b32 {s(S_STAMP + self.nstamp)}, {s(S_CLK)}")
        self.stamp_names = getattr(self, "stamp_names", []) + [name]
        self.nstamp += 1
        assert self.nstamp <= 18, self.stamp_names

    def wave_is(self, w, label_else):
        self.I(f"s_cmp_eq_u32 {s(S_W)}, {w}")
        self.I(f"s_cbranch_scc0 {label_else}")

    def mfma32(self, d, a, b, c=None):
        c = d if c is None else c
        self.I(f"v_mfma_f32_32x32x16_bf16 {d}, {a}, {b}, {c}")

    def test_delay(self, which):
        if OPT.get("x_delay") != which:
            return
        l = self.newlabel("dly")
        d = self.newlabel("dly_done")
        self.I("s_and_b32 s55, s2, 31")
        self.I("s_cmp_eq_u32 s55, 5")
        self.I(f"s_cbranch_scc0 {d}")
        self.I("s_mov_b32 s55, 200")
        self.label(l)
        self.I("s_sleep 8")
        self.I("s_sub_u32 s55, s55, 1")
        self.I("s_cmp_lg_u32 s55, 0")
        self.I(f"s_cbranch_scc1 {l}")
        self.label(d)

    def spin_init(self):
        self.I(f"s_mov_b32 {s(S_SPIN)}, {SPIN_MAX}")

    def spin_back(self, loop, done):
        self.I(f"s_cbranch_vccz {done}")
        self.I(f"s_sub_u32 {s(S_SPIN)}, {s(S_SPIN)}, 1")
        self.I(f"s_cmp_lg_u32 {s(S_SPIN)}, 0")
        self.I(f"s_cbranch_scc1 {loop}")
        if OPT.get("tmo"):
            self.ntmo = getattr(self, "ntmo", 0) + 1
            self.tmo_names = getattr(self, "tmo_names", []) + [loop]
            self.I(f"s_lshl_b32 {s(S_EX)}, s2, 2")
            self.I(f"s_add_u32 {s(S_EX)}, {s(S_EX)}, {s(S_W)}")
            self.I(f"s_lshl_b32 {s(S_EX)}, {s(S_EX)}, 6")
            self.I(f"s_add_u32 {s(S_EX)}, {s(S_EX)}, {0x70000 + 4*self.ntmo}")
            self.I(f"v_mov_b32 v250, {s(S_EX)}")
            self.I(f"s_mov_b32 {s(S_EX)}, vcc_lo")
            self.I(f"v_mov_b32 v251, {s(S_EX)}")
            self.I(f"buffer_store_dword v251, v250, {srd(S_WS)}, 0 offen sc1")

    def unpack(self, lo, hi, src):
        self.I(f"v_lshlrev_b32 {v(lo)}, 16, {v(src)}")
        self.I(f"v_and_b32 {v(hi)}, {s(S_MASK)}, {v(src)}")

    def half_total(self, r, tmp):
        self.I(f"v_mov_b32 {v(tmp)}, {v(r)}")
        self.I(f"v_permlane32_swap_b32 {v(r)}, {v(tmp)}")
        self.I(f"v_add_f32 {v(r)}, {v(r)}, {v(tmp)}")

    def dma(self, voff, rsrc, soff, sc1=False):
        nt = " nt" if OPT.get("nt_" + str(self._tag)) else ""
        self.I(f"buffer_load_dwordx4 {v(voff)}, {srd(rsrc)}, {soff} offen{' sc1' if sc1 else ''}{nt} lds", tag=self._tag)

    _tag = None

    def touch(self, rsrc, voff, soff, tag="t", dst=None):
        nt = " nt" if OPT.get("nt_t") else ""
        self.I(f"buffer_load_dword {v(V_DUMMY if dst is None else dst)}, {v(voff)}, {srd(rsrc)}, {soff} offen{nt}", tag=tag)

    def poll_flags(self, base_sreg, n, stem, tmp=14):
        done = self.newlabel(stem + "_skip")
        loop = self.newlabel(stem + "_loop")
        ok = self.newlabel(stem + "_ok")
        self.wave_is(0, done)
        self.cond_begin()
        self.I(f"v_min_u32 {v(tmp)}, {n-1}, {v(V_LANE)}")
        self.I(f"v_lshlrev_b32 {v(tmp)}, 7, {v(tmp)}")
        self.I(f"v_add_u32 {v(tmp)}, {s(base_sreg)}, {v(tmp)}")
        self.spin_init()
        self.label(loop)
        self.I(f"buffer_load_dword {v(tmp+1)}, {v(tmp)}, {srd(S_WS)}, 0 offen sc1")
        self.I("s_waitcnt vmcnt(0)")
        self.I(f"v_cmp_ne_u32 vcc, {s(S_TAG)}, {v(tmp+1)}")
        self.spin_back(loop, ok)
        self.label(ok)
        self.cond_end()
        self.label(done)
        self.barrier()

    def signal(self, off_sreg, stem, tmp=14):
        self.barrier()
        done = self.newlabel(stem + "_sig")
        self.wave_is(0, done)
        self.cond_begin()
        self.I(f"v_mov_b32 {v(tmp)}, {s(off_sreg)}")
        self.I(f"s_mov_b64 exec, 1")
        self.I(f"buffer_store_dword {v(V_TAG)}, {v(tmp)}, {srd(S_WS)}, 0 offen sc1")
        self.I(f"s_mov_b64 exec, -1")
        self.cond_end()
        self.label(done)

    def granule_loads(self, regs, addr_regs, width, imm, tag):
        sfx = {2: "dwordx2", 4: "dwordx4"}[width]
        for i, (r, ad) in enumerate(zip(regs, addr_regs)):
            off = imm[i] if imm else 0
            self.I(f"buffer_load_{sfx} {v(r, width)}, {v(ad)}, {srd(S_WS)}, 0 offen offset:{off} sc1", tag=tag)

    def granule_verify(self, regs, addr_regs, stem, width, tagpos, imm, tag):
        loop = self.newlabel(stem + "_loop")
        chk = self.newlabel(stem + "_chk")
        ok = self.newlabel(stem + "_ok")
        self.spin_init()
        if self.cond:
            self.I("s_waitcnt vmcnt(0)")
        else:
            self.wait_vm(tag)
        self.I(f"s_branch {chk}")
        self.label(loop)
        self.cond_begin()
        self.granule_loads(regs, addr_regs, width, imm, None)
        self.I("s_waitcnt vmcnt(0)")
        self.cond_end()
        self.label(chk)
        first = True
        for r in regs:
            for tp in tagpos:
                if first:
                    self.I(f"v_cmp_ne_u32 vcc, {s(S_TAG)}, {v(r+tp)}")
                    first = False
                else:
                    self.I(f"v_cmp_ne_u32 {s(S_EX, 2)}, {s(S_TAG)}, {v(r+tp)}")
                    self.I(f"s_or_b64 vcc, vcc, {s(S_EX, 2)}")
        self.spin_back(loop, ok)
        self.label(ok)

    def load_granules_checked(self, regs, addr_regs, stem, width=2, tagpos=(1,), imm=None):
        self.granule_loads(regs, addr_regs, width, imm, stem)
        self.granule_verify(regs, addr_regs, stem, width, tagpos, imm, stem)


def prologue(k):
    k.I("s_cmp_ge_u32 s2, 256")
    k.I("s_cbranch_scc1 L_end")
    k.I("s_load_dwordx16 s[64:79], s[0:1], 0")
    k.I("s_load_dwordx8 s[80:87], s[0:1], 64")
    k.I("s_load_dwordx2 s[88:89], s[0:1], 96")
    k.I(f"v_and_b32 {v(V_LANE)}, 63, v0")
    k.I("v_lshrrev_b32 v4, 6, v0")
    k.I(f"v_lshlrev_b32 {v(V_L16)}, 4, {v(V_LANE)}")
    k.I(f"v_readfirstlane_b32 {s(S_W)}, v4")
    k.I(f"s_and_b32 {s(S_XCD)}, s2, 7")
    k.I(f"s_lshr_b32 {s(S_I)}, s2, 3")
    k.I(f"s_lshr_b32 {s(S_T0)}, {s(S_XCD)}, 1")
    k.I(f"s_lshl_b32 {s(S_T0)}, {s(S_T0)}, 2")
    k.I(f"s_lshr_b32 {s(S_T1)}, {s(S_I)}, 3")
    k.I(f"s_add_u32 {s(S_M)}, {s(S_T0)}, {s(S_T1)}")
    k.I(f"s_and_b32 {s(S_T0)}, {s(S_XCD)}, 1")
    k.I(f"s_lshl_b32 {s(S_T0)}, {s(S_T0)}, 3")
    k.I(f"s_and_b32 {s(S_T1)}, {s(S_I)}, 7")
    k.I(f"s_add_u32 {s(S_J)}, {s(S_T0)}, {s(S_T1)}")
    k.I(f"s_mov_b32 {s(S_MASK)}, 0xffff0000")
    k.I(f"s_mov_b32 {s(S_L2E)}, {LOG2E:#x}")
    k.I(f"s_mov_b32 {s(S_L2E+1)}, {LOG2E:#x}")
    k.I("s_waitcnt lgkmcnt(0)")
    bufs = [(S_X, 64, 2097152), (S_WQKV, 66, 1572864), (S_WPHI, 68, 16384), (S_WO, 70, 524288),
            (S_WG, 74, 1835008), (S_WU, 76, 1835008), (S_WD, 78, 1835008), (S_C, 80, 1024),
            (S_WMOD, 82, 3145728), (S_OUT, 84, 2097152), (S_WS, 88, 268435456)]
    for r, p, n in bufs:
        k.I(f"s_mov_b32 {s(r)}, {s(p)}")
        k.I(f"s_mov_b32 {s(r+1)}, {s(p+1)}")
        k.I(f"s_mov_b32 {s(r+2)}, {n}")
        k.I(f"s_mov_b32 {s(r+3)}, 0x20000")
    k.I(f"s_lshr_b32 {s(S_T0)}, {s(S_I)}, 4")
    k.I(f"s_lshl_b32 {s(S_M2)}, {s(S_XCD)}, 1")
    k.I(f"s_add_u32 {s(S_M2)}, {s(S_M2)}, {s(S_T0)}")
    k.I(f"s_and_b32 {s(S_J2)}, {s(S_I)}, 15")
    k.I("v_mov_b32 v4, 0")
    k.I(f"buffer_load_dword {v(V_TAG)}, v4, {srd(S_WS)}, 0 offen sc1", tag="E")
    k.stamp("start")


S_G = 100
S_GC = 3


def x_rows(k):
    k.I(f"s_lshl_b32 {s(S_T2)}, {s(S_M)}, 17")
    k.I(f"s_and_b32 {s(S_T3)}, {s(S_J)}, 7")
    k.I(f"s_lshl_b32 {s(S_T3)}, {s(S_T3)}, 4")
    k.I(f"s_add_u32 {s(S_T3)}, {s(S_T3)}, {s(S_W)}")
    k.I(f"s_sub_u32 {s(S_T3)}, {s(S_T3)}, 1")
    k._tag = "x"
    for n in range(43):
        if n == 42:
            last = k.newlabel("xlast")
            k.I(f"s_cmp_eq_u32 {s(S_W)}, 3")
            k.I(f"s_cbranch_scc1 {last}")
        k.I(f"s_and_b32 {s(S_T0)}, {s(S_T3)}, 127")
        k.I(f"s_and_b32 {s(S_T1)}, {s(S_T0)}, 15")
        k.I(f"s_lshl_b32 {s(S_T1)}, {s(S_T1)}, 4")
        k.I(f"v_xor_b32 v9, {s(S_T1)}, {v(V_L16)}")
        k.I(f"s_lshl_b32 m0, {s(S_T0)}, 10")
        k.I(f"s_add_u32 {s(S_OFF)}, m0, {s(S_T2)}")
        k.dma(9, S_X, s(S_OFF))
        if n < 42:
            k.I(f"s_add_u32 {s(S_T3)}, {s(S_T3)}, 3")
    k.label(last)
    k._tag = None


def touch_wqkv(k):
    if OPT["touch"]:
        k.I(f"v_lshrrev_b32 v13, 2, {v(V_LANE)}")
        k.I("v_mul_u32_u24 v13, 3072, v13")
        k.I(f"v_and_b32 v14, 3, {v(V_LANE)}")
        k.I("v_lshl_add_u32 v13, v14, 7, v13")
        k.I(f"s_mul_i32 {s(S_OFF)}, {s(S_I)}, {16*3072}")
        k.I(f"s_sub_u32 {s(S_T0)}, {s(S_W)}, 1")
        k.I(f"s_lshl_b32 {s(S_T0)}, {s(S_T0)}, 10")
        k.I(f"s_add_u32 {s(S_OFF)}, {s(S_OFF)}, {s(S_T0)}")
        k.I(f"s_and_b32 {s(S_T0)}, {s(S_XCD)}, 1")
        k.I(f"s_lshl_b32 {s(S_T0)}, {s(S_T0)}, 9")
        k.I(f"s_add_u32 {s(S_OFF)}, {s(S_OFF)}, {s(S_T0)}")
        k.touch(S_WQKV, 13, s(S_OFF), dst=176)


def mod_group(k):
    k.I(f"s_lshr_b32 {s(S_T0)}, {s(S_I)}, 2")
    k.I(f"s_lshl_b32 {s(S_T0)}, {s(S_T0)}, 3")
    k.I(f"s_add_u32 {s(S_T0)}, {s(S_T0)}, {s(S_XCD)}")
    k.I(f"s_lshl_b32 {s(S_T0)}, {s(S_T0)}, 2")
    k.I(f"s_and_b32 {s(S_T1)}, {s(S_I)}, 3")
    k.I(f"s_add_u32 {s(S_G)}, {s(S_T0)}, {s(S_T1)}")


def wm_voff(k, dst, tmp):
    k.I(f"v_lshrrev_b32 {v(dst)}, 1, {v(V_LANE)}")
    k.I(f"v_mul_u32_u24 {v(dst)}, 6144, {v(dst)}")
    k.I(f"v_and_b32 {v(tmp)}, 1, {v(V_LANE)}")
    k.I(f"v_lshlrev_b32 {v(tmp)}, 4, {v(tmp)}")
    k.I(f"s_lshl_b32 {s(S_T0)}, {s(S_G)}, 5")
    k.I(f"v_add3_u32 {v(dst)}, {v(dst)}, {v(tmp)}, {s(S_T0)}")


def gemv16(k, lds_base, nq=16, partial=False, nbuf=112):
    k.I(f"v_lshrrev_b32 v8, 4, {v(V_LANE)}")
    k.I("v_lshlrev_b32 v8, 3, v8")
    k.I(f"v_add_u32 v8, {L_S}, v8")
    if partial:
        k.I(f"s_and_b32 {s(S_T0)}, {s(S_I)}, 3")
        k.I(f"s_lshl_b32 {s(S_T0)}, {s(S_T0)}, 8")
        k.I(f"v_add_u32 v8, {s(S_T0)}, v8")
    k.I(f"v_lshlrev_b32 v10, 3, {v(V_LANE)}")
    k.I(f"v_add_u32 v10, {lds_base}, v10")
    for q in range(nq + 2):
        if q < nq:
            b = nbuf + 8 * (q & 3)
            k.I(f"ds_read_b64_tr_b16 {v(b+4, 2)}, v10 offset:{q*1024}")
            k.I(f"ds_read_b64_tr_b16 {v(b+6, 2)}, v10 offset:{q*1024+512}")
            k.I(f"ds_read_b64 {v(b, 2)}, v8 offset:{q*64}")
            k.I(f"ds_read_b64 {v(b+2, 2)}, v8 offset:{q*64+32}")
        if q >= 2:
            k.I(f"s_waitcnt lgkmcnt({8 if q < nq else (4 if q == nq else 0)})")
            bb = nbuf + 8 * ((q - 2) & 3)
            acc = 144 + 4 * (q & 1)
            c = "0" if q < 4 else v(acc, 4)
            k.I(f"v_mfma_f32_16x16x32_bf16 {v(acc, 4)}, {v(bb, 4)}, {v(bb+4, 4)}, {c}")
    k.test_delay(1 if partial else 2)
    k.I("v_add_f32 v144, v144, v148")
    k.I("v_mov_b32_dpp v145, v144 quad_perm:[1,0,3,2] row_mask:0xf bank_mask:0xf")
    if partial:
        k.I(f"v_mov_b32 v146, {v(V_TAG)}")
        k.I("v_mov_b32 v147, 0")
        k.I(f"v_lshlrev_b32 v8, 3, {v(V_LANE)}")
        k.I(f"s_and_b32 {s(S_T0)}, {s(S_I)}, 3")
        k.I(f"s_lshl_b32 {s(S_T0)}, {s(S_T0)}, 13")
        k.I(f"s_lshl_b32 {s(S_T1)}, {s(S_GC)}, 7")
        k.I(f"s_add_u32 {s(S_T0)}, {s(S_T0)}, {s(S_T1)}")
        k.I(f"s_add_u32 {s(S_T0)}, {s(S_T0)}, {WS_MODC}")
        k.I(f"v_add_u32 v8, {s(S_T0)}, v8")
        k.I("s_mov_b64 exec, 0x5555")
        k.I(f"buffer_store_dwordx4 v[144:147], v8, {srd(S_WS)}, 0 offen sc1")
    else:
        k.I("v_cvt_pk_bf16_f32 v144, v144, v145")
        k.I(f"v_mov_b32 v145, {v(V_TAG)}")
        k.I(f"v_lshlrev_b32 v8, 2, {v(V_LANE)}")
        k.I(f"s_lshl_b32 {s(S_T0)}, {s(S_G)}, 6")
        k.I(f"s_add_u32 {s(S_T0)}, {s(S_T0)}, {WS_MODG}")
        k.I(f"v_add_u32 v8, {s(S_T0)}, v8")
        k.I("s_mov_b64 exec, 0x5555")
        k.I(f"buffer_store_dwordx2 v[144:145], v8, {srd(S_WS)}, 0 offen sc1")
    k.I("s_mov_b64 exec, -1")


def mall_touch(k):
    k.I(f"v_min_u32 v9, 55, {v(V_LANE)}")
    k.I("v_lshlrev_b32 v9, 7, v9")
    k.I(f"s_mul_i32 {s(S_OFF)}, s2, {56*128}")
    for r in (S_WG, S_WU, S_WD):
        k.touch(r, 9, s(S_OFF), dst=176)
    k.I(f"v_and_b32 v9, 15, {v(V_LANE)}")
    k.I("v_lshlrev_b32 v9, 7, v9")
    k.I(f"s_lshl_b32 {s(S_OFF)}, s2, 11")
    k.touch(S_WO, 9, s(S_OFF), dst=176)
    k.I(f"v_lshrrev_b32 v9, 5, {v(V_LANE)}")
    k.I("v_mul_u32_u24 v9, 6144, v9")
    k.I(f"v_and_b32 v10, 31, {v(V_LANE)}")
    k.I("v_lshl_add_u32 v9, v10, 7, v9")
    k.I(f"s_mul_i32 {s(S_OFF)}, s2, {2*6144}")
    k.I(f"s_add_u32 {s(S_OFF)}, {s(S_OFF)}, 2048")
    k.touch(S_WMOD, 9, s(S_OFF), dst=176)


def start_phase(k):
    mod_group(k)
    k.I(f"s_lshr_b32 {s(S_T0)}, {s(S_I)}, 4")
    k.I(f"s_lshl_b32 {s(S_T0)}, {s(S_T0)}, 3")
    k.I(f"s_add_u32 {s(S_T0)}, {s(S_T0)}, {s(S_XCD)}")
    k.I(f"s_lshl_b32 {s(S_T0)}, {s(S_T0)}, 2")
    k.I(f"s_bfe_u32 {s(S_T1)}, {s(S_I)}, {(2 << 16) | 2}")
    k.I(f"s_add_u32 {s(S_GC)}, {s(S_T0)}, {s(S_T1)}")
    k.cond_begin()
    wa, wb = k.newlabel("st_b"), k.newlabel("st_j")
    k.wave_is(0, wa)
    k.I(f"buffer_load_dwordx4 v[24:27], {v(V_L16)}, {srd(S_C)}, 0 offen")
    k.I(f"v_lshrrev_b32 v7, 1, {v(V_LANE)}")
    k.I("v_mul_u32_u24 v7, 6144, v7")
    k.I(f"v_and_b32 v8, 1, {v(V_LANE)}")
    k.I("v_lshlrev_b32 v8, 4, v8")
    k.I(f"s_lshl_b32 {s(S_T0)}, {s(S_GC)}, 5")
    k.I(f"v_add3_u32 v7, v7, v8, {s(S_T0)}")
    k.I(f"s_and_b32 {s(S_OFF)}, {s(S_I)}, 3")
    k.I(f"s_mul_i32 {s(S_OFF)}, {s(S_OFF)}, {128*6144}")
    k.I(f"s_mov_b32 m0, {L_WM}")
    k._tag = "wm"
    for n in range(4):
        k.dma(7, S_WMOD, s(S_OFF))
        if n < 3:
            k.I(f"s_add_u32 m0, m0, 1024")
            k.I(f"s_add_u32 {s(S_OFF)}, {s(S_OFF)}, 196608")
    k._tag = None
    k.I(f"s_branch {wb}")
    k.label(wa)
    k.I(f"s_lshl_b32 {s(S_OFF)}, {s(S_HP)}, 10")
    k.I(f"s_mov_b32 m0, {L_PHI}")
    k.dma(V_L16, S_WPHI, s(S_OFF))
    touch_wqkv(k)
    x_rows(k)
    k.label(wb)
    k.cond_end()
    k.vmq = []


def start_finish(k):
    k.cond_begin()
    wa, wb = k.newlabel("sf_b"), k.newlabel("sf_j")
    k.wave_is(0, wa)
    k.I("s_waitcnt vmcnt(4)")
    k.I(f"v_add_u32 {v(V_TAG)}, 1, {v(V_TAG)}")
    for i in range(4):
        k.unpack(28 + 2 * i, 29 + 2 * i, 24 + i)
    for i in range(8):
        k.I(f"v_mul_f32 {v(36+i)}, {s(S_L2E)}, {v(28+i)}")
    for i in range(8):
        k.I(f"v_exp_f32 {v(36+i)}, -{v(36+i)}")
    for i in range(8):
        k.I(f"v_add_f32 {v(36+i)}, 1.0, {v(36+i)}")
    for i in range(8):
        k.I(f"v_rcp_f32 {v(36+i)}, {v(36+i)}")
    for i in range(8):
        k.I(f"v_mul_f32 {v(28+i)}, {v(28+i)}, {v(36+i)}")
    for i in range(4):
        k.I(f"v_cvt_pk_bf16_f32 {v(24+i)}, {v(28+2*i)}, {v(29+2*i)}")
    k.I(f"v_add_u32 v8, {L_S}, {v(V_L16)}")
    k.I("ds_write_b128 v8, v[24:27]")
    k.I("s_waitcnt vmcnt(0) lgkmcnt(0)")
    gemv16(k, L_WM, nq=4, partial=True)
    if OPT["mall"]:
        mall_touch(k)
    k.I(f"s_branch {wb}")
    k.label(wa)
    k.I("s_waitcnt vmcnt(0)")
    k.I(f"v_add_u32 {v(V_TAG)}, 1, {v(V_TAG)}")
    k.label(wb)
    k.cond_end()
    k.I(f"v_readfirstlane_b32 {s(S_TAG)}, {v(V_TAG)}")
    k.stamp("mod published")
    k.lgq = []
    k.barrier()


def modn_compute(k):
    skip = k.newlabel("mn_c")
    k.I("s_sub_u32 s55, s2, 64")
    k.I("s_cmp_ge_u32 s55, 128")
    k.I(f"s_cbranch_scc1 {skip}")
    k.wave_is(2, skip)
    k.cond_begin()
    gemv16(k, L_WMN)
    k.cond_end()
    k.label(skip)


X0 = 16
AQ, AK, AV = 144, 160, 176
DM = 144
DG = 192
EB = (200, 204)
BEXT = 208
MSK = 212
V_TRK, V_TRV, V_TAB, V_R, V_TRQ = 220, 221, 222, 223, 4


def lane_fields(k, t_r=None, s_=None, r_=None, c_=None, nh=None):
    if s_ is not None:
        k.I(f"v_lshrrev_b32 {v(s_)}, 5, {v(V_LANE)}")
    if nh is not None:
        k.I(f"v_bfe_u32 {v(nh)}, {v(V_LANE)}, 4, 1")
    if r_ is not None:
        k.I(f"v_bfe_u32 {v(r_)}, {v(V_LANE)}, 2, 2")
    if c_ is not None:
        k.I(f"v_and_b32 {v(c_)}, 3, {v(V_LANE)}")


def lbase_bytes(k, dst, nh, c, t0, t1):
    k.I(f"v_and_b32 {v(t0)}, 1, {v(c)}")
    k.I(f"v_lshlrev_b32 {v(t0)}, 5, {v(t0)}")
    k.I(f"v_lshrrev_b32 {v(t1)}, 1, {v(c)}")
    k.I(f"v_lshlrev_b32 {v(t1)}, 3, {v(t1)}")
    k.I(f"v_lshl_add_u32 {v(dst)}, {v(nh)}, 4, {v(t0)}")
    k.I(f"v_add_u32 {v(dst)}, {v(dst)}, {v(t1)}")


MODA_REGS = [144 + 4 * i for i in range(8)]
MODA_ADDR = [202, 203, 204, 205, 206, 207, 241, 242]


def p1_prologue(k):
    k.I("v_mov_b32 v8, 0")
    k.I(f"v_lshlrev_b32 v9, 2, {v(V_LANE)}")
    k.I(f"v_and_b32 v9, 60, v9")
    k.I(f"v_add_u32 v9, {L_ZERO}, v9")
    k.I("ds_write_b32 v9, v8")
    p1_static(k)
    k.I(f"v_and_b32 v8, 31, {v(V_LANE)}")
    k.I(f"s_lshl_b32 {s(S_T0)}, {s(S_W)}, 5")
    k.I(f"v_add_u32 v9, {s(S_T0)}, v8")
    k.I("v_lshlrev_b32 v9, 10, v9")
    k.I("v_and_b32 v8, 15, v8")
    k.I(f"v_lshrrev_b32 v10, 5, {v(V_LANE)}")
    for q in range(8):
        k.I(f"v_add_u32 v11, {2*q}, v10")
        k.I("v_xor_b32 v11, v11, v8")
        k.I(f"v_lshl_add_u32 {v(192+q)}, v11, 4, v9")
    k.I(f"v_lshrrev_b32 v8, 3, {v(V_LANE)}")
    k.I("v_mul_u32_u24 v8, 3072, v8")
    k.I(f"v_and_b32 v9, 7, {v(V_LANE)}")
    k.I(f"v_bfe_u32 v10, {v(V_LANE)}, 4, 1")
    k.I("v_lshlrev_b32 v10, 2, v10")
    k.I("v_xor_b32 v9, v9, v10")
    k.I("v_lshrrev_b32 v10, 2, v9")
    k.I("v_lshlrev_b32 v10, 10, v10")
    k.I("v_and_b32 v9, 3, v9")
    k.I("v_lshl_add_u32 v10, v9, 4, v10")
    k.I(f"s_lshl_b32 {s(S_T0)}, {s(S_HP)}, 6")
    k.I(f"s_add_u32 {s(S_T1)}, {s(S_T0)}, 1024")
    k.I(f"v_add3_u32 v200, v8, v10, {s(S_T1)}")
    k.I(f"v_lshrrev_b32 v8, 2, {v(V_LANE)}")
    k.I("v_mul_u32_u24 v8, 3072, v8")
    k.I(f"v_and_b32 v9, 3, {v(V_LANE)}")
    k.I("v_lshl_add_u32 v8, v9, 4, v8")
    k.I(f"v_add_u32 v6, {s(S_T0)}, v8")
    k.I("v_lshlrev_b32 v202, 4, v0")
    k.I(f"v_add_u32 v202, {WS_MODC}, v202")
    k.I(f"v_add_u32 v203, 8192, v202")
    k.I(f"v_add_u32 v204, 16384, v202")
    k.I(f"v_add_u32 v205, 24576, v202")
    k.I(f"v_add_u32 v206, 4096, v202")
    k.I(f"v_add_u32 v207, 4096, v203")
    k.I(f"v_add_u32 v241, 4096, v204")
    k.I(f"v_add_u32 v242, 4096, v205")
    start_finish(k)
    for j in range(32):
        k.I(f"ds_read_b128 {v(X0+4*j, 4)}, {v(192+(j&7))} offset:{L_XI + (j>>3)*256}", tag="xf")
        if j % 8 == 7 and j < 31:
            k.I("s_waitcnt lgkmcnt(4)")
    k.wait_lg_all()
    k.barrier()
    k.stamp("x in regs")
    k.I(f"s_mul_i32 {s(S_T2)}, {s(S_W)}, {128*3072}")
    k.I(f"s_lshl_b32 {s(S_T3)}, {s(S_W)}, 14")
    if L_KVI:
        k.I(f"s_add_u32 {s(S_T3)}, {s(S_T3)}, {L_KVI}")
    k.I("v_mov_b32 v8, 0x3f803f80")
    for r in range(10, 14):
        k.I(f"v_mov_b32 {v(r)}, 0")
    dots = []
    for i in range(128):
        dots.append(f"v_dot2c_f32_bf16 {v(10 + (i & 1))}, {v(X0+i)}, v8")
        dots.append(f"v_dot2c_f32_bf16 {v(12 + (i & 1))}, {v(X0+i)}, {v(X0+i)}")
    k._tag = "w"
    for n in range(16):
        k.I(f"s_add_u32 {s(S_OFF)}, {s(S_T2)}, {n*8*3072}")
        k.I(f"s_add_u32 m0, {s(S_T3)}, {n*1024}")
        k.dma(200, S_WQKV, s(S_OFF))
        for _ in range(10):
            k.I(dots.pop(0))
    k._tag = None
    for r, ad in zip(MODA_REGS, MODA_ADDR):
        k.granule_loads([r], [ad], 4, None, "modA")
        for _ in range(8):
            k.I(dots.pop(0))
    k.side_items = p1_side(k, regs=(243, 244, 245, 246))
    if not OPT.get("tloop"):
        for it in k.side_items:
            for t, tg in it:
                k.I(t, tag=tg)
            for _ in range(6):
                k.I(dots.pop(0))
        k.side_items = []
    for t in dots:
        k.I(t)
    k.I("v_add_f32 v10, v10, v11")
    k.I("v_add_f32 v12, v12, v13")
    k.half_total(10, 11)
    k.half_total(12, 13)
    k.I("v_mul_f32 v10, 0x3b000000, v10")
    k.I("v_mul_f32 v12, 0x3b000000, v12")
    k.I("v_fma_f32 v12, -v10, v10, v12")
    k.I("v_max_f32 v12, 0, v12")
    k.I("v_add_f32 v12, 0x3727c5ac, v12")
    k.I(f"v_rsq_f32 {v(V_R)}, v12")
    k.I("v_sub_f32 v10, 0, v10")
    k.I(f"v_mul_f32 v11, v12, {v(V_R)}")
    k.I("v_cvt_pk_bf16_f32 v12, v10, v11")
    k.unpack(8, 9, 12)
    k.I("v_sub_f32 v8, v10, v8")
    k.I("v_sub_f32 v9, v11, v9")
    k.I("v_cvt_pk_bf16_f32 v13, v8, v9")
    k.I(f"s_mov_b32 {s(S_T0)}, 0x01000100")
    k.I(f"s_mov_b32 {s(S_T1)}, 0x03020302")
    k.I(f"v_perm_b32 {v(BEXT)}, v12, v12, {s(S_T0)}")
    k.I(f"v_perm_b32 {v(BEXT+1)}, v13, v13, {s(S_T0)}")
    k.I(f"v_perm_b32 {v(BEXT+2)}, v12, v12, {s(S_T1)}")
    k.I(f"v_perm_b32 {v(BEXT+3)}, v13, v13, {s(S_T1)}")
    k.I(f"v_cmp_gt_u32 vcc, 32, {v(V_LANE)}")
    for i in range(4):
        k.I(f"v_cndmask_b32 {v(BEXT+i)}, 0, {v(BEXT+i)}, vcc")
    k.stamp("stats")
    p1_rv(k)
    k.granule_verify(MODA_REGS, MODA_ADDR, "modA", 4, (2,), None, "modA")
    k.stamp("mod arrived")
    for base in (144, 160):
        k.I(f"v_pk_add_f32 {v(base,2)}, {v(base,2)}, {v(base+4,2)}")
        k.I(f"v_pk_add_f32 {v(base+8,2)}, {v(base+8,2)}, {v(base+12,2)}")
        k.I(f"v_pk_add_f32 {v(base,2)}, {v(base,2)}, {v(base+8,2)}")
    k.I("v_cvt_pk_bf16_f32 v204, v144, v145")
    k.I("v_cvt_pk_bf16_f32 v206, v160, v161")
    k.unpack(192, 193, 206)
    k.I("v_add_f32 v192, 1.0, v192")
    k.I("v_add_f32 v193, 1.0, v193")
    k.I("v_cvt_pk_bf16_f32 v12, v192, v193")
    k.I("v_and_b32 v192, 0xffff, v12")
    k.I("v_and_b32 v194, 0xffff, v204")
    k.I(f"v_and_b32 v196, {s(S_MASK)}, v12")
    k.I(f"v_and_b32 v198, {s(S_MASK)}, v204")
    for r in (192, 194, 196, 198):
        k.I(f"v_mov_b32 {v(r+1)}, {v(r)}")
    k.I("v_lshlrev_b32 v8, 5, v0")
    k.I(f"v_add_u32 v8, {L_CT}, v8")
    k.I("ds_write_b128 v8, v[192:195]")
    k.I("ds_write_b128 v8, v[196:199] offset:16")
    k.vmq = []
    k.wait_lg_all()
    k.barrier()
    k.stamp("P1 ready")
    k.stamp("c0", cyc=True) if STAMPS and "c0" in STAMPS else None


def p1_static(k):
    k.I(f"v_bfe_u32 v8, {v(V_LANE)}, 1, 2")
    k.I(f"v_bfe_u32 v9, {v(V_LANE)}, 4, 1")
    k.I("v_lshl_add_u32 v8, v9, 2, v8")
    k.I(f"v_bfe_u32 v9, {v(V_LANE)}, 3, 1")
    k.I(f"v_lshrrev_b32 v10, 5, {v(V_LANE)}")
    k.I("v_xor_b32 v9, v9, v10")
    k.I("v_lshl_add_u32 v8, v9, 3, v8")
    for i in range(8):
        k.I(f"v_cmp_eq_u32 vcc, {i}, v8")
        k.I(f"v_cndmask_b32 {v(MSK+i)}, 0, -1, vcc")
    lane_fields(k, s_=8, r_=9, c_=10, nh=11)
    lbase_bytes(k, 12, 11, 10, 13, 14)
    k.I("v_lshl_add_u32 v8, v8, 2, v9")
    k.I("v_lshlrev_b32 v13, 7, v8")
    k.I("v_lshrrev_b32 v9, 1, v9")
    k.I("v_lshl_add_u32 v13, v9, 6, v13")
    k.I(f"v_add_u32 {v(V_TRK)}, v13, v12")
    k.I(f"v_xor_b32 {v(V_TRV)}, 64, {v(V_TRK)}")
    k.I("v_lshlrev_b32 v13, 6, v8")
    k.I("v_add_u32 v13, v13, v12")
    k.I(f"v_add_u32 {v(V_TRQ)}, {L_QI}, v13")
    k.I(f"v_and_b32 v8, 31, {v(V_LANE)}")
    k.I("v_lshlrev_b32 v8, 4, v8")
    k.I(f"v_add_u32 {v(V_TAB)}, {L_CT}, v8")
    p1_sel(k)


def p1_w(j, p):
    if p == 0:
        return V_TRQ, j * 1024, 512
    return (V_TRK if p == 1 else V_TRV), L_KVI + j * 2048, 1024


def p1_main(k):
    def rd_e(B):
        return [(f"ds_read_b128 {v(EB[B & 1], 4)}, {v(V_TAB)} offset:{B*512}", f"e{B}")]

    def rd_w(B):
        out = []
        for a in range(2):
            for pi, p in enumerate((1, 2)):
                base, off, st = p1_w(2 * B + a, p)
                for rd in range(2):
                    out.append((f"ds_read_b64_tr_b16 {a_(16*(B&1) + 8*a + 4*pi + 2*rd, 2)}, {v(base)} offset:{off + rd*st}", f"w{B}_{a}{pi}"))
        return out

    def diag(B):
        return [f"v_and_b32 {v(DG+i)}, {v(EB[B & 1])}, {v(MSK+i)}" for i in range(8)]

    def pack(B):
        return [f"v_cvt_pk_bf16_f32 {v(X0 + 8*B + i)}, {v(DM + 2*i)}, {v(DM + 2*i + 1)}" for i in range(8)]

    def mod_mfma(B, i):
        if i < 2:
            k.mfma32(v(DM, 16), v(DG + 4 * i, 4), v(X0 + 8 * B + 4 * i, 4), "0" if i == 0 else None)
        else:
            k.mfma32(v(DM, 16), v(EB[B & 1], 4), v(BEXT, 4))

    def emit(items):
        for it in items:
            if isinstance(it, tuple):
                k.I(it[0], tag=it[1])
            else:
                k.I(it)

    side = k.side_items
    emit(rd_e(0) + rd_e(1) + rd_w(0))
    k.wait_lg("e0")
    emit(diag(0))
    for i in range(3):
        mod_mfma(0, i)
    k.wait_lg("e1")
    emit(diag(1))
    emit(pack(0))
    for B in range(16):
        nxt = B + 1 < 16
        w = rd_w(B + 1) if nxt else []
        e = rd_e(B + 2) if B + 2 < 16 else []
        dg = diag(B + 2) if B + 2 < 16 else []
        pk = pack(B + 1) if nxt else []

        def g(a, pi):
            k.wait_lg(f"w{B}_{a}{pi}")
            wf = a_(16 * (B & 1) + 8 * a + 4 * pi, 4)
            h = v(X0 + 8 * B + 4 * a, 4)
            c0 = "0" if (B == 0 and a == 0) else None
            if pi == 0:
                k.mfma32(v(AK, 16), wf, h, c0)
            else:
                k.mfma32(v(AV, 16), h, wf, c0)

        if nxt:
            mod_mfma(B + 1, 0)
        emit(e + w[0:2])
        if nxt:
            mod_mfma(B + 1, 1)
        emit(w[2:4])
        if nxt:
            mod_mfma(B + 1, 2)
        emit(w[4:6])
        g(0, 0)
        emit(w[6:8])
        if dg:
            k.wait_lg(f"e{B+2}")
        emit(dg[0:3])
        g(0, 1)
        emit(dg[3:8])
        g(1, 0)
        emit(pk[0:4])
        g(1, 1)
        emit(pk[4:8])
        if side:
            emit(side.pop(0))
    assert not side
    k.stamp("p1 main")
    k.stamp("c1", cyc=True) if STAMPS and "c1" in STAMPS else None


def p1_q(k):
    def rd(j):
        base, off, st = p1_w(j, 0)
        return [(f"ds_read_b64_tr_b16 {a_(4*(j % 6) + 2*rd, 2)}, {v(base)} offset:{off + rd*st}", f"q{j}") for rd in range(2)]
    for j in range(32 + 4):
        if j < 32:
            for t, tg in rd(j):
                k.I(t, tag=tg)
        q = j - 4
        if q >= 0:
            k.wait_lg(f"q{q}")
            k.mfma32(v(AQ, 16), a_(4 * (q % 6), 4), v(X0 + 4 * q, 4), "0" if q == 0 else None)


def softmax16(k, P, E, outp, outn, t, filler=None, every=4):
    mx, mn = t, t + 2
    k.I(f"v_max3_f32 {v(mx)}, {v(P)}, {v(P+1)}, {v(P+2)}")
    k.I(f"v_min3_f32 {v(mn)}, {v(P)}, {v(P+1)}, {v(P+2)}")
    for i in range(3, 15, 2):
        k.I(f"v_max3_f32 {v(mx)}, {v(mx)}, {v(P+i)}, {v(P+i+1)}")
        k.I(f"v_min3_f32 {v(mn)}, {v(mn)}, {v(P+i)}, {v(P+i+1)}")
    k.I(f"v_max_f32 {v(mx)}, {v(mx)}, {v(P+15)}")
    k.I(f"v_min_f32 {v(mn)}, {v(mn)}, {v(P+15)}")
    k.I(f"v_mul_f32 {v(mx)}, {s(S_L2E)}, {v(mx)}")
    k.I(f"v_mul_f32 {v(mn)}, {s(S_L2E)}, {v(mn)}")
    for sign, m, out in ((+1, mx, outp), (-1, mn, outn)):
        for i in range(0, 16, 2):
            if sign > 0:
                k.I(f"v_pk_fma_f32 {v(E+i,2)}, {v(P+i,2)}, {s(S_L2E,2)}, {v(m,2)} op_sel_hi:[1,1,0] neg_lo:[0,0,1] neg_hi:[0,0,1]")
            else:
                k.I(f"v_pk_fma_f32 {v(E+i,2)}, {v(P+i,2)}, {s(S_L2E,2)}, {v(m,2)} op_sel_hi:[1,1,0] neg_lo:[1,0,0] neg_hi:[1,0,0]")
        for i in range(16):
            k.I(f"v_exp_f32 {v(E+i)}, {v(E+i)}")
            if filler and i % every == every - 1:
                for tt, tg in filler.pop(0):
                    k.I(tt, tag=tg)
        sm = t + 4
        k.I(f"v_pk_add_f32 {v(sm,2)}, {v(E,2)}, {v(E+2,2)}")
        for i in range(4, 16, 2):
            k.I(f"v_pk_add_f32 {v(sm,2)}, {v(sm,2)}, {v(E+i,2)}")
        k.I(f"v_add_f32 {v(sm)}, {v(sm)}, {v(sm+1)}")
        k.I(f"v_rcp_f32 {v(sm)}, {v(sm)}")
        for i in range(0, 16, 2):
            k.I(f"v_pk_mul_f32 {v(E+i,2)}, {v(E+i,2)}, {v(sm,2)} op_sel_hi:[1,0]")
        for i in range(8):
            k.I(f"v_cvt_pk_bf16_f32 {v(out+i)}, {v(E+2*i)}, {v(E+2*i+1)}")


PHI_A, PHI_B = 224, 228
SEL0, SEL1, SELN0, SELN1 = 232, 236, 240, 244
RV = 224
PK, VP = 144, 152
PP = 160
EE = 192
TMP = 208
FP, FN = 224, 232
TP, TN = 176, 160
KVA, KVB = 192, 240
QP, QN = 96, 104


def p1_sel(k):
    k.I(f"v_bfe_u32 v8, {v(V_LANE)}, 3, 1")
    k.I(f"v_and_b32 v9, 3, {v(V_LANE)}")
    k.I("v_lshl_add_u32 v8, v8, 2, v9")
    k.I("v_and_b32 v9, 1, v8")
    k.I("v_lshlrev_b32 v9, 4, v9")
    k.I("v_mov_b32 v10, 0x3f80")
    k.I("v_lshlrev_b32 v9, v9, v10")
    k.I("v_lshrrev_b32 v8, 1, v8")
    k.I(f"v_bfe_u32 v10, {v(V_LANE)}, 4, 1")
    k.I(f"v_bfe_u32 v11, {v(V_LANE)}, 2, 1")
    k.I(f"v_lshrrev_b32 v12, 5, {v(V_LANE)}")
    k.I("v_xor_b32 v11, v11, v12")
    k.I(f"v_cmp_eq_u32 {s(S_VALID,2)}, 0, v11")
    k.I("v_lshl_add_u32 v13, v10, 2, v8")
    k.I("v_lshl_add_u32 v13, v11, 3, v13")
    for neg, base in ((0, SEL0), (1, SELN0)):
        for a in range(2):
            for d in range(4):
                k.I(f"v_cmp_eq_u32 vcc, {8*neg + 4*a + d}, v13")
                k.I(f"v_cndmask_b32 v14, 0, v9, vcc")
                k.I(f"v_accvgpr_write_b32 {a_(base + 4*a + d)}, v14")


def p1_rv(k):
    k.wait_vm("phi")
    lane_fields(k, s_=8, r_=9, c_=10, nh=11)
    k.I("v_lshlrev_b32 v12, 9, v8")
    k.I("v_lshl_add_u32 v12, v9, 5, v12")
    k.I("v_lshlrev_b32 v13, 1, v11")
    k.I("v_lshrrev_b32 v14, 1, v10")
    k.I("v_add_u32 v13, v13, v14")
    k.I("v_lshl_add_u32 v12, v13, 3, v12")
    k.I(f"v_add_u32 v12, {L_PHI}, v12")
    k.I("v_and_b32 v13, 1, v10")
    k.I("v_cmp_eq_u32 vcc, v13, v8")
    for a in range(2):
        for rd in range(2):
            k.I(f"v_add_u32 v14, {(8*a+4*rd)*32}, v12")
            k.I(f"v_mov_b32 v15, {L_ZERO}")
            k.I("v_cndmask_b32 v14, v15, v14, vcc")
            k.I(f"ds_read_b64_tr_b16 {a_(PHI_A + 4*a + 2*rd, 2)}, v14", tag="phif")
    k.I(f"v_and_b32 v8, 31, {v(V_LANE)}")
    k.I("v_lshlrev_b32 v8, 2, v8")
    k.I(f"s_lshl_b32 {s(S_T0)}, {s(S_W)}, 7")
    k.I(f"s_add_u32 {s(S_T0)}, {s(S_T0)}, {L_RT}")
    k.I(f"v_add_u32 v8, {s(S_T0)}, v8")
    k.I(f"ds_write_b32 v8, {v(V_R)}", tag="rw")
    k.I(f"v_lshrrev_b32 v9, 5, {v(V_LANE)}")
    k.I("v_lshlrev_b32 v9, 4, v9")
    k.I(f"v_add_u32 v9, {s(S_T0)}, v9")
    k.wait_lg("rw")
    for q in range(4):
        k.I(f"ds_read_b128 {v(RV+4*q,4)}, v9 offset:{32*q}", tag="rv")
    k.wait_lg_all()


def p1_epilogue(k):
    k.barrier()
    for i in range(16):
        k.I(f"v_mul_f32 {v(AK+i)}, {v(V_R)}, {v(AK+i)}")
    for i in range(8):
        k.I(f"v_cvt_pk_bf16_f32 {v(PK+i)}, {v(AK+2*i)}, {v(AK+2*i+1)}")
    k.mfma32(v(PP, 16), a_(PHI_A, 4), v(PK, 4), "0")
    k.mfma32(v(PP, 16), a_(PHI_B, 4), v(PK + 4, 4))
    for i in range(16):
        k.I(f"v_mul_f32 {v(AV+i)}, {v(RV+i)}, {v(AV+i)}")
    for i in range(8):
        k.I(f"v_cvt_pk_bf16_f32 {v(VP+i)}, {v(AV+2*i)}, {v(AV+2*i+1)}")
    k.stamp("k proj")
    softmax16(k, PP, EE, FP, FN, TMP, filler=q_image_items(k))
    k.stamp("k softmax")
    k.mfma32(v(TP, 16), v(FP, 4), a_(SEL0, 4), "0")
    k.mfma32(v(TN, 16), v(FN, 4), a_(SELN0, 4), "0")
    k.mfma32(v(TP, 16), v(FP + 4, 4), a_(SEL1, 4))
    k.mfma32(v(TN, 16), v(FN + 4, 4), a_(SELN1, 4))
    for src, pk, z in ((TP, FP, TMP), (TN, FN, TMP + 2)):
        for i in range(8):
            k.I(f"v_cvt_pk_bf16_f32 {v(pk+i)}, {v(src+2*i)}, {v(src+2*i+1)}")
        if src == TP:
            k.mfma32(v(KVA, 16), v(FP, 4), v(VP, 4), "0")
            k.mfma32(v(KVA, 16), v(FP + 4, 4), v(VP + 4, 4))
        else:
            k.mfma32(v(KVB, 16), v(FN, 4), v(VP, 4), "0")
            k.mfma32(v(KVB, 16), v(FN + 4, 4), v(VP + 4, 4))
    for src, z in ((TP, TMP), (TN, TMP + 2)):
        k.I(f"v_add_f32 {v(z)}, {v(src)}, {v(src+1)}")
        k.I(f"v_add_f32 {v(z+1)}, {v(src+2)}, {v(src+3)}")
        for i in range(4, 16, 2):
            k.I(f"v_add_f32 {v(z)}, {v(z)}, {v(src+i)}")
            k.I(f"v_add_f32 {v(z+1)}, {v(z+1)}, {v(src+i+1)}")
    k.I(f"v_add_f32 {v(TMP+4)}, {v(TMP)}, {v(TMP+1)}")
    k.I(f"v_add_f32 {v(TMP+5)}, {v(TMP+2)}, {v(TMP+3)}")
    for i in range(16):
        k.I(f"v_cndmask_b32 {v(KVA+i)}, {v(KVB+i)}, {v(KVA+i)}, {s(S_VALID,2)}")
    k.stamp("kv mfma")
    k.I(f"s_mul_i32 {s(S_T0)}, {s(S_W)}, 4608")
    k.I(f"s_add_u32 {s(S_T0)}, {s(S_T0)}, {L_RED}")
    k.I(f"v_add_u32 v8, {s(S_T0)}, {v(V_L16)}")
    for q in range(4):
        k.I(f"ds_write_b128 v8, {v(KVA+4*q,4)} offset:{q*1024}")
    k.I(f"v_lshlrev_b32 v9, 3, {v(V_LANE)}")
    k.I(f"v_add_u32 v9, {s(S_T0)}, v9")
    k.I(f"ds_write_b64 v9, {v(TMP+4,2)} offset:4096")
    k.wait_lg_all()
    k.barrier()
    k.stamp("red barrier")
    k.I(f"s_lshl_b32 {s(S_T0)}, {s(S_W)}, 10")
    k.I(f"s_add_u32 {s(S_T0)}, {s(S_T0)}, {L_RED}")
    k.I(f"v_add_u32 v8, {s(S_T0)}, {v(V_L16)}")
    for ww in range(4):
        k.I(f"ds_read_b128 {v(KVA+4*ww,4)}, v8 offset:{ww*4608}")
    k.I(f"v_lshlrev_b32 v9, 3, {v(V_LANE)}")
    k.I(f"v_add_u32 v9, {L_RED + 4096}, v9")
    for ww in range(4):
        k.I(f"ds_read_b64 {v(KVB+2*ww,2)}, v9 offset:{ww*4608}")
    k.wait_lg_all()
    for h in (0, 2):
        k.I(f"v_pk_add_f32 {v(KVA+h,2)}, {v(KVA+h,2)}, {v(KVA+4+h,2)}")
        k.I(f"v_pk_add_f32 {v(KVA+8+h,2)}, {v(KVA+8+h,2)}, {v(KVA+12+h,2)}")
        k.I(f"v_pk_add_f32 {v(KVA+h,2)}, {v(KVA+h,2)}, {v(KVA+8+h,2)}")
    k.I(f"v_cvt_pk_bf16_f32 {v(KVA)}, {v(KVA)}, {v(KVA+1)}")
    k.I(f"v_cvt_pk_bf16_f32 {v(KVA+1)}, {v(KVA+2)}, {v(KVA+3)}")
    k.I(f"v_pk_add_f32 {v(KVB,2)}, {v(KVB,2)}, {v(KVB+2,2)}")
    k.I(f"v_pk_add_f32 {v(KVB+4,2)}, {v(KVB+4,2)}, {v(KVB+6,2)}")
    k.I(f"v_pk_add_f32 {v(KVB,2)}, {v(KVB,2)}, {v(KVB+4,2)}")
    k.I(f"v_cvt_pk_bf16_f32 {v(KVB)}, {v(KVB)}, {v(KVB+1)}")
    k.test_delay(3)
    k.I(f"v_mov_b32 {v(KVA+2)}, {v(KVB)}")
    k.I(f"v_mov_b32 {v(KVA+3)}, {v(V_TAG)}")
    k.I(f"s_lshl_b32 {s(S_T0)}, {s(S_HP)}, 4")
    k.I(f"s_add_u32 {s(S_T0)}, {s(S_T0)}, {s(S_M)}")
    k.I(f"s_lshl_b32 {s(S_T1)}, {s(S_T0)}, 12")
    k.I(f"s_lshl_b32 {s(S_T2)}, {s(S_W)}, 10")
    k.I(f"s_add_u32 {s(S_T1)}, {s(S_T1)}, {s(S_T2)}")
    k.I(f"s_add_u32 {s(S_T1)}, {s(S_T1)}, {WS_KVP}")
    k.I(f"buffer_store_dwordx4 {v(KVA,4)}, {v(V_L16)}, {srd(S_WS)}, {s(S_T1)} offen sc1", tag="kvst")
    k.wait_vm("wq")
    k.barrier()
    k.stamp("kv published")
    modn_issue(k)
    p1_q(k)
    k.stamp("q gemm")
    kv_addr(k)
    kv_loads(k, "kvp")
    for i in range(16):
        k.I(f"v_mul_f32 {v(AQ+i)}, {v(V_R)}, {v(AQ+i)}")
    for i in range(8):
        k.I(f"v_cvt_pk_bf16_f32 {v(160+i)}, {v(AQ+2*i)}, {v(AQ+2*i+1)}")
    k.mfma32(v(176, 16), a_(PHI_A, 4), v(160, 4), "0")
    k.mfma32(v(176, 16), a_(PHI_B, 4), v(164, 4))
    quad_ids(k)
    softmax16(k, 176, EE, QP, QN, TMP, filler=wo_items(k), every=2)
    k.stamp("q softmax")


S_UB = 101


S_UBO, S_MNO = 90, 91


def p1_side(k, regs):
    ra, rb, rc, rt = regs
    touch_setup(k, ra, rb, rc, rt)
    k.I(f"v_and_b32 {v(rc)}, 31, {v(V_LANE)}")
    k.I(f"v_mul_u32_u24 {v(rc)}, 6144, {v(rc)}")
    k.I(f"s_lshr_b32 {s(S_T0)}, {s(S_G)}, 2")
    k.I(f"s_lshl_b32 {s(S_T0)}, {s(S_T0)}, 7")
    k.I(f"s_and_b32 {s(S_T1)}, {s(S_G)}, 3")
    k.I(f"s_lshl_b32 {s(S_T1)}, {s(S_T1)}, 2")
    k.I(f"s_add_u32 {s(S_T1)}, {s(S_T1)}, {s(S_W)}")
    k.I(f"s_mul_i32 {s(S_T1)}, {s(S_T1)}, {32*6144}")
    k.I(f"s_add_u32 {s(S_MNO)}, {s(S_T0)}, {s(S_T1)}")
    k.I("s_sub_u32 s55, s2, 64")
    k.I("s_cmp_ge_u32 s55, 128")
    k.I(f"s_cselect_b32 {s(S_MNO)}, 0x7ff00000, {s(S_MNO)}")
    items = []
    if OPT["touch"]:
        if OPT.get("tmn", 1):
            items.append([(f"buffer_load_dword v5, {v(rc)}, {srd(S_WMOD)}, {s(S_MNO)} offen{' nt' if OPT.get('tmn_nt', 1) else ''}", "t")])
        for r, a in ((S_WO, ra), (S_WG, rb), (S_WU, rb)):
            items.append([(f"buffer_load_dword v5, {v(a)}, {srd(r)}, 0 offen", "t")])
        if OPT.get("twd", 0):
            items.append([(f"s_lshl_b32 {s(S_T0)}, s2, 2", None), (f"s_add_u32 {s(S_T0)}, {s(S_T0)}, {s(S_W)}", None),
                          (f"s_mul_i32 {s(S_T0)}, {s(S_T0)}, {14*128}", None), (f"v_min_u32 {v(rt)}, 13, {v(V_LANE)}", None),
                          (f"v_lshlrev_b32 {v(rt)}, 7, {v(rt)}", None),
                          (f"buffer_load_dword v5, {v(rt)}, {srd(S_WD)}, {s(S_T0)} offen", "t")])
    return items


def q_image_items(k):
    k.I(f"s_mul_i32 {s(S_T3)}, {s(S_W)}, {128*3072}")
    k.I(f"s_lshl_b32 {s(S_T4)}, {s(S_W)}, 13")
    k.I(f"s_add_u32 {s(S_T4)}, {s(S_T4)}, {L_QI}")
    return [[(f"s_add_u32 {s(S_OFF)}, {s(S_T3)}, {n*16*3072}", None), (f"s_add_u32 m0, {s(S_T4)}, {n*1024}", None),
             (f"buffer_load_dwordx4 v6, {srd(S_WQKV)}, {s(S_OFF)} offen lds", "wq")] for n in range(8)]


def modn_issue(k):
    skip = k.newlabel("mn_i")
    k.I("s_sub_u32 s55, s2, 64")
    k.I("s_cmp_ge_u32 s55, 128")
    k.I(f"s_cbranch_scc1 {skip}")
    k.cond_begin()
    wm_voff(k, 7, 8)
    k.I(f"s_mul_i32 {s(S_OFF)}, {s(S_W)}, {4*196608}")
    k.I(f"s_lshl_b32 {s(S_T0)}, {s(S_W)}, 12")
    k.I(f"s_add_u32 m0, {s(S_T0)}, {L_WMN}")
    for n in range(4):
        k.I(f"buffer_load_dwordx4 v7, {srd(S_WMOD)}, {s(S_OFF)} offen lds")
        if n < 3:
            k.I(f"s_add_u32 m0, m0, 1024")
            k.I(f"s_add_u32 {s(S_OFF)}, {s(S_OFF)}, 196608")
    k.cond_end()
    k.label(skip)


def ub_compute(k):
    skip = k.newlabel("ubc_skip")
    k.I(f"s_cmp_ge_u32 {s(S_I)}, 28")
    k.I(f"s_cbranch_scc1 {skip}")
    k.I(f"s_cmp_lt_u32 {s(S_W)}, 2")
    k.I(f"s_cbranch_scc1 {skip}")
    k.cond_begin()
    S_JOB, S_KH, S_BLK = S_T2, S_T3, S_T4
    k.I(f"s_lshr_b32 {s(S_T0)}, {s(S_XCD)}, 1")
    k.I(f"s_mul_i32 {s(S_JOB)}, {s(S_T0)}, 28")
    k.I(f"s_add_u32 {s(S_JOB)}, {s(S_JOB)}, {s(S_I)}")
    k.I(f"s_cmp_ge_u32 {s(S_JOB)}, 56")
    k.I(f"s_cselect_b32 {s(S_KH)}, 1, 0")
    k.I(f"s_mul_i32 {s(S_T0)}, {s(S_KH)}, 56")
    k.I(f"s_sub_u32 {s(S_BLK)}, {s(S_JOB)}, {s(S_T0)}")
    k.I(f"s_cmp_lt_u32 {s(S_BLK)}, 28")
    for i in range(4):
        k.I(f"s_cselect_b32 {s(S_UBS+i)}, {s(S_WG+i)}, {s(S_WU+i)}")
    k.I(f"s_cselect_b32 {s(S_T0)}, 0, 28")
    k.I(f"s_cselect_b32 {s(S_T1)}, 0, 56")
    k.I(f"s_sub_u32 {s(S_BLK)}, {s(S_BLK)}, {s(S_T0)}")
    k.I(f"s_and_b32 {s(S_T0)}, {s(S_XCD)}, 1")
    k.I(f"s_mul_i32 {s(S_T0)}, {s(S_T0)}, 28")
    k.I(f"s_add_u32 {s(S_BLK)}, {s(S_BLK)}, {s(S_T0)}")
    k.I(f"s_add_u32 {s(S_JOB)}, {s(S_BLK)}, {s(S_T1)}")
    k.I(f"v_lshrrev_b32 v112, 2, {v(V_LANE)}")
    k.I("v_mul_u32_u24 v112, 3584, v112")
    k.I(f"v_and_b32 v113, 3, {v(V_LANE)}")
    k.I("v_lshl_add_u32 v112, v113, 4, v112")
    k.I(f"s_lshl_b32 {s(S_T0)}, {s(S_BLK)}, 6")
    k.I(f"v_add_u32 v112, {s(S_T0)}, v112")
    k.I(f"s_mul_i32 {s(S_OFF)}, {s(S_KH)}, {256*3584}")
    k.I(f"s_and_b32 {s(S_T0)}, {s(S_W)}, 1")
    k.I(f"s_mul_i32 {s(S_T1)}, {s(S_T0)}, {128*3584}")
    k.I(f"s_add_u32 {s(S_OFF)}, {s(S_OFF)}, {s(S_T1)}")
    k.I(f"s_lshl_b32 {s(S_UBH)}, {s(S_T0)}, 13")
    k.I(f"s_add_u32 m0, {s(S_UBH)}, {L_UB}")
    for n in range(8):
        k.dma(112, S_UBS, s(S_OFF))
        if n < 7:
            k.I("s_add_u32 m0, m0, 1024")
            k.I(f"s_add_u32 {s(S_OFF)}, {s(S_OFF)}, {16*3584}")
    k.I(f"s_lshl_b32 {s(S_T0)}, {s(S_KH)}, 10")
    k.I(f"v_add_u32 v114, {s(S_T0)}, {v(V_L16)}")
    k.I(f"v_add_u32 v114, {WS_MODG + 768*8}, v114")
    k.load_granules_checked([116, 120], [114] * 2, "modU", width=4, tagpos=(1, 3), imm=[0, 2048])
    for i, r in enumerate((120, 122)):
        k.unpack(124, 125, r)
        k.I("v_add_f32 v124, 1.0, v124")
        k.I("v_add_f32 v125, 1.0, v125")
        k.I(f"v_cvt_pk_bf16_f32 {v(128+i)}, v124, v125")
    k.I("v_mov_b32 v130, v116")
    k.I("v_mov_b32 v131, v118")
    k.I("v_mov_b32 v132, 0")
    k.I("v_mov_b32 v133, 0")
    k.I(f"v_lshlrev_b32 v113, 3, {v(V_LANE)}")
    k.I(f"v_add_u32 v113, {L_CS}, v113")
    k.I("ds_write_b64 v113, v[128:129]")
    k.I("ds_write_b64 v113, v[130:131] offset:512")
    k.I("ds_write_b64 v113, v[132:133] offset:1024")
    k.I(f"v_and_b32 v113, 31, {v(V_LANE)}")
    k.I("v_min_u32 v113, 2, v113")
    k.I("v_lshlrev_b32 v113, 9, v113")
    k.I(f"v_lshrrev_b32 v114, 5, {v(V_LANE)}")
    k.I("v_lshl_add_u32 v113, v114, 4, v113")
    k.I(f"v_add_u32 v113, {L_CS}, v113")
    k.I(f"s_lshr_b32 {s(S_T0)}, {s(S_UBH)}, 5")
    k.I(f"v_add_u32 v113, {s(S_T0)}, v113")
    lane_fields(k, s_=114, r_=115, c_=116, nh=117)
    k.I("v_lshl_add_u32 v114, v114, 3, v115")
    k.I("v_lshlrev_b32 v114, 6, v114")
    k.I("v_lshl_add_u32 v114, v117, 5, v114")
    k.I("v_lshl_add_u32 v114, v116, 3, v114")
    k.I(f"v_add_u32 v114, {L_UB}, v114")
    k.I(f"v_add_u32 v114, {s(S_UBH)}, v114")
    k.I("s_waitcnt vmcnt(0) lgkmcnt(0)")
    for j in range(8 + 2):
        if j < 8:
            b = 116 + 8 * (j & 3)
            k.I(f"ds_read_b64_tr_b16 {v(b+4,2)}, v114 offset:{j*1024}")
            k.I(f"ds_read_b64_tr_b16 {v(b+6,2)}, v114 offset:{j*1024 + 256}")
            k.I(f"ds_read_b128 {v(b,4)}, v113 offset:{j*32}")
        if j >= 2:
            k.I(f"s_waitcnt lgkmcnt({6 if j < 8 else (3 if j == 8 else 0)})")
            bb = 116 + 8 * ((j - 2) & 3)
            k.mfma32(v(152, 16), v(bb, 4), v(bb + 4, 4), "0" if j == 2 else None)
    w3 = k.newlabel("ub_w3")
    k.wave_is(2, w3)
    k.I(f"v_lshlrev_b32 v113, 3, {v(V_LANE)}")
    k.I(f"v_add_u32 v113, {L_UBP}, v113")
    k.I("ds_write_b64 v113, v[152:153]")
    k.I("s_waitcnt lgkmcnt(0)")
    k.label(w3)
    k.I("v_accvgpr_write_b32 a244, v152")
    k.I("v_accvgpr_write_b32 a245, v153")
    k.I(f"s_mov_b32 {s(S_UBJ)}, {s(S_JOB)}")
    k.I(f"s_mov_b32 {s(S_UBK)}, {s(S_KH)}")
    k.cond_end()
    k.label(skip)


def ub_publish(k):
    skip = k.newlabel("ubp_skip")
    k.I(f"s_cmp_ge_u32 {s(S_I)}, 28")
    k.I(f"s_cbranch_scc1 {skip}")
    k.wave_is(3, skip)
    k.cond_begin()
    S_JOB, S_KH = S_UBJ, S_UBK
    k.test_delay(4)
    k.I(f"v_lshlrev_b32 v174, 3, {v(V_LANE)}")
    k.I(f"v_add_u32 v174, {L_UBP}, v174")
    k.I("ds_read_b64 v[154:155], v174")
    k.I("v_accvgpr_read_b32 v152, a244")
    k.I("v_accvgpr_read_b32 v153, a245")
    k.I("s_waitcnt lgkmcnt(0)")
    k.I("v_add_f32 v152, v152, v154")
    k.I("v_add_f32 v153, v153, v155")
    k.I("v_cvt_pk_bf16_f32 v168, v152, v153")
    k.unpack(170, 171, 168)
    k.I("v_sub_f32 v172, v152, v170")
    k.I("v_sub_f32 v173, v153, v171")
    k.I("v_cvt_pk_bf16_f32 v169, v172, v173")
    k.I(f"s_mov_b32 {s(S_T0)}, 0x05040100")
    k.I(f"s_mov_b32 {s(S_T1)}, 0x07060302")
    k.I(f"v_perm_b32 v176, v169, v168, {s(S_T0)}")
    k.I("v_mov_b32 v177, v168")
    k.I(f"v_perm_b32 v178, v168, v169, {s(S_T1)}")
    k.I(f"v_mov_b32 v179, {v(V_TAG)}")
    k.I(f"s_mul_i32 {s(S_T0)}, {s(S_KH)}, {3584*16}")
    k.I(f"s_lshl_b32 {s(S_T1)}, {s(S_JOB)}, 9")
    k.I(f"s_add_u32 {s(S_T0)}, {s(S_T0)}, {s(S_T1)}")
    k.I(f"s_add_u32 {s(S_T0)}, {s(S_T0)}, {WS_WEXT}")
    k.I(f"v_add_u32 v174, {s(S_T0)}, {v(V_L16)}")
    k.I("s_mov_b32 exec_hi, 0")
    k.I(f"buffer_store_dwordx4 v[176:179], v174, {srd(S_WS)}, 0 offen sc1")
    k.I("s_mov_b64 exec, -1")
    k.cond_end()
    k.label(skip)


S_UBH, S_UBJ, S_UBK = 32, 33, 34
L_UBP = L_UB
S_UBS = 12


def touch_setup(k, ra, rb, rc, rt):
    k.I(f"v_and_b32 {v(ra)}, 31, {v(V_LANE)}")
    k.I(f"v_lshlrev_b32 {v(ra)}, 7, {v(ra)}")
    k.I(f"s_lshl_b32 {s(S_T0)}, {s(S_I)}, 2")
    k.I(f"s_add_u32 {s(S_T0)}, {s(S_T0)}, {s(S_W)}")
    k.I(f"s_lshl_b32 {s(S_T1)}, {s(S_T0)}, 12")
    k.I(f"v_add_u32 {v(ra)}, {s(S_T1)}, {v(ra)}")
    k.I(f"v_min_u32 {v(rb)}, 55, {v(V_LANE)}")
    k.I(f"v_mul_u32_u24 {v(rc)}, 4682, {v(rb)}")
    k.I(f"v_lshrrev_b32 {v(rc)}, 16, {v(rc)}")
    k.I(f"v_mul_u32_u24 {v(rt)}, 14, {v(rc)}")
    k.I(f"v_sub_u32 {v(rb)}, {v(rb)}, {v(rt)}")
    k.I(f"v_lshlrev_b32 {v(rb)}, 7, {v(rb)}")
    k.I(f"v_mul_u32_u24 {v(rc)}, 3584, {v(rc)}")
    k.I(f"v_add_u32 {v(rb)}, {v(rb)}, {v(rc)}")
    k.I(f"s_mul_i32 {s(S_T0)}, {s(S_T0)}, {4*3584}")
    k.I(f"s_and_b32 {s(S_T1)}, {s(S_XCD)}, 1")
    k.I(f"s_mul_i32 {s(S_T1)}, {s(S_T1)}, 1792")
    k.I(f"s_add_u32 {s(S_T0)}, {s(S_T0)}, {s(S_T1)}")
    k.I(f"v_add_u32 {v(rb)}, {s(S_T0)}, {v(rb)}")


def wo_items(k):
    k.I(f"s_and_b32 {s(S_T0)}, {s(S_J2)}, 7")
    k.I(f"s_lshl_b32 {s(S_T0)}, {s(S_T0)}, 7")
    k.I(f"v_lshrrev_b32 v8, 3, {v(V_LANE)}")
    k.I("v_lshlrev_b32 v8, 10, v8")
    k.I(f"v_and_b32 v9, 7, {v(V_LANE)}")
    k.I(f"v_bfe_u32 v10, {v(V_LANE)}, 4, 1")
    k.I("v_lshlrev_b32 v10, 2, v10")
    k.I("v_xor_b32 v9, v9, v10")
    k.I("v_lshl_add_u32 v8, v9, 4, v8")
    k.I(f"v_add_u32 v8, {s(S_T0)}, v8")
    k.I(f"s_lshl_b32 {s(S_T3)}, {s(S_W)}, 17")
    k.I(f"s_lshl_b32 {s(S_T4)}, {s(S_W)}, 14")
    if L_WO:
        k.I(f"s_add_u32 {s(S_T4)}, {s(S_T4)}, {L_WO}")
    return [[(f"s_add_u32 {s(S_OFF)}, {s(S_T3)}, {n*8192}", None), (f"s_add_u32 m0, {s(S_T4)}, {n*1024}", None),
             (f"buffer_load_dwordx4 v8, {srd(S_WO)}, {s(S_OFF)} offen lds", "wo")] for n in range(16)]


def swz128_base(k, dst, cbk_sreg=None, cbk_imm=None, s_mul=16):
    lane_fields(k, s_=8, r_=9, c_=10, nh=11)
    lbase_bytes(k, 12, 11, 10, 13, 14)
    k.I(f"v_mul_u32_u24 v8, {s_mul}, v8")
    k.I("v_add_u32 v8, v8, v9")
    k.I("v_lshlrev_b32 v8, 7, v8")
    k.I("v_lshrrev_b32 v9, 1, v9")
    if cbk_sreg is not None:
        k.I(f"v_xor_b32 v9, {s(cbk_sreg)}, v9")
    elif cbk_imm:
        k.I(f"v_xor_b32 v9, {cbk_imm}, v9")
    k.I("v_lshl_add_u32 v8, v9, 6, v8")
    k.I(f"v_add_u32 {v(dst)}, v8, v12")


KV_PB = 16


def kv_addr(k):
    k.I(f"s_lshl_b32 {s(S_KVB)}, {s(S_HP)}, 16")
    k.I(f"s_lshl_b32 {s(S_T2)}, {s(S_W)}, 10")
    k.I(f"s_add_u32 {s(S_KVB)}, {s(S_KVB)}, {s(S_T2)}")
    k.I(f"s_add_u32 {s(S_KVB)}, {s(S_KVB)}, {WS_KVP}")


def kv_loads(k, tag):
    k.I(f"s_mov_b32 {s(S_OFF)}, {s(S_KVB)}")
    for mm in range(16):
        k.I(f"buffer_load_dwordx4 {v(KV_PB+4*mm,4)}, {v(V_L16)}, {srd(S_WS)}, {s(S_OFF)} offen sc1", tag=tag)
        if mm < 15:
            k.I(f"s_add_u32 {s(S_OFF)}, {s(S_OFF)}, 4096")


S_KVB = 35


def kv_combine_and_o(k):
    PB = KV_PB

    def check():
        k.I(f"v_cmp_ne_u32 vcc, {s(S_TAG)}, {v(PB+3)}")
        for mm in range(1, 16):
            k.I(f"v_cmp_ne_u32 {s(S_EX, 2)}, {s(S_TAG)}, {v(PB+4*mm+3)}")
            k.I(f"s_or_b64 vcc, vcc, {s(S_EX, 2)}")

    probe, ok, full, done = (k.newlabel(x) for x in ("kvp_probe", "kvp_seen", "kvp_full", "kvp_done"))
    k.I("v_mov_b32 v10, 0x3f80")
    k.I("v_mov_b32 v11, 0x3f800000")
    for r in range(176, 182):
        k.I(f"v_mov_b32 {v(r)}, 0")
    k.wait_vm("kvp")
    check()
    k.I(f"s_cbranch_vccz {done}")
    k.cond_begin()
    k.I(f"v_min_u32 v14, 15, {v(V_LANE)}")
    k.I("v_lshlrev_b32 v14, 12, v14")
    k.I(f"v_add_u32 v14, {s(S_KVB)}, v14")
    k.spin_init()
    k.label(probe)
    k.I(f"buffer_load_dword v15, v14, {srd(S_WS)}, 0 offen offset:12 sc1")
    k.I("s_waitcnt vmcnt(0)")
    k.I(f"v_cmp_ne_u32 vcc, {s(S_TAG)}, v15")
    k.spin_back(probe, ok)
    k.label(ok)
    k.label(full)
    kv_loads(k, None)
    k.I("s_waitcnt vmcnt(0)")
    check()
    k.spin_back(full, done)
    k.cond_end()
    k.label(done)
    k.stamp("kvp landed")
    for mm in range(16):
        for d in range(2):
            k.I(f"v_dot2c_f32_bf16 {v(176+2*d)}, {v(PB+4*mm+d)}, v10")
            k.I(f"v_dot2c_f32_bf16 {v(177+2*d)}, {v(PB+4*mm+d)}, v11")
    zs = k.newlabel("zsum")
    k.wave_is(0, zs)
    for mm in range(16):
        k.I(f"v_dot2c_f32_bf16 v180, {v(PB+4*mm+2)}, v10")
        k.I(f"v_dot2c_f32_bf16 v181, {v(PB+4*mm+2)}, v11")
    k.label(zs)
    k.I("s_nop 2")
    for i in range(6):
        k.I(f"v_mov_b32 {v(160+i)}, {v(176+i)}")
    k.I("v_cvt_pk_bf16_f32 v160, v160, v161")
    k.I("v_cvt_pk_bf16_f32 v161, v162, v163")
    k.I(f"v_lshlrev_b32 v8, 5, {v(V_LANE)}")
    k.I(f"s_lshl_b32 {s(S_T0)}, {s(S_W)}, 3")
    k.I(f"s_add_u32 {s(S_T0)}, {s(S_T0)}, {L_KVF}")
    k.I(f"v_add_u32 v8, {s(S_T0)}, v8")
    k.I("ds_write_b64 v8, v[160:161]")
    k.half_total(164, 166)
    k.half_total(165, 166)
    k.I("v_cvt_pk_bf16_f32 v164, v164, v165")
    k.I(f"v_bfe_u32 v8, {v(V_LANE)}, 2, 1")
    k.I(f"v_bfe_u32 v9, {v(V_LANE)}, 3, 2")
    k.I(f"v_and_b32 v10, 3, {v(V_LANE)}")
    k.I("v_lshl_add_u32 v9, v9, 2, v10")
    k.I("v_lshlrev_b32 v9, 1, v9")
    k.I("v_lshl_add_u32 v10, v8, 5, v9")
    k.I(f"v_add_u32 v10, {L_Z}, v10")
    k.I("v_xor_b32 v8, 1, v8")
    k.I("v_lshl_add_u32 v11, v8, 5, v9")
    k.I(f"v_add_u32 v11, {L_Z + 64}, v11")
    w0 = k.newlabel("zw")
    k.wave_is(0, w0)
    k.cond_begin()
    k.I("ds_write_b16 v10, v164")
    k.I("ds_write_b16_d16_hi v11, v164")
    k.cond_end()
    k.label(w0)
    k.wait_lg_all()
    k.barrier()
    k.stamp("kvf barrier")
    k.I(f"v_lshlrev_b32 v8, 5, {v(V_LANE)}")
    k.I(f"v_add_u32 v8, {L_KVF}, v8")
    k.I(f"v_xor_b32 v9, 32, {v(V_LANE)}")
    k.I("v_lshlrev_b32 v9, 5, v9")
    k.I(f"v_add_u32 v9, {L_KVF}, v9")
    k.I(f"v_mov_b32 v10, {L_ZERO}")
    k.I(f"v_cndmask_b32 v8, v10, v8, {s(S_VALID,2)}")
    k.I(f"v_cndmask_b32 v9, v10, v9, {s(S_VALID,2)}")
    k.I(f"v_lshrrev_b32 v10, 5, {v(V_LANE)}")
    k.I("v_lshlrev_b32 v10, 5, v10")
    k.I(f"v_add_u32 v10, {L_Z}, v10")
    PF, NF, ZP, ZN = 112, 120, 128, 136
    k.I(f"ds_read_b128 {v(PF,4)}, v8")
    k.I(f"ds_read_b128 {v(PF+4,4)}, v8 offset:16")
    k.I(f"ds_read_b128 {v(NF,4)}, v9")
    k.I(f"ds_read_b128 {v(NF+4,4)}, v9 offset:16")
    k.I(f"ds_read_b128 {v(ZP,4)}, v10")
    k.I(f"ds_read_b128 {v(ZP+4,4)}, v10 offset:16")
    k.I(f"ds_read_b128 {v(ZN,4)}, v10 offset:64")
    k.I(f"ds_read_b128 {v(ZN+4,4)}, v10 offset:80")
    k.wait_lg_all()
    NUM = 144
    k.mfma32(v(NUM, 16), v(PF, 4), v(QP, 4), "0")
    k.mfma32(v(NUM, 16), v(PF + 4, 4), v(QP + 4, 4))
    k.mfma32(v(NUM, 16), v(NF, 4), v(QN, 4))
    k.mfma32(v(NUM, 16), v(NF + 4, 4), v(QN + 4, 4))
    k.I("v_mov_b32 v10, 0")
    k.I("v_mov_b32 v11, 0")
    for i in range(8):
        k.I(f"v_dot2c_f32_bf16 v10, {v(QP+i)}, {v(ZP+i)}")
        k.I(f"v_dot2c_f32_bf16 v11, {v(QN+i)}, {v(ZN+i)}")
    k.I("v_add_f32 v10, v10, v11")
    k.I("v_add_f32 v10, 0x358637bd, v10")
    k.I("v_rcp_f32 v10, v10")
    for i in range(0, 16, 2):
        k.I(f"v_pk_mul_f32 {v(NUM+i,2)}, {v(NUM+i,2)}, v[10:11] op_sel_hi:[1,0]")
    for i in range(8):
        k.I(f"v_cvt_pk_bf16_f32 {v(160+i)}, {v(NUM+2*i)}, {v(NUM+2*i+1)}")
    k.stamp("o computed")
    k.I(f"s_lshl_b32 {s(S_T0)}, {s(S_M)}, 2")
    k.I(f"s_add_u32 {s(S_T0)}, {s(S_T0)}, {s(S_W)}")
    k.I(f"s_lshl_b32 {s(S_T0)}, {s(S_T0)}, 15")
    k.I(f"s_lshl_b32 {s(S_T1)}, {s(S_HP)}, 11")
    k.I(f"s_add_u32 {s(S_T0)}, {s(S_T0)}, {s(S_T1)}")
    k.I(f"s_add_u32 {s(S_T0)}, {s(S_T0)}, {WS_O}")
    k.I(f"v_add_u32 v8, {s(S_T0)}, {v(V_L16)}")
    k.I(f"buffer_store_dwordx4 v[160:163], v8, {srd(S_WS)}, 0 offen sc1")
    k.I(f"buffer_store_dwordx4 v[164:167], v8, {srd(S_WS)}, 0 offen offset:1024 sc1")
    k.wait_vm_all()
    k.I(f"s_lshl_b32 {s(S_T0)}, {s(S_M)}, 4")
    k.I(f"s_add_u32 {s(S_T0)}, {s(S_T0)}, {s(S_J)}")
    k.I(f"s_lshl_b32 {s(S_T0)}, {s(S_T0)}, 7")
    k.I(f"s_add_u32 {s(S_T0)}, {s(S_T0)}, {WS_FO}")
    k.signal(S_T0, "fo")
    k.stamp("o published")


S_TBL, S_CBK, S_TB, S_B32 = 96, 97, 98, 99


def quad_ids(k):
    k.I(f"s_and_b32 {s(S_TBL)}, {s(S_W)}, 1")
    k.I(f"s_lshr_b32 {s(S_CBK)}, {s(S_W)}, 1")
    k.I(f"s_lshr_b32 {s(S_T0)}, {s(S_J2)}, 3")
    k.I(f"s_lshl_b32 {s(S_T0)}, {s(S_T0)}, 1")
    k.I(f"s_lshl_b32 {s(S_TB)}, {s(S_M2)}, 2")
    k.I(f"s_add_u32 {s(S_TB)}, {s(S_TB)}, {s(S_T0)}")
    k.I(f"s_add_u32 {s(S_TB)}, {s(S_TB)}, {s(S_TBL)}")
    k.I(f"s_and_b32 {s(S_B32)}, {s(S_J2)}, 7")
    k.I(f"s_lshl_b32 {s(S_B32)}, {s(S_B32)}, 1")
    k.I(f"s_add_u32 {s(S_B32)}, {s(S_B32)}, {s(S_CBK)}")


def mod16(k, dst_regs, gran0, stem):
    k.I(f"v_lshrrev_b32 v8, 5, {v(V_LANE)}")
    k.I("v_lshlrev_b32 v8, 6, v8")
    k.I(f"s_lshl_b32 {s(S_T0)}, {s(S_B32)}, 7")
    k.I(f"s_add_u32 {s(S_T0)}, {s(S_T0)}, {WS_MODG + gran0*8}")
    k.I(f"v_add_u32 v8, {s(S_T0)}, v8")
    k.load_granules_checked([dst_regs + 4 * i for i in range(4)], [8] * 4, stem, width=4, tagpos=(1, 3), imm=[0, 16, 32, 48])


VD = 4
S_M0, S_SO = 90, 91


def ring_setup(k):
    k.I(f"s_and_b32 {s(S_T0)}, {s(S_W)}, 1")
    k.I(f"s_cmp_eq_u32 {s(S_T0)}, 0")
    for i in range(4):
        k.I(f"s_cselect_b32 {s(S_SEL+i)}, {s(S_WG+i)}, {s(S_WU+i)}")
    for n in range(7):
        k.I(f"v_add_u32 v14, {64*n}, {v(V_LANE)}")
        k.I("v_mul_u32_u24 v15, 4682, v14")
        k.I("v_lshrrev_b32 v15, 16, v15")
        k.I(f"v_mul_u32_u24 {v(VD+n)}, 14, v15")
        k.I(f"v_sub_u32 v14, v14, {v(VD+n)}")
        k.I("v_mul_u32_u24 v15, 3584, v15")
        k.I("v_lshl_add_u32 v15, v14, 4, v15")
        k.I(f"s_mul_i32 {s(S_T0)}, {s(S_J)}, 224")
        k.I(f"v_add_u32 {v(VD+n)}, {s(S_T0)}, v15")
    for z in range(448):
        assert (z * 4682) >> 16 == z // 14
    k.I(f"s_lshr_b32 {s(S_T0)}, {s(S_W)}, 1")
    k.I(f"s_mul_i32 {s(S_M0)}, {s(S_T0)}, {SLAB}")
    k.I(f"s_and_b32 {s(S_T1)}, {s(S_W)}, 1")
    k.I(f"s_mul_i32 {s(S_T1)}, {s(S_T1)}, {UOFF}")
    k.I(f"s_add_u32 {s(S_M0)}, {s(S_M0)}, {s(S_T1)}")
    k.I(f"s_mul_i32 {s(S_SO)}, {s(S_T0)}, {32*3584}")


def ring_pair(k, P, as_list=False):
    out = [(f"s_add_u32 m0, {s(S_M0)}, {(P % 5) * 2 * SLAB}", None),
           (f"s_add_u32 {s(S_OFF)}, {s(S_SO)}, {P * 2 * 32 * 3584}", None)]
    for n in range(7):
        out.append((f"buffer_load_dwordx4 {v(VD+n)}, {srd(S_SEL)}, {s(S_OFF)} offen lds", f"W{P}"))
        if n < 6:
            out.append(("s_add_u32 m0, m0, 1024", None))
    if as_list:
        return out
    for t, tg in out:
        k.I(t, tag=tg)


def p2(k):
    XR, GA, CBR = 64, 72, 88
    k.I(f"v_and_b32 v12, 31, {v(V_LANE)}")
    k.I("v_lshlrev_b32 v12, 10, v12")
    k.I(f"v_lshrrev_b32 v13, 5, {v(V_LANE)}")
    k.I("v_lshl_add_u32 v12, v13, 5, v12")
    k.I(f"s_lshl_b32 {s(S_T0)}, {s(S_TB)}, 15")
    k.I(f"s_lshl_b32 {s(S_T1)}, {s(S_B32)}, 6")
    k.I(f"s_add_u32 {s(S_T0)}, {s(S_T0)}, {s(S_T1)}")
    k.I(f"v_add_u32 v12, {s(S_T0)}, v12")
    k.I(f"buffer_load_dwordx4 {v(XR,4)}, v12, {srd(S_X)}, 0 offen", tag="xr")
    k.I(f"buffer_load_dwordx4 {v(XR+4,4)}, v12, {srd(S_X)}, 0 offen offset:16", tag="xr")
    swz128_base(k, 15, cbk_sreg=S_CBK)
    for kap in range(32):
        hp, a = kap >> 1, kap & 1
        for rd in range(2):
            k.I(f"ds_read_b64_tr_b16 {a_(4*kap + 2*rd, 2)}, v15 offset:{L_WO + (32*hp + 8*a + 4*rd)*128}", tag="wof")
        if kap % 4 == 3:
            k.I("s_waitcnt lgkmcnt(6)")
    k.wait_lg_all()
    k.stamp("wof read")
    modn_compute(k)
    k.stamp("modn")
    ring_setup(k)
    k.I(f"v_lshrrev_b32 v13, 5, {v(V_LANE)}")
    k.I("v_lshlrev_b32 v13, 6, v13")
    k.I(f"s_lshl_b32 {s(S_T0)}, {s(S_B32)}, 7")
    k.I(f"s_add_u32 {s(S_T0)}, {s(S_T0)}, {WS_MODG}")
    k.I(f"v_add_u32 v13, {s(S_T0)}, v13")
    k.I(f"v_add_u32 v12, {512*8}, v13")
    k.I(f"v_add_u32 v13, {1024*8}, v13")
    gr = ([GA + 4 * i for i in range(4)] + [CBR + 4 * i for i in range(4)], [12] * 4 + [13] * 4)
    gimm = [0, 16, 32, 48] * 2
    k.I(f"s_lshl_b32 {s(S_T0)}, {s(S_M2)}, 11")
    k.I(f"s_add_u32 {s(S_T0)}, {s(S_T0)}, {WS_FO}")
    k.poll_flags(S_T0, 16, "po")
    k.stamp("o flags seen")
    k.I(f"s_sub_u32 {s(S_T0)}, {s(S_TB)}, {s(S_TBL)}")
    k.I(f"s_lshl_b32 {s(S_T0)}, {s(S_T0)}, 15")
    k.I(f"s_lshl_b32 {s(S_T1)}, {s(S_W)}, 14")
    k.I(f"s_add_u32 {s(S_T2)}, {s(S_T0)}, {s(S_T1)}")
    k.I(f"s_add_u32 {s(S_T2)}, {s(S_T2)}, {WS_O}")
    k.I(f"s_add_u32 {s(S_T3)}, {s(S_T1)}, {L_OI}")
    k.I(f"s_and_b32 {s(S_T4)}, {s(S_J2)}, 7")
    k.I(f"s_lshl_b32 {s(S_T4)}, {s(S_T4)}, 11")
    k._tag = "of"
    for n in range(16):
        k.I(f"s_add_u32 {s(S_T0)}, {s(S_T4)}, {n*1024}")
        k.I(f"s_and_b32 {s(S_T0)}, {s(S_T0)}, 0x3fff")
        k.I(f"s_add_u32 m0, {s(S_T3)}, {s(S_T0)}")
        k.I(f"s_add_u32 {s(S_OFF)}, {s(S_T2)}, {s(S_T0)}")
        k.dma(V_L16, S_WS, s(S_OFF), sc1=True)
    k._tag = None
    k.granule_loads(gr[0], gr[1], 4, gimm, "gacb")
    ring_a = []
    for P in range(3):
        cur = []
        for t, tg in ring_pair(k, P, as_list=True):
            cur.append((t, tg))
            if t.startswith("buffer_"):
                ring_a.append(cur)
                cur = []
    k.I(f"s_lshl_b32 {s(S_T0)}, {s(S_TBL)}, 15")
    k.I(f"s_add_u32 {s(S_T0)}, {s(S_T0)}, {L_OI}")
    k.I(f"v_add_u32 v14, {s(S_T0)}, {v(V_L16)}")
    k.wait_vm("of")
    k.barrier()
    k.stamp("o landed")
    GAF, C2F, XF = 144, 160, 176
    pre = [lambda: k.granule_verify(gr[0], gr[1], "gacb", 4, (1, 3), gimm, "gacb")]
    for i in range(8):
        g = GA + 4 * (i >> 1) + 2 * (i & 1)
        c = CBR + 4 * (i >> 1) + 2 * (i & 1)
        pre += [f"v_lshlrev_b32 {v(GAF+2*i)}, 16, {v(g)}", f"v_and_b32 {v(GAF+2*i+1)}, {s(S_MASK)}, {v(g)}",
                f"v_lshlrev_b32 {v(XF+2*i)}, 16, {v(XR+i)}", f"v_and_b32 {v(XF+2*i+1)}, {s(S_MASK)}, {v(XR+i)}",
                f"v_lshlrev_b32 {v(C2F+2*i)}, 16, {v(c)}", f"v_and_b32 {v(C2F+2*i+1)}, {s(S_MASK)}, {v(c)}",
                f"v_add_f32 {v(C2F+2*i)}, 1.0, {v(C2F+2*i)}", f"v_add_f32 {v(C2F+2*i+1)}, 1.0, {v(C2F+2*i+1)}",
                f"v_cvt_pk_bf16_f32 {v(c)}, {v(C2F+2*i)}, {v(C2F+2*i+1)}",
                f"v_lshlrev_b32 {v(C2F+2*i)}, 16, {v(c)}", f"v_and_b32 {v(C2F+2*i+1)}, {s(S_MASK)}, {v(c)}"]
    ACC = 112
    nb = 6
    for kap in range(32 + nb - 2):
        if kap < 32:
            k.I(f"ds_read_b128 {v(16 + 4*(kap % nb), 4)}, v14 offset:{kap*1024}", tag=f"o{kap}")
        q = kap - (nb - 2)
        if q >= 0:
            k.wait_lg(f"o{q}")
            k.mfma32(v(ACC, 16), a_(4 * q, 4), v(16 + 4 * (q % nb), 4), "0" if q == 0 else None)
            if ring_a and q % 3 != 2:
                for t, tg in ring_a.pop(0):
                    k.I(t, tag=tg)
            if q >= 6:
                for _ in range(4):
                    if pre:
                        it = pre.pop(0)
                        it() if callable(it) else k.I(it)
    assert not ring_a and not pre
    k.stamp("wo gemm")
    k.barrier()
    k.stamp("gacb ok")
    ring = []
    for P in range(3, 5):
        items = ring_pair(k, P, as_list=True)
        cur = []
        for t, tg in items:
            cur.append((t, tg))
            if t.startswith("buffer_"):
                ring.append(cur)
                cur = []

    def ring_some(n):
        for _ in range(min(n, len(ring))):
            for t, tg in ring.pop(0):
                k.I(t, tag=tg)

    T = 128
    X1 = 136
    YP = 128
    k.I("v_mov_b32 v40, 0")
    k.I("v_mov_b32 v41, 0")
    k.I("v_mov_b32 v42, 0x3f803f80")
    for i in range(16):
        k.I(f"v_fmac_f32 {v(XF+i)}, {v(GAF+i)}, {v(ACC+i)}")
    for i in range(8):
        k.I(f"v_cvt_pk_bf16_f32 {v(X1+i)}, {v(XF+2*i)}, {v(XF+2*i+1)}")
    ring_some(2)
    for i in range(8):
        k.unpack(XF + 2 * i, XF + 2 * i + 1, X1 + i)
    for i in range(8):
        k.I(f"v_pk_mul_f32 {v(XF+2*i,2)}, {v(XF+2*i,2)}, {v(C2F+2*i,2)}")
    for i in range(8):
        k.I(f"v_cvt_pk_bf16_f32 {v(YP+i)}, {v(XF+2*i)}, {v(XF+2*i+1)}")
    k.I(f"s_lshl_b32 {s(S_T0)}, {s(S_TB)}, 15")
    k.I(f"s_lshl_b32 {s(S_T1)}, {s(S_B32)}, 11")
    k.I(f"s_add_u32 {s(S_T0)}, {s(S_T0)}, {s(S_T1)}")
    k.I(f"s_add_u32 {s(S_T0)}, {s(S_T0)}, {WS_Y}")
    k.I(f"v_add_u32 v12, {s(S_T0)}, {v(V_L16)}")
    k.I(f"buffer_store_dwordx4 {v(YP,4)}, v12, {srd(S_WS)}, 0 offen sc1", tag="yst")
    k.I(f"buffer_store_dwordx4 {v(YP+4,4)}, v12, {srd(S_WS)}, 0 offen offset:1024 sc1", tag="yst")
    for i in range(8):
        k.I(f"v_dot2c_f32_bf16 v40, {v(X1+i)}, v42")
        k.I(f"v_dot2c_f32_bf16 v41, {v(X1+i)}, {v(X1+i)}")
    k.half_total(40, 43)
    k.half_total(41, 43)
    k.I(f"s_lshl_b32 {s(S_T0)}, {s(S_TB)}, 4")
    k.I(f"s_add_u32 {s(S_T0)}, {s(S_T0)}, {s(S_B32)}")
    k.I(f"s_lshl_b32 {s(S_T0)}, {s(S_T0)}, 8")
    k.I(f"s_add_u32 {s(S_T0)}, {s(S_T0)}, {WS_STATS}")
    k.I(f"v_lshlrev_b32 v12, 3, {v(V_LANE)}")
    k.I(f"v_add_u32 v12, {s(S_T0)}, v12")
    k.I("s_mov_b32 exec_hi, 0")
    k.I(f"buffer_store_dwordx2 v[40:41], v12, {srd(S_WS)}, 0 offen sc1", tag="yst")
    k.I("s_mov_b64 exec, -1")
    k.stamp("y stored")
    ring_some(OPT.get("ring_pre", 8))
    k.stamp("ring b")
    for i in range(8):
        k.I(f"v_accvgpr_write_b32 {a_(248+i)}, {v(X1+i)}")
    k.wait_vm("yst")
    k.I(f"s_lshl_b32 {s(S_T0)}, {s(S_M2)}, 4")
    k.I(f"s_add_u32 {s(S_T0)}, {s(S_T0)}, {s(S_J2)}")
    k.I(f"s_lshl_b32 {s(S_T0)}, {s(S_T0)}, 7")
    k.I(f"s_add_u32 {s(S_T0)}, {s(S_T0)}, {WS_FY}")
    k.signal(S_T0, "fy")
    noe = k.newlabel("noepoch")
    k.I("s_cmp_eq_u32 s2, 0")
    k.I(f"s_cbranch_scc0 {noe}")
    k.wave_is(0, noe)
    k.cond_begin()
    k.I("v_mov_b32 v12, 0")
    k.I("s_mov_b64 exec, 1")
    k.I(f"buffer_store_dword {v(V_TAG)}, v12, {srd(S_WS)}, 0 offen sc1")
    k.I("s_mov_b64 exec, -1")
    k.cond_end()
    k.label(noe)
    k.stamp("y published")
    ring_some(len(ring))
    ub_compute(k)
    k.stamp("ub")


def p3_tail(k, ST, AE, BE):
    it = [lambda: k.wait_vm("st")]
    for i in range(1, 8):
        it.append(f"v_add_f32 v16, v16, {v(ST+2*i)}")
        it.append(f"v_add_f32 v17, v17, {v(ST+2*i+1)}")
    for r in (16, 17):
        it += [f"v_mov_b32 v18, {v(r)}", "s_nop 1", f"v_permlane32_swap_b32 {v(r)}, v18", f"v_add_f32 {v(r)}, {v(r)}, v18"]
    it += ["v_mul_f32 v16, 0x3b000000, v16", "v_mul_f32 v17, 0x3b000000, v17", "v_fma_f32 v17, -v16, v16, v17",
           "v_max_f32 v17, 0, v17", "v_add_f32 v17, 0x3727c5ac, v17", "v_rsq_f32 v18, v17", "v_sub_f32 v16, 0, v16",
           "v_mul_f32 v19, v17, v18", "v_mul_f32 v20, v18, v18", "v_cvt_pk_bf16_f32 v22, v16, v19",
           "v_lshlrev_b32 v24, 16, v22", f"v_and_b32 v25, {s(S_MASK)}, v22", "v_sub_f32 v24, v16, v24", "v_sub_f32 v25, v19, v25",
           "v_cvt_pk_bf16_f32 v23, v24, v25",
           f"s_mov_b32 {s(S_T1)}, 0x01000100", f"v_perm_b32 {v(BE)}, v22, v22, {s(S_T1)}",
           f"s_mov_b32 {s(S_T1)}, 0x07060100", f"v_perm_b32 {v(BE+1)}, v22, v23, {s(S_T1)}",
           f"s_mov_b32 {s(S_T1)}, 0x07060302", f"v_perm_b32 {v(BE+2)}, v23, v22, {s(S_T1)}",
           f"v_mov_b32 {v(BE+3)}, 0", f"v_cmp_gt_u32 vcc, 32, {v(V_LANE)}"]
    it.append(lambda: [k.I(f"v_cndmask_b32 {v(BE+i)}, 0, {v(BE+i)}, vcc") for i in range(3)])
    regs = [AE + 28 * h + 4 * b for h in range(2) for b in range(7)]
    it.append(lambda: k.granule_verify(regs, [14] * 7 + [15] * 7, "wext", 4, (3,), [256 * b for b in range(7)] * 2, "wext"))
    it += [f"v_mov_b32 {v(r+3)}, 0" for r in regs]
    return it


def p3(k):
    Y0, ACC = 16, 144
    VTR = (11, 12, 13)
    lane_fields(k, s_=14, r_=15)
    k.I("v_lshl_add_u32 v14, v14, 4, v15")
    k.I("v_mul_u32_u24 v14, 224, v14")
    k.I(f"v_bfe_u32 v15, {v(V_LANE)}, 4, 1")
    k.I(f"v_mul_u32_u24 v15, {UOFF}, v15")
    k.I("v_add_u32 v14, v14, v15")
    k.I(f"v_and_b32 v15, 1, {v(V_LANE)}")
    k.I("v_lshl_add_u32 v14, v15, 4, v14")
    k.I(f"v_bfe_u32 v15, {v(V_LANE)}, 1, 1")
    k.I(f"v_lshl_add_u32 {v(VTR[0])}, v15, 3, v14")
    k.I(f"v_add_u32 {v(VTR[1])}, {4*SLAB}, {v(VTR[0])}")
    k.I(f"v_add_u32 {v(VTR[2])}, {8*SLAB}, {v(VTR[0])}")
    k.I(f"s_lshl_b32 {s(S_T0)}, {s(S_M)}, 11")
    k.I(f"s_add_u32 {s(S_T0)}, {s(S_T0)}, {WS_FY}")
    k.wait_vm_all()
    k.poll_flags(S_T0, 16, "py")
    k.stamp("y flags seen")
    S_TB3 = S_T2
    k.I(f"s_lshl_b32 {s(S_TB3)}, {s(S_M)}, 2")
    k.I(f"s_add_u32 {s(S_TB3)}, {s(S_TB3)}, {s(S_W)}")
    k.I(f"s_lshl_b32 {s(S_T3)}, {s(S_TB3)}, 15")
    k.I(f"s_add_u32 {s(S_T3)}, {s(S_T3)}, {WS_Y}")

    def ld_y(kap):
        out = []
        if kap and kap & 3 == 0:
            out.append((f"s_add_u32 {s(S_T3)}, {s(S_T3)}, 4096", None))
        out.append((f"buffer_load_dwordx4 {v(Y0+4*kap,4)}, {v(V_L16)}, {srd(S_WS)}, {s(S_T3)} offen offset:{(kap&3)*1024} sc1", f"y{kap}"))
        return out

    if OPT.get("coop", 0):
        k.I(f"v_and_b32 v14, 31, {v(V_LANE)}")
        k.I("v_lshlrev_b32 v14, 7, v14")
        k.I(f"s_and_b32 {s(S_T0)}, {s(S_J)}, 7")
        k.I(f"s_lshl_b32 {s(S_T0)}, {s(S_T0)}, 12")
        k.I(f"v_add_u32 v14, {s(S_T0)}, v14")
        k.I(f"buffer_load_dword v0, v14, {srd(S_WS)}, {s(S_T3)} offen", tag="t")
    NY0 = OPT.get('ny0', 20)
    for kap in range(NY0):
        for t, tg in ld_y(kap):
            k.I(t, tag=tg)

    def rd_w(kap, beta):
        B, a = kap >> 1, kap & 1
        P = B >> 1
        slot = (P % 5) * 2 + (B & 1)
        base = VTR[slot >> 2]
        return [(f"ds_read_b64_tr_b16 {a_(28*(kap&1) + 4*beta + 2*rd, 2)}, {v(base)} offset:{(slot & 3) * SLAB + (8*a + 4*rd)*224 + 32*beta}", f"w{kap}_{beta}") for rd in range(2)]

    ub_publish(k)
    for beta in range(7):
        for t, tg in rd_w(0, beta):
            k.I(t, tag=tg)
    side = []
    tail = []
    ST, AE, BE = 16, 32, 28
    for kap in range(32):
        P = kap >> 2
        if kap & 3 == 3 and P < 7:
            k.wait_vm(f"W{P+1}")
            if not OPT.get("x_nobar"):
                k.barrier()
            if 1 <= P <= 3 and not OPT.get("x_noring"):
                side += ring_pair(k, P + 4, as_list=True)
        if kap + NY0 < 32:
            side = ld_y(kap + NY0) + side
        if OPT["touch"] and kap == OPT.get("twdk", 24):
            side.append((f"s_lshl_b32 {s(S_T0)}, {s(S_I)}, 2", None))
            side.append((f"s_add_u32 {s(S_T0)}, {s(S_T0)}, {s(S_W)}", None))
            side.append((f"s_mul_i32 {s(S_T0)}, {s(S_T0)}, {112*128}", None))
            side.append((f"v_min_u32 v7, 55, {v(V_LANE)}", None))
            side.append(("v_lshlrev_b32 v7, 7, v7", None))
            side.append((f"buffer_load_dword v0, v7, {srd(S_WD)}, {s(S_T0)} offen", "t"))
            side.append((f"s_add_u32 {s(S_T0)}, {s(S_T0)}, {56*128}", None))
            side.append((f"buffer_load_dword v0, v7, {srd(S_WD)}, {s(S_T0)} offen", "t"))
        if kap == 18:
            side.append((f"s_lshl_b32 {s(S_T0)}, {s(S_TB3)}, 12", None))
            side.append((f"s_add_u32 {s(S_T0)}, {s(S_T0)}, {WS_STATS}", None))
            side.append((f"v_and_b32 v14, 31, {v(V_LANE)}", None))
            side.append(("v_lshlrev_b32 v14, 3, v14", None))
            side.append((f"v_lshrrev_b32 v15, 5, {v(V_LANE)}", None))
            side.append(("v_lshl_add_u32 v14, v15, 11, v14", None))
            side.append((f"v_add_u32 v14, {s(S_T0)}, v14", None))
            for i in range(8):
                side.append((f"buffer_load_dwordx2 {v(ST+2*i,2)}, v14, {srd(S_WS)}, 0 offen offset:{i*256} sc1", "st"))
        if kap == 22:
            for t in (f"v_bfe_u32 v14, {v(V_LANE)}, 2, 1", "v_lshlrev_b32 v14, 3, v14", f"v_bfe_u32 v15, {v(V_LANE)}, 3, 1",
                      "v_lshl_add_u32 v14, v15, 2, v14", f"v_and_b32 v15, 3, {v(V_LANE)}", "v_add_u32 v14, v14, v15",
                      f"v_bfe_u32 v15, {v(V_LANE)}, 4, 1", "v_mul_u32_u24 v15, 1792, v15", "v_add_u32 v14, v14, v15",
                      f"s_mul_i32 {s(S_T0)}, {s(S_J)}, 112", f"v_add_u32 v14, {s(S_T0)}, v14", "v_lshlrev_b32 v14, 4, v14",
                      f"v_add_u32 v14, {WS_WEXT}, v14", f"v_add_u32 v15, {3584*16}, v14"):
                side.append((t, None))
            for h in range(2):
                for b in range(7):
                    side.append((f"buffer_load_dwordx4 {v(AE+28*h+4*b,4)}, {v(14+h)}, {srd(S_WS)}, 0 offen offset:{256*b} sc1", "wext"))
        if kap == 20:
            side += [(t, None) for t in wd_setup_items()]
        if kap == 23 and OPT.get("g0loop"):
            for it in wd_dma(0, WD_G1):
                side += it
        if kap == 26:
            tail = p3_tail(k, ST, AE, BE)
        k.wait_vm(f"y{kap}")
        if kap in (1, 8, 16, 24):
            k.stamp(f"p3 k{kap}")
        for beta in range(7):
            k.wait_lg(f"w{kap}_{beta}")
            k.mfma32(v(ACC + 16 * beta, 16), a_(28 * (kap & 1) + 4 * beta, 4), v(Y0 + 4 * kap, 4), "0" if kap == 0 else None)
            if kap + 1 < 32 and not OPT.get("x_notr"):
                for t, tg in rd_w(kap + 1, beta):
                    k.I(t, tag=tg)
            for _ in range(2):
                if tail:
                    it = tail.pop(0)
                    it() if callable(it) else k.I(it)
            nvm = 0
            while side and nvm < 1:
                t, tg = side.pop(0)
                k.I(t, tag=tg)
                if t.startswith("buffer_"):
                    nvm += 1
    for t, tg in side:
        k.I(t, tag=tg)
    assert not tail
    for h in range(2):
        for b in range(7):
            k.mfma32(v(ACC + 16 * b, 16), v(AE + 28 * h + 4 * b, 4), v(BE, 4))
    k.stamp("gate/up gemm")
    k.barrier()
    wd_bases(k)
    dm = wd_dma(WD_G1, WD_G2) if OPT.get("g0loop") else wd_dma(0, WD_G2)
    k.I(f"s_mul_i32 {s(S_T0)}, {s(S_TB3)}, 112")
    k.I(f"s_mul_i32 {s(S_T1)}, {s(S_J)}, 7")
    k.I(f"s_add_u32 {s(S_T0)}, {s(S_T0)}, {s(S_T1)}")
    k.I(f"s_lshl_b32 {s(S_T0)}, {s(S_T0)}, 10")
    k.I(f"s_add_u32 {s(S_AO)}, {s(S_T0)}, {WS_ACT}")

    def dma_some(n):
        for _ in range(n):
            for t, tg in dm.pop(0):
                k.I(t, tag=tg)

    for b in range(7):
        G = ACC + 16 * b
        U = G + 8
        o = 96 + 4 * b
        for e in range(0, 8, 2):
            k.I(f"v_pk_mul_f32 {v(U+e,2)}, {v(U+e,2)}, v[20:21] op_sel_hi:[1,0]")
        for e in range(8):
            k.I(f"v_max_f32 {v(G+e)}, 0, {v(G+e)}")
        for e in range(0, 8, 2):
            k.I(f"v_pk_mul_f32 {v(G+e,2)}, {v(G+e,2)}, {v(U+e,2)}")
        for e in range(0, 8, 2):
            k.I(f"v_cvt_pk_bf16_f32 {v(o+e//2)}, {v(G+e)}, {v(G+e+1)}")
        k.I(f"buffer_store_dwordx4 {v(o,4)}, {v(V_L16)}, {srd(S_WS)}, {s(S_AO)} offen offset:{(b&3)*1024} sc1", tag="ast")
        if b == 3:
            k.I(f"s_add_u32 {s(S_AO)}, {s(S_AO)}, 4096")
        if b < 6:
            dma_some(OPT.get("wd_mix", 2))
    k.stamp("act stored")
    dma_some(OPT.get("wd_pre", 8))

    def g0_reads():
        k.wait_vm(f"wd{WD_G1-1}")
        for kl in range(WD_G1):
            for t, tg in wd_reads(kl):
                k.I(t, tag=tg)
            if kl % 2 == 1:
                k.I("s_waitcnt lgkmcnt(4)")
    k.wait_vm("ast")
    k.I(f"s_lshl_b32 {s(S_T0)}, {s(S_M)}, 4")
    k.I(f"s_add_u32 {s(S_T0)}, {s(S_T0)}, {s(S_J)}")
    k.I(f"s_lshl_b32 {s(S_T0)}, {s(S_T0)}, 7")
    k.I(f"s_add_u32 {s(S_T0)}, {s(S_T0)}, {WS_FA}")
    k.signal(S_T0, "fa")
    k.stamp("act published")
    dma_some(len(dm))
    g0_reads()
    k.wait_lg_all()
    k.stamp("wf0 read")


S_AO = 91


S_WDB, S_WDT = 90, 12
S_WDO = 3
WD_TOP = 87552
WD_G1, WD_G2 = 9, 19
V_WD = 4
V_WB, V_WT = 5, 10


def wd_setup_items():
    return [f"s_and_b32 {s(S_T0)}, {s(S_J2)}, 7", f"s_lshl_b32 {s(S_T0)}, {s(S_T0)}, 7",
            f"v_lshrrev_b32 v4, 3, {v(V_LANE)}", "v_lshlrev_b32 v4, 10, v4", f"v_and_b32 v5, 7, {v(V_LANE)}",
            f"v_bfe_u32 v6, {v(V_LANE)}, 4, 1", "v_lshlrev_b32 v6, 2, v6", "v_xor_b32 v5, v5, v6",
            "v_lshl_add_u32 v4, v5, 4, v4", f"v_add_u32 v4, {s(S_T0)}, v4",
            f"s_mul_i32 {s(S_WDB)}, {s(S_W)}, 20480", f"s_mul_i32 {s(S_WDT)}, {s(S_W)}, 18432",
            f"s_add_u32 {s(S_WDT)}, {s(S_WDT)}, {WD_TOP}", f"s_mul_i32 {s(S_WDO)}, {s(S_W)}, {448*1024}"]


def wd_bases(k):
    swz128_base(k, 5, cbk_imm=0, s_mul=8)
    k.I(f"v_add_u32 v10, {s(S_WDT)}, v5")
    k.I("v_xor_b32 v11, 64, v10")
    k.I(f"v_add_u32 v5, {s(S_WDB)}, v5")
    k.I("v_xor_b32 v6, 64, v5")


def wd_slot(kl):
    if kl < WD_G1:
        return S_WDT, V_WT, kl * 2048
    if kl < WD_G2:
        return S_WDB, V_WB, (kl - WD_G1) * 2048
    return S_WDT, V_WT, (kl - WD_G2) * 2048


def wd_dma(k0, k1):
    out = []
    for kl in range(k0, k1):
        sb, _, off = wd_slot(kl)
        for h in range(2):
            out.append([(f"s_add_u32 {s(S_OFF)}, {s(S_WDO)}, {(16*kl + 8*h)*1024}", None),
                        (f"s_add_u32 m0, {s(sb)}, {off + h*1024}", None),
                        (f"buffer_load_dwordx4 v4, {srd(S_WD)}, {s(S_OFF)} offen lds", f"wd{kl}")])
    return out


def wd_reads(kl):
    _, vb, off = wd_slot(kl)
    return [(f"ds_read_b64_tr_b16 {a_((2*kl + cbk)*4 + 2*rd, 2)}, {v(vb+cbk)} offset:{off + rd*512}", f"wf{kl}")
            for cbk in range(2) for rd in range(2)]


def p4(k):
    GB = 176
    k.I(f"v_lshrrev_b32 v8, 5, {v(V_LANE)}")
    k.I("v_lshlrev_b32 v8, 6, v8")
    k.I(f"s_lshl_b32 {s(S_T0)}, {s(S_B32)}, 7")
    k.I(f"s_add_u32 {s(S_T0)}, {s(S_T0)}, {WS_MODG + 1280*8}")
    k.I(f"v_add_u32 v8, {s(S_T0)}, v8")
    greg = [GB + 4 * i for i in range(4)]
    for it in wd_dma(WD_G2, 28):
        for t, tg in it:
            k.I(t, tag=tg)
    k.I(f"s_lshl_b32 {s(S_T0)}, {s(S_M2)}, 11")
    k.I(f"s_add_u32 {s(S_T0)}, {s(S_T0)}, {WS_FA}")
    k.poll_flags(S_T0, 16, "pa")
    k.stamp("act flags seen")
    k.I(f"s_sub_u32 {s(S_T0)}, {s(S_TB)}, {s(S_TBL)}")
    k.I(f"s_mul_i32 {s(S_T0)}, {s(S_T0)}, {112*1024}")
    k.I(f"s_mul_i32 {s(S_T1)}, {s(S_W)}, {28*1024}")
    k.I(f"s_add_u32 {s(S_T0)}, {s(S_T0)}, {s(S_T1)}")
    S_A0, S_A1 = S_T3, S_T4
    k.I(f"s_add_u32 {s(S_A0)}, {s(S_T0)}, {WS_ACT}")
    k.I(f"s_add_u32 {s(S_A1)}, {s(S_A0)}, {112*1024}")
    NB = OPT.get("nb4", 12)
    AB = 16
    ACC = 192

    def ld(kl):
        out = []
        for tbl in range(2):
            r = AB + 8 * (kl % NB) + 4 * tbl
            out.append((f"buffer_load_dwordx4 {v(r,4)}, {v(V_L16)}, {srd(S_WS)}, {s(S_A0 + tbl)} offen offset:{(kl&3)*1024} sc1", f"a{kl}"))
        if kl & 3 == 3:
            out.append((f"s_add_u32 {s(S_A0)}, {s(S_A0)}, 4096", None))
            out.append((f"s_add_u32 {s(S_A1)}, {s(S_A1)}, 4096", None))
        return out

    for kl in range(NB):
        for t, tg in ld(kl):
            k.I(t, tag=tg)
    k.granule_loads(greg, [8] * 4, 4, [0, 16, 32, 48], "gb")
    GBF, X1F = 112, 128
    pre = [lambda: k.granule_verify(greg, [8] * 4, "gb", 4, (1, 3), [0, 16, 32, 48], "gb")]
    for i in range(8):
        g = GB + 4 * (i >> 1) + 2 * (i & 1)
        pre += [f"v_lshlrev_b32 {v(GBF+2*i)}, 16, {v(g)}", f"v_and_b32 {v(GBF+2*i+1)}, {s(S_MASK)}, {v(g)}",
                f"v_accvgpr_read_b32 v144, {a_(248+i)}", f"v_lshlrev_b32 {v(X1F+2*i)}, 16, v144", f"v_and_b32 {v(X1F+2*i+1)}, {s(S_MASK)}, v144"]
    for kl in range(28):
        k.wait_vm(f"a{kl}")
        if kl in (1, 7, 14, 21):
            k.stamp(f"p4 k{kl}")
        rds = wd_reads(kl + 3) if WD_G1 <= kl + 3 < 28 else []
        if kl >= WD_G1:
            k.wait_lg(f"wf{kl}")
        nxt = ld(kl + NB) if kl + NB < 28 else []
        for tbl in range(2):
            for cbk in range(2):
                r = AB + 8 * (kl % NB) + 4 * tbl
                k.mfma32(v(ACC + 16 * (2 * cbk + tbl), 16), a_((2 * kl + cbk) * 4, 4), v(r, 4), "0" if kl == 0 else None)
                if rds:
                    t, tg = rds.pop(0)
                    k.I(t, tag=tg)
                if tbl == 1 and nxt:
                    t, tg = nxt.pop(0)
                    k.I(t, tag=tg)
                if kl >= 10 and pre:
                    it = pre.pop(0)
                    it() if callable(it) else k.I(it)
        for t, tg in nxt:
            k.I(t, tag=tg)
    assert not pre
    k.stamp("down gemm")
    k.wait_lg_all()
    k.barrier()
    k.I(f"s_lshl_b32 {s(S_T0)}, {s(S_W)}, 12")
    k.I(f"v_add_u32 v8, {s(S_T0)}, {v(V_L16)}")
    k.I(f"v_add_u32 v9, 32768, v8")
    for q in range(4):
        sk = k.newlabel("r4w")
        k.I(f"s_cmp_eq_u32 {s(S_W)}, {q}")
        k.I(f"s_cbranch_scc1 {sk}")
        k.cond_begin()
        for i in range(4):
            base = 8 if q < 2 else 9
            k.I(f"ds_write_b128 {v(base)}, {v(ACC+16*q+4*i,4)} offset:{(q&1)*16384 + i*1024}")
        k.cond_end()
        k.label(sk)
    k.wait_lg_all()
    k.barrier()
    k.I(f"s_lshl_b32 {s(S_T0)}, {s(S_W)}, 14")
    k.I(f"v_add_u32 v8, {s(S_T0)}, {v(V_L16)}")
    for d in range(1, 4):
        k.I(f"s_add_u32 {s(S_T1)}, {s(S_W)}, {d}")
        k.I(f"s_and_b32 {s(S_T1)}, {s(S_T1)}, 3")
        k.I(f"s_lshl_b32 {s(S_T1)}, {s(S_T1)}, 12")
        k.I(f"v_add_u32 v9, {s(S_T1)}, v8")
        for i in range(4):
            k.I(f"ds_read_b128 {v(32+16*(d-1)+4*i,4)}, v9 offset:{i*1024}")
    for q in range(4):
        sk = k.newlabel("r4m")
        k.I(f"s_cmp_eq_u32 {s(S_W)}, {q}")
        k.I(f"s_cbranch_scc0 {sk}")
        for i in range(0, 16, 2):
            k.I(f"v_pk_mul_f32 {v(16+i,2)}, {v(ACC+16*q+i,2)}, 1.0 op_sel_hi:[1,0]")
        k.label(sk)
    k.wait_lg_all()
    for d in range(3):
        for i in range(0, 16, 2):
            k.I(f"v_pk_add_f32 {v(16+i,2)}, {v(16+i,2)}, {v(32+16*d+i,2)}")
    for i in range(16):
        k.I(f"v_fmac_f32 {v(X1F+i)}, {v(GBF+i)}, {v(16+i)}")
    for i in range(8):
        k.I(f"v_cvt_pk_bf16_f32 {v(88+i)}, {v(X1F+2*i)}, {v(X1F+2*i+1)}")
    k.I(f"v_and_b32 v8, 31, {v(V_LANE)}")
    k.I("v_lshlrev_b32 v8, 10, v8")
    k.I(f"v_lshrrev_b32 v9, 5, {v(V_LANE)}")
    k.I("v_lshl_add_u32 v8, v9, 5, v8")
    k.I(f"s_lshl_b32 {s(S_T0)}, {s(S_TB)}, 15")
    k.I(f"s_lshl_b32 {s(S_T1)}, {s(S_B32)}, 6")
    k.I(f"s_add_u32 {s(S_T0)}, {s(S_T0)}, {s(S_T1)}")
    k.I(f"v_add_u32 v8, {s(S_T0)}, v8")
    fl = {0: "", 1: " sc1", 2: " nt", 3: " sc0 sc1"}[OPT.get("outst", 0)]
    k.I(f"buffer_store_dwordx4 v[88:91], v8, {srd(S_OUT)}, 0 offen{fl}")
    k.I(f"buffer_store_dwordx4 v[92:95], v8, {srd(S_OUT)}, 0 offen offset:16{fl}")
    k.stamp("out stored")


def finish(k):
    if k.diag == "dbg":
        sk = k.newlabel("fin")
        k.wave_is(0, sk)
        k.I("s_load_dwordx2 s[92:93], s[0:1], 88")
        k.I("s_waitcnt lgkmcnt(0)")
        k.I("s_mov_b32 s94, 256")
        k.I("s_mov_b32 s95, 0x20000")
        k.I("s_mov_b64 exec, 1")
        sel = k.dbg_sel
        for slot, i in enumerate(sel):
            k.I(f"v_mov_b32 v9, {s(S_STAMP+i)}")
            if slot == 0:
                k.I("v_not_b32 v9, v9")
            k.I(f"v_mov_b32 v8, {4*slot}")
            k.I(f"buffer_atomic_umax v9, v8, s[92:95], 0 offen")
        k.label(sk)
    elif k.diag:
        sk = k.newlabel("fin")
        k.wave_is(0, sk)
        k.I(f"s_lshl_b32 {s(S_T0)}, s2, 7")
        k.I(f"s_add_u32 {s(S_T0)}, {s(S_T0)}, {WS_STAMP}")
        k.I(f"v_mov_b32 v8, {s(S_T0)}")
        k.I("s_mov_b64 exec, 1")
        for i in range(k.nstamp):
            k.I(f"v_mov_b32 v9, {s(S_STAMP+i)}")
            k.I(f"buffer_store_dword v9, v8, {srd(S_WS)}, 0 offen offset:{4*i}")
        k.label(sk)
    k.label("L_end")
    k.I("s_endpgm")


def build(diag=False, stop=None):
    k = K(diag, stop)
    phases = [prologue, start_phase, p1_prologue, p1_main, p1_epilogue,
              kv_combine_and_o, p2, p3, p4]
    for ph in phases:
        k.comment(f"======== {ph.__name__} ========")
        ph(k)
        if stop == ph.__name__:
            break
    k.dbg_sel = list(range(min(k.nstamp, 16)))
    if k.nstamp > 16:
        k.dbg_sel = [0, 1, 3, 4, 5, 7, 8, 9, 10, 11, 12, 13, 14, 15, 16, 17][:16]
    finish(k)
    hdr = open("cdna_kernels/" + NAME + ".s.ref").read().split("; Override launch geometry")[0]
    txt = hdr
    txt += f"; @launch grid=(256,1,1) block=(256,1,1) lds={LDS_BYTES}\n"
    txt += '.amdgcn_target "amdgcn-amd-amdhsa--gfx950"\n.text\n'
    txt += f".globl {NAME}_kernel\n.p2align 8\n.type {NAME}_kernel,@function\n{NAME}_kernel:\n"
    txt += k.text()
    txt += f""".section .rodata,"a"
.p2align 6
.amdhsa_kernel {NAME}_kernel
  .amdhsa_next_free_vgpr 512
  .amdhsa_next_free_sgpr 102
  .amdhsa_accum_offset 256
  .amdhsa_group_segment_fixed_size 0
  .amdhsa_kernarg_size 104
  .amdhsa_user_sgpr_count 2
  .amdhsa_user_sgpr_kernarg_segment_ptr 1
  .amdhsa_system_sgpr_workgroup_id_x 1
.end_amdhsa_kernel
"""
    return txt, k


if __name__ == "__main__":
    out = sys.argv[1] if len(sys.argv) > 1 else "k.s"
    for a in sys.argv:
        if a.startswith("--opt="):
            for kv in a[6:].split(","):
                kk, vv = kv.split("=")
                OPT[kk] = int(vv)
    diag = "--diag" in sys.argv
    if "--dbg" in sys.argv:
        diag = "dbg"
    stop = None
    for a in sys.argv:
        if a.startswith("--stop="):
            stop = a.split("=")[1]
    txt, k = build(diag, stop)
    open(out, "w").write(txt)
    if OPT.get("tmo"):
        open(out + ".tmo", "w").write("\n".join(k.tmo_names) + "\n")
    if diag:
        open(out + ".stamps", "w").write("\n".join(k.stamp_names) + "\n")
    print(f"wrote {out}: {len(txt)} bytes, {sum(1 for l in k.out if l.startswith(chr(9)))} instructions, {k.nops} hazard nops")
```

```python
import sys
from asmlib import Asm

NAME = "adaLN_cond__linear_kernel_hedgehog__glu_gated_reglu__prompt"

WS_E = 0
WS_MODG = 0x1000
WS_FKV = 0x4000
WS_FO = 0xC000
WS_FY = 0x14000
WS_FA = 0x1C000
WS_STAMP = 0x30000
WS_WEXT = 0x40000
WS_STATS = 0x80000
WS_MODC = 0x60000
WS_KVP = 0x100000
WS_O = 0x200000
WS_Y = 0x400000
WS_ACT = 0x800000

L_XI = 0
L_WI = 0
L_WM = 131072
L_S = 158720
L_RT = 159744
L_WMN = 114688
L_KVI = 0
L_QI = 65536
L_GP = 148480
L_CT = 139264
L_PHI = 153600
L_ZERO = 154624
L_RED = 0
L_KVF = 149504
L_Z = 151552
L_UB = 145920
L_CS = 162304
L_WO = 0
L_OI = 98304
SLAB = 14592
UOFF = 7296
LDS_BYTES = 163840

S_X, S_WQKV, S_WPHI, S_WO, S_WG, S_WU, S_WD, S_C, S_WMOD, S_OUT, S_WS = 4, 8, 12, 16, 20, 24, 28, 32, 36, 40, 44
S_XCD, S_I, S_M, S_J, S_W, S_TAG, S_MASK = 48, 49, 50, 51, 52, 53, 54
S_T0, S_T1, S_T2, S_T3, S_T4 = 55, 56, 57, 58, 59
S_CLK = 60
S_L2E = 62
S_SPIN = 64
S_OFF = 65
S_VALID = 66
S_EX = 68
S_M2, S_J2 = 70, 71
S_STAMP = 72
S_SEL = 92
S_HP = S_J

LOG2E = 0x3FB8AA3B
SPIN_MAX = 200000


def srd(i):
    return f"s[{i}:{i+3}]"


def v(i, n=1):
    return f"v{i}" if n == 1 else f"v[{i}:{i+n-1}]"


def a_(i, n=1):
    return f"a{i}" if n == 1 else f"a[{i}:{i+n-1}]"


def s(i, n=1):
    return f"s{i}" if n == 1 else f"s[{i}:{i+n-1}]"


V_LANE, V_L16, V_TAG = 1, 2, 3
V_DUMMY = 15
OPT = dict(touch=1, tw0=1, mall=0, nt_wm=1, tmn_nt=0, kst=16, kwx=18, kwd=22, twdk=20)


import os
STAMPS = os.environ.get('STAMPS', 'start,wmod landed,x in regs,mod arrived,P1 ready,p1 main,kv published,q softmax,kv flags seen,o published,o flags seen,wo gemm,y published,y flags seen,gate/up gemm,act published,act flags seen,out stored').split(',')


class K(Asm):
    def __init__(self, diag=False, stop=None):
        super().__init__()
        self.diag = diag
        self.stop = stop
        self.nstamp = 0

    def stamp(self, name, cyc=False):
        if not self.diag:
            return
        if STAMPS is not None and name not in STAMPS:
            return
        if cyc:
            self.wait_lg_all()
            self.I(f"s_memtime {s(S_CLK, 2)}")
            self.I("s_waitcnt lgkmcnt(0)")
            self.I(f"s_mov_b32 {s(S_STAMP + self.nstamp)}, {s(S_CLK)}")
            self.stamp_names = getattr(self, "stamp_names", []) + [name + " (cyc)"]
            self.nstamp += 1
            return
        self.wait_lg_all()
        self.I(f"s_memrealtime {s(S_CLK, 2)}")
        self.I("s_waitcnt lgkmcnt(0)")
        self.I(f"s_mov_b32 {s(S_STAMP + self.nstamp)}, {s(S_CLK)}")
        self.stamp_names = getattr(self, "stamp_names", []) + [name]
        self.nstamp += 1
        assert self.nstamp <= 18, self.stamp_names

    def wave_is(self, w, label_else):
        self.I(f"s_cmp_eq_u32 {s(S_W)}, {w}")
        self.I(f"s_cbranch_scc0 {label_else}")

    def mfma32(self, d, a, b, c=None):
        c = d if c is None else c
        self.I(f"v_mfma_f32_32x32x16_bf16 {d}, {a}, {b}, {c}")

    def test_delay(self, which):
        if OPT.get("x_delay") != which:
            return
        l = self.newlabel("dly")
        d = self.newlabel("dly_done")
        self.I("s_and_b32 s55, s2, 31")
        self.I("s_cmp_eq_u32 s55, 5")
        self.I(f"s_cbranch_scc0 {d}")
        self.I("s_mov_b32 s55, 200")
        self.label(l)
        self.I("s_sleep 8")
        self.I("s_sub_u32 s55, s55, 1")
        self.I("s_cmp_lg_u32 s55, 0")
        self.I(f"s_cbranch_scc1 {l}")
        self.label(d)

    def spin_init(self):
        self.I(f"s_mov_b32 {s(S_SPIN)}, {SPIN_MAX}")

    def spin_back(self, loop, done):
        self.I(f"s_cbranch_vccz {done}")
        self.I(f"s_sub_u32 {s(S_SPIN)}, {s(S_SPIN)}, 1")
        self.I(f"s_cmp_lg_u32 {s(S_SPIN)}, 0")
        self.I(f"s_cbranch_scc1 {loop}")
        if OPT.get("tmo"):
            self.ntmo = getattr(self, "ntmo", 0) + 1
            self.tmo_names = getattr(self, "tmo_names", []) + [loop]
            self.I(f"s_lshl_b32 {s(S_EX)}, s2, 2")
            self.I(f"s_add_u32 {s(S_EX)}, {s(S_EX)}, {s(S_W)}")
            self.I(f"s_lshl_b32 {s(S_EX)}, {s(S_EX)}, 6")
            self.I(f"s_add_u32 {s(S_EX)}, {s(S_EX)}, {0x70000 + 4*self.ntmo}")
            self.I(f"v_mov_b32 v250, {s(S_EX)}")
            self.I(f"s_mov_b32 {s(S_EX)}, vcc_lo")
            self.I(f"v_mov_b32 v251, {s(S_EX)}")
            self.I(f"buffer_store_dword v251, v250, {srd(S_WS)}, 0 offen sc1")

    def unpack(self, lo, hi, src):
        self.I(f"v_lshlrev_b32 {v(lo)}, 16, {v(src)}")
        self.I(f"v_and_b32 {v(hi)}, {s(S_MASK)}, {v(src)}")

    def half_total(self, r, tmp):
        self.I(f"v_mov_b32 {v(tmp)}, {v(r)}")
        self.I(f"v_permlane32_swap_b32 {v(r)}, {v(tmp)}")
        self.I(f"v_add_f32 {v(r)}, {v(r)}, {v(tmp)}")

    def dma(self, voff, rsrc, soff, sc1=False):
        nt = " nt" if OPT.get("nt_" + str(self._tag)) else ""
        self.I(f"buffer_load_dwordx4 {v(voff)}, {srd(rsrc)}, {soff} offen{' sc1' if sc1 else ''}{nt} lds", tag=self._tag)

    _tag = None

    def touch(self, rsrc, voff, soff, tag="t", dst=None):
        nt = " nt" if OPT.get("nt_t") else ""
        self.I(f"buffer_load_dword {v(V_DUMMY if dst is None else dst)}, {v(voff)}, {srd(rsrc)}, {soff} offen{nt}", tag=tag)

    def poll_flags(self, base_sreg, n, stem, tmp=14):
        done = self.newlabel(stem + "_skip")
        loop = self.newlabel(stem + "_loop")
        ok = self.newlabel(stem + "_ok")
        self.wave_is(0, done)
        self.cond_begin()
        self.I(f"v_min_u32 {v(tmp)}, {n-1}, {v(V_LANE)}")
        self.I(f"v_lshlrev_b32 {v(tmp)}, 7, {v(tmp)}")
        self.I(f"v_add_u32 {v(tmp)}, {s(base_sreg)}, {v(tmp)}")
        self.spin_init()
        if OPT.get("poll2"):
            alt = OPT.get("poll2_reg", 0)
            self.I(f"buffer_load_dword {v(tmp+1)}, {v(tmp)}, {srd(S_WS)}, 0 offen sc1")
            self.label(loop)
            self.I("s_nop 15")
            self.I("s_nop 15")
            self.I(f"buffer_load_dword {v(alt)}, {v(tmp)}, {srd(S_WS)}, 0 offen sc1")
            self.I("s_waitcnt vmcnt(1)")
            self.I(f"v_cmp_ne_u32 vcc, {s(S_TAG)}, {v(tmp+1)}")
            self.I(f"s_cbranch_vccz {ok}")
            self.I(f"buffer_load_dword {v(tmp+1)}, {v(tmp)}, {srd(S_WS)}, 0 offen sc1")
            self.I("s_waitcnt vmcnt(1)")
            self.I(f"v_cmp_ne_u32 vcc, {s(S_TAG)}, {v(alt)}")
            self.spin_back(loop, ok)
            self.label(ok + "_w")
        else:
            self.label(loop)
            self.I(f"buffer_load_dword {v(tmp+1)}, {v(tmp)}, {srd(S_WS)}, 0 offen sc1")
            self.I("s_waitcnt vmcnt(0)")
            self.I(f"v_cmp_ne_u32 vcc, {s(S_TAG)}, {v(tmp+1)}")
            self.spin_back(loop, ok)
        self.label(ok)
        if OPT.get("poll2"):
            self.I("s_waitcnt vmcnt(0)")
        self.cond_end()
        self.label(done)
        self.barrier()

    def signal(self, off_sreg, stem, tmp=14):
        self.barrier()
        done = self.newlabel(stem + "_sig")
        self.wave_is(0, done)
        self.cond_begin()
        self.I(f"v_mov_b32 {v(tmp)}, {s(off_sreg)}")
        self.I(f"s_mov_b64 exec, 1")
        self.I(f"buffer_store_dword {v(V_TAG)}, {v(tmp)}, {srd(S_WS)}, 0 offen sc1")
        self.I(f"s_mov_b64 exec, -1")
        self.cond_end()
        self.label(done)

    def granule_loads(self, regs, addr_regs, width, imm, tag):
        sfx = {2: "dwordx2", 4: "dwordx4"}[width]
        for i, (r, ad) in enumerate(zip(regs, addr_regs)):
            off = imm[i] if imm else 0
            self.I(f"buffer_load_{sfx} {v(r, width)}, {v(ad)}, {srd(S_WS)}, 0 offen offset:{off} sc1", tag=tag)

    def granule_verify(self, regs, addr_regs, stem, width, tagpos, imm, tag):
        loop = self.newlabel(stem + "_loop")
        chk = self.newlabel(stem + "_chk")
        ok = self.newlabel(stem + "_ok")
        self.spin_init()
        if self.cond:
            self.I("s_waitcnt vmcnt(0)")
        else:
            self.wait_vm(tag)
        self.I(f"s_branch {chk}")
        self.label(loop)
        self.cond_begin()
        self.granule_loads(regs, addr_regs, width, imm, None)
        self.I("s_waitcnt vmcnt(0)")
        self.cond_end()
        self.label(chk)
        first = True
        for r in regs:
            for tp in tagpos:
                if first:
                    self.I(f"v_cmp_ne_u32 vcc, {s(S_TAG)}, {v(r+tp)}")
                    first = False
                else:
                    self.I(f"v_cmp_ne_u32 {s(S_EX, 2)}, {s(S_TAG)}, {v(r+tp)}")
                    self.I(f"s_or_b64 vcc, vcc, {s(S_EX, 2)}")
        self.spin_back(loop, ok)
        self.label(ok)

    def load_granules_checked(self, regs, addr_regs, stem, width=2, tagpos=(1,), imm=None):
        self.granule_loads(regs, addr_regs, width, imm, stem)
        self.granule_verify(regs, addr_regs, stem, width, tagpos, imm, stem)


S_CODE = 0


def code_touch(k, wave, dst, fresh=False, t=(8, 9)):
    if not OPT.get("codepf"):
        return
    sk = k.newlabel("cpf")
    k.wave_is(wave, sk)
    k.cond_begin()
    if not fresh:
        a0, a1 = t
        k.I(f"v_min_u32 {v(a0)}, 11, {v(V_LANE)}")
        k.I(f"v_lshlrev_b32 {v(a0)}, 7, {v(a0)}")
        k.I(f"v_min_u32 {v(a0)}, {s(S_CODN)}, {v(a0)}")
        k.I(f"v_mov_b32 {v(a1)}, {s(S_CODE+1)}")
        k.I(f"v_add_co_u32 {v(a0)}, vcc, {s(S_CODE)}, {v(a0)}")
        k.I(f"v_addc_co_u32 {v(a1)}, vcc, 0, {v(a1)}, vcc")
    else:
        a0, a1 = 8, 9
    k.I(f"global_load_dword {v(dst)}, v[{a0}:{a1}], off")
    k.cond_end()
    k.label(sk)


S_CODN = 101


def prologue(k):
    if k.diag and "entry" in STAMPS:
        k.I("s_memrealtime s[96:97]")
    k.I("s_cmp_ge_u32 s2, 256")
    k.I("s_cbranch_scc1 L_end")
    k.I("s_load_dwordx16 s[64:79], s[0:1], 0")
    k.I("s_load_dwordx8 s[80:87], s[0:1], 64")
    k.I("s_load_dwordx2 s[88:89], s[0:1], 96")
    k.I(f"v_and_b32 {v(V_LANE)}, 63, v0")
    k.I("v_lshrrev_b32 v4, 6, v0")
    k.I(f"v_lshlrev_b32 {v(V_L16)}, 4, {v(V_LANE)}")
    k.I(f"v_readfirstlane_b32 {s(S_W)}, v4")
    k.I(f"s_and_b32 {s(S_XCD)}, s2, 7")
    k.I(f"s_lshr_b32 {s(S_I)}, s2, 3")
    k.I(f"s_lshr_b32 {s(S_T0)}, {s(S_XCD)}, 1")
    k.I(f"s_lshl_b32 {s(S_T0)}, {s(S_T0)}, 2")
    k.I(f"s_lshr_b32 {s(S_T1)}, {s(S_I)}, 3")
    k.I(f"s_add_u32 {s(S_M)}, {s(S_T0)}, {s(S_T1)}")
    k.I(f"s_and_b32 {s(S_T0)}, {s(S_XCD)}, 1")
    k.I(f"s_lshl_b32 {s(S_T0)}, {s(S_T0)}, 3")
    k.I(f"s_and_b32 {s(S_T1)}, {s(S_I)}, 7")
    k.I(f"s_add_u32 {s(S_J)}, {s(S_T0)}, {s(S_T1)}")
    k.I(f"s_mov_b32 {s(S_MASK)}, 0xffff0000")
    k.I(f"s_mov_b32 {s(S_L2E)}, {LOG2E:#x}")
    k.I(f"s_mov_b32 {s(S_L2E+1)}, {LOG2E:#x}")
    k.I("s_waitcnt lgkmcnt(0)")
    bufs = [(S_X, 64, 2097152), (S_WQKV, 66, 1572864), (S_WPHI, 68, 16384), (S_WO, 70, 524288),
            (S_WG, 74, 1835008), (S_WU, 76, 1835008), (S_WD, 78, 1835008), (S_C, 80, 1024),
            (S_WMOD, 82, 3145728), (S_OUT, 84, 2097152), (S_WS, 88, 268435456)]
    for r, p, n in bufs:
        k.I(f"s_mov_b32 {s(r)}, {s(p)}")
        k.I(f"s_mov_b32 {s(r+1)}, {s(p+1)}")
        k.I(f"s_mov_b32 {s(r+2)}, {n}")
        k.I(f"s_mov_b32 {s(r+3)}, 0x20000")
    k.I(f"s_lshr_b32 {s(S_T0)}, {s(S_I)}, 4")
    k.I(f"s_lshl_b32 {s(S_M2)}, {s(S_XCD)}, 1")
    k.I(f"s_add_u32 {s(S_M2)}, {s(S_M2)}, {s(S_T0)}")
    k.I(f"s_and_b32 {s(S_J2)}, {s(S_I)}, 15")
    if k.diag and "entry" in STAMPS:
        k.I(f"s_mov_b32 {s(S_STAMP + k.nstamp)}, s96")
        k.stamp_names = getattr(k, "stamp_names", []) + ["entry"]
        k.nstamp += 1
    k.I("v_mov_b32 v4, 0")
    k.I(f"buffer_load_dword {v(V_TAG)}, v4, {srd(S_WS)}, 0 offen sc1", tag="E")
    if OPT.get("codepf"):
        k.I("s_getpc_b64 s[90:91]")
        k.label("L_pc")
        k.I(f"s_mov_b32 {s(S_T1)}, L_end-L_pc")
        k.I(f"s_lshr_b32 {s(S_T1)}, {s(S_T1)}, 7")
        k.I(f"s_sub_u32 {s(S_T1)}, {s(S_T1)}, 1")
        k.I(f"s_mul_i32 {s(S_T0)}, {s(S_I)}, 12")
        k.I(f"v_min_u32 v8, 11, {v(V_LANE)}")
        k.I(f"v_add_u32 v8, {s(S_T0)}, v8")
        k.I(f"v_min_u32 v8, {s(S_T1)}, v8")
        k.I("v_lshlrev_b32 v8, 7, v8")
        k.I("v_mov_b32 v9, s91")
        k.I("v_add_co_u32 v8, vcc, s90, v8")
        k.I("v_addc_co_u32 v9, vcc, 0, v9, vcc")
        k.I(f"v_readfirstlane_b32 {s(S_CODE)}, v8")
        k.I(f"v_readfirstlane_b32 {s(S_CODE+1)}, v9")
        k.I(f"s_min_u32 {s(S_T0)}, {s(S_T0)}, {s(S_T1)}")
        k.I(f"s_sub_u32 {s(S_CODN)}, {s(S_T1)}, {s(S_T0)}")
        k.I(f"s_lshl_b32 {s(S_CODN)}, {s(S_CODN)}, 7")
        code_touch(k, 0, 177, fresh=True)
    k.stamp("start")


S_G = 100
S_GC = 3


def x_rows(k):
    k.I(f"s_lshl_b32 {s(S_T2)}, {s(S_M)}, 17")
    k.I(f"s_and_b32 {s(S_T3)}, {s(S_J)}, 7")
    k.I(f"s_lshl_b32 {s(S_T3)}, {s(S_T3)}, 4")
    k.I(f"s_add_u32 {s(S_T3)}, {s(S_T3)}, {s(S_W)}")
    k.I(f"s_sub_u32 {s(S_T3)}, {s(S_T3)}, 1")
    k._tag = "x"
    for n in range(43):
        if n == 42:
            last = k.newlabel("xlast")
            k.I(f"s_cmp_eq_u32 {s(S_W)}, 3")
            k.I(f"s_cbranch_scc1 {last}")
        k.I(f"s_and_b32 {s(S_T0)}, {s(S_T3)}, 127")
        k.I(f"s_and_b32 {s(S_T1)}, {s(S_T0)}, 15")
        k.I(f"s_lshl_b32 {s(S_T1)}, {s(S_T1)}, 4")
        k.I(f"v_xor_b32 v9, {s(S_T1)}, {v(V_L16)}")
        k.I(f"s_lshl_b32 m0, {s(S_T0)}, 10")
        k.I(f"s_add_u32 {s(S_OFF)}, m0, {s(S_T2)}")
        k.dma(9, S_X, s(S_OFF))
        if n < 42:
            k.I(f"s_add_u32 {s(S_T3)}, {s(S_T3)}, 3")
    k.label(last)
    k._tag = None


def touch_wqkv(k):
    if OPT["touch"]:
        k.I(f"v_lshrrev_b32 v13, 2, {v(V_LANE)}")
        k.I("v_mul_u32_u24 v13, 3072, v13")
        k.I(f"v_and_b32 v14, 3, {v(V_LANE)}")
        k.I("v_lshl_add_u32 v13, v14, 7, v13")
        k.I(f"s_mul_i32 {s(S_OFF)}, {s(S_I)}, {16*3072}")
        k.I(f"s_sub_u32 {s(S_T0)}, {s(S_W)}, 1")
        k.I(f"s_lshl_b32 {s(S_T0)}, {s(S_T0)}, 10")
        k.I(f"s_add_u32 {s(S_OFF)}, {s(S_OFF)}, {s(S_T0)}")
        k.I(f"s_and_b32 {s(S_T0)}, {s(S_XCD)}, 1")
        k.I(f"s_lshl_b32 {s(S_T0)}, {s(S_T0)}, 9")
        k.I(f"s_add_u32 {s(S_OFF)}, {s(S_OFF)}, {s(S_T0)}")
        k.touch(S_WQKV, 13, s(S_OFF), dst=176)


def mod_group(k):
    k.I(f"s_lshr_b32 {s(S_T0)}, {s(S_I)}, 2")
    k.I(f"s_lshl_b32 {s(S_T0)}, {s(S_T0)}, 3")
    k.I(f"s_add_u32 {s(S_T0)}, {s(S_T0)}, {s(S_XCD)}")
    k.I(f"s_lshl_b32 {s(S_T0)}, {s(S_T0)}, 2")
    k.I(f"s_and_b32 {s(S_T1)}, {s(S_I)}, 3")
    k.I(f"s_add_u32 {s(S_G)}, {s(S_T0)}, {s(S_T1)}")


def wm_voff(k, dst, tmp):
    k.I(f"v_lshrrev_b32 {v(dst)}, 1, {v(V_LANE)}")
    k.I(f"v_mul_u32_u24 {v(dst)}, 6144, {v(dst)}")
    k.I(f"v_and_b32 {v(tmp)}, 1, {v(V_LANE)}")
    k.I(f"v_lshlrev_b32 {v(tmp)}, 4, {v(tmp)}")
    k.I(f"s_lshl_b32 {s(S_T0)}, {s(S_G)}, 5")
    k.I(f"v_add3_u32 {v(dst)}, {v(dst)}, {v(tmp)}, {s(S_T0)}")


def gemv16(k, lds_base, nq=16, partial=False, nbuf=112):
    k.I(f"v_lshrrev_b32 v8, 4, {v(V_LANE)}")
    k.I("v_lshlrev_b32 v8, 3, v8")
    k.I(f"v_add_u32 v8, {L_S}, v8")
    if partial:
        k.I(f"s_and_b32 {s(S_T0)}, {s(S_I)}, 3")
        k.I(f"s_lshl_b32 {s(S_T0)}, {s(S_T0)}, 8")
        k.I(f"v_add_u32 v8, {s(S_T0)}, v8")
    k.I(f"v_lshlrev_b32 v10, 3, {v(V_LANE)}")
    k.I(f"v_add_u32 v10, {lds_base}, v10")
    for q in range(nq + 2):
        if q < nq:
            b = nbuf + 8 * (q & 3)
            k.I(f"ds_read_b64_tr_b16 {v(b+4, 2)}, v10 offset:{q*1024}")
            k.I(f"ds_read_b64_tr_b16 {v(b+6, 2)}, v10 offset:{q*1024+512}")
            k.I(f"ds_read_b64 {v(b, 2)}, v8 offset:{q*64}")
            k.I(f"ds_read_b64 {v(b+2, 2)}, v8 offset:{q*64+32}")
        if q >= 2:
            k.I(f"s_waitcnt lgkmcnt({8 if q < nq else (4 if q == nq else 0)})")
            bb = nbuf + 8 * ((q - 2) & 3)
            acc = 144 + 4 * (q & 1)
            c = "0" if q < 4 else v(acc, 4)
            k.I(f"v_mfma_f32_16x16x32_bf16 {v(acc, 4)}, {v(bb, 4)}, {v(bb+4, 4)}, {c}")
    k.test_delay(1 if partial else 2)
    k.I("v_add_f32 v144, v144, v148")
    k.I("v_mov_b32_dpp v145, v144 quad_perm:[1,0,3,2] row_mask:0xf bank_mask:0xf")
    if partial:
        k.I(f"v_mov_b32 v146, {v(V_TAG)}")
        k.I("v_mov_b32 v147, 0")
        k.I(f"v_lshlrev_b32 v8, 3, {v(V_LANE)}")
        k.I(f"s_and_b32 {s(S_T0)}, {s(S_I)}, 3")
        k.I(f"s_lshl_b32 {s(S_T0)}, {s(S_T0)}, 13")
        k.I(f"s_lshl_b32 {s(S_T1)}, {s(S_GC)}, 7")
        k.I(f"s_add_u32 {s(S_T0)}, {s(S_T0)}, {s(S_T1)}")
        k.I(f"s_add_u32 {s(S_T0)}, {s(S_T0)}, {WS_MODC}")
        k.I(f"v_add_u32 v8, {s(S_T0)}, v8")
        k.I("s_mov_b64 exec, 0x5555")
        k.I(f"buffer_store_dwordx4 v[144:147], v8, {srd(S_WS)}, 0 offen sc1")
    else:
        k.I("v_cvt_pk_bf16_f32 v144, v144, v145")
        k.I(f"v_mov_b32 v145, {v(V_TAG)}")
        k.I(f"v_lshlrev_b32 v8, 2, {v(V_LANE)}")
        k.I(f"s_lshl_b32 {s(S_T0)}, {s(S_G)}, 6")
        k.I(f"s_add_u32 {s(S_T0)}, {s(S_T0)}, {WS_MODG}")
        k.I(f"v_add_u32 v8, {s(S_T0)}, v8")
        k.I("s_mov_b64 exec, 0x5555")
        k.I(f"buffer_store_dwordx2 v[144:145], v8, {srd(S_WS)}, 0 offen sc1")
    k.I("s_mov_b64 exec, -1")


def mall_touch(k):
    k.I(f"v_min_u32 v9, 55, {v(V_LANE)}")
    k.I("v_lshlrev_b32 v9, 7, v9")
    k.I(f"s_mul_i32 {s(S_OFF)}, s2, {56*128}")
    for r in (S_WG, S_WU, S_WD):
        k.touch(r, 9, s(S_OFF), dst=176)
    k.I(f"v_and_b32 v9, 15, {v(V_LANE)}")
    k.I("v_lshlrev_b32 v9, 7, v9")
    k.I(f"s_lshl_b32 {s(S_OFF)}, s2, 11")
    k.touch(S_WO, 9, s(S_OFF), dst=176)
    k.I(f"v_lshrrev_b32 v9, 5, {v(V_LANE)}")
    k.I("v_mul_u32_u24 v9, 6144, v9")
    k.I(f"v_and_b32 v10, 31, {v(V_LANE)}")
    k.I("v_lshl_add_u32 v9, v10, 7, v9")
    k.I(f"s_mul_i32 {s(S_OFF)}, s2, {2*6144}")
    k.I(f"s_add_u32 {s(S_OFF)}, {s(S_OFF)}, 2048")
    k.touch(S_WMOD, 9, s(S_OFF), dst=176)


def start_phase(k):
    mod_group(k)
    k.I(f"s_lshr_b32 {s(S_T0)}, {s(S_I)}, 4")
    k.I(f"s_lshl_b32 {s(S_T0)}, {s(S_T0)}, 3")
    k.I(f"s_add_u32 {s(S_T0)}, {s(S_T0)}, {s(S_XCD)}")
    k.I(f"s_lshl_b32 {s(S_T0)}, {s(S_T0)}, 2")
    k.I(f"s_bfe_u32 {s(S_T1)}, {s(S_I)}, {(2 << 16) | 2}")
    k.I(f"s_add_u32 {s(S_GC)}, {s(S_T0)}, {s(S_T1)}")
    k.cond_begin()
    wa, wb = k.newlabel("st_b"), k.newlabel("st_j")
    k.wave_is(0, wa)
    k.I(f"buffer_load_dwordx4 v[24:27], {v(V_L16)}, {srd(S_C)}, 0 offen")
    k.I(f"v_lshrrev_b32 v7, 1, {v(V_LANE)}")
    k.I("v_mul_u32_u24 v7, 6144, v7")
    k.I(f"v_and_b32 v8, 1, {v(V_LANE)}")
    k.I("v_lshlrev_b32 v8, 4, v8")
    k.I(f"s_lshl_b32 {s(S_T0)}, {s(S_GC)}, 5")
    k.I(f"v_add3_u32 v7, v7, v8, {s(S_T0)}")
    k.I(f"s_and_b32 {s(S_OFF)}, {s(S_I)}, 3")
    k.I(f"s_mul_i32 {s(S_OFF)}, {s(S_OFF)}, {128*6144}")
    k.I(f"s_mov_b32 m0, {L_WM}")
    k._tag = "wm"
    for n in range(4):
        k.dma(7, S_WMOD, s(S_OFF))
        if n < 3:
            k.I(f"s_add_u32 m0, m0, 1024")
            k.I(f"s_add_u32 {s(S_OFF)}, {s(S_OFF)}, 196608")
    k._tag = None
    k.I(f"s_branch {wb}")
    k.label(wa)
    k.I(f"s_lshl_b32 {s(S_OFF)}, {s(S_HP)}, 10")
    k.I(f"s_mov_b32 m0, {L_PHI}")
    k.dma(V_L16, S_WPHI, s(S_OFF))
    touch_wqkv(k)
    x_rows(k)
    k.label(wb)
    k.cond_end()
    k.vmq = []


def start_finish(k):
    k.cond_begin()
    wa, wb = k.newlabel("sf_b"), k.newlabel("sf_j")
    k.wave_is(0, wa)
    k.I("s_waitcnt vmcnt(4)")
    k.I(f"v_add_u32 {v(V_TAG)}, 1, {v(V_TAG)}")
    for i in range(4):
        k.unpack(28 + 2 * i, 29 + 2 * i, 24 + i)
    for i in range(8):
        k.I(f"v_mul_f32 {v(36+i)}, {s(S_L2E)}, {v(28+i)}")
    for i in range(8):
        k.I(f"v_exp_f32 {v(36+i)}, -{v(36+i)}")
    for i in range(8):
        k.I(f"v_add_f32 {v(36+i)}, 1.0, {v(36+i)}")
    for i in range(8):
        k.I(f"v_rcp_f32 {v(36+i)}, {v(36+i)}")
    for i in range(8):
        k.I(f"v_mul_f32 {v(28+i)}, {v(28+i)}, {v(36+i)}")
    for i in range(4):
        k.I(f"v_cvt_pk_bf16_f32 {v(24+i)}, {v(28+2*i)}, {v(29+2*i)}")
    k.I(f"v_add_u32 v8, {L_S}, {v(V_L16)}")
    k.I("ds_write_b128 v8, v[24:27]")
    k.I("s_waitcnt vmcnt(0) lgkmcnt(0)")
    gemv16(k, L_WM, nq=4, partial=True)
    if OPT["mall"]:
        mall_touch(k)
    k.I(f"s_branch {wb}")
    k.label(wa)
    k.I("s_waitcnt vmcnt(0)")
    k.I(f"v_add_u32 {v(V_TAG)}, 1, {v(V_TAG)}")
    k.label(wb)
    k.cond_end()
    k.I(f"v_readfirstlane_b32 {s(S_TAG)}, {v(V_TAG)}")
    k.stamp("mod published")
    k.lgq = []
    k.barrier()


def modn_compute(k):
    skip = k.newlabel("mn_c")
    k.I("s_sub_u32 s55, s2, 64")
    k.I("s_cmp_ge_u32 s55, 128")
    k.I(f"s_cbranch_scc1 {skip}")
    k.wave_is(2, skip)
    k.cond_begin()
    gemv16(k, L_WMN)
    k.cond_end()
    k.label(skip)


X0 = 16
AQ, AK, AV = 144, 160, 176
DM = 144
DG = 192
EB = (200, 204)
BEXT = 208
MSK = 212
V_TRK, V_TRV, V_TAB, V_R, V_TRQ = 220, 221, 222, 223, 4


def lane_fields(k, t_r=None, s_=None, r_=None, c_=None, nh=None):
    if s_ is not None:
        k.I(f"v_lshrrev_b32 {v(s_)}, 5, {v(V_LANE)}")
    if nh is not None:
        k.I(f"v_bfe_u32 {v(nh)}, {v(V_LANE)}, 4, 1")
    if r_ is not None:
        k.I(f"v_bfe_u32 {v(r_)}, {v(V_LANE)}, 2, 2")
    if c_ is not None:
        k.I(f"v_and_b32 {v(c_)}, 3, {v(V_LANE)}")


def lbase_bytes(k, dst, nh, c, t0, t1):
    k.I(f"v_and_b32 {v(t0)}, 1, {v(c)}")
    k.I(f"v_lshlrev_b32 {v(t0)}, 5, {v(t0)}")
    k.I(f"v_lshrrev_b32 {v(t1)}, 1, {v(c)}")
    k.I(f"v_lshlrev_b32 {v(t1)}, 3, {v(t1)}")
    k.I(f"v_lshl_add_u32 {v(dst)}, {v(nh)}, 4, {v(t0)}")
    k.I(f"v_add_u32 {v(dst)}, {v(dst)}, {v(t1)}")


MODA_REGS = [144 + 4 * i for i in range(8)]
MODA_ADDR = [202, 203, 204, 205, 206, 207, 241, 242]


def p1_prologue(k):
    k.I("v_mov_b32 v8, 0")
    k.I(f"v_lshlrev_b32 v9, 2, {v(V_LANE)}")
    k.I(f"v_and_b32 v9, 60, v9")
    k.I(f"v_add_u32 v9, {L_ZERO}, v9")
    k.I("ds_write_b32 v9, v8")
    p1_static(k)
    k.I(f"v_and_b32 v8, 31, {v(V_LANE)}")
    k.I(f"s_lshl_b32 {s(S_T0)}, {s(S_W)}, 5")
    k.I(f"v_add_u32 v9, {s(S_T0)}, v8")
    k.I("v_lshlrev_b32 v9, 10, v9")
    k.I("v_and_b32 v8, 15, v8")
    k.I(f"v_lshrrev_b32 v10, 5, {v(V_LANE)}")
    for q in range(8):
        k.I(f"v_add_u32 v11, {2*q}, v10")
        k.I("v_xor_b32 v11, v11, v8")
        k.I(f"v_lshl_add_u32 {v(192+q)}, v11, 4, v9")
    k.I(f"v_lshrrev_b32 v8, 3, {v(V_LANE)}")
    k.I("v_mul_u32_u24 v8, 3072, v8")
    k.I(f"v_and_b32 v9, 7, {v(V_LANE)}")
    k.I(f"v_bfe_u32 v10, {v(V_LANE)}, 4, 1")
    k.I("v_lshlrev_b32 v10, 2, v10")
    k.I("v_xor_b32 v9, v9, v10")
    k.I("v_lshrrev_b32 v10, 2, v9")
    k.I("v_lshlrev_b32 v10, 10, v10")
    k.I("v_and_b32 v9, 3, v9")
    k.I("v_lshl_add_u32 v10, v9, 4, v10")
    k.I(f"s_lshl_b32 {s(S_T0)}, {s(S_HP)}, 6")
    k.I(f"s_add_u32 {s(S_T1)}, {s(S_T0)}, 1024")
    k.I(f"v_add3_u32 v200, v8, v10, {s(S_T1)}")
    k.I(f"v_lshrrev_b32 v8, 2, {v(V_LANE)}")
    k.I("v_mul_u32_u24 v8, 3072, v8")
    k.I(f"v_and_b32 v9, 3, {v(V_LANE)}")
    k.I("v_lshl_add_u32 v8, v9, 4, v8")
    k.I(f"v_add_u32 v6, {s(S_T0)}, v8")
    k.I("v_lshlrev_b32 v202, 4, v0")
    k.I(f"v_add_u32 v202, {WS_MODC}, v202")
    k.I(f"v_add_u32 v203, 8192, v202")
    k.I(f"v_add_u32 v204, 16384, v202")
    k.I(f"v_add_u32 v205, 24576, v202")
    k.I(f"v_add_u32 v206, 4096, v202")
    k.I(f"v_add_u32 v207, 4096, v203")
    k.I(f"v_add_u32 v241, 4096, v204")
    k.I(f"v_add_u32 v242, 4096, v205")
    start_finish(k)
    k.I("v_mov_b32 v8, 0x3f803f80")
    for r in range(10, 14):
        k.I(f"v_mov_b32 {v(r)}, 0")
    dots = []
    for i in range(128):
        dots.append(f"v_dot2c_f32_bf16 {v(10 + (i & 1))}, {v(X0+i)}, v8")
        dots.append(f"v_dot2c_f32_bf16 {v(12 + (i & 1))}, {v(X0+i)}, {v(X0+i)}")
    LAG = 6
    NEARLY = OPT.get("dots_early", 20)
    for j in range(32):
        k.I(f"ds_read_b128 {v(X0+4*j, 4)}, {v(192+(j&7))} offset:{L_XI + (j>>3)*256}", tag=f"xf{j}")
        q = j - LAG
        if 0 <= q < NEARLY:
            k.wait_lg(f"xf{q}")
            for _ in range(8):
                k.I(dots.pop(0))
        elif j % 8 == 7 and j < 31:
            k.I("s_waitcnt lgkmcnt(8)")
    k.wait_lg_all()
    k.barrier()
    k.stamp("x in regs")
    k.I(f"s_mul_i32 {s(S_T2)}, {s(S_W)}, {128*3072}")
    k.I(f"s_lshl_b32 {s(S_T3)}, {s(S_W)}, 14")
    if L_KVI:
        k.I(f"s_add_u32 {s(S_T3)}, {s(S_T3)}, {L_KVI}")

    def some_dots(n):
        for _ in range(min(n, len(dots))):
            k.I(dots.pop(0))

    k._tag = "w"
    for n in range(16):
        k.I(f"s_add_u32 {s(S_OFF)}, {s(S_T2)}, {n*8*3072}")
        k.I(f"s_add_u32 m0, {s(S_T3)}, {n*1024}")
        k.dma(200, S_WQKV, s(S_OFF))
        some_dots(4)
    k._tag = None
    for r, ad in zip(MODA_REGS, MODA_ADDR):
        k.granule_loads([r], [ad], 4, None, "modA")
        some_dots(3)
    k.side_items = p1_side(k, regs=(243, 244, 245, 246))
    if not OPT.get("tloop"):
        for it in k.side_items:
            for t, tg in it:
                k.I(t, tag=tg)
            some_dots(3)
        k.side_items = []
    for t in dots:
        k.I(t)
    k.I("v_add_f32 v10, v10, v11")
    k.I("v_add_f32 v12, v12, v13")
    k.half_total(10, 11)
    k.half_total(12, 13)
    k.I("v_mul_f32 v10, 0x3b000000, v10")
    k.I("v_mul_f32 v12, 0x3b000000, v12")
    k.I("v_fma_f32 v12, -v10, v10, v12")
    k.I("v_max_f32 v12, 0, v12")
    k.I("v_add_f32 v12, 0x3727c5ac, v12")
    k.I(f"v_rsq_f32 {v(V_R)}, v12")
    k.I("v_sub_f32 v10, 0, v10")
    k.I(f"v_mul_f32 v11, v12, {v(V_R)}")
    k.I("v_cvt_pk_bf16_f32 v12, v10, v11")
    k.unpack(8, 9, 12)
    k.I("v_sub_f32 v8, v10, v8")
    k.I("v_sub_f32 v9, v11, v9")
    k.I("v_cvt_pk_bf16_f32 v13, v8, v9")
    k.I(f"s_mov_b32 {s(S_T0)}, 0x01000100")
    k.I(f"s_mov_b32 {s(S_T1)}, 0x03020302")
    k.I(f"v_perm_b32 {v(BEXT)}, v12, v12, {s(S_T0)}")
    k.I(f"v_perm_b32 {v(BEXT+1)}, v13, v13, {s(S_T0)}")
    k.I(f"v_perm_b32 {v(BEXT+2)}, v12, v12, {s(S_T1)}")
    k.I(f"v_perm_b32 {v(BEXT+3)}, v13, v13, {s(S_T1)}")
    k.I(f"v_cmp_gt_u32 vcc, 32, {v(V_LANE)}")
    for i in range(4):
        k.I(f"v_cndmask_b32 {v(BEXT+i)}, 0, {v(BEXT+i)}, vcc")
    k.stamp("stats")
    p1_rv(k)
    k.granule_verify(MODA_REGS, MODA_ADDR, "modA", 4, (2,), None, "modA")
    k.stamp("mod arrived")
    for base in (144, 160):
        k.I(f"v_pk_add_f32 {v(base,2)}, {v(base,2)}, {v(base+4,2)}")
        k.I(f"v_pk_add_f32 {v(base+8,2)}, {v(base+8,2)}, {v(base+12,2)}")
        k.I(f"v_pk_add_f32 {v(base,2)}, {v(base,2)}, {v(base+8,2)}")
    k.I("v_cvt_pk_bf16_f32 v204, v144, v145")
    k.I("v_cvt_pk_bf16_f32 v206, v160, v161")
    k.unpack(192, 193, 206)
    k.I("v_add_f32 v192, 1.0, v192")
    k.I("v_add_f32 v193, 1.0, v193")
    k.I("v_cvt_pk_bf16_f32 v12, v192, v193")
    k.I("v_and_b32 v192, 0xffff, v12")
    k.I("v_and_b32 v194, 0xffff, v204")
    k.I(f"v_and_b32 v196, {s(S_MASK)}, v12")
    k.I(f"v_and_b32 v198, {s(S_MASK)}, v204")
    for r in (192, 194, 196, 198):
        k.I(f"v_mov_b32 {v(r+1)}, {v(r)}")
    k.I("v_lshlrev_b32 v8, 5, v0")
    k.I(f"v_add_u32 v8, {L_CT}, v8")
    k.I("ds_write_b128 v8, v[192:195]")
    k.I("ds_write_b128 v8, v[196:199] offset:16")
    k.vmq = []
    k.wait_lg_all()
    k.barrier()
    k.stamp("P1 ready")
    k.stamp("c0", cyc=True) if STAMPS and "c0" in STAMPS else None


def p1_static(k):
    k.I(f"v_bfe_u32 v8, {v(V_LANE)}, 1, 2")
    k.I(f"v_bfe_u32 v9, {v(V_LANE)}, 4, 1")
    k.I("v_lshl_add_u32 v8, v9, 2, v8")
    k.I(f"v_bfe_u32 v9, {v(V_LANE)}, 3, 1")
    k.I(f"v_lshrrev_b32 v10, 5, {v(V_LANE)}")
    k.I("v_xor_b32 v9, v9, v10")
    k.I("v_lshl_add_u32 v8, v9, 3, v8")
    for i in range(8):
        k.I(f"v_cmp_eq_u32 vcc, {i}, v8")
        k.I(f"v_cndmask_b32 {v(MSK+i)}, 0, -1, vcc")
    lane_fields(k, s_=8, r_=9, c_=10, nh=11)
    lbase_bytes(k, 12, 11, 10, 13, 14)
    k.I("v_lshl_add_u32 v8, v8, 2, v9")
    k.I("v_lshlrev_b32 v13, 7, v8")
    k.I("v_lshrrev_b32 v9, 1, v9")
    k.I("v_lshl_add_u32 v13, v9, 6, v13")
    k.I(f"v_add_u32 {v(V_TRK)}, v13, v12")
    k.I(f"v_xor_b32 {v(V_TRV)}, 64, {v(V_TRK)}")
    k.I("v_lshlrev_b32 v13, 6, v8")
    k.I("v_add_u32 v13, v13, v12")
    k.I(f"v_add_u32 {v(V_TRQ)}, {L_QI}, v13")
    k.I(f"v_and_b32 v8, 31, {v(V_LANE)}")
    k.I("v_lshlrev_b32 v8, 4, v8")
    k.I(f"v_add_u32 {v(V_TAB)}, {L_CT}, v8")
    p1_sel(k)


def p1_w(j, p):
    if p == 0:
        return V_TRQ, j * 1024, 512
    return (V_TRK if p == 1 else V_TRV), L_KVI + j * 2048, 1024


def p1_main(k):
    def rd_e(B):
        return [(f"ds_read_b128 {v(EB[B & 1], 4)}, {v(V_TAB)} offset:{B*512}", f"e{B}")]

    def rd_w(B):
        out = []
        for a in range(2):
            for pi, p in enumerate((1, 2)):
                base, off, st = p1_w(2 * B + a, p)
                for rd in range(2):
                    out.append((f"ds_read_b64_tr_b16 {a_(16*(B&1) + 8*a + 4*pi + 2*rd, 2)}, {v(base)} offset:{off + rd*st}", f"w{B}_{a}{pi}"))
        return out

    def diag(B):
        return [f"v_and_b32 {v(DG+i)}, {v(EB[B & 1])}, {v(MSK+i)}" for i in range(8)]

    def pack(B):
        return [f"v_cvt_pk_bf16_f32 {v(X0 + 8*B + i)}, {v(DM + 2*i)}, {v(DM + 2*i + 1)}" for i in range(8)]

    def mod_mfma(B, i):
        if i < 2:
            k.mfma32(v(DM, 16), v(DG + 4 * i, 4), v(X0 + 8 * B + 4 * i, 4), "0" if i == 0 else None)
        else:
            k.mfma32(v(DM, 16), v(EB[B & 1], 4), v(BEXT, 4))

    def emit(items):
        for it in items:
            if isinstance(it, tuple):
                k.I(it[0], tag=it[1])
            else:
                k.I(it)

    side = k.side_items
    emit(rd_e(0) + rd_e(1) + rd_w(0))
    k.wait_lg("e0")
    emit(diag(0))
    for i in range(3):
        mod_mfma(0, i)
    k.wait_lg("e1")
    emit(diag(1))
    emit(pack(0))
    for B in range(16):
        nxt = B + 1 < 16
        w = rd_w(B + 1) if nxt else []
        e = rd_e(B + 2) if B + 2 < 16 else []
        dg = diag(B + 2) if B + 2 < 16 else []
        pk = pack(B + 1) if nxt else []

        def g(a, pi):
            k.wait_lg(f"w{B}_{a}{pi}")
            wf = a_(16 * (B & 1) + 8 * a + 4 * pi, 4)
            h = v(X0 + 8 * B + 4 * a, 4)
            c0 = "0" if (B == 0 and a == 0) else None
            if pi == 0:
                k.mfma32(v(AK, 16), wf, h, c0)
            else:
                k.mfma32(v(AV, 16), h, wf, c0)

        cut = (1, 4, 7) if OPT.get("p1ord", 1) else (2, 4, 6)
        if nxt:
            mod_mfma(B + 1, 0)
        emit(e + w[0:cut[0]])
        if nxt:
            mod_mfma(B + 1, 1)
        emit(w[cut[0]:cut[1]])
        if nxt:
            mod_mfma(B + 1, 2)
        emit(w[cut[1]:cut[2]])
        g(0, 0)
        emit(w[cut[2]:8])
        if dg:
            k.wait_lg(f"e{B+2}")
        emit(dg[0:3])
        g(0, 1)
        emit(dg[3:8])
        g(1, 0)
        emit(pk[0:4])
        g(1, 1)
        emit(pk[4:8])
        if side:
            emit(side.pop(0))
    assert not side
    k.stamp("p1 main")
    k.stamp("c1", cyc=True) if STAMPS and "c1" in STAMPS else None


def p1_q(k):
    def rd(j):
        base, off, st = p1_w(j, 0)
        return [(f"ds_read_b64_tr_b16 {a_(4*(j % 6) + 2*rd, 2)}, {v(base)} offset:{off + rd*st}", f"q{j}") for rd in range(2)]
    for j in range(32 + 4):
        if j < 32:
            for t, tg in rd(j):
                k.I(t, tag=tg)
        q = j - 4
        if q >= 0:
            k.wait_lg(f"q{q}")
            k.mfma32(v(AQ, 16), a_(4 * (q % 6), 4), v(X0 + 4 * q, 4), "0" if q == 0 else None)


def softmax16(k, P, E, outp, outn, t, filler=None, every=4):
    mx, mn = t, t + 2
    k.I(f"v_max3_f32 {v(mx)}, {v(P)}, {v(P+1)}, {v(P+2)}")
    k.I(f"v_min3_f32 {v(mn)}, {v(P)}, {v(P+1)}, {v(P+2)}")
    for i in range(3, 15, 2):
        k.I(f"v_max3_f32 {v(mx)}, {v(mx)}, {v(P+i)}, {v(P+i+1)}")
        k.I(f"v_min3_f32 {v(mn)}, {v(mn)}, {v(P+i)}, {v(P+i+1)}")
    k.I(f"v_max_f32 {v(mx)}, {v(mx)}, {v(P+15)}")
    k.I(f"v_min_f32 {v(mn)}, {v(mn)}, {v(P+15)}")
    k.I(f"v_mul_f32 {v(mx)}, {s(S_L2E)}, {v(mx)}")
    k.I(f"v_mul_f32 {v(mn)}, {s(S_L2E)}, {v(mn)}")
    for sign, m, out in ((+1, mx, outp), (-1, mn, outn)):
        for i in range(0, 16, 2):
            if sign > 0:
                k.I(f"v_pk_fma_f32 {v(E+i,2)}, {v(P+i,2)}, {s(S_L2E,2)}, {v(m,2)} op_sel_hi:[1,1,0] neg_lo:[0,0,1] neg_hi:[0,0,1]")
            else:
                k.I(f"v_pk_fma_f32 {v(E+i,2)}, {v(P+i,2)}, {s(S_L2E,2)}, {v(m,2)} op_sel_hi:[1,1,0] neg_lo:[1,0,0] neg_hi:[1,0,0]")
        for i in range(16):
            k.I(f"v_exp_f32 {v(E+i)}, {v(E+i)}")
            if filler and i % every == every - 1:
                for tt, tg in filler.pop(0):
                    k.I(tt, tag=tg)
        sm = t + 4
        k.I(f"v_pk_add_f32 {v(sm,2)}, {v(E,2)}, {v(E+2,2)}")
        for i in range(4, 16, 2):
            k.I(f"v_pk_add_f32 {v(sm,2)}, {v(sm,2)}, {v(E+i,2)}")
        k.I(f"v_add_f32 {v(sm)}, {v(sm)}, {v(sm+1)}")
        k.I(f"v_rcp_f32 {v(sm)}, {v(sm)}")
        for i in range(0, 16, 2):
            k.I(f"v_pk_mul_f32 {v(E+i,2)}, {v(E+i,2)}, {v(sm,2)} op_sel_hi:[1,0]")
        for i in range(8):
            k.I(f"v_cvt_pk_bf16_f32 {v(out+i)}, {v(E+2*i)}, {v(E+2*i+1)}")


PHI_A, PHI_B = 224, 228
SEL0, SEL1, SELN0, SELN1 = 232, 236, 240, 244
RV = 224
PK, VP = 144, 152
PP = 160
EE = 192
TMP = 208
FP, FN = 224, 232
TP, TN = 176, 160
KVA, KVB = 192, 240
QP, QN = 96, 104


def p1_sel(k):
    k.I(f"v_bfe_u32 v8, {v(V_LANE)}, 3, 1")
    k.I(f"v_and_b32 v9, 3, {v(V_LANE)}")
    k.I("v_lshl_add_u32 v8, v8, 2, v9")
    k.I("v_and_b32 v9, 1, v8")
    k.I("v_lshlrev_b32 v9, 4, v9")
    k.I("v_mov_b32 v10, 0x3f80")
    k.I("v_lshlrev_b32 v9, v9, v10")
    k.I("v_lshrrev_b32 v8, 1, v8")
    k.I(f"v_bfe_u32 v10, {v(V_LANE)}, 4, 1")
    k.I(f"v_bfe_u32 v11, {v(V_LANE)}, 2, 1")
    k.I(f"v_lshrrev_b32 v12, 5, {v(V_LANE)}")
    k.I("v_xor_b32 v11, v11, v12")
    k.I(f"v_cmp_eq_u32 {s(S_VALID,2)}, 0, v11")
    k.I("v_lshl_add_u32 v13, v10, 2, v8")
    k.I("v_lshl_add_u32 v13, v11, 3, v13")
    for neg, base in ((0, SEL0), (1, SELN0)):
        for a in range(2):
            for d in range(4):
                k.I(f"v_cmp_eq_u32 vcc, {8*neg + 4*a + d}, v13")
                k.I(f"v_cndmask_b32 v14, 0, v9, vcc")
                k.I(f"v_accvgpr_write_b32 {a_(base + 4*a + d)}, v14")


def p1_rv(k):
    k.wait_vm("phi")
    lane_fields(k, s_=8, r_=9, c_=10, nh=11)
    k.I("v_lshlrev_b32 v12, 9, v8")
    k.I("v_lshl_add_u32 v12, v9, 5, v12")
    k.I("v_lshlrev_b32 v13, 1, v11")
    k.I("v_lshrrev_b32 v14, 1, v10")
    k.I("v_add_u32 v13, v13, v14")
    k.I("v_lshl_add_u32 v12, v13, 3, v12")
    k.I(f"v_add_u32 v12, {L_PHI}, v12")
    k.I("v_and_b32 v13, 1, v10")
    k.I("v_cmp_eq_u32 vcc, v13, v8")
    for a in range(2):
        for rd in range(2):
            k.I(f"v_add_u32 v14, {(8*a+4*rd)*32}, v12")
            k.I(f"v_mov_b32 v15, {L_ZERO}")
            k.I("v_cndmask_b32 v14, v15, v14, vcc")
            k.I(f"ds_read_b64_tr_b16 {a_(PHI_A + 4*a + 2*rd, 2)}, v14", tag="phif")
    k.I(f"v_and_b32 v8, 31, {v(V_LANE)}")
    k.I("v_lshlrev_b32 v8, 2, v8")
    k.I(f"s_lshl_b32 {s(S_T0)}, {s(S_W)}, 7")
    k.I(f"s_add_u32 {s(S_T0)}, {s(S_T0)}, {L_RT}")
    k.I(f"v_add_u32 v8, {s(S_T0)}, v8")
    k.I(f"ds_write_b32 v8, {v(V_R)}", tag="rw")
    k.I(f"v_lshrrev_b32 v9, 5, {v(V_LANE)}")
    k.I("v_lshlrev_b32 v9, 4, v9")
    k.I(f"v_add_u32 v9, {s(S_T0)}, v9")
    k.wait_lg("rw")
    for q in range(4):
        k.I(f"ds_read_b128 {v(RV+4*q,4)}, v9 offset:{32*q}", tag="rv")
    k.wait_lg_all()


def p1_epilogue(k):
    k.barrier()
    for i in range(16):
        k.I(f"v_mul_f32 {v(AK+i)}, {v(V_R)}, {v(AK+i)}")
    for i in range(8):
        k.I(f"v_cvt_pk_bf16_f32 {v(PK+i)}, {v(AK+2*i)}, {v(AK+2*i+1)}")
    k.mfma32(v(PP, 16), a_(PHI_A, 4), v(PK, 4), "0")
    k.mfma32(v(PP, 16), a_(PHI_B, 4), v(PK + 4, 4))
    for i in range(16):
        k.I(f"v_mul_f32 {v(AV+i)}, {v(RV+i)}, {v(AV+i)}")
    for i in range(8):
        k.I(f"v_cvt_pk_bf16_f32 {v(VP+i)}, {v(AV+2*i)}, {v(AV+2*i+1)}")
    k.stamp("k proj")
    softmax16(k, PP, EE, FP, FN, TMP, filler=q_image_items(k))
    k.stamp("k softmax")
    k.mfma32(v(TP, 16), v(FP, 4), a_(SEL0, 4), "0")
    k.mfma32(v(TN, 16), v(FN, 4), a_(SELN0, 4), "0")
    k.mfma32(v(TP, 16), v(FP + 4, 4), a_(SEL1, 4))
    k.mfma32(v(TN, 16), v(FN + 4, 4), a_(SELN1, 4))
    for src, pk, z in ((TP, FP, TMP), (TN, FN, TMP + 2)):
        for i in range(8):
            k.I(f"v_cvt_pk_bf16_f32 {v(pk+i)}, {v(src+2*i)}, {v(src+2*i+1)}")
        if src == TP:
            k.mfma32(v(KVA, 16), v(FP, 4), v(VP, 4), "0")
            k.mfma32(v(KVA, 16), v(FP + 4, 4), v(VP + 4, 4))
        else:
            k.mfma32(v(KVB, 16), v(FN, 4), v(VP, 4), "0")
            k.mfma32(v(KVB, 16), v(FN + 4, 4), v(VP + 4, 4))
    for src, z in ((TP, TMP), (TN, TMP + 2)):
        k.I(f"v_add_f32 {v(z)}, {v(src)}, {v(src+1)}")
        k.I(f"v_add_f32 {v(z+1)}, {v(src+2)}, {v(src+3)}")
        for i in range(4, 16, 2):
            k.I(f"v_add_f32 {v(z)}, {v(z)}, {v(src+i)}")
            k.I(f"v_add_f32 {v(z+1)}, {v(z+1)}, {v(src+i+1)}")
    k.I(f"v_add_f32 {v(TMP+4)}, {v(TMP)}, {v(TMP+1)}")
    k.I(f"v_add_f32 {v(TMP+5)}, {v(TMP+2)}, {v(TMP+3)}")
    for i in range(16):
        k.I(f"v_cndmask_b32 {v(KVA+i)}, {v(KVB+i)}, {v(KVA+i)}, {s(S_VALID,2)}")
    k.stamp("kv mfma")
    k.I(f"s_mul_i32 {s(S_T0)}, {s(S_W)}, 4608")
    k.I(f"s_add_u32 {s(S_T0)}, {s(S_T0)}, {L_RED}")
    k.I(f"v_add_u32 v8, {s(S_T0)}, {v(V_L16)}")
    for q in range(4):
        k.I(f"ds_write_b128 v8, {v(KVA+4*q,4)} offset:{q*1024}")
    k.I(f"v_lshlrev_b32 v9, 3, {v(V_LANE)}")
    k.I(f"v_add_u32 v9, {s(S_T0)}, v9")
    k.I(f"ds_write_b64 v9, {v(TMP+4,2)} offset:4096")
    k.wait_lg_all()
    k.barrier()
    k.stamp("red barrier")
    k.I(f"s_lshl_b32 {s(S_T0)}, {s(S_W)}, 10")
    k.I(f"s_add_u32 {s(S_T0)}, {s(S_T0)}, {L_RED}")
    k.I(f"v_add_u32 v8, {s(S_T0)}, {v(V_L16)}")
    for ww in range(4):
        k.I(f"ds_read_b128 {v(KVA+4*ww,4)}, v8 offset:{ww*4608}")
    k.I(f"v_lshlrev_b32 v9, 3, {v(V_LANE)}")
    k.I(f"v_add_u32 v9, {L_RED + 4096}, v9")
    for ww in range(4):
        k.I(f"ds_read_b64 {v(KVB+2*ww,2)}, v9 offset:{ww*4608}")
    k.wait_lg_all()
    for h in (0, 2):
        k.I(f"v_pk_add_f32 {v(KVA+h,2)}, {v(KVA+h,2)}, {v(KVA+4+h,2)}")
        k.I(f"v_pk_add_f32 {v(KVA+8+h,2)}, {v(KVA+8+h,2)}, {v(KVA+12+h,2)}")
        k.I(f"v_pk_add_f32 {v(KVA+h,2)}, {v(KVA+h,2)}, {v(KVA+8+h,2)}")
    k.I(f"v_cvt_pk_bf16_f32 {v(KVA)}, {v(KVA)}, {v(KVA+1)}")
    k.I(f"v_cvt_pk_bf16_f32 {v(KVA+1)}, {v(KVA+2)}, {v(KVA+3)}")
    k.I(f"v_pk_add_f32 {v(KVB,2)}, {v(KVB,2)}, {v(KVB+2,2)}")
    k.I(f"v_pk_add_f32 {v(KVB+4,2)}, {v(KVB+4,2)}, {v(KVB+6,2)}")
    k.I(f"v_pk_add_f32 {v(KVB,2)}, {v(KVB,2)}, {v(KVB+4,2)}")
    k.I(f"v_cvt_pk_bf16_f32 {v(KVB)}, {v(KVB)}, {v(KVB+1)}")
    k.test_delay(3)
    k.I(f"v_mov_b32 {v(KVA+2)}, {v(KVB)}")
    k.I(f"v_mov_b32 {v(KVA+3)}, {v(V_TAG)}")
    k.I(f"s_lshl_b32 {s(S_T0)}, {s(S_HP)}, 4")
    k.I(f"s_add_u32 {s(S_T0)}, {s(S_T0)}, {s(S_M)}")
    k.I(f"s_lshl_b32 {s(S_T1)}, {s(S_T0)}, 12")
    k.I(f"s_lshl_b32 {s(S_T2)}, {s(S_W)}, 10")
    k.I(f"s_add_u32 {s(S_T1)}, {s(S_T1)}, {s(S_T2)}")
    k.I(f"s_add_u32 {s(S_T1)}, {s(S_T1)}, {WS_KVP}")
    k.I(f"buffer_store_dwordx4 {v(KVA,4)}, {v(V_L16)}, {srd(S_WS)}, {s(S_T1)} offen sc1", tag="kvst")
    k.wait_vm("wq")
    k.barrier()
    k.stamp("kv published")
    modn_issue(k)
    p1_q(k)
    k.stamp("q gemm")
    kv_addr(k)
    kv_loads(k, "kvp")
    for i in range(16):
        k.I(f"v_mul_f32 {v(AQ+i)}, {v(V_R)}, {v(AQ+i)}")
    for i in range(8):
        k.I(f"v_cvt_pk_bf16_f32 {v(160+i)}, {v(AQ+2*i)}, {v(AQ+2*i+1)}")
    k.mfma32(v(176, 16), a_(PHI_A, 4), v(160, 4), "0")
    k.mfma32(v(176, 16), a_(PHI_B, 4), v(164, 4))
    quad_ids(k)
    softmax16(k, 176, EE, QP, QN, TMP, filler=None if OPT.get("wo_kv", 1) else wo_items(k), every=2)
    k.stamp("q softmax")


S_UB = 101


S_UBO, S_MNO = 90, 91


def p1_side(k, regs):
    ra, rb, rc, rt = regs
    touch_setup(k, ra, rb, rc, rt)
    k.I(f"v_and_b32 {v(rc)}, 31, {v(V_LANE)}")
    k.I(f"v_mul_u32_u24 {v(rc)}, 6144, {v(rc)}")
    k.I(f"s_lshr_b32 {s(S_T0)}, {s(S_G)}, 2")
    k.I(f"s_lshl_b32 {s(S_T0)}, {s(S_T0)}, 7")
    k.I(f"s_and_b32 {s(S_T1)}, {s(S_G)}, 3")
    k.I(f"s_lshl_b32 {s(S_T1)}, {s(S_T1)}, 2")
    k.I(f"s_add_u32 {s(S_T1)}, {s(S_T1)}, {s(S_W)}")
    k.I(f"s_mul_i32 {s(S_T1)}, {s(S_T1)}, {32*6144}")
    k.I(f"s_add_u32 {s(S_MNO)}, {s(S_T0)}, {s(S_T1)}")
    k.I("s_sub_u32 s55, s2, 64")
    k.I("s_cmp_ge_u32 s55, 128")
    k.I(f"s_cselect_b32 {s(S_MNO)}, 0x7ff00000, {s(S_MNO)}")
    items = []
    if OPT["touch"]:
        if OPT.get("tmn", 1):
            items.append([(f"buffer_load_dword v5, {v(rc)}, {srd(S_WMOD)}, {s(S_MNO)} offen{' nt' if OPT.get('tmn_nt', 1) else ''}", "t")])
        for r, a in ((S_WO, ra), (S_WG, rb), (S_WU, rb)):
            items.append([(f"buffer_load_dword v5, {v(a)}, {srd(r)}, 0 offen", "t")])
        if OPT.get("twd", 0):
            items.append([(f"s_lshl_b32 {s(S_T0)}, s2, 2", None), (f"s_add_u32 {s(S_T0)}, {s(S_T0)}, {s(S_W)}", None),
                          (f"s_mul_i32 {s(S_T0)}, {s(S_T0)}, {14*128}", None), (f"v_min_u32 {v(rt)}, 13, {v(V_LANE)}", None),
                          (f"v_lshlrev_b32 {v(rt)}, 7, {v(rt)}", None),
                          (f"buffer_load_dword v5, {v(rt)}, {srd(S_WD)}, {s(S_T0)} offen", "t")])
    return items


def q_image_items(k):
    k.I(f"s_mul_i32 {s(S_T3)}, {s(S_W)}, {128*3072}")
    k.I(f"s_lshl_b32 {s(S_T4)}, {s(S_W)}, 13")
    k.I(f"s_add_u32 {s(S_T4)}, {s(S_T4)}, {L_QI}")
    return [[(f"s_add_u32 {s(S_OFF)}, {s(S_T3)}, {n*16*3072}", None), (f"s_add_u32 m0, {s(S_T4)}, {n*1024}", None),
             (f"buffer_load_dwordx4 v6, {srd(S_WQKV)}, {s(S_OFF)} offen lds", "wq")] for n in range(8)]


def modn_issue(k):
    skip = k.newlabel("mn_i")
    k.I("s_sub_u32 s55, s2, 64")
    k.I("s_cmp_ge_u32 s55, 128")
    k.I(f"s_cbranch_scc1 {skip}")
    k.cond_begin()
    wm_voff(k, 7, 8)
    k.I(f"s_mul_i32 {s(S_OFF)}, {s(S_W)}, {4*196608}")
    k.I(f"s_lshl_b32 {s(S_T0)}, {s(S_W)}, 12")
    k.I(f"s_add_u32 m0, {s(S_T0)}, {L_WMN}")
    for n in range(4):
        k.I(f"buffer_load_dwordx4 v7, {srd(S_WMOD)}, {s(S_OFF)} offen lds")
        if n < 3:
            k.I(f"s_add_u32 m0, m0, 1024")
            k.I(f"s_add_u32 {s(S_OFF)}, {s(S_OFF)}, 196608")
    k.cond_end()
    k.label(skip)


def ub_compute(k):
    skip = k.newlabel("ubc_skip")
    k.I(f"s_cmp_ge_u32 {s(S_I)}, 28")
    k.I(f"s_cbranch_scc1 {skip}")
    k.I(f"s_cmp_lt_u32 {s(S_W)}, 2")
    k.I(f"s_cbranch_scc1 {skip}")
    k.cond_begin()
    S_JOB, S_KH, S_BLK = S_T2, S_T3, S_T4
    k.I(f"s_lshr_b32 {s(S_T0)}, {s(S_XCD)}, 1")
    k.I(f"s_mul_i32 {s(S_JOB)}, {s(S_T0)}, 28")
    k.I(f"s_add_u32 {s(S_JOB)}, {s(S_JOB)}, {s(S_I)}")
    k.I(f"s_cmp_ge_u32 {s(S_JOB)}, 56")
    k.I(f"s_cselect_b32 {s(S_KH)}, 1, 0")
    k.I(f"s_mul_i32 {s(S_T0)}, {s(S_KH)}, 56")
    k.I(f"s_sub_u32 {s(S_BLK)}, {s(S_JOB)}, {s(S_T0)}")
    k.I(f"s_cmp_lt_u32 {s(S_BLK)}, 28")
    for i in range(4):
        k.I(f"s_cselect_b32 {s(S_UBS+i)}, {s(S_WG+i)}, {s(S_WU+i)}")
    k.I(f"s_cselect_b32 {s(S_T0)}, 0, 28")
    k.I(f"s_cselect_b32 {s(S_T1)}, 0, 56")
    k.I(f"s_sub_u32 {s(S_BLK)}, {s(S_BLK)}, {s(S_T0)}")
    k.I(f"s_and_b32 {s(S_T0)}, {s(S_XCD)}, 1")
    k.I(f"s_mul_i32 {s(S_T0)}, {s(S_T0)}, 28")
    k.I(f"s_add_u32 {s(S_BLK)}, {s(S_BLK)}, {s(S_T0)}")
    k.I(f"s_add_u32 {s(S_JOB)}, {s(S_BLK)}, {s(S_T1)}")
    k.I(f"v_lshrrev_b32 v112, 2, {v(V_LANE)}")
    k.I("v_mul_u32_u24 v112, 3584, v112")
    k.I(f"v_and_b32 v113, 3, {v(V_LANE)}")
    k.I("v_lshl_add_u32 v112, v113, 4, v112")
    k.I(f"s_lshl_b32 {s(S_T0)}, {s(S_BLK)}, 6")
    k.I(f"v_add_u32 v112, {s(S_T0)}, v112")
    k.I(f"s_mul_i32 {s(S_OFF)}, {s(S_KH)}, {256*3584}")
    k.I(f"s_and_b32 {s(S_T0)}, {s(S_W)}, 1")
    k.I(f"s_mul_i32 {s(S_T1)}, {s(S_T0)}, {128*3584}")
    k.I(f"s_add_u32 {s(S_OFF)}, {s(S_OFF)}, {s(S_T1)}")
    k.I(f"s_lshl_b32 {s(S_UBH)}, {s(S_T0)}, 13")
    k.I(f"s_add_u32 m0, {s(S_UBH)}, {L_UB}")
    for n in range(8):
        k.dma(112, S_UBS, s(S_OFF))
        if n < 7:
            k.I("s_add_u32 m0, m0, 1024")
            k.I(f"s_add_u32 {s(S_OFF)}, {s(S_OFF)}, {16*3584}")
    k.I(f"s_lshl_b32 {s(S_T0)}, {s(S_KH)}, 10")
    k.I(f"v_add_u32 v114, {s(S_T0)}, {v(V_L16)}")
    k.I(f"v_add_u32 v114, {WS_MODG + 768*8}, v114")
    k.load_granules_checked([116, 120], [114] * 2, "modU", width=4, tagpos=(1, 3), imm=[0, 2048])
    for i, r in enumerate((120, 122)):
        k.unpack(124, 125, r)
        k.I("v_add_f32 v124, 1.0, v124")
        k.I("v_add_f32 v125, 1.0, v125")
        k.I(f"v_cvt_pk_bf16_f32 {v(128+i)}, v124, v125")
    k.I("v_mov_b32 v130, v116")
    k.I("v_mov_b32 v131, v118")
    k.I("v_mov_b32 v132, 0")
    k.I("v_mov_b32 v133, 0")
    k.I(f"v_lshlrev_b32 v113, 3, {v(V_LANE)}")
    k.I(f"v_add_u32 v113, {L_CS}, v113")
    k.I("ds_write_b64 v113, v[128:129]")
    k.I("ds_write_b64 v113, v[130:131] offset:512")
    k.I("ds_write_b64 v113, v[132:133] offset:1024")
    k.I(f"v_and_b32 v113, 31, {v(V_LANE)}")
    k.I("v_min_u32 v113, 2, v113")
    k.I("v_lshlrev_b32 v113, 9, v113")
    k.I(f"v_lshrrev_b32 v114, 5, {v(V_LANE)}")
    k.I("v_lshl_add_u32 v113, v114, 4, v113")
    k.I(f"v_add_u32 v113, {L_CS}, v113")
    k.I(f"s_lshr_b32 {s(S_T0)}, {s(S_UBH)}, 5")
    k.I(f"v_add_u32 v113, {s(S_T0)}, v113")
    lane_fields(k, s_=114, r_=115, c_=116, nh=117)
    k.I("v_lshl_add_u32 v114, v114, 3, v115")
    k.I("v_lshlrev_b32 v114, 6, v114")
    k.I("v_lshl_add_u32 v114, v117, 5, v114")
    k.I("v_lshl_add_u32 v114, v116, 3, v114")
    k.I(f"v_add_u32 v114, {L_UB}, v114")
    k.I(f"v_add_u32 v114, {s(S_UBH)}, v114")
    k.I("s_waitcnt vmcnt(0) lgkmcnt(0)")
    for j in range(8 + 2):
        if j < 8:
            b = 116 + 8 * (j & 3)
            k.I(f"ds_read_b64_tr_b16 {v(b+4,2)}, v114 offset:{j*1024}")
            k.I(f"ds_read_b64_tr_b16 {v(b+6,2)}, v114 offset:{j*1024 + 256}")
            k.I(f"ds_read_b128 {v(b,4)}, v113 offset:{j*32}")
        if j >= 2:
            k.I(f"s_waitcnt lgkmcnt({6 if j < 8 else (3 if j == 8 else 0)})")
            bb = 116 + 8 * ((j - 2) & 3)
            k.mfma32(v(152, 16), v(bb, 4), v(bb + 4, 4), "0" if j == 2 else None)
    w3 = k.newlabel("ub_w3")
    k.wave_is(2, w3)
    k.I(f"v_lshlrev_b32 v113, 3, {v(V_LANE)}")
    k.I(f"v_add_u32 v113, {L_UBP}, v113")
    k.I("ds_write_b64 v113, v[152:153]")
    k.I("s_waitcnt lgkmcnt(0)")
    k.label(w3)
    k.I("v_accvgpr_write_b32 a244, v152")
    k.I("v_accvgpr_write_b32 a245, v153")
    k.I(f"s_mov_b32 {s(S_UBJ)}, {s(S_JOB)}")
    k.I(f"s_mov_b32 {s(S_UBK)}, {s(S_KH)}")
    k.cond_end()
    k.label(skip)


def ub_publish(k):
    skip = k.newlabel("ubp_skip")
    k.I(f"s_cmp_ge_u32 {s(S_I)}, 28")
    k.I(f"s_cbranch_scc1 {skip}")
    k.wave_is(3, skip)
    k.cond_begin()
    S_JOB, S_KH = S_UBJ, S_UBK
    k.test_delay(4)
    k.I(f"v_lshlrev_b32 v174, 3, {v(V_LANE)}")
    k.I(f"v_add_u32 v174, {L_UBP}, v174")
    k.I("ds_read_b64 v[154:155], v174")
    k.I("v_accvgpr_read_b32 v152, a244")
    k.I("v_accvgpr_read_b32 v153, a245")
    k.I("s_waitcnt lgkmcnt(0)")
    k.I("v_add_f32 v152, v152, v154")
    k.I("v_add_f32 v153, v153, v155")
    k.I("v_cvt_pk_bf16_f32 v168, v152, v153")
    k.unpack(170, 171, 168)
    k.I("v_sub_f32 v172, v152, v170")
    k.I("v_sub_f32 v173, v153, v171")
    k.I("v_cvt_pk_bf16_f32 v169, v172, v173")
    k.I(f"s_mov_b32 {s(S_T0)}, 0x05040100")
    k.I(f"s_mov_b32 {s(S_T1)}, 0x07060302")
    k.I(f"v_perm_b32 v176, v169, v168, {s(S_T0)}")
    k.I("v_mov_b32 v177, v168")
    k.I(f"v_perm_b32 v178, v168, v169, {s(S_T1)}")
    k.I(f"v_mov_b32 v179, {v(V_TAG)}")
    k.I(f"s_mul_i32 {s(S_T0)}, {s(S_KH)}, {3584*16}")
    k.I(f"s_lshl_b32 {s(S_T1)}, {s(S_JOB)}, 9")
    k.I(f"s_add_u32 {s(S_T0)}, {s(S_T0)}, {s(S_T1)}")
    k.I(f"s_add_u32 {s(S_T0)}, {s(S_T0)}, {WS_WEXT}")
    k.I(f"v_add_u32 v174, {s(S_T0)}, {v(V_L16)}")
    k.I("s_mov_b32 exec_hi, 0")
    k.I(f"buffer_store_dwordx4 v[176:179], v174, {srd(S_WS)}, 0 offen sc1")
    k.I("s_mov_b64 exec, -1")
    k.cond_end()
    k.label(skip)


S_UBH, S_UBJ, S_UBK = 32, 33, 34
L_UBP = L_UB
S_UBS = 12


def touch_setup(k, ra, rb, rc, rt):
    k.I(f"v_and_b32 {v(ra)}, 31, {v(V_LANE)}")
    k.I(f"v_lshlrev_b32 {v(ra)}, 7, {v(ra)}")
    k.I(f"s_lshl_b32 {s(S_T0)}, {s(S_I)}, 2")
    k.I(f"s_add_u32 {s(S_T0)}, {s(S_T0)}, {s(S_W)}")
    k.I(f"s_lshl_b32 {s(S_T1)}, {s(S_T0)}, 12")
    k.I(f"v_add_u32 {v(ra)}, {s(S_T1)}, {v(ra)}")
    k.I(f"v_min_u32 {v(rb)}, 55, {v(V_LANE)}")
    k.I(f"v_mul_u32_u24 {v(rc)}, 4682, {v(rb)}")
    k.I(f"v_lshrrev_b32 {v(rc)}, 16, {v(rc)}")
    k.I(f"v_mul_u32_u24 {v(rt)}, 14, {v(rc)}")
    k.I(f"v_sub_u32 {v(rb)}, {v(rb)}, {v(rt)}")
    k.I(f"v_lshlrev_b32 {v(rb)}, 7, {v(rb)}")
    k.I(f"v_mul_u32_u24 {v(rc)}, 3584, {v(rc)}")
    k.I(f"v_add_u32 {v(rb)}, {v(rb)}, {v(rc)}")
    k.I(f"s_mul_i32 {s(S_T0)}, {s(S_T0)}, {4*3584}")
    k.I(f"s_and_b32 {s(S_T1)}, {s(S_XCD)}, 1")
    k.I(f"s_mul_i32 {s(S_T1)}, {s(S_T1)}, 1792")
    k.I(f"s_add_u32 {s(S_T0)}, {s(S_T0)}, {s(S_T1)}")
    k.I(f"v_add_u32 {v(rb)}, {s(S_T0)}, {v(rb)}")


def wo_items(k):
    k.I(f"s_and_b32 {s(S_T0)}, {s(S_J2)}, 7")
    k.I(f"s_lshl_b32 {s(S_T0)}, {s(S_T0)}, 7")
    k.I(f"v_lshrrev_b32 v12, 3, {v(V_LANE)}")
    k.I("v_lshlrev_b32 v12, 10, v12")
    k.I(f"v_and_b32 v13, 7, {v(V_LANE)}")
    k.I(f"v_bfe_u32 v14, {v(V_LANE)}, 4, 1")
    k.I("v_lshlrev_b32 v14, 2, v14")
    k.I("v_xor_b32 v13, v13, v14")
    k.I("v_lshl_add_u32 v12, v13, 4, v12")
    k.I(f"v_add_u32 v12, {s(S_T0)}, v12")
    k.I(f"s_lshl_b32 {s(S_T3)}, {s(S_W)}, 17")
    k.I(f"s_lshl_b32 {s(S_T4)}, {s(S_W)}, 14")
    if L_WO:
        k.I(f"s_add_u32 {s(S_T4)}, {s(S_T4)}, {L_WO}")
    return [[(f"s_add_u32 {s(S_OFF)}, {s(S_T3)}, {n*8192}", None), (f"s_add_u32 m0, {s(S_T4)}, {n*1024}", None),
             (f"buffer_load_dwordx4 v12, {srd(S_WO)}, {s(S_OFF)} offen lds", "wo")] for n in range(16)]


def swz128_base(k, dst, cbk_sreg=None, cbk_imm=None, s_mul=16):
    lane_fields(k, s_=8, r_=9, c_=10, nh=11)
    lbase_bytes(k, 12, 11, 10, 13, 14)
    k.I(f"v_mul_u32_u24 v8, {s_mul}, v8")
    k.I("v_add_u32 v8, v8, v9")
    k.I("v_lshlrev_b32 v8, 7, v8")
    k.I("v_lshrrev_b32 v9, 1, v9")
    if cbk_sreg is not None:
        k.I(f"v_xor_b32 v9, {s(cbk_sreg)}, v9")
    elif cbk_imm:
        k.I(f"v_xor_b32 v9, {cbk_imm}, v9")
    k.I("v_lshl_add_u32 v8, v9, 6, v8")
    k.I(f"v_add_u32 {v(dst)}, v8, v12")


KV_PB = 16


def kv_addr(k):
    k.I(f"s_lshl_b32 {s(S_KVB)}, {s(S_HP)}, 16")
    k.I(f"s_lshl_b32 {s(S_T2)}, {s(S_W)}, 10")
    k.I(f"s_add_u32 {s(S_KVB)}, {s(S_KVB)}, {s(S_T2)}")
    k.I(f"s_add_u32 {s(S_KVB)}, {s(S_KVB)}, {WS_KVP}")


def kv_loads(k, tag):
    k.I(f"s_mov_b32 {s(S_OFF)}, {s(S_KVB)}")
    for mm in range(16):
        k.I(f"buffer_load_dwordx4 {v(KV_PB+4*mm,4)}, {v(V_L16)}, {srd(S_WS)}, {s(S_OFF)} offen sc1", tag=tag)
        if mm < 15:
            k.I(f"s_add_u32 {s(S_OFF)}, {s(S_OFF)}, 4096")


S_KVB = 35


def kv_combine_and_o(k):
    PB = KV_PB

    def check():
        k.I(f"v_cmp_ne_u32 vcc, {s(S_TAG)}, {v(PB+3)}")
        for mm in range(1, 16):
            k.I(f"v_cmp_ne_u32 {s(S_EX, 2)}, {s(S_TAG)}, {v(PB+4*mm+3)}")
            k.I(f"s_or_b64 vcc, vcc, {s(S_EX, 2)}")

    probe, ok, full, done = (k.newlabel(x) for x in ("kvp_probe", "kvp_seen", "kvp_full", "kvp_done"))
    k.I("v_mov_b32 v10, 0x3f80")
    k.I("v_mov_b32 v11, 0x3f800000")
    for r in range(176, 182):
        k.I(f"v_mov_b32 {v(r)}, 0")
    k.wait_vm("kvp")
    check()
    k.I(f"s_cbranch_vccz {done}")
    k.cond_begin()
    k.I(f"v_min_u32 v14, 15, {v(V_LANE)}")
    k.I("v_lshlrev_b32 v14, 12, v14")
    k.I(f"v_add_u32 v14, {s(S_KVB)}, v14")
    k.spin_init()
    k.label(probe)
    k.I(f"buffer_load_dword v15, v14, {srd(S_WS)}, 0 offen offset:12 sc1")
    k.I("s_waitcnt vmcnt(0)")
    k.I(f"v_cmp_ne_u32 vcc, {s(S_TAG)}, v15")
    k.spin_back(probe, ok)
    k.label(ok)
    k.label(full)
    kv_loads(k, None)
    k.I("s_waitcnt vmcnt(0)")
    check()
    k.spin_back(full, done)
    k.cond_end()
    k.label(done)
    k.stamp("kvp landed")
    wo = wo_items(k) if OPT.get("wo_kv", 1) else []
    for mm in range(16):
        for d in range(2):
            k.I(f"v_dot2c_f32_bf16 {v(176+2*d)}, {v(PB+4*mm+d)}, v10")
            k.I(f"v_dot2c_f32_bf16 {v(177+2*d)}, {v(PB+4*mm+d)}, v11")
        if wo and mm % 2 == 1:
            for t, tg in wo.pop(0):
                k.I(t, tag=tg)
    k.wo_rest = wo
    zs = k.newlabel("zsum")
    k.wave_is(0, zs)
    for mm in range(16):
        k.I(f"v_dot2c_f32_bf16 v180, {v(PB+4*mm+2)}, v10")
        k.I(f"v_dot2c_f32_bf16 v181, {v(PB+4*mm+2)}, v11")
    k.label(zs)
    k.I("s_nop 2")
    for i in range(6):
        k.I(f"v_mov_b32 {v(160+i)}, {v(176+i)}")
    k.I("v_cvt_pk_bf16_f32 v160, v160, v161")
    k.I("v_cvt_pk_bf16_f32 v161, v162, v163")
    k.I(f"v_lshlrev_b32 v8, 5, {v(V_LANE)}")
    k.I(f"s_lshl_b32 {s(S_T0)}, {s(S_W)}, 3")
    k.I(f"s_add_u32 {s(S_T0)}, {s(S_T0)}, {L_KVF}")
    k.I(f"v_add_u32 v8, {s(S_T0)}, v8")
    k.I("ds_write_b64 v8, v[160:161]")
    k.half_total(164, 166)
    k.half_total(165, 166)
    k.I("v_cvt_pk_bf16_f32 v164, v164, v165")
    k.I(f"v_bfe_u32 v8, {v(V_LANE)}, 2, 1")
    k.I(f"v_bfe_u32 v9, {v(V_LANE)}, 3, 2")
    k.I(f"v_and_b32 v10, 3, {v(V_LANE)}")
    k.I("v_lshl_add_u32 v9, v9, 2, v10")
    k.I("v_lshlrev_b32 v9, 1, v9")
    k.I("v_lshl_add_u32 v10, v8, 5, v9")
    k.I(f"v_add_u32 v10, {L_Z}, v10")
    k.I("v_xor_b32 v8, 1, v8")
    k.I("v_lshl_add_u32 v11, v8, 5, v9")
    k.I(f"v_add_u32 v11, {L_Z + 64}, v11")
    w0 = k.newlabel("zw")
    k.wave_is(0, w0)
    k.cond_begin()
    k.I("ds_write_b16 v10, v164")
    k.I("ds_write_b16_d16_hi v11, v164")
    k.cond_end()
    k.label(w0)
    for it in k.wo_rest[:4]:
        for t, tg in it:
            k.I(t, tag=tg)
    k.wait_lg_all()
    k.barrier()
    k.stamp("kvf barrier")
    k.I(f"v_lshlrev_b32 v8, 5, {v(V_LANE)}")
    k.I(f"v_add_u32 v8, {L_KVF}, v8")
    k.I(f"v_xor_b32 v9, 32, {v(V_LANE)}")
    k.I("v_lshlrev_b32 v9, 5, v9")
    k.I(f"v_add_u32 v9, {L_KVF}, v9")
    k.I(f"v_mov_b32 v10, {L_ZERO}")
    k.I(f"v_cndmask_b32 v8, v10, v8, {s(S_VALID,2)}")
    k.I(f"v_cndmask_b32 v9, v10, v9, {s(S_VALID,2)}")
    k.I(f"v_lshrrev_b32 v10, 5, {v(V_LANE)}")
    k.I("v_lshlrev_b32 v10, 5, v10")
    k.I(f"v_add_u32 v10, {L_Z}, v10")
    PF, NF, ZP, ZN = 112, 120, 128, 136
    k.I(f"ds_read_b128 {v(PF,4)}, v8")
    k.I(f"ds_read_b128 {v(PF+4,4)}, v8 offset:16")
    k.I(f"ds_read_b128 {v(NF,4)}, v9")
    k.I(f"ds_read_b128 {v(NF+4,4)}, v9 offset:16")
    k.I(f"ds_read_b128 {v(ZP,4)}, v10")
    k.I(f"ds_read_b128 {v(ZP+4,4)}, v10 offset:16")
    k.I(f"ds_read_b128 {v(ZN,4)}, v10 offset:64")
    k.I(f"ds_read_b128 {v(ZN+4,4)}, v10 offset:80")
    k.wait_lg_all()
    for it in k.wo_rest[4:]:
        for t, tg in it:
            k.I(t, tag=tg)
    NUM = 144
    k.mfma32(v(NUM, 16), v(PF, 4), v(QP, 4), "0")
    k.mfma32(v(NUM, 16), v(PF + 4, 4), v(QP + 4, 4))
    k.mfma32(v(NUM, 16), v(NF, 4), v(QN, 4))
    k.mfma32(v(NUM, 16), v(NF + 4, 4), v(QN + 4, 4))
    k.I("v_mov_b32 v10, 0")
    k.I("v_mov_b32 v11, 0")
    for i in range(8):
        k.I(f"v_dot2c_f32_bf16 v10, {v(QP+i)}, {v(ZP+i)}")
        k.I(f"v_dot2c_f32_bf16 v11, {v(QN+i)}, {v(ZN+i)}")
    k.I("v_add_f32 v10, v10, v11")
    k.I("v_add_f32 v10, 0x358637bd, v10")
    k.I("v_rcp_f32 v10, v10")
    for i in range(0, 16, 2):
        k.I(f"v_pk_mul_f32 {v(NUM+i,2)}, {v(NUM+i,2)}, v[10:11] op_sel_hi:[1,0]")
    for i in range(8):
        k.I(f"v_cvt_pk_bf16_f32 {v(160+i)}, {v(NUM+2*i)}, {v(NUM+2*i+1)}")
    k.stamp("o computed")
    k.I(f"s_lshl_b32 {s(S_T0)}, {s(S_M)}, 2")
    k.I(f"s_add_u32 {s(S_T0)}, {s(S_T0)}, {s(S_W)}")
    k.I(f"s_lshl_b32 {s(S_T0)}, {s(S_T0)}, 15")
    k.I(f"s_lshl_b32 {s(S_T1)}, {s(S_HP)}, 11")
    k.I(f"s_add_u32 {s(S_T0)}, {s(S_T0)}, {s(S_T1)}")
    k.I(f"s_add_u32 {s(S_T0)}, {s(S_T0)}, {WS_O}")
    k.I(f"v_add_u32 v8, {s(S_T0)}, {v(V_L16)}")
    k.I(f"buffer_store_dwordx4 v[160:163], v8, {srd(S_WS)}, 0 offen sc1")
    k.I(f"buffer_store_dwordx4 v[164:167], v8, {srd(S_WS)}, 0 offen offset:1024 sc1")
    k.wait_vm_all()
    k.I(f"s_lshl_b32 {s(S_T0)}, {s(S_M)}, 4")
    k.I(f"s_add_u32 {s(S_T0)}, {s(S_T0)}, {s(S_J)}")
    k.I(f"s_lshl_b32 {s(S_T0)}, {s(S_T0)}, 7")
    k.I(f"s_add_u32 {s(S_T0)}, {s(S_T0)}, {WS_FO}")
    k.signal(S_T0, "fo")
    k.stamp("o published")
    code_touch(k, 1, 0, t=(12, 13))


S_TBL, S_CBK, S_TB, S_B32 = 96, 97, 98, 99


def quad_ids(k):
    k.I(f"s_and_b32 {s(S_TBL)}, {s(S_W)}, 1")
    k.I(f"s_lshr_b32 {s(S_CBK)}, {s(S_W)}, 1")
    k.I(f"s_lshr_b32 {s(S_T0)}, {s(S_J2)}, 3")
    k.I(f"s_lshl_b32 {s(S_T0)}, {s(S_T0)}, 1")
    k.I(f"s_lshl_b32 {s(S_TB)}, {s(S_M2)}, 2")
    k.I(f"s_add_u32 {s(S_TB)}, {s(S_TB)}, {s(S_T0)}")
    k.I(f"s_add_u32 {s(S_TB)}, {s(S_TB)}, {s(S_TBL)}")
    k.I(f"s_and_b32 {s(S_B32)}, {s(S_J2)}, 7")
    k.I(f"s_lshl_b32 {s(S_B32)}, {s(S_B32)}, 1")
    k.I(f"s_add_u32 {s(S_B32)}, {s(S_B32)}, {s(S_CBK)}")


def mod16(k, dst_regs, gran0, stem):
    k.I(f"v_lshrrev_b32 v8, 5, {v(V_LANE)}")
    k.I("v_lshlrev_b32 v8, 6, v8")
    k.I(f"s_lshl_b32 {s(S_T0)}, {s(S_B32)}, 7")
    k.I(f"s_add_u32 {s(S_T0)}, {s(S_T0)}, {WS_MODG + gran0*8}")
    k.I(f"v_add_u32 v8, {s(S_T0)}, v8")
    k.load_granules_checked([dst_regs + 4 * i for i in range(4)], [8] * 4, stem, width=4, tagpos=(1, 3), imm=[0, 16, 32, 48])


VD = 4
S_M0, S_SO = 90, 91


def ring_setup(k):
    k.I(f"s_and_b32 {s(S_T0)}, {s(S_W)}, 1")
    k.I(f"s_cmp_eq_u32 {s(S_T0)}, 0")
    for i in range(4):
        k.I(f"s_cselect_b32 {s(S_SEL+i)}, {s(S_WG+i)}, {s(S_WU+i)}")
    for n in range(7):
        k.I(f"v_add_u32 v14, {64*n}, {v(V_LANE)}")
        k.I("v_mul_u32_u24 v15, 4682, v14")
        k.I("v_lshrrev_b32 v15, 16, v15")
        k.I(f"v_mul_u32_u24 {v(VD+n)}, 14, v15")
        k.I(f"v_sub_u32 v14, v14, {v(VD+n)}")
        k.I("v_mul_u32_u24 v15, 3584, v15")
        k.I("v_lshl_add_u32 v15, v14, 4, v15")
        k.I(f"s_mul_i32 {s(S_T0)}, {s(S_J)}, 224")
        k.I(f"v_add_u32 {v(VD+n)}, {s(S_T0)}, v15")
    for z in range(448):
        assert (z * 4682) >> 16 == z // 14
    k.I(f"s_lshr_b32 {s(S_T0)}, {s(S_W)}, 1")
    k.I(f"s_mul_i32 {s(S_M0)}, {s(S_T0)}, {SLAB}")
    k.I(f"s_and_b32 {s(S_T1)}, {s(S_W)}, 1")
    k.I(f"s_mul_i32 {s(S_T1)}, {s(S_T1)}, {UOFF}")
    k.I(f"s_add_u32 {s(S_M0)}, {s(S_M0)}, {s(S_T1)}")
    k.I(f"s_mul_i32 {s(S_SO)}, {s(S_T0)}, {32*3584}")


def ring_pair(k, P, as_list=False):
    out = [(f"s_add_u32 m0, {s(S_M0)}, {(P % 5) * 2 * SLAB}", None),
           (f"s_add_u32 {s(S_OFF)}, {s(S_SO)}, {P * 2 * 32 * 3584}", None)]
    for n in range(7):
        out.append((f"buffer_load_dwordx4 {v(VD+n)}, {srd(S_SEL)}, {s(S_OFF)} offen lds", f"W{P}"))
        if n < 6:
            out.append(("s_add_u32 m0, m0, 1024", None))
    if as_list:
        return out
    for t, tg in out:
        k.I(t, tag=tg)


def p2(k):
    XR, GA, CBR = 64, 72, 88
    k.I(f"v_and_b32 v12, 31, {v(V_LANE)}")
    k.I("v_lshlrev_b32 v12, 10, v12")
    k.I(f"v_lshrrev_b32 v13, 5, {v(V_LANE)}")
    k.I("v_lshl_add_u32 v12, v13, 5, v12")
    k.I(f"s_lshl_b32 {s(S_T0)}, {s(S_TB)}, 15")
    k.I(f"s_lshl_b32 {s(S_T1)}, {s(S_B32)}, 6")
    k.I(f"s_add_u32 {s(S_T0)}, {s(S_T0)}, {s(S_T1)}")
    k.I(f"v_add_u32 v12, {s(S_T0)}, v12")
    k.I(f"buffer_load_dwordx4 {v(XR,4)}, v12, {srd(S_X)}, 0 offen", tag="xr")
    k.I(f"buffer_load_dwordx4 {v(XR+4,4)}, v12, {srd(S_X)}, 0 offen offset:16", tag="xr")
    swz128_base(k, 15, cbk_sreg=S_CBK)
    for kap in range(32):
        hp, a = kap >> 1, kap & 1
        for rd in range(2):
            k.I(f"ds_read_b64_tr_b16 {a_(4*kap + 2*rd, 2)}, v15 offset:{L_WO + (32*hp + 8*a + 4*rd)*128}", tag="wof")
        if kap % 4 == 3:
            k.I("s_waitcnt lgkmcnt(6)")
    k.wait_lg_all()
    k.stamp("wof read")
    modn_compute(k)
    k.stamp("modn")
    ring_setup(k)
    k.I(f"v_lshrrev_b32 v13, 5, {v(V_LANE)}")
    k.I("v_lshlrev_b32 v13, 6, v13")
    k.I(f"s_lshl_b32 {s(S_T0)}, {s(S_B32)}, 7")
    k.I(f"s_add_u32 {s(S_T0)}, {s(S_T0)}, {WS_MODG}")
    k.I(f"v_add_u32 v13, {s(S_T0)}, v13")
    k.I(f"v_add_u32 v12, {512*8}, v13")
    k.I(f"v_add_u32 v13, {1024*8}, v13")
    gr = ([GA + 4 * i for i in range(4)] + [CBR + 4 * i for i in range(4)], [12] * 4 + [13] * 4)
    gimm = [0, 16, 32, 48] * 2
    k.I(f"s_lshl_b32 {s(S_T0)}, {s(S_M2)}, 11")
    k.I(f"s_add_u32 {s(S_T0)}, {s(S_T0)}, {WS_FO}")
    k.poll_flags(S_T0, 16, "po")
    k.stamp("o flags seen")
    k.I(f"s_sub_u32 {s(S_T0)}, {s(S_TB)}, {s(S_TBL)}")
    k.I(f"s_lshl_b32 {s(S_T0)}, {s(S_T0)}, 15")
    k.I(f"s_lshl_b32 {s(S_T1)}, {s(S_W)}, 14")
    k.I(f"s_add_u32 {s(S_T2)}, {s(S_T0)}, {s(S_T1)}")
    k.I(f"s_add_u32 {s(S_T2)}, {s(S_T2)}, {WS_O}")
    k.I(f"s_add_u32 {s(S_T3)}, {s(S_T1)}, {L_OI}")
    k.I(f"s_and_b32 {s(S_T4)}, {s(S_J2)}, 7")
    k.I(f"s_lshl_b32 {s(S_T4)}, {s(S_T4)}, 11")
    k._tag = "of"
    for n in range(16):
        k.I(f"s_add_u32 {s(S_T0)}, {s(S_T4)}, {n*1024}")
        k.I(f"s_and_b32 {s(S_T0)}, {s(S_T0)}, 0x3fff")
        k.I(f"s_add_u32 m0, {s(S_T3)}, {s(S_T0)}")
        k.I(f"s_add_u32 {s(S_OFF)}, {s(S_T2)}, {s(S_T0)}")
        k.dma(V_L16, S_WS, s(S_OFF), sc1=True)
    k._tag = None
    k.granule_loads(gr[0], gr[1], 4, gimm, "gacb")
    ring_a = []
    for P in range(3):
        cur = []
        for t, tg in ring_pair(k, P, as_list=True):
            cur.append((t, tg))
            if t.startswith("buffer_"):
                ring_a.append(cur)
                cur = []
    for _ in range(OPT.get("ring_a0", 8)):
        for t, tg in ring_a.pop(0):
            k.I(t, tag=tg)
    k.I(f"s_lshl_b32 {s(S_T0)}, {s(S_TBL)}, 15")
    k.I(f"s_add_u32 {s(S_T0)}, {s(S_T0)}, {L_OI}")
    k.I(f"v_add_u32 v14, {s(S_T0)}, {v(V_L16)}")
    k.wait_vm("of")
    k.barrier()
    k.stamp("o landed")
    GAF, C2F, XF = 144, 160, 176
    pre = [lambda: k.granule_verify(gr[0], gr[1], "gacb", 4, (1, 3), gimm, "gacb")]
    for i in range(8):
        g = GA + 4 * (i >> 1) + 2 * (i & 1)
        c = CBR + 4 * (i >> 1) + 2 * (i & 1)
        pre += [f"v_lshlrev_b32 {v(GAF+2*i)}, 16, {v(g)}", f"v_and_b32 {v(GAF+2*i+1)}, {s(S_MASK)}, {v(g)}",
                f"v_lshlrev_b32 {v(XF+2*i)}, 16, {v(XR+i)}", f"v_and_b32 {v(XF+2*i+1)}, {s(S_MASK)}, {v(XR+i)}",
                f"v_lshlrev_b32 {v(C2F+2*i)}, 16, {v(c)}", f"v_and_b32 {v(C2F+2*i+1)}, {s(S_MASK)}, {v(c)}",
                f"v_add_f32 {v(C2F+2*i)}, 1.0, {v(C2F+2*i)}", f"v_add_f32 {v(C2F+2*i+1)}, 1.0, {v(C2F+2*i+1)}",
                f"v_cvt_pk_bf16_f32 {v(c)}, {v(C2F+2*i)}, {v(C2F+2*i+1)}",
                f"v_lshlrev_b32 {v(C2F+2*i)}, 16, {v(c)}", f"v_and_b32 {v(C2F+2*i+1)}, {s(S_MASK)}, {v(c)}"]
    ACC = 112
    nb = 6
    for kap in range(32 + nb - 2):
        if kap < 32:
            k.I(f"ds_read_b128 {v(16 + 4*(kap % nb), 4)}, v14 offset:{kap*1024}", tag=f"o{kap}")
        q = kap - (nb - 2)
        if q >= 0:
            k.wait_lg(f"o{q}")
            k.mfma32(v(ACC, 16), a_(4 * q, 4), v(16 + 4 * (q % nb), 4), "0" if q == 0 else None)
            if ring_a and q % 2 == 0:
                for t, tg in ring_a.pop(0):
                    k.I(t, tag=tg)
            if q >= 6:
                for _ in range(4):
                    if pre:
                        it = pre.pop(0)
                        it() if callable(it) else k.I(it)
    assert not ring_a and not pre
    k.stamp("wo gemm")
    k.barrier()
    k.stamp("gacb ok")
    ring = []
    for P in range(3, 5):
        items = ring_pair(k, P, as_list=True)
        cur = []
        for t, tg in items:
            cur.append((t, tg))
            if t.startswith("buffer_"):
                ring.append(cur)
                cur = []

    def ring_some(n):
        for _ in range(min(n, len(ring))):
            for t, tg in ring.pop(0):
                k.I(t, tag=tg)

    T = 128
    X1 = 136
    YP = 128
    k.I("v_mov_b32 v40, 0")
    k.I("v_mov_b32 v41, 0")
    k.I("v_mov_b32 v42, 0x3f803f80")
    for i in range(16):
        k.I(f"v_fmac_f32 {v(XF+i)}, {v(GAF+i)}, {v(ACC+i)}")
    for i in range(8):
        k.I(f"v_cvt_pk_bf16_f32 {v(X1+i)}, {v(XF+2*i)}, {v(XF+2*i+1)}")
    ring_some(2)
    for i in range(8):
        k.unpack(XF + 2 * i, XF + 2 * i + 1, X1 + i)
    for i in range(8):
        k.I(f"v_pk_mul_f32 {v(XF+2*i,2)}, {v(XF+2*i,2)}, {v(C2F+2*i,2)}")
    for i in range(8):
        k.I(f"v_cvt_pk_bf16_f32 {v(YP+i)}, {v(XF+2*i)}, {v(XF+2*i+1)}")
    k.I(f"s_lshl_b32 {s(S_T0)}, {s(S_TB)}, 15")
    k.I(f"s_lshl_b32 {s(S_T1)}, {s(S_B32)}, 11")
    k.I(f"s_add_u32 {s(S_T0)}, {s(S_T0)}, {s(S_T1)}")
    k.I(f"s_add_u32 {s(S_T0)}, {s(S_T0)}, {WS_Y}")
    k.I(f"v_add_u32 v12, {s(S_T0)}, {v(V_L16)}")
    k.I(f"buffer_store_dwordx4 {v(YP,4)}, v12, {srd(S_WS)}, 0 offen sc1", tag="yst")
    k.I(f"buffer_store_dwordx4 {v(YP+4,4)}, v12, {srd(S_WS)}, 0 offen offset:1024 sc1", tag="yst")
    for i in range(8):
        k.I(f"v_dot2c_f32_bf16 v40, {v(X1+i)}, v42")
        k.I(f"v_dot2c_f32_bf16 v41, {v(X1+i)}, {v(X1+i)}")
    k.half_total(40, 43)
    k.half_total(41, 43)
    k.I(f"s_lshl_b32 {s(S_T0)}, {s(S_TB)}, 4")
    k.I(f"s_add_u32 {s(S_T0)}, {s(S_T0)}, {s(S_B32)}")
    k.I(f"s_lshl_b32 {s(S_T0)}, {s(S_T0)}, 8")
    k.I(f"s_add_u32 {s(S_T0)}, {s(S_T0)}, {WS_STATS}")
    k.I(f"v_lshlrev_b32 v12, 3, {v(V_LANE)}")
    k.I(f"v_add_u32 v12, {s(S_T0)}, v12")
    k.I("s_mov_b32 exec_hi, 0")
    k.I(f"buffer_store_dwordx2 v[40:41], v12, {srd(S_WS)}, 0 offen sc1", tag="yst")
    k.I("s_mov_b64 exec, -1")
    k.stamp("y stored")
    ring_some(OPT.get("ring_pre", 8))
    k.stamp("ring b")
    for i in range(8):
        k.I(f"v_accvgpr_write_b32 {a_(248+i)}, {v(X1+i)}")
    k.wait_vm("yst")
    k.I(f"s_lshl_b32 {s(S_T0)}, {s(S_M2)}, 4")
    k.I(f"s_add_u32 {s(S_T0)}, {s(S_T0)}, {s(S_J2)}")
    k.I(f"s_lshl_b32 {s(S_T0)}, {s(S_T0)}, 7")
    k.I(f"s_add_u32 {s(S_T0)}, {s(S_T0)}, {WS_FY}")
    k.signal(S_T0, "fy")
    noe = k.newlabel("noepoch")
    k.I("s_cmp_eq_u32 s2, 0")
    k.I(f"s_cbranch_scc0 {noe}")
    k.wave_is(0, noe)
    k.cond_begin()
    k.I("v_mov_b32 v12, 0")
    k.I("s_mov_b64 exec, 1")
    k.I(f"buffer_store_dword {v(V_TAG)}, v12, {srd(S_WS)}, 0 offen sc1")
    k.I("s_mov_b64 exec, -1")
    k.cond_end()
    k.label(noe)
    k.stamp("y published")
    ring_some(len(ring))
    ub_compute(k)
    k.stamp("ub")


def p3_tail(k, ST, AE, BE):
    it = [lambda: k.wait_vm("st")]
    for i in range(1, 8):
        it.append(f"v_add_f32 v16, v16, {v(ST+2*i)}")
        it.append(f"v_add_f32 v17, v17, {v(ST+2*i+1)}")
    for r in (16, 17):
        it += [f"v_mov_b32 v18, {v(r)}", "s_nop 1", f"v_permlane32_swap_b32 {v(r)}, v18", f"v_add_f32 {v(r)}, {v(r)}, v18"]
    it += ["v_mul_f32 v16, 0x3b000000, v16", "v_mul_f32 v17, 0x3b000000, v17", "v_fma_f32 v17, -v16, v16, v17",
           "v_max_f32 v17, 0, v17", "v_add_f32 v17, 0x3727c5ac, v17", "v_rsq_f32 v18, v17", "v_sub_f32 v16, 0, v16",
           "v_mul_f32 v19, v17, v18", "v_mul_f32 v20, v18, v18", "v_cvt_pk_bf16_f32 v22, v16, v19",
           "v_lshlrev_b32 v24, 16, v22", f"v_and_b32 v25, {s(S_MASK)}, v22", "v_sub_f32 v24, v16, v24", "v_sub_f32 v25, v19, v25",
           "v_cvt_pk_bf16_f32 v23, v24, v25",
           f"s_mov_b32 {s(S_T1)}, 0x01000100", f"v_perm_b32 {v(BE)}, v22, v22, {s(S_T1)}",
           f"s_mov_b32 {s(S_T1)}, 0x07060100", f"v_perm_b32 {v(BE+1)}, v22, v23, {s(S_T1)}",
           f"s_mov_b32 {s(S_T1)}, 0x07060302", f"v_perm_b32 {v(BE+2)}, v23, v22, {s(S_T1)}",
           f"v_mov_b32 {v(BE+3)}, 0", f"v_cmp_gt_u32 vcc, 32, {v(V_LANE)}"]
    it.append(lambda: [k.I(f"v_cndmask_b32 {v(BE+i)}, 0, {v(BE+i)}, vcc") for i in range(3)])
    regs = [AE + 28 * h + 4 * b for h in range(2) for b in range(7)]
    it.append(lambda: k.granule_verify(regs, [14] * 7 + [15] * 7, "wext", 4, (3,), [256 * b for b in range(7)] * 2, "wext"))
    it += [f"v_mov_b32 {v(r+3)}, 0" for r in regs]
    return it


def p3(k):
    Y0, ACC = 16, 144
    VTR = (11, 12, 13)
    lane_fields(k, s_=14, r_=15)
    k.I("v_lshl_add_u32 v14, v14, 4, v15")
    k.I("v_mul_u32_u24 v14, 224, v14")
    k.I(f"v_bfe_u32 v15, {v(V_LANE)}, 4, 1")
    k.I(f"v_mul_u32_u24 v15, {UOFF}, v15")
    k.I("v_add_u32 v14, v14, v15")
    k.I(f"v_and_b32 v15, 1, {v(V_LANE)}")
    k.I("v_lshl_add_u32 v14, v15, 4, v14")
    k.I(f"v_bfe_u32 v15, {v(V_LANE)}, 1, 1")
    k.I(f"v_lshl_add_u32 {v(VTR[0])}, v15, 3, v14")
    k.I(f"v_add_u32 {v(VTR[1])}, {4*SLAB}, {v(VTR[0])}")
    k.I(f"v_add_u32 {v(VTR[2])}, {8*SLAB}, {v(VTR[0])}")
    k.I(f"s_lshl_b32 {s(S_T0)}, {s(S_M)}, 11")
    k.I(f"s_add_u32 {s(S_T0)}, {s(S_T0)}, {WS_FY}")
    k.wait_vm_all()
    k.poll_flags(S_T0, 16, "py")
    k.stamp("y flags seen")
    S_TB3 = S_T2
    k.I(f"s_lshl_b32 {s(S_TB3)}, {s(S_M)}, 2")
    k.I(f"s_add_u32 {s(S_TB3)}, {s(S_TB3)}, {s(S_W)}")
    k.I(f"s_lshl_b32 {s(S_T3)}, {s(S_TB3)}, 15")
    k.I(f"s_add_u32 {s(S_T3)}, {s(S_T3)}, {WS_Y}")

    def ld_y(kap):
        out = []
        if kap and kap & 3 == 0:
            out.append((f"s_add_u32 {s(S_T3)}, {s(S_T3)}, 4096", None))
        out.append((f"buffer_load_dwordx4 {v(Y0+4*kap,4)}, {v(V_L16)}, {srd(S_WS)}, {s(S_T3)} offen offset:{(kap&3)*1024} sc1", f"y{kap}"))
        return out

    if OPT.get("coop", 0):
        k.I(f"v_and_b32 v14, 31, {v(V_LANE)}")
        k.I("v_lshlrev_b32 v14, 7, v14")
        k.I(f"s_and_b32 {s(S_T0)}, {s(S_J)}, 7")
        k.I(f"s_lshl_b32 {s(S_T0)}, {s(S_T0)}, 12")
        k.I(f"v_add_u32 v14, {s(S_T0)}, v14")
        k.I(f"buffer_load_dword v0, v14, {srd(S_WS)}, {s(S_T3)} offen", tag="t")
    NY0 = OPT.get('ny0', 20)
    for kap in range(NY0):
        for t, tg in ld_y(kap):
            k.I(t, tag=tg)

    def rd_w(kap, beta):
        B, a = kap >> 1, kap & 1
        P = B >> 1
        slot = (P % 5) * 2 + (B & 1)
        base = VTR[slot >> 2]
        return [(f"ds_read_b64_tr_b16 {a_(28*(kap&1) + 4*beta + 2*rd, 2)}, {v(base)} offset:{(slot & 3) * SLAB + (8*a + 4*rd)*224 + 32*beta}", f"w{kap}_{beta}") for rd in range(2)]

    ub_publish(k)
    for beta in range(7):
        for t, tg in rd_w(0, beta):
            k.I(t, tag=tg)
    side = []
    tail = []
    ST, AE, BE = 16, 32, 28
    for kap in range(32):
        P = kap >> 2
        if kap & 3 == 3 and P < 7:
            k.wait_vm(f"W{P+1}")
            if not OPT.get("x_nobar"):
                k.barrier()
            if 1 <= P <= 3 and not OPT.get("x_noring"):
                side += ring_pair(k, P + 4, as_list=True)
        if kap + NY0 < 32:
            side = ld_y(kap + NY0) + side
        if OPT["touch"] and kap == OPT.get("twdk", 24):
            side.append((f"s_lshl_b32 {s(S_T0)}, {s(S_I)}, 2", None))
            side.append((f"s_add_u32 {s(S_T0)}, {s(S_T0)}, {s(S_W)}", None))
            side.append((f"s_mul_i32 {s(S_T0)}, {s(S_T0)}, {112*128}", None))
            side.append((f"v_min_u32 v7, 55, {v(V_LANE)}", None))
            side.append(("v_lshlrev_b32 v7, 7, v7", None))
            side.append((f"buffer_load_dword v0, v7, {srd(S_WD)}, {s(S_T0)} offen", "t"))
            side.append((f"s_add_u32 {s(S_T0)}, {s(S_T0)}, {56*128}", None))
            side.append((f"buffer_load_dword v0, v7, {srd(S_WD)}, {s(S_T0)} offen", "t"))
        if kap == OPT.get('kst', 18):
            side.append((f"s_lshl_b32 {s(S_T0)}, {s(S_TB3)}, 12", None))
            side.append((f"s_add_u32 {s(S_T0)}, {s(S_T0)}, {WS_STATS}", None))
            side.append((f"v_and_b32 v14, 31, {v(V_LANE)}", None))
            side.append(("v_lshlrev_b32 v14, 3, v14", None))
            side.append((f"v_lshrrev_b32 v15, 5, {v(V_LANE)}", None))
            side.append(("v_lshl_add_u32 v14, v15, 11, v14", None))
            side.append((f"v_add_u32 v14, {s(S_T0)}, v14", None))
            for i in range(8):
                side.append((f"buffer_load_dwordx2 {v(ST+2*i,2)}, v14, {srd(S_WS)}, 0 offen offset:{i*256} sc1", "st"))
        if kap == OPT.get('kwx', 22):
            for t in (f"v_bfe_u32 v14, {v(V_LANE)}, 2, 1", "v_lshlrev_b32 v14, 3, v14", f"v_bfe_u32 v15, {v(V_LANE)}, 3, 1",
                      "v_lshl_add_u32 v14, v15, 2, v14", f"v_and_b32 v15, 3, {v(V_LANE)}", "v_add_u32 v14, v14, v15",
                      f"v_bfe_u32 v15, {v(V_LANE)}, 4, 1", "v_mul_u32_u24 v15, 1792, v15", "v_add_u32 v14, v14, v15",
                      f"s_mul_i32 {s(S_T0)}, {s(S_J)}, 112", f"v_add_u32 v14, {s(S_T0)}, v14", "v_lshlrev_b32 v14, 4, v14",
                      f"v_add_u32 v14, {WS_WEXT}, v14", f"v_add_u32 v15, {3584*16}, v14"):
                side.append((t, None))
            for h in range(2):
                for b in range(7):
                    side.append((f"buffer_load_dwordx4 {v(AE+28*h+4*b,4)}, {v(14+h)}, {srd(S_WS)}, 0 offen offset:{256*b} sc1", "wext"))
        if kap == OPT.get('kwd', 20):
            side += [(t, None) for t in wd_setup_items()]
        if kap == 23 and OPT.get("g0loop"):
            for it in wd_dma(0, WD_G1):
                side += it
        if kap == 26:
            tail = p3_tail(k, ST, AE, BE)
        k.wait_vm(f"y{kap}")
        if kap in (1, 8, 16, 24):
            k.stamp(f"p3 k{kap}")
        for beta in range(7):
            k.wait_lg(f"w{kap}_{beta}")
            k.mfma32(v(ACC + 16 * beta, 16), a_(28 * (kap & 1) + 4 * beta, 4), v(Y0 + 4 * kap, 4), "0" if kap == 0 else None)
            if kap + 1 < 32 and not OPT.get("x_notr"):
                for t, tg in rd_w(kap + 1, beta):
                    k.I(t, tag=tg)
            for _ in range(2):
                if tail:
                    it = tail.pop(0)
                    it() if callable(it) else k.I(it)
            nvm = 0
            while side and nvm < 1:
                t, tg = side.pop(0)
                k.I(t, tag=tg)
                if t.startswith("buffer_"):
                    nvm += 1
    for t, tg in side:
        k.I(t, tag=tg)
    assert not tail
    for h in range(2):
        for b in range(7):
            k.mfma32(v(ACC + 16 * b, 16), v(AE + 28 * h + 4 * b, 4), v(BE, 4))
    k.stamp("gate/up gemm")
    k.barrier()
    wd_bases(k)
    dm = wd_dma(WD_G1, WD_G2) if OPT.get("g0loop") else wd_dma(0, WD_G2)
    k.I(f"s_mul_i32 {s(S_T0)}, {s(S_TB3)}, 112")
    k.I(f"s_mul_i32 {s(S_T1)}, {s(S_J)}, 7")
    k.I(f"s_add_u32 {s(S_T0)}, {s(S_T0)}, {s(S_T1)}")
    k.I(f"s_lshl_b32 {s(S_T0)}, {s(S_T0)}, 10")
    k.I(f"s_add_u32 {s(S_AO)}, {s(S_T0)}, {WS_ACT}")

    def dma_some(n):
        for _ in range(n):
            for t, tg in dm.pop(0):
                k.I(t, tag=tg)

    for b in range(7):
        G = ACC + 16 * b
        U = G + 8
        o = 96 + 4 * b
        for e in range(0, 8, 2):
            k.I(f"v_pk_mul_f32 {v(U+e,2)}, {v(U+e,2)}, v[20:21] op_sel_hi:[1,0]")
        for e in range(8):
            k.I(f"v_max_f32 {v(G+e)}, 0, {v(G+e)}")
        for e in range(0, 8, 2):
            k.I(f"v_pk_mul_f32 {v(G+e,2)}, {v(G+e,2)}, {v(U+e,2)}")
        for e in range(0, 8, 2):
            k.I(f"v_cvt_pk_bf16_f32 {v(o+e//2)}, {v(G+e)}, {v(G+e+1)}")
        k.I(f"buffer_store_dwordx4 {v(o,4)}, {v(V_L16)}, {srd(S_WS)}, {s(S_AO)} offen offset:{(b&3)*1024} sc1", tag="ast")
        if b == 3:
            k.I(f"s_add_u32 {s(S_AO)}, {s(S_AO)}, 4096")
        if b < 6:
            dma_some(OPT.get("wd_mix", 2))
    k.stamp("act stored")
    dma_some(OPT.get("wd_pre", 8))

    def g0_reads():
        k.wait_vm(f"wd{WD_G1-1}")
        for kl in range(WD_G1):
            for t, tg in wd_reads(kl):
                k.I(t, tag=tg)
            if kl % 2 == 1:
                k.I("s_waitcnt lgkmcnt(4)")
    k.wait_vm("ast")
    k.I(f"s_lshl_b32 {s(S_T0)}, {s(S_M)}, 4")
    k.I(f"s_add_u32 {s(S_T0)}, {s(S_T0)}, {s(S_J)}")
    k.I(f"s_lshl_b32 {s(S_T0)}, {s(S_T0)}, 7")
    k.I(f"s_add_u32 {s(S_T0)}, {s(S_T0)}, {WS_FA}")
    k.signal(S_T0, "fa")
    k.stamp("act published")
    dma_some(len(dm))
    g0_reads()
    k.wait_lg_all()
    k.stamp("wf0 read")


S_AO = 91


S_WDB, S_WDT = 90, 12
S_WDO = 3
WD_TOP = 87552
WD_G1, WD_G2 = 9, 19
V_WD = 4
V_WB, V_WT = 5, 10


def wd_setup_items():
    return [f"s_and_b32 {s(S_T0)}, {s(S_J2)}, 7", f"s_lshl_b32 {s(S_T0)}, {s(S_T0)}, 7",
            f"v_lshrrev_b32 v4, 3, {v(V_LANE)}", "v_lshlrev_b32 v4, 10, v4", f"v_and_b32 v5, 7, {v(V_LANE)}",
            f"v_bfe_u32 v6, {v(V_LANE)}, 4, 1", "v_lshlrev_b32 v6, 2, v6", "v_xor_b32 v5, v5, v6",
            "v_lshl_add_u32 v4, v5, 4, v4", f"v_add_u32 v4, {s(S_T0)}, v4",
            f"s_mul_i32 {s(S_WDB)}, {s(S_W)}, 20480", f"s_mul_i32 {s(S_WDT)}, {s(S_W)}, 18432",
            f"s_add_u32 {s(S_WDT)}, {s(S_WDT)}, {WD_TOP}", f"s_mul_i32 {s(S_WDO)}, {s(S_W)}, {448*1024}"]


def wd_bases(k):
    swz128_base(k, 5, cbk_imm=0, s_mul=8)
    k.I(f"v_add_u32 v10, {s(S_WDT)}, v5")
    k.I("v_xor_b32 v11, 64, v10")
    k.I(f"v_add_u32 v5, {s(S_WDB)}, v5")
    k.I("v_xor_b32 v6, 64, v5")


def wd_slot(kl):
    if kl < WD_G1:
        return S_WDT, V_WT, kl * 2048
    if kl < WD_G2:
        return S_WDB, V_WB, (kl - WD_G1) * 2048
    return S_WDT, V_WT, (kl - WD_G2) * 2048


def wd_dma(k0, k1):
    out = []
    for kl in range(k0, k1):
        sb, _, off = wd_slot(kl)
        for h in range(2):
            out.append([(f"s_add_u32 {s(S_OFF)}, {s(S_WDO)}, {(16*kl + 8*h)*1024}", None),
                        (f"s_add_u32 m0, {s(sb)}, {off + h*1024}", None),
                        (f"buffer_load_dwordx4 v4, {srd(S_WD)}, {s(S_OFF)} offen lds", f"wd{kl}")])
    return out


def wd_reads(kl):
    _, vb, off = wd_slot(kl)
    return [(f"ds_read_b64_tr_b16 {a_((2*kl + cbk)*4 + 2*rd, 2)}, {v(vb+cbk)} offset:{off + rd*512}", f"wf{kl}")
            for cbk in range(2) for rd in range(2)]


def p4(k):
    GB = 176
    k.I(f"v_lshrrev_b32 v8, 5, {v(V_LANE)}")
    k.I("v_lshlrev_b32 v8, 6, v8")
    k.I(f"s_lshl_b32 {s(S_T0)}, {s(S_B32)}, 7")
    k.I(f"s_add_u32 {s(S_T0)}, {s(S_T0)}, {WS_MODG + 1280*8}")
    k.I(f"v_add_u32 v8, {s(S_T0)}, v8")
    greg = [GB + 4 * i for i in range(4)]
    for it in wd_dma(WD_G2, 28):
        for t, tg in it:
            k.I(t, tag=tg)
    k.I(f"s_lshl_b32 {s(S_T0)}, {s(S_M2)}, 11")
    k.I(f"s_add_u32 {s(S_T0)}, {s(S_T0)}, {WS_FA}")
    k.poll_flags(S_T0, 16, "pa")
    k.stamp("act flags seen")
    k.I(f"s_sub_u32 {s(S_T0)}, {s(S_TB)}, {s(S_TBL)}")
    k.I(f"s_mul_i32 {s(S_T0)}, {s(S_T0)}, {112*1024}")
    k.I(f"s_mul_i32 {s(S_T1)}, {s(S_W)}, {28*1024}")
    k.I(f"s_add_u32 {s(S_T0)}, {s(S_T0)}, {s(S_T1)}")
    S_A0, S_A1 = S_T3, S_T4
    k.I(f"s_add_u32 {s(S_A0)}, {s(S_T0)}, {WS_ACT}")
    k.I(f"s_add_u32 {s(S_A1)}, {s(S_A0)}, {112*1024}")
    NB = OPT.get("nb4", 12)
    AB = 16
    ACC = 192

    def ld(kl):
        out = []
        for tbl in range(2):
            r = AB + 8 * (kl % NB) + 4 * tbl
            out.append((f"buffer_load_dwordx4 {v(r,4)}, {v(V_L16)}, {srd(S_WS)}, {s(S_A0 + tbl)} offen offset:{(kl&3)*1024} sc1", f"a{kl}"))
        if kl & 3 == 3:
            out.append((f"s_add_u32 {s(S_A0)}, {s(S_A0)}, 4096", None))
            out.append((f"s_add_u32 {s(S_A1)}, {s(S_A1)}, 4096", None))
        return out

    for kl in range(NB):
        for t, tg in ld(kl):
            k.I(t, tag=tg)
    k.granule_loads(greg, [8] * 4, 4, [0, 16, 32, 48], "gb")
    GBF, X1F = 112, 128
    pre = [lambda: k.granule_verify(greg, [8] * 4, "gb", 4, (1, 3), [0, 16, 32, 48], "gb")]
    for i in range(8):
        g = GB + 4 * (i >> 1) + 2 * (i & 1)
        pre += [f"v_lshlrev_b32 {v(GBF+2*i)}, 16, {v(g)}", f"v_and_b32 {v(GBF+2*i+1)}, {s(S_MASK)}, {v(g)}",
                f"v_accvgpr_read_b32 v144, {a_(248+i)}", f"v_lshlrev_b32 {v(X1F+2*i)}, 16, v144", f"v_and_b32 {v(X1F+2*i+1)}, {s(S_MASK)}, v144"]
    for kl in range(28):
        k.wait_vm(f"a{kl}")
        if kl in (1, 7, 14, 21):
            k.stamp(f"p4 k{kl}")
        rds = wd_reads(kl + 3) if WD_G1 <= kl + 3 < 28 else []
        if kl >= WD_G1:
            k.wait_lg(f"wf{kl}")
        nxt = ld(kl + NB) if kl + NB < 28 else []
        for tbl in range(2):
            for cbk in range(2):
                r = AB + 8 * (kl % NB) + 4 * tbl
                k.mfma32(v(ACC + 16 * (2 * cbk + tbl), 16), a_((2 * kl + cbk) * 4, 4), v(r, 4), "0" if kl == 0 else None)
                if rds:
                    t, tg = rds.pop(0)
                    k.I(t, tag=tg)
                if tbl == 1 and nxt:
                    t, tg = nxt.pop(0)
                    k.I(t, tag=tg)
                if kl >= 10 and pre:
                    it = pre.pop(0)
                    it() if callable(it) else k.I(it)
        for t, tg in nxt:
            k.I(t, tag=tg)
    assert not pre
    k.stamp("down gemm")
    k.wait_lg_all()
    k.barrier()
    k.I(f"s_lshl_b32 {s(S_T0)}, {s(S_W)}, 12")
    k.I(f"v_add_u32 v8, {s(S_T0)}, {v(V_L16)}")
    k.I(f"v_add_u32 v9, 32768, v8")
    for q in range(4):
        sk = k.newlabel("r4w")
        k.I(f"s_cmp_eq_u32 {s(S_W)}, {q}")
        k.I(f"s_cbranch_scc1 {sk}")
        k.cond_begin()
        for i in range(4):
            base = 8 if q < 2 else 9
            k.I(f"ds_write_b128 {v(base)}, {v(ACC+16*q+4*i,4)} offset:{(q&1)*16384 + i*1024}")
        k.cond_end()
        k.label(sk)
    k.wait_lg_all()
    k.barrier()
    k.I(f"s_lshl_b32 {s(S_T0)}, {s(S_W)}, 14")
    k.I(f"v_add_u32 v8, {s(S_T0)}, {v(V_L16)}")
    for d in range(1, 4):
        k.I(f"s_add_u32 {s(S_T1)}, {s(S_W)}, {d}")
        k.I(f"s_and_b32 {s(S_T1)}, {s(S_T1)}, 3")
        k.I(f"s_lshl_b32 {s(S_T1)}, {s(S_T1)}, 12")
        k.I(f"v_add_u32 v9, {s(S_T1)}, v8")
        for i in range(4):
            k.I(f"ds_read_b128 {v(32+16*(d-1)+4*i,4)}, v9 offset:{i*1024}")
    for q in range(4):
        sk = k.newlabel("r4m")
        k.I(f"s_cmp_eq_u32 {s(S_W)}, {q}")
        k.I(f"s_cbranch_scc0 {sk}")
        for i in range(0, 16, 2):
            k.I(f"v_pk_mul_f32 {v(16+i,2)}, {v(ACC+16*q+i,2)}, 1.0 op_sel_hi:[1,0]")
        k.label(sk)
    k.wait_lg_all()
    for d in range(3):
        for i in range(0, 16, 2):
            k.I(f"v_pk_add_f32 {v(16+i,2)}, {v(16+i,2)}, {v(32+16*d+i,2)}")
    for i in range(16):
        k.I(f"v_fmac_f32 {v(X1F+i)}, {v(GBF+i)}, {v(16+i)}")
    for i in range(8):
        k.I(f"v_cvt_pk_bf16_f32 {v(88+i)}, {v(X1F+2*i)}, {v(X1F+2*i+1)}")
    k.I(f"v_and_b32 v8, 31, {v(V_LANE)}")
    k.I("v_lshlrev_b32 v8, 10, v8")
    k.I(f"v_lshrrev_b32 v9, 5, {v(V_LANE)}")
    k.I("v_lshl_add_u32 v8, v9, 5, v8")
    k.I(f"s_lshl_b32 {s(S_T0)}, {s(S_TB)}, 15")
    k.I(f"s_lshl_b32 {s(S_T1)}, {s(S_B32)}, 6")
    k.I(f"s_add_u32 {s(S_T0)}, {s(S_T0)}, {s(S_T1)}")
    k.I(f"v_add_u32 v8, {s(S_T0)}, v8")
    fl = {0: "", 1: " sc1", 2: " nt", 3: " sc0 sc1"}[OPT.get("outst", 0)]
    k.I(f"buffer_store_dwordx4 v[88:91], v8, {srd(S_OUT)}, 0 offen{fl}")
    k.I(f"buffer_store_dwordx4 v[92:95], v8, {srd(S_OUT)}, 0 offen offset:16{fl}")
    k.stamp("out stored")


def finish(k):
    if k.diag == "dbg":
        sk = k.newlabel("fin")
        k.wave_is(0, sk)
        k.I("s_load_dwordx2 s[92:93], s[0:1], 88")
        k.I("s_waitcnt lgkmcnt(0)")
        k.I("s_mov_b32 s94, 256")
        k.I("s_mov_b32 s95, 0x20000")
        k.I("s_mov_b64 exec, 1")
        sel = k.dbg_sel
        for slot, i in enumerate(sel):
            k.I(f"v_mov_b32 v9, {s(S_STAMP+i)}")
            if slot == 0:
                k.I("v_not_b32 v9, v9")
            k.I(f"v_mov_b32 v8, {4*slot}")
            k.I(f"buffer_atomic_umax v9, v8, s[92:95], 0 offen")
        k.label(sk)
    elif k.diag:
        sk = k.newlabel("fin")
        k.wave_is(0, sk)
        k.I(f"s_lshl_b32 {s(S_T0)}, s2, 7")
        k.I(f"s_add_u32 {s(S_T0)}, {s(S_T0)}, {WS_STAMP}")
        k.I(f"v_mov_b32 v8, {s(S_T0)}")
        k.I("s_mov_b64 exec, 1")
        for i in range(k.nstamp):
            k.I(f"v_mov_b32 v9, {s(S_STAMP+i)}")
            k.I(f"buffer_store_dword v9, v8, {srd(S_WS)}, 0 offen offset:{4*i}")
        k.label(sk)
    k.label("L_end")
    k.I("s_endpgm")


def build(diag=False, stop=None):
    k = K(diag, stop)
    phases = [prologue, start_phase, p1_prologue, p1_main, p1_epilogue,
              kv_combine_and_o, p2, p3, p4]
    for ph in phases:
        k.comment(f"======== {ph.__name__} ========")
        ph(k)
        if stop == ph.__name__:
            break
    k.dbg_sel = list(range(min(k.nstamp, 16)))
    if k.nstamp > 16:
        k.dbg_sel = [0, 1, 3, 4, 5, 7, 8, 9, 10, 11, 12, 13, 14, 15, 16, 17][:16]
    finish(k)
    hdr = open("cdna_kernels/" + NAME + ".s.ref").read().split("; Override launch geometry")[0]
    txt = hdr
    txt += f"; @launch grid=(256,1,1) block=(256,1,1) lds={LDS_BYTES}\n"
    txt += '.amdgcn_target "amdgcn-amd-amdhsa--gfx950"\n.text\n'
    txt += f".globl {NAME}_kernel\n.p2align 8\n.type {NAME}_kernel,@function\n{NAME}_kernel:\n"
    txt += k.text()
    txt += f""".section .rodata,"a"
.p2align 6
.amdhsa_kernel {NAME}_kernel
  .amdhsa_next_free_vgpr 512
  .amdhsa_next_free_sgpr 102
  .amdhsa_accum_offset 256
  .amdhsa_group_segment_fixed_size 0
  .amdhsa_kernarg_size 104
  .amdhsa_user_sgpr_count 2
  .amdhsa_user_sgpr_kernarg_segment_ptr 1
  .amdhsa_system_sgpr_workgroup_id_x 1
.end_amdhsa_kernel
"""
    return txt, k


if __name__ == "__main__":
    out = sys.argv[1] if len(sys.argv) > 1 else "k.s"
    for a in sys.argv:
        if a.startswith("--opt="):
            for kv in a[6:].split(","):
                kk, vv = kv.split("=")
                OPT[kk] = int(vv)
    diag = "--diag" in sys.argv
    if "--dbg" in sys.argv:
        diag = "dbg"
    stop = None
    for a in sys.argv:
        if a.startswith("--stop="):
            stop = a.split("=")[1]
    txt, k = build(diag, stop)
    open(out, "w").write(txt)
    if OPT.get("tmo"):
        open(out + ".tmo", "w").write("\n".join(k.tmo_names) + "\n")
    if diag:
        open(out + ".stamps", "w").write("\n".join(k.stamp_names) + "\n")
    print(f"wrote {out}: {len(txt)} bytes, {sum(1 for l in k.out if l.startswith(chr(9)))} instructions, {k.nops} hazard nops")
```

```python
import sys
from asmlib import Asm

NAME = "adaLN_cond__linear_kernel_hedgehog__glu_gated_reglu__prompt"

WS_E = 0
WS_MODG = 0x1000
WS_FKV = 0x4000
WS_FO = 0xC000
WS_FY = 0x14000
WS_FA = 0x1C000
WS_STAMP = 0x30000
WS_WEXT = 0x40000
WS_STATS = 0x80000
WS_MODC = 0x60000
WS_KVP = 0x100000
WS_O = 0x200000
WS_Y = 0x400000
WS_ACT = 0x800000

L_XI = 0
L_WI = 0
L_WM = 131072
L_S = 158720
L_RT = 159744
L_WMN = 114688
L_KVI = 0
L_QI = 65536
L_GP = 148480
L_CT = 139264
L_PHI = 153600
L_ZERO = 154624
L_RED = 0
L_KVF = 149504
L_Z = 151552
L_UB = 145920
L_CS = 162304
L_WO = 0
L_OI = 98304
SLAB = 14592
UOFF = 7296
LDS_BYTES = 163840

S_X, S_WQKV, S_WPHI, S_WO, S_WG, S_WU, S_WD, S_C, S_WMOD, S_OUT, S_WS = 4, 8, 12, 16, 20, 24, 28, 32, 36, 40, 44
S_XCD, S_I, S_M, S_J, S_W, S_TAG, S_MASK = 48, 49, 50, 51, 52, 53, 54
S_T0, S_T1, S_T2, S_T3, S_T4 = 55, 56, 57, 58, 59
S_CLK = 60
S_L2E = 62
S_SPIN = 64
S_OFF = 65
S_VALID = 66
S_EX = 68
S_M2, S_J2 = 70, 71
S_STAMP = 72
S_SEL = 92
S_HP = S_J

LOG2E = 0x3FB8AA3B
SPIN_MAX = 200000


def srd(i):
    return f"s[{i}:{i+3}]"


def v(i, n=1):
    return f"v{i}" if n == 1 else f"v[{i}:{i+n-1}]"


def a_(i, n=1):
    return f"a{i}" if n == 1 else f"a[{i}:{i+n-1}]"


def s(i, n=1):
    return f"s{i}" if n == 1 else f"s[{i}:{i+n-1}]"


V_LANE, V_L16, V_TAG = 1, 2, 3
V_DUMMY = 15
OPT = dict(codepf=1, touch=1, tw0=1, mall=0, nt_wm=1, tmn_nt=0, kst=16, kwx=18, kwd=22, twdk=20)


import os
STAMPS = os.environ.get('STAMPS', 'start,wmod landed,x in regs,mod arrived,P1 ready,p1 main,kv published,q softmax,kv flags seen,o published,o flags seen,wo gemm,y published,y flags seen,gate/up gemm,act published,act flags seen,out stored').split(',')


class K(Asm):
    def __init__(self, diag=False, stop=None):
        super().__init__()
        self.diag = diag
        self.stop = stop
        self.nstamp = 0

    def stamp(self, name, cyc=False):
        if not self.diag:
            return
        if STAMPS is not None and name not in STAMPS:
            return
        if cyc:
            self.wait_lg_all()
            self.I(f"s_memtime {s(S_CLK, 2)}")
            self.I("s_waitcnt lgkmcnt(0)")
            self.I(f"s_mov_b32 {s(S_STAMP + self.nstamp)}, {s(S_CLK)}")
            self.stamp_names = getattr(self, "stamp_names", []) + [name + " (cyc)"]
            self.nstamp += 1
            return
        self.wait_lg_all()
        self.I(f"s_memrealtime {s(S_CLK, 2)}")
        self.I("s_waitcnt lgkmcnt(0)")
        self.I(f"s_mov_b32 {s(S_STAMP + self.nstamp)}, {s(S_CLK)}")
        self.stamp_names = getattr(self, "stamp_names", []) + [name]
        self.nstamp += 1
        assert self.nstamp <= 18, self.stamp_names

    def wave_is(self, w, label_else):
        self.I(f"s_cmp_eq_u32 {s(S_W)}, {w}")
        self.I(f"s_cbranch_scc0 {label_else}")

    def mfma32(self, d, a, b, c=None):
        c = d if c is None else c
        self.I(f"v_mfma_f32_32x32x16_bf16 {d}, {a}, {b}, {c}")

    def test_delay(self, which):
        if OPT.get("x_delay") != which:
            return
        l = self.newlabel("dly")
        d = self.newlabel("dly_done")
        self.I("s_and_b32 s55, s2, 31")
        self.I("s_cmp_eq_u32 s55, 5")
        self.I(f"s_cbranch_scc0 {d}")
        self.I("s_mov_b32 s55, 200")
        self.label(l)
        self.I("s_sleep 8")
        self.I("s_sub_u32 s55, s55, 1")
        self.I("s_cmp_lg_u32 s55, 0")
        self.I(f"s_cbranch_scc1 {l}")
        self.label(d)

    def spin_init(self):
        self.I(f"s_mov_b32 {s(S_SPIN)}, {SPIN_MAX}")

    def spin_back(self, loop, done):
        self.I(f"s_cbranch_vccz {done}")
        self.I(f"s_sub_u32 {s(S_SPIN)}, {s(S_SPIN)}, 1")
        self.I(f"s_cmp_lg_u32 {s(S_SPIN)}, 0")
        self.I(f"s_cbranch_scc1 {loop}")
        if OPT.get("tmo"):
            self.ntmo = getattr(self, "ntmo", 0) + 1
            self.tmo_names = getattr(self, "tmo_names", []) + [loop]
            self.I(f"s_lshl_b32 {s(S_EX)}, s2, 2")
            self.I(f"s_add_u32 {s(S_EX)}, {s(S_EX)}, {s(S_W)}")
            self.I(f"s_lshl_b32 {s(S_EX)}, {s(S_EX)}, 6")
            self.I(f"s_add_u32 {s(S_EX)}, {s(S_EX)}, {0x70000 + 4*self.ntmo}")
            self.I(f"v_mov_b32 v250, {s(S_EX)}")
            self.I(f"s_mov_b32 {s(S_EX)}, vcc_lo")
            self.I(f"v_mov_b32 v251, {s(S_EX)}")
            self.I(f"buffer_store_dword v251, v250, {srd(S_WS)}, 0 offen sc1")

    def unpack(self, lo, hi, src):
        self.I(f"v_lshlrev_b32 {v(lo)}, 16, {v(src)}")
        self.I(f"v_and_b32 {v(hi)}, {s(S_MASK)}, {v(src)}")

    def half_total(self, r, tmp):
        self.I(f"v_mov_b32 {v(tmp)}, {v(r)}")
        self.I(f"v_permlane32_swap_b32 {v(r)}, {v(tmp)}")
        self.I(f"v_add_f32 {v(r)}, {v(r)}, {v(tmp)}")

    def dma(self, voff, rsrc, soff, sc1=False):
        nt = " nt" if OPT.get("nt_" + str(self._tag)) else ""
        self.I(f"buffer_load_dwordx4 {v(voff)}, {srd(rsrc)}, {soff} offen{' sc1' if sc1 else ''}{nt} lds", tag=self._tag)

    _tag = None

    def touch(self, rsrc, voff, soff, tag="t", dst=None):
        nt = " nt" if OPT.get("nt_t") else ""
        self.I(f"buffer_load_dword {v(V_DUMMY if dst is None else dst)}, {v(voff)}, {srd(rsrc)}, {soff} offen{nt}", tag=tag)

    def poll_flags(self, base_sreg, n, stem, tmp=14):
        done = self.newlabel(stem + "_skip")
        loop = self.newlabel(stem + "_loop")
        ok = self.newlabel(stem + "_ok")
        self.wave_is(0, done)
        self.cond_begin()
        self.I(f"v_min_u32 {v(tmp)}, {n-1}, {v(V_LANE)}")
        self.I(f"v_lshlrev_b32 {v(tmp)}, 7, {v(tmp)}")
        self.I(f"v_add_u32 {v(tmp)}, {s(base_sreg)}, {v(tmp)}")
        self.spin_init()
        if OPT.get("poll2"):
            alt = OPT.get("poll2_reg", 0)
            self.I(f"buffer_load_dword {v(tmp+1)}, {v(tmp)}, {srd(S_WS)}, 0 offen sc1")
            self.label(loop)
            self.I("s_nop 15")
            self.I("s_nop 15")
            self.I(f"buffer_load_dword {v(alt)}, {v(tmp)}, {srd(S_WS)}, 0 offen sc1")
            self.I("s_waitcnt vmcnt(1)")
            self.I(f"v_cmp_ne_u32 vcc, {s(S_TAG)}, {v(tmp+1)}")
            self.I(f"s_cbranch_vccz {ok}")
            self.I(f"buffer_load_dword {v(tmp+1)}, {v(tmp)}, {srd(S_WS)}, 0 offen sc1")
            self.I("s_waitcnt vmcnt(1)")
            self.I(f"v_cmp_ne_u32 vcc, {s(S_TAG)}, {v(alt)}")
            self.spin_back(loop, ok)
            self.label(ok + "_w")
        else:
            self.label(loop)
            self.I(f"buffer_load_dword {v(tmp+1)}, {v(tmp)}, {srd(S_WS)}, 0 offen sc1")
            self.I("s_waitcnt vmcnt(0)")
            self.I(f"v_cmp_ne_u32 vcc, {s(S_TAG)}, {v(tmp+1)}")
            self.spin_back(loop, ok)
        self.label(ok)
        if OPT.get("poll2"):
            self.I("s_waitcnt vmcnt(0)")
        self.cond_end()
        self.label(done)
        self.barrier()

    def signal(self, off_sreg, stem, tmp=14):
        self.barrier()
        done = self.newlabel(stem + "_sig")
        self.wave_is(0, done)
        self.cond_begin()
        self.I(f"v_mov_b32 {v(tmp)}, {s(off_sreg)}")
        self.I(f"s_mov_b64 exec, 1")
        self.I(f"buffer_store_dword {v(V_TAG)}, {v(tmp)}, {srd(S_WS)}, 0 offen sc1")
        self.I(f"s_mov_b64 exec, -1")
        self.cond_end()
        self.label(done)

    def granule_loads(self, regs, addr_regs, width, imm, tag):
        sfx = {2: "dwordx2", 4: "dwordx4"}[width]
        for i, (r, ad) in enumerate(zip(regs, addr_regs)):
            off = imm[i] if imm else 0
            self.I(f"buffer_load_{sfx} {v(r, width)}, {v(ad)}, {srd(S_WS)}, 0 offen offset:{off} sc1", tag=tag)

    def granule_verify(self, regs, addr_regs, stem, width, tagpos, imm, tag):
        loop = self.newlabel(stem + "_loop")
        chk = self.newlabel(stem + "_chk")
        ok = self.newlabel(stem + "_ok")
        self.spin_init()
        if self.cond:
            self.I("s_waitcnt vmcnt(0)")
        else:
            self.wait_vm(tag)
        self.I(f"s_branch {chk}")
        self.label(loop)
        self.cond_begin()
        self.granule_loads(regs, addr_regs, width, imm, None)
        self.I("s_waitcnt vmcnt(0)")
        self.cond_end()
        self.label(chk)
        first = True
        for r in regs:
            for tp in tagpos:
                if first:
                    self.I(f"v_cmp_ne_u32 vcc, {s(S_TAG)}, {v(r+tp)}")
                    first = False
                else:
                    self.I(f"v_cmp_ne_u32 {s(S_EX, 2)}, {s(S_TAG)}, {v(r+tp)}")
                    self.I(f"s_or_b64 vcc, vcc, {s(S_EX, 2)}")
        self.spin_back(loop, ok)
        self.label(ok)

    def load_granules_checked(self, regs, addr_regs, stem, width=2, tagpos=(1,), imm=None):
        self.granule_loads(regs, addr_regs, width, imm, stem)
        self.granule_verify(regs, addr_regs, stem, width, tagpos, imm, stem)


S_CODE = 0


def code_touch(k, wave, dst, t=(8, 9)):
    if not OPT.get("codepf"):
        return
    sk = k.newlabel("cpf")
    k.wave_is(wave, sk)
    k.cond_begin()
    a0, a1 = t
    k.I(f"v_min_u32 {v(a0)}, 11, {v(V_LANE)}")
    k.I(f"v_lshlrev_b32 {v(a0)}, 7, {v(a0)}")
    k.I(f"v_min_u32 {v(a0)}, {s(S_CODN)}, {v(a0)}")
    k.I(f"v_mov_b32 {v(a1)}, {s(S_CODE+1)}")
    k.I(f"v_add_co_u32 {v(a0)}, vcc, {s(S_CODE)}, {v(a0)}")
    k.I(f"v_addc_co_u32 {v(a1)}, vcc, 0, {v(a1)}, vcc")
    k.I(f"global_load_dword {v(dst)}, v[{a0}:{a1}], off")
    k.cond_end()
    k.label(sk)


S_CODN = 101


def prologue(k):
    if k.diag and "entry" in STAMPS:
        k.I("s_memrealtime s[96:97]")
    k.I("s_cmp_ge_u32 s2, 256")
    k.I("s_cbranch_scc1 L_end")
    k.I("s_load_dwordx16 s[64:79], s[0:1], 0")
    k.I("s_load_dwordx8 s[80:87], s[0:1], 64")
    k.I("s_load_dwordx2 s[88:89], s[0:1], 96")
    if OPT.get("codepf"):
        k.I("s_getpc_b64 s[90:91]")
        k.label("L_pc")
        k.I(f"s_mov_b32 {s(S_T1)}, L_end-L_pc")
        k.I(f"s_lshr_b32 {s(S_T1)}, {s(S_T1)}, 7")
        k.I(f"s_sub_u32 {s(S_T1)}, {s(S_T1)}, 1")
        k.I(f"s_lshr_b32 {s(S_T0)}, s2, 3")
        k.I(f"s_mul_i32 {s(S_T0)}, {s(S_T0)}, 12")
        k.I(f"s_min_u32 {s(S_T0)}, {s(S_T0)}, {s(S_T1)}")
        k.I(f"s_sub_u32 {s(S_CODN)}, {s(S_T1)}, {s(S_T0)}")
        k.I(f"s_lshl_b32 {s(S_CODN)}, {s(S_CODN)}, 7")
        k.I(f"s_lshl_b32 {s(S_T0)}, {s(S_T0)}, 7")
        k.I(f"s_add_u32 s90, s90, {s(S_T0)}")
        k.I("s_addc_u32 s91, s91, 0")
        k.I("v_min_u32 v8, 11, v0")
        k.I("v_lshlrev_b32 v8, 7, v8")
        k.I(f"v_min_u32 v8, {s(S_CODN)}, v8")
        k.I("v_mov_b32 v9, s91")
        k.I("v_add_co_u32 v8, vcc, s90, v8")
        k.I("v_addc_co_u32 v9, vcc, 0, v9, vcc")
        k.I("global_load_dword v177, v[8:9], off", tag="cp")
    k.I(f"v_and_b32 {v(V_LANE)}, 63, v0")
    k.I("v_lshrrev_b32 v4, 6, v0")
    k.I(f"v_lshlrev_b32 {v(V_L16)}, 4, {v(V_LANE)}")
    k.I(f"v_readfirstlane_b32 {s(S_W)}, v4")
    k.I(f"s_and_b32 {s(S_XCD)}, s2, 7")
    k.I(f"s_lshr_b32 {s(S_I)}, s2, 3")
    k.I(f"s_lshr_b32 {s(S_T0)}, {s(S_XCD)}, 1")
    k.I(f"s_lshl_b32 {s(S_T0)}, {s(S_T0)}, 2")
    k.I(f"s_lshr_b32 {s(S_T1)}, {s(S_I)}, 3")
    k.I(f"s_add_u32 {s(S_M)}, {s(S_T0)}, {s(S_T1)}")
    k.I(f"s_and_b32 {s(S_T0)}, {s(S_XCD)}, 1")
    k.I(f"s_lshl_b32 {s(S_T0)}, {s(S_T0)}, 3")
    k.I(f"s_and_b32 {s(S_T1)}, {s(S_I)}, 7")
    k.I(f"s_add_u32 {s(S_J)}, {s(S_T0)}, {s(S_T1)}")
    k.I(f"s_mov_b32 {s(S_MASK)}, 0xffff0000")
    k.I(f"s_mov_b32 {s(S_L2E)}, {LOG2E:#x}")
    k.I(f"s_mov_b32 {s(S_L2E+1)}, {LOG2E:#x}")
    k.I("s_waitcnt lgkmcnt(0)")
    if OPT.get("codepf"):
        k.I(f"s_mov_b32 {s(S_CODE)}, s90")
        k.I(f"s_mov_b32 {s(S_CODE+1)}, s91")
    bufs = [(S_X, 64, 2097152), (S_WQKV, 66, 1572864), (S_WPHI, 68, 16384), (S_WO, 70, 524288),
            (S_WG, 74, 1835008), (S_WU, 76, 1835008), (S_WD, 78, 1835008), (S_C, 80, 1024),
            (S_WMOD, 82, 3145728), (S_OUT, 84, 2097152), (S_WS, 88, 268435456)]
    for r, p, n in bufs:
        k.I(f"s_mov_b32 {s(r)}, {s(p)}")
        k.I(f"s_mov_b32 {s(r+1)}, {s(p+1)}")
        k.I(f"s_mov_b32 {s(r+2)}, {n}")
        k.I(f"s_mov_b32 {s(r+3)}, 0x20000")
    k.I(f"s_lshr_b32 {s(S_T0)}, {s(S_I)}, 4")
    k.I(f"s_lshl_b32 {s(S_M2)}, {s(S_XCD)}, 1")
    k.I(f"s_add_u32 {s(S_M2)}, {s(S_M2)}, {s(S_T0)}")
    k.I(f"s_and_b32 {s(S_J2)}, {s(S_I)}, 15")
    if k.diag and "entry" in STAMPS:
        k.I(f"s_mov_b32 {s(S_STAMP + k.nstamp)}, s96")
        k.stamp_names = getattr(k, "stamp_names", []) + ["entry"]
        k.nstamp += 1
    k.I("v_mov_b32 v4, 0")
    k.I(f"buffer_load_dword {v(V_TAG)}, v4, {srd(S_WS)}, 0 offen sc1", tag="E")
    k.stamp("start")


S_G = 100
S_GC = 3


def x_rows(k):
    k.I(f"s_lshl_b32 {s(S_T2)}, {s(S_M)}, 17")
    k.I(f"s_and_b32 {s(S_T3)}, {s(S_J)}, 7")
    k.I(f"s_lshl_b32 {s(S_T3)}, {s(S_T3)}, 4")
    k.I(f"s_add_u32 {s(S_T3)}, {s(S_T3)}, {s(S_W)}")
    k.I(f"s_sub_u32 {s(S_T3)}, {s(S_T3)}, 1")
    k.I(f"s_cmp_eq_u32 {s(S_W)}, 3")
    k.I(f"s_cselect_b32 {s(S_T4)}, 42, 43")
    loop = k.newlabel("xrow")
    k.label(loop)
    k.I(f"s_and_b32 {s(S_T0)}, {s(S_T3)}, 127")
    k.I(f"s_and_b32 {s(S_T1)}, {s(S_T0)}, 15")
    k.I(f"s_lshl_b32 {s(S_T1)}, {s(S_T1)}, 4")
    k.I(f"v_xor_b32 v9, {s(S_T1)}, {v(V_L16)}")
    k.I(f"s_lshl_b32 m0, {s(S_T0)}, 10")
    k.I(f"s_add_u32 {s(S_OFF)}, m0, {s(S_T2)}")
    k.dma(9, S_X, s(S_OFF))
    k.I(f"s_add_u32 {s(S_T3)}, {s(S_T3)}, 3")
    k.I(f"s_sub_u32 {s(S_T4)}, {s(S_T4)}, 1")
    k.I(f"s_cmp_lg_u32 {s(S_T4)}, 0")
    k.I(f"s_cbranch_scc1 {loop}")


def touch_wqkv(k):
    if OPT["touch"]:
        k.I(f"v_lshrrev_b32 v13, 2, {v(V_LANE)}")
        k.I("v_mul_u32_u24 v13, 3072, v13")
        k.I(f"v_and_b32 v14, 3, {v(V_LANE)}")
        k.I("v_lshl_add_u32 v13, v14, 7, v13")
        k.I(f"s_mul_i32 {s(S_OFF)}, {s(S_I)}, {16*3072}")
        k.I(f"s_sub_u32 {s(S_T0)}, {s(S_W)}, 1")
        k.I(f"s_lshl_b32 {s(S_T0)}, {s(S_T0)}, 10")
        k.I(f"s_add_u32 {s(S_OFF)}, {s(S_OFF)}, {s(S_T0)}")
        k.I(f"s_and_b32 {s(S_T0)}, {s(S_XCD)}, 1")
        k.I(f"s_lshl_b32 {s(S_T0)}, {s(S_T0)}, 9")
        k.I(f"s_add_u32 {s(S_OFF)}, {s(S_OFF)}, {s(S_T0)}")
        k.touch(S_WQKV, 13, s(S_OFF), dst=176)


def mod_group(k):
    k.I(f"s_lshr_b32 {s(S_T0)}, {s(S_I)}, 2")
    k.I(f"s_lshl_b32 {s(S_T0)}, {s(S_T0)}, 3")
    k.I(f"s_add_u32 {s(S_T0)}, {s(S_T0)}, {s(S_XCD)}")
    k.I(f"s_lshl_b32 {s(S_T0)}, {s(S_T0)}, 2")
    k.I(f"s_and_b32 {s(S_T1)}, {s(S_I)}, 3")
    k.I(f"s_add_u32 {s(S_G)}, {s(S_T0)}, {s(S_T1)}")


def wm_voff(k, dst, tmp):
    k.I(f"v_lshrrev_b32 {v(dst)}, 1, {v(V_LANE)}")
    k.I(f"v_mul_u32_u24 {v(dst)}, 6144, {v(dst)}")
    k.I(f"v_and_b32 {v(tmp)}, 1, {v(V_LANE)}")
    k.I(f"v_lshlrev_b32 {v(tmp)}, 4, {v(tmp)}")
    k.I(f"s_lshl_b32 {s(S_T0)}, {s(S_G)}, 5")
    k.I(f"v_add3_u32 {v(dst)}, {v(dst)}, {v(tmp)}, {s(S_T0)}")


def gemv16(k, lds_base, nq=16, partial=False, nbuf=112):
    k.I(f"v_lshrrev_b32 v8, 4, {v(V_LANE)}")
    k.I("v_lshlrev_b32 v8, 3, v8")
    k.I(f"v_add_u32 v8, {L_S}, v8")
    if partial:
        k.I(f"s_and_b32 {s(S_T0)}, {s(S_I)}, 3")
        k.I(f"s_lshl_b32 {s(S_T0)}, {s(S_T0)}, 8")
        k.I(f"v_add_u32 v8, {s(S_T0)}, v8")
    k.I(f"v_lshlrev_b32 v10, 3, {v(V_LANE)}")
    k.I(f"v_add_u32 v10, {lds_base}, v10")
    for q in range(nq + 2):
        if q < nq:
            b = nbuf + 8 * (q & 3)
            k.I(f"ds_read_b64_tr_b16 {v(b+4, 2)}, v10 offset:{q*1024}")
            k.I(f"ds_read_b64_tr_b16 {v(b+6, 2)}, v10 offset:{q*1024+512}")
            k.I(f"ds_read_b64 {v(b, 2)}, v8 offset:{q*64}")
            k.I(f"ds_read_b64 {v(b+2, 2)}, v8 offset:{q*64+32}")
        if q >= 2:
            k.I(f"s_waitcnt lgkmcnt({8 if q < nq else (4 if q == nq else 0)})")
            bb = nbuf + 8 * ((q - 2) & 3)
            acc = 144 + 4 * (q & 1)
            c = "0" if q < 4 else v(acc, 4)
            k.I(f"v_mfma_f32_16x16x32_bf16 {v(acc, 4)}, {v(bb, 4)}, {v(bb+4, 4)}, {c}")
    k.test_delay(1 if partial else 2)
    k.I("v_add_f32 v144, v144, v148")
    k.I("v_mov_b32_dpp v145, v144 quad_perm:[1,0,3,2] row_mask:0xf bank_mask:0xf")
    if partial:
        k.I(f"v_mov_b32 v146, {v(V_TAG)}")
        k.I("v_mov_b32 v147, 0")
        k.I(f"v_lshlrev_b32 v8, 3, {v(V_LANE)}")
        k.I(f"s_and_b32 {s(S_T0)}, {s(S_I)}, 3")
        k.I(f"s_lshl_b32 {s(S_T0)}, {s(S_T0)}, 13")
        k.I(f"s_lshl_b32 {s(S_T1)}, {s(S_GC)}, 7")
        k.I(f"s_add_u32 {s(S_T0)}, {s(S_T0)}, {s(S_T1)}")
        k.I(f"s_add_u32 {s(S_T0)}, {s(S_T0)}, {WS_MODC}")
        k.I(f"v_add_u32 v8, {s(S_T0)}, v8")
        k.I("s_mov_b64 exec, 0x5555")
        k.I(f"buffer_store_dwordx4 v[144:147], v8, {srd(S_WS)}, 0 offen sc1")
    else:
        k.I("v_cvt_pk_bf16_f32 v144, v144, v145")
        k.I(f"v_mov_b32 v145, {v(V_TAG)}")
        k.I(f"v_lshlrev_b32 v8, 2, {v(V_LANE)}")
        k.I(f"s_lshl_b32 {s(S_T0)}, {s(S_G)}, 6")
        k.I(f"s_add_u32 {s(S_T0)}, {s(S_T0)}, {WS_MODG}")
        k.I(f"v_add_u32 v8, {s(S_T0)}, v8")
        k.I("s_mov_b64 exec, 0x5555")
        k.I(f"buffer_store_dwordx2 v[144:145], v8, {srd(S_WS)}, 0 offen sc1")
    k.I("s_mov_b64 exec, -1")


def mall_touch(k):
    k.I(f"v_min_u32 v9, 55, {v(V_LANE)}")
    k.I("v_lshlrev_b32 v9, 7, v9")
    k.I(f"s_mul_i32 {s(S_OFF)}, s2, {56*128}")
    for r in (S_WG, S_WU, S_WD):
        k.touch(r, 9, s(S_OFF), dst=176)
    k.I(f"v_and_b32 v9, 15, {v(V_LANE)}")
    k.I("v_lshlrev_b32 v9, 7, v9")
    k.I(f"s_lshl_b32 {s(S_OFF)}, s2, 11")
    k.touch(S_WO, 9, s(S_OFF), dst=176)
    k.I(f"v_lshrrev_b32 v9, 5, {v(V_LANE)}")
    k.I("v_mul_u32_u24 v9, 6144, v9")
    k.I(f"v_and_b32 v10, 31, {v(V_LANE)}")
    k.I("v_lshl_add_u32 v9, v10, 7, v9")
    k.I(f"s_mul_i32 {s(S_OFF)}, s2, {2*6144}")
    k.I(f"s_add_u32 {s(S_OFF)}, {s(S_OFF)}, 2048")
    k.touch(S_WMOD, 9, s(S_OFF), dst=176)


def start_phase(k):
    mod_group(k)
    k.I(f"s_lshr_b32 {s(S_T0)}, {s(S_I)}, 4")
    k.I(f"s_lshl_b32 {s(S_T0)}, {s(S_T0)}, 3")
    k.I(f"s_add_u32 {s(S_T0)}, {s(S_T0)}, {s(S_XCD)}")
    k.I(f"s_lshl_b32 {s(S_T0)}, {s(S_T0)}, 2")
    k.I(f"s_bfe_u32 {s(S_T1)}, {s(S_I)}, {(2 << 16) | 2}")
    k.I(f"s_add_u32 {s(S_GC)}, {s(S_T0)}, {s(S_T1)}")
    k.cond_begin()
    wa, wb = k.newlabel("st_b"), k.newlabel("st_j")
    k.wave_is(0, wa)
    k.I(f"buffer_load_dwordx4 v[24:27], {v(V_L16)}, {srd(S_C)}, 0 offen")
    k.I(f"v_lshrrev_b32 v7, 1, {v(V_LANE)}")
    k.I("v_mul_u32_u24 v7, 6144, v7")
    k.I(f"v_and_b32 v8, 1, {v(V_LANE)}")
    k.I("v_lshlrev_b32 v8, 4, v8")
    k.I(f"s_lshl_b32 {s(S_T0)}, {s(S_GC)}, 5")
    k.I(f"v_add3_u32 v7, v7, v8, {s(S_T0)}")
    k.I(f"s_and_b32 {s(S_OFF)}, {s(S_I)}, 3")
    k.I(f"s_mul_i32 {s(S_OFF)}, {s(S_OFF)}, {128*6144}")
    k.I(f"s_mov_b32 m0, {L_WM}")
    k._tag = "wm"
    for n in range(4):
        k.dma(7, S_WMOD, s(S_OFF))
        if n < 3:
            k.I(f"s_add_u32 m0, m0, 1024")
            k.I(f"s_add_u32 {s(S_OFF)}, {s(S_OFF)}, 196608")
    k._tag = None
    k.I(f"s_branch {wb}")
    k.label(wa)
    k.I(f"s_lshl_b32 {s(S_OFF)}, {s(S_HP)}, 10")
    k.I(f"s_mov_b32 m0, {L_PHI}")
    k.dma(V_L16, S_WPHI, s(S_OFF))
    touch_wqkv(k)
    x_rows(k)
    k.label(wb)
    k.cond_end()
    k.vmq = []


def start_finish(k):
    k.cond_begin()
    wa, wb = k.newlabel("sf_b"), k.newlabel("sf_j")
    k.wave_is(0, wa)
    k.I("s_waitcnt vmcnt(4)")
    k.I(f"v_add_u32 {v(V_TAG)}, 1, {v(V_TAG)}")
    for i in range(4):
        k.unpack(28 + 2 * i, 29 + 2 * i, 24 + i)
    for i in range(8):
        k.I(f"v_mul_f32 {v(36+i)}, {s(S_L2E)}, {v(28+i)}")
    for i in range(8):
        k.I(f"v_exp_f32 {v(36+i)}, -{v(36+i)}")
    for i in range(8):
        k.I(f"v_add_f32 {v(36+i)}, 1.0, {v(36+i)}")
    for i in range(8):
        k.I(f"v_rcp_f32 {v(36+i)}, {v(36+i)}")
    for i in range(8):
        k.I(f"v_mul_f32 {v(28+i)}, {v(28+i)}, {v(36+i)}")
    for i in range(4):
        k.I(f"v_cvt_pk_bf16_f32 {v(24+i)}, {v(28+2*i)}, {v(29+2*i)}")
    k.I(f"v_add_u32 v8, {L_S}, {v(V_L16)}")
    k.I("ds_write_b128 v8, v[24:27]")
    k.I("s_waitcnt vmcnt(0) lgkmcnt(0)")
    gemv16(k, L_WM, nq=4, partial=True)
    if OPT["mall"]:
        mall_touch(k)
    k.I(f"s_branch {wb}")
    k.label(wa)
    k.I("s_waitcnt vmcnt(0)")
    k.I(f"v_add_u32 {v(V_TAG)}, 1, {v(V_TAG)}")
    k.label(wb)
    k.cond_end()
    k.I(f"v_readfirstlane_b32 {s(S_TAG)}, {v(V_TAG)}")
    k.stamp("mod published")
    k.lgq = []
    k.barrier()


def modn_compute(k):
    skip = k.newlabel("mn_c")
    k.I("s_sub_u32 s55, s2, 64")
    k.I("s_cmp_ge_u32 s55, 128")
    k.I(f"s_cbranch_scc1 {skip}")
    k.wave_is(2, skip)
    k.cond_begin()
    gemv16(k, L_WMN)
    k.cond_end()
    k.label(skip)


X0 = 16
AQ, AK, AV = 144, 160, 176
DM = 144
DG = 192
EB = (200, 204)
BEXT = 208
MSK = 212
V_TRK, V_TRV, V_TAB, V_R, V_TRQ = 220, 221, 222, 223, 4


def lane_fields(k, t_r=None, s_=None, r_=None, c_=None, nh=None):
    if s_ is not None:
        k.I(f"v_lshrrev_b32 {v(s_)}, 5, {v(V_LANE)}")
    if nh is not None:
        k.I(f"v_bfe_u32 {v(nh)}, {v(V_LANE)}, 4, 1")
    if r_ is not None:
        k.I(f"v_bfe_u32 {v(r_)}, {v(V_LANE)}, 2, 2")
    if c_ is not None:
        k.I(f"v_and_b32 {v(c_)}, 3, {v(V_LANE)}")


def lbase_bytes(k, dst, nh, c, t0, t1):
    k.I(f"v_and_b32 {v(t0)}, 1, {v(c)}")
    k.I(f"v_lshlrev_b32 {v(t0)}, 5, {v(t0)}")
    k.I(f"v_lshrrev_b32 {v(t1)}, 1, {v(c)}")
    k.I(f"v_lshlrev_b32 {v(t1)}, 3, {v(t1)}")
    k.I(f"v_lshl_add_u32 {v(dst)}, {v(nh)}, 4, {v(t0)}")
    k.I(f"v_add_u32 {v(dst)}, {v(dst)}, {v(t1)}")


MODA_REGS = [144 + 4 * i for i in range(8)]
MODA_ADDR = [202, 203, 204, 205, 206, 207, 241, 242]


def p1_prologue(k):
    k.I("v_mov_b32 v8, 0")
    k.I(f"v_lshlrev_b32 v9, 2, {v(V_LANE)}")
    k.I(f"v_and_b32 v9, 60, v9")
    k.I(f"v_add_u32 v9, {L_ZERO}, v9")
    k.I("ds_write_b32 v9, v8")
    p1_static(k)
    k.I(f"v_and_b32 v8, 31, {v(V_LANE)}")
    k.I(f"s_lshl_b32 {s(S_T0)}, {s(S_W)}, 5")
    k.I(f"v_add_u32 v9, {s(S_T0)}, v8")
    k.I("v_lshlrev_b32 v9, 10, v9")
    k.I("v_and_b32 v8, 15, v8")
    k.I(f"v_lshrrev_b32 v10, 5, {v(V_LANE)}")
    for q in range(8):
        k.I(f"v_add_u32 v11, {2*q}, v10")
        k.I("v_xor_b32 v11, v11, v8")
        k.I(f"v_lshl_add_u32 {v(192+q)}, v11, 4, v9")
    k.I(f"v_lshrrev_b32 v8, 3, {v(V_LANE)}")
    k.I("v_mul_u32_u24 v8, 3072, v8")
    k.I(f"v_and_b32 v9, 7, {v(V_LANE)}")
    k.I(f"v_bfe_u32 v10, {v(V_LANE)}, 4, 1")
    k.I("v_lshlrev_b32 v10, 2, v10")
    k.I("v_xor_b32 v9, v9, v10")
    k.I("v_lshrrev_b32 v10, 2, v9")
    k.I("v_lshlrev_b32 v10, 10, v10")
    k.I("v_and_b32 v9, 3, v9")
    k.I("v_lshl_add_u32 v10, v9, 4, v10")
    k.I(f"s_lshl_b32 {s(S_T0)}, {s(S_HP)}, 6")
    k.I(f"s_add_u32 {s(S_T1)}, {s(S_T0)}, 1024")
    k.I(f"v_add3_u32 v200, v8, v10, {s(S_T1)}")
    k.I(f"v_lshrrev_b32 v8, 2, {v(V_LANE)}")
    k.I("v_mul_u32_u24 v8, 3072, v8")
    k.I(f"v_and_b32 v9, 3, {v(V_LANE)}")
    k.I("v_lshl_add_u32 v8, v9, 4, v8")
    k.I(f"v_add_u32 v6, {s(S_T0)}, v8")
    k.I("v_lshlrev_b32 v202, 4, v0")
    k.I(f"v_add_u32 v202, {WS_MODC}, v202")
    k.I(f"v_add_u32 v203, 8192, v202")
    k.I(f"v_add_u32 v204, 16384, v202")
    k.I(f"v_add_u32 v205, 24576, v202")
    k.I(f"v_add_u32 v206, 4096, v202")
    k.I(f"v_add_u32 v207, 4096, v203")
    k.I(f"v_add_u32 v241, 4096, v204")
    k.I(f"v_add_u32 v242, 4096, v205")
    start_finish(k)
    k.I("v_mov_b32 v8, 0x3f803f80")
    for r in range(10, 14):
        k.I(f"v_mov_b32 {v(r)}, 0")
    dots = []
    for i in range(128):
        dots.append(f"v_dot2c_f32_bf16 {v(10 + (i & 1))}, {v(X0+i)}, v8")
        dots.append(f"v_dot2c_f32_bf16 {v(12 + (i & 1))}, {v(X0+i)}, {v(X0+i)}")
    LAG = 6
    NEARLY = OPT.get("dots_early", 20)
    for j in range(32):
        k.I(f"ds_read_b128 {v(X0+4*j, 4)}, {v(192+(j&7))} offset:{L_XI + (j>>3)*256}", tag=f"xf{j}")
        q = j - LAG
        if 0 <= q < NEARLY:
            k.wait_lg(f"xf{q}")
            for _ in range(8):
                k.I(dots.pop(0))
        elif j % 8 == 7 and j < 31:
            k.I("s_waitcnt lgkmcnt(8)")
    k.wait_lg_all()
    k.barrier()
    k.stamp("x in regs")
    k.I(f"s_mul_i32 {s(S_T2)}, {s(S_W)}, {128*3072}")
    k.I(f"s_lshl_b32 {s(S_T3)}, {s(S_W)}, 14")
    if L_KVI:
        k.I(f"s_add_u32 {s(S_T3)}, {s(S_T3)}, {L_KVI}")

    def some_dots(n):
        for _ in range(min(n, len(dots))):
            k.I(dots.pop(0))

    k._tag = "w"
    for n in range(16):
        k.I(f"s_add_u32 {s(S_OFF)}, {s(S_T2)}, {n*8*3072}")
        k.I(f"s_add_u32 m0, {s(S_T3)}, {n*1024}")
        k.dma(200, S_WQKV, s(S_OFF))
        some_dots(4)
    k._tag = None
    for r, ad in zip(MODA_REGS, MODA_ADDR):
        k.granule_loads([r], [ad], 4, None, "modA")
        some_dots(3)
    k.side_items = p1_side(k, regs=(243, 244, 245, 246))
    if not OPT.get("tloop"):
        for it in k.side_items:
            for t, tg in it:
                k.I(t, tag=tg)
            some_dots(3)
        k.side_items = []
    for t in dots:
        k.I(t)
    k.I("v_add_f32 v10, v10, v11")
    k.I("v_add_f32 v12, v12, v13")
    k.half_total(10, 11)
    k.half_total(12, 13)
    k.I("v_mul_f32 v10, 0x3b000000, v10")
    k.I("v_mul_f32 v12, 0x3b000000, v12")
    k.I("v_fma_f32 v12, -v10, v10, v12")
    k.I("v_max_f32 v12, 0, v12")
    k.I("v_add_f32 v12, 0x3727c5ac, v12")
    k.I(f"v_rsq_f32 {v(V_R)}, v12")
    k.I("v_sub_f32 v10, 0, v10")
    k.I(f"v_mul_f32 v11, v12, {v(V_R)}")
    k.I("v_cvt_pk_bf16_f32 v12, v10, v11")
    k.unpack(8, 9, 12)
    k.I("v_sub_f32 v8, v10, v8")
    k.I("v_sub_f32 v9, v11, v9")
    k.I("v_cvt_pk_bf16_f32 v13, v8, v9")
    k.I(f"s_mov_b32 {s(S_T0)}, 0x01000100")
    k.I(f"s_mov_b32 {s(S_T1)}, 0x03020302")
    k.I(f"v_perm_b32 {v(BEXT)}, v12, v12, {s(S_T0)}")
    k.I(f"v_perm_b32 {v(BEXT+1)}, v13, v13, {s(S_T0)}")
    k.I(f"v_perm_b32 {v(BEXT+2)}, v12, v12, {s(S_T1)}")
    k.I(f"v_perm_b32 {v(BEXT+3)}, v13, v13, {s(S_T1)}")
    k.I(f"v_cmp_gt_u32 vcc, 32, {v(V_LANE)}")
    for i in range(4):
        k.I(f"v_cndmask_b32 {v(BEXT+i)}, 0, {v(BEXT+i)}, vcc")
    k.stamp("stats")
    p1_rv(k)
    k.granule_verify(MODA_REGS, MODA_ADDR, "modA", 4, (2,), None, "modA")
    k.stamp("mod arrived")
    for base in (144, 160):
        k.I(f"v_pk_add_f32 {v(base,2)}, {v(base,2)}, {v(base+4,2)}")
        k.I(f"v_pk_add_f32 {v(base+8,2)}, {v(base+8,2)}, {v(base+12,2)}")
        k.I(f"v_pk_add_f32 {v(base,2)}, {v(base,2)}, {v(base+8,2)}")
    k.I("v_cvt_pk_bf16_f32 v204, v144, v145")
    k.I("v_cvt_pk_bf16_f32 v206, v160, v161")
    k.unpack(192, 193, 206)
    k.I("v_add_f32 v192, 1.0, v192")
    k.I("v_add_f32 v193, 1.0, v193")
    k.I("v_cvt_pk_bf16_f32 v12, v192, v193")
    k.I("v_and_b32 v192, 0xffff, v12")
    k.I("v_and_b32 v194, 0xffff, v204")
    k.I(f"v_and_b32 v196, {s(S_MASK)}, v12")
    k.I(f"v_and_b32 v198, {s(S_MASK)}, v204")
    for r in (192, 194, 196, 198):
        k.I(f"v_mov_b32 {v(r+1)}, {v(r)}")
    k.I("v_lshlrev_b32 v8, 5, v0")
    k.I(f"v_add_u32 v8, {L_CT}, v8")
    k.I("ds_write_b128 v8, v[192:195]")
    k.I("ds_write_b128 v8, v[196:199] offset:16")
    k.vmq = []
    k.wait_lg_all()
    k.barrier()
    k.stamp("P1 ready")
    k.stamp("c0", cyc=True) if STAMPS and "c0" in STAMPS else None


def p1_static(k):
    k.I(f"v_bfe_u32 v8, {v(V_LANE)}, 1, 2")
    k.I(f"v_bfe_u32 v9, {v(V_LANE)}, 4, 1")
    k.I("v_lshl_add_u32 v8, v9, 2, v8")
    k.I(f"v_bfe_u32 v9, {v(V_LANE)}, 3, 1")
    k.I(f"v_lshrrev_b32 v10, 5, {v(V_LANE)}")
    k.I("v_xor_b32 v9, v9, v10")
    k.I("v_lshl_add_u32 v8, v9, 3, v8")
    for i in range(8):
        k.I(f"v_cmp_eq_u32 vcc, {i}, v8")
        k.I(f"v_cndmask_b32 {v(MSK+i)}, 0, -1, vcc")
    lane_fields(k, s_=8, r_=9, c_=10, nh=11)
    lbase_bytes(k, 12, 11, 10, 13, 14)
    k.I("v_lshl_add_u32 v8, v8, 2, v9")
    k.I("v_lshlrev_b32 v13, 7, v8")
    k.I("v_lshrrev_b32 v9, 1, v9")
    k.I("v_lshl_add_u32 v13, v9, 6, v13")
    k.I(f"v_add_u32 {v(V_TRK)}, v13, v12")
    k.I(f"v_xor_b32 {v(V_TRV)}, 64, {v(V_TRK)}")
    k.I("v_lshlrev_b32 v13, 6, v8")
    k.I("v_add_u32 v13, v13, v12")
    k.I(f"v_add_u32 {v(V_TRQ)}, {L_QI}, v13")
    k.I(f"v_and_b32 v8, 31, {v(V_LANE)}")
    k.I("v_lshlrev_b32 v8, 4, v8")
    k.I(f"v_add_u32 {v(V_TAB)}, {L_CT}, v8")
    p1_sel(k)


def p1_w(j, p):
    if p == 0:
        return V_TRQ, j * 1024, 512
    return (V_TRK if p == 1 else V_TRV), L_KVI + j * 2048, 1024


def p1_main(k):
    def rd_e(B):
        return [(f"ds_read_b128 {v(EB[B & 1], 4)}, {v(V_TAB)} offset:{B*512}", f"e{B}")]

    def rd_w(B):
        out = []
        for a in range(2):
            for pi, p in enumerate((1, 2)):
                base, off, st = p1_w(2 * B + a, p)
                for rd in range(2):
                    out.append((f"ds_read_b64_tr_b16 {a_(16*(B&1) + 8*a + 4*pi + 2*rd, 2)}, {v(base)} offset:{off + rd*st}", f"w{B}_{a}{pi}"))
        return out

    def diag(B):
        return [f"v_and_b32 {v(DG+i)}, {v(EB[B & 1])}, {v(MSK+i)}" for i in range(8)]

    def pack(B):
        return [f"v_cvt_pk_bf16_f32 {v(X0 + 8*B + i)}, {v(DM + 2*i)}, {v(DM + 2*i + 1)}" for i in range(8)]

    def mod_mfma(B, i):
        if i < 2:
            k.mfma32(v(DM, 16), v(DG + 4 * i, 4), v(X0 + 8 * B + 4 * i, 4), "0" if i == 0 else None)
        else:
            k.mfma32(v(DM, 16), v(EB[B & 1], 4), v(BEXT, 4))

    def emit(items):
        for it in items:
            if isinstance(it, tuple):
                k.I(it[0], tag=it[1])
            else:
                k.I(it)

    side = k.side_items
    emit(rd_e(0) + rd_e(1) + rd_w(0))
    k.wait_lg("e0")
    emit(diag(0))
    for i in range(3):
        mod_mfma(0, i)
    k.wait_lg("e1")
    emit(diag(1))
    emit(pack(0))
    for B in range(16):
        nxt = B + 1 < 16
        w = rd_w(B + 1) if nxt else []
        e = rd_e(B + 2) if B + 2 < 16 else []
        dg = diag(B + 2) if B + 2 < 16 else []
        pk = pack(B + 1) if nxt else []

        def g(a, pi):
            k.wait_lg(f"w{B}_{a}{pi}")
            wf = a_(16 * (B & 1) + 8 * a + 4 * pi, 4)
            h = v(X0 + 8 * B + 4 * a, 4)
            c0 = "0" if (B == 0 and a == 0) else None
            if pi == 0:
                k.mfma32(v(AK, 16), wf, h, c0)
            else:
                k.mfma32(v(AV, 16), h, wf, c0)

        cut = (1, 4, 7) if OPT.get("p1ord", 1) else (2, 4, 6)
        if nxt:
            mod_mfma(B + 1, 0)
        emit(e + w[0:cut[0]])
        if nxt:
            mod_mfma(B + 1, 1)
        emit(w[cut[0]:cut[1]])
        if nxt:
            mod_mfma(B + 1, 2)
        emit(w[cut[1]:cut[2]])
        g(0, 0)
        emit(w[cut[2]:8])
        if dg:
            k.wait_lg(f"e{B+2}")
        emit(dg[0:3])
        g(0, 1)
        emit(dg[3:8])
        g(1, 0)
        emit(pk[0:4])
        g(1, 1)
        emit(pk[4:8])
        if side:
            emit(side.pop(0))
    assert not side
    k.stamp("p1 main")
    k.stamp("c1", cyc=True) if STAMPS and "c1" in STAMPS else None


def p1_q(k):
    def rd(j):
        base, off, st = p1_w(j, 0)
        return [(f"ds_read_b64_tr_b16 {a_(4*(j % 6) + 2*rd, 2)}, {v(base)} offset:{off + rd*st}", f"q{j}") for rd in range(2)]
    for j in range(32 + 4):
        if j < 32:
            for t, tg in rd(j):
                k.I(t, tag=tg)
        q = j - 4
        if q >= 0:
            k.wait_lg(f"q{q}")
            k.mfma32(v(AQ, 16), a_(4 * (q % 6), 4), v(X0 + 4 * q, 4), "0" if q == 0 else None)


def softmax16(k, P, E, outp, outn, t, filler=None, every=4):
    mx, mn = t, t + 2
    k.I(f"v_max3_f32 {v(mx)}, {v(P)}, {v(P+1)}, {v(P+2)}")
    k.I(f"v_min3_f32 {v(mn)}, {v(P)}, {v(P+1)}, {v(P+2)}")
    for i in range(3, 15, 2):
        k.I(f"v_max3_f32 {v(mx)}, {v(mx)}, {v(P+i)}, {v(P+i+1)}")
        k.I(f"v_min3_f32 {v(mn)}, {v(mn)}, {v(P+i)}, {v(P+i+1)}")
    k.I(f"v_max_f32 {v(mx)}, {v(mx)}, {v(P+15)}")
    k.I(f"v_min_f32 {v(mn)}, {v(mn)}, {v(P+15)}")
    k.I(f"v_mul_f32 {v(mx)}, {s(S_L2E)}, {v(mx)}")
    k.I(f"v_mul_f32 {v(mn)}, {s(S_L2E)}, {v(mn)}")
    for sign, m, out in ((+1, mx, outp), (-1, mn, outn)):
        for i in range(0, 16, 2):
            if sign > 0:
                k.I(f"v_pk_fma_f32 {v(E+i,2)}, {v(P+i,2)}, {s(S_L2E,2)}, {v(m,2)} op_sel_hi:[1,1,0] neg_lo:[0,0,1] neg_hi:[0,0,1]")
            else:
                k.I(f"v_pk_fma_f32 {v(E+i,2)}, {v(P+i,2)}, {s(S_L2E,2)}, {v(m,2)} op_sel_hi:[1,1,0] neg_lo:[1,0,0] neg_hi:[1,0,0]")
        for i in range(16):
            k.I(f"v_exp_f32 {v(E+i)}, {v(E+i)}")
            if filler and i % every == every - 1:
                for tt, tg in filler.pop(0):
                    k.I(tt, tag=tg)
        sm = t + 4
        k.I(f"v_pk_add_f32 {v(sm,2)}, {v(E,2)}, {v(E+2,2)}")
        for i in range(4, 16, 2):
            k.I(f"v_pk_add_f32 {v(sm,2)}, {v(sm,2)}, {v(E+i,2)}")
        k.I(f"v_add_f32 {v(sm)}, {v(sm)}, {v(sm+1)}")
        k.I(f"v_rcp_f32 {v(sm)}, {v(sm)}")
        for i in range(0, 16, 2):
            k.I(f"v_pk_mul_f32 {v(E+i,2)}, {v(E+i,2)}, {v(sm,2)} op_sel_hi:[1,0]")
        for i in range(8):
            k.I(f"v_cvt_pk_bf16_f32 {v(out+i)}, {v(E+2*i)}, {v(E+2*i+1)}")


PHI_A, PHI_B = 224, 228
SEL0, SEL1, SELN0, SELN1 = 232, 236, 240, 244
RV = 224
PK, VP = 144, 152
PP = 160
EE = 192
TMP = 208
FP, FN = 224, 232
TP, TN = 176, 160
KVA, KVB = 192, 240
QP, QN = 96, 104


def p1_sel(k):
    k.I(f"v_bfe_u32 v8, {v(V_LANE)}, 3, 1")
    k.I(f"v_and_b32 v9, 3, {v(V_LANE)}")
    k.I("v_lshl_add_u32 v8, v8, 2, v9")
    k.I("v_and_b32 v9, 1, v8")
    k.I("v_lshlrev_b32 v9, 4, v9")
    k.I("v_mov_b32 v10, 0x3f80")
    k.I("v_lshlrev_b32 v9, v9, v10")
    k.I("v_lshrrev_b32 v8, 1, v8")
    k.I(f"v_bfe_u32 v10, {v(V_LANE)}, 4, 1")
    k.I(f"v_bfe_u32 v11, {v(V_LANE)}, 2, 1")
    k.I(f"v_lshrrev_b32 v12, 5, {v(V_LANE)}")
    k.I("v_xor_b32 v11, v11, v12")
    k.I(f"v_cmp_eq_u32 {s(S_VALID,2)}, 0, v11")
    k.I("v_lshl_add_u32 v13, v10, 2, v8")
    k.I("v_lshl_add_u32 v13, v11, 3, v13")
    for neg, base in ((0, SEL0), (1, SELN0)):
        for a in range(2):
            for d in range(4):
                k.I(f"v_cmp_eq_u32 vcc, {8*neg + 4*a + d}, v13")
                k.I(f"v_cndmask_b32 v14, 0, v9, vcc")
                k.I(f"v_accvgpr_write_b32 {a_(base + 4*a + d)}, v14")


def p1_rv(k):
    k.wait_vm("phi")
    lane_fields(k, s_=8, r_=9, c_=10, nh=11)
    k.I("v_lshlrev_b32 v12, 9, v8")
    k.I("v_lshl_add_u32 v12, v9, 5, v12")
    k.I("v_lshlrev_b32 v13, 1, v11")
    k.I("v_lshrrev_b32 v14, 1, v10")
    k.I("v_add_u32 v13, v13, v14")
    k.I("v_lshl_add_u32 v12, v13, 3, v12")
    k.I(f"v_add_u32 v12, {L_PHI}, v12")
    k.I("v_and_b32 v13, 1, v10")
    k.I("v_cmp_eq_u32 vcc, v13, v8")
    for a in range(2):
        for rd in range(2):
            k.I(f"v_add_u32 v14, {(8*a+4*rd)*32}, v12")
            k.I(f"v_mov_b32 v15, {L_ZERO}")
            k.I("v_cndmask_b32 v14, v15, v14, vcc")
            k.I(f"ds_read_b64_tr_b16 {a_(PHI_A + 4*a + 2*rd, 2)}, v14", tag="phif")
    k.I(f"v_and_b32 v8, 31, {v(V_LANE)}")
    k.I("v_lshlrev_b32 v8, 2, v8")
    k.I(f"s_lshl_b32 {s(S_T0)}, {s(S_W)}, 7")
    k.I(f"s_add_u32 {s(S_T0)}, {s(S_T0)}, {L_RT}")
    k.I(f"v_add_u32 v8, {s(S_T0)}, v8")
    k.I(f"ds_write_b32 v8, {v(V_R)}", tag="rw")
    k.I(f"v_lshrrev_b32 v9, 5, {v(V_LANE)}")
    k.I("v_lshlrev_b32 v9, 4, v9")
    k.I(f"v_add_u32 v9, {s(S_T0)}, v9")
    k.wait_lg("rw")
    for q in range(4):
        k.I(f"ds_read_b128 {v(RV+4*q,4)}, v9 offset:{32*q}", tag="rv")
    k.wait_lg_all()


def p1_epilogue(k):
    k.barrier()
    for i in range(16):
        k.I(f"v_mul_f32 {v(AK+i)}, {v(V_R)}, {v(AK+i)}")
    for i in range(8):
        k.I(f"v_cvt_pk_bf16_f32 {v(PK+i)}, {v(AK+2*i)}, {v(AK+2*i+1)}")
    k.mfma32(v(PP, 16), a_(PHI_A, 4), v(PK, 4), "0")
    k.mfma32(v(PP, 16), a_(PHI_B, 4), v(PK + 4, 4))
    for i in range(16):
        k.I(f"v_mul_f32 {v(AV+i)}, {v(RV+i)}, {v(AV+i)}")
    for i in range(8):
        k.I(f"v_cvt_pk_bf16_f32 {v(VP+i)}, {v(AV+2*i)}, {v(AV+2*i+1)}")
    k.stamp("k proj")
    softmax16(k, PP, EE, FP, FN, TMP, filler=q_image_items(k))
    k.stamp("k softmax")
    k.mfma32(v(TP, 16), v(FP, 4), a_(SEL0, 4), "0")
    k.mfma32(v(TN, 16), v(FN, 4), a_(SELN0, 4), "0")
    k.mfma32(v(TP, 16), v(FP + 4, 4), a_(SEL1, 4))
    k.mfma32(v(TN, 16), v(FN + 4, 4), a_(SELN1, 4))
    for src, pk, z in ((TP, FP, TMP), (TN, FN, TMP + 2)):
        for i in range(8):
            k.I(f"v_cvt_pk_bf16_f32 {v(pk+i)}, {v(src+2*i)}, {v(src+2*i+1)}")
        if src == TP:
            k.mfma32(v(KVA, 16), v(FP, 4), v(VP, 4), "0")
            k.mfma32(v(KVA, 16), v(FP + 4, 4), v(VP + 4, 4))
        else:
            k.mfma32(v(KVB, 16), v(FN, 4), v(VP, 4), "0")
            k.mfma32(v(KVB, 16), v(FN + 4, 4), v(VP + 4, 4))
    for src, z in ((TP, TMP), (TN, TMP + 2)):
        k.I(f"v_add_f32 {v(z)}, {v(src)}, {v(src+1)}")
        k.I(f"v_add_f32 {v(z+1)}, {v(src+2)}, {v(src+3)}")
        for i in range(4, 16, 2):
            k.I(f"v_add_f32 {v(z)}, {v(z)}, {v(src+i)}")
            k.I(f"v_add_f32 {v(z+1)}, {v(z+1)}, {v(src+i+1)}")
    k.I(f"v_add_f32 {v(TMP+4)}, {v(TMP)}, {v(TMP+1)}")
    k.I(f"v_add_f32 {v(TMP+5)}, {v(TMP+2)}, {v(TMP+3)}")
    for i in range(16):
        k.I(f"v_cndmask_b32 {v(KVA+i)}, {v(KVB+i)}, {v(KVA+i)}, {s(S_VALID,2)}")
    k.stamp("kv mfma")
    k.I(f"s_mul_i32 {s(S_T0)}, {s(S_W)}, 4608")
    k.I(f"s_add_u32 {s(S_T0)}, {s(S_T0)}, {L_RED}")
    k.I(f"v_add_u32 v8, {s(S_T0)}, {v(V_L16)}")
    for q in range(4):
        k.I(f"ds_write_b128 v8, {v(KVA+4*q,4)} offset:{q*1024}")
    k.I(f"v_lshlrev_b32 v9, 3, {v(V_LANE)}")
    k.I(f"v_add_u32 v9, {s(S_T0)}, v9")
    k.I(f"ds_write_b64 v9, {v(TMP+4,2)} offset:4096")
    k.wait_lg_all()
    k.barrier()
    k.stamp("red barrier")
    k.I(f"s_lshl_b32 {s(S_T0)}, {s(S_W)}, 10")
    k.I(f"s_add_u32 {s(S_T0)}, {s(S_T0)}, {L_RED}")
    k.I(f"v_add_u32 v8, {s(S_T0)}, {v(V_L16)}")
    for ww in range(4):
        k.I(f"ds_read_b128 {v(KVA+4*ww,4)}, v8 offset:{ww*4608}")
    k.I(f"v_lshlrev_b32 v9, 3, {v(V_LANE)}")
    k.I(f"v_add_u32 v9, {L_RED + 4096}, v9")
    for ww in range(4):
        k.I(f"ds_read_b64 {v(KVB+2*ww,2)}, v9 offset:{ww*4608}")
    k.wait_lg_all()
    for h in (0, 2):
        k.I(f"v_pk_add_f32 {v(KVA+h,2)}, {v(KVA+h,2)}, {v(KVA+4+h,2)}")
        k.I(f"v_pk_add_f32 {v(KVA+8+h,2)}, {v(KVA+8+h,2)}, {v(KVA+12+h,2)}")
        k.I(f"v_pk_add_f32 {v(KVA+h,2)}, {v(KVA+h,2)}, {v(KVA+8+h,2)}")
    k.I(f"v_cvt_pk_bf16_f32 {v(KVA)}, {v(KVA)}, {v(KVA+1)}")
    k.I(f"v_cvt_pk_bf16_f32 {v(KVA+1)}, {v(KVA+2)}, {v(KVA+3)}")
    k.I(f"v_pk_add_f32 {v(KVB,2)}, {v(KVB,2)}, {v(KVB+2,2)}")
    k.I(f"v_pk_add_f32 {v(KVB+4,2)}, {v(KVB+4,2)}, {v(KVB+6,2)}")
    k.I(f"v_pk_add_f32 {v(KVB,2)}, {v(KVB,2)}, {v(KVB+4,2)}")
    k.I(f"v_cvt_pk_bf16_f32 {v(KVB)}, {v(KVB)}, {v(KVB+1)}")
    k.test_delay(3)
    k.I(f"v_mov_b32 {v(KVA+2)}, {v(KVB)}")
    k.I(f"v_mov_b32 {v(KVA+3)}, {v(V_TAG)}")
    k.I(f"s_lshl_b32 {s(S_T0)}, {s(S_HP)}, 4")
    k.I(f"s_add_u32 {s(S_T0)}, {s(S_T0)}, {s(S_M)}")
    k.I(f"s_lshl_b32 {s(S_T1)}, {s(S_T0)}, 12")
    k.I(f"s_lshl_b32 {s(S_T2)}, {s(S_W)}, 10")
    k.I(f"s_add_u32 {s(S_T1)}, {s(S_T1)}, {s(S_T2)}")
    k.I(f"s_add_u32 {s(S_T1)}, {s(S_T1)}, {WS_KVP}")
    k.I(f"buffer_store_dwordx4 {v(KVA,4)}, {v(V_L16)}, {srd(S_WS)}, {s(S_T1)} offen sc1", tag="kvst")
    k.wait_vm("wq")
    k.barrier()
    k.stamp("kv published")
    modn_issue(k)
    p1_q(k)
    k.stamp("q gemm")
    kv_addr(k)
    kv_loads(k, "kvp")
    for i in range(16):
        k.I(f"v_mul_f32 {v(AQ+i)}, {v(V_R)}, {v(AQ+i)}")
    for i in range(8):
        k.I(f"v_cvt_pk_bf16_f32 {v(160+i)}, {v(AQ+2*i)}, {v(AQ+2*i+1)}")
    k.mfma32(v(176, 16), a_(PHI_A, 4), v(160, 4), "0")
    k.mfma32(v(176, 16), a_(PHI_B, 4), v(164, 4))
    quad_ids(k)
    softmax16(k, 176, EE, QP, QN, TMP, filler=None if OPT.get("wo_kv", 1) else wo_items(k), every=2)
    k.stamp("q softmax")


S_UB = 101


S_UBO, S_MNO = 90, 91


def p1_side(k, regs):
    ra, rb, rc, rt = regs
    touch_setup(k, ra, rb, rc, rt)
    k.I(f"v_and_b32 {v(rc)}, 31, {v(V_LANE)}")
    k.I(f"v_mul_u32_u24 {v(rc)}, 6144, {v(rc)}")
    k.I(f"s_lshr_b32 {s(S_T0)}, {s(S_G)}, 2")
    k.I(f"s_lshl_b32 {s(S_T0)}, {s(S_T0)}, 7")
    k.I(f"s_and_b32 {s(S_T1)}, {s(S_G)}, 3")
    k.I(f"s_lshl_b32 {s(S_T1)}, {s(S_T1)}, 2")
    k.I(f"s_add_u32 {s(S_T1)}, {s(S_T1)}, {s(S_W)}")
    k.I(f"s_mul_i32 {s(S_T1)}, {s(S_T1)}, {32*6144}")
    k.I(f"s_add_u32 {s(S_MNO)}, {s(S_T0)}, {s(S_T1)}")
    k.I("s_sub_u32 s55, s2, 64")
    k.I("s_cmp_ge_u32 s55, 128")
    k.I(f"s_cselect_b32 {s(S_MNO)}, 0x7ff00000, {s(S_MNO)}")
    items = []
    if OPT["touch"]:
        if OPT.get("tmn", 1):
            items.append([(f"buffer_load_dword v5, {v(rc)}, {srd(S_WMOD)}, {s(S_MNO)} offen{' nt' if OPT.get('tmn_nt', 1) else ''}", "t")])
        for r, a in ((S_WO, ra), (S_WG, rb), (S_WU, rb)):
            items.append([(f"buffer_load_dword v5, {v(a)}, {srd(r)}, 0 offen", "t")])
        if OPT.get("twd", 0):
            items.append([(f"s_lshl_b32 {s(S_T0)}, s2, 2", None), (f"s_add_u32 {s(S_T0)}, {s(S_T0)}, {s(S_W)}", None),
                          (f"s_mul_i32 {s(S_T0)}, {s(S_T0)}, {14*128}", None), (f"v_min_u32 {v(rt)}, 13, {v(V_LANE)}", None),
                          (f"v_lshlrev_b32 {v(rt)}, 7, {v(rt)}", None),
                          (f"buffer_load_dword v5, {v(rt)}, {srd(S_WD)}, {s(S_T0)} offen", "t")])
    return items


def q_image_items(k):
    k.I(f"s_mul_i32 {s(S_T3)}, {s(S_W)}, {128*3072}")
    k.I(f"s_lshl_b32 {s(S_T4)}, {s(S_W)}, 13")
    k.I(f"s_add_u32 {s(S_T4)}, {s(S_T4)}, {L_QI}")
    return [[(f"s_add_u32 {s(S_OFF)}, {s(S_T3)}, {n*16*3072}", None), (f"s_add_u32 m0, {s(S_T4)}, {n*1024}", None),
             (f"buffer_load_dwordx4 v6, {srd(S_WQKV)}, {s(S_OFF)} offen lds", "wq")] for n in range(8)]


def modn_issue(k):
    skip = k.newlabel("mn_i")
    k.I("s_sub_u32 s55, s2, 64")
    k.I("s_cmp_ge_u32 s55, 128")
    k.I(f"s_cbranch_scc1 {skip}")
    k.cond_begin()
    wm_voff(k, 7, 8)
    k.I(f"s_mul_i32 {s(S_OFF)}, {s(S_W)}, {4*196608}")
    k.I(f"s_lshl_b32 {s(S_T0)}, {s(S_W)}, 12")
    k.I(f"s_add_u32 m0, {s(S_T0)}, {L_WMN}")
    for n in range(4):
        k.I(f"buffer_load_dwordx4 v7, {srd(S_WMOD)}, {s(S_OFF)} offen lds")
        if n < 3:
            k.I(f"s_add_u32 m0, m0, 1024")
            k.I(f"s_add_u32 {s(S_OFF)}, {s(S_OFF)}, 196608")
    k.cond_end()
    k.label(skip)


def ub_compute(k):
    skip = k.newlabel("ubc_skip")
    k.I(f"s_cmp_ge_u32 {s(S_I)}, 28")
    k.I(f"s_cbranch_scc1 {skip}")
    k.I(f"s_cmp_lt_u32 {s(S_W)}, 2")
    k.I(f"s_cbranch_scc1 {skip}")
    k.cond_begin()
    S_JOB, S_KH, S_BLK = S_T2, S_T3, S_T4
    k.I(f"s_lshr_b32 {s(S_T0)}, {s(S_XCD)}, 1")
    k.I(f"s_mul_i32 {s(S_JOB)}, {s(S_T0)}, 28")
    k.I(f"s_add_u32 {s(S_JOB)}, {s(S_JOB)}, {s(S_I)}")
    k.I(f"s_cmp_ge_u32 {s(S_JOB)}, 56")
    k.I(f"s_cselect_b32 {s(S_KH)}, 1, 0")
    k.I(f"s_mul_i32 {s(S_T0)}, {s(S_KH)}, 56")
    k.I(f"s_sub_u32 {s(S_BLK)}, {s(S_JOB)}, {s(S_T0)}")
    k.I(f"s_cmp_lt_u32 {s(S_BLK)}, 28")
    for i in range(4):
        k.I(f"s_cselect_b32 {s(S_UBS+i)}, {s(S_WG+i)}, {s(S_WU+i)}")
    k.I(f"s_cselect_b32 {s(S_T0)}, 0, 28")
    k.I(f"s_cselect_b32 {s(S_T1)}, 0, 56")
    k.I(f"s_sub_u32 {s(S_BLK)}, {s(S_BLK)}, {s(S_T0)}")
    k.I(f"s_and_b32 {s(S_T0)}, {s(S_XCD)}, 1")
    k.I(f"s_mul_i32 {s(S_T0)}, {s(S_T0)}, 28")
    k.I(f"s_add_u32 {s(S_BLK)}, {s(S_BLK)}, {s(S_T0)}")
    k.I(f"s_add_u32 {s(S_JOB)}, {s(S_BLK)}, {s(S_T1)}")
    k.I(f"v_lshrrev_b32 v112, 2, {v(V_LANE)}")
    k.I("v_mul_u32_u24 v112, 3584, v112")
    k.I(f"v_and_b32 v113, 3, {v(V_LANE)}")
    k.I("v_lshl_add_u32 v112, v113, 4, v112")
    k.I(f"s_lshl_b32 {s(S_T0)}, {s(S_BLK)}, 6")
    k.I(f"v_add_u32 v112, {s(S_T0)}, v112")
    k.I(f"s_mul_i32 {s(S_OFF)}, {s(S_KH)}, {256*3584}")
    k.I(f"s_and_b32 {s(S_T0)}, {s(S_W)}, 1")
    k.I(f"s_mul_i32 {s(S_T1)}, {s(S_T0)}, {128*3584}")
    k.I(f"s_add_u32 {s(S_OFF)}, {s(S_OFF)}, {s(S_T1)}")
    k.I(f"s_lshl_b32 {s(S_UBH)}, {s(S_T0)}, 13")
    k.I(f"s_add_u32 m0, {s(S_UBH)}, {L_UB}")
    for n in range(8):
        k.dma(112, S_UBS, s(S_OFF))
        if n < 7:
            k.I("s_add_u32 m0, m0, 1024")
            k.I(f"s_add_u32 {s(S_OFF)}, {s(S_OFF)}, {16*3584}")
    k.I(f"s_lshl_b32 {s(S_T0)}, {s(S_KH)}, 10")
    k.I(f"v_add_u32 v114, {s(S_T0)}, {v(V_L16)}")
    k.I(f"v_add_u32 v114, {WS_MODG + 768*8}, v114")
    k.load_granules_checked([116, 120], [114] * 2, "modU", width=4, tagpos=(1, 3), imm=[0, 2048])
    for i, r in enumerate((120, 122)):
        k.unpack(124, 125, r)
        k.I("v_add_f32 v124, 1.0, v124")
        k.I("v_add_f32 v125, 1.0, v125")
        k.I(f"v_cvt_pk_bf16_f32 {v(128+i)}, v124, v125")
    k.I("v_mov_b32 v130, v116")
    k.I("v_mov_b32 v131, v118")
    k.I("v_mov_b32 v132, 0")
    k.I("v_mov_b32 v133, 0")
    k.I(f"v_lshlrev_b32 v113, 3, {v(V_LANE)}")
    k.I(f"v_add_u32 v113, {L_CS}, v113")
    k.I("ds_write_b64 v113, v[128:129]")
    k.I("ds_write_b64 v113, v[130:131] offset:512")
    k.I("ds_write_b64 v113, v[132:133] offset:1024")
    k.I(f"v_and_b32 v113, 31, {v(V_LANE)}")
    k.I("v_min_u32 v113, 2, v113")
    k.I("v_lshlrev_b32 v113, 9, v113")
    k.I(f"v_lshrrev_b32 v114, 5, {v(V_LANE)}")
    k.I("v_lshl_add_u32 v113, v114, 4, v113")
    k.I(f"v_add_u32 v113, {L_CS}, v113")
    k.I(f"s_lshr_b32 {s(S_T0)}, {s(S_UBH)}, 5")
    k.I(f"v_add_u32 v113, {s(S_T0)}, v113")
    lane_fields(k, s_=114, r_=115, c_=116, nh=117)
    k.I("v_lshl_add_u32 v114, v114, 3, v115")
    k.I("v_lshlrev_b32 v114, 6, v114")
    k.I("v_lshl_add_u32 v114, v117, 5, v114")
    k.I("v_lshl_add_u32 v114, v116, 3, v114")
    k.I(f"v_add_u32 v114, {L_UB}, v114")
    k.I(f"v_add_u32 v114, {s(S_UBH)}, v114")
    k.I("s_waitcnt vmcnt(0) lgkmcnt(0)")
    for j in range(8 + 2):
        if j < 8:
            b = 116 + 8 * (j & 3)
            k.I(f"ds_read_b64_tr_b16 {v(b+4,2)}, v114 offset:{j*1024}")
            k.I(f"ds_read_b64_tr_b16 {v(b+6,2)}, v114 offset:{j*1024 + 256}")
            k.I(f"ds_read_b128 {v(b,4)}, v113 offset:{j*32}")
        if j >= 2:
            k.I(f"s_waitcnt lgkmcnt({6 if j < 8 else (3 if j == 8 else 0)})")
            bb = 116 + 8 * ((j - 2) & 3)
            k.mfma32(v(152, 16), v(bb, 4), v(bb + 4, 4), "0" if j == 2 else None)
    w3 = k.newlabel("ub_w3")
    k.wave_is(2, w3)
    k.I(f"v_lshlrev_b32 v113, 3, {v(V_LANE)}")
    k.I(f"v_add_u32 v113, {L_UBP}, v113")
    k.I("ds_write_b64 v113, v[152:153]")
    k.I("s_waitcnt lgkmcnt(0)")
    k.label(w3)
    k.I("v_accvgpr_write_b32 a244, v152")
    k.I("v_accvgpr_write_b32 a245, v153")
    k.I(f"s_mov_b32 {s(S_UBJ)}, {s(S_JOB)}")
    k.I(f"s_mov_b32 {s(S_UBK)}, {s(S_KH)}")
    k.cond_end()
    k.label(skip)


def ub_publish(k):
    skip = k.newlabel("ubp_skip")
    k.I(f"s_cmp_ge_u32 {s(S_I)}, 28")
    k.I(f"s_cbranch_scc1 {skip}")
    k.wave_is(3, skip)
    k.cond_begin()
    S_JOB, S_KH = S_UBJ, S_UBK
    k.test_delay(4)
    k.I(f"v_lshlrev_b32 v174, 3, {v(V_LANE)}")
    k.I(f"v_add_u32 v174, {L_UBP}, v174")
    k.I("ds_read_b64 v[154:155], v174")
    k.I("v_accvgpr_read_b32 v152, a244")
    k.I("v_accvgpr_read_b32 v153, a245")
    k.I("s_waitcnt lgkmcnt(0)")
    k.I("v_add_f32 v152, v152, v154")
    k.I("v_add_f32 v153, v153, v155")
    k.I("v_cvt_pk_bf16_f32 v168, v152, v153")
    k.unpack(170, 171, 168)
    k.I("v_sub_f32 v172, v152, v170")
    k.I("v_sub_f32 v173, v153, v171")
    k.I("v_cvt_pk_bf16_f32 v169, v172, v173")
    k.I(f"s_mov_b32 {s(S_T0)}, 0x05040100")
    k.I(f"s_mov_b32 {s(S_T1)}, 0x07060302")
    k.I(f"v_perm_b32 v176, v169, v168, {s(S_T0)}")
    k.I("v_mov_b32 v177, v168")
    k.I(f"v_perm_b32 v178, v168, v169, {s(S_T1)}")
    k.I(f"v_mov_b32 v179, {v(V_TAG)}")
    k.I(f"s_mul_i32 {s(S_T0)}, {s(S_KH)}, {3584*16}")
    k.I(f"s_lshl_b32 {s(S_T1)}, {s(S_JOB)}, 9")
    k.I(f"s_add_u32 {s(S_T0)}, {s(S_T0)}, {s(S_T1)}")
    k.I(f"s_add_u32 {s(S_T0)}, {s(S_T0)}, {WS_WEXT}")
    k.I(f"v_add_u32 v174, {s(S_T0)}, {v(V_L16)}")
    k.I("s_mov_b32 exec_hi, 0")
    k.I(f"buffer_store_dwordx4 v[176:179], v174, {srd(S_WS)}, 0 offen sc1")
    k.I("s_mov_b64 exec, -1")
    k.cond_end()
    k.label(skip)


S_UBH, S_UBJ, S_UBK = 32, 33, 34
L_UBP = L_UB
S_UBS = 12


def touch_setup(k, ra, rb, rc, rt):
    k.I(f"v_and_b32 {v(ra)}, 31, {v(V_LANE)}")
    k.I(f"v_lshlrev_b32 {v(ra)}, 7, {v(ra)}")
    k.I(f"s_lshl_b32 {s(S_T0)}, {s(S_I)}, 2")
    k.I(f"s_add_u32 {s(S_T0)}, {s(S_T0)}, {s(S_W)}")
    k.I(f"s_lshl_b32 {s(S_T1)}, {s(S_T0)}, 12")
    k.I(f"v_add_u32 {v(ra)}, {s(S_T1)}, {v(ra)}")
    k.I(f"v_min_u32 {v(rb)}, 55, {v(V_LANE)}")
    k.I(f"v_mul_u32_u24 {v(rc)}, 4682, {v(rb)}")
    k.I(f"v_lshrrev_b32 {v(rc)}, 16, {v(rc)}")
    k.I(f"v_mul_u32_u24 {v(rt)}, 14, {v(rc)}")
    k.I(f"v_sub_u32 {v(rb)}, {v(rb)}, {v(rt)}")
    k.I(f"v_lshlrev_b32 {v(rb)}, 7, {v(rb)}")
    k.I(f"v_mul_u32_u24 {v(rc)}, 3584, {v(rc)}")
    k.I(f"v_add_u32 {v(rb)}, {v(rb)}, {v(rc)}")
    k.I(f"s_mul_i32 {s(S_T0)}, {s(S_T0)}, {4*3584}")
    k.I(f"s_and_b32 {s(S_T1)}, {s(S_XCD)}, 1")
    k.I(f"s_mul_i32 {s(S_T1)}, {s(S_T1)}, 1792")
    k.I(f"s_add_u32 {s(S_T0)}, {s(S_T0)}, {s(S_T1)}")
    k.I(f"v_add_u32 {v(rb)}, {s(S_T0)}, {v(rb)}")


def wo_items(k):
    k.I(f"s_and_b32 {s(S_T0)}, {s(S_J2)}, 7")
    k.I(f"s_lshl_b32 {s(S_T0)}, {s(S_T0)}, 7")
    k.I(f"v_lshrrev_b32 v12, 3, {v(V_LANE)}")
    k.I("v_lshlrev_b32 v12, 10, v12")
    k.I(f"v_and_b32 v13, 7, {v(V_LANE)}")
    k.I(f"v_bfe_u32 v14, {v(V_LANE)}, 4, 1")
    k.I("v_lshlrev_b32 v14, 2, v14")
    k.I("v_xor_b32 v13, v13, v14")
    k.I("v_lshl_add_u32 v12, v13, 4, v12")
    k.I(f"v_add_u32 v12, {s(S_T0)}, v12")
    k.I(f"s_lshl_b32 {s(S_T3)}, {s(S_W)}, 17")
    k.I(f"s_lshl_b32 {s(S_T4)}, {s(S_W)}, 14")
    if L_WO:
        k.I(f"s_add_u32 {s(S_T4)}, {s(S_T4)}, {L_WO}")
    return [[(f"s_add_u32 {s(S_OFF)}, {s(S_T3)}, {n*8192}", None), (f"s_add_u32 m0, {s(S_T4)}, {n*1024}", None),
             (f"buffer_load_dwordx4 v12, {srd(S_WO)}, {s(S_OFF)} offen lds", "wo")] for n in range(16)]


def swz128_base(k, dst, cbk_sreg=None, cbk_imm=None, s_mul=16):
    lane_fields(k, s_=8, r_=9, c_=10, nh=11)
    lbase_bytes(k, 12, 11, 10, 13, 14)
    k.I(f"v_mul_u32_u24 v8, {s_mul}, v8")
    k.I("v_add_u32 v8, v8, v9")
    k.I("v_lshlrev_b32 v8, 7, v8")
    k.I("v_lshrrev_b32 v9, 1, v9")
    if cbk_sreg is not None:
        k.I(f"v_xor_b32 v9, {s(cbk_sreg)}, v9")
    elif cbk_imm:
        k.I(f"v_xor_b32 v9, {cbk_imm}, v9")
    k.I("v_lshl_add_u32 v8, v9, 6, v8")
    k.I(f"v_add_u32 {v(dst)}, v8, v12")


KV_PB = 16


def kv_addr(k):
    k.I(f"s_lshl_b32 {s(S_KVB)}, {s(S_HP)}, 16")
    k.I(f"s_lshl_b32 {s(S_T2)}, {s(S_W)}, 10")
    k.I(f"s_add_u32 {s(S_KVB)}, {s(S_KVB)}, {s(S_T2)}")
    k.I(f"s_add_u32 {s(S_KVB)}, {s(S_KVB)}, {WS_KVP}")


def kv_loads(k, tag):
    k.I(f"s_mov_b32 {s(S_OFF)}, {s(S_KVB)}")
    for mm in range(16):
        k.I(f"buffer_load_dwordx4 {v(KV_PB+4*mm,4)}, {v(V_L16)}, {srd(S_WS)}, {s(S_OFF)} offen sc1", tag=tag)
        if mm < 15:
            k.I(f"s_add_u32 {s(S_OFF)}, {s(S_OFF)}, 4096")


S_KVB = 35


def kv_combine_and_o(k):
    PB = KV_PB

    def check():
        k.I(f"v_cmp_ne_u32 vcc, {s(S_TAG)}, {v(PB+3)}")
        for mm in range(1, 16):
            k.I(f"v_cmp_ne_u32 {s(S_EX, 2)}, {s(S_TAG)}, {v(PB+4*mm+3)}")
            k.I(f"s_or_b64 vcc, vcc, {s(S_EX, 2)}")

    probe, ok, full, done = (k.newlabel(x) for x in ("kvp_probe", "kvp_seen", "kvp_full", "kvp_done"))
    k.I("v_mov_b32 v10, 0x3f80")
    k.I("v_mov_b32 v11, 0x3f800000")
    for r in range(176, 182):
        k.I(f"v_mov_b32 {v(r)}, 0")
    k.wait_vm("kvp")
    check()
    k.I(f"s_cbranch_vccz {done}")
    k.cond_begin()
    k.I(f"v_min_u32 v14, 15, {v(V_LANE)}")
    k.I("v_lshlrev_b32 v14, 12, v14")
    k.I(f"v_add_u32 v14, {s(S_KVB)}, v14")
    k.spin_init()
    k.label(probe)
    k.I(f"buffer_load_dword v15, v14, {srd(S_WS)}, 0 offen offset:12 sc1")
    k.I("s_waitcnt vmcnt(0)")
    k.I(f"v_cmp_ne_u32 vcc, {s(S_TAG)}, v15")
    k.spin_back(probe, ok)
    k.label(ok)
    k.label(full)
    kv_loads(k, None)
    k.I("s_waitcnt vmcnt(0)")
    check()
    k.spin_back(full, done)
    k.cond_end()
    k.label(done)
    k.stamp("kvp landed")
    wo = wo_items(k) if OPT.get("wo_kv", 1) else []
    for mm in range(16):
        for d in range(2):
            k.I(f"v_dot2c_f32_bf16 {v(176+2*d)}, {v(PB+4*mm+d)}, v10")
            k.I(f"v_dot2c_f32_bf16 {v(177+2*d)}, {v(PB+4*mm+d)}, v11")
        if wo and mm % 2 == 1:
            for t, tg in wo.pop(0):
                k.I(t, tag=tg)
    k.wo_rest = wo
    zs = k.newlabel("zsum")
    k.wave_is(0, zs)
    for mm in range(16):
        k.I(f"v_dot2c_f32_bf16 v180, {v(PB+4*mm+2)}, v10")
        k.I(f"v_dot2c_f32_bf16 v181, {v(PB+4*mm+2)}, v11")
    k.label(zs)
    k.I("s_nop 2")
    for i in range(6):
        k.I(f"v_mov_b32 {v(160+i)}, {v(176+i)}")
    k.I("v_cvt_pk_bf16_f32 v160, v160, v161")
    k.I("v_cvt_pk_bf16_f32 v161, v162, v163")
    k.I(f"v_lshlrev_b32 v8, 5, {v(V_LANE)}")
    k.I(f"s_lshl_b32 {s(S_T0)}, {s(S_W)}, 3")
    k.I(f"s_add_u32 {s(S_T0)}, {s(S_T0)}, {L_KVF}")
    k.I(f"v_add_u32 v8, {s(S_T0)}, v8")
    k.I("ds_write_b64 v8, v[160:161]")
    k.half_total(164, 166)
    k.half_total(165, 166)
    k.I("v_cvt_pk_bf16_f32 v164, v164, v165")
    k.I(f"v_bfe_u32 v8, {v(V_LANE)}, 2, 1")
    k.I(f"v_bfe_u32 v9, {v(V_LANE)}, 3, 2")
    k.I(f"v_and_b32 v10, 3, {v(V_LANE)}")
    k.I("v_lshl_add_u32 v9, v9, 2, v10")
    k.I("v_lshlrev_b32 v9, 1, v9")
    k.I("v_lshl_add_u32 v10, v8, 5, v9")
    k.I(f"v_add_u32 v10, {L_Z}, v10")
    k.I("v_xor_b32 v8, 1, v8")
    k.I("v_lshl_add_u32 v11, v8, 5, v9")
    k.I(f"v_add_u32 v11, {L_Z + 64}, v11")
    w0 = k.newlabel("zw")
    k.wave_is(0, w0)
    k.cond_begin()
    k.I("ds_write_b16 v10, v164")
    k.I("ds_write_b16_d16_hi v11, v164")
    k.cond_end()
    k.label(w0)
    for it in k.wo_rest[:4]:
        for t, tg in it:
            k.I(t, tag=tg)
    k.wait_lg_all()
    k.barrier()
    k.stamp("kvf barrier")
    k.I(f"v_lshlrev_b32 v8, 5, {v(V_LANE)}")
    k.I(f"v_add_u32 v8, {L_KVF}, v8")
    k.I(f"v_xor_b32 v9, 32, {v(V_LANE)}")
    k.I("v_lshlrev_b32 v9, 5, v9")
    k.I(f"v_add_u32 v9, {L_KVF}, v9")
    k.I(f"v_mov_b32 v10, {L_ZERO}")
    k.I(f"v_cndmask_b32 v8, v10, v8, {s(S_VALID,2)}")
    k.I(f"v_cndmask_b32 v9, v10, v9, {s(S_VALID,2)}")
    k.I(f"v_lshrrev_b32 v10, 5, {v(V_LANE)}")
    k.I("v_lshlrev_b32 v10, 5, v10")
    k.I(f"v_add_u32 v10, {L_Z}, v10")
    PF, NF, ZP, ZN = 112, 120, 128, 136
    k.I(f"ds_read_b128 {v(PF,4)}, v8")
    k.I(f"ds_read_b128 {v(PF+4,4)}, v8 offset:16")
    k.I(f"ds_read_b128 {v(NF,4)}, v9")
    k.I(f"ds_read_b128 {v(NF+4,4)}, v9 offset:16")
    k.I(f"ds_read_b128 {v(ZP,4)}, v10")
    k.I(f"ds_read_b128 {v(ZP+4,4)}, v10 offset:16")
    k.I(f"ds_read_b128 {v(ZN,4)}, v10 offset:64")
    k.I(f"ds_read_b128 {v(ZN+4,4)}, v10 offset:80")
    k.wait_lg_all()
    for it in k.wo_rest[4:]:
        for t, tg in it:
            k.I(t, tag=tg)
    NUM = 144
    k.mfma32(v(NUM, 16), v(PF, 4), v(QP, 4), "0")
    k.mfma32(v(NUM, 16), v(PF + 4, 4), v(QP + 4, 4))
    k.mfma32(v(NUM, 16), v(NF, 4), v(QN, 4))
    k.mfma32(v(NUM, 16), v(NF + 4, 4), v(QN + 4, 4))
    k.I("v_mov_b32 v10, 0")
    k.I("v_mov_b32 v11, 0")
    for i in range(8):
        k.I(f"v_dot2c_f32_bf16 v10, {v(QP+i)}, {v(ZP+i)}")
        k.I(f"v_dot2c_f32_bf16 v11, {v(QN+i)}, {v(ZN+i)}")
    k.I("v_add_f32 v10, v10, v11")
    k.I("v_add_f32 v10, 0x358637bd, v10")
    k.I("v_rcp_f32 v10, v10")
    for i in range(0, 16, 2):
        k.I(f"v_pk_mul_f32 {v(NUM+i,2)}, {v(NUM+i,2)}, v[10:11] op_sel_hi:[1,0]")
    for i in range(8):
        k.I(f"v_cvt_pk_bf16_f32 {v(160+i)}, {v(NUM+2*i)}, {v(NUM+2*i+1)}")
    k.stamp("o computed")
    k.I(f"s_lshl_b32 {s(S_T0)}, {s(S_M)}, 2")
    k.I(f"s_add_u32 {s(S_T0)}, {s(S_T0)}, {s(S_W)}")
    k.I(f"s_lshl_b32 {s(S_T0)}, {s(S_T0)}, 15")
    k.I(f"s_lshl_b32 {s(S_T1)}, {s(S_HP)}, 11")
    k.I(f"s_add_u32 {s(S_T0)}, {s(S_T0)}, {s(S_T1)}")
    k.I(f"s_add_u32 {s(S_T0)}, {s(S_T0)}, {WS_O}")
    k.I(f"v_add_u32 v8, {s(S_T0)}, {v(V_L16)}")
    k.I(f"buffer_store_dwordx4 v[160:163], v8, {srd(S_WS)}, 0 offen sc1")
    k.I(f"buffer_store_dwordx4 v[164:167], v8, {srd(S_WS)}, 0 offen offset:1024 sc1")
    k.wait_vm_all()
    k.I(f"s_lshl_b32 {s(S_T0)}, {s(S_M)}, 4")
    k.I(f"s_add_u32 {s(S_T0)}, {s(S_T0)}, {s(S_J)}")
    k.I(f"s_lshl_b32 {s(S_T0)}, {s(S_T0)}, 7")
    k.I(f"s_add_u32 {s(S_T0)}, {s(S_T0)}, {WS_FO}")
    k.signal(S_T0, "fo")
    k.stamp("o published")
    code_touch(k, 1, 0, t=(12, 13))


S_TBL, S_CBK, S_TB, S_B32 = 96, 97, 98, 99


def quad_ids(k):
    k.I(f"s_and_b32 {s(S_TBL)}, {s(S_W)}, 1")
    k.I(f"s_lshr_b32 {s(S_CBK)}, {s(S_W)}, 1")
    k.I(f"s_lshr_b32 {s(S_T0)}, {s(S_J2)}, 3")
    k.I(f"s_lshl_b32 {s(S_T0)}, {s(S_T0)}, 1")
    k.I(f"s_lshl_b32 {s(S_TB)}, {s(S_M2)}, 2")
    k.I(f"s_add_u32 {s(S_TB)}, {s(S_TB)}, {s(S_T0)}")
    k.I(f"s_add_u32 {s(S_TB)}, {s(S_TB)}, {s(S_TBL)}")
    k.I(f"s_and_b32 {s(S_B32)}, {s(S_J2)}, 7")
    k.I(f"s_lshl_b32 {s(S_B32)}, {s(S_B32)}, 1")
    k.I(f"s_add_u32 {s(S_B32)}, {s(S_B32)}, {s(S_CBK)}")


def mod16(k, dst_regs, gran0, stem):
    k.I(f"v_lshrrev_b32 v8, 5, {v(V_LANE)}")
    k.I("v_lshlrev_b32 v8, 6, v8")
    k.I(f"s_lshl_b32 {s(S_T0)}, {s(S_B32)}, 7")
    k.I(f"s_add_u32 {s(S_T0)}, {s(S_T0)}, {WS_MODG + gran0*8}")
    k.I(f"v_add_u32 v8, {s(S_T0)}, v8")
    k.load_granules_checked([dst_regs + 4 * i for i in range(4)], [8] * 4, stem, width=4, tagpos=(1, 3), imm=[0, 16, 32, 48])


VD = 4
S_M0, S_SO = 90, 91


def ring_setup(k):
    k.I(f"s_and_b32 {s(S_T0)}, {s(S_W)}, 1")
    k.I(f"s_cmp_eq_u32 {s(S_T0)}, 0")
    for i in range(4):
        k.I(f"s_cselect_b32 {s(S_SEL+i)}, {s(S_WG+i)}, {s(S_WU+i)}")
    for n in range(7):
        k.I(f"v_add_u32 v14, {64*n}, {v(V_LANE)}")
        k.I("v_mul_u32_u24 v15, 4682, v14")
        k.I("v_lshrrev_b32 v15, 16, v15")
        k.I(f"v_mul_u32_u24 {v(VD+n)}, 14, v15")
        k.I(f"v_sub_u32 v14, v14, {v(VD+n)}")
        k.I("v_mul_u32_u24 v15, 3584, v15")
        k.I("v_lshl_add_u32 v15, v14, 4, v15")
        k.I(f"s_mul_i32 {s(S_T0)}, {s(S_J)}, 224")
        k.I(f"v_add_u32 {v(VD+n)}, {s(S_T0)}, v15")
    for z in range(448):
        assert (z * 4682) >> 16 == z // 14
    k.I(f"s_lshr_b32 {s(S_T0)}, {s(S_W)}, 1")
    k.I(f"s_mul_i32 {s(S_M0)}, {s(S_T0)}, {SLAB}")
    k.I(f"s_and_b32 {s(S_T1)}, {s(S_W)}, 1")
    k.I(f"s_mul_i32 {s(S_T1)}, {s(S_T1)}, {UOFF}")
    k.I(f"s_add_u32 {s(S_M0)}, {s(S_M0)}, {s(S_T1)}")
    k.I(f"s_mul_i32 {s(S_SO)}, {s(S_T0)}, {32*3584}")


def ring_pair(k, P, as_list=False):
    out = [(f"s_add_u32 m0, {s(S_M0)}, {(P % 5) * 2 * SLAB}", None),
           (f"s_add_u32 {s(S_OFF)}, {s(S_SO)}, {P * 2 * 32 * 3584}", None)]
    for n in range(7):
        out.append((f"buffer_load_dwordx4 {v(VD+n)}, {srd(S_SEL)}, {s(S_OFF)} offen lds", f"W{P}"))
        if n < 6:
            out.append(("s_add_u32 m0, m0, 1024", None))
    if as_list:
        return out
    for t, tg in out:
        k.I(t, tag=tg)


def p2(k):
    XR, GA, CBR = 64, 72, 88
    k.I(f"v_and_b32 v12, 31, {v(V_LANE)}")
    k.I("v_lshlrev_b32 v12, 10, v12")
    k.I(f"v_lshrrev_b32 v13, 5, {v(V_LANE)}")
    k.I("v_lshl_add_u32 v12, v13, 5, v12")
    k.I(f"s_lshl_b32 {s(S_T0)}, {s(S_TB)}, 15")
    k.I(f"s_lshl_b32 {s(S_T1)}, {s(S_B32)}, 6")
    k.I(f"s_add_u32 {s(S_T0)}, {s(S_T0)}, {s(S_T1)}")
    k.I(f"v_add_u32 v12, {s(S_T0)}, v12")
    k.I(f"buffer_load_dwordx4 {v(XR,4)}, v12, {srd(S_X)}, 0 offen", tag="xr")
    k.I(f"buffer_load_dwordx4 {v(XR+4,4)}, v12, {srd(S_X)}, 0 offen offset:16", tag="xr")
    swz128_base(k, 15, cbk_sreg=S_CBK)
    for kap in range(32):
        hp, a = kap >> 1, kap & 1
        for rd in range(2):
            k.I(f"ds_read_b64_tr_b16 {a_(4*kap + 2*rd, 2)}, v15 offset:{L_WO + (32*hp + 8*a + 4*rd)*128}", tag="wof")
        if kap % 4 == 3:
            k.I("s_waitcnt lgkmcnt(6)")
    k.wait_lg_all()
    k.stamp("wof read")
    modn_compute(k)
    k.stamp("modn")
    ring_setup(k)
    k.I(f"v_lshrrev_b32 v13, 5, {v(V_LANE)}")
    k.I("v_lshlrev_b32 v13, 6, v13")
    k.I(f"s_lshl_b32 {s(S_T0)}, {s(S_B32)}, 7")
    k.I(f"s_add_u32 {s(S_T0)}, {s(S_T0)}, {WS_MODG}")
    k.I(f"v_add_u32 v13, {s(S_T0)}, v13")
    k.I(f"v_add_u32 v12, {512*8}, v13")
    k.I(f"v_add_u32 v13, {1024*8}, v13")
    gr = ([GA + 4 * i for i in range(4)] + [CBR + 4 * i for i in range(4)], [12] * 4 + [13] * 4)
    gimm = [0, 16, 32, 48] * 2
    k.I(f"s_lshl_b32 {s(S_T0)}, {s(S_M2)}, 11")
    k.I(f"s_add_u32 {s(S_T0)}, {s(S_T0)}, {WS_FO}")
    k.poll_flags(S_T0, 16, "po")
    k.stamp("o flags seen")
    k.I(f"s_sub_u32 {s(S_T0)}, {s(S_TB)}, {s(S_TBL)}")
    k.I(f"s_lshl_b32 {s(S_T0)}, {s(S_T0)}, 15")
    k.I(f"s_lshl_b32 {s(S_T1)}, {s(S_W)}, 14")
    k.I(f"s_add_u32 {s(S_T2)}, {s(S_T0)}, {s(S_T1)}")
    k.I(f"s_add_u32 {s(S_T2)}, {s(S_T2)}, {WS_O}")
    k.I(f"s_add_u32 {s(S_T3)}, {s(S_T1)}, {L_OI}")
    k.I(f"s_and_b32 {s(S_T4)}, {s(S_J2)}, 7")
    k.I(f"s_lshl_b32 {s(S_T4)}, {s(S_T4)}, 11")
    k._tag = "of"
    for n in range(16):
        k.I(f"s_add_u32 {s(S_T0)}, {s(S_T4)}, {n*1024}")
        k.I(f"s_and_b32 {s(S_T0)}, {s(S_T0)}, 0x3fff")
        k.I(f"s_add_u32 m0, {s(S_T3)}, {s(S_T0)}")
        k.I(f"s_add_u32 {s(S_OFF)}, {s(S_T2)}, {s(S_T0)}")
        k.dma(V_L16, S_WS, s(S_OFF), sc1=True)
    k._tag = None
    k.granule_loads(gr[0], gr[1], 4, gimm, "gacb")
    ring_a = []
    for P in range(3):
        cur = []
        for t, tg in ring_pair(k, P, as_list=True):
            cur.append((t, tg))
            if t.startswith("buffer_"):
                ring_a.append(cur)
                cur = []
    for _ in range(OPT.get("ring_a0", 8)):
        for t, tg in ring_a.pop(0):
            k.I(t, tag=tg)
    k.I(f"s_lshl_b32 {s(S_T0)}, {s(S_TBL)}, 15")
    k.I(f"s_add_u32 {s(S_T0)}, {s(S_T0)}, {L_OI}")
    k.I(f"v_add_u32 v14, {s(S_T0)}, {v(V_L16)}")
    k.wait_vm("of")
    k.barrier()
    k.stamp("o landed")
    GAF, C2F, XF = 144, 160, 176
    pre = [lambda: k.granule_verify(gr[0], gr[1], "gacb", 4, (1, 3), gimm, "gacb")]
    for i in range(8):
        g = GA + 4 * (i >> 1) + 2 * (i & 1)
        c = CBR + 4 * (i >> 1) + 2 * (i & 1)
        pre += [f"v_lshlrev_b32 {v(GAF+2*i)}, 16, {v(g)}", f"v_and_b32 {v(GAF+2*i+1)}, {s(S_MASK)}, {v(g)}",
                f"v_lshlrev_b32 {v(XF+2*i)}, 16, {v(XR+i)}", f"v_and_b32 {v(XF+2*i+1)}, {s(S_MASK)}, {v(XR+i)}",
                f"v_lshlrev_b32 {v(C2F+2*i)}, 16, {v(c)}", f"v_and_b32 {v(C2F+2*i+1)}, {s(S_MASK)}, {v(c)}",
                f"v_add_f32 {v(C2F+2*i)}, 1.0, {v(C2F+2*i)}", f"v_add_f32 {v(C2F+2*i+1)}, 1.0, {v(C2F+2*i+1)}",
                f"v_cvt_pk_bf16_f32 {v(c)}, {v(C2F+2*i)}, {v(C2F+2*i+1)}",
                f"v_lshlrev_b32 {v(C2F+2*i)}, 16, {v(c)}", f"v_and_b32 {v(C2F+2*i+1)}, {s(S_MASK)}, {v(c)}"]
    ACC = 112
    nb = 6
    for kap in range(32 + nb - 2):
        if kap < 32:
            k.I(f"ds_read_b128 {v(16 + 4*(kap % nb), 4)}, v14 offset:{kap*1024}", tag=f"o{kap}")
        q = kap - (nb - 2)
        if q >= 0:
            k.wait_lg(f"o{q}")
            k.mfma32(v(ACC, 16), a_(4 * q, 4), v(16 + 4 * (q % nb), 4), "0" if q == 0 else None)
            if ring_a and q % 2 == 0:
                for t, tg in ring_a.pop(0):
                    k.I(t, tag=tg)
            if q >= 6:
                for _ in range(4):
                    if pre:
                        it = pre.pop(0)
                        it() if callable(it) else k.I(it)
    assert not ring_a and not pre
    k.stamp("wo gemm")
    k.barrier()
    k.stamp("gacb ok")
    ring = []
    for P in range(3, 5):
        items = ring_pair(k, P, as_list=True)
        cur = []
        for t, tg in items:
            cur.append((t, tg))
            if t.startswith("buffer_"):
                ring.append(cur)
                cur = []

    def ring_some(n):
        for _ in range(min(n, len(ring))):
            for t, tg in ring.pop(0):
                k.I(t, tag=tg)

    T = 128
    X1 = 136
    YP = 128
    k.I("v_mov_b32 v40, 0")
    k.I("v_mov_b32 v41, 0")
    k.I("v_mov_b32 v42, 0x3f803f80")
    for i in range(16):
        k.I(f"v_fmac_f32 {v(XF+i)}, {v(GAF+i)}, {v(ACC+i)}")
    for i in range(8):
        k.I(f"v_cvt_pk_bf16_f32 {v(X1+i)}, {v(XF+2*i)}, {v(XF+2*i+1)}")
    ring_some(2)
    for i in range(8):
        k.unpack(XF + 2 * i, XF + 2 * i + 1, X1 + i)
    for i in range(8):
        k.I(f"v_pk_mul_f32 {v(XF+2*i,2)}, {v(XF+2*i,2)}, {v(C2F+2*i,2)}")
    for i in range(8):
        k.I(f"v_cvt_pk_bf16_f32 {v(YP+i)}, {v(XF+2*i)}, {v(XF+2*i+1)}")
    k.I(f"s_lshl_b32 {s(S_T0)}, {s(S_TB)}, 15")
    k.I(f"s_lshl_b32 {s(S_T1)}, {s(S_B32)}, 11")
    k.I(f"s_add_u32 {s(S_T0)}, {s(S_T0)}, {s(S_T1)}")
    k.I(f"s_add_u32 {s(S_T0)}, {s(S_T0)}, {WS_Y}")
    k.I(f"v_add_u32 v12, {s(S_T0)}, {v(V_L16)}")
    k.I(f"buffer_store_dwordx4 {v(YP,4)}, v12, {srd(S_WS)}, 0 offen sc1", tag="yst")
    k.I(f"buffer_store_dwordx4 {v(YP+4,4)}, v12, {srd(S_WS)}, 0 offen offset:1024 sc1", tag="yst")
    for i in range(8):
        k.I(f"v_dot2c_f32_bf16 v40, {v(X1+i)}, v42")
        k.I(f"v_dot2c_f32_bf16 v41, {v(X1+i)}, {v(X1+i)}")
    k.half_total(40, 43)
    k.half_total(41, 43)
    k.I(f"s_lshl_b32 {s(S_T0)}, {s(S_TB)}, 4")
    k.I(f"s_add_u32 {s(S_T0)}, {s(S_T0)}, {s(S_B32)}")
    k.I(f"s_lshl_b32 {s(S_T0)}, {s(S_T0)}, 8")
    k.I(f"s_add_u32 {s(S_T0)}, {s(S_T0)}, {WS_STATS}")
    k.I(f"v_lshlrev_b32 v12, 3, {v(V_LANE)}")
    k.I(f"v_add_u32 v12, {s(S_T0)}, v12")
    k.I("s_mov_b32 exec_hi, 0")
    k.I(f"buffer_store_dwordx2 v[40:41], v12, {srd(S_WS)}, 0 offen sc1", tag="yst")
    k.I("s_mov_b64 exec, -1")
    k.stamp("y stored")
    ring_some(OPT.get("ring_pre", 8))
    k.stamp("ring b")
    for i in range(8):
        k.I(f"v_accvgpr_write_b32 {a_(248+i)}, {v(X1+i)}")
    k.wait_vm("yst")
    k.I(f"s_lshl_b32 {s(S_T0)}, {s(S_M2)}, 4")
    k.I(f"s_add_u32 {s(S_T0)}, {s(S_T0)}, {s(S_J2)}")
    k.I(f"s_lshl_b32 {s(S_T0)}, {s(S_T0)}, 7")
    k.I(f"s_add_u32 {s(S_T0)}, {s(S_T0)}, {WS_FY}")
    k.signal(S_T0, "fy")
    noe = k.newlabel("noepoch")
    k.I("s_cmp_eq_u32 s2, 0")
    k.I(f"s_cbranch_scc0 {noe}")
    k.wave_is(0, noe)
    k.cond_begin()
    k.I("v_mov_b32 v12, 0")
    k.I("s_mov_b64 exec, 1")
    k.I(f"buffer_store_dword {v(V_TAG)}, v12, {srd(S_WS)}, 0 offen sc1")
    k.I("s_mov_b64 exec, -1")
    k.cond_end()
    k.label(noe)
    k.stamp("y published")
    ring_some(len(ring))
    ub_compute(k)
    k.stamp("ub")


def p3_tail(k, ST, AE, BE):
    it = [lambda: k.wait_vm("st")]
    for i in range(1, 8):
        it.append(f"v_add_f32 v16, v16, {v(ST+2*i)}")
        it.append(f"v_add_f32 v17, v17, {v(ST+2*i+1)}")
    for r in (16, 17):
        it += [f"v_mov_b32 v18, {v(r)}", "s_nop 1", f"v_permlane32_swap_b32 {v(r)}, v18", f"v_add_f32 {v(r)}, {v(r)}, v18"]
    it += ["v_mul_f32 v16, 0x3b000000, v16", "v_mul_f32 v17, 0x3b000000, v17", "v_fma_f32 v17, -v16, v16, v17",
           "v_max_f32 v17, 0, v17", "v_add_f32 v17, 0x3727c5ac, v17", "v_rsq_f32 v18, v17", "v_sub_f32 v16, 0, v16",
           "v_mul_f32 v19, v17, v18", "v_mul_f32 v20, v18, v18", "v_cvt_pk_bf16_f32 v22, v16, v19",
           "v_lshlrev_b32 v24, 16, v22", f"v_and_b32 v25, {s(S_MASK)}, v22", "v_sub_f32 v24, v16, v24", "v_sub_f32 v25, v19, v25",
           "v_cvt_pk_bf16_f32 v23, v24, v25",
           f"s_mov_b32 {s(S_T1)}, 0x01000100", f"v_perm_b32 {v(BE)}, v22, v22, {s(S_T1)}",
           f"s_mov_b32 {s(S_T1)}, 0x07060100", f"v_perm_b32 {v(BE+1)}, v22, v23, {s(S_T1)}",
           f"s_mov_b32 {s(S_T1)}, 0x07060302", f"v_perm_b32 {v(BE+2)}, v23, v22, {s(S_T1)}",
           f"v_mov_b32 {v(BE+3)}, 0", f"v_cmp_gt_u32 vcc, 32, {v(V_LANE)}"]
    it.append(lambda: [k.I(f"v_cndmask_b32 {v(BE+i)}, 0, {v(BE+i)}, vcc") for i in range(3)])
    regs = [AE + 28 * h + 4 * b for h in range(2) for b in range(7)]
    it.append(lambda: k.granule_verify(regs, [14] * 7 + [15] * 7, "wext", 4, (3,), [256 * b for b in range(7)] * 2, "wext"))
    it += [f"v_mov_b32 {v(r+3)}, 0" for r in regs]
    return it


def p3(k):
    Y0, ACC = 16, 144
    VTR = (11, 12, 13)
    lane_fields(k, s_=14, r_=15)
    k.I("v_lshl_add_u32 v14, v14, 4, v15")
    k.I("v_mul_u32_u24 v14, 224, v14")
    k.I(f"v_bfe_u32 v15, {v(V_LANE)}, 4, 1")
    k.I(f"v_mul_u32_u24 v15, {UOFF}, v15")
    k.I("v_add_u32 v14, v14, v15")
    k.I(f"v_and_b32 v15, 1, {v(V_LANE)}")
    k.I("v_lshl_add_u32 v14, v15, 4, v14")
    k.I(f"v_bfe_u32 v15, {v(V_LANE)}, 1, 1")
    k.I(f"v_lshl_add_u32 {v(VTR[0])}, v15, 3, v14")
    k.I(f"v_add_u32 {v(VTR[1])}, {4*SLAB}, {v(VTR[0])}")
    k.I(f"v_add_u32 {v(VTR[2])}, {8*SLAB}, {v(VTR[0])}")
    k.I(f"s_lshl_b32 {s(S_T0)}, {s(S_M)}, 11")
    k.I(f"s_add_u32 {s(S_T0)}, {s(S_T0)}, {WS_FY}")
    k.wait_vm_all()
    k.poll_flags(S_T0, 16, "py")
    k.stamp("y flags seen")
    S_TB3 = S_T2
    k.I(f"s_lshl_b32 {s(S_TB3)}, {s(S_M)}, 2")
    k.I(f"s_add_u32 {s(S_TB3)}, {s(S_TB3)}, {s(S_W)}")
    k.I(f"s_lshl_b32 {s(S_T3)}, {s(S_TB3)}, 15")
    k.I(f"s_add_u32 {s(S_T3)}, {s(S_T3)}, {WS_Y}")

    def ld_y(kap):
        out = []
        if kap and kap & 3 == 0:
            out.append((f"s_add_u32 {s(S_T3)}, {s(S_T3)}, 4096", None))
        out.append((f"buffer_load_dwordx4 {v(Y0+4*kap,4)}, {v(V_L16)}, {srd(S_WS)}, {s(S_T3)} offen offset:{(kap&3)*1024} sc1", f"y{kap}"))
        return out

    if OPT.get("coop", 0):
        k.I(f"v_and_b32 v14, 31, {v(V_LANE)}")
        k.I("v_lshlrev_b32 v14, 7, v14")
        k.I(f"s_and_b32 {s(S_T0)}, {s(S_J)}, 7")
        k.I(f"s_lshl_b32 {s(S_T0)}, {s(S_T0)}, 12")
        k.I(f"v_add_u32 v14, {s(S_T0)}, v14")
        k.I(f"buffer_load_dword v0, v14, {srd(S_WS)}, {s(S_T3)} offen", tag="t")
    NY0 = OPT.get('ny0', 20)
    for kap in range(NY0):
        for t, tg in ld_y(kap):
            k.I(t, tag=tg)

    def rd_w(kap, beta):
        B, a = kap >> 1, kap & 1
        P = B >> 1
        slot = (P % 5) * 2 + (B & 1)
        base = VTR[slot >> 2]
        return [(f"ds_read_b64_tr_b16 {a_(28*(kap&1) + 4*beta + 2*rd, 2)}, {v(base)} offset:{(slot & 3) * SLAB + (8*a + 4*rd)*224 + 32*beta}", f"w{kap}_{beta}") for rd in range(2)]

    ub_publish(k)
    for beta in range(7):
        for t, tg in rd_w(0, beta):
            k.I(t, tag=tg)
    side = []
    tail = []
    ST, AE, BE = 16, 32, 28
    for kap in range(32):
        P = kap >> 2
        if kap & 3 == 3 and P < 7:
            k.wait_vm(f"W{P+1}")
            if not OPT.get("x_nobar"):
                k.barrier()
            if 1 <= P <= 3 and not OPT.get("x_noring"):
                side += ring_pair(k, P + 4, as_list=True)
        if kap + NY0 < 32:
            side = ld_y(kap + NY0) + side
        if OPT["touch"] and kap == OPT.get("twdk", 24):
            side.append((f"s_lshl_b32 {s(S_T0)}, {s(S_I)}, 2", None))
            side.append((f"s_add_u32 {s(S_T0)}, {s(S_T0)}, {s(S_W)}", None))
            side.append((f"s_mul_i32 {s(S_T0)}, {s(S_T0)}, {112*128}", None))
            side.append((f"v_min_u32 v7, 55, {v(V_LANE)}", None))
            side.append(("v_lshlrev_b32 v7, 7, v7", None))
            side.append((f"buffer_load_dword v0, v7, {srd(S_WD)}, {s(S_T0)} offen", "t"))
            side.append((f"s_add_u32 {s(S_T0)}, {s(S_T0)}, {56*128}", None))
            side.append((f"buffer_load_dword v0, v7, {srd(S_WD)}, {s(S_T0)} offen", "t"))
        if kap == OPT.get('kst', 18):
            side.append((f"s_lshl_b32 {s(S_T0)}, {s(S_TB3)}, 12", None))
            side.append((f"s_add_u32 {s(S_T0)}, {s(S_T0)}, {WS_STATS}", None))
            side.append((f"v_and_b32 v14, 31, {v(V_LANE)}", None))
            side.append(("v_lshlrev_b32 v14, 3, v14", None))
            side.append((f"v_lshrrev_b32 v15, 5, {v(V_LANE)}", None))
            side.append(("v_lshl_add_u32 v14, v15, 11, v14", None))
            side.append((f"v_add_u32 v14, {s(S_T0)}, v14", None))
            for i in range(8):
                side.append((f"buffer_load_dwordx2 {v(ST+2*i,2)}, v14, {srd(S_WS)}, 0 offen offset:{i*256} sc1", "st"))
        if kap == OPT.get('kwx', 22):
            for t in (f"v_bfe_u32 v14, {v(V_LANE)}, 2, 1", "v_lshlrev_b32 v14, 3, v14", f"v_bfe_u32 v15, {v(V_LANE)}, 3, 1",
                      "v_lshl_add_u32 v14, v15, 2, v14", f"v_and_b32 v15, 3, {v(V_LANE)}", "v_add_u32 v14, v14, v15",
                      f"v_bfe_u32 v15, {v(V_LANE)}, 4, 1", "v_mul_u32_u24 v15, 1792, v15", "v_add_u32 v14, v14, v15",
                      f"s_mul_i32 {s(S_T0)}, {s(S_J)}, 112", f"v_add_u32 v14, {s(S_T0)}, v14", "v_lshlrev_b32 v14, 4, v14",
                      f"v_add_u32 v14, {WS_WEXT}, v14", f"v_add_u32 v15, {3584*16}, v14"):
                side.append((t, None))
            for h in range(2):
                for b in range(7):
                    side.append((f"buffer_load_dwordx4 {v(AE+28*h+4*b,4)}, {v(14+h)}, {srd(S_WS)}, 0 offen offset:{256*b} sc1", "wext"))
        if kap == OPT.get('kwd', 20):
            side += [(t, None) for t in wd_setup_items()]
        if kap == 23 and OPT.get("g0loop"):
            for it in wd_dma(0, WD_G1):
                side += it
        if kap == 26:
            tail = p3_tail(k, ST, AE, BE)
        k.wait_vm(f"y{kap}")
        if kap in (1, 8, 16, 24):
            k.stamp(f"p3 k{kap}")
        for beta in range(7):
            k.wait_lg(f"w{kap}_{beta}")
            k.mfma32(v(ACC + 16 * beta, 16), a_(28 * (kap & 1) + 4 * beta, 4), v(Y0 + 4 * kap, 4), "0" if kap == 0 else None)
            if kap + 1 < 32 and not OPT.get("x_notr"):
                for t, tg in rd_w(kap + 1, beta):
                    k.I(t, tag=tg)
            for _ in range(2):
                if tail:
                    it = tail.pop(0)
                    it() if callable(it) else k.I(it)
            nvm = 0
            while side and nvm < 1:
                t, tg = side.pop(0)
                k.I(t, tag=tg)
                if t.startswith("buffer_"):
                    nvm += 1
    for t, tg in side:
        k.I(t, tag=tg)
    assert not tail
    for h in range(2):
        for b in range(7):
            k.mfma32(v(ACC + 16 * b, 16), v(AE + 28 * h + 4 * b, 4), v(BE, 4))
    k.stamp("gate/up gemm")
    k.barrier()
    wd_bases(k)
    dm = wd_dma(WD_G1, WD_G2) if OPT.get("g0loop") else wd_dma(0, WD_G2)
    k.I(f"s_mul_i32 {s(S_T0)}, {s(S_TB3)}, 112")
    k.I(f"s_mul_i32 {s(S_T1)}, {s(S_J)}, 7")
    k.I(f"s_add_u32 {s(S_T0)}, {s(S_T0)}, {s(S_T1)}")
    k.I(f"s_lshl_b32 {s(S_T0)}, {s(S_T0)}, 10")
    k.I(f"s_add_u32 {s(S_AO)}, {s(S_T0)}, {WS_ACT}")

    def dma_some(n):
        for _ in range(n):
            for t, tg in dm.pop(0):
                k.I(t, tag=tg)

    for b in range(7):
        G = ACC + 16 * b
        U = G + 8
        o = 96 + 4 * b
        for e in range(0, 8, 2):
            k.I(f"v_pk_mul_f32 {v(U+e,2)}, {v(U+e,2)}, v[20:21] op_sel_hi:[1,0]")
        for e in range(8):
            k.I(f"v_max_f32 {v(G+e)}, 0, {v(G+e)}")
        for e in range(0, 8, 2):
            k.I(f"v_pk_mul_f32 {v(G+e,2)}, {v(G+e,2)}, {v(U+e,2)}")
        for e in range(0, 8, 2):
            k.I(f"v_cvt_pk_bf16_f32 {v(o+e//2)}, {v(G+e)}, {v(G+e+1)}")
        k.I(f"buffer_store_dwordx4 {v(o,4)}, {v(V_L16)}, {srd(S_WS)}, {s(S_AO)} offen offset:{(b&3)*1024} sc1", tag="ast")
        if b == 3:
            k.I(f"s_add_u32 {s(S_AO)}, {s(S_AO)}, 4096")
        if b < 6:
            dma_some(OPT.get("wd_mix", 2))
    k.stamp("act stored")
    dma_some(OPT.get("wd_pre", 8))

    def g0_reads():
        k.wait_vm(f"wd{WD_G1-1}")
        for kl in range(WD_G1):
            for t, tg in wd_reads(kl):
                k.I(t, tag=tg)
            if kl % 2 == 1:
                k.I("s_waitcnt lgkmcnt(4)")
    k.wait_vm("ast")
    k.I(f"s_lshl_b32 {s(S_T0)}, {s(S_M)}, 4")
    k.I(f"s_add_u32 {s(S_T0)}, {s(S_T0)}, {s(S_J)}")
    k.I(f"s_lshl_b32 {s(S_T0)}, {s(S_T0)}, 7")
    k.I(f"s_add_u32 {s(S_T0)}, {s(S_T0)}, {WS_FA}")
    k.signal(S_T0, "fa")
    k.stamp("act published")
    dma_some(len(dm))
    g0_reads()
    k.wait_lg_all()
    k.stamp("wf0 read")


S_AO = 91


S_WDB, S_WDT = 90, 12
S_WDO = 3
WD_TOP = 87552
WD_G1, WD_G2 = 9, 19
V_WD = 4
V_WB, V_WT = 5, 10


def wd_setup_items():
    return [f"s_and_b32 {s(S_T0)}, {s(S_J2)}, 7", f"s_lshl_b32 {s(S_T0)}, {s(S_T0)}, 7",
            f"v_lshrrev_b32 v4, 3, {v(V_LANE)}", "v_lshlrev_b32 v4, 10, v4", f"v_and_b32 v5, 7, {v(V_LANE)}",
            f"v_bfe_u32 v6, {v(V_LANE)}, 4, 1", "v_lshlrev_b32 v6, 2, v6", "v_xor_b32 v5, v5, v6",
            "v_lshl_add_u32 v4, v5, 4, v4", f"v_add_u32 v4, {s(S_T0)}, v4",
            f"s_mul_i32 {s(S_WDB)}, {s(S_W)}, 20480", f"s_mul_i32 {s(S_WDT)}, {s(S_W)}, 18432",
            f"s_add_u32 {s(S_WDT)}, {s(S_WDT)}, {WD_TOP}", f"s_mul_i32 {s(S_WDO)}, {s(S_W)}, {448*1024}"]


def wd_bases(k):
    swz128_base(k, 5, cbk_imm=0, s_mul=8)
    k.I(f"v_add_u32 v10, {s(S_WDT)}, v5")
    k.I("v_xor_b32 v11, 64, v10")
    k.I(f"v_add_u32 v5, {s(S_WDB)}, v5")
    k.I("v_xor_b32 v6, 64, v5")


def wd_slot(kl):
    if kl < WD_G1:
        return S_WDT, V_WT, kl * 2048
    if kl < WD_G2:
        return S_WDB, V_WB, (kl - WD_G1) * 2048
    return S_WDT, V_WT, (kl - WD_G2) * 2048


def wd_dma(k0, k1):
    out = []
    for kl in range(k0, k1):
        sb, _, off = wd_slot(kl)
        for h in range(2):
            out.append([(f"s_add_u32 {s(S_OFF)}, {s(S_WDO)}, {(16*kl + 8*h)*1024}", None),
                        (f"s_add_u32 m0, {s(sb)}, {off + h*1024}", None),
                        (f"buffer_load_dwordx4 v4, {srd(S_WD)}, {s(S_OFF)} offen lds", f"wd{kl}")])
    return out


def wd_reads(kl):
    _, vb, off = wd_slot(kl)
    return [(f"ds_read_b64_tr_b16 {a_((2*kl + cbk)*4 + 2*rd, 2)}, {v(vb+cbk)} offset:{off + rd*512}", f"wf{kl}")
            for cbk in range(2) for rd in range(2)]


def p4(k):
    GB = 176
    k.I(f"v_lshrrev_b32 v8, 5, {v(V_LANE)}")
    k.I("v_lshlrev_b32 v8, 6, v8")
    k.I(f"s_lshl_b32 {s(S_T0)}, {s(S_B32)}, 7")
    k.I(f"s_add_u32 {s(S_T0)}, {s(S_T0)}, {WS_MODG + 1280*8}")
    k.I(f"v_add_u32 v8, {s(S_T0)}, v8")
    greg = [GB + 4 * i for i in range(4)]
    for it in wd_dma(WD_G2, 28):
        for t, tg in it:
            k.I(t, tag=tg)
    k.I(f"s_lshl_b32 {s(S_T0)}, {s(S_M2)}, 11")
    k.I(f"s_add_u32 {s(S_T0)}, {s(S_T0)}, {WS_FA}")
    k.poll_flags(S_T0, 16, "pa")
    k.stamp("act flags seen")
    k.I(f"s_sub_u32 {s(S_T0)}, {s(S_TB)}, {s(S_TBL)}")
    k.I(f"s_mul_i32 {s(S_T0)}, {s(S_T0)}, {112*1024}")
    k.I(f"s_mul_i32 {s(S_T1)}, {s(S_W)}, {28*1024}")
    k.I(f"s_add_u32 {s(S_T0)}, {s(S_T0)}, {s(S_T1)}")
    S_A0, S_A1 = S_T3, S_T4
    k.I(f"s_add_u32 {s(S_A0)}, {s(S_T0)}, {WS_ACT}")
    k.I(f"s_add_u32 {s(S_A1)}, {s(S_A0)}, {112*1024}")
    NB = OPT.get("nb4", 12)
    AB = 16
    ACC = 192

    def ld(kl):
        out = []
        for tbl in range(2):
            r = AB + 8 * (kl % NB) + 4 * tbl
            out.append((f"buffer_load_dwordx4 {v(r,4)}, {v(V_L16)}, {srd(S_WS)}, {s(S_A0 + tbl)} offen offset:{(kl&3)*1024} sc1", f"a{kl}"))
        if kl & 3 == 3:
            out.append((f"s_add_u32 {s(S_A0)}, {s(S_A0)}, 4096", None))
            out.append((f"s_add_u32 {s(S_A1)}, {s(S_A1)}, 4096", None))
        return out

    for kl in range(NB):
        for t, tg in ld(kl):
            k.I(t, tag=tg)
    k.granule_loads(greg, [8] * 4, 4, [0, 16, 32, 48], "gb")
    GBF, X1F = 112, 128
    pre = [lambda: k.granule_verify(greg, [8] * 4, "gb", 4, (1, 3), [0, 16, 32, 48], "gb")]
    for i in range(8):
        g = GB + 4 * (i >> 1) + 2 * (i & 1)
        pre += [f"v_lshlrev_b32 {v(GBF+2*i)}, 16, {v(g)}", f"v_and_b32 {v(GBF+2*i+1)}, {s(S_MASK)}, {v(g)}",
                f"v_accvgpr_read_b32 v144, {a_(248+i)}", f"v_lshlrev_b32 {v(X1F+2*i)}, 16, v144", f"v_and_b32 {v(X1F+2*i+1)}, {s(S_MASK)}, v144"]
    for kl in range(28):
        k.wait_vm(f"a{kl}")
        if kl in (1, 7, 14, 21):
            k.stamp(f"p4 k{kl}")
        rds = wd_reads(kl + 3) if WD_G1 <= kl + 3 < 28 else []
        if kl >= WD_G1:
            k.wait_lg(f"wf{kl}")
        nxt = ld(kl + NB) if kl + NB < 28 else []
        for tbl in range(2):
            for cbk in range(2):
                r = AB + 8 * (kl % NB) + 4 * tbl
                k.mfma32(v(ACC + 16 * (2 * cbk + tbl), 16), a_((2 * kl + cbk) * 4, 4), v(r, 4), "0" if kl == 0 else None)
                if rds:
                    t, tg = rds.pop(0)
                    k.I(t, tag=tg)
                if tbl == 1 and nxt:
                    t, tg = nxt.pop(0)
                    k.I(t, tag=tg)
                if kl >= 10 and pre:
                    it = pre.pop(0)
                    it() if callable(it) else k.I(it)
        for t, tg in nxt:
            k.I(t, tag=tg)
    assert not pre
    k.stamp("down gemm")
    k.wait_lg_all()
    k.barrier()
    k.I(f"s_lshl_b32 {s(S_T0)}, {s(S_W)}, 12")
    k.I(f"v_add_u32 v8, {s(S_T0)}, {v(V_L16)}")
    k.I(f"v_add_u32 v9, 32768, v8")
    for q in range(4):
        sk = k.newlabel("r4w")
        k.I(f"s_cmp_eq_u32 {s(S_W)}, {q}")
        k.I(f"s_cbranch_scc1 {sk}")
        k.cond_begin()
        for i in range(4):
            base = 8 if q < 2 else 9
            k.I(f"ds_write_b128 {v(base)}, {v(ACC+16*q+4*i,4)} offset:{(q&1)*16384 + i*1024}")
        k.cond_end()
        k.label(sk)
    k.wait_lg_all()
    k.barrier()
    k.I(f"s_lshl_b32 {s(S_T0)}, {s(S_W)}, 14")
    k.I(f"v_add_u32 v8, {s(S_T0)}, {v(V_L16)}")
    for d in range(1, 4):
        k.I(f"s_add_u32 {s(S_T1)}, {s(S_W)}, {d}")
        k.I(f"s_and_b32 {s(S_T1)}, {s(S_T1)}, 3")
        k.I(f"s_lshl_b32 {s(S_T1)}, {s(S_T1)}, 12")
        k.I(f"v_add_u32 v9, {s(S_T1)}, v8")
        for i in range(4):
            k.I(f"ds_read_b128 {v(32+16*(d-1)+4*i,4)}, v9 offset:{i*1024}")
    for q in range(4):
        sk = k.newlabel("r4m")
        k.I(f"s_cmp_eq_u32 {s(S_W)}, {q}")
        k.I(f"s_cbranch_scc0 {sk}")
        for i in range(0, 16, 2):
            k.I(f"v_pk_mul_f32 {v(16+i,2)}, {v(ACC+16*q+i,2)}, 1.0 op_sel_hi:[1,0]")
        k.label(sk)
    k.wait_lg_all()
    for d in range(3):
        for i in range(0, 16, 2):
            k.I(f"v_pk_add_f32 {v(16+i,2)}, {v(16+i,2)}, {v(32+16*d+i,2)}")
    for i in range(16):
        k.I(f"v_fmac_f32 {v(X1F+i)}, {v(GBF+i)}, {v(16+i)}")
    for i in range(8):
        k.I(f"v_cvt_pk_bf16_f32 {v(88+i)}, {v(X1F+2*i)}, {v(X1F+2*i+1)}")
    k.I(f"v_and_b32 v8, 31, {v(V_LANE)}")
    k.I("v_lshlrev_b32 v8, 10, v8")
    k.I(f"v_lshrrev_b32 v9, 5, {v(V_LANE)}")
    k.I("v_lshl_add_u32 v8, v9, 5, v8")
    k.I(f"s_lshl_b32 {s(S_T0)}, {s(S_TB)}, 15")
    k.I(f"s_lshl_b32 {s(S_T1)}, {s(S_B32)}, 6")
    k.I(f"s_add_u32 {s(S_T0)}, {s(S_T0)}, {s(S_T1)}")
    k.I(f"v_add_u32 v8, {s(S_T0)}, v8")
    fl = {0: "", 1: " sc1", 2: " nt", 3: " sc0 sc1"}[OPT.get("outst", 0)]
    k.I(f"buffer_store_dwordx4 v[88:91], v8, {srd(S_OUT)}, 0 offen{fl}")
    k.I(f"buffer_store_dwordx4 v[92:95], v8, {srd(S_OUT)}, 0 offen offset:16{fl}")
    k.stamp("out stored")


def finish(k):
    if k.diag == "dbg":
        sk = k.newlabel("fin")
        k.wave_is(0, sk)
        k.I("s_load_dwordx2 s[92:93], s[0:1], 88")
        k.I("s_waitcnt lgkmcnt(0)")
        k.I("s_mov_b32 s94, 256")
        k.I("s_mov_b32 s95, 0x20000")
        k.I("s_mov_b64 exec, 1")
        sel = k.dbg_sel
        for slot, i in enumerate(sel):
            k.I(f"v_mov_b32 v9, {s(S_STAMP+i)}")
            if slot == 0:
                k.I("v_not_b32 v9, v9")
            k.I(f"v_mov_b32 v8, {4*slot}")
            k.I(f"buffer_atomic_umax v9, v8, s[92:95], 0 offen")
        k.label(sk)
    elif k.diag:
        sk = k.newlabel("fin")
        k.wave_is(0, sk)
        k.I(f"s_lshl_b32 {s(S_T0)}, s2, 7")
        k.I(f"s_add_u32 {s(S_T0)}, {s(S_T0)}, {WS_STAMP}")
        k.I(f"v_mov_b32 v8, {s(S_T0)}")
        k.I("s_mov_b64 exec, 1")
        for i in range(k.nstamp):
            k.I(f"v_mov_b32 v9, {s(S_STAMP+i)}")
            k.I(f"buffer_store_dword v9, v8, {srd(S_WS)}, 0 offen offset:{4*i}")
        k.label(sk)
    k.label("L_end")
    k.I("s_endpgm")


def build(diag=False, stop=None):
    k = K(diag, stop)
    phases = [prologue, start_phase, p1_prologue, p1_main, p1_epilogue,
              kv_combine_and_o, p2, p3, p4]
    for ph in phases:
        k.comment(f"======== {ph.__name__} ========")
        ph(k)
        if stop == ph.__name__:
            break
    k.dbg_sel = list(range(min(k.nstamp, 16)))
    if k.nstamp > 16:
        k.dbg_sel = [0, 1, 3, 4, 5, 7, 8, 9, 10, 11, 12, 13, 14, 15, 16, 17][:16]
    finish(k)
    hdr = open("cdna_kernels/" + NAME + ".s.ref").read().split("; Override launch geometry")[0]
    txt = hdr
    txt += f"; @launch grid=(256,1,1) block=(256,1,1) lds={LDS_BYTES}\n"
    txt += '.amdgcn_target "amdgcn-amd-amdhsa--gfx950"\n.text\n'
    txt += f".globl {NAME}_kernel\n.p2align 8\n.type {NAME}_kernel,@function\n{NAME}_kernel:\n"
    txt += k.text()
    txt += f""".section .rodata,"a"
.p2align 6
.amdhsa_kernel {NAME}_kernel
  .amdhsa_next_free_vgpr 512
  .amdhsa_next_free_sgpr 102
  .amdhsa_accum_offset 256
  .amdhsa_group_segment_fixed_size 0
  .amdhsa_kernarg_size 104
  .amdhsa_user_sgpr_count 2
  .amdhsa_user_sgpr_kernarg_segment_ptr 1
  .amdhsa_system_sgpr_workgroup_id_x 1
.end_amdhsa_kernel
"""
    return txt, k


if __name__ == "__main__":
    out = sys.argv[1] if len(sys.argv) > 1 else "k.s"
    for a in sys.argv:
        if a.startswith("--opt="):
            for kv in a[6:].split(","):
                kk, vv = kv.split("=")
                OPT[kk] = int(vv)
    diag = "--diag" in sys.argv
    if "--dbg" in sys.argv:
        diag = "dbg"
    stop = None
    for a in sys.argv:
        if a.startswith("--stop="):
            stop = a.split("=")[1]
    txt, k = build(diag, stop)
    open(out, "w").write(txt)
    if OPT.get("tmo"):
        open(out + ".tmo", "w").write("\n".join(k.tmo_names) + "\n")
    if diag:
        open(out + ".stamps", "w").write("\n".join(k.stamp_names) + "\n")
    print(f"wrote {out}: {len(txt)} bytes, {sum(1 for l in k.out if l.startswith(chr(9)))} instructions, {k.nops} hazard nops")
```

```python
import sys
from asmlib import Asm

NAME = "adaLN_cond__linear_kernel_hedgehog__glu_gated_reglu__prompt"

WS_E = 0
WS_MODG = 0x1000
WS_FKV = 0x4000
WS_FO = 0xC000
WS_FY = 0x14000
WS_FA = 0x1C000
WS_STAMP = 0x30000
WS_WEXT = 0x40000
WS_STATS = 0x80000
WS_MODC = 0x60000
WS_KVP = 0x100000
WS_O = 0x200000
WS_Y = 0x400000
WS_ACT = 0x800000

L_XI = 0
L_WI = 0
L_WM = 131072
L_S = 158720
L_RT = 159744
L_WMN = 114688
L_KVI = 0
L_QI = 65536
L_GP = 148480
L_CT = 139264
L_PHI = 153600
L_ZERO = 154624
L_RED = 0
L_KVF = 149504
L_Z = 151552
L_UB = 145920
L_CS = 162304
L_WO = 0
L_OI = 98304
SLAB = 14592
UOFF = 7296
LDS_BYTES = 163840

S_X, S_WQKV, S_WPHI, S_WO, S_WG, S_WU, S_WD, S_C, S_WMOD, S_OUT, S_WS = 4, 8, 12, 16, 20, 24, 28, 32, 36, 40, 44
S_XCD, S_I, S_M, S_J, S_W, S_TAG, S_MASK = 48, 49, 50, 51, 52, 53, 54
S_T0, S_T1, S_T2, S_T3, S_T4 = 55, 56, 57, 58, 59
S_CLK = 60
S_L2E = 62
S_SPIN = 64
S_OFF = 65
S_VALID = 66
S_EX = 68
S_M2, S_J2 = 70, 71
S_STAMP = 72
S_SEL = 92
S_HP = S_J

LOG2E = 0x3FB8AA3B
SPIN_MAX = 200000


def srd(i):
    return f"s[{i}:{i+3}]"


def v(i, n=1):
    return f"v{i}" if n == 1 else f"v[{i}:{i+n-1}]"


def a_(i, n=1):
    return f"a{i}" if n == 1 else f"a[{i}:{i+n-1}]"


def s(i, n=1):
    return f"s{i}" if n == 1 else f"s[{i}:{i+n-1}]"


V_LANE, V_L16, V_TAG = 1, 2, 3
V_DUMMY = 15
OPT = dict(xunroll=11, codepf=1, touch=1, tw0=1, mall=0, nt_wm=1, tmn_nt=0, kst=16, kwx=18, kwd=22, twdk=20)


import os
STAMPS = os.environ.get('STAMPS', 'start,wmod landed,x in regs,mod arrived,P1 ready,p1 main,kv published,q softmax,kv flags seen,o published,o flags seen,wo gemm,y published,y flags seen,gate/up gemm,act published,act flags seen,out stored').split(',')


class K(Asm):
    def __init__(self, diag=False, stop=None):
        super().__init__()
        self.diag = diag
        self.stop = stop
        self.nstamp = 0

    def stamp(self, name, cyc=False):
        if not self.diag:
            return
        if STAMPS is not None and name not in STAMPS:
            return
        if cyc:
            self.wait_lg_all()
            self.I(f"s_memtime {s(S_CLK, 2)}")
            self.I("s_waitcnt lgkmcnt(0)")
            self.I(f"s_mov_b32 {s(S_STAMP + self.nstamp)}, {s(S_CLK)}")
            self.stamp_names = getattr(self, "stamp_names", []) + [name + " (cyc)"]
            self.nstamp += 1
            return
        self.wait_lg_all()
        self.I(f"s_memrealtime {s(S_CLK, 2)}")
        self.I("s_waitcnt lgkmcnt(0)")
        self.I(f"s_mov_b32 {s(S_STAMP + self.nstamp)}, {s(S_CLK)}")
        self.stamp_names = getattr(self, "stamp_names", []) + [name]
        self.nstamp += 1
        assert self.nstamp <= 18, self.stamp_names

    def wave_is(self, w, label_else):
        self.I(f"s_cmp_eq_u32 {s(S_W)}, {w}")
        self.I(f"s_cbranch_scc0 {label_else}")

    def mfma32(self, d, a, b, c=None):
        c = d if c is None else c
        self.I(f"v_mfma_f32_32x32x16_bf16 {d}, {a}, {b}, {c}")

    def test_delay(self, which):
        if OPT.get("x_delay") != which:
            return
        l = self.newlabel("dly")
        d = self.newlabel("dly_done")
        self.I("s_and_b32 s55, s2, 31")
        self.I("s_cmp_eq_u32 s55, 5")
        self.I(f"s_cbranch_scc0 {d}")
        self.I("s_mov_b32 s55, 200")
        self.label(l)
        self.I("s_sleep 8")
        self.I("s_sub_u32 s55, s55, 1")
        self.I("s_cmp_lg_u32 s55, 0")
        self.I(f"s_cbranch_scc1 {l}")
        self.label(d)

    def spin_init(self):
        self.I(f"s_mov_b32 {s(S_SPIN)}, {SPIN_MAX}")

    def spin_back(self, loop, done):
        self.I(f"s_cbranch_vccz {done}")
        self.I(f"s_sub_u32 {s(S_SPIN)}, {s(S_SPIN)}, 1")
        self.I(f"s_cmp_lg_u32 {s(S_SPIN)}, 0")
        self.I(f"s_cbranch_scc1 {loop}")
        if OPT.get("tmo"):
            self.ntmo = getattr(self, "ntmo", 0) + 1
            self.tmo_names = getattr(self, "tmo_names", []) + [loop]
            self.I(f"s_lshl_b32 {s(S_EX)}, s2, 2")
            self.I(f"s_add_u32 {s(S_EX)}, {s(S_EX)}, {s(S_W)}")
            self.I(f"s_lshl_b32 {s(S_EX)}, {s(S_EX)}, 6")
            self.I(f"s_add_u32 {s(S_EX)}, {s(S_EX)}, {0x70000 + 4*self.ntmo}")
            self.I(f"v_mov_b32 v250, {s(S_EX)}")
            self.I(f"s_mov_b32 {s(S_EX)}, vcc_lo")
            self.I(f"v_mov_b32 v251, {s(S_EX)}")
            self.I(f"buffer_store_dword v251, v250, {srd(S_WS)}, 0 offen sc1")

    def unpack(self, lo, hi, src):
        self.I(f"v_lshlrev_b32 {v(lo)}, 16, {v(src)}")
        self.I(f"v_and_b32 {v(hi)}, {s(S_MASK)}, {v(src)}")

    def half_total(self, r, tmp):
        self.I(f"v_mov_b32 {v(tmp)}, {v(r)}")
        self.I(f"v_permlane32_swap_b32 {v(r)}, {v(tmp)}")
        self.I(f"v_add_f32 {v(r)}, {v(r)}, {v(tmp)}")

    def dma(self, voff, rsrc, soff, sc1=False):
        nt = " nt" if OPT.get("nt_" + str(self._tag)) else ""
        self.I(f"buffer_load_dwordx4 {v(voff)}, {srd(rsrc)}, {soff} offen{' sc1' if sc1 else ''}{nt} lds", tag=self._tag)

    _tag = None

    def touch(self, rsrc, voff, soff, tag="t", dst=None):
        nt = " nt" if OPT.get("nt_t") else ""
        self.I(f"buffer_load_dword {v(V_DUMMY if dst is None else dst)}, {v(voff)}, {srd(rsrc)}, {soff} offen{nt}", tag=tag)

    def poll_flags(self, base_sreg, n, stem, tmp=14):
        done = self.newlabel(stem + "_skip")
        loop = self.newlabel(stem + "_loop")
        ok = self.newlabel(stem + "_ok")
        self.wave_is(0, done)
        self.cond_begin()
        self.I(f"v_min_u32 {v(tmp)}, {n-1}, {v(V_LANE)}")
        self.I(f"v_lshlrev_b32 {v(tmp)}, 7, {v(tmp)}")
        self.I(f"v_add_u32 {v(tmp)}, {s(base_sreg)}, {v(tmp)}")
        self.spin_init()
        if OPT.get("poll2"):
            alt = OPT.get("poll2_reg", 0)
            self.I(f"buffer_load_dword {v(tmp+1)}, {v(tmp)}, {srd(S_WS)}, 0 offen sc1")
            self.label(loop)
            self.I("s_nop 15")
            self.I("s_nop 15")
            self.I(f"buffer_load_dword {v(alt)}, {v(tmp)}, {srd(S_WS)}, 0 offen sc1")
            self.I("s_waitcnt vmcnt(1)")
            self.I(f"v_cmp_ne_u32 vcc, {s(S_TAG)}, {v(tmp+1)}")
            self.I(f"s_cbranch_vccz {ok}")
            self.I(f"buffer_load_dword {v(tmp+1)}, {v(tmp)}, {srd(S_WS)}, 0 offen sc1")
            self.I("s_waitcnt vmcnt(1)")
            self.I(f"v_cmp_ne_u32 vcc, {s(S_TAG)}, {v(alt)}")
            self.spin_back(loop, ok)
            self.label(ok + "_w")
        else:
            self.label(loop)
            self.I(f"buffer_load_dword {v(tmp+1)}, {v(tmp)}, {srd(S_WS)}, 0 offen sc1")
            self.I("s_waitcnt vmcnt(0)")
            self.I(f"v_cmp_ne_u32 vcc, {s(S_TAG)}, {v(tmp+1)}")
            self.spin_back(loop, ok)
        self.label(ok)
        if OPT.get("poll2"):
            self.I("s_waitcnt vmcnt(0)")
        self.cond_end()
        self.label(done)
        self.barrier()

    def signal(self, off_sreg, stem, tmp=14):
        self.barrier()
        done = self.newlabel(stem + "_sig")
        self.wave_is(0, done)
        self.cond_begin()
        self.I(f"v_mov_b32 {v(tmp)}, {s(off_sreg)}")
        self.I(f"s_mov_b64 exec, 1")
        self.I(f"buffer_store_dword {v(V_TAG)}, {v(tmp)}, {srd(S_WS)}, 0 offen sc1")
        self.I(f"s_mov_b64 exec, -1")
        self.cond_end()
        self.label(done)

    def granule_loads(self, regs, addr_regs, width, imm, tag):
        sfx = {2: "dwordx2", 4: "dwordx4"}[width]
        for i, (r, ad) in enumerate(zip(regs, addr_regs)):
            off = imm[i] if imm else 0
            self.I(f"buffer_load_{sfx} {v(r, width)}, {v(ad)}, {srd(S_WS)}, 0 offen offset:{off} sc1", tag=tag)

    def granule_verify(self, regs, addr_regs, stem, width, tagpos, imm, tag):
        loop = self.newlabel(stem + "_loop")
        chk = self.newlabel(stem + "_chk")
        ok = self.newlabel(stem + "_ok")
        self.spin_init()
        if self.cond:
            self.I("s_waitcnt vmcnt(0)")
        else:
            self.wait_vm(tag)
        self.I(f"s_branch {chk}")
        self.label(loop)
        self.cond_begin()
        self.granule_loads(regs, addr_regs, width, imm, None)
        self.I("s_waitcnt vmcnt(0)")
        self.cond_end()
        self.label(chk)
        first = True
        for r in regs:
            for tp in tagpos:
                if first:
                    self.I(f"v_cmp_ne_u32 vcc, {s(S_TAG)}, {v(r+tp)}")
                    first = False
                else:
                    self.I(f"v_cmp_ne_u32 {s(S_EX, 2)}, {s(S_TAG)}, {v(r+tp)}")
                    self.I(f"s_or_b64 vcc, vcc, {s(S_EX, 2)}")
        self.spin_back(loop, ok)
        self.label(ok)

    def load_granules_checked(self, regs, addr_regs, stem, width=2, tagpos=(1,), imm=None):
        self.granule_loads(regs, addr_regs, width, imm, stem)
        self.granule_verify(regs, addr_regs, stem, width, tagpos, imm, stem)


S_CODE = 0


def code_touch(k, wave, dst, t=(8, 9)):
    if not OPT.get("codepf"):
        return
    sk = k.newlabel("cpf")
    k.wave_is(wave, sk)
    k.cond_begin()
    a0, a1 = t
    k.I(f"v_min_u32 {v(a0)}, 11, {v(V_LANE)}")
    k.I(f"v_lshlrev_b32 {v(a0)}, 7, {v(a0)}")
    k.I(f"v_min_u32 {v(a0)}, {s(S_CODN)}, {v(a0)}")
    k.I(f"v_mov_b32 {v(a1)}, {s(S_CODE+1)}")
    k.I(f"v_add_co_u32 {v(a0)}, vcc, {s(S_CODE)}, {v(a0)}")
    k.I(f"v_addc_co_u32 {v(a1)}, vcc, 0, {v(a1)}, vcc")
    k.I(f"global_load_dword {v(dst)}, v[{a0}:{a1}], off")
    k.cond_end()
    k.label(sk)


S_CODN = 101


def prologue(k):
    if k.diag and "entry" in STAMPS:
        k.I("s_memrealtime s[96:97]")
    k.I("s_cmp_ge_u32 s2, 256")
    k.I("s_cbranch_scc1 L_end")
    k.I("s_load_dwordx16 s[64:79], s[0:1], 0")
    k.I("s_load_dwordx8 s[80:87], s[0:1], 64")
    k.I("s_load_dwordx2 s[88:89], s[0:1], 96")
    if OPT.get("codepf"):
        k.I("s_getpc_b64 s[90:91]")
        k.label("L_pc")
        k.I(f"s_mov_b32 {s(S_T1)}, L_end-L_pc")
        k.I(f"s_lshr_b32 {s(S_T1)}, {s(S_T1)}, 7")
        k.I(f"s_sub_u32 {s(S_T1)}, {s(S_T1)}, 1")
        k.I(f"s_lshr_b32 {s(S_T0)}, s2, 3")
        k.I(f"s_mul_i32 {s(S_T0)}, {s(S_T0)}, 12")
        k.I(f"s_min_u32 {s(S_T0)}, {s(S_T0)}, {s(S_T1)}")
        k.I(f"s_sub_u32 {s(S_CODN)}, {s(S_T1)}, {s(S_T0)}")
        k.I(f"s_lshl_b32 {s(S_CODN)}, {s(S_CODN)}, 7")
        k.I(f"s_lshl_b32 {s(S_T0)}, {s(S_T0)}, 7")
        k.I(f"s_add_u32 s90, s90, {s(S_T0)}")
        k.I("s_addc_u32 s91, s91, 0")
        k.I("v_min_u32 v8, 11, v0")
        k.I("v_lshlrev_b32 v8, 7, v8")
        k.I(f"v_min_u32 v8, {s(S_CODN)}, v8")
        k.I("v_mov_b32 v9, s91")
        k.I("v_add_co_u32 v8, vcc, s90, v8")
        k.I("v_addc_co_u32 v9, vcc, 0, v9, vcc")
        k.I("global_load_dword v177, v[8:9], off", tag="cp")
    k.I(f"v_and_b32 {v(V_LANE)}, 63, v0")
    k.I("v_lshrrev_b32 v4, 6, v0")
    k.I(f"v_lshlrev_b32 {v(V_L16)}, 4, {v(V_LANE)}")
    k.I(f"v_readfirstlane_b32 {s(S_W)}, v4")
    k.I(f"s_and_b32 {s(S_XCD)}, s2, 7")
    k.I(f"s_lshr_b32 {s(S_I)}, s2, 3")
    k.I(f"s_lshr_b32 {s(S_T0)}, {s(S_XCD)}, 1")
    k.I(f"s_lshl_b32 {s(S_T0)}, {s(S_T0)}, 2")
    k.I(f"s_lshr_b32 {s(S_T1)}, {s(S_I)}, 3")
    k.I(f"s_add_u32 {s(S_M)}, {s(S_T0)}, {s(S_T1)}")
    k.I(f"s_and_b32 {s(S_T0)}, {s(S_XCD)}, 1")
    k.I(f"s_lshl_b32 {s(S_T0)}, {s(S_T0)}, 3")
    k.I(f"s_and_b32 {s(S_T1)}, {s(S_I)}, 7")
    k.I(f"s_add_u32 {s(S_J)}, {s(S_T0)}, {s(S_T1)}")
    k.I(f"s_mov_b32 {s(S_MASK)}, 0xffff0000")
    k.I(f"s_mov_b32 {s(S_L2E)}, {LOG2E:#x}")
    k.I(f"s_mov_b32 {s(S_L2E+1)}, {LOG2E:#x}")
    k.I("s_waitcnt lgkmcnt(0)")
    if OPT.get("codepf"):
        k.I(f"s_mov_b32 {s(S_CODE)}, s90")
        k.I(f"s_mov_b32 {s(S_CODE+1)}, s91")
    bufs = [(S_X, 64, 2097152), (S_WQKV, 66, 1572864), (S_WPHI, 68, 16384), (S_WO, 70, 524288),
            (S_WG, 74, 1835008), (S_WU, 76, 1835008), (S_WD, 78, 1835008), (S_C, 80, 1024),
            (S_WMOD, 82, 3145728), (S_OUT, 84, 2097152), (S_WS, 88, 268435456)]
    for r, p, n in bufs:
        k.I(f"s_mov_b32 {s(r)}, {s(p)}")
        k.I(f"s_mov_b32 {s(r+1)}, {s(p+1)}")
        k.I(f"s_mov_b32 {s(r+2)}, {n}")
        k.I(f"s_mov_b32 {s(r+3)}, 0x20000")
    k.I(f"s_lshr_b32 {s(S_T0)}, {s(S_I)}, 4")
    k.I(f"s_lshl_b32 {s(S_M2)}, {s(S_XCD)}, 1")
    k.I(f"s_add_u32 {s(S_M2)}, {s(S_M2)}, {s(S_T0)}")
    k.I(f"s_and_b32 {s(S_J2)}, {s(S_I)}, 15")
    if k.diag and "entry" in STAMPS:
        k.I(f"s_mov_b32 {s(S_STAMP + k.nstamp)}, s96")
        k.stamp_names = getattr(k, "stamp_names", []) + ["entry"]
        k.nstamp += 1
    k.I("v_mov_b32 v4, 0")
    k.I(f"buffer_load_dword {v(V_TAG)}, v4, {srd(S_WS)}, 0 offen sc1", tag="E")
    k.stamp("start")


S_G = 100
S_GC = 3


def x_rows(k):
    k.I(f"s_lshl_b32 {s(S_T2)}, {s(S_M)}, 17")
    k.I(f"s_and_b32 {s(S_T3)}, {s(S_J)}, 7")
    k.I(f"s_lshl_b32 {s(S_T3)}, {s(S_T3)}, 4")
    k.I(f"s_add_u32 {s(S_T3)}, {s(S_T3)}, {s(S_W)}")
    k.I(f"s_sub_u32 {s(S_T3)}, {s(S_T3)}, 1")
    U = OPT.get("xunroll", 4)
    k.I(f"s_mov_b32 {s(S_T4)}, {44 // U}")
    loop = k.newlabel("xrow")
    k.label(loop)
    for u in range(U):
        k.I(f"s_and_b32 {s(S_T0)}, {s(S_T3)}, 127")
        k.I(f"s_and_b32 {s(S_T1)}, {s(S_T0)}, 15")
        k.I(f"s_lshl_b32 {s(S_T1)}, {s(S_T1)}, 4")
        k.I(f"v_xor_b32 v9, {s(S_T1)}, {v(V_L16)}")
        k.I(f"s_lshl_b32 m0, {s(S_T0)}, 10")
        k.I(f"s_add_u32 {s(S_OFF)}, m0, {s(S_T2)}")
        k.dma(9, S_X, s(S_OFF))
        k.I(f"s_add_u32 {s(S_T3)}, {s(S_T3)}, 3")
    k.I(f"s_sub_u32 {s(S_T4)}, {s(S_T4)}, 1")
    k.I(f"s_cmp_lg_u32 {s(S_T4)}, 0")
    k.I(f"s_cbranch_scc1 {loop}")


def touch_wqkv(k):
    if OPT["touch"]:
        k.I(f"v_lshrrev_b32 v13, 2, {v(V_LANE)}")
        k.I("v_mul_u32_u24 v13, 3072, v13")
        k.I(f"v_and_b32 v14, 3, {v(V_LANE)}")
        k.I("v_lshl_add_u32 v13, v14, 7, v13")
        k.I(f"s_mul_i32 {s(S_OFF)}, {s(S_I)}, {16*3072}")
        k.I(f"s_sub_u32 {s(S_T0)}, {s(S_W)}, 1")
        k.I(f"s_lshl_b32 {s(S_T0)}, {s(S_T0)}, 10")
        k.I(f"s_add_u32 {s(S_OFF)}, {s(S_OFF)}, {s(S_T0)}")
        k.I(f"s_and_b32 {s(S_T0)}, {s(S_XCD)}, 1")
        k.I(f"s_lshl_b32 {s(S_T0)}, {s(S_T0)}, 9")
        k.I(f"s_add_u32 {s(S_OFF)}, {s(S_OFF)}, {s(S_T0)}")
        k.touch(S_WQKV, 13, s(S_OFF), dst=176)


def mod_group(k):
    k.I(f"s_lshr_b32 {s(S_T0)}, {s(S_I)}, 2")
    k.I(f"s_lshl_b32 {s(S_T0)}, {s(S_T0)}, 3")
    k.I(f"s_add_u32 {s(S_T0)}, {s(S_T0)}, {s(S_XCD)}")
    k.I(f"s_lshl_b32 {s(S_T0)}, {s(S_T0)}, 2")
    k.I(f"s_and_b32 {s(S_T1)}, {s(S_I)}, 3")
    k.I(f"s_add_u32 {s(S_G)}, {s(S_T0)}, {s(S_T1)}")


def wm_voff(k, dst, tmp):
    k.I(f"v_lshrrev_b32 {v(dst)}, 1, {v(V_LANE)}")
    k.I(f"v_mul_u32_u24 {v(dst)}, 6144, {v(dst)}")
    k.I(f"v_and_b32 {v(tmp)}, 1, {v(V_LANE)}")
    k.I(f"v_lshlrev_b32 {v(tmp)}, 4, {v(tmp)}")
    k.I(f"s_lshl_b32 {s(S_T0)}, {s(S_G)}, 5")
    k.I(f"v_add3_u32 {v(dst)}, {v(dst)}, {v(tmp)}, {s(S_T0)}")


def gemv16(k, lds_base, nq=16, partial=False, nbuf=112):
    k.I(f"v_lshrrev_b32 v8, 4, {v(V_LANE)}")
    k.I("v_lshlrev_b32 v8, 3, v8")
    k.I(f"v_add_u32 v8, {L_S}, v8")
    if partial:
        k.I(f"s_and_b32 {s(S_T0)}, {s(S_I)}, 3")
        k.I(f"s_lshl_b32 {s(S_T0)}, {s(S_T0)}, 8")
        k.I(f"v_add_u32 v8, {s(S_T0)}, v8")
    k.I(f"v_lshlrev_b32 v10, 3, {v(V_LANE)}")
    k.I(f"v_add_u32 v10, {lds_base}, v10")
    for q in range(nq + 2):
        if q < nq:
            b = nbuf + 8 * (q & 3)
            k.I(f"ds_read_b64_tr_b16 {v(b+4, 2)}, v10 offset:{q*1024}")
            k.I(f"ds_read_b64_tr_b16 {v(b+6, 2)}, v10 offset:{q*1024+512}")
            k.I(f"ds_read_b64 {v(b, 2)}, v8 offset:{q*64}")
            k.I(f"ds_read_b64 {v(b+2, 2)}, v8 offset:{q*64+32}")
        if q >= 2:
            k.I(f"s_waitcnt lgkmcnt({8 if q < nq else (4 if q == nq else 0)})")
            bb = nbuf + 8 * ((q - 2) & 3)
            acc = 144 + 4 * (q & 1)
            c = "0" if q < 4 else v(acc, 4)
            k.I(f"v_mfma_f32_16x16x32_bf16 {v(acc, 4)}, {v(bb, 4)}, {v(bb+4, 4)}, {c}")
    k.test_delay(1 if partial else 2)
    k.I("v_add_f32 v144, v144, v148")
    k.I("v_mov_b32_dpp v145, v144 quad_perm:[1,0,3,2] row_mask:0xf bank_mask:0xf")
    if partial:
        k.I(f"v_mov_b32 v146, {v(V_TAG)}")
        k.I("v_mov_b32 v147, 0")
        k.I(f"v_lshlrev_b32 v8, 3, {v(V_LANE)}")
        k.I(f"s_and_b32 {s(S_T0)}, {s(S_I)}, 3")
        k.I(f"s_lshl_b32 {s(S_T0)}, {s(S_T0)}, 13")
        k.I(f"s_lshl_b32 {s(S_T1)}, {s(S_GC)}, 7")
        k.I(f"s_add_u32 {s(S_T0)}, {s(S_T0)}, {s(S_T1)}")
        k.I(f"s_add_u32 {s(S_T0)}, {s(S_T0)}, {WS_MODC}")
        k.I(f"v_add_u32 v8, {s(S_T0)}, v8")
        k.I("s_mov_b64 exec, 0x5555")
        k.I(f"buffer_store_dwordx4 v[144:147], v8, {srd(S_WS)}, 0 offen sc1")
    else:
        k.I("v_cvt_pk_bf16_f32 v144, v144, v145")
        k.I(f"v_mov_b32 v145, {v(V_TAG)}")
        k.I(f"v_lshlrev_b32 v8, 2, {v(V_LANE)}")
        k.I(f"s_lshl_b32 {s(S_T0)}, {s(S_G)}, 6")
        k.I(f"s_add_u32 {s(S_T0)}, {s(S_T0)}, {WS_MODG}")
        k.I(f"v_add_u32 v8, {s(S_T0)}, v8")
        k.I("s_mov_b64 exec, 0x5555")
        k.I(f"buffer_store_dwordx2 v[144:145], v8, {srd(S_WS)}, 0 offen sc1")
    k.I("s_mov_b64 exec, -1")


def mall_touch(k):
    k.I(f"v_min_u32 v9, 55, {v(V_LANE)}")
    k.I("v_lshlrev_b32 v9, 7, v9")
    k.I(f"s_mul_i32 {s(S_OFF)}, s2, {56*128}")
    for r in (S_WG, S_WU, S_WD):
        k.touch(r, 9, s(S_OFF), dst=176)
    k.I(f"v_and_b32 v9, 15, {v(V_LANE)}")
    k.I("v_lshlrev_b32 v9, 7, v9")
    k.I(f"s_lshl_b32 {s(S_OFF)}, s2, 11")
    k.touch(S_WO, 9, s(S_OFF), dst=176)
    k.I(f"v_lshrrev_b32 v9, 5, {v(V_LANE)}")
    k.I("v_mul_u32_u24 v9, 6144, v9")
    k.I(f"v_and_b32 v10, 31, {v(V_LANE)}")
    k.I("v_lshl_add_u32 v9, v10, 7, v9")
    k.I(f"s_mul_i32 {s(S_OFF)}, s2, {2*6144}")
    k.I(f"s_add_u32 {s(S_OFF)}, {s(S_OFF)}, 2048")
    k.touch(S_WMOD, 9, s(S_OFF), dst=176)


def start_phase(k):
    mod_group(k)
    k.I(f"s_lshr_b32 {s(S_T0)}, {s(S_I)}, 4")
    k.I(f"s_lshl_b32 {s(S_T0)}, {s(S_T0)}, 3")
    k.I(f"s_add_u32 {s(S_T0)}, {s(S_T0)}, {s(S_XCD)}")
    k.I(f"s_lshl_b32 {s(S_T0)}, {s(S_T0)}, 2")
    k.I(f"s_bfe_u32 {s(S_T1)}, {s(S_I)}, {(2 << 16) | 2}")
    k.I(f"s_add_u32 {s(S_GC)}, {s(S_T0)}, {s(S_T1)}")
    k.cond_begin()
    wa, wb = k.newlabel("st_b"), k.newlabel("st_j")
    k.wave_is(0, wa)
    k.I(f"buffer_load_dwordx4 v[24:27], {v(V_L16)}, {srd(S_C)}, 0 offen")
    k.I(f"v_lshrrev_b32 v7, 1, {v(V_LANE)}")
    k.I("v_mul_u32_u24 v7, 6144, v7")
    k.I(f"v_and_b32 v8, 1, {v(V_LANE)}")
    k.I("v_lshlrev_b32 v8, 4, v8")
    k.I(f"s_lshl_b32 {s(S_T0)}, {s(S_GC)}, 5")
    k.I(f"v_add3_u32 v7, v7, v8, {s(S_T0)}")
    k.I(f"s_and_b32 {s(S_OFF)}, {s(S_I)}, 3")
    k.I(f"s_mul_i32 {s(S_OFF)}, {s(S_OFF)}, {128*6144}")
    k.I(f"s_mov_b32 m0, {L_WM}")
    k._tag = "wm"
    for n in range(4):
        k.dma(7, S_WMOD, s(S_OFF))
        if n < 3:
            k.I(f"s_add_u32 m0, m0, 1024")
            k.I(f"s_add_u32 {s(S_OFF)}, {s(S_OFF)}, 196608")
    k._tag = None
    k.I(f"s_branch {wb}")
    k.label(wa)
    k.I(f"s_lshl_b32 {s(S_OFF)}, {s(S_HP)}, 10")
    k.I(f"s_mov_b32 m0, {L_PHI}")
    k.dma(V_L16, S_WPHI, s(S_OFF))
    touch_wqkv(k)
    x_rows(k)
    if OPT.get("tlbpf"):
        k.I(f"v_min_u32 v9, 7, {v(V_LANE)}")
        k.I("v_lshlrev_b32 v9, 21, v9")
        k.I(f"buffer_load_dword v178, v9, {srd(S_WS)}, 0 offen offset:2048")
        k.I(f"buffer_load_dword v178, {v(V_L16)}, {srd(S_OUT)}, 0 offen")
    k.label(wb)
    k.cond_end()
    k.vmq = []


def start_finish(k):
    k.cond_begin()
    wa, wb = k.newlabel("sf_b"), k.newlabel("sf_j")
    k.wave_is(0, wa)
    k.I("s_waitcnt vmcnt(4)")
    k.I(f"v_add_u32 {v(V_TAG)}, 1, {v(V_TAG)}")
    for i in range(4):
        k.unpack(28 + 2 * i, 29 + 2 * i, 24 + i)
    for i in range(8):
        k.I(f"v_mul_f32 {v(36+i)}, {s(S_L2E)}, {v(28+i)}")
    for i in range(8):
        k.I(f"v_exp_f32 {v(36+i)}, -{v(36+i)}")
    for i in range(8):
        k.I(f"v_add_f32 {v(36+i)}, 1.0, {v(36+i)}")
    for i in range(8):
        k.I(f"v_rcp_f32 {v(36+i)}, {v(36+i)}")
    for i in range(8):
        k.I(f"v_mul_f32 {v(28+i)}, {v(28+i)}, {v(36+i)}")
    for i in range(4):
        k.I(f"v_cvt_pk_bf16_f32 {v(24+i)}, {v(28+2*i)}, {v(29+2*i)}")
    k.I(f"v_add_u32 v8, {L_S}, {v(V_L16)}")
    k.I("ds_write_b128 v8, v[24:27]")
    k.I("s_waitcnt vmcnt(0) lgkmcnt(0)")
    gemv16(k, L_WM, nq=4, partial=True)
    if OPT["mall"]:
        mall_touch(k)
    k.I(f"s_branch {wb}")
    k.label(wa)
    k.I("s_waitcnt vmcnt(0)")
    k.I(f"v_add_u32 {v(V_TAG)}, 1, {v(V_TAG)}")
    k.label(wb)
    k.cond_end()
    k.I(f"v_readfirstlane_b32 {s(S_TAG)}, {v(V_TAG)}")
    k.stamp("mod published")
    k.lgq = []
    k.barrier()


def modn_compute(k):
    skip = k.newlabel("mn_c")
    k.I("s_sub_u32 s55, s2, 64")
    k.I("s_cmp_ge_u32 s55, 128")
    k.I(f"s_cbranch_scc1 {skip}")
    k.wave_is(2, skip)
    k.cond_begin()
    gemv16(k, L_WMN)
    k.cond_end()
    k.label(skip)


X0 = 16
AQ, AK, AV = 144, 160, 176
DM = 144
DG = 192
EB = (200, 204)
BEXT = 208
MSK = 212
V_TRK, V_TRV, V_TAB, V_R, V_TRQ = 220, 221, 222, 223, 4


def lane_fields(k, t_r=None, s_=None, r_=None, c_=None, nh=None):
    if s_ is not None:
        k.I(f"v_lshrrev_b32 {v(s_)}, 5, {v(V_LANE)}")
    if nh is not None:
        k.I(f"v_bfe_u32 {v(nh)}, {v(V_LANE)}, 4, 1")
    if r_ is not None:
        k.I(f"v_bfe_u32 {v(r_)}, {v(V_LANE)}, 2, 2")
    if c_ is not None:
        k.I(f"v_and_b32 {v(c_)}, 3, {v(V_LANE)}")


def lbase_bytes(k, dst, nh, c, t0, t1):
    k.I(f"v_and_b32 {v(t0)}, 1, {v(c)}")
    k.I(f"v_lshlrev_b32 {v(t0)}, 5, {v(t0)}")
    k.I(f"v_lshrrev_b32 {v(t1)}, 1, {v(c)}")
    k.I(f"v_lshlrev_b32 {v(t1)}, 3, {v(t1)}")
    k.I(f"v_lshl_add_u32 {v(dst)}, {v(nh)}, 4, {v(t0)}")
    k.I(f"v_add_u32 {v(dst)}, {v(dst)}, {v(t1)}")


MODA_REGS = [144 + 4 * i for i in range(8)]
MODA_ADDR = [202, 203, 204, 205, 206, 207, 241, 242]


def p1_prologue(k):
    k.I("v_mov_b32 v8, 0")
    k.I(f"v_lshlrev_b32 v9, 2, {v(V_LANE)}")
    k.I(f"v_and_b32 v9, 60, v9")
    k.I(f"v_add_u32 v9, {L_ZERO}, v9")
    k.I("ds_write_b32 v9, v8")
    p1_static(k)
    k.I(f"v_and_b32 v8, 31, {v(V_LANE)}")
    k.I(f"s_lshl_b32 {s(S_T0)}, {s(S_W)}, 5")
    k.I(f"v_add_u32 v9, {s(S_T0)}, v8")
    k.I("v_lshlrev_b32 v9, 10, v9")
    k.I("v_and_b32 v8, 15, v8")
    k.I(f"v_lshrrev_b32 v10, 5, {v(V_LANE)}")
    for q in range(8):
        k.I(f"v_add_u32 v11, {2*q}, v10")
        k.I("v_xor_b32 v11, v11, v8")
        k.I(f"v_lshl_add_u32 {v(192+q)}, v11, 4, v9")
    k.I(f"v_lshrrev_b32 v8, 3, {v(V_LANE)}")
    k.I("v_mul_u32_u24 v8, 3072, v8")
    k.I(f"v_and_b32 v9, 7, {v(V_LANE)}")
    k.I(f"v_bfe_u32 v10, {v(V_LANE)}, 4, 1")
    k.I("v_lshlrev_b32 v10, 2, v10")
    k.I("v_xor_b32 v9, v9, v10")
    k.I("v_lshrrev_b32 v10, 2, v9")
    k.I("v_lshlrev_b32 v10, 10, v10")
    k.I("v_and_b32 v9, 3, v9")
    k.I("v_lshl_add_u32 v10, v9, 4, v10")
    k.I(f"s_lshl_b32 {s(S_T0)}, {s(S_HP)}, 6")
    k.I(f"s_add_u32 {s(S_T1)}, {s(S_T0)}, 1024")
    k.I(f"v_add3_u32 v200, v8, v10, {s(S_T1)}")
    k.I(f"v_lshrrev_b32 v8, 2, {v(V_LANE)}")
    k.I("v_mul_u32_u24 v8, 3072, v8")
    k.I(f"v_and_b32 v9, 3, {v(V_LANE)}")
    k.I("v_lshl_add_u32 v8, v9, 4, v8")
    k.I(f"v_add_u32 v6, {s(S_T0)}, v8")
    k.I("v_lshlrev_b32 v202, 4, v0")
    k.I(f"v_add_u32 v202, {WS_MODC}, v202")
    k.I(f"v_add_u32 v203, 8192, v202")
    k.I(f"v_add_u32 v204, 16384, v202")
    k.I(f"v_add_u32 v205, 24576, v202")
    k.I(f"v_add_u32 v206, 4096, v202")
    k.I(f"v_add_u32 v207, 4096, v203")
    k.I(f"v_add_u32 v241, 4096, v204")
    k.I(f"v_add_u32 v242, 4096, v205")
    start_finish(k)
    k.I("v_mov_b32 v8, 0x3f803f80")
    for r in range(10, 14):
        k.I(f"v_mov_b32 {v(r)}, 0")
    dots = []
    for i in range(128):
        dots.append(f"v_dot2c_f32_bf16 {v(10 + (i & 1))}, {v(X0+i)}, v8")
        dots.append(f"v_dot2c_f32_bf16 {v(12 + (i & 1))}, {v(X0+i)}, {v(X0+i)}")
    LAG = 6
    NEARLY = OPT.get("dots_early", 20)
    for j in range(32):
        k.I(f"ds_read_b128 {v(X0+4*j, 4)}, {v(192+(j&7))} offset:{L_XI + (j>>3)*256}", tag=f"xf{j}")
        q = j - LAG
        if 0 <= q < NEARLY:
            k.wait_lg(f"xf{q}")
            for _ in range(8):
                k.I(dots.pop(0))
        elif j % 8 == 7 and j < 31:
            k.I("s_waitcnt lgkmcnt(8)")
    k.wait_lg_all()
    k.barrier()
    k.stamp("x in regs")
    k.I(f"s_mul_i32 {s(S_T2)}, {s(S_W)}, {128*3072}")
    k.I(f"s_lshl_b32 {s(S_T3)}, {s(S_W)}, 14")
    if L_KVI:
        k.I(f"s_add_u32 {s(S_T3)}, {s(S_T3)}, {L_KVI}")

    def some_dots(n):
        for _ in range(min(n, len(dots))):
            k.I(dots.pop(0))

    k._tag = "w"
    for n in range(16):
        k.I(f"s_add_u32 {s(S_OFF)}, {s(S_T2)}, {n*8*3072}")
        k.I(f"s_add_u32 m0, {s(S_T3)}, {n*1024}")
        k.dma(200, S_WQKV, s(S_OFF))
        some_dots(4)
    k._tag = None
    for r, ad in zip(MODA_REGS, MODA_ADDR):
        k.granule_loads([r], [ad], 4, None, "modA")
        some_dots(3)
    k.side_items = p1_side(k, regs=(243, 244, 245, 246))
    if not OPT.get("tloop"):
        for it in k.side_items:
            for t, tg in it:
                k.I(t, tag=tg)
            some_dots(3)
        k.side_items = []
    for t in dots:
        k.I(t)
    k.I("v_add_f32 v10, v10, v11")
    k.I("v_add_f32 v12, v12, v13")
    k.half_total(10, 11)
    k.half_total(12, 13)
    k.I("v_mul_f32 v10, 0x3b000000, v10")
    k.I("v_mul_f32 v12, 0x3b000000, v12")
    k.I("v_fma_f32 v12, -v10, v10, v12")
    k.I("v_max_f32 v12, 0, v12")
    k.I("v_add_f32 v12, 0x3727c5ac, v12")
    k.I(f"v_rsq_f32 {v(V_R)}, v12")
    k.I("v_sub_f32 v10, 0, v10")
    k.I(f"v_mul_f32 v11, v12, {v(V_R)}")
    k.I("v_cvt_pk_bf16_f32 v12, v10, v11")
    k.unpack(8, 9, 12)
    k.I("v_sub_f32 v8, v10, v8")
    k.I("v_sub_f32 v9, v11, v9")
    k.I("v_cvt_pk_bf16_f32 v13, v8, v9")
    k.I(f"s_mov_b32 {s(S_T0)}, 0x01000100")
    k.I(f"s_mov_b32 {s(S_T1)}, 0x03020302")
    k.I(f"v_perm_b32 {v(BEXT)}, v12, v12, {s(S_T0)}")
    k.I(f"v_perm_b32 {v(BEXT+1)}, v13, v13, {s(S_T0)}")
    k.I(f"v_perm_b32 {v(BEXT+2)}, v12, v12, {s(S_T1)}")
    k.I(f"v_perm_b32 {v(BEXT+3)}, v13, v13, {s(S_T1)}")
    k.I(f"v_cmp_gt_u32 vcc, 32, {v(V_LANE)}")
    for i in range(4):
        k.I(f"v_cndmask_b32 {v(BEXT+i)}, 0, {v(BEXT+i)}, vcc")
    k.stamp("stats")
    p1_rv(k)
    k.granule_verify(MODA_REGS, MODA_ADDR, "modA", 4, (2,), None, "modA")
    k.stamp("mod arrived")
    for base in (144, 160):
        k.I(f"v_pk_add_f32 {v(base,2)}, {v(base,2)}, {v(base+4,2)}")
        k.I(f"v_pk_add_f32 {v(base+8,2)}, {v(base+8,2)}, {v(base+12,2)}")
        k.I(f"v_pk_add_f32 {v(base,2)}, {v(base,2)}, {v(base+8,2)}")
    k.I("v_cvt_pk_bf16_f32 v204, v144, v145")
    k.I("v_cvt_pk_bf16_f32 v206, v160, v161")
    k.unpack(192, 193, 206)
    k.I("v_add_f32 v192, 1.0, v192")
    k.I("v_add_f32 v193, 1.0, v193")
    k.I("v_cvt_pk_bf16_f32 v12, v192, v193")
    k.I("v_and_b32 v192, 0xffff, v12")
    k.I("v_and_b32 v194, 0xffff, v204")
    k.I(f"v_and_b32 v196, {s(S_MASK)}, v12")
    k.I(f"v_and_b32 v198, {s(S_MASK)}, v204")
    for r in (192, 194, 196, 198):
        k.I(f"v_mov_b32 {v(r+1)}, {v(r)}")
    k.I("v_lshlrev_b32 v8, 5, v0")
    k.I(f"v_add_u32 v8, {L_CT}, v8")
    k.I("ds_write_b128 v8, v[192:195]")
    k.I("ds_write_b128 v8, v[196:199] offset:16")
    k.vmq = []
    k.wait_lg_all()
    k.barrier()
    k.stamp("P1 ready")
    k.stamp("c0", cyc=True) if STAMPS and "c0" in STAMPS else None


def p1_static(k):
    k.I(f"v_bfe_u32 v8, {v(V_LANE)}, 1, 2")
    k.I(f"v_bfe_u32 v9, {v(V_LANE)}, 4, 1")
    k.I("v_lshl_add_u32 v8, v9, 2, v8")
    k.I(f"v_bfe_u32 v9, {v(V_LANE)}, 3, 1")
    k.I(f"v_lshrrev_b32 v10, 5, {v(V_LANE)}")
    k.I("v_xor_b32 v9, v9, v10")
    k.I("v_lshl_add_u32 v8, v9, 3, v8")
    for i in range(8):
        k.I(f"v_cmp_eq_u32 vcc, {i}, v8")
        k.I(f"v_cndmask_b32 {v(MSK+i)}, 0, -1, vcc")
    lane_fields(k, s_=8, r_=9, c_=10, nh=11)
    lbase_bytes(k, 12, 11, 10, 13, 14)
    k.I("v_lshl_add_u32 v8, v8, 2, v9")
    k.I("v_lshlrev_b32 v13, 7, v8")
    k.I("v_lshrrev_b32 v9, 1, v9")
    k.I("v_lshl_add_u32 v13, v9, 6, v13")
    k.I(f"v_add_u32 {v(V_TRK)}, v13, v12")
    k.I(f"v_xor_b32 {v(V_TRV)}, 64, {v(V_TRK)}")
    k.I("v_lshlrev_b32 v13, 6, v8")
    k.I("v_add_u32 v13, v13, v12")
    k.I(f"v_add_u32 {v(V_TRQ)}, {L_QI}, v13")
    k.I(f"v_and_b32 v8, 31, {v(V_LANE)}")
    k.I("v_lshlrev_b32 v8, 4, v8")
    k.I(f"v_add_u32 {v(V_TAB)}, {L_CT}, v8")
    p1_sel(k)


def p1_w(j, p):
    if p == 0:
        return V_TRQ, j * 1024, 512
    return (V_TRK if p == 1 else V_TRV), L_KVI + j * 2048, 1024


def p1_main(k):
    def rd_e(B):
        return [(f"ds_read_b128 {v(EB[B & 1], 4)}, {v(V_TAB)} offset:{B*512}", f"e{B}")]

    def rd_w(B):
        out = []
        for a in range(2):
            for pi, p in enumerate((1, 2)):
                base, off, st = p1_w(2 * B + a, p)
                for rd in range(2):
                    out.append((f"ds_read_b64_tr_b16 {a_(16*(B&1) + 8*a + 4*pi + 2*rd, 2)}, {v(base)} offset:{off + rd*st}", f"w{B}_{a}{pi}"))
        return out

    def diag(B):
        return [f"v_and_b32 {v(DG+i)}, {v(EB[B & 1])}, {v(MSK+i)}" for i in range(8)]

    def pack(B):
        return [f"v_cvt_pk_bf16_f32 {v(X0 + 8*B + i)}, {v(DM + 2*i)}, {v(DM + 2*i + 1)}" for i in range(8)]

    def mod_mfma(B, i):
        if i < 2:
            k.mfma32(v(DM, 16), v(DG + 4 * i, 4), v(X0 + 8 * B + 4 * i, 4), "0" if i == 0 else None)
        else:
            k.mfma32(v(DM, 16), v(EB[B & 1], 4), v(BEXT, 4))

    def emit(items):
        for it in items:
            if isinstance(it, tuple):
                k.I(it[0], tag=it[1])
            else:
                k.I(it)

    side = k.side_items
    emit(rd_e(0) + rd_e(1) + rd_w(0))
    k.wait_lg("e0")
    emit(diag(0))
    for i in range(3):
        mod_mfma(0, i)
    k.wait_lg("e1")
    emit(diag(1))
    emit(pack(0))
    for B in range(16):
        nxt = B + 1 < 16
        w = rd_w(B + 1) if nxt else []
        e = rd_e(B + 2) if B + 2 < 16 else []
        dg = diag(B + 2) if B + 2 < 16 else []
        pk = pack(B + 1) if nxt else []

        def g(a, pi):
            k.wait_lg(f"w{B}_{a}{pi}")
            wf = a_(16 * (B & 1) + 8 * a + 4 * pi, 4)
            h = v(X0 + 8 * B + 4 * a, 4)
            c0 = "0" if (B == 0 and a == 0) else None
            if pi == 0:
                k.mfma32(v(AK, 16), wf, h, c0)
            else:
                k.mfma32(v(AV, 16), h, wf, c0)

        cut = (1, 4, 7) if OPT.get("p1ord", 1) else (2, 4, 6)
        if nxt:
            mod_mfma(B + 1, 0)
        emit(e + w[0:cut[0]])
        if nxt:
            mod_mfma(B + 1, 1)
        emit(w[cut[0]:cut[1]])
        if nxt:
            mod_mfma(B + 1, 2)
        emit(w[cut[1]:cut[2]])
        g(0, 0)
        emit(w[cut[2]:8])
        if dg:
            k.wait_lg(f"e{B+2}")
        emit(dg[0:3])
        g(0, 1)
        emit(dg[3:8])
        g(1, 0)
        emit(pk[0:4])
        g(1, 1)
        emit(pk[4:8])
        if side:
            emit(side.pop(0))
    assert not side
    k.stamp("p1 main")
    k.stamp("c1", cyc=True) if STAMPS and "c1" in STAMPS else None


def p1_q(k):
    def rd(j):
        base, off, st = p1_w(j, 0)
        return [(f"ds_read_b64_tr_b16 {a_(4*(j % 6) + 2*rd, 2)}, {v(base)} offset:{off + rd*st}", f"q{j}") for rd in range(2)]
    for j in range(32 + 4):
        if j < 32:
            for t, tg in rd(j):
                k.I(t, tag=tg)
        q = j - 4
        if q >= 0:
            k.wait_lg(f"q{q}")
            k.mfma32(v(AQ, 16), a_(4 * (q % 6), 4), v(X0 + 4 * q, 4), "0" if q == 0 else None)


def softmax16(k, P, E, outp, outn, t, filler=None, every=4):
    mx, mn = t, t + 2
    k.I(f"v_max3_f32 {v(mx)}, {v(P)}, {v(P+1)}, {v(P+2)}")
    k.I(f"v_min3_f32 {v(mn)}, {v(P)}, {v(P+1)}, {v(P+2)}")
    for i in range(3, 15, 2):
        k.I(f"v_max3_f32 {v(mx)}, {v(mx)}, {v(P+i)}, {v(P+i+1)}")
        k.I(f"v_min3_f32 {v(mn)}, {v(mn)}, {v(P+i)}, {v(P+i+1)}")
    k.I(f"v_max_f32 {v(mx)}, {v(mx)}, {v(P+15)}")
    k.I(f"v_min_f32 {v(mn)}, {v(mn)}, {v(P+15)}")
    k.I(f"v_mul_f32 {v(mx)}, {s(S_L2E)}, {v(mx)}")
    k.I(f"v_mul_f32 {v(mn)}, {s(S_L2E)}, {v(mn)}")
    for sign, m, out in ((+1, mx, outp), (-1, mn, outn)):
        for i in range(0, 16, 2):
            if sign > 0:
                k.I(f"v_pk_fma_f32 {v(E+i,2)}, {v(P+i,2)}, {s(S_L2E,2)}, {v(m,2)} op_sel_hi:[1,1,0] neg_lo:[0,0,1] neg_hi:[0,0,1]")
            else:
                k.I(f"v_pk_fma_f32 {v(E+i,2)}, {v(P+i,2)}, {s(S_L2E,2)}, {v(m,2)} op_sel_hi:[1,1,0] neg_lo:[1,0,0] neg_hi:[1,0,0]")
        for i in range(16):
            k.I(f"v_exp_f32 {v(E+i)}, {v(E+i)}")
            if filler and i % every == every - 1:
                for tt, tg in filler.pop(0):
                    k.I(tt, tag=tg)
        sm = t + 4
        k.I(f"v_pk_add_f32 {v(sm,2)}, {v(E,2)}, {v(E+2,2)}")
        for i in range(4, 16, 2):
            k.I(f"v_pk_add_f32 {v(sm,2)}, {v(sm,2)}, {v(E+i,2)}")
        k.I(f"v_add_f32 {v(sm)}, {v(sm)}, {v(sm+1)}")
        k.I(f"v_rcp_f32 {v(sm)}, {v(sm)}")
        for i in range(0, 16, 2):
            k.I(f"v_pk_mul_f32 {v(E+i,2)}, {v(E+i,2)}, {v(sm,2)} op_sel_hi:[1,0]")
        for i in range(8):
            k.I(f"v_cvt_pk_bf16_f32 {v(out+i)}, {v(E+2*i)}, {v(E+2*i+1)}")


PHI_A, PHI_B = 224, 228
SEL0, SEL1, SELN0, SELN1 = 232, 236, 240, 244
RV = 224
PK, VP = 144, 152
PP = 160
EE = 192
TMP = 208
FP, FN = 224, 232
TP, TN = 176, 160
KVA, KVB = 192, 240
QP, QN = 96, 104


def p1_sel(k):
    k.I(f"v_bfe_u32 v8, {v(V_LANE)}, 3, 1")
    k.I(f"v_and_b32 v9, 3, {v(V_LANE)}")
    k.I("v_lshl_add_u32 v8, v8, 2, v9")
    k.I("v_and_b32 v9, 1, v8")
    k.I("v_lshlrev_b32 v9, 4, v9")
    k.I("v_mov_b32 v10, 0x3f80")
    k.I("v_lshlrev_b32 v9, v9, v10")
    k.I("v_lshrrev_b32 v8, 1, v8")
    k.I(f"v_bfe_u32 v10, {v(V_LANE)}, 4, 1")
    k.I(f"v_bfe_u32 v11, {v(V_LANE)}, 2, 1")
    k.I(f"v_lshrrev_b32 v12, 5, {v(V_LANE)}")
    k.I("v_xor_b32 v11, v11, v12")
    k.I(f"v_cmp_eq_u32 {s(S_VALID,2)}, 0, v11")
    k.I("v_lshl_add_u32 v13, v10, 2, v8")
    k.I("v_lshl_add_u32 v13, v11, 3, v13")
    for neg, base in ((0, SEL0), (1, SELN0)):
        for a in range(2):
            for d in range(4):
                k.I(f"v_cmp_eq_u32 vcc, {8*neg + 4*a + d}, v13")
                k.I(f"v_cndmask_b32 v14, 0, v9, vcc")
                k.I(f"v_accvgpr_write_b32 {a_(base + 4*a + d)}, v14")


def p1_rv(k):
    k.wait_vm("phi")
    lane_fields(k, s_=8, r_=9, c_=10, nh=11)
    k.I("v_lshlrev_b32 v12, 9, v8")
    k.I("v_lshl_add_u32 v12, v9, 5, v12")
    k.I("v_lshlrev_b32 v13, 1, v11")
    k.I("v_lshrrev_b32 v14, 1, v10")
    k.I("v_add_u32 v13, v13, v14")
    k.I("v_lshl_add_u32 v12, v13, 3, v12")
    k.I(f"v_add_u32 v12, {L_PHI}, v12")
    k.I("v_and_b32 v13, 1, v10")
    k.I("v_cmp_eq_u32 vcc, v13, v8")
    for a in range(2):
        for rd in range(2):
            k.I(f"v_add_u32 v14, {(8*a+4*rd)*32}, v12")
            k.I(f"v_mov_b32 v15, {L_ZERO}")
            k.I("v_cndmask_b32 v14, v15, v14, vcc")
            k.I(f"ds_read_b64_tr_b16 {a_(PHI_A + 4*a + 2*rd, 2)}, v14", tag="phif")
    k.I(f"v_and_b32 v8, 31, {v(V_LANE)}")
    k.I("v_lshlrev_b32 v8, 2, v8")
    k.I(f"s_lshl_b32 {s(S_T0)}, {s(S_W)}, 7")
    k.I(f"s_add_u32 {s(S_T0)}, {s(S_T0)}, {L_RT}")
    k.I(f"v_add_u32 v8, {s(S_T0)}, v8")
    k.I(f"ds_write_b32 v8, {v(V_R)}", tag="rw")
    k.I(f"v_lshrrev_b32 v9, 5, {v(V_LANE)}")
    k.I("v_lshlrev_b32 v9, 4, v9")
    k.I(f"v_add_u32 v9, {s(S_T0)}, v9")
    k.wait_lg("rw")
    for q in range(4):
        k.I(f"ds_read_b128 {v(RV+4*q,4)}, v9 offset:{32*q}", tag="rv")
    k.wait_lg_all()


def p1_epilogue(k):
    k.barrier()
    for i in range(16):
        k.I(f"v_mul_f32 {v(AK+i)}, {v(V_R)}, {v(AK+i)}")
    for i in range(8):
        k.I(f"v_cvt_pk_bf16_f32 {v(PK+i)}, {v(AK+2*i)}, {v(AK+2*i+1)}")
    k.mfma32(v(PP, 16), a_(PHI_A, 4), v(PK, 4), "0")
    k.mfma32(v(PP, 16), a_(PHI_B, 4), v(PK + 4, 4))
    for i in range(16):
        k.I(f"v_mul_f32 {v(AV+i)}, {v(RV+i)}, {v(AV+i)}")
    for i in range(8):
        k.I(f"v_cvt_pk_bf16_f32 {v(VP+i)}, {v(AV+2*i)}, {v(AV+2*i+1)}")
    k.stamp("k proj")
    softmax16(k, PP, EE, FP, FN, TMP, filler=q_image_items(k))
    k.stamp("k softmax")
    k.mfma32(v(TP, 16), v(FP, 4), a_(SEL0, 4), "0")
    k.mfma32(v(TN, 16), v(FN, 4), a_(SELN0, 4), "0")
    k.mfma32(v(TP, 16), v(FP + 4, 4), a_(SEL1, 4))
    k.mfma32(v(TN, 16), v(FN + 4, 4), a_(SELN1, 4))
    for src, pk, z in ((TP, FP, TMP), (TN, FN, TMP + 2)):
        for i in range(8):
            k.I(f"v_cvt_pk_bf16_f32 {v(pk+i)}, {v(src+2*i)}, {v(src+2*i+1)}")
        if src == TP:
            k.mfma32(v(KVA, 16), v(FP, 4), v(VP, 4), "0")
            k.mfma32(v(KVA, 16), v(FP + 4, 4), v(VP + 4, 4))
        else:
            k.mfma32(v(KVB, 16), v(FN, 4), v(VP, 4), "0")
            k.mfma32(v(KVB, 16), v(FN + 4, 4), v(VP + 4, 4))
    for src, z in ((TP, TMP), (TN, TMP + 2)):
        k.I(f"v_add_f32 {v(z)}, {v(src)}, {v(src+1)}")
        k.I(f"v_add_f32 {v(z+1)}, {v(src+2)}, {v(src+3)}")
        for i in range(4, 16, 2):
            k.I(f"v_add_f32 {v(z)}, {v(z)}, {v(src+i)}")
            k.I(f"v_add_f32 {v(z+1)}, {v(z+1)}, {v(src+i+1)}")
    k.I(f"v_add_f32 {v(TMP+4)}, {v(TMP)}, {v(TMP+1)}")
    k.I(f"v_add_f32 {v(TMP+5)}, {v(TMP+2)}, {v(TMP+3)}")
    for i in range(16):
        k.I(f"v_cndmask_b32 {v(KVA+i)}, {v(KVB+i)}, {v(KVA+i)}, {s(S_VALID,2)}")
    k.stamp("kv mfma")
    k.I(f"s_mul_i32 {s(S_T0)}, {s(S_W)}, 4608")
    k.I(f"s_add_u32 {s(S_T0)}, {s(S_T0)}, {L_RED}")
    k.I(f"v_add_u32 v8, {s(S_T0)}, {v(V_L16)}")
    for q in range(4):
        k.I(f"ds_write_b128 v8, {v(KVA+4*q,4)} offset:{q*1024}")
    k.I(f"v_lshlrev_b32 v9, 3, {v(V_LANE)}")
    k.I(f"v_add_u32 v9, {s(S_T0)}, v9")
    k.I(f"ds_write_b64 v9, {v(TMP+4,2)} offset:4096")
    k.wait_lg_all()
    k.barrier()
    k.stamp("red barrier")
    k.I(f"s_lshl_b32 {s(S_T0)}, {s(S_W)}, 10")
    k.I(f"s_add_u32 {s(S_T0)}, {s(S_T0)}, {L_RED}")
    k.I(f"v_add_u32 v8, {s(S_T0)}, {v(V_L16)}")
    for ww in range(4):
        k.I(f"ds_read_b128 {v(KVA+4*ww,4)}, v8 offset:{ww*4608}")
    k.I(f"v_lshlrev_b32 v9, 3, {v(V_LANE)}")
    k.I(f"v_add_u32 v9, {L_RED + 4096}, v9")
    for ww in range(4):
        k.I(f"ds_read_b64 {v(KVB+2*ww,2)}, v9 offset:{ww*4608}")
    k.wait_lg_all()
    for h in (0, 2):
        k.I(f"v_pk_add_f32 {v(KVA+h,2)}, {v(KVA+h,2)}, {v(KVA+4+h,2)}")
        k.I(f"v_pk_add_f32 {v(KVA+8+h,2)}, {v(KVA+8+h,2)}, {v(KVA+12+h,2)}")
        k.I(f"v_pk_add_f32 {v(KVA+h,2)}, {v(KVA+h,2)}, {v(KVA+8+h,2)}")
    k.I(f"v_cvt_pk_bf16_f32 {v(KVA)}, {v(KVA)}, {v(KVA+1)}")
    k.I(f"v_cvt_pk_bf16_f32 {v(KVA+1)}, {v(KVA+2)}, {v(KVA+3)}")
    k.I(f"v_pk_add_f32 {v(KVB,2)}, {v(KVB,2)}, {v(KVB+2,2)}")
    k.I(f"v_pk_add_f32 {v(KVB+4,2)}, {v(KVB+4,2)}, {v(KVB+6,2)}")
    k.I(f"v_pk_add_f32 {v(KVB,2)}, {v(KVB,2)}, {v(KVB+4,2)}")
    k.I(f"v_cvt_pk_bf16_f32 {v(KVB)}, {v(KVB)}, {v(KVB+1)}")
    k.test_delay(3)
    k.I(f"v_mov_b32 {v(KVA+2)}, {v(KVB)}")
    k.I(f"v_mov_b32 {v(KVA+3)}, {v(V_TAG)}")
    k.I(f"s_lshl_b32 {s(S_T0)}, {s(S_HP)}, 4")
    k.I(f"s_add_u32 {s(S_T0)}, {s(S_T0)}, {s(S_M)}")
    k.I(f"s_lshl_b32 {s(S_T1)}, {s(S_T0)}, 12")
    k.I(f"s_lshl_b32 {s(S_T2)}, {s(S_W)}, 10")
    k.I(f"s_add_u32 {s(S_T1)}, {s(S_T1)}, {s(S_T2)}")
    k.I(f"s_add_u32 {s(S_T1)}, {s(S_T1)}, {WS_KVP}")
    k.I(f"buffer_store_dwordx4 {v(KVA,4)}, {v(V_L16)}, {srd(S_WS)}, {s(S_T1)} offen sc1", tag="kvst")
    k.wait_vm("wq")
    k.barrier()
    k.stamp("kv published")
    modn_issue(k)
    p1_q(k)
    k.stamp("q gemm")
    kv_addr(k)
    kv_loads(k, "kvp")
    for i in range(16):
        k.I(f"v_mul_f32 {v(AQ+i)}, {v(V_R)}, {v(AQ+i)}")
    for i in range(8):
        k.I(f"v_cvt_pk_bf16_f32 {v(160+i)}, {v(AQ+2*i)}, {v(AQ+2*i+1)}")
    k.mfma32(v(176, 16), a_(PHI_A, 4), v(160, 4), "0")
    k.mfma32(v(176, 16), a_(PHI_B, 4), v(164, 4))
    quad_ids(k)
    softmax16(k, 176, EE, QP, QN, TMP, filler=None if OPT.get("wo_kv", 1) else wo_items(k), every=2)
    k.stamp("q softmax")


S_UB = 101


S_UBO, S_MNO = 90, 91


def p1_side(k, regs):
    ra, rb, rc, rt = regs
    touch_setup(k, ra, rb, rc, rt)
    k.I(f"v_and_b32 {v(rc)}, 31, {v(V_LANE)}")
    k.I(f"v_mul_u32_u24 {v(rc)}, 6144, {v(rc)}")
    k.I(f"s_lshr_b32 {s(S_T0)}, {s(S_G)}, 2")
    k.I(f"s_lshl_b32 {s(S_T0)}, {s(S_T0)}, 7")
    k.I(f"s_and_b32 {s(S_T1)}, {s(S_G)}, 3")
    k.I(f"s_lshl_b32 {s(S_T1)}, {s(S_T1)}, 2")
    k.I(f"s_add_u32 {s(S_T1)}, {s(S_T1)}, {s(S_W)}")
    k.I(f"s_mul_i32 {s(S_T1)}, {s(S_T1)}, {32*6144}")
    k.I(f"s_add_u32 {s(S_MNO)}, {s(S_T0)}, {s(S_T1)}")
    k.I("s_sub_u32 s55, s2, 64")
    k.I("s_cmp_ge_u32 s55, 128")
    k.I(f"s_cselect_b32 {s(S_MNO)}, 0x7ff00000, {s(S_MNO)}")
    items = []
    if OPT["touch"]:
        if OPT.get("tmn", 1):
            items.append([(f"buffer_load_dword v5, {v(rc)}, {srd(S_WMOD)}, {s(S_MNO)} offen{' nt' if OPT.get('tmn_nt', 1) else ''}", "t")])
        for r, a in ((S_WO, ra), (S_WG, rb), (S_WU, rb)):
            items.append([(f"buffer_load_dword v5, {v(a)}, {srd(r)}, 0 offen", "t")])
        if OPT.get("twd", 0):
            items.append([(f"s_lshl_b32 {s(S_T0)}, s2, 2", None), (f"s_add_u32 {s(S_T0)}, {s(S_T0)}, {s(S_W)}", None),
                          (f"s_mul_i32 {s(S_T0)}, {s(S_T0)}, {14*128}", None), (f"v_min_u32 {v(rt)}, 13, {v(V_LANE)}", None),
                          (f"v_lshlrev_b32 {v(rt)}, 7, {v(rt)}", None),
                          (f"buffer_load_dword v5, {v(rt)}, {srd(S_WD)}, {s(S_T0)} offen", "t")])
    return items


def q_image_items(k):
    k.I(f"s_mul_i32 {s(S_T3)}, {s(S_W)}, {128*3072}")
    k.I(f"s_lshl_b32 {s(S_T4)}, {s(S_W)}, 13")
    k.I(f"s_add_u32 {s(S_T4)}, {s(S_T4)}, {L_QI}")
    return [[(f"s_add_u32 {s(S_OFF)}, {s(S_T3)}, {n*16*3072}", None), (f"s_add_u32 m0, {s(S_T4)}, {n*1024}", None),
             (f"buffer_load_dwordx4 v6, {srd(S_WQKV)}, {s(S_OFF)} offen lds", "wq")] for n in range(8)]


def modn_issue(k):
    skip = k.newlabel("mn_i")
    k.I("s_sub_u32 s55, s2, 64")
    k.I("s_cmp_ge_u32 s55, 128")
    k.I(f"s_cbranch_scc1 {skip}")
    k.cond_begin()
    wm_voff(k, 7, 8)
    k.I(f"s_mul_i32 {s(S_OFF)}, {s(S_W)}, {4*196608}")
    k.I(f"s_lshl_b32 {s(S_T0)}, {s(S_W)}, 12")
    k.I(f"s_add_u32 m0, {s(S_T0)}, {L_WMN}")
    for n in range(4):
        k.I(f"buffer_load_dwordx4 v7, {srd(S_WMOD)}, {s(S_OFF)} offen lds")
        if n < 3:
            k.I(f"s_add_u32 m0, m0, 1024")
            k.I(f"s_add_u32 {s(S_OFF)}, {s(S_OFF)}, 196608")
    k.cond_end()
    k.label(skip)


def ub_compute(k):
    skip = k.newlabel("ubc_skip")
    k.I(f"s_cmp_ge_u32 {s(S_I)}, 28")
    k.I(f"s_cbranch_scc1 {skip}")
    k.I(f"s_cmp_lt_u32 {s(S_W)}, 2")
    k.I(f"s_cbranch_scc1 {skip}")
    k.cond_begin()
    S_JOB, S_KH, S_BLK = S_T2, S_T3, S_T4
    k.I(f"s_lshr_b32 {s(S_T0)}, {s(S_XCD)}, 1")
    k.I(f"s_mul_i32 {s(S_JOB)}, {s(S_T0)}, 28")
    k.I(f"s_add_u32 {s(S_JOB)}, {s(S_JOB)}, {s(S_I)}")
    k.I(f"s_cmp_ge_u32 {s(S_JOB)}, 56")
    k.I(f"s_cselect_b32 {s(S_KH)}, 1, 0")
    k.I(f"s_mul_i32 {s(S_T0)}, {s(S_KH)}, 56")
    k.I(f"s_sub_u32 {s(S_BLK)}, {s(S_JOB)}, {s(S_T0)}")
    k.I(f"s_cmp_lt_u32 {s(S_BLK)}, 28")
    for i in range(4):
        k.I(f"s_cselect_b32 {s(S_UBS+i)}, {s(S_WG+i)}, {s(S_WU+i)}")
    k.I(f"s_cselect_b32 {s(S_T0)}, 0, 28")
    k.I(f"s_cselect_b32 {s(S_T1)}, 0, 56")
    k.I(f"s_sub_u32 {s(S_BLK)}, {s(S_BLK)}, {s(S_T0)}")
    k.I(f"s_and_b32 {s(S_T0)}, {s(S_XCD)}, 1")
    k.I(f"s_mul_i32 {s(S_T0)}, {s(S_T0)}, 28")
    k.I(f"s_add_u32 {s(S_BLK)}, {s(S_BLK)}, {s(S_T0)}")
    k.I(f"s_add_u32 {s(S_JOB)}, {s(S_BLK)}, {s(S_T1)}")
    k.I(f"v_lshrrev_b32 v112, 2, {v(V_LANE)}")
    k.I("v_mul_u32_u24 v112, 3584, v112")
    k.I(f"v_and_b32 v113, 3, {v(V_LANE)}")
    k.I("v_lshl_add_u32 v112, v113, 4, v112")
    k.I(f"s_lshl_b32 {s(S_T0)}, {s(S_BLK)}, 6")
    k.I(f"v_add_u32 v112, {s(S_T0)}, v112")
    k.I(f"s_mul_i32 {s(S_OFF)}, {s(S_KH)}, {256*3584}")
    k.I(f"s_and_b32 {s(S_T0)}, {s(S_W)}, 1")
    k.I(f"s_mul_i32 {s(S_T1)}, {s(S_T0)}, {128*3584}")
    k.I(f"s_add_u32 {s(S_OFF)}, {s(S_OFF)}, {s(S_T1)}")
    k.I(f"s_lshl_b32 {s(S_UBH)}, {s(S_T0)}, 13")
    k.I(f"s_add_u32 m0, {s(S_UBH)}, {L_UB}")
    for n in range(8):
        k.dma(112, S_UBS, s(S_OFF))
        if n < 7:
            k.I("s_add_u32 m0, m0, 1024")
            k.I(f"s_add_u32 {s(S_OFF)}, {s(S_OFF)}, {16*3584}")
    k.I(f"s_lshl_b32 {s(S_T0)}, {s(S_KH)}, 10")
    k.I(f"v_add_u32 v114, {s(S_T0)}, {v(V_L16)}")
    k.I(f"v_add_u32 v114, {WS_MODG + 768*8}, v114")
    k.load_granules_checked([116, 120], [114] * 2, "modU", width=4, tagpos=(1, 3), imm=[0, 2048])
    for i, r in enumerate((120, 122)):
        k.unpack(124, 125, r)
        k.I("v_add_f32 v124, 1.0, v124")
        k.I("v_add_f32 v125, 1.0, v125")
        k.I(f"v_cvt_pk_bf16_f32 {v(128+i)}, v124, v125")
    k.I("v_mov_b32 v130, v116")
    k.I("v_mov_b32 v131, v118")
    k.I("v_mov_b32 v132, 0")
    k.I("v_mov_b32 v133, 0")
    k.I(f"v_lshlrev_b32 v113, 3, {v(V_LANE)}")
    k.I(f"v_add_u32 v113, {L_CS}, v113")
    k.I("ds_write_b64 v113, v[128:129]")
    k.I("ds_write_b64 v113, v[130:131] offset:512")
    k.I("ds_write_b64 v113, v[132:133] offset:1024")
    k.I(f"v_and_b32 v113, 31, {v(V_LANE)}")
    k.I("v_min_u32 v113, 2, v113")
    k.I("v_lshlrev_b32 v113, 9, v113")
    k.I(f"v_lshrrev_b32 v114, 5, {v(V_LANE)}")
    k.I("v_lshl_add_u32 v113, v114, 4, v113")
    k.I(f"v_add_u32 v113, {L_CS}, v113")
    k.I(f"s_lshr_b32 {s(S_T0)}, {s(S_UBH)}, 5")
    k.I(f"v_add_u32 v113, {s(S_T0)}, v113")
    lane_fields(k, s_=114, r_=115, c_=116, nh=117)
    k.I("v_lshl_add_u32 v114, v114, 3, v115")
    k.I("v_lshlrev_b32 v114, 6, v114")
    k.I("v_lshl_add_u32 v114, v117, 5, v114")
    k.I("v_lshl_add_u32 v114, v116, 3, v114")
    k.I(f"v_add_u32 v114, {L_UB}, v114")
    k.I(f"v_add_u32 v114, {s(S_UBH)}, v114")
    k.I("s_waitcnt vmcnt(0) lgkmcnt(0)")
    for j in range(8 + 2):
        if j < 8:
            b = 116 + 8 * (j & 3)
            k.I(f"ds_read_b64_tr_b16 {v(b+4,2)}, v114 offset:{j*1024}")
            k.I(f"ds_read_b64_tr_b16 {v(b+6,2)}, v114 offset:{j*1024 + 256}")
            k.I(f"ds_read_b128 {v(b,4)}, v113 offset:{j*32}")
        if j >= 2:
            k.I(f"s_waitcnt lgkmcnt({6 if j < 8 else (3 if j == 8 else 0)})")
            bb = 116 + 8 * ((j - 2) & 3)
            k.mfma32(v(152, 16), v(bb, 4), v(bb + 4, 4), "0" if j == 2 else None)
    w3 = k.newlabel("ub_w3")
    k.wave_is(2, w3)
    k.I(f"v_lshlrev_b32 v113, 3, {v(V_LANE)}")
    k.I(f"v_add_u32 v113, {L_UBP}, v113")
    k.I("ds_write_b64 v113, v[152:153]")
    k.I("s_waitcnt lgkmcnt(0)")
    k.label(w3)
    k.I("v_accvgpr_write_b32 a244, v152")
    k.I("v_accvgpr_write_b32 a245, v153")
    k.I(f"s_mov_b32 {s(S_UBJ)}, {s(S_JOB)}")
    k.I(f"s_mov_b32 {s(S_UBK)}, {s(S_KH)}")
    k.cond_end()
    k.label(skip)


def ub_publish(k):
    skip = k.newlabel("ubp_skip")
    k.I(f"s_cmp_ge_u32 {s(S_I)}, 28")
    k.I(f"s_cbranch_scc1 {skip}")
    k.wave_is(3, skip)
    k.cond_begin()
    S_JOB, S_KH = S_UBJ, S_UBK
    k.test_delay(4)
    k.I(f"v_lshlrev_b32 v174, 3, {v(V_LANE)}")
    k.I(f"v_add_u32 v174, {L_UBP}, v174")
    k.I("ds_read_b64 v[154:155], v174")
    k.I("v_accvgpr_read_b32 v152, a244")
    k.I("v_accvgpr_read_b32 v153, a245")
    k.I("s_waitcnt lgkmcnt(0)")
    k.I("v_add_f32 v152, v152, v154")
    k.I("v_add_f32 v153, v153, v155")
    k.I("v_cvt_pk_bf16_f32 v168, v152, v153")
    k.unpack(170, 171, 168)
    k.I("v_sub_f32 v172, v152, v170")
    k.I("v_sub_f32 v173, v153, v171")
    k.I("v_cvt_pk_bf16_f32 v169, v172, v173")
    k.I(f"s_mov_b32 {s(S_T0)}, 0x05040100")
    k.I(f"s_mov_b32 {s(S_T1)}, 0x07060302")
    k.I(f"v_perm_b32 v176, v169, v168, {s(S_T0)}")
    k.I("v_mov_b32 v177, v168")
    k.I(f"v_perm_b32 v178, v168, v169, {s(S_T1)}")
    k.I(f"v_mov_b32 v179, {v(V_TAG)}")
    k.I(f"s_mul_i32 {s(S_T0)}, {s(S_KH)}, {3584*16}")
    k.I(f"s_lshl_b32 {s(S_T1)}, {s(S_JOB)}, 9")
    k.I(f"s_add_u32 {s(S_T0)}, {s(S_T0)}, {s(S_T1)}")
    k.I(f"s_add_u32 {s(S_T0)}, {s(S_T0)}, {WS_WEXT}")
    k.I(f"v_add_u32 v174, {s(S_T0)}, {v(V_L16)}")
    k.I("s_mov_b32 exec_hi, 0")
    k.I(f"buffer_store_dwordx4 v[176:179], v174, {srd(S_WS)}, 0 offen sc1")
    k.I("s_mov_b64 exec, -1")
    k.cond_end()
    k.label(skip)


S_UBH, S_UBJ, S_UBK = 32, 33, 34
L_UBP = L_UB
S_UBS = 12


def touch_setup(k, ra, rb, rc, rt):
    k.I(f"v_and_b32 {v(ra)}, 31, {v(V_LANE)}")
    k.I(f"v_lshlrev_b32 {v(ra)}, 7, {v(ra)}")
    k.I(f"s_lshl_b32 {s(S_T0)}, {s(S_I)}, 2")
    k.I(f"s_add_u32 {s(S_T0)}, {s(S_T0)}, {s(S_W)}")
    k.I(f"s_lshl_b32 {s(S_T1)}, {s(S_T0)}, 12")
    k.I(f"v_add_u32 {v(ra)}, {s(S_T1)}, {v(ra)}")
    k.I(f"v_min_u32 {v(rb)}, 55, {v(V_LANE)}")
    k.I(f"v_mul_u32_u24 {v(rc)}, 4682, {v(rb)}")
    k.I(f"v_lshrrev_b32 {v(rc)}, 16, {v(rc)}")
    k.I(f"v_mul_u32_u24 {v(rt)}, 14, {v(rc)}")
    k.I(f"v_sub_u32 {v(rb)}, {v(rb)}, {v(rt)}")
    k.I(f"v_lshlrev_b32 {v(rb)}, 7, {v(rb)}")
    k.I(f"v_mul_u32_u24 {v(rc)}, 3584, {v(rc)}")
    k.I(f"v_add_u32 {v(rb)}, {v(rb)}, {v(rc)}")
    k.I(f"s_mul_i32 {s(S_T0)}, {s(S_T0)}, {4*3584}")
    k.I(f"s_and_b32 {s(S_T1)}, {s(S_XCD)}, 1")
    k.I(f"s_mul_i32 {s(S_T1)}, {s(S_T1)}, 1792")
    k.I(f"s_add_u32 {s(S_T0)}, {s(S_T0)}, {s(S_T1)}")
    k.I(f"v_add_u32 {v(rb)}, {s(S_T0)}, {v(rb)}")


def wo_items(k):
    k.I(f"s_and_b32 {s(S_T0)}, {s(S_J2)}, 7")
    k.I(f"s_lshl_b32 {s(S_T0)}, {s(S_T0)}, 7")
    k.I(f"v_lshrrev_b32 v12, 3, {v(V_LANE)}")
    k.I("v_lshlrev_b32 v12, 10, v12")
    k.I(f"v_and_b32 v13, 7, {v(V_LANE)}")
    k.I(f"v_bfe_u32 v14, {v(V_LANE)}, 4, 1")
    k.I("v_lshlrev_b32 v14, 2, v14")
    k.I("v_xor_b32 v13, v13, v14")
    k.I("v_lshl_add_u32 v12, v13, 4, v12")
    k.I(f"v_add_u32 v12, {s(S_T0)}, v12")
    k.I(f"s_lshl_b32 {s(S_T3)}, {s(S_W)}, 17")
    k.I(f"s_lshl_b32 {s(S_T4)}, {s(S_W)}, 14")
    if L_WO:
        k.I(f"s_add_u32 {s(S_T4)}, {s(S_T4)}, {L_WO}")
    return [[(f"s_add_u32 {s(S_OFF)}, {s(S_T3)}, {n*8192}", None), (f"s_add_u32 m0, {s(S_T4)}, {n*1024}", None),
             (f"buffer_load_dwordx4 v12, {srd(S_WO)}, {s(S_OFF)} offen lds", "wo")] for n in range(16)]


def swz128_base(k, dst, cbk_sreg=None, cbk_imm=None, s_mul=16):
    lane_fields(k, s_=8, r_=9, c_=10, nh=11)
    lbase_bytes(k, 12, 11, 10, 13, 14)
    k.I(f"v_mul_u32_u24 v8, {s_mul}, v8")
    k.I("v_add_u32 v8, v8, v9")
    k.I("v_lshlrev_b32 v8, 7, v8")
    k.I("v_lshrrev_b32 v9, 1, v9")
    if cbk_sreg is not None:
        k.I(f"v_xor_b32 v9, {s(cbk_sreg)}, v9")
    elif cbk_imm:
        k.I(f"v_xor_b32 v9, {cbk_imm}, v9")
    k.I("v_lshl_add_u32 v8, v9, 6, v8")
    k.I(f"v_add_u32 {v(dst)}, v8, v12")


KV_PB = 16


def kv_addr(k):
    k.I(f"s_lshl_b32 {s(S_KVB)}, {s(S_HP)}, 16")
    k.I(f"s_lshl_b32 {s(S_T2)}, {s(S_W)}, 10")
    k.I(f"s_add_u32 {s(S_KVB)}, {s(S_KVB)}, {s(S_T2)}")
    k.I(f"s_add_u32 {s(S_KVB)}, {s(S_KVB)}, {WS_KVP}")


def kv_loads(k, tag):
    k.I(f"s_mov_b32 {s(S_OFF)}, {s(S_KVB)}")
    for mm in range(16):
        k.I(f"buffer_load_dwordx4 {v(KV_PB+4*mm,4)}, {v(V_L16)}, {srd(S_WS)}, {s(S_OFF)} offen sc1", tag=tag)
        if mm < 15:
            k.I(f"s_add_u32 {s(S_OFF)}, {s(S_OFF)}, 4096")


S_KVB = 35


def kv_combine_and_o(k):
    PB = KV_PB

    def check():
        k.I(f"v_cmp_ne_u32 vcc, {s(S_TAG)}, {v(PB+3)}")
        for mm in range(1, 16):
            k.I(f"v_cmp_ne_u32 {s(S_EX, 2)}, {s(S_TAG)}, {v(PB+4*mm+3)}")
            k.I(f"s_or_b64 vcc, vcc, {s(S_EX, 2)}")

    probe, ok, full, done = (k.newlabel(x) for x in ("kvp_probe", "kvp_seen", "kvp_full", "kvp_done"))
    k.I("v_mov_b32 v10, 0x3f80")
    k.I("v_mov_b32 v11, 0x3f800000")
    for r in range(176, 182):
        k.I(f"v_mov_b32 {v(r)}, 0")
    k.wait_vm("kvp")
    check()
    k.I(f"s_cbranch_vccz {done}")
    k.cond_begin()
    k.I(f"v_min_u32 v14, 15, {v(V_LANE)}")
    k.I("v_lshlrev_b32 v14, 12, v14")
    k.I(f"v_add_u32 v14, {s(S_KVB)}, v14")
    k.spin_init()
    k.label(probe)
    k.I(f"buffer_load_dword v15, v14, {srd(S_WS)}, 0 offen offset:12 sc1")
    k.I("s_waitcnt vmcnt(0)")
    k.I(f"v_cmp_ne_u32 vcc, {s(S_TAG)}, v15")
    k.spin_back(probe, ok)
    k.label(ok)
    k.label(full)
    kv_loads(k, None)
    k.I("s_waitcnt vmcnt(0)")
    check()
    k.spin_back(full, done)
    k.cond_end()
    k.label(done)
    k.stamp("kvp landed")
    wo = wo_items(k) if OPT.get("wo_kv", 1) else []
    for mm in range(16):
        for d in range(2):
            k.I(f"v_dot2c_f32_bf16 {v(176+2*d)}, {v(PB+4*mm+d)}, v10")
            k.I(f"v_dot2c_f32_bf16 {v(177+2*d)}, {v(PB+4*mm+d)}, v11")
        if wo and mm % 2 == 1:
            for t, tg in wo.pop(0):
                k.I(t, tag=tg)
    k.wo_rest = wo
    zs = k.newlabel("zsum")
    k.wave_is(0, zs)
    for mm in range(16):
        k.I(f"v_dot2c_f32_bf16 v180, {v(PB+4*mm+2)}, v10")
        k.I(f"v_dot2c_f32_bf16 v181, {v(PB+4*mm+2)}, v11")
    k.label(zs)
    k.I("s_nop 2")
    for i in range(6):
        k.I(f"v_mov_b32 {v(160+i)}, {v(176+i)}")
    k.I("v_cvt_pk_bf16_f32 v160, v160, v161")
    k.I("v_cvt_pk_bf16_f32 v161, v162, v163")
    k.I(f"v_lshlrev_b32 v8, 5, {v(V_LANE)}")
    k.I(f"s_lshl_b32 {s(S_T0)}, {s(S_W)}, 3")
    k.I(f"s_add_u32 {s(S_T0)}, {s(S_T0)}, {L_KVF}")
    k.I(f"v_add_u32 v8, {s(S_T0)}, v8")
    k.I("ds_write_b64 v8, v[160:161]")
    k.half_total(164, 166)
    k.half_total(165, 166)
    k.I("v_cvt_pk_bf16_f32 v164, v164, v165")
    k.I(f"v_bfe_u32 v8, {v(V_LANE)}, 2, 1")
    k.I(f"v_bfe_u32 v9, {v(V_LANE)}, 3, 2")
    k.I(f"v_and_b32 v10, 3, {v(V_LANE)}")
    k.I("v_lshl_add_u32 v9, v9, 2, v10")
    k.I("v_lshlrev_b32 v9, 1, v9")
    k.I("v_lshl_add_u32 v10, v8, 5, v9")
    k.I(f"v_add_u32 v10, {L_Z}, v10")
    k.I("v_xor_b32 v8, 1, v8")
    k.I("v_lshl_add_u32 v11, v8, 5, v9")
    k.I(f"v_add_u32 v11, {L_Z + 64}, v11")
    w0 = k.newlabel("zw")
    k.wave_is(0, w0)
    k.cond_begin()
    k.I("ds_write_b16 v10, v164")
    k.I("ds_write_b16_d16_hi v11, v164")
    k.cond_end()
    k.label(w0)
    for it in k.wo_rest[:4]:
        for t, tg in it:
            k.I(t, tag=tg)
    k.wait_lg_all()
    k.barrier()
    k.stamp("kvf barrier")
    k.I(f"v_lshlrev_b32 v8, 5, {v(V_LANE)}")
    k.I(f"v_add_u32 v8, {L_KVF}, v8")
    k.I(f"v_xor_b32 v9, 32, {v(V_LANE)}")
    k.I("v_lshlrev_b32 v9, 5, v9")
    k.I(f"v_add_u32 v9, {L_KVF}, v9")
    k.I(f"v_mov_b32 v10, {L_ZERO}")
    k.I(f"v_cndmask_b32 v8, v10, v8, {s(S_VALID,2)}")
    k.I(f"v_cndmask_b32 v9, v10, v9, {s(S_VALID,2)}")
    k.I(f"v_lshrrev_b32 v10, 5, {v(V_LANE)}")
    k.I("v_lshlrev_b32 v10, 5, v10")
    k.I(f"v_add_u32 v10, {L_Z}, v10")
    PF, NF, ZP, ZN = 112, 120, 128, 136
    k.I(f"ds_read_b128 {v(PF,4)}, v8")
    k.I(f"ds_read_b128 {v(PF+4,4)}, v8 offset:16")
    k.I(f"ds_read_b128 {v(NF,4)}, v9")
    k.I(f"ds_read_b128 {v(NF+4,4)}, v9 offset:16")
    k.I(f"ds_read_b128 {v(ZP,4)}, v10")
    k.I(f"ds_read_b128 {v(ZP+4,4)}, v10 offset:16")
    k.I(f"ds_read_b128 {v(ZN,4)}, v10 offset:64")
    k.I(f"ds_read_b128 {v(ZN+4,4)}, v10 offset:80")
    k.wait_lg_all()
    for it in k.wo_rest[4:]:
        for t, tg in it:
            k.I(t, tag=tg)
    NUM = 144
    k.mfma32(v(NUM, 16), v(PF, 4), v(QP, 4), "0")
    k.mfma32(v(NUM, 16), v(PF + 4, 4), v(QP + 4, 4))
    k.mfma32(v(NUM, 16), v(NF, 4), v(QN, 4))
    k.mfma32(v(NUM, 16), v(NF + 4, 4), v(QN + 4, 4))
    k.I("v_mov_b32 v10, 0")
    k.I("v_mov_b32 v11, 0")
    for i in range(8):
        k.I(f"v_dot2c_f32_bf16 v10, {v(QP+i)}, {v(ZP+i)}")
        k.I(f"v_dot2c_f32_bf16 v11, {v(QN+i)}, {v(ZN+i)}")
    k.I("v_add_f32 v10, v10, v11")
    k.I("v_add_f32 v10, 0x358637bd, v10")
    k.I("v_rcp_f32 v10, v10")
    for i in range(0, 16, 2):
        k.I(f"v_pk_mul_f32 {v(NUM+i,2)}, {v(NUM+i,2)}, v[10:11] op_sel_hi:[1,0]")
    for i in range(8):
        k.I(f"v_cvt_pk_bf16_f32 {v(160+i)}, {v(NUM+2*i)}, {v(NUM+2*i+1)}")
    k.stamp("o computed")
    k.I(f"s_lshl_b32 {s(S_T0)}, {s(S_M)}, 2")
    k.I(f"s_add_u32 {s(S_T0)}, {s(S_T0)}, {s(S_W)}")
    k.I(f"s_lshl_b32 {s(S_T0)}, {s(S_T0)}, 15")
    k.I(f"s_lshl_b32 {s(S_T1)}, {s(S_HP)}, 11")
    k.I(f"s_add_u32 {s(S_T0)}, {s(S_T0)}, {s(S_T1)}")
    k.I(f"s_add_u32 {s(S_T0)}, {s(S_T0)}, {WS_O}")
    k.I(f"v_add_u32 v8, {s(S_T0)}, {v(V_L16)}")
    k.I(f"buffer_store_dwordx4 v[160:163], v8, {srd(S_WS)}, 0 offen sc1")
    k.I(f"buffer_store_dwordx4 v[164:167], v8, {srd(S_WS)}, 0 offen offset:1024 sc1")
    k.wait_vm_all()
    k.I(f"s_lshl_b32 {s(S_T0)}, {s(S_M)}, 4")
    k.I(f"s_add_u32 {s(S_T0)}, {s(S_T0)}, {s(S_J)}")
    k.I(f"s_lshl_b32 {s(S_T0)}, {s(S_T0)}, 7")
    k.I(f"s_add_u32 {s(S_T0)}, {s(S_T0)}, {WS_FO}")
    k.signal(S_T0, "fo")
    k.stamp("o published")
    code_touch(k, 1, 0, t=(12, 13))


S_TBL, S_CBK, S_TB, S_B32 = 96, 97, 98, 99


def quad_ids(k):
    k.I(f"s_and_b32 {s(S_TBL)}, {s(S_W)}, 1")
    k.I(f"s_lshr_b32 {s(S_CBK)}, {s(S_W)}, 1")
    k.I(f"s_lshr_b32 {s(S_T0)}, {s(S_J2)}, 3")
    k.I(f"s_lshl_b32 {s(S_T0)}, {s(S_T0)}, 1")
    k.I(f"s_lshl_b32 {s(S_TB)}, {s(S_M2)}, 2")
    k.I(f"s_add_u32 {s(S_TB)}, {s(S_TB)}, {s(S_T0)}")
    k.I(f"s_add_u32 {s(S_TB)}, {s(S_TB)}, {s(S_TBL)}")
    k.I(f"s_and_b32 {s(S_B32)}, {s(S_J2)}, 7")
    k.I(f"s_lshl_b32 {s(S_B32)}, {s(S_B32)}, 1")
    k.I(f"s_add_u32 {s(S_B32)}, {s(S_B32)}, {s(S_CBK)}")


def mod16(k, dst_regs, gran0, stem):
    k.I(f"v_lshrrev_b32 v8, 5, {v(V_LANE)}")
    k.I("v_lshlrev_b32 v8, 6, v8")
    k.I(f"s_lshl_b32 {s(S_T0)}, {s(S_B32)}, 7")
    k.I(f"s_add_u32 {s(S_T0)}, {s(S_T0)}, {WS_MODG + gran0*8}")
    k.I(f"v_add_u32 v8, {s(S_T0)}, v8")
    k.load_granules_checked([dst_regs + 4 * i for i in range(4)], [8] * 4, stem, width=4, tagpos=(1, 3), imm=[0, 16, 32, 48])


VD = 4
S_M0, S_SO = 90, 91


def ring_setup(k):
    k.I(f"s_and_b32 {s(S_T0)}, {s(S_W)}, 1")
    k.I(f"s_cmp_eq_u32 {s(S_T0)}, 0")
    for i in range(4):
        k.I(f"s_cselect_b32 {s(S_SEL+i)}, {s(S_WG+i)}, {s(S_WU+i)}")
    for n in range(7):
        k.I(f"v_add_u32 v14, {64*n}, {v(V_LANE)}")
        k.I("v_mul_u32_u24 v15, 4682, v14")
        k.I("v_lshrrev_b32 v15, 16, v15")
        k.I(f"v_mul_u32_u24 {v(VD+n)}, 14, v15")
        k.I(f"v_sub_u32 v14, v14, {v(VD+n)}")
        k.I("v_mul_u32_u24 v15, 3584, v15")
        k.I("v_lshl_add_u32 v15, v14, 4, v15")
        k.I(f"s_mul_i32 {s(S_T0)}, {s(S_J)}, 224")
        k.I(f"v_add_u32 {v(VD+n)}, {s(S_T0)}, v15")
    for z in range(448):
        assert (z * 4682) >> 16 == z // 14
    k.I(f"s_lshr_b32 {s(S_T0)}, {s(S_W)}, 1")
    k.I(f"s_mul_i32 {s(S_M0)}, {s(S_T0)}, {SLAB}")
    k.I(f"s_and_b32 {s(S_T1)}, {s(S_W)}, 1")
    k.I(f"s_mul_i32 {s(S_T1)}, {s(S_T1)}, {UOFF}")
    k.I(f"s_add_u32 {s(S_M0)}, {s(S_M0)}, {s(S_T1)}")
    k.I(f"s_mul_i32 {s(S_SO)}, {s(S_T0)}, {32*3584}")


def ring_pair(k, P, as_list=False):
    out = [(f"s_add_u32 m0, {s(S_M0)}, {(P % 5) * 2 * SLAB}", None),
           (f"s_add_u32 {s(S_OFF)}, {s(S_SO)}, {P * 2 * 32 * 3584}", None)]
    for n in range(7):
        out.append((f"buffer_load_dwordx4 {v(VD+n)}, {srd(S_SEL)}, {s(S_OFF)} offen lds", f"W{P}"))
        if n < 6:
            out.append(("s_add_u32 m0, m0, 1024", None))
    if as_list:
        return out
    for t, tg in out:
        k.I(t, tag=tg)


def p2(k):
    XR, GA, CBR = 64, 72, 88
    k.I(f"v_and_b32 v12, 31, {v(V_LANE)}")
    k.I("v_lshlrev_b32 v12, 10, v12")
    k.I(f"v_lshrrev_b32 v13, 5, {v(V_LANE)}")
    k.I("v_lshl_add_u32 v12, v13, 5, v12")
    k.I(f"s_lshl_b32 {s(S_T0)}, {s(S_TB)}, 15")
    k.I(f"s_lshl_b32 {s(S_T1)}, {s(S_B32)}, 6")
    k.I(f"s_add_u32 {s(S_T0)}, {s(S_T0)}, {s(S_T1)}")
    k.I(f"v_add_u32 v12, {s(S_T0)}, v12")
    k.I(f"buffer_load_dwordx4 {v(XR,4)}, v12, {srd(S_X)}, 0 offen", tag="xr")
    k.I(f"buffer_load_dwordx4 {v(XR+4,4)}, v12, {srd(S_X)}, 0 offen offset:16", tag="xr")
    swz128_base(k, 15, cbk_sreg=S_CBK)
    for kap in range(32):
        hp, a = kap >> 1, kap & 1
        for rd in range(2):
            k.I(f"ds_read_b64_tr_b16 {a_(4*kap + 2*rd, 2)}, v15 offset:{L_WO + (32*hp + 8*a + 4*rd)*128}", tag="wof")
        if kap % 4 == 3:
            k.I("s_waitcnt lgkmcnt(6)")
    k.wait_lg_all()
    k.stamp("wof read")
    modn_compute(k)
    k.stamp("modn")
    ring_setup(k)
    k.I(f"v_lshrrev_b32 v13, 5, {v(V_LANE)}")
    k.I("v_lshlrev_b32 v13, 6, v13")
    k.I(f"s_lshl_b32 {s(S_T0)}, {s(S_B32)}, 7")
    k.I(f"s_add_u32 {s(S_T0)}, {s(S_T0)}, {WS_MODG}")
    k.I(f"v_add_u32 v13, {s(S_T0)}, v13")
    k.I(f"v_add_u32 v12, {512*8}, v13")
    k.I(f"v_add_u32 v13, {1024*8}, v13")
    gr = ([GA + 4 * i for i in range(4)] + [CBR + 4 * i for i in range(4)], [12] * 4 + [13] * 4)
    gimm = [0, 16, 32, 48] * 2
    k.I(f"s_lshl_b32 {s(S_T0)}, {s(S_M2)}, 11")
    k.I(f"s_add_u32 {s(S_T0)}, {s(S_T0)}, {WS_FO}")
    k.poll_flags(S_T0, 16, "po")
    k.stamp("o flags seen")
    k.I(f"s_sub_u32 {s(S_T0)}, {s(S_TB)}, {s(S_TBL)}")
    k.I(f"s_lshl_b32 {s(S_T0)}, {s(S_T0)}, 15")
    k.I(f"s_lshl_b32 {s(S_T1)}, {s(S_W)}, 14")
    k.I(f"s_add_u32 {s(S_T2)}, {s(S_T0)}, {s(S_T1)}")
    k.I(f"s_add_u32 {s(S_T2)}, {s(S_T2)}, {WS_O}")
    k.I(f"s_add_u32 {s(S_T3)}, {s(S_T1)}, {L_OI}")
    k.I(f"s_and_b32 {s(S_T4)}, {s(S_J2)}, 7")
    k.I(f"s_lshl_b32 {s(S_T4)}, {s(S_T4)}, 11")
    k._tag = "of"
    for n in range(16):
        k.I(f"s_add_u32 {s(S_T0)}, {s(S_T4)}, {n*1024}")
        k.I(f"s_and_b32 {s(S_T0)}, {s(S_T0)}, 0x3fff")
        k.I(f"s_add_u32 m0, {s(S_T3)}, {s(S_T0)}")
        k.I(f"s_add_u32 {s(S_OFF)}, {s(S_T2)}, {s(S_T0)}")
        k.dma(V_L16, S_WS, s(S_OFF), sc1=True)
    k._tag = None
    k.granule_loads(gr[0], gr[1], 4, gimm, "gacb")
    ring_a = []
    for P in range(3):
        cur = []
        for t, tg in ring_pair(k, P, as_list=True):
            cur.append((t, tg))
            if t.startswith("buffer_"):
                ring_a.append(cur)
                cur = []
    for _ in range(OPT.get("ring_a0", 8)):
        for t, tg in ring_a.pop(0):
            k.I(t, tag=tg)
    k.I(f"s_lshl_b32 {s(S_T0)}, {s(S_TBL)}, 15")
    k.I(f"s_add_u32 {s(S_T0)}, {s(S_T0)}, {L_OI}")
    k.I(f"v_add_u32 v14, {s(S_T0)}, {v(V_L16)}")
    k.wait_vm("of")
    k.barrier()
    k.stamp("o landed")
    GAF, C2F, XF = 144, 160, 176
    pre = [lambda: k.granule_verify(gr[0], gr[1], "gacb", 4, (1, 3), gimm, "gacb")]
    for i in range(8):
        g = GA + 4 * (i >> 1) + 2 * (i & 1)
        c = CBR + 4 * (i >> 1) + 2 * (i & 1)
        pre += [f"v_lshlrev_b32 {v(GAF+2*i)}, 16, {v(g)}", f"v_and_b32 {v(GAF+2*i+1)}, {s(S_MASK)}, {v(g)}",
                f"v_lshlrev_b32 {v(XF+2*i)}, 16, {v(XR+i)}", f"v_and_b32 {v(XF+2*i+1)}, {s(S_MASK)}, {v(XR+i)}",
                f"v_lshlrev_b32 {v(C2F+2*i)}, 16, {v(c)}", f"v_and_b32 {v(C2F+2*i+1)}, {s(S_MASK)}, {v(c)}",
                f"v_add_f32 {v(C2F+2*i)}, 1.0, {v(C2F+2*i)}", f"v_add_f32 {v(C2F+2*i+1)}, 1.0, {v(C2F+2*i+1)}",
                f"v_cvt_pk_bf16_f32 {v(c)}, {v(C2F+2*i)}, {v(C2F+2*i+1)}",
                f"v_lshlrev_b32 {v(C2F+2*i)}, 16, {v(c)}", f"v_and_b32 {v(C2F+2*i+1)}, {s(S_MASK)}, {v(c)}"]
    ACC = 112
    nb = 6
    for kap in range(32 + nb - 2):
        if kap < 32:
            k.I(f"ds_read_b128 {v(16 + 4*(kap % nb), 4)}, v14 offset:{kap*1024}", tag=f"o{kap}")
        q = kap - (nb - 2)
        if q >= 0:
            k.wait_lg(f"o{q}")
            k.mfma32(v(ACC, 16), a_(4 * q, 4), v(16 + 4 * (q % nb), 4), "0" if q == 0 else None)
            if ring_a and q % 2 == 0:
                for t, tg in ring_a.pop(0):
                    k.I(t, tag=tg)
            if q >= 6:
                for _ in range(4):
                    if pre:
                        it = pre.pop(0)
                        it() if callable(it) else k.I(it)
    assert not ring_a and not pre
    k.stamp("wo gemm")
    k.barrier()
    k.stamp("gacb ok")
    ring = []
    for P in range(3, 5):
        items = ring_pair(k, P, as_list=True)
        cur = []
        for t, tg in items:
            cur.append((t, tg))
            if t.startswith("buffer_"):
                ring.append(cur)
                cur = []

    def ring_some(n):
        for _ in range(min(n, len(ring))):
            for t, tg in ring.pop(0):
                k.I(t, tag=tg)

    T = 128
    X1 = 136
    YP = 128
    k.I("v_mov_b32 v40, 0")
    k.I("v_mov_b32 v41, 0")
    k.I("v_mov_b32 v42, 0x3f803f80")
    for i in range(16):
        k.I(f"v_fmac_f32 {v(XF+i)}, {v(GAF+i)}, {v(ACC+i)}")
    for i in range(8):
        k.I(f"v_cvt_pk_bf16_f32 {v(X1+i)}, {v(XF+2*i)}, {v(XF+2*i+1)}")
    ring_some(2)
    for i in range(8):
        k.unpack(XF + 2 * i, XF + 2 * i + 1, X1 + i)
    for i in range(8):
        k.I(f"v_pk_mul_f32 {v(XF+2*i,2)}, {v(XF+2*i,2)}, {v(C2F+2*i,2)}")
    for i in range(8):
        k.I(f"v_cvt_pk_bf16_f32 {v(YP+i)}, {v(XF+2*i)}, {v(XF+2*i+1)}")
    k.I(f"s_lshl_b32 {s(S_T0)}, {s(S_TB)}, 15")
    k.I(f"s_lshl_b32 {s(S_T1)}, {s(S_B32)}, 11")
    k.I(f"s_add_u32 {s(S_T0)}, {s(S_T0)}, {s(S_T1)}")
    k.I(f"s_add_u32 {s(S_T0)}, {s(S_T0)}, {WS_Y}")
    k.I(f"v_add_u32 v12, {s(S_T0)}, {v(V_L16)}")
    k.I(f"buffer_store_dwordx4 {v(YP,4)}, v12, {srd(S_WS)}, 0 offen sc1", tag="yst")
    k.I(f"buffer_store_dwordx4 {v(YP+4,4)}, v12, {srd(S_WS)}, 0 offen offset:1024 sc1", tag="yst")
    for i in range(8):
        k.I(f"v_dot2c_f32_bf16 v40, {v(X1+i)}, v42")
        k.I(f"v_dot2c_f32_bf16 v41, {v(X1+i)}, {v(X1+i)}")
    k.half_total(40, 43)
    k.half_total(41, 43)
    k.I(f"s_lshl_b32 {s(S_T0)}, {s(S_TB)}, 4")
    k.I(f"s_add_u32 {s(S_T0)}, {s(S_T0)}, {s(S_B32)}")
    k.I(f"s_lshl_b32 {s(S_T0)}, {s(S_T0)}, 8")
    k.I(f"s_add_u32 {s(S_T0)}, {s(S_T0)}, {WS_STATS}")
    k.I(f"v_lshlrev_b32 v12, 3, {v(V_LANE)}")
    k.I(f"v_add_u32 v12, {s(S_T0)}, v12")
    k.I("s_mov_b32 exec_hi, 0")
    k.I(f"buffer_store_dwordx2 v[40:41], v12, {srd(S_WS)}, 0 offen sc1", tag="yst")
    k.I("s_mov_b64 exec, -1")
    k.stamp("y stored")
    ring_some(OPT.get("ring_pre", 8))
    k.stamp("ring b")
    for i in range(8):
        k.I(f"v_accvgpr_write_b32 {a_(248+i)}, {v(X1+i)}")
    k.wait_vm("yst")
    k.I(f"s_lshl_b32 {s(S_T0)}, {s(S_M2)}, 4")
    k.I(f"s_add_u32 {s(S_T0)}, {s(S_T0)}, {s(S_J2)}")
    k.I(f"s_lshl_b32 {s(S_T0)}, {s(S_T0)}, 7")
    k.I(f"s_add_u32 {s(S_T0)}, {s(S_T0)}, {WS_FY}")
    k.signal(S_T0, "fy")
    noe = k.newlabel("noepoch")
    k.I("s_cmp_eq_u32 s2, 0")
    k.I(f"s_cbranch_scc0 {noe}")
    k.wave_is(0, noe)
    k.cond_begin()
    k.I("v_mov_b32 v12, 0")
    k.I("s_mov_b64 exec, 1")
    k.I(f"buffer_store_dword {v(V_TAG)}, v12, {srd(S_WS)}, 0 offen sc1")
    k.I("s_mov_b64 exec, -1")
    k.cond_end()
    k.label(noe)
    k.stamp("y published")
    ring_some(len(ring))
    ub_compute(k)
    k.stamp("ub")


def p3_tail(k, ST, AE, BE):
    it = [lambda: k.wait_vm("st")]
    for i in range(1, 8):
        it.append(f"v_add_f32 v16, v16, {v(ST+2*i)}")
        it.append(f"v_add_f32 v17, v17, {v(ST+2*i+1)}")
    for r in (16, 17):
        it += [f"v_mov_b32 v18, {v(r)}", "s_nop 1", f"v_permlane32_swap_b32 {v(r)}, v18", f"v_add_f32 {v(r)}, {v(r)}, v18"]
    it += ["v_mul_f32 v16, 0x3b000000, v16", "v_mul_f32 v17, 0x3b000000, v17", "v_fma_f32 v17, -v16, v16, v17",
           "v_max_f32 v17, 0, v17", "v_add_f32 v17, 0x3727c5ac, v17", "v_rsq_f32 v18, v17", "v_sub_f32 v16, 0, v16",
           "v_mul_f32 v19, v17, v18", "v_mul_f32 v20, v18, v18", "v_cvt_pk_bf16_f32 v22, v16, v19",
           "v_lshlrev_b32 v24, 16, v22", f"v_and_b32 v25, {s(S_MASK)}, v22", "v_sub_f32 v24, v16, v24", "v_sub_f32 v25, v19, v25",
           "v_cvt_pk_bf16_f32 v23, v24, v25",
           f"s_mov_b32 {s(S_T1)}, 0x01000100", f"v_perm_b32 {v(BE)}, v22, v22, {s(S_T1)}",
           f"s_mov_b32 {s(S_T1)}, 0x07060100", f"v_perm_b32 {v(BE+1)}, v22, v23, {s(S_T1)}",
           f"s_mov_b32 {s(S_T1)}, 0x07060302", f"v_perm_b32 {v(BE+2)}, v23, v22, {s(S_T1)}",
           f"v_mov_b32 {v(BE+3)}, 0", f"v_cmp_gt_u32 vcc, 32, {v(V_LANE)}"]
    it.append(lambda: [k.I(f"v_cndmask_b32 {v(BE+i)}, 0, {v(BE+i)}, vcc") for i in range(3)])
    regs = [AE + 28 * h + 4 * b for h in range(2) for b in range(7)]
    it.append(lambda: k.granule_verify(regs, [14] * 7 + [15] * 7, "wext", 4, (3,), [256 * b for b in range(7)] * 2, "wext"))
    it += [f"v_mov_b32 {v(r+3)}, 0" for r in regs]
    return it


def p3(k):
    Y0, ACC = 16, 144
    VTR = (11, 12, 13)
    lane_fields(k, s_=14, r_=15)
    k.I("v_lshl_add_u32 v14, v14, 4, v15")
    k.I("v_mul_u32_u24 v14, 224, v14")
    k.I(f"v_bfe_u32 v15, {v(V_LANE)}, 4, 1")
    k.I(f"v_mul_u32_u24 v15, {UOFF}, v15")
    k.I("v_add_u32 v14, v14, v15")
    k.I(f"v_and_b32 v15, 1, {v(V_LANE)}")
    k.I("v_lshl_add_u32 v14, v15, 4, v14")
    k.I(f"v_bfe_u32 v15, {v(V_LANE)}, 1, 1")
    k.I(f"v_lshl_add_u32 {v(VTR[0])}, v15, 3, v14")
    k.I(f"v_add_u32 {v(VTR[1])}, {4*SLAB}, {v(VTR[0])}")
    k.I(f"v_add_u32 {v(VTR[2])}, {8*SLAB}, {v(VTR[0])}")
    k.I(f"s_lshl_b32 {s(S_T0)}, {s(S_M)}, 11")
    k.I(f"s_add_u32 {s(S_T0)}, {s(S_T0)}, {WS_FY}")
    k.wait_vm_all()
    k.poll_flags(S_T0, 16, "py")
    k.stamp("y flags seen")
    S_TB3 = S_T2
    k.I(f"s_lshl_b32 {s(S_TB3)}, {s(S_M)}, 2")
    k.I(f"s_add_u32 {s(S_TB3)}, {s(S_TB3)}, {s(S_W)}")
    k.I(f"s_lshl_b32 {s(S_T3)}, {s(S_TB3)}, 15")
    k.I(f"s_add_u32 {s(S_T3)}, {s(S_T3)}, {WS_Y}")

    def ld_y(kap):
        out = []
        if kap and kap & 3 == 0:
            out.append((f"s_add_u32 {s(S_T3)}, {s(S_T3)}, 4096", None))
        out.append((f"buffer_load_dwordx4 {v(Y0+4*kap,4)}, {v(V_L16)}, {srd(S_WS)}, {s(S_T3)} offen offset:{(kap&3)*1024} sc1", f"y{kap}"))
        return out

    if OPT.get("coop", 0):
        k.I(f"v_and_b32 v14, 31, {v(V_LANE)}")
        k.I("v_lshlrev_b32 v14, 7, v14")
        k.I(f"s_and_b32 {s(S_T0)}, {s(S_J)}, 7")
        k.I(f"s_lshl_b32 {s(S_T0)}, {s(S_T0)}, 12")
        k.I(f"v_add_u32 v14, {s(S_T0)}, v14")
        k.I(f"buffer_load_dword v0, v14, {srd(S_WS)}, {s(S_T3)} offen", tag="t")
    NY0 = OPT.get('ny0', 20)
    for kap in range(NY0):
        for t, tg in ld_y(kap):
            k.I(t, tag=tg)

    def rd_w(kap, beta):
        B, a = kap >> 1, kap & 1
        P = B >> 1
        slot = (P % 5) * 2 + (B & 1)
        base = VTR[slot >> 2]
        return [(f"ds_read_b64_tr_b16 {a_(28*(kap&1) + 4*beta + 2*rd, 2)}, {v(base)} offset:{(slot & 3) * SLAB + (8*a + 4*rd)*224 + 32*beta}", f"w{kap}_{beta}") for rd in range(2)]

    ub_publish(k)
    for beta in range(7):
        for t, tg in rd_w(0, beta):
            k.I(t, tag=tg)
    side = []
    tail = []
    ST, AE, BE = 16, 32, 28
    for kap in range(32):
        P = kap >> 2
        if kap & 3 == 3 and P < 7:
            k.wait_vm(f"W{P+1}")
            if not OPT.get("x_nobar"):
                k.barrier()
            if 1 <= P <= 3 and not OPT.get("x_noring"):
                side += ring_pair(k, P + 4, as_list=True)
        if kap + NY0 < 32:
            side = ld_y(kap + NY0) + side
        if OPT["touch"] and kap == OPT.get("twdk", 24):
            side.append((f"s_lshl_b32 {s(S_T0)}, {s(S_I)}, 2", None))
            side.append((f"s_add_u32 {s(S_T0)}, {s(S_T0)}, {s(S_W)}", None))
            side.append((f"s_mul_i32 {s(S_T0)}, {s(S_T0)}, {112*128}", None))
            side.append((f"v_min_u32 v7, 55, {v(V_LANE)}", None))
            side.append(("v_lshlrev_b32 v7, 7, v7", None))
            side.append((f"buffer_load_dword v0, v7, {srd(S_WD)}, {s(S_T0)} offen", "t"))
            side.append((f"s_add_u32 {s(S_T0)}, {s(S_T0)}, {56*128}", None))
            side.append((f"buffer_load_dword v0, v7, {srd(S_WD)}, {s(S_T0)} offen", "t"))
        if kap == OPT.get('kst', 18):
            side.append((f"s_lshl_b32 {s(S_T0)}, {s(S_TB3)}, 12", None))
            side.append((f"s_add_u32 {s(S_T0)}, {s(S_T0)}, {WS_STATS}", None))
            side.append((f"v_and_b32 v14, 31, {v(V_LANE)}", None))
            side.append(("v_lshlrev_b32 v14, 3, v14", None))
            side.append((f"v_lshrrev_b32 v15, 5, {v(V_LANE)}", None))
            side.append(("v_lshl_add_u32 v14, v15, 11, v14", None))
            side.append((f"v_add_u32 v14, {s(S_T0)}, v14", None))
            for i in range(8):
                side.append((f"buffer_load_dwordx2 {v(ST+2*i,2)}, v14, {srd(S_WS)}, 0 offen offset:{i*256} sc1", "st"))
        if kap == OPT.get('kwx', 22):
            for t in (f"v_bfe_u32 v14, {v(V_LANE)}, 2, 1", "v_lshlrev_b32 v14, 3, v14", f"v_bfe_u32 v15, {v(V_LANE)}, 3, 1",
                      "v_lshl_add_u32 v14, v15, 2, v14", f"v_and_b32 v15, 3, {v(V_LANE)}", "v_add_u32 v14, v14, v15",
                      f"v_bfe_u32 v15, {v(V_LANE)}, 4, 1", "v_mul_u32_u24 v15, 1792, v15", "v_add_u32 v14, v14, v15",
                      f"s_mul_i32 {s(S_T0)}, {s(S_J)}, 112", f"v_add_u32 v14, {s(S_T0)}, v14", "v_lshlrev_b32 v14, 4, v14",
                      f"v_add_u32 v14, {WS_WEXT}, v14", f"v_add_u32 v15, {3584*16}, v14"):
                side.append((t, None))
            for h in range(2):
                for b in range(7):
                    side.append((f"buffer_load_dwordx4 {v(AE+28*h+4*b,4)}, {v(14+h)}, {srd(S_WS)}, 0 offen offset:{256*b} sc1", "wext"))
        if kap == OPT.get('kwd', 20):
            side += [(t, None) for t in wd_setup_items()]
        if kap == 23 and OPT.get("g0loop"):
            for it in wd_dma(0, WD_G1):
                side += it
        if kap == 26:
            tail = p3_tail(k, ST, AE, BE)
        k.wait_vm(f"y{kap}")
        if kap in (1, 8, 16, 24):
            k.stamp(f"p3 k{kap}")
        for beta in range(7):
            k.wait_lg(f"w{kap}_{beta}")
            k.mfma32(v(ACC + 16 * beta, 16), a_(28 * (kap & 1) + 4 * beta, 4), v(Y0 + 4 * kap, 4), "0" if kap == 0 else None)
            if kap + 1 < 32 and not OPT.get("x_notr"):
                for t, tg in rd_w(kap + 1, beta):
                    k.I(t, tag=tg)
            for _ in range(2):
                if tail:
                    it = tail.pop(0)
                    it() if callable(it) else k.I(it)
            nvm = 0
            while side and nvm < 1:
                t, tg = side.pop(0)
                k.I(t, tag=tg)
                if t.startswith("buffer_"):
                    nvm += 1
    for t, tg in side:
        k.I(t, tag=tg)
    assert not tail
    for h in range(2):
        for b in range(7):
            k.mfma32(v(ACC + 16 * b, 16), v(AE + 28 * h + 4 * b, 4), v(BE, 4))
    k.stamp("gate/up gemm")
    k.barrier()
    wd_bases(k)
    dm = wd_dma(WD_G1, WD_G2) if OPT.get("g0loop") else wd_dma(0, WD_G2)
    k.I(f"s_mul_i32 {s(S_T0)}, {s(S_TB3)}, 112")
    k.I(f"s_mul_i32 {s(S_T1)}, {s(S_J)}, 7")
    k.I(f"s_add_u32 {s(S_T0)}, {s(S_T0)}, {s(S_T1)}")
    k.I(f"s_lshl_b32 {s(S_T0)}, {s(S_T0)}, 10")
    k.I(f"s_add_u32 {s(S_AO)}, {s(S_T0)}, {WS_ACT}")

    def dma_some(n):
        for _ in range(n):
            for t, tg in dm.pop(0):
                k.I(t, tag=tg)

    for b in range(7):
        G = ACC + 16 * b
        U = G + 8
        o = 96 + 4 * b
        for e in range(0, 8, 2):
            k.I(f"v_pk_mul_f32 {v(U+e,2)}, {v(U+e,2)}, v[20:21] op_sel_hi:[1,0]")
        for e in range(8):
            k.I(f"v_max_f32 {v(G+e)}, 0, {v(G+e)}")
        for e in range(0, 8, 2):
            k.I(f"v_pk_mul_f32 {v(G+e,2)}, {v(G+e,2)}, {v(U+e,2)}")
        for e in range(0, 8, 2):
            k.I(f"v_cvt_pk_bf16_f32 {v(o+e//2)}, {v(G+e)}, {v(G+e+1)}")
        k.I(f"buffer_store_dwordx4 {v(o,4)}, {v(V_L16)}, {srd(S_WS)}, {s(S_AO)} offen offset:{(b&3)*1024} sc1", tag="ast")
        if b == 3:
            k.I(f"s_add_u32 {s(S_AO)}, {s(S_AO)}, 4096")
        if b < 6:
            dma_some(OPT.get("wd_mix", 2))
    k.stamp("act stored")
    dma_some(OPT.get("wd_pre", 8))

    def g0_reads():
        k.wait_vm(f"wd{WD_G1-1}")
        for kl in range(WD_G1):
            for t, tg in wd_reads(kl):
                k.I(t, tag=tg)
            if kl % 2 == 1:
                k.I("s_waitcnt lgkmcnt(4)")
    k.wait_vm("ast")
    k.I(f"s_lshl_b32 {s(S_T0)}, {s(S_M)}, 4")
    k.I(f"s_add_u32 {s(S_T0)}, {s(S_T0)}, {s(S_J)}")
    k.I(f"s_lshl_b32 {s(S_T0)}, {s(S_T0)}, 7")
    k.I(f"s_add_u32 {s(S_T0)}, {s(S_T0)}, {WS_FA}")
    k.signal(S_T0, "fa")
    k.stamp("act published")
    dma_some(len(dm))
    g0_reads()
    k.wait_lg_all()
    k.stamp("wf0 read")


S_AO = 91


S_WDB, S_WDT = 90, 12
S_WDO = 3
WD_TOP = 87552
WD_G1, WD_G2 = 9, 19
V_WD = 4
V_WB, V_WT = 5, 10


def wd_setup_items():
    return [f"s_and_b32 {s(S_T0)}, {s(S_J2)}, 7", f"s_lshl_b32 {s(S_T0)}, {s(S_T0)}, 7",
            f"v_lshrrev_b32 v4, 3, {v(V_LANE)}", "v_lshlrev_b32 v4, 10, v4", f"v_and_b32 v5, 7, {v(V_LANE)}",
            f"v_bfe_u32 v6, {v(V_LANE)}, 4, 1", "v_lshlrev_b32 v6, 2, v6", "v_xor_b32 v5, v5, v6",
            "v_lshl_add_u32 v4, v5, 4, v4", f"v_add_u32 v4, {s(S_T0)}, v4",
            f"s_mul_i32 {s(S_WDB)}, {s(S_W)}, 20480", f"s_mul_i32 {s(S_WDT)}, {s(S_W)}, 18432",
            f"s_add_u32 {s(S_WDT)}, {s(S_WDT)}, {WD_TOP}", f"s_mul_i32 {s(S_WDO)}, {s(S_W)}, {448*1024}"]


def wd_bases(k):
    swz128_base(k, 5, cbk_imm=0, s_mul=8)
    k.I(f"v_add_u32 v10, {s(S_WDT)}, v5")
    k.I("v_xor_b32 v11, 64, v10")
    k.I(f"v_add_u32 v5, {s(S_WDB)}, v5")
    k.I("v_xor_b32 v6, 64, v5")


def wd_slot(kl):
    if kl < WD_G1:
        return S_WDT, V_WT, kl * 2048
    if kl < WD_G2:
        return S_WDB, V_WB, (kl - WD_G1) * 2048
    return S_WDT, V_WT, (kl - WD_G2) * 2048


def wd_dma(k0, k1):
    out = []
    for kl in range(k0, k1):
        sb, _, off = wd_slot(kl)
        for h in range(2):
            out.append([(f"s_add_u32 {s(S_OFF)}, {s(S_WDO)}, {(16*kl + 8*h)*1024}", None),
                        (f"s_add_u32 m0, {s(sb)}, {off + h*1024}", None),
                        (f"buffer_load_dwordx4 v4, {srd(S_WD)}, {s(S_OFF)} offen lds", f"wd{kl}")])
    return out


def wd_reads(kl):
    _, vb, off = wd_slot(kl)
    return [(f"ds_read_b64_tr_b16 {a_((2*kl + cbk)*4 + 2*rd, 2)}, {v(vb+cbk)} offset:{off + rd*512}", f"wf{kl}")
            for cbk in range(2) for rd in range(2)]


def p4(k):
    GB = 176
    k.I(f"v_lshrrev_b32 v8, 5, {v(V_LANE)}")
    k.I("v_lshlrev_b32 v8, 6, v8")
    k.I(f"s_lshl_b32 {s(S_T0)}, {s(S_B32)}, 7")
    k.I(f"s_add_u32 {s(S_T0)}, {s(S_T0)}, {WS_MODG + 1280*8}")
    k.I(f"v_add_u32 v8, {s(S_T0)}, v8")
    greg = [GB + 4 * i for i in range(4)]
    for it in wd_dma(WD_G2, 28):
        for t, tg in it:
            k.I(t, tag=tg)
    k.I(f"s_lshl_b32 {s(S_T0)}, {s(S_M2)}, 11")
    k.I(f"s_add_u32 {s(S_T0)}, {s(S_T0)}, {WS_FA}")
    k.poll_flags(S_T0, 16, "pa")
    k.stamp("act flags seen")
    k.I(f"s_sub_u32 {s(S_T0)}, {s(S_TB)}, {s(S_TBL)}")
    k.I(f"s_mul_i32 {s(S_T0)}, {s(S_T0)}, {112*1024}")
    k.I(f"s_mul_i32 {s(S_T1)}, {s(S_W)}, {28*1024}")
    k.I(f"s_add_u32 {s(S_T0)}, {s(S_T0)}, {s(S_T1)}")
    S_A0, S_A1 = S_T3, S_T4
    k.I(f"s_add_u32 {s(S_A0)}, {s(S_T0)}, {WS_ACT}")
    k.I(f"s_add_u32 {s(S_A1)}, {s(S_A0)}, {112*1024}")
    NB = OPT.get("nb4", 12)
    AB = 16
    ACC = 192

    def ld(kl):
        out = []
        for tbl in range(2):
            r = AB + 8 * (kl % NB) + 4 * tbl
            out.append((f"buffer_load_dwordx4 {v(r,4)}, {v(V_L16)}, {srd(S_WS)}, {s(S_A0 + tbl)} offen offset:{(kl&3)*1024} sc1", f"a{kl}"))
        if kl & 3 == 3:
            out.append((f"s_add_u32 {s(S_A0)}, {s(S_A0)}, 4096", None))
            out.append((f"s_add_u32 {s(S_A1)}, {s(S_A1)}, 4096", None))
        return out

    for kl in range(NB):
        for t, tg in ld(kl):
            k.I(t, tag=tg)
    k.granule_loads(greg, [8] * 4, 4, [0, 16, 32, 48], "gb")
    GBF, X1F = 112, 128
    pre = [lambda: k.granule_verify(greg, [8] * 4, "gb", 4, (1, 3), [0, 16, 32, 48], "gb")]
    for i in range(8):
        g = GB + 4 * (i >> 1) + 2 * (i & 1)
        pre += [f"v_lshlrev_b32 {v(GBF+2*i)}, 16, {v(g)}", f"v_and_b32 {v(GBF+2*i+1)}, {s(S_MASK)}, {v(g)}",
                f"v_accvgpr_read_b32 v144, {a_(248+i)}", f"v_lshlrev_b32 {v(X1F+2*i)}, 16, v144", f"v_and_b32 {v(X1F+2*i+1)}, {s(S_MASK)}, v144"]
    for kl in range(28):
        k.wait_vm(f"a{kl}")
        if kl in (1, 7, 14, 21):
            k.stamp(f"p4 k{kl}")
        rds = wd_reads(kl + 3) if WD_G1 <= kl + 3 < 28 else []
        if kl >= WD_G1:
            k.wait_lg(f"wf{kl}")
        nxt = ld(kl + NB) if kl + NB < 28 else []
        for tbl in range(2):
            for cbk in range(2):
                r = AB + 8 * (kl % NB) + 4 * tbl
                k.mfma32(v(ACC + 16 * (2 * cbk + tbl), 16), a_((2 * kl + cbk) * 4, 4), v(r, 4), "0" if kl == 0 else None)
                if rds:
                    t, tg = rds.pop(0)
                    k.I(t, tag=tg)
                if tbl == 1 and nxt:
                    t, tg = nxt.pop(0)
                    k.I(t, tag=tg)
                if kl >= 10 and pre:
                    it = pre.pop(0)
                    it() if callable(it) else k.I(it)
        for t, tg in nxt:
            k.I(t, tag=tg)
    assert not pre
    k.stamp("down gemm")
    k.wait_lg_all()
    k.barrier()
    k.I(f"s_lshl_b32 {s(S_T0)}, {s(S_W)}, 12")
    k.I(f"v_add_u32 v8, {s(S_T0)}, {v(V_L16)}")
    k.I(f"v_add_u32 v9, 32768, v8")
    for q in range(4):
        sk = k.newlabel("r4w")
        k.I(f"s_cmp_eq_u32 {s(S_W)}, {q}")
        k.I(f"s_cbranch_scc1 {sk}")
        k.cond_begin()
        for i in range(4):
            base = 8 if q < 2 else 9
            k.I(f"ds_write_b128 {v(base)}, {v(ACC+16*q+4*i,4)} offset:{(q&1)*16384 + i*1024}")
        k.cond_end()
        k.label(sk)
    k.wait_lg_all()
    k.barrier()
    k.I(f"s_lshl_b32 {s(S_T0)}, {s(S_W)}, 14")
    k.I(f"v_add_u32 v8, {s(S_T0)}, {v(V_L16)}")
    for d in range(1, 4):
        k.I(f"s_add_u32 {s(S_T1)}, {s(S_W)}, {d}")
        k.I(f"s_and_b32 {s(S_T1)}, {s(S_T1)}, 3")
        k.I(f"s_lshl_b32 {s(S_T1)}, {s(S_T1)}, 12")
        k.I(f"v_add_u32 v9, {s(S_T1)}, v8")
        for i in range(4):
            k.I(f"ds_read_b128 {v(32+16*(d-1)+4*i,4)}, v9 offset:{i*1024}")
    for q in range(4):
        sk = k.newlabel("r4m")
        k.I(f"s_cmp_eq_u32 {s(S_W)}, {q}")
        k.I(f"s_cbranch_scc0 {sk}")
        for i in range(0, 16, 2):
            k.I(f"v_pk_mul_f32 {v(16+i,2)}, {v(ACC+16*q+i,2)}, 1.0 op_sel_hi:[1,0]")
        k.label(sk)
    k.wait_lg_all()
    for d in range(3):
        for i in range(0, 16, 2):
            k.I(f"v_pk_add_f32 {v(16+i,2)}, {v(16+i,2)}, {v(32+16*d+i,2)}")
    for i in range(16):
        k.I(f"v_fmac_f32 {v(X1F+i)}, {v(GBF+i)}, {v(16+i)}")
    for i in range(8):
        k.I(f"v_cvt_pk_bf16_f32 {v(88+i)}, {v(X1F+2*i)}, {v(X1F+2*i+1)}")
    k.I(f"v_and_b32 v8, 31, {v(V_LANE)}")
    k.I("v_lshlrev_b32 v8, 10, v8")
    k.I(f"v_lshrrev_b32 v9, 5, {v(V_LANE)}")
    k.I("v_lshl_add_u32 v8, v9, 5, v8")
    k.I(f"s_lshl_b32 {s(S_T0)}, {s(S_TB)}, 15")
    k.I(f"s_lshl_b32 {s(S_T1)}, {s(S_B32)}, 6")
    k.I(f"s_add_u32 {s(S_T0)}, {s(S_T0)}, {s(S_T1)}")
    k.I(f"v_add_u32 v8, {s(S_T0)}, v8")
    fl = {0: "", 1: " sc1", 2: " nt", 3: " sc0 sc1"}[OPT.get("outst", 0)]
    k.I(f"buffer_store_dwordx4 v[88:91], v8, {srd(S_OUT)}, 0 offen{fl}")
    k.I(f"buffer_store_dwordx4 v[92:95], v8, {srd(S_OUT)}, 0 offen offset:16{fl}")
    k.stamp("out stored")


def finish(k):
    if k.diag == "dbg":
        sk = k.newlabel("fin")
        k.wave_is(0, sk)
        k.I("s_load_dwordx2 s[92:93], s[0:1], 88")
        k.I("s_waitcnt lgkmcnt(0)")
        k.I("s_mov_b32 s94, 256")
        k.I("s_mov_b32 s95, 0x20000")
        k.I("s_mov_b64 exec, 1")
        sel = k.dbg_sel
        for slot, i in enumerate(sel):
            k.I(f"v_mov_b32 v9, {s(S_STAMP+i)}")
            if slot == 0:
                k.I("v_not_b32 v9, v9")
            k.I(f"v_mov_b32 v8, {4*slot}")
            k.I(f"buffer_atomic_umax v9, v8, s[92:95], 0 offen")
        k.label(sk)
    elif k.diag:
        sk = k.newlabel("fin")
        k.wave_is(0, sk)
        k.I(f"s_lshl_b32 {s(S_T0)}, s2, 7")
        k.I(f"s_add_u32 {s(S_T0)}, {s(S_T0)}, {WS_STAMP}")
        k.I(f"v_mov_b32 v8, {s(S_T0)}")
        k.I("s_mov_b64 exec, 1")
        for i in range(k.nstamp):
            k.I(f"v_mov_b32 v9, {s(S_STAMP+i)}")
            k.I(f"buffer_store_dword v9, v8, {srd(S_WS)}, 0 offen offset:{4*i}")
        k.label(sk)
    k.label("L_end")
    k.I("s_endpgm")


def build(diag=False, stop=None):
    k = K(diag, stop)
    phases = [prologue, start_phase, p1_prologue, p1_main, p1_epilogue,
              kv_combine_and_o, p2, p3, p4]
    for ph in phases:
        k.comment(f"======== {ph.__name__} ========")
        ph(k)
        if stop == ph.__name__:
            break
    k.dbg_sel = list(range(min(k.nstamp, 16)))
    if k.nstamp > 16:
        k.dbg_sel = [0, 1, 3, 4, 5, 7, 8, 9, 10, 11, 12, 13, 14, 15, 16, 17][:16]
    finish(k)
    hdr = open("cdna_kernels/" + NAME + ".s.ref").read().split("; Override launch geometry")[0]
    txt = hdr
    txt += f"; @launch grid=(256,1,1) block=(256,1,1) lds={LDS_BYTES}\n"
    txt += '.amdgcn_target "amdgcn-amd-amdhsa--gfx950"\n.text\n'
    txt += f".globl {NAME}_kernel\n.p2align 8\n.type {NAME}_kernel,@function\n{NAME}_kernel:\n"
    txt += k.text()
    txt += f""".section .rodata,"a"
.p2align 6
.amdhsa_kernel {NAME}_kernel
  .amdhsa_next_free_vgpr 512
  .amdhsa_next_free_sgpr 102
  .amdhsa_accum_offset 256
  .amdhsa_group_segment_fixed_size 0
  .amdhsa_kernarg_size 104
  .amdhsa_user_sgpr_count 2
  .amdhsa_user_sgpr_kernarg_segment_ptr 1
  .amdhsa_system_sgpr_workgroup_id_x 1
.end_amdhsa_kernel
"""
    return txt, k


if __name__ == "__main__":
    out = sys.argv[1] if len(sys.argv) > 1 else "k.s"
    for a in sys.argv:
        if a.startswith("--opt="):
            for kv in a[6:].split(","):
                kk, vv = kv.split("=")
                OPT[kk] = int(vv)
    diag = "--diag" in sys.argv
    if "--dbg" in sys.argv:
        diag = "dbg"
    stop = None
    for a in sys.argv:
        if a.startswith("--stop="):
            stop = a.split("=")[1]
    txt, k = build(diag, stop)
    open(out, "w").write(txt)
    if OPT.get("tmo"):
        open(out + ".tmo", "w").write("\n".join(k.tmo_names) + "\n")
    if diag:
        open(out + ".stamps", "w").write("\n".join(k.stamp_names) + "\n")
    print(f"wrote {out}: {len(txt)} bytes, {sum(1 for l in k.out if l.startswith(chr(9)))} instructions, {k.nops} hazard nops")
```

```python
import sys
from asmlib import Asm

NAME = "adaLN_cond__linear_kernel_hedgehog__glu_gated_reglu__prompt"

WS_E = 0
WS_MODG = 0x1000
WS_FKV = 0x4000
WS_FO = 0xC000
WS_FY = 0x14000
WS_FA = 0x1C000
WS_STAMP = 0x30000
WS_WEXT = 0x40000
WS_STATS = 0x80000
WS_MODC = 0x60000
WS_KVP = 0x100000
WS_O = 0x200000
WS_Y = 0x400000
WS_ACT = 0x800000

L_XI = 0
L_WI = 0
L_WM = 131072
L_S = 158720
L_RT = 159744
L_WMN = 114688
L_KVI = 0
L_QI = 65536
L_GP = 148480
L_CT = 139264
L_PHI = 153600
L_ZERO = 154624
L_RED = 0
L_KVF = 149504
L_Z = 151552
L_UB = 145920
L_CS = 162304
L_WO = 0
L_OI = 98304
SLAB = 14592
UOFF = 7296
LDS_BYTES = 163840

S_X, S_WQKV, S_WPHI, S_WO, S_WG, S_WU, S_WD, S_C, S_WMOD, S_OUT, S_WS = 4, 8, 12, 16, 20, 24, 28, 32, 36, 40, 44
S_XCD, S_I, S_M, S_J, S_W, S_TAG, S_MASK = 48, 49, 50, 51, 52, 53, 54
S_T0, S_T1, S_T2, S_T3, S_T4 = 55, 56, 57, 58, 59
S_CLK = 60
S_L2E = 62
S_SPIN = 64
S_OFF = 65
S_VALID = 66
S_EX = 68
S_M2, S_J2 = 70, 71
S_STAMP = 72
S_SEL = 92
S_HP = S_J

LOG2E = 0x3FB8AA3B
SPIN_MAX = 200000


def srd(i):
    return f"s[{i}:{i+3}]"


def v(i, n=1):
    return f"v{i}" if n == 1 else f"v[{i}:{i+n-1}]"


def a_(i, n=1):
    return f"a{i}" if n == 1 else f"a[{i}:{i+n-1}]"


def s(i, n=1):
    return f"s{i}" if n == 1 else f"s[{i}:{i+n-1}]"


V_LANE, V_L16, V_TAG = 1, 2, 3
V_DUMMY = 15
OPT = dict(qstats=1, tloop=1, xunroll=11, codepf=1, touch=1, tw0=1, mall=0, nt_wm=1, tmn_nt=0, kst=16, kwx=18, kwd=22, twdk=20)


import os
STAMPS = os.environ.get('STAMPS', 'start,wmod landed,x in regs,mod arrived,P1 ready,p1 main,kv published,q softmax,kv flags seen,o published,o flags seen,wo gemm,y published,y flags seen,gate/up gemm,act published,act flags seen,out stored').split(',')


class K(Asm):
    def __init__(self, diag=False, stop=None):
        super().__init__()
        self.diag = diag
        self.stop = stop
        self.nstamp = 0

    def stamp(self, name, cyc=False):
        if not self.diag:
            return
        if STAMPS is not None and name not in STAMPS:
            return
        if cyc:
            self.wait_lg_all()
            self.I(f"s_memtime {s(S_CLK, 2)}")
            self.I("s_waitcnt lgkmcnt(0)")
            self.I(f"s_mov_b32 {s(S_STAMP + self.nstamp)}, {s(S_CLK)}")
            self.stamp_names = getattr(self, "stamp_names", []) + [name + " (cyc)"]
            self.nstamp += 1
            return
        self.wait_lg_all()
        self.I(f"s_memrealtime {s(S_CLK, 2)}")
        self.I("s_waitcnt lgkmcnt(0)")
        self.I(f"s_mov_b32 {s(S_STAMP + self.nstamp)}, {s(S_CLK)}")
        self.stamp_names = getattr(self, "stamp_names", []) + [name]
        self.nstamp += 1
        assert self.nstamp <= 18, self.stamp_names

    def wave_is(self, w, label_else):
        self.I(f"s_cmp_eq_u32 {s(S_W)}, {w}")
        self.I(f"s_cbranch_scc0 {label_else}")

    def mfma32(self, d, a, b, c=None):
        c = d if c is None else c
        self.I(f"v_mfma_f32_32x32x16_bf16 {d}, {a}, {b}, {c}")

    def test_delay(self, which):
        if OPT.get("x_delay") != which:
            return
        l = self.newlabel("dly")
        d = self.newlabel("dly_done")
        self.I("s_and_b32 s55, s2, 31")
        self.I("s_cmp_eq_u32 s55, 5")
        self.I(f"s_cbranch_scc0 {d}")
        self.I("s_mov_b32 s55, 200")
        self.label(l)
        self.I("s_sleep 8")
        self.I("s_sub_u32 s55, s55, 1")
        self.I("s_cmp_lg_u32 s55, 0")
        self.I(f"s_cbranch_scc1 {l}")
        self.label(d)

    def spin_init(self):
        self.I(f"s_mov_b32 {s(S_SPIN)}, {SPIN_MAX}")

    def spin_back(self, loop, done):
        self.I(f"s_cbranch_vccz {done}")
        self.I(f"s_sub_u32 {s(S_SPIN)}, {s(S_SPIN)}, 1")
        self.I(f"s_cmp_lg_u32 {s(S_SPIN)}, 0")
        self.I(f"s_cbranch_scc1 {loop}")
        if OPT.get("tmo"):
            self.ntmo = getattr(self, "ntmo", 0) + 1
            self.tmo_names = getattr(self, "tmo_names", []) + [loop]
            self.I(f"s_lshl_b32 {s(S_EX)}, s2, 2")
            self.I(f"s_add_u32 {s(S_EX)}, {s(S_EX)}, {s(S_W)}")
            self.I(f"s_lshl_b32 {s(S_EX)}, {s(S_EX)}, 6")
            self.I(f"s_add_u32 {s(S_EX)}, {s(S_EX)}, {0x70000 + 4*self.ntmo}")
            self.I(f"v_mov_b32 v250, {s(S_EX)}")
            self.I(f"s_mov_b32 {s(S_EX)}, vcc_lo")
            self.I(f"v_mov_b32 v251, {s(S_EX)}")
            self.I(f"buffer_store_dword v251, v250, {srd(S_WS)}, 0 offen sc1")

    def unpack(self, lo, hi, src):
        self.I(f"v_lshlrev_b32 {v(lo)}, 16, {v(src)}")
        self.I(f"v_and_b32 {v(hi)}, {s(S_MASK)}, {v(src)}")

    def half_total(self, r, tmp):
        self.I(f"v_mov_b32 {v(tmp)}, {v(r)}")
        self.I(f"v_permlane32_swap_b32 {v(r)}, {v(tmp)}")
        self.I(f"v_add_f32 {v(r)}, {v(r)}, {v(tmp)}")

    def dma(self, voff, rsrc, soff, sc1=False):
        nt = " nt" if OPT.get("nt_" + str(self._tag)) else ""
        self.I(f"buffer_load_dwordx4 {v(voff)}, {srd(rsrc)}, {soff} offen{' sc1' if sc1 else ''}{nt} lds", tag=self._tag)

    _tag = None

    def touch(self, rsrc, voff, soff, tag="t", dst=None):
        nt = " nt" if OPT.get("nt_t") else ""
        self.I(f"buffer_load_dword {v(V_DUMMY if dst is None else dst)}, {v(voff)}, {srd(rsrc)}, {soff} offen{nt}", tag=tag)

    def poll_flags(self, base_sreg, n, stem, tmp=14):
        done = self.newlabel(stem + "_skip")
        loop = self.newlabel(stem + "_loop")
        ok = self.newlabel(stem + "_ok")
        self.wave_is(0, done)
        self.cond_begin()
        self.I(f"v_min_u32 {v(tmp)}, {n-1}, {v(V_LANE)}")
        self.I(f"v_lshlrev_b32 {v(tmp)}, 7, {v(tmp)}")
        self.I(f"v_add_u32 {v(tmp)}, {s(base_sreg)}, {v(tmp)}")
        self.spin_init()
        if OPT.get("poll2"):
            alt = OPT.get("poll2_reg", 0)
            self.I(f"buffer_load_dword {v(tmp+1)}, {v(tmp)}, {srd(S_WS)}, 0 offen sc1")
            self.label(loop)
            self.I("s_nop 15")
            self.I("s_nop 15")
            self.I(f"buffer_load_dword {v(alt)}, {v(tmp)}, {srd(S_WS)}, 0 offen sc1")
            self.I("s_waitcnt vmcnt(1)")
            self.I(f"v_cmp_ne_u32 vcc, {s(S_TAG)}, {v(tmp+1)}")
            self.I(f"s_cbranch_vccz {ok}")
            self.I(f"buffer_load_dword {v(tmp+1)}, {v(tmp)}, {srd(S_WS)}, 0 offen sc1")
            self.I("s_waitcnt vmcnt(1)")
            self.I(f"v_cmp_ne_u32 vcc, {s(S_TAG)}, {v(alt)}")
            self.spin_back(loop, ok)
            self.label(ok + "_w")
        else:
            self.label(loop)
            self.I(f"buffer_load_dword {v(tmp+1)}, {v(tmp)}, {srd(S_WS)}, 0 offen sc1")
            self.I("s_waitcnt vmcnt(0)")
            self.I(f"v_cmp_ne_u32 vcc, {s(S_TAG)}, {v(tmp+1)}")
            self.spin_back(loop, ok)
        self.label(ok)
        if OPT.get("poll2"):
            self.I("s_waitcnt vmcnt(0)")
        self.cond_end()
        self.label(done)
        self.barrier()

    def signal(self, off_sreg, stem, tmp=14):
        self.barrier()
        done = self.newlabel(stem + "_sig")
        self.wave_is(0, done)
        self.cond_begin()
        self.I(f"v_mov_b32 {v(tmp)}, {s(off_sreg)}")
        self.I(f"s_mov_b64 exec, 1")
        self.I(f"buffer_store_dword {v(V_TAG)}, {v(tmp)}, {srd(S_WS)}, 0 offen sc1")
        self.I(f"s_mov_b64 exec, -1")
        self.cond_end()
        self.label(done)

    def granule_loads(self, regs, addr_regs, width, imm, tag):
        sfx = {2: "dwordx2", 4: "dwordx4"}[width]
        for i, (r, ad) in enumerate(zip(regs, addr_regs)):
            off = imm[i] if imm else 0
            self.I(f"buffer_load_{sfx} {v(r, width)}, {v(ad)}, {srd(S_WS)}, 0 offen offset:{off} sc1", tag=tag)

    def granule_verify(self, regs, addr_regs, stem, width, tagpos, imm, tag):
        loop = self.newlabel(stem + "_loop")
        chk = self.newlabel(stem + "_chk")
        ok = self.newlabel(stem + "_ok")
        self.spin_init()
        if self.cond:
            self.I("s_waitcnt vmcnt(0)")
        else:
            self.wait_vm(tag)
        self.I(f"s_branch {chk}")
        self.label(loop)
        self.cond_begin()
        self.granule_loads(regs, addr_regs, width, imm, None)
        self.I("s_waitcnt vmcnt(0)")
        self.cond_end()
        self.label(chk)
        first = True
        for r in regs:
            for tp in tagpos:
                if first:
                    self.I(f"v_cmp_ne_u32 vcc, {s(S_TAG)}, {v(r+tp)}")
                    first = False
                else:
                    self.I(f"v_cmp_ne_u32 {s(S_EX, 2)}, {s(S_TAG)}, {v(r+tp)}")
                    self.I(f"s_or_b64 vcc, vcc, {s(S_EX, 2)}")
        self.spin_back(loop, ok)
        self.label(ok)

    def load_granules_checked(self, regs, addr_regs, stem, width=2, tagpos=(1,), imm=None):
        self.granule_loads(regs, addr_regs, width, imm, stem)
        self.granule_verify(regs, addr_regs, stem, width, tagpos, imm, stem)


S_CODE = 0


def code_touch(k, wave, dst, t=(8, 9)):
    if not OPT.get("codepf"):
        return
    sk = k.newlabel("cpf")
    k.wave_is(wave, sk)
    k.cond_begin()
    a0, a1 = t
    k.I(f"v_min_u32 {v(a0)}, 11, {v(V_LANE)}")
    k.I(f"v_lshlrev_b32 {v(a0)}, 7, {v(a0)}")
    k.I(f"v_min_u32 {v(a0)}, {s(S_CODN)}, {v(a0)}")
    k.I(f"v_mov_b32 {v(a1)}, {s(S_CODE+1)}")
    k.I(f"v_add_co_u32 {v(a0)}, vcc, {s(S_CODE)}, {v(a0)}")
    k.I(f"v_addc_co_u32 {v(a1)}, vcc, 0, {v(a1)}, vcc")
    k.I(f"global_load_dword {v(dst)}, v[{a0}:{a1}], off")
    k.cond_end()
    k.label(sk)


S_CODN = 101


def prologue(k):
    if k.diag and "entry" in STAMPS:
        k.I("s_memrealtime s[96:97]")
    k.I("s_cmp_ge_u32 s2, 256")
    k.I("s_cbranch_scc1 L_end")
    k.I("s_load_dwordx16 s[64:79], s[0:1], 0")
    k.I("s_load_dwordx8 s[80:87], s[0:1], 64")
    k.I("s_load_dwordx2 s[88:89], s[0:1], 96")
    if OPT.get("codepf"):
        k.I("s_getpc_b64 s[90:91]")
        k.label("L_pc")
        k.I(f"s_mov_b32 {s(S_T1)}, L_end-L_pc")
        k.I(f"s_lshr_b32 {s(S_T1)}, {s(S_T1)}, 7")
        k.I(f"s_sub_u32 {s(S_T1)}, {s(S_T1)}, 1")
        k.I(f"s_lshr_b32 {s(S_T0)}, s2, 3")
        k.I(f"s_mul_i32 {s(S_T0)}, {s(S_T0)}, 12")
        k.I(f"s_min_u32 {s(S_T0)}, {s(S_T0)}, {s(S_T1)}")
        k.I(f"s_sub_u32 {s(S_CODN)}, {s(S_T1)}, {s(S_T0)}")
        k.I(f"s_lshl_b32 {s(S_CODN)}, {s(S_CODN)}, 7")
        k.I(f"s_lshl_b32 {s(S_T0)}, {s(S_T0)}, 7")
        k.I(f"s_add_u32 s90, s90, {s(S_T0)}")
        k.I("s_addc_u32 s91, s91, 0")
        k.I("v_min_u32 v8, 11, v0")
        k.I("v_lshlrev_b32 v8, 7, v8")
        k.I(f"v_min_u32 v8, {s(S_CODN)}, v8")
        k.I("v_mov_b32 v9, s91")
        k.I("v_add_co_u32 v8, vcc, s90, v8")
        k.I("v_addc_co_u32 v9, vcc, 0, v9, vcc")
        k.I("global_load_dword v177, v[8:9], off", tag="cp")
    k.I(f"v_and_b32 {v(V_LANE)}, 63, v0")
    k.I("v_lshrrev_b32 v4, 6, v0")
    k.I(f"v_lshlrev_b32 {v(V_L16)}, 4, {v(V_LANE)}")
    k.I(f"v_readfirstlane_b32 {s(S_W)}, v4")
    k.I(f"s_and_b32 {s(S_XCD)}, s2, 7")
    k.I(f"s_lshr_b32 {s(S_I)}, s2, 3")
    k.I(f"s_lshr_b32 {s(S_T0)}, {s(S_XCD)}, 1")
    k.I(f"s_lshl_b32 {s(S_T0)}, {s(S_T0)}, 2")
    k.I(f"s_lshr_b32 {s(S_T1)}, {s(S_I)}, 3")
    k.I(f"s_add_u32 {s(S_M)}, {s(S_T0)}, {s(S_T1)}")
    k.I(f"s_and_b32 {s(S_T0)}, {s(S_XCD)}, 1")
    k.I(f"s_lshl_b32 {s(S_T0)}, {s(S_T0)}, 3")
    k.I(f"s_and_b32 {s(S_T1)}, {s(S_I)}, 7")
    k.I(f"s_add_u32 {s(S_J)}, {s(S_T0)}, {s(S_T1)}")
    k.I(f"s_mov_b32 {s(S_MASK)}, 0xffff0000")
    k.I(f"s_mov_b32 {s(S_L2E)}, {LOG2E:#x}")
    k.I(f"s_mov_b32 {s(S_L2E+1)}, {LOG2E:#x}")
    k.I("s_waitcnt lgkmcnt(0)")
    if OPT.get("codepf"):
        k.I(f"s_mov_b32 {s(S_CODE)}, s90")
        k.I(f"s_mov_b32 {s(S_CODE+1)}, s91")
    bufs = [(S_X, 64, 2097152), (S_WQKV, 66, 1572864), (S_WPHI, 68, 16384), (S_WO, 70, 524288),
            (S_WG, 74, 1835008), (S_WU, 76, 1835008), (S_WD, 78, 1835008), (S_C, 80, 1024),
            (S_WMOD, 82, 3145728), (S_OUT, 84, 2097152), (S_WS, 88, 268435456)]
    for r, p, n in bufs:
        k.I(f"s_mov_b32 {s(r)}, {s(p)}")
        k.I(f"s_mov_b32 {s(r+1)}, {s(p+1)}")
        k.I(f"s_mov_b32 {s(r+2)}, {n}")
        k.I(f"s_mov_b32 {s(r+3)}, 0x20000")
    if OPT.get("map24"):
        k.I(f"s_mov_b32 {s(S_M2)}, {s(S_M)}")
        k.I(f"s_bfe_u32 {s(S_T0)}, {s(S_I)}, {(1 << 16) | 2}")
        k.I(f"s_lshl_b32 {s(S_J2)}, {s(S_T0)}, 3")
        k.I(f"s_and_b32 {s(S_T0)}, {s(S_XCD)}, 1")
        k.I(f"s_lshl_b32 {s(S_T0)}, {s(S_T0)}, 2")
        k.I(f"s_add_u32 {s(S_J2)}, {s(S_J2)}, {s(S_T0)}")
        k.I(f"s_and_b32 {s(S_T0)}, {s(S_I)}, 3")
        k.I(f"s_add_u32 {s(S_J2)}, {s(S_J2)}, {s(S_T0)}")
    else:
        k.I(f"s_lshr_b32 {s(S_T0)}, {s(S_I)}, 4")
        k.I(f"s_lshl_b32 {s(S_M2)}, {s(S_XCD)}, 1")
        k.I(f"s_add_u32 {s(S_M2)}, {s(S_M2)}, {s(S_T0)}")
        k.I(f"s_and_b32 {s(S_J2)}, {s(S_I)}, 15")
    if k.diag and "entry" in STAMPS:
        k.I(f"s_mov_b32 {s(S_STAMP + k.nstamp)}, s96")
        k.stamp_names = getattr(k, "stamp_names", []) + ["entry"]
        k.nstamp += 1
    k.I("v_mov_b32 v4, 0")
    k.I(f"buffer_load_dword {v(V_TAG)}, v4, {srd(S_WS)}, 0 offen sc1", tag="E")
    k.stamp("start")


S_G = 100
S_GC = 3


def x_rows(k):
    k.I(f"s_lshl_b32 {s(S_T2)}, {s(S_M)}, 17")
    k.I(f"s_and_b32 {s(S_T3)}, {s(S_J)}, 7")
    k.I(f"s_lshl_b32 {s(S_T3)}, {s(S_T3)}, 4")
    k.I(f"s_add_u32 {s(S_T3)}, {s(S_T3)}, {s(S_W)}")
    k.I(f"s_sub_u32 {s(S_T3)}, {s(S_T3)}, 1")
    U = OPT.get("xunroll", 4)
    k.I(f"s_mov_b32 {s(S_T4)}, {44 // U}")
    loop = k.newlabel("xrow")
    k.label(loop)
    for u in range(U):
        k.I(f"s_and_b32 {s(S_T0)}, {s(S_T3)}, 127")
        k.I(f"s_and_b32 {s(S_T1)}, {s(S_T0)}, 15")
        k.I(f"s_lshl_b32 {s(S_T1)}, {s(S_T1)}, 4")
        k.I(f"v_xor_b32 v9, {s(S_T1)}, {v(V_L16)}")
        k.I(f"s_lshl_b32 m0, {s(S_T0)}, 10")
        k.I(f"s_add_u32 {s(S_OFF)}, m0, {s(S_T2)}")
        k.dma(9, S_X, s(S_OFF))
        k.I(f"s_add_u32 {s(S_T3)}, {s(S_T3)}, 3")
    k.I(f"s_sub_u32 {s(S_T4)}, {s(S_T4)}, 1")
    k.I(f"s_cmp_lg_u32 {s(S_T4)}, 0")
    k.I(f"s_cbranch_scc1 {loop}")


def touch_wqkv(k):
    if OPT["touch"]:
        k.I(f"v_lshrrev_b32 v13, 2, {v(V_LANE)}")
        k.I("v_mul_u32_u24 v13, 3072, v13")
        k.I(f"v_and_b32 v14, 3, {v(V_LANE)}")
        k.I("v_lshl_add_u32 v13, v14, 7, v13")
        k.I(f"s_mul_i32 {s(S_OFF)}, {s(S_I)}, {16*3072}")
        k.I(f"s_sub_u32 {s(S_T0)}, {s(S_W)}, 1")
        k.I(f"s_lshl_b32 {s(S_T0)}, {s(S_T0)}, 10")
        k.I(f"s_add_u32 {s(S_OFF)}, {s(S_OFF)}, {s(S_T0)}")
        k.I(f"s_and_b32 {s(S_T0)}, {s(S_XCD)}, 1")
        k.I(f"s_lshl_b32 {s(S_T0)}, {s(S_T0)}, 9")
        k.I(f"s_add_u32 {s(S_OFF)}, {s(S_OFF)}, {s(S_T0)}")
        k.touch(S_WQKV, 13, s(S_OFF), dst=176)


def mod_group(k):
    k.I(f"s_lshr_b32 {s(S_T0)}, {s(S_I)}, 2")
    k.I(f"s_lshl_b32 {s(S_T0)}, {s(S_T0)}, 3")
    k.I(f"s_add_u32 {s(S_T0)}, {s(S_T0)}, {s(S_XCD)}")
    k.I(f"s_lshl_b32 {s(S_T0)}, {s(S_T0)}, 2")
    k.I(f"s_and_b32 {s(S_T1)}, {s(S_I)}, 3")
    k.I(f"s_add_u32 {s(S_G)}, {s(S_T0)}, {s(S_T1)}")


def wm_voff(k, dst, tmp):
    k.I(f"v_lshrrev_b32 {v(dst)}, 1, {v(V_LANE)}")
    k.I(f"v_mul_u32_u24 {v(dst)}, 6144, {v(dst)}")
    k.I(f"v_and_b32 {v(tmp)}, 1, {v(V_LANE)}")
    k.I(f"v_lshlrev_b32 {v(tmp)}, 4, {v(tmp)}")
    k.I(f"s_lshl_b32 {s(S_T0)}, {s(S_G)}, 5")
    k.I(f"v_add3_u32 {v(dst)}, {v(dst)}, {v(tmp)}, {s(S_T0)}")


def gemv16(k, lds_base, nq=16, partial=False, nbuf=112):
    k.I(f"v_lshrrev_b32 v8, 4, {v(V_LANE)}")
    k.I("v_lshlrev_b32 v8, 3, v8")
    k.I(f"v_add_u32 v8, {L_S}, v8")
    if partial:
        k.I(f"s_and_b32 {s(S_T0)}, {s(S_I)}, 3")
        k.I(f"s_lshl_b32 {s(S_T0)}, {s(S_T0)}, 8")
        k.I(f"v_add_u32 v8, {s(S_T0)}, v8")
    k.I(f"v_lshlrev_b32 v10, 3, {v(V_LANE)}")
    k.I(f"v_add_u32 v10, {lds_base}, v10")
    for q in range(nq + 2):
        if q < nq:
            b = nbuf + 8 * (q & 3)
            k.I(f"ds_read_b64_tr_b16 {v(b+4, 2)}, v10 offset:{q*1024}")
            k.I(f"ds_read_b64_tr_b16 {v(b+6, 2)}, v10 offset:{q*1024+512}")
            k.I(f"ds_read_b64 {v(b, 2)}, v8 offset:{q*64}")
            k.I(f"ds_read_b64 {v(b+2, 2)}, v8 offset:{q*64+32}")
        if q >= 2:
            k.I(f"s_waitcnt lgkmcnt({8 if q < nq else (4 if q == nq else 0)})")
            bb = nbuf + 8 * ((q - 2) & 3)
            acc = 144 + 4 * (q & 1)
            c = "0" if q < 4 else v(acc, 4)
            k.I(f"v_mfma_f32_16x16x32_bf16 {v(acc, 4)}, {v(bb, 4)}, {v(bb+4, 4)}, {c}")
    k.test_delay(1 if partial else 2)
    k.I("v_add_f32 v144, v144, v148")
    k.I("v_mov_b32_dpp v145, v144 quad_perm:[1,0,3,2] row_mask:0xf bank_mask:0xf")
    if partial:
        k.I(f"v_mov_b32 v146, {v(V_TAG)}")
        k.I("v_mov_b32 v147, 0")
        k.I(f"v_lshlrev_b32 v8, 3, {v(V_LANE)}")
        k.I(f"s_and_b32 {s(S_T0)}, {s(S_I)}, 3")
        k.I(f"s_lshl_b32 {s(S_T0)}, {s(S_T0)}, 13")
        k.I(f"s_lshl_b32 {s(S_T1)}, {s(S_GC)}, 7")
        k.I(f"s_add_u32 {s(S_T0)}, {s(S_T0)}, {s(S_T1)}")
        k.I(f"s_add_u32 {s(S_T0)}, {s(S_T0)}, {WS_MODC}")
        k.I(f"v_add_u32 v8, {s(S_T0)}, v8")
        k.I("s_mov_b64 exec, 0x5555")
        k.I(f"buffer_store_dwordx4 v[144:147], v8, {srd(S_WS)}, 0 offen sc1")
    else:
        k.I("v_cvt_pk_bf16_f32 v144, v144, v145")
        k.I(f"v_mov_b32 v145, {v(V_TAG)}")
        k.I(f"v_lshlrev_b32 v8, 2, {v(V_LANE)}")
        k.I(f"s_lshl_b32 {s(S_T0)}, {s(S_G)}, 6")
        k.I(f"s_add_u32 {s(S_T0)}, {s(S_T0)}, {WS_MODG}")
        k.I(f"v_add_u32 v8, {s(S_T0)}, v8")
        k.I("s_mov_b64 exec, 0x5555")
        k.I(f"buffer_store_dwordx2 v[144:145], v8, {srd(S_WS)}, 0 offen sc1")
    k.I("s_mov_b64 exec, -1")


def mall_touch(k):
    k.I(f"v_min_u32 v9, 55, {v(V_LANE)}")
    k.I("v_lshlrev_b32 v9, 7, v9")
    k.I(f"s_mul_i32 {s(S_OFF)}, s2, {56*128}")
    for r in (S_WG, S_WU, S_WD):
        k.touch(r, 9, s(S_OFF), dst=176)
    k.I(f"v_and_b32 v9, 15, {v(V_LANE)}")
    k.I("v_lshlrev_b32 v9, 7, v9")
    k.I(f"s_lshl_b32 {s(S_OFF)}, s2, 11")
    k.touch(S_WO, 9, s(S_OFF), dst=176)
    k.I(f"v_lshrrev_b32 v9, 5, {v(V_LANE)}")
    k.I("v_mul_u32_u24 v9, 6144, v9")
    k.I(f"v_and_b32 v10, 31, {v(V_LANE)}")
    k.I("v_lshl_add_u32 v9, v10, 7, v9")
    k.I(f"s_mul_i32 {s(S_OFF)}, s2, {2*6144}")
    k.I(f"s_add_u32 {s(S_OFF)}, {s(S_OFF)}, 2048")
    k.touch(S_WMOD, 9, s(S_OFF), dst=176)


def start_phase(k):
    mod_group(k)
    k.I(f"s_lshr_b32 {s(S_T0)}, {s(S_I)}, 4")
    k.I(f"s_lshl_b32 {s(S_T0)}, {s(S_T0)}, 3")
    k.I(f"s_add_u32 {s(S_T0)}, {s(S_T0)}, {s(S_XCD)}")
    k.I(f"s_lshl_b32 {s(S_T0)}, {s(S_T0)}, 2")
    k.I(f"s_bfe_u32 {s(S_T1)}, {s(S_I)}, {(2 << 16) | 2}")
    k.I(f"s_add_u32 {s(S_GC)}, {s(S_T0)}, {s(S_T1)}")
    k.cond_begin()
    wa, wb = k.newlabel("st_b"), k.newlabel("st_j")
    k.wave_is(0, wa)
    k.I(f"buffer_load_dwordx4 v[24:27], {v(V_L16)}, {srd(S_C)}, 0 offen")
    k.I(f"v_lshrrev_b32 v7, 1, {v(V_LANE)}")
    k.I("v_mul_u32_u24 v7, 6144, v7")
    k.I(f"v_and_b32 v8, 1, {v(V_LANE)}")
    k.I("v_lshlrev_b32 v8, 4, v8")
    k.I(f"s_lshl_b32 {s(S_T0)}, {s(S_GC)}, 5")
    k.I(f"v_add3_u32 v7, v7, v8, {s(S_T0)}")
    k.I(f"s_and_b32 {s(S_OFF)}, {s(S_I)}, 3")
    k.I(f"s_mul_i32 {s(S_OFF)}, {s(S_OFF)}, {128*6144}")
    k.I(f"s_mov_b32 m0, {L_WM}")
    k._tag = "wm"
    for n in range(4):
        k.dma(7, S_WMOD, s(S_OFF))
        if n < 3:
            k.I(f"s_add_u32 m0, m0, 1024")
            k.I(f"s_add_u32 {s(S_OFF)}, {s(S_OFF)}, 196608")
    k._tag = None
    k.I(f"s_branch {wb}")
    k.label(wa)
    k.I(f"s_lshl_b32 {s(S_OFF)}, {s(S_HP)}, 10")
    k.I(f"s_mov_b32 m0, {L_PHI}")
    k.dma(V_L16, S_WPHI, s(S_OFF))
    touch_wqkv(k)
    x_rows(k)
    if OPT.get("tlbpf"):
        k.I(f"v_min_u32 v9, 7, {v(V_LANE)}")
        k.I("v_lshlrev_b32 v9, 21, v9")
        k.I(f"buffer_load_dword v178, v9, {srd(S_WS)}, 0 offen offset:2048")
        k.I(f"buffer_load_dword v178, {v(V_L16)}, {srd(S_OUT)}, 0 offen")
    k.label(wb)
    k.cond_end()
    k.vmq = []


def start_finish(k):
    k.cond_begin()
    wa, wb = k.newlabel("sf_b"), k.newlabel("sf_j")
    k.wave_is(0, wa)
    k.I("s_waitcnt vmcnt(4)")
    k.I(f"v_add_u32 {v(V_TAG)}, 1, {v(V_TAG)}")
    for i in range(4):
        k.unpack(28 + 2 * i, 29 + 2 * i, 24 + i)
    for i in range(8):
        k.I(f"v_mul_f32 {v(36+i)}, {s(S_L2E)}, {v(28+i)}")
    for i in range(8):
        k.I(f"v_exp_f32 {v(36+i)}, -{v(36+i)}")
    for i in range(8):
        k.I(f"v_add_f32 {v(36+i)}, 1.0, {v(36+i)}")
    for i in range(8):
        k.I(f"v_rcp_f32 {v(36+i)}, {v(36+i)}")
    for i in range(8):
        k.I(f"v_mul_f32 {v(28+i)}, {v(28+i)}, {v(36+i)}")
    for i in range(4):
        k.I(f"v_cvt_pk_bf16_f32 {v(24+i)}, {v(28+2*i)}, {v(29+2*i)}")
    k.I(f"v_add_u32 v8, {L_S}, {v(V_L16)}")
    k.I("ds_write_b128 v8, v[24:27]")
    k.I("s_waitcnt vmcnt(0) lgkmcnt(0)")
    gemv16(k, L_WM, nq=4, partial=True)
    if OPT["mall"]:
        mall_touch(k)
    k.I(f"s_branch {wb}")
    k.label(wa)
    k.I("s_waitcnt vmcnt(0)")
    k.I(f"v_add_u32 {v(V_TAG)}, 1, {v(V_TAG)}")
    k.label(wb)
    k.cond_end()
    k.I(f"v_readfirstlane_b32 {s(S_TAG)}, {v(V_TAG)}")
    k.stamp("mod published")
    k.lgq = []
    k.barrier()


def modn_compute(k):
    skip = k.newlabel("mn_c")
    k.I("s_sub_u32 s55, s2, 64")
    k.I("s_cmp_ge_u32 s55, 128")
    k.I(f"s_cbranch_scc1 {skip}")
    k.wave_is(2, skip)
    k.cond_begin()
    gemv16(k, L_WMN)
    k.cond_end()
    k.label(skip)


X0 = 16
AQ, AK, AV = 144, 160, 176
DM = 144
DG = 192
EB = (200, 204)
BEXT = 208
MSK = 212
V_TRK, V_TRV, V_TAB, V_R, V_TRQ = 220, 221, 222, 223, 4


def lane_fields(k, t_r=None, s_=None, r_=None, c_=None, nh=None):
    if s_ is not None:
        k.I(f"v_lshrrev_b32 {v(s_)}, 5, {v(V_LANE)}")
    if nh is not None:
        k.I(f"v_bfe_u32 {v(nh)}, {v(V_LANE)}, 4, 1")
    if r_ is not None:
        k.I(f"v_bfe_u32 {v(r_)}, {v(V_LANE)}, 2, 2")
    if c_ is not None:
        k.I(f"v_and_b32 {v(c_)}, 3, {v(V_LANE)}")


def lbase_bytes(k, dst, nh, c, t0, t1):
    k.I(f"v_and_b32 {v(t0)}, 1, {v(c)}")
    k.I(f"v_lshlrev_b32 {v(t0)}, 5, {v(t0)}")
    k.I(f"v_lshrrev_b32 {v(t1)}, 1, {v(c)}")
    k.I(f"v_lshlrev_b32 {v(t1)}, 3, {v(t1)}")
    k.I(f"v_lshl_add_u32 {v(dst)}, {v(nh)}, 4, {v(t0)}")
    k.I(f"v_add_u32 {v(dst)}, {v(dst)}, {v(t1)}")


MODA_REGS = [144 + 4 * i for i in range(8)]
MODA_ADDR = [202, 203, 204, 205, 206, 207, 241, 242]


def p1_prologue(k):
    k.I("v_mov_b32 v8, 0")
    k.I(f"v_lshlrev_b32 v9, 2, {v(V_LANE)}")
    k.I(f"v_and_b32 v9, 60, v9")
    k.I(f"v_add_u32 v9, {L_ZERO}, v9")
    k.I("ds_write_b32 v9, v8")
    p1_static(k)
    k.I(f"v_and_b32 v8, 31, {v(V_LANE)}")
    k.I(f"s_lshl_b32 {s(S_T0)}, {s(S_W)}, 5")
    k.I(f"v_add_u32 v9, {s(S_T0)}, v8")
    k.I("v_lshlrev_b32 v9, 10, v9")
    k.I("v_and_b32 v8, 15, v8")
    k.I(f"v_lshrrev_b32 v10, 5, {v(V_LANE)}")
    for q in range(8):
        k.I(f"v_add_u32 v11, {2*q}, v10")
        k.I("v_xor_b32 v11, v11, v8")
        k.I(f"v_lshl_add_u32 {v(192+q)}, v11, 4, v9")
    k.I(f"v_lshrrev_b32 v8, 3, {v(V_LANE)}")
    k.I("v_mul_u32_u24 v8, 3072, v8")
    k.I(f"v_and_b32 v9, 7, {v(V_LANE)}")
    k.I(f"v_bfe_u32 v10, {v(V_LANE)}, 4, 1")
    k.I("v_lshlrev_b32 v10, 2, v10")
    k.I("v_xor_b32 v9, v9, v10")
    k.I("v_lshrrev_b32 v10, 2, v9")
    k.I("v_lshlrev_b32 v10, 10, v10")
    k.I("v_and_b32 v9, 3, v9")
    k.I("v_lshl_add_u32 v10, v9, 4, v10")
    k.I(f"s_lshl_b32 {s(S_T0)}, {s(S_HP)}, 6")
    k.I(f"s_add_u32 {s(S_T1)}, {s(S_T0)}, 1024")
    k.I(f"v_add3_u32 v200, v8, v10, {s(S_T1)}")
    k.I(f"v_lshrrev_b32 v8, 2, {v(V_LANE)}")
    k.I("v_mul_u32_u24 v8, 3072, v8")
    k.I(f"v_and_b32 v9, 3, {v(V_LANE)}")
    k.I("v_lshl_add_u32 v8, v9, 4, v8")
    k.I(f"v_add_u32 v6, {s(S_T0)}, v8")
    k.I("v_lshlrev_b32 v202, 4, v0")
    k.I(f"v_add_u32 v202, {WS_MODC}, v202")
    k.I(f"v_add_u32 v203, 8192, v202")
    k.I(f"v_add_u32 v204, 16384, v202")
    k.I(f"v_add_u32 v205, 24576, v202")
    k.I(f"v_add_u32 v206, 4096, v202")
    k.I(f"v_add_u32 v207, 4096, v203")
    k.I(f"v_add_u32 v241, 4096, v204")
    k.I(f"v_add_u32 v242, 4096, v205")
    start_finish(k)
    k.I("v_mov_b32 v8, 0x3f803f80")
    for r in range(10, 14):
        k.I(f"v_mov_b32 {v(r)}, 0")
    dots = []
    for i in range(128):
        dots.append(f"v_dot2c_f32_bf16 {v(10 + (i & 1))}, {v(X0+i)}, v8")
        dots.append(f"v_dot2c_f32_bf16 {v(12 + (i & 1))}, {v(X0+i)}, {v(X0+i)}")
    LAG = 6
    NEARLY = OPT.get("dots_early", 20)
    for j in range(32):
        k.I(f"ds_read_b128 {v(X0+4*j, 4)}, {v(192+(j&7))} offset:{L_XI + (j>>3)*256}", tag=f"xf{j}")
        q = j - LAG
        if 0 <= q < NEARLY:
            k.wait_lg(f"xf{q}")
            for _ in range(8):
                k.I(dots.pop(0))
        elif j % 8 == 7 and j < 31:
            k.I("s_waitcnt lgkmcnt(8)")
    k.wait_lg_all()
    k.barrier()
    k.stamp("x in regs")
    k.I(f"s_mul_i32 {s(S_T2)}, {s(S_W)}, {128*3072}")
    k.I(f"s_lshl_b32 {s(S_T3)}, {s(S_W)}, 14")
    if L_KVI:
        k.I(f"s_add_u32 {s(S_T3)}, {s(S_T3)}, {L_KVI}")

    def some_dots(n):
        for _ in range(min(n, len(dots))):
            k.I(dots.pop(0))

    k._tag = "w"
    for n in range(16):
        k.I(f"s_add_u32 {s(S_OFF)}, {s(S_T2)}, {n*8*3072}")
        k.I(f"s_add_u32 m0, {s(S_T3)}, {n*1024}")
        k.dma(200, S_WQKV, s(S_OFF))
        some_dots(4)
    k._tag = None
    for r, ad in zip(MODA_REGS, MODA_ADDR):
        k.granule_loads([r], [ad], 4, None, "modA")
        some_dots(3)
    if OPT.get("qstats"):
        for it in q_image_items(k):
            for t, tg in it:
                k.I(t, tag=tg)
            some_dots(2)
    k.side_items = p1_side(k, regs=(243, 244, 245, 246))
    if not OPT.get("tloop") and not OPT.get("qloop"):
        for it in k.side_items:
            for t, tg in it:
                k.I(t, tag=tg)
            some_dots(3)
        k.side_items = []
    for t in dots:
        k.I(t)
    k.I("v_add_f32 v10, v10, v11")
    k.I("v_add_f32 v12, v12, v13")
    k.half_total(10, 11)
    k.half_total(12, 13)
    k.I("v_mul_f32 v10, 0x3b000000, v10")
    k.I("v_mul_f32 v12, 0x3b000000, v12")
    k.I("v_fma_f32 v12, -v10, v10, v12")
    k.I("v_max_f32 v12, 0, v12")
    k.I("v_add_f32 v12, 0x3727c5ac, v12")
    k.I(f"v_rsq_f32 {v(V_R)}, v12")
    k.I("v_sub_f32 v10, 0, v10")
    k.I(f"v_mul_f32 v11, v12, {v(V_R)}")
    k.I("v_cvt_pk_bf16_f32 v12, v10, v11")
    k.unpack(8, 9, 12)
    k.I("v_sub_f32 v8, v10, v8")
    k.I("v_sub_f32 v9, v11, v9")
    k.I("v_cvt_pk_bf16_f32 v13, v8, v9")
    k.I(f"s_mov_b32 {s(S_T0)}, 0x01000100")
    k.I(f"s_mov_b32 {s(S_T1)}, 0x03020302")
    k.I(f"v_perm_b32 {v(BEXT)}, v12, v12, {s(S_T0)}")
    k.I(f"v_perm_b32 {v(BEXT+1)}, v13, v13, {s(S_T0)}")
    k.I(f"v_perm_b32 {v(BEXT+2)}, v12, v12, {s(S_T1)}")
    k.I(f"v_perm_b32 {v(BEXT+3)}, v13, v13, {s(S_T1)}")
    k.I(f"v_cmp_gt_u32 vcc, 32, {v(V_LANE)}")
    for i in range(4):
        k.I(f"v_cndmask_b32 {v(BEXT+i)}, 0, {v(BEXT+i)}, vcc")
    k.stamp("stats")
    p1_rv(k)
    k.granule_verify(MODA_REGS, MODA_ADDR, "modA", 4, (2,), None, "modA")
    k.stamp("mod arrived")
    for base in (144, 160):
        k.I(f"v_pk_add_f32 {v(base,2)}, {v(base,2)}, {v(base+4,2)}")
        k.I(f"v_pk_add_f32 {v(base+8,2)}, {v(base+8,2)}, {v(base+12,2)}")
        k.I(f"v_pk_add_f32 {v(base,2)}, {v(base,2)}, {v(base+8,2)}")
    k.I("v_cvt_pk_bf16_f32 v204, v144, v145")
    k.I("v_cvt_pk_bf16_f32 v206, v160, v161")
    k.unpack(192, 193, 206)
    k.I("v_add_f32 v192, 1.0, v192")
    k.I("v_add_f32 v193, 1.0, v193")
    k.I("v_cvt_pk_bf16_f32 v12, v192, v193")
    k.I("v_and_b32 v192, 0xffff, v12")
    k.I("v_and_b32 v194, 0xffff, v204")
    k.I(f"v_and_b32 v196, {s(S_MASK)}, v12")
    k.I(f"v_and_b32 v198, {s(S_MASK)}, v204")
    for r in (192, 194, 196, 198):
        k.I(f"v_mov_b32 {v(r+1)}, {v(r)}")
    k.I("v_lshlrev_b32 v8, 5, v0")
    k.I(f"v_add_u32 v8, {L_CT}, v8")
    k.I("ds_write_b128 v8, v[192:195]")
    k.I("ds_write_b128 v8, v[196:199] offset:16")
    k.vmq = [t for t in k.vmq if t in ("wq", "t")]
    k.wait_lg_all()
    k.barrier()
    k.stamp("P1 ready")
    k.stamp("c0", cyc=True) if STAMPS and "c0" in STAMPS else None


def p1_static(k):
    k.I(f"v_bfe_u32 v8, {v(V_LANE)}, 1, 2")
    k.I(f"v_bfe_u32 v9, {v(V_LANE)}, 4, 1")
    k.I("v_lshl_add_u32 v8, v9, 2, v8")
    k.I(f"v_bfe_u32 v9, {v(V_LANE)}, 3, 1")
    k.I(f"v_lshrrev_b32 v10, 5, {v(V_LANE)}")
    k.I("v_xor_b32 v9, v9, v10")
    k.I("v_lshl_add_u32 v8, v9, 3, v8")
    for i in range(8):
        k.I(f"v_cmp_eq_u32 vcc, {i}, v8")
        k.I(f"v_cndmask_b32 {v(MSK+i)}, 0, -1, vcc")
    lane_fields(k, s_=8, r_=9, c_=10, nh=11)
    lbase_bytes(k, 12, 11, 10, 13, 14)
    k.I("v_lshl_add_u32 v8, v8, 2, v9")
    k.I("v_lshlrev_b32 v13, 7, v8")
    k.I("v_lshrrev_b32 v9, 1, v9")
    k.I("v_lshl_add_u32 v13, v9, 6, v13")
    k.I(f"v_add_u32 {v(V_TRK)}, v13, v12")
    k.I(f"v_xor_b32 {v(V_TRV)}, 64, {v(V_TRK)}")
    k.I("v_lshlrev_b32 v13, 6, v8")
    k.I("v_add_u32 v13, v13, v12")
    k.I(f"v_add_u32 {v(V_TRQ)}, {L_QI}, v13")
    k.I(f"v_and_b32 v8, 31, {v(V_LANE)}")
    k.I("v_lshlrev_b32 v8, 4, v8")
    k.I(f"v_add_u32 {v(V_TAB)}, {L_CT}, v8")
    p1_sel(k)


def p1_w(j, p):
    if p == 0:
        return V_TRQ, j * 1024, 512
    return (V_TRK if p == 1 else V_TRV), L_KVI + j * 2048, 1024


def p1_main(k):
    def rd_e(B):
        return [(f"ds_read_b128 {v(EB[B & 1], 4)}, {v(V_TAB)} offset:{B*512}", f"e{B}")]

    def rd_w(B):
        out = []
        for a in range(2):
            for pi, p in enumerate((1, 2)):
                base, off, st = p1_w(2 * B + a, p)
                for rd in range(2):
                    out.append((f"ds_read_b64_tr_b16 {a_(16*(B&1) + 8*a + 4*pi + 2*rd, 2)}, {v(base)} offset:{off + rd*st}", f"w{B}_{a}{pi}"))
        return out

    def diag(B):
        return [f"v_and_b32 {v(DG+i)}, {v(EB[B & 1])}, {v(MSK+i)}" for i in range(8)]

    def pack(B):
        return [f"v_cvt_pk_bf16_f32 {v(X0 + 8*B + i)}, {v(DM + 2*i)}, {v(DM + 2*i + 1)}" for i in range(8)]

    def mod_mfma(B, i):
        if i < 2:
            k.mfma32(v(DM, 16), v(DG + 4 * i, 4), v(X0 + 8 * B + 4 * i, 4), "0" if i == 0 else None)
        else:
            k.mfma32(v(DM, 16), v(EB[B & 1], 4), v(BEXT, 4))

    def emit(items):
        for it in items:
            if isinstance(it, tuple):
                k.I(it[0], tag=it[1])
            else:
                k.I(it)

    side = k.side_items
    if OPT.get("qloop"):
        side = q_image_items(k) + side
    emit(rd_e(0) + rd_e(1) + rd_w(0))
    k.wait_lg("e0")
    emit(diag(0))
    for i in range(3):
        mod_mfma(0, i)
    k.wait_lg("e1")
    emit(diag(1))
    emit(pack(0))
    for B in range(16):
        nxt = B + 1 < 16
        w = rd_w(B + 1) if nxt else []
        e = rd_e(B + 2) if B + 2 < 16 else []
        dg = diag(B + 2) if B + 2 < 16 else []
        pk = pack(B + 1) if nxt else []

        def g(a, pi):
            k.wait_lg(f"w{B}_{a}{pi}")
            wf = a_(16 * (B & 1) + 8 * a + 4 * pi, 4)
            h = v(X0 + 8 * B + 4 * a, 4)
            c0 = "0" if (B == 0 and a == 0) else None
            if pi == 0:
                k.mfma32(v(AK, 16), wf, h, c0)
            else:
                k.mfma32(v(AV, 16), h, wf, c0)

        cut = (1, 4, 7) if OPT.get("p1ord", 1) else (2, 4, 6)
        if nxt:
            mod_mfma(B + 1, 0)
        emit(e + w[0:cut[0]])
        if nxt:
            mod_mfma(B + 1, 1)
        emit(w[cut[0]:cut[1]])
        if nxt:
            mod_mfma(B + 1, 2)
        emit(w[cut[1]:cut[2]])
        g(0, 0)
        emit(w[cut[2]:8])
        if dg:
            k.wait_lg(f"e{B+2}")
        emit(dg[0:3])
        g(0, 1)
        emit(dg[3:8])
        g(1, 0)
        emit(pk[0:4])
        g(1, 1)
        emit(pk[4:8])
        if side:
            emit(side.pop(0))
    assert not side
    k.stamp("p1 main")
    k.stamp("c1", cyc=True) if STAMPS and "c1" in STAMPS else None


def p1_q(k):
    def rd(j):
        base, off, st = p1_w(j, 0)
        return [(f"ds_read_b64_tr_b16 {a_(4*(j % 6) + 2*rd, 2)}, {v(base)} offset:{off + rd*st}", f"q{j}") for rd in range(2)]
    for j in range(32 + 4):
        if j < 32:
            for t, tg in rd(j):
                k.I(t, tag=tg)
        q = j - 4
        if q >= 0:
            k.wait_lg(f"q{q}")
            k.mfma32(v(AQ, 16), a_(4 * (q % 6), 4), v(X0 + 4 * q, 4), "0" if q == 0 else None)


def softmax16(k, P, E, outp, outn, t, filler=None, every=4):
    mx, mn = t, t + 2
    k.I(f"v_max3_f32 {v(mx)}, {v(P)}, {v(P+1)}, {v(P+2)}")
    k.I(f"v_min3_f32 {v(mn)}, {v(P)}, {v(P+1)}, {v(P+2)}")
    for i in range(3, 15, 2):
        k.I(f"v_max3_f32 {v(mx)}, {v(mx)}, {v(P+i)}, {v(P+i+1)}")
        k.I(f"v_min3_f32 {v(mn)}, {v(mn)}, {v(P+i)}, {v(P+i+1)}")
    k.I(f"v_max_f32 {v(mx)}, {v(mx)}, {v(P+15)}")
    k.I(f"v_min_f32 {v(mn)}, {v(mn)}, {v(P+15)}")
    k.I(f"v_mul_f32 {v(mx)}, {s(S_L2E)}, {v(mx)}")
    k.I(f"v_mul_f32 {v(mn)}, {s(S_L2E)}, {v(mn)}")
    for sign, m, out in ((+1, mx, outp), (-1, mn, outn)):
        for i in range(0, 16, 2):
            if sign > 0:
                k.I(f"v_pk_fma_f32 {v(E+i,2)}, {v(P+i,2)}, {s(S_L2E,2)}, {v(m,2)} op_sel_hi:[1,1,0] neg_lo:[0,0,1] neg_hi:[0,0,1]")
            else:
                k.I(f"v_pk_fma_f32 {v(E+i,2)}, {v(P+i,2)}, {s(S_L2E,2)}, {v(m,2)} op_sel_hi:[1,1,0] neg_lo:[1,0,0] neg_hi:[1,0,0]")
        for i in range(16):
            k.I(f"v_exp_f32 {v(E+i)}, {v(E+i)}")
            if filler and i % every == every - 1:
                for tt, tg in filler.pop(0):
                    k.I(tt, tag=tg)
        sm = t + 4
        k.I(f"v_pk_add_f32 {v(sm,2)}, {v(E,2)}, {v(E+2,2)}")
        for i in range(4, 16, 2):
            k.I(f"v_pk_add_f32 {v(sm,2)}, {v(sm,2)}, {v(E+i,2)}")
        k.I(f"v_add_f32 {v(sm)}, {v(sm)}, {v(sm+1)}")
        k.I(f"v_rcp_f32 {v(sm)}, {v(sm)}")
        for i in range(0, 16, 2):
            k.I(f"v_pk_mul_f32 {v(E+i,2)}, {v(E+i,2)}, {v(sm,2)} op_sel_hi:[1,0]")
        for i in range(8):
            k.I(f"v_cvt_pk_bf16_f32 {v(out+i)}, {v(E+2*i)}, {v(E+2*i+1)}")


PHI_A, PHI_B = 224, 228
SEL0, SEL1, SELN0, SELN1 = 232, 236, 240, 244
RV = 224
PK, VP = 144, 152
PP = 160
EE = 192
TMP = 208
FP, FN = 224, 232
TP, TN = 176, 160
KVA, KVB = 192, 240
QP, QN = 96, 104


def p1_sel(k):
    k.I(f"v_bfe_u32 v8, {v(V_LANE)}, 3, 1")
    k.I(f"v_and_b32 v9, 3, {v(V_LANE)}")
    k.I("v_lshl_add_u32 v8, v8, 2, v9")
    k.I("v_and_b32 v9, 1, v8")
    k.I("v_lshlrev_b32 v9, 4, v9")
    k.I("v_mov_b32 v10, 0x3f80")
    k.I("v_lshlrev_b32 v9, v9, v10")
    k.I("v_lshrrev_b32 v8, 1, v8")
    k.I(f"v_bfe_u32 v10, {v(V_LANE)}, 4, 1")
    k.I(f"v_bfe_u32 v11, {v(V_LANE)}, 2, 1")
    k.I(f"v_lshrrev_b32 v12, 5, {v(V_LANE)}")
    k.I("v_xor_b32 v11, v11, v12")
    k.I(f"v_cmp_eq_u32 {s(S_VALID,2)}, 0, v11")
    k.I("v_lshl_add_u32 v13, v10, 2, v8")
    k.I("v_lshl_add_u32 v13, v11, 3, v13")
    for neg, base in ((0, SEL0), (1, SELN0)):
        for a in range(2):
            for d in range(4):
                k.I(f"v_cmp_eq_u32 vcc, {8*neg + 4*a + d}, v13")
                k.I(f"v_cndmask_b32 v14, 0, v9, vcc")
                k.I(f"v_accvgpr_write_b32 {a_(base + 4*a + d)}, v14")


def p1_rv(k):
    k.wait_vm("phi")
    lane_fields(k, s_=8, r_=9, c_=10, nh=11)
    k.I("v_lshlrev_b32 v12, 9, v8")
    k.I("v_lshl_add_u32 v12, v9, 5, v12")
    k.I("v_lshlrev_b32 v13, 1, v11")
    k.I("v_lshrrev_b32 v14, 1, v10")
    k.I("v_add_u32 v13, v13, v14")
    k.I("v_lshl_add_u32 v12, v13, 3, v12")
    k.I(f"v_add_u32 v12, {L_PHI}, v12")
    k.I("v_and_b32 v13, 1, v10")
    k.I("v_cmp_eq_u32 vcc, v13, v8")
    for a in range(2):
        for rd in range(2):
            k.I(f"v_add_u32 v14, {(8*a+4*rd)*32}, v12")
            k.I(f"v_mov_b32 v15, {L_ZERO}")
            k.I("v_cndmask_b32 v14, v15, v14, vcc")
            k.I(f"ds_read_b64_tr_b16 {a_(PHI_A + 4*a + 2*rd, 2)}, v14", tag="phif")
    k.I(f"v_and_b32 v8, 31, {v(V_LANE)}")
    k.I("v_lshlrev_b32 v8, 2, v8")
    k.I(f"s_lshl_b32 {s(S_T0)}, {s(S_W)}, 7")
    k.I(f"s_add_u32 {s(S_T0)}, {s(S_T0)}, {L_RT}")
    k.I(f"v_add_u32 v8, {s(S_T0)}, v8")
    k.I(f"ds_write_b32 v8, {v(V_R)}", tag="rw")
    k.I(f"v_lshrrev_b32 v9, 5, {v(V_LANE)}")
    k.I("v_lshlrev_b32 v9, 4, v9")
    k.I(f"v_add_u32 v9, {s(S_T0)}, v9")
    k.wait_lg("rw")
    for q in range(4):
        k.I(f"ds_read_b128 {v(RV+4*q,4)}, v9 offset:{32*q}", tag="rv")
    k.wait_lg_all()


def p1_epilogue(k):
    k.barrier()
    for i in range(16):
        k.I(f"v_mul_f32 {v(AK+i)}, {v(V_R)}, {v(AK+i)}")
    for i in range(8):
        k.I(f"v_cvt_pk_bf16_f32 {v(PK+i)}, {v(AK+2*i)}, {v(AK+2*i+1)}")
    k.mfma32(v(PP, 16), a_(PHI_A, 4), v(PK, 4), "0")
    k.mfma32(v(PP, 16), a_(PHI_B, 4), v(PK + 4, 4))
    for i in range(16):
        k.I(f"v_mul_f32 {v(AV+i)}, {v(RV+i)}, {v(AV+i)}")
    for i in range(8):
        k.I(f"v_cvt_pk_bf16_f32 {v(VP+i)}, {v(AV+2*i)}, {v(AV+2*i+1)}")
    k.stamp("k proj")
    softmax16(k, PP, EE, FP, FN, TMP, filler=None if (OPT.get("qloop") or OPT.get("qstats")) else q_image_items(k))
    k.stamp("k softmax")
    k.mfma32(v(TP, 16), v(FP, 4), a_(SEL0, 4), "0")
    k.mfma32(v(TN, 16), v(FN, 4), a_(SELN0, 4), "0")
    k.mfma32(v(TP, 16), v(FP + 4, 4), a_(SEL1, 4))
    k.mfma32(v(TN, 16), v(FN + 4, 4), a_(SELN1, 4))
    for src, pk, z in ((TP, FP, TMP), (TN, FN, TMP + 2)):
        for i in range(8):
            k.I(f"v_cvt_pk_bf16_f32 {v(pk+i)}, {v(src+2*i)}, {v(src+2*i+1)}")
        if src == TP:
            k.mfma32(v(KVA, 16), v(FP, 4), v(VP, 4), "0")
            k.mfma32(v(KVA, 16), v(FP + 4, 4), v(VP + 4, 4))
        else:
            k.mfma32(v(KVB, 16), v(FN, 4), v(VP, 4), "0")
            k.mfma32(v(KVB, 16), v(FN + 4, 4), v(VP + 4, 4))
    for src, z in ((TP, TMP), (TN, TMP + 2)):
        k.I(f"v_add_f32 {v(z)}, {v(src)}, {v(src+1)}")
        k.I(f"v_add_f32 {v(z+1)}, {v(src+2)}, {v(src+3)}")
        for i in range(4, 16, 2):
            k.I(f"v_add_f32 {v(z)}, {v(z)}, {v(src+i)}")
            k.I(f"v_add_f32 {v(z+1)}, {v(z+1)}, {v(src+i+1)}")
    k.I(f"v_add_f32 {v(TMP+4)}, {v(TMP)}, {v(TMP+1)}")
    k.I(f"v_add_f32 {v(TMP+5)}, {v(TMP+2)}, {v(TMP+3)}")
    for i in range(16):
        k.I(f"v_cndmask_b32 {v(KVA+i)}, {v(KVB+i)}, {v(KVA+i)}, {s(S_VALID,2)}")
    k.stamp("kv mfma")
    k.I(f"s_mul_i32 {s(S_T0)}, {s(S_W)}, 4608")
    k.I(f"s_add_u32 {s(S_T0)}, {s(S_T0)}, {L_RED}")
    k.I(f"v_add_u32 v8, {s(S_T0)}, {v(V_L16)}")
    for q in range(4):
        k.I(f"ds_write_b128 v8, {v(KVA+4*q,4)} offset:{q*1024}")
    k.I(f"v_lshlrev_b32 v9, 3, {v(V_LANE)}")
    k.I(f"v_add_u32 v9, {s(S_T0)}, v9")
    k.I(f"ds_write_b64 v9, {v(TMP+4,2)} offset:4096")
    k.wait_lg_all()
    k.barrier()
    k.stamp("red barrier")
    k.I(f"s_lshl_b32 {s(S_T0)}, {s(S_W)}, 10")
    k.I(f"s_add_u32 {s(S_T0)}, {s(S_T0)}, {L_RED}")
    k.I(f"v_add_u32 v8, {s(S_T0)}, {v(V_L16)}")
    for ww in range(4):
        k.I(f"ds_read_b128 {v(KVA+4*ww,4)}, v8 offset:{ww*4608}")
    k.I(f"v_lshlrev_b32 v9, 3, {v(V_LANE)}")
    k.I(f"v_add_u32 v9, {L_RED + 4096}, v9")
    for ww in range(4):
        k.I(f"ds_read_b64 {v(KVB+2*ww,2)}, v9 offset:{ww*4608}")
    k.wait_lg_all()
    for h in (0, 2):
        k.I(f"v_pk_add_f32 {v(KVA+h,2)}, {v(KVA+h,2)}, {v(KVA+4+h,2)}")
        k.I(f"v_pk_add_f32 {v(KVA+8+h,2)}, {v(KVA+8+h,2)}, {v(KVA+12+h,2)}")
        k.I(f"v_pk_add_f32 {v(KVA+h,2)}, {v(KVA+h,2)}, {v(KVA+8+h,2)}")
    k.I(f"v_cvt_pk_bf16_f32 {v(KVA)}, {v(KVA)}, {v(KVA+1)}")
    k.I(f"v_cvt_pk_bf16_f32 {v(KVA+1)}, {v(KVA+2)}, {v(KVA+3)}")
    k.I(f"v_pk_add_f32 {v(KVB,2)}, {v(KVB,2)}, {v(KVB+2,2)}")
    k.I(f"v_pk_add_f32 {v(KVB+4,2)}, {v(KVB+4,2)}, {v(KVB+6,2)}")
    k.I(f"v_pk_add_f32 {v(KVB,2)}, {v(KVB,2)}, {v(KVB+4,2)}")
    k.I(f"v_cvt_pk_bf16_f32 {v(KVB)}, {v(KVB)}, {v(KVB+1)}")
    k.test_delay(3)
    k.I(f"v_mov_b32 {v(KVA+2)}, {v(KVB)}")
    k.I(f"v_mov_b32 {v(KVA+3)}, {v(V_TAG)}")
    k.I(f"s_lshl_b32 {s(S_T0)}, {s(S_HP)}, 4")
    k.I(f"s_add_u32 {s(S_T0)}, {s(S_T0)}, {s(S_M)}")
    k.I(f"s_lshl_b32 {s(S_T1)}, {s(S_T0)}, 12")
    k.I(f"s_lshl_b32 {s(S_T2)}, {s(S_W)}, 10")
    k.I(f"s_add_u32 {s(S_T1)}, {s(S_T1)}, {s(S_T2)}")
    k.I(f"s_add_u32 {s(S_T1)}, {s(S_T1)}, {WS_KVP}")
    k.I(f"buffer_store_dwordx4 {v(KVA,4)}, {v(V_L16)}, {srd(S_WS)}, {s(S_T1)} offen sc1", tag="kvst")
    k.wait_vm("wq")
    k.barrier()
    k.stamp("kv published")
    modn_issue(k)
    p1_q(k)
    k.stamp("q gemm")
    kv_addr(k)
    kv_loads(k, "kvp")
    for i in range(16):
        k.I(f"v_mul_f32 {v(AQ+i)}, {v(V_R)}, {v(AQ+i)}")
    for i in range(8):
        k.I(f"v_cvt_pk_bf16_f32 {v(160+i)}, {v(AQ+2*i)}, {v(AQ+2*i+1)}")
    k.mfma32(v(176, 16), a_(PHI_A, 4), v(160, 4), "0")
    k.mfma32(v(176, 16), a_(PHI_B, 4), v(164, 4))
    quad_ids(k)
    softmax16(k, 176, EE, QP, QN, TMP, filler=None if OPT.get("wo_kv", 1) else wo_items(k), every=2)
    k.stamp("q softmax")


S_UB = 101


S_UBO, S_MNO = 90, 91


def p1_side(k, regs):
    ra, rb, rc, rt = regs
    touch_setup(k, ra, rb, rc, rt)
    k.I(f"v_and_b32 {v(rc)}, 31, {v(V_LANE)}")
    k.I(f"v_mul_u32_u24 {v(rc)}, 6144, {v(rc)}")
    k.I(f"s_lshr_b32 {s(S_T0)}, {s(S_G)}, 2")
    k.I(f"s_lshl_b32 {s(S_T0)}, {s(S_T0)}, 7")
    k.I(f"s_and_b32 {s(S_T1)}, {s(S_G)}, 3")
    k.I(f"s_lshl_b32 {s(S_T1)}, {s(S_T1)}, 2")
    k.I(f"s_add_u32 {s(S_T1)}, {s(S_T1)}, {s(S_W)}")
    k.I(f"s_mul_i32 {s(S_T1)}, {s(S_T1)}, {32*6144}")
    k.I(f"s_add_u32 {s(S_MNO)}, {s(S_T0)}, {s(S_T1)}")
    k.I("s_sub_u32 s55, s2, 64")
    k.I("s_cmp_ge_u32 s55, 128")
    k.I(f"s_cselect_b32 {s(S_MNO)}, 0x7ff00000, {s(S_MNO)}")
    items = []
    if OPT["touch"]:
        if OPT.get("tmn", 1):
            items.append([(f"buffer_load_dword v5, {v(rc)}, {srd(S_WMOD)}, {s(S_MNO)} offen{' nt' if OPT.get('tmn_nt', 1) else ''}", "t")])
        if OPT.get("map24"):
            items.append([(f"s_lshl_b32 {s(S_T0)}, {s(S_I)}, 2", None), (f"s_add_u32 {s(S_T0)}, {s(S_T0)}, {s(S_W)}", None),
                          (f"s_and_b32 {s(S_T1)}, {s(S_XCD)}, 1", None), (f"s_lshl_b32 {s(S_T1)}, {s(S_T1)}, 9", None),
                          (f"v_min_u32 {v(rt)}, 55, {v(V_LANE)}", None), (f"v_lshrrev_b32 {v(ra)}, 2, {v(rt)}", None),
                          (f"v_lshlrev_b32 {v(ra)}, 10, {v(ra)}", None), (f"v_and_b32 {v(rt)}, 3, {v(rt)}", None),
                          (f"v_lshl_add_u32 {v(ra)}, {v(rt)}, 7, {v(ra)}", None), (f"v_add_u32 {v(ra)}, {s(S_T1)}, {v(ra)}", None),
                          (f"s_mul_i32 {s(S_T1)}, {s(S_T0)}, {14*1024}", None),
                          (f"buffer_load_dword v5, {v(ra)}, {srd(S_WD)}, {s(S_T1)} offen", "t"),
                          (f"v_and_b32 {v(ra)}, 0xfff, {v(ra)}", None), (f"s_lshl_b32 {s(S_T1)}, {s(S_T0)}, 12", None),
                          (f"buffer_load_dword v5, {v(ra)}, {srd(S_WO)}, {s(S_T1)} offen", "t")])
            for r in (S_WG, S_WU):
                items.append([(f"buffer_load_dword v5, {v(rb)}, {srd(r)}, 0 offen", "t")])
        else:
            for r, a in ((S_WO, ra), (S_WG, rb), (S_WU, rb)):
                items.append([(f"buffer_load_dword v5, {v(a)}, {srd(r)}, 0 offen", "t")])
        if OPT.get("twd", 0):
            items.append([(f"s_lshl_b32 {s(S_T0)}, s2, 2", None), (f"s_add_u32 {s(S_T0)}, {s(S_T0)}, {s(S_W)}", None),
                          (f"s_mul_i32 {s(S_T0)}, {s(S_T0)}, {14*128}", None), (f"v_min_u32 {v(rt)}, 13, {v(V_LANE)}", None),
                          (f"v_lshlrev_b32 {v(rt)}, 7, {v(rt)}", None),
                          (f"buffer_load_dword v5, {v(rt)}, {srd(S_WD)}, {s(S_T0)} offen", "t")])
    return items


def q_image_items(k):
    k.I(f"s_mul_i32 {s(S_T3)}, {s(S_W)}, {128*3072}")
    k.I(f"s_lshl_b32 {s(S_T4)}, {s(S_W)}, 13")
    k.I(f"s_add_u32 {s(S_T4)}, {s(S_T4)}, {L_QI}")
    return [[(f"s_add_u32 {s(S_OFF)}, {s(S_T3)}, {n*16*3072}", None), (f"s_add_u32 m0, {s(S_T4)}, {n*1024}", None),
             (f"buffer_load_dwordx4 v6, {srd(S_WQKV)}, {s(S_OFF)} offen lds", "wq")] for n in range(8)]


def modn_issue(k):
    skip = k.newlabel("mn_i")
    k.I("s_sub_u32 s55, s2, 64")
    k.I("s_cmp_ge_u32 s55, 128")
    k.I(f"s_cbranch_scc1 {skip}")
    k.cond_begin()
    wm_voff(k, 7, 8)
    k.I(f"s_mul_i32 {s(S_OFF)}, {s(S_W)}, {4*196608}")
    k.I(f"s_lshl_b32 {s(S_T0)}, {s(S_W)}, 12")
    k.I(f"s_add_u32 m0, {s(S_T0)}, {L_WMN}")
    for n in range(4):
        k.I(f"buffer_load_dwordx4 v7, {srd(S_WMOD)}, {s(S_OFF)} offen lds")
        if n < 3:
            k.I(f"s_add_u32 m0, m0, 1024")
            k.I(f"s_add_u32 {s(S_OFF)}, {s(S_OFF)}, 196608")
    k.cond_end()
    k.label(skip)


def ub_compute(k):
    skip = k.newlabel("ubc_skip")
    k.I(f"s_cmp_ge_u32 {s(S_I)}, 28")
    k.I(f"s_cbranch_scc1 {skip}")
    k.I(f"s_cmp_lt_u32 {s(S_W)}, 2")
    k.I(f"s_cbranch_scc1 {skip}")
    k.cond_begin()
    S_JOB, S_KH, S_BLK = S_T2, S_T3, S_T4
    k.I(f"s_lshr_b32 {s(S_T0)}, {s(S_XCD)}, 1")
    k.I(f"s_mul_i32 {s(S_JOB)}, {s(S_T0)}, 28")
    k.I(f"s_add_u32 {s(S_JOB)}, {s(S_JOB)}, {s(S_I)}")
    k.I(f"s_cmp_ge_u32 {s(S_JOB)}, 56")
    k.I(f"s_cselect_b32 {s(S_KH)}, 1, 0")
    k.I(f"s_mul_i32 {s(S_T0)}, {s(S_KH)}, 56")
    k.I(f"s_sub_u32 {s(S_BLK)}, {s(S_JOB)}, {s(S_T0)}")
    k.I(f"s_cmp_lt_u32 {s(S_BLK)}, 28")
    for i in range(4):
        k.I(f"s_cselect_b32 {s(S_UBS+i)}, {s(S_WG+i)}, {s(S_WU+i)}")
    k.I(f"s_cselect_b32 {s(S_T0)}, 0, 28")
    k.I(f"s_cselect_b32 {s(S_T1)}, 0, 56")
    k.I(f"s_sub_u32 {s(S_BLK)}, {s(S_BLK)}, {s(S_T0)}")
    k.I(f"s_and_b32 {s(S_T0)}, {s(S_XCD)}, 1")
    k.I(f"s_mul_i32 {s(S_T0)}, {s(S_T0)}, 28")
    k.I(f"s_add_u32 {s(S_BLK)}, {s(S_BLK)}, {s(S_T0)}")
    k.I(f"s_add_u32 {s(S_JOB)}, {s(S_BLK)}, {s(S_T1)}")
    k.I(f"v_lshrrev_b32 v112, 2, {v(V_LANE)}")
    k.I("v_mul_u32_u24 v112, 3584, v112")
    k.I(f"v_and_b32 v113, 3, {v(V_LANE)}")
    k.I("v_lshl_add_u32 v112, v113, 4, v112")
    k.I(f"s_lshl_b32 {s(S_T0)}, {s(S_BLK)}, 6")
    k.I(f"v_add_u32 v112, {s(S_T0)}, v112")
    k.I(f"s_mul_i32 {s(S_OFF)}, {s(S_KH)}, {256*3584}")
    k.I(f"s_and_b32 {s(S_T0)}, {s(S_W)}, 1")
    k.I(f"s_mul_i32 {s(S_T1)}, {s(S_T0)}, {128*3584}")
    k.I(f"s_add_u32 {s(S_OFF)}, {s(S_OFF)}, {s(S_T1)}")
    k.I(f"s_lshl_b32 {s(S_UBH)}, {s(S_T0)}, 13")
    k.I(f"s_add_u32 m0, {s(S_UBH)}, {L_UB}")
    for n in range(8):
        k.dma(112, S_UBS, s(S_OFF))
        if n < 7:
            k.I("s_add_u32 m0, m0, 1024")
            k.I(f"s_add_u32 {s(S_OFF)}, {s(S_OFF)}, {16*3584}")
    k.I(f"s_lshl_b32 {s(S_T0)}, {s(S_KH)}, 10")
    k.I(f"v_add_u32 v114, {s(S_T0)}, {v(V_L16)}")
    k.I(f"v_add_u32 v114, {WS_MODG + 768*8}, v114")
    k.load_granules_checked([116, 120], [114] * 2, "modU", width=4, tagpos=(1, 3), imm=[0, 2048])
    for i, r in enumerate((120, 122)):
        k.unpack(124, 125, r)
        k.I("v_add_f32 v124, 1.0, v124")
        k.I("v_add_f32 v125, 1.0, v125")
        k.I(f"v_cvt_pk_bf16_f32 {v(128+i)}, v124, v125")
    k.I("v_mov_b32 v130, v116")
    k.I("v_mov_b32 v131, v118")
    k.I("v_mov_b32 v132, 0")
    k.I("v_mov_b32 v133, 0")
    k.I(f"v_lshlrev_b32 v113, 3, {v(V_LANE)}")
    k.I(f"v_add_u32 v113, {L_CS}, v113")
    k.I("ds_write_b64 v113, v[128:129]")
    k.I("ds_write_b64 v113, v[130:131] offset:512")
    k.I("ds_write_b64 v113, v[132:133] offset:1024")
    k.I(f"v_and_b32 v113, 31, {v(V_LANE)}")
    k.I("v_min_u32 v113, 2, v113")
    k.I("v_lshlrev_b32 v113, 9, v113")
    k.I(f"v_lshrrev_b32 v114, 5, {v(V_LANE)}")
    k.I("v_lshl_add_u32 v113, v114, 4, v113")
    k.I(f"v_add_u32 v113, {L_CS}, v113")
    k.I(f"s_lshr_b32 {s(S_T0)}, {s(S_UBH)}, 5")
    k.I(f"v_add_u32 v113, {s(S_T0)}, v113")
    lane_fields(k, s_=114, r_=115, c_=116, nh=117)
    k.I("v_lshl_add_u32 v114, v114, 3, v115")
    k.I("v_lshlrev_b32 v114, 6, v114")
    k.I("v_lshl_add_u32 v114, v117, 5, v114")
    k.I("v_lshl_add_u32 v114, v116, 3, v114")
    k.I(f"v_add_u32 v114, {L_UB}, v114")
    k.I(f"v_add_u32 v114, {s(S_UBH)}, v114")
    k.I("s_waitcnt vmcnt(0) lgkmcnt(0)")
    for j in range(8 + 2):
        if j < 8:
            b = 116 + 8 * (j & 3)
            k.I(f"ds_read_b64_tr_b16 {v(b+4,2)}, v114 offset:{j*1024}")
            k.I(f"ds_read_b64_tr_b16 {v(b+6,2)}, v114 offset:{j*1024 + 256}")
            k.I(f"ds_read_b128 {v(b,4)}, v113 offset:{j*32}")
        if j >= 2:
            k.I(f"s_waitcnt lgkmcnt({6 if j < 8 else (3 if j == 8 else 0)})")
            bb = 116 + 8 * ((j - 2) & 3)
            k.mfma32(v(152, 16), v(bb, 4), v(bb + 4, 4), "0" if j == 2 else None)
    w3 = k.newlabel("ub_w3")
    k.wave_is(2, w3)
    k.I(f"v_lshlrev_b32 v113, 3, {v(V_LANE)}")
    k.I(f"v_add_u32 v113, {L_UBP}, v113")
    k.I("ds_write_b64 v113, v[152:153]")
    k.I("s_waitcnt lgkmcnt(0)")
    k.label(w3)
    k.I("v_accvgpr_write_b32 a244, v152")
    k.I("v_accvgpr_write_b32 a245, v153")
    k.I(f"s_mov_b32 {s(S_UBJ)}, {s(S_JOB)}")
    k.I(f"s_mov_b32 {s(S_UBK)}, {s(S_KH)}")
    k.cond_end()
    k.label(skip)


def ub_publish(k):
    skip = k.newlabel("ubp_skip")
    k.I(f"s_cmp_ge_u32 {s(S_I)}, 28")
    k.I(f"s_cbranch_scc1 {skip}")
    k.wave_is(3, skip)
    k.cond_begin()
    S_JOB, S_KH = S_UBJ, S_UBK
    k.test_delay(4)
    k.I(f"v_lshlrev_b32 v174, 3, {v(V_LANE)}")
    k.I(f"v_add_u32 v174, {L_UBP}, v174")
    k.I("ds_read_b64 v[154:155], v174")
    k.I("v_accvgpr_read_b32 v152, a244")
    k.I("v_accvgpr_read_b32 v153, a245")
    k.I("s_waitcnt lgkmcnt(0)")
    k.I("v_add_f32 v152, v152, v154")
    k.I("v_add_f32 v153, v153, v155")
    k.I("v_cvt_pk_bf16_f32 v168, v152, v153")
    k.unpack(170, 171, 168)
    k.I("v_sub_f32 v172, v152, v170")
    k.I("v_sub_f32 v173, v153, v171")
    k.I("v_cvt_pk_bf16_f32 v169, v172, v173")
    k.I(f"s_mov_b32 {s(S_T0)}, 0x05040100")
    k.I(f"s_mov_b32 {s(S_T1)}, 0x07060302")
    k.I(f"v_perm_b32 v176, v169, v168, {s(S_T0)}")
    k.I("v_mov_b32 v177, v168")
    k.I(f"v_perm_b32 v178, v168, v169, {s(S_T1)}")
    k.I(f"v_mov_b32 v179, {v(V_TAG)}")
    k.I(f"s_mul_i32 {s(S_T0)}, {s(S_KH)}, {3584*16}")
    k.I(f"s_lshl_b32 {s(S_T1)}, {s(S_JOB)}, 9")
    k.I(f"s_add_u32 {s(S_T0)}, {s(S_T0)}, {s(S_T1)}")
    k.I(f"s_add_u32 {s(S_T0)}, {s(S_T0)}, {WS_WEXT}")
    k.I(f"v_add_u32 v174, {s(S_T0)}, {v(V_L16)}")
    k.I("s_mov_b32 exec_hi, 0")
    k.I(f"buffer_store_dwordx4 v[176:179], v174, {srd(S_WS)}, 0 offen sc1")
    k.I("s_mov_b64 exec, -1")
    k.cond_end()
    k.label(skip)


S_UBH, S_UBJ, S_UBK = 32, 33, 34
L_UBP = L_UB
S_UBS = 12


def touch_setup(k, ra, rb, rc, rt):
    k.I(f"v_and_b32 {v(ra)}, 31, {v(V_LANE)}")
    k.I(f"v_lshlrev_b32 {v(ra)}, 7, {v(ra)}")
    k.I(f"s_lshl_b32 {s(S_T0)}, {s(S_I)}, 2")
    k.I(f"s_add_u32 {s(S_T0)}, {s(S_T0)}, {s(S_W)}")
    k.I(f"s_lshl_b32 {s(S_T1)}, {s(S_T0)}, 12")
    k.I(f"v_add_u32 {v(ra)}, {s(S_T1)}, {v(ra)}")
    k.I(f"v_min_u32 {v(rb)}, 55, {v(V_LANE)}")
    k.I(f"v_mul_u32_u24 {v(rc)}, 4682, {v(rb)}")
    k.I(f"v_lshrrev_b32 {v(rc)}, 16, {v(rc)}")
    k.I(f"v_mul_u32_u24 {v(rt)}, 14, {v(rc)}")
    k.I(f"v_sub_u32 {v(rb)}, {v(rb)}, {v(rt)}")
    k.I(f"v_lshlrev_b32 {v(rb)}, 7, {v(rb)}")
    k.I(f"v_mul_u32_u24 {v(rc)}, 3584, {v(rc)}")
    k.I(f"v_add_u32 {v(rb)}, {v(rb)}, {v(rc)}")
    k.I(f"s_mul_i32 {s(S_T0)}, {s(S_T0)}, {4*3584}")
    k.I(f"s_and_b32 {s(S_T1)}, {s(S_XCD)}, 1")
    k.I(f"s_mul_i32 {s(S_T1)}, {s(S_T1)}, 1792")
    k.I(f"s_add_u32 {s(S_T0)}, {s(S_T0)}, {s(S_T1)}")
    k.I(f"v_add_u32 {v(rb)}, {s(S_T0)}, {v(rb)}")


def wo_items(k):
    k.I(f"s_and_b32 {s(S_T0)}, {s(S_J2)}, 7")
    k.I(f"s_lshl_b32 {s(S_T0)}, {s(S_T0)}, 7")
    k.I(f"v_lshrrev_b32 v12, 3, {v(V_LANE)}")
    k.I("v_lshlrev_b32 v12, 10, v12")
    k.I(f"v_and_b32 v13, 7, {v(V_LANE)}")
    k.I(f"v_bfe_u32 v14, {v(V_LANE)}, 4, 1")
    k.I("v_lshlrev_b32 v14, 2, v14")
    k.I("v_xor_b32 v13, v13, v14")
    k.I("v_lshl_add_u32 v12, v13, 4, v12")
    k.I(f"v_add_u32 v12, {s(S_T0)}, v12")
    k.I(f"s_lshl_b32 {s(S_T3)}, {s(S_W)}, 17")
    k.I(f"s_lshl_b32 {s(S_T4)}, {s(S_W)}, 14")
    if L_WO:
        k.I(f"s_add_u32 {s(S_T4)}, {s(S_T4)}, {L_WO}")
    return [[(f"s_add_u32 {s(S_OFF)}, {s(S_T3)}, {n*8192}", None), (f"s_add_u32 m0, {s(S_T4)}, {n*1024}", None),
             (f"buffer_load_dwordx4 v12, {srd(S_WO)}, {s(S_OFF)} offen lds", "wo")] for n in range(16)]


def swz128_base(k, dst, cbk_sreg=None, cbk_imm=None, s_mul=16):
    lane_fields(k, s_=8, r_=9, c_=10, nh=11)
    lbase_bytes(k, 12, 11, 10, 13, 14)
    k.I(f"v_mul_u32_u24 v8, {s_mul}, v8")
    k.I("v_add_u32 v8, v8, v9")
    k.I("v_lshlrev_b32 v8, 7, v8")
    k.I("v_lshrrev_b32 v9, 1, v9")
    if cbk_sreg is not None:
        k.I(f"v_xor_b32 v9, {s(cbk_sreg)}, v9")
    elif cbk_imm:
        k.I(f"v_xor_b32 v9, {cbk_imm}, v9")
    k.I("v_lshl_add_u32 v8, v9, 6, v8")
    k.I(f"v_add_u32 {v(dst)}, v8, v12")


KV_PB = 16


def kv_addr(k):
    k.I(f"s_lshl_b32 {s(S_KVB)}, {s(S_HP)}, 16")
    k.I(f"s_lshl_b32 {s(S_T2)}, {s(S_W)}, 10")
    k.I(f"s_add_u32 {s(S_KVB)}, {s(S_KVB)}, {s(S_T2)}")
    k.I(f"s_add_u32 {s(S_KVB)}, {s(S_KVB)}, {WS_KVP}")


def kv_loads(k, tag):
    k.I(f"s_mov_b32 {s(S_OFF)}, {s(S_KVB)}")
    for mm in range(16):
        k.I(f"buffer_load_dwordx4 {v(KV_PB+4*mm,4)}, {v(V_L16)}, {srd(S_WS)}, {s(S_OFF)} offen sc1", tag=tag)
        if mm < 15:
            k.I(f"s_add_u32 {s(S_OFF)}, {s(S_OFF)}, 4096")


S_KVB = 35


def kv_combine_and_o(k):
    PB = KV_PB

    def check():
        k.I(f"v_cmp_ne_u32 vcc, {s(S_TAG)}, {v(PB+3)}")
        for mm in range(1, 16):
            k.I(f"v_cmp_ne_u32 {s(S_EX, 2)}, {s(S_TAG)}, {v(PB+4*mm+3)}")
            k.I(f"s_or_b64 vcc, vcc, {s(S_EX, 2)}")

    probe, ok, full, done = (k.newlabel(x) for x in ("kvp_probe", "kvp_seen", "kvp_full", "kvp_done"))
    k.I("v_mov_b32 v10, 0x3f80")
    k.I("v_mov_b32 v11, 0x3f800000")
    for r in range(176, 182):
        k.I(f"v_mov_b32 {v(r)}, 0")
    k.wait_vm("kvp")
    check()
    k.I(f"s_cbranch_vccz {done}")
    k.cond_begin()
    k.I(f"v_min_u32 v14, 15, {v(V_LANE)}")
    k.I("v_lshlrev_b32 v14, 12, v14")
    k.I(f"v_add_u32 v14, {s(S_KVB)}, v14")
    k.spin_init()
    k.label(probe)
    k.I(f"buffer_load_dword v15, v14, {srd(S_WS)}, 0 offen offset:12 sc1")
    k.I("s_waitcnt vmcnt(0)")
    k.I(f"v_cmp_ne_u32 vcc, {s(S_TAG)}, v15")
    k.spin_back(probe, ok)
    k.label(ok)
    k.label(full)
    kv_loads(k, None)
    k.I("s_waitcnt vmcnt(0)")
    check()
    k.spin_back(full, done)
    k.cond_end()
    k.label(done)
    k.stamp("kvp landed")
    wo = wo_items(k) if OPT.get("wo_kv", 1) else []
    for mm in range(16):
        for d in range(2):
            k.I(f"v_dot2c_f32_bf16 {v(176+2*d)}, {v(PB+4*mm+d)}, v10")
            k.I(f"v_dot2c_f32_bf16 {v(177+2*d)}, {v(PB+4*mm+d)}, v11")
        if wo and mm % 2 == 1:
            for t, tg in wo.pop(0):
                k.I(t, tag=tg)
    k.wo_rest = wo
    zs = k.newlabel("zsum")
    k.wave_is(0, zs)
    for mm in range(16):
        k.I(f"v_dot2c_f32_bf16 v180, {v(PB+4*mm+2)}, v10")
        k.I(f"v_dot2c_f32_bf16 v181, {v(PB+4*mm+2)}, v11")
    k.label(zs)
    k.I("s_nop 2")
    for i in range(6):
        k.I(f"v_mov_b32 {v(160+i)}, {v(176+i)}")
    k.I("v_cvt_pk_bf16_f32 v160, v160, v161")
    k.I("v_cvt_pk_bf16_f32 v161, v162, v163")
    k.I(f"v_lshlrev_b32 v8, 5, {v(V_LANE)}")
    k.I(f"s_lshl_b32 {s(S_T0)}, {s(S_W)}, 3")
    k.I(f"s_add_u32 {s(S_T0)}, {s(S_T0)}, {L_KVF}")
    k.I(f"v_add_u32 v8, {s(S_T0)}, v8")
    k.I("ds_write_b64 v8, v[160:161]")
    k.half_total(164, 166)
    k.half_total(165, 166)
    k.I("v_cvt_pk_bf16_f32 v164, v164, v165")
    k.I(f"v_bfe_u32 v8, {v(V_LANE)}, 2, 1")
    k.I(f"v_bfe_u32 v9, {v(V_LANE)}, 3, 2")
    k.I(f"v_and_b32 v10, 3, {v(V_LANE)}")
    k.I("v_lshl_add_u32 v9, v9, 2, v10")
    k.I("v_lshlrev_b32 v9, 1, v9")
    k.I("v_lshl_add_u32 v10, v8, 5, v9")
    k.I(f"v_add_u32 v10, {L_Z}, v10")
    k.I("v_xor_b32 v8, 1, v8")
    k.I("v_lshl_add_u32 v11, v8, 5, v9")
    k.I(f"v_add_u32 v11, {L_Z + 64}, v11")
    w0 = k.newlabel("zw")
    k.wave_is(0, w0)
    k.cond_begin()
    k.I("ds_write_b16 v10, v164")
    k.I("ds_write_b16_d16_hi v11, v164")
    k.cond_end()
    k.label(w0)
    for it in k.wo_rest[:4]:
        for t, tg in it:
            k.I(t, tag=tg)
    k.wait_lg_all()
    k.barrier()
    k.stamp("kvf barrier")
    k.I(f"v_lshlrev_b32 v8, 5, {v(V_LANE)}")
    k.I(f"v_add_u32 v8, {L_KVF}, v8")
    k.I(f"v_xor_b32 v9, 32, {v(V_LANE)}")
    k.I("v_lshlrev_b32 v9, 5, v9")
    k.I(f"v_add_u32 v9, {L_KVF}, v9")
    k.I(f"v_mov_b32 v10, {L_ZERO}")
    k.I(f"v_cndmask_b32 v8, v10, v8, {s(S_VALID,2)}")
    k.I(f"v_cndmask_b32 v9, v10, v9, {s(S_VALID,2)}")
    k.I(f"v_lshrrev_b32 v10, 5, {v(V_LANE)}")
    k.I("v_lshlrev_b32 v10, 5, v10")
    k.I(f"v_add_u32 v10, {L_Z}, v10")
    PF, NF, ZP, ZN = 112, 120, 128, 136
    k.I(f"ds_read_b128 {v(PF,4)}, v8")
    k.I(f"ds_read_b128 {v(PF+4,4)}, v8 offset:16")
    k.I(f"ds_read_b128 {v(NF,4)}, v9")
    k.I(f"ds_read_b128 {v(NF+4,4)}, v9 offset:16")
    k.I(f"ds_read_b128 {v(ZP,4)}, v10")
    k.I(f"ds_read_b128 {v(ZP+4,4)}, v10 offset:16")
    k.I(f"ds_read_b128 {v(ZN,4)}, v10 offset:64")
    k.I(f"ds_read_b128 {v(ZN+4,4)}, v10 offset:80")
    k.wait_lg_all()
    for it in k.wo_rest[4:]:
        for t, tg in it:
            k.I(t, tag=tg)
    NUM = 144
    k.mfma32(v(NUM, 16), v(PF, 4), v(QP, 4), "0")
    k.mfma32(v(NUM, 16), v(PF + 4, 4), v(QP + 4, 4))
    k.mfma32(v(NUM, 16), v(NF, 4), v(QN, 4))
    k.mfma32(v(NUM, 16), v(NF + 4, 4), v(QN + 4, 4))
    k.I("v_mov_b32 v10, 0")
    k.I("v_mov_b32 v11, 0")
    for i in range(8):
        k.I(f"v_dot2c_f32_bf16 v10, {v(QP+i)}, {v(ZP+i)}")
        k.I(f"v_dot2c_f32_bf16 v11, {v(QN+i)}, {v(ZN+i)}")
    k.I("v_add_f32 v10, v10, v11")
    k.I("v_add_f32 v10, 0x358637bd, v10")
    k.I("v_rcp_f32 v10, v10")
    for i in range(0, 16, 2):
        k.I(f"v_pk_mul_f32 {v(NUM+i,2)}, {v(NUM+i,2)}, v[10:11] op_sel_hi:[1,0]")
    for i in range(8):
        k.I(f"v_cvt_pk_bf16_f32 {v(160+i)}, {v(NUM+2*i)}, {v(NUM+2*i+1)}")
    k.stamp("o computed")
    k.I(f"s_lshl_b32 {s(S_T0)}, {s(S_M)}, 2")
    k.I(f"s_add_u32 {s(S_T0)}, {s(S_T0)}, {s(S_W)}")
    k.I(f"s_lshl_b32 {s(S_T0)}, {s(S_T0)}, 15")
    k.I(f"s_lshl_b32 {s(S_T1)}, {s(S_HP)}, 11")
    k.I(f"s_add_u32 {s(S_T0)}, {s(S_T0)}, {s(S_T1)}")
    k.I(f"s_add_u32 {s(S_T0)}, {s(S_T0)}, {WS_O}")
    k.I(f"v_add_u32 v8, {s(S_T0)}, {v(V_L16)}")
    k.I(f"buffer_store_dwordx4 v[160:163], v8, {srd(S_WS)}, 0 offen sc1")
    k.I(f"buffer_store_dwordx4 v[164:167], v8, {srd(S_WS)}, 0 offen offset:1024 sc1")
    k.wait_vm_all()
    k.I(f"s_lshl_b32 {s(S_T0)}, {s(S_M)}, 4")
    k.I(f"s_add_u32 {s(S_T0)}, {s(S_T0)}, {s(S_J)}")
    k.I(f"s_lshl_b32 {s(S_T0)}, {s(S_T0)}, 7")
    k.I(f"s_add_u32 {s(S_T0)}, {s(S_T0)}, {WS_FO}")
    k.signal(S_T0, "fo")
    k.stamp("o published")
    code_touch(k, 1, 0, t=(12, 13))


S_TBL, S_CBK, S_TB, S_B32 = 96, 97, 98, 99


def quad_ids(k):
    k.I(f"s_and_b32 {s(S_TBL)}, {s(S_W)}, 1")
    k.I(f"s_lshr_b32 {s(S_CBK)}, {s(S_W)}, 1")
    k.I(f"s_lshr_b32 {s(S_T0)}, {s(S_J2)}, 3")
    k.I(f"s_lshl_b32 {s(S_T0)}, {s(S_T0)}, 1")
    k.I(f"s_lshl_b32 {s(S_TB)}, {s(S_M2)}, 2")
    k.I(f"s_add_u32 {s(S_TB)}, {s(S_TB)}, {s(S_T0)}")
    k.I(f"s_add_u32 {s(S_TB)}, {s(S_TB)}, {s(S_TBL)}")
    k.I(f"s_and_b32 {s(S_B32)}, {s(S_J2)}, 7")
    k.I(f"s_lshl_b32 {s(S_B32)}, {s(S_B32)}, 1")
    k.I(f"s_add_u32 {s(S_B32)}, {s(S_B32)}, {s(S_CBK)}")


def mod16(k, dst_regs, gran0, stem):
    k.I(f"v_lshrrev_b32 v8, 5, {v(V_LANE)}")
    k.I("v_lshlrev_b32 v8, 6, v8")
    k.I(f"s_lshl_b32 {s(S_T0)}, {s(S_B32)}, 7")
    k.I(f"s_add_u32 {s(S_T0)}, {s(S_T0)}, {WS_MODG + gran0*8}")
    k.I(f"v_add_u32 v8, {s(S_T0)}, v8")
    k.load_granules_checked([dst_regs + 4 * i for i in range(4)], [8] * 4, stem, width=4, tagpos=(1, 3), imm=[0, 16, 32, 48])


VD = 4
S_M0, S_SO = 90, 91


def ring_setup(k):
    k.I(f"s_and_b32 {s(S_T0)}, {s(S_W)}, 1")
    k.I(f"s_cmp_eq_u32 {s(S_T0)}, 0")
    for i in range(4):
        k.I(f"s_cselect_b32 {s(S_SEL+i)}, {s(S_WG+i)}, {s(S_WU+i)}")
    for n in range(7):
        k.I(f"v_add_u32 v14, {64*n}, {v(V_LANE)}")
        k.I("v_mul_u32_u24 v15, 4682, v14")
        k.I("v_lshrrev_b32 v15, 16, v15")
        k.I(f"v_mul_u32_u24 {v(VD+n)}, 14, v15")
        k.I(f"v_sub_u32 v14, v14, {v(VD+n)}")
        k.I("v_mul_u32_u24 v15, 3584, v15")
        k.I("v_lshl_add_u32 v15, v14, 4, v15")
        k.I(f"s_mul_i32 {s(S_T0)}, {s(S_J)}, 224")
        k.I(f"v_add_u32 {v(VD+n)}, {s(S_T0)}, v15")
    for z in range(448):
        assert (z * 4682) >> 16 == z // 14
    k.I(f"s_lshr_b32 {s(S_T0)}, {s(S_W)}, 1")
    k.I(f"s_mul_i32 {s(S_M0)}, {s(S_T0)}, {SLAB}")
    k.I(f"s_and_b32 {s(S_T1)}, {s(S_W)}, 1")
    k.I(f"s_mul_i32 {s(S_T1)}, {s(S_T1)}, {UOFF}")
    k.I(f"s_add_u32 {s(S_M0)}, {s(S_M0)}, {s(S_T1)}")
    k.I(f"s_mul_i32 {s(S_SO)}, {s(S_T0)}, {32*3584}")


def ring_pair(k, P, as_list=False):
    out = [(f"s_add_u32 m0, {s(S_M0)}, {(P % 5) * 2 * SLAB}", None),
           (f"s_add_u32 {s(S_OFF)}, {s(S_SO)}, {P * 2 * 32 * 3584}", None)]
    for n in range(7):
        out.append((f"buffer_load_dwordx4 {v(VD+n)}, {srd(S_SEL)}, {s(S_OFF)} offen lds", f"W{P}"))
        if n < 6:
            out.append(("s_add_u32 m0, m0, 1024", None))
    if as_list:
        return out
    for t, tg in out:
        k.I(t, tag=tg)


def p2(k):
    XR, GA, CBR = 64, 72, 88
    k.I(f"v_and_b32 v12, 31, {v(V_LANE)}")
    k.I("v_lshlrev_b32 v12, 10, v12")
    k.I(f"v_lshrrev_b32 v13, 5, {v(V_LANE)}")
    k.I("v_lshl_add_u32 v12, v13, 5, v12")
    k.I(f"s_lshl_b32 {s(S_T0)}, {s(S_TB)}, 15")
    k.I(f"s_lshl_b32 {s(S_T1)}, {s(S_B32)}, 6")
    k.I(f"s_add_u32 {s(S_T0)}, {s(S_T0)}, {s(S_T1)}")
    k.I(f"v_add_u32 v12, {s(S_T0)}, v12")
    k.I(f"buffer_load_dwordx4 {v(XR,4)}, v12, {srd(S_X)}, 0 offen", tag="xr")
    k.I(f"buffer_load_dwordx4 {v(XR+4,4)}, v12, {srd(S_X)}, 0 offen offset:16", tag="xr")
    swz128_base(k, 15, cbk_sreg=S_CBK)
    for kap in range(32):
        hp, a = kap >> 1, kap & 1
        for rd in range(2):
            k.I(f"ds_read_b64_tr_b16 {a_(4*kap + 2*rd, 2)}, v15 offset:{L_WO + (32*hp + 8*a + 4*rd)*128}", tag="wof")
        if kap % 4 == 3:
            k.I("s_waitcnt lgkmcnt(6)")
    k.wait_lg_all()
    k.stamp("wof read")
    modn_compute(k)
    k.stamp("modn")
    ring_setup(k)
    k.I(f"v_lshrrev_b32 v13, 5, {v(V_LANE)}")
    k.I("v_lshlrev_b32 v13, 6, v13")
    k.I(f"s_lshl_b32 {s(S_T0)}, {s(S_B32)}, 7")
    k.I(f"s_add_u32 {s(S_T0)}, {s(S_T0)}, {WS_MODG}")
    k.I(f"v_add_u32 v13, {s(S_T0)}, v13")
    k.I(f"v_add_u32 v12, {512*8}, v13")
    k.I(f"v_add_u32 v13, {1024*8}, v13")
    gr = ([GA + 4 * i for i in range(4)] + [CBR + 4 * i for i in range(4)], [12] * 4 + [13] * 4)
    gimm = [0, 16, 32, 48] * 2
    k.I(f"s_lshl_b32 {s(S_T0)}, {s(S_M2)}, 11")
    k.I(f"s_add_u32 {s(S_T0)}, {s(S_T0)}, {WS_FO}")
    k.poll_flags(S_T0, 16, "po")
    k.stamp("o flags seen")
    k.I(f"s_sub_u32 {s(S_T0)}, {s(S_TB)}, {s(S_TBL)}")
    k.I(f"s_lshl_b32 {s(S_T0)}, {s(S_T0)}, 15")
    k.I(f"s_lshl_b32 {s(S_T1)}, {s(S_W)}, 14")
    k.I(f"s_add_u32 {s(S_T2)}, {s(S_T0)}, {s(S_T1)}")
    k.I(f"s_add_u32 {s(S_T2)}, {s(S_T2)}, {WS_O}")
    k.I(f"s_add_u32 {s(S_T3)}, {s(S_T1)}, {L_OI}")
    k.I(f"s_and_b32 {s(S_T4)}, {s(S_J2)}, 7")
    k.I(f"s_lshl_b32 {s(S_T4)}, {s(S_T4)}, 11")
    k._tag = "of"
    for n in range(16):
        k.I(f"s_add_u32 {s(S_T0)}, {s(S_T4)}, {n*1024}")
        k.I(f"s_and_b32 {s(S_T0)}, {s(S_T0)}, 0x3fff")
        k.I(f"s_add_u32 m0, {s(S_T3)}, {s(S_T0)}")
        k.I(f"s_add_u32 {s(S_OFF)}, {s(S_T2)}, {s(S_T0)}")
        k.dma(V_L16, S_WS, s(S_OFF), sc1=True)
    k._tag = None
    k.granule_loads(gr[0], gr[1], 4, gimm, "gacb")
    ring_a = []
    for P in range(3):
        cur = []
        for t, tg in ring_pair(k, P, as_list=True):
            cur.append((t, tg))
            if t.startswith("buffer_"):
                ring_a.append(cur)
                cur = []
    for _ in range(OPT.get("ring_a0", 8)):
        for t, tg in ring_a.pop(0):
            k.I(t, tag=tg)
    k.I(f"s_lshl_b32 {s(S_T0)}, {s(S_TBL)}, 15")
    k.I(f"s_add_u32 {s(S_T0)}, {s(S_T0)}, {L_OI}")
    k.I(f"v_add_u32 v14, {s(S_T0)}, {v(V_L16)}")
    k.wait_vm("of")
    k.barrier()
    k.stamp("o landed")
    GAF, C2F, XF = 144, 160, 176
    pre = [lambda: k.granule_verify(gr[0], gr[1], "gacb", 4, (1, 3), gimm, "gacb")]
    for i in range(8):
        g = GA + 4 * (i >> 1) + 2 * (i & 1)
        c = CBR + 4 * (i >> 1) + 2 * (i & 1)
        pre += [f"v_lshlrev_b32 {v(GAF+2*i)}, 16, {v(g)}", f"v_and_b32 {v(GAF+2*i+1)}, {s(S_MASK)}, {v(g)}",
                f"v_lshlrev_b32 {v(XF+2*i)}, 16, {v(XR+i)}", f"v_and_b32 {v(XF+2*i+1)}, {s(S_MASK)}, {v(XR+i)}",
                f"v_lshlrev_b32 {v(C2F+2*i)}, 16, {v(c)}", f"v_and_b32 {v(C2F+2*i+1)}, {s(S_MASK)}, {v(c)}",
                f"v_add_f32 {v(C2F+2*i)}, 1.0, {v(C2F+2*i)}", f"v_add_f32 {v(C2F+2*i+1)}, 1.0, {v(C2F+2*i+1)}",
                f"v_cvt_pk_bf16_f32 {v(c)}, {v(C2F+2*i)}, {v(C2F+2*i+1)}",
                f"v_lshlrev_b32 {v(C2F+2*i)}, 16, {v(c)}", f"v_and_b32 {v(C2F+2*i+1)}, {s(S_MASK)}, {v(c)}"]
    ACC = 112
    nb = 6
    for kap in range(32 + nb - 2):
        if kap < 32:
            k.I(f"ds_read_b128 {v(16 + 4*(kap % nb), 4)}, v14 offset:{kap*1024}", tag=f"o{kap}")
        q = kap - (nb - 2)
        if q >= 0:
            k.wait_lg(f"o{q}")
            k.mfma32(v(ACC, 16), a_(4 * q, 4), v(16 + 4 * (q % nb), 4), "0" if q == 0 else None)
            if ring_a and q % 2 == 0:
                for t, tg in ring_a.pop(0):
                    k.I(t, tag=tg)
            if q >= 6:
                for _ in range(4):
                    if pre:
                        it = pre.pop(0)
                        it() if callable(it) else k.I(it)
    assert not ring_a and not pre
    k.stamp("wo gemm")
    k.barrier()
    k.stamp("gacb ok")
    ring = []
    for P in range(3, 5):
        items = ring_pair(k, P, as_list=True)
        cur = []
        for t, tg in items:
            cur.append((t, tg))
            if t.startswith("buffer_"):
                ring.append(cur)
                cur = []

    def ring_some(n):
        for _ in range(min(n, len(ring))):
            for t, tg in ring.pop(0):
                k.I(t, tag=tg)

    T = 128
    X1 = 136
    YP = 128
    k.I("v_mov_b32 v40, 0")
    k.I("v_mov_b32 v41, 0")
    k.I("v_mov_b32 v42, 0x3f803f80")
    for i in range(16):
        k.I(f"v_fmac_f32 {v(XF+i)}, {v(GAF+i)}, {v(ACC+i)}")
    for i in range(8):
        k.I(f"v_cvt_pk_bf16_f32 {v(X1+i)}, {v(XF+2*i)}, {v(XF+2*i+1)}")
    ring_some(2)
    for i in range(8):
        k.unpack(XF + 2 * i, XF + 2 * i + 1, X1 + i)
    for i in range(8):
        k.I(f"v_pk_mul_f32 {v(XF+2*i,2)}, {v(XF+2*i,2)}, {v(C2F+2*i,2)}")
    for i in range(8):
        k.I(f"v_cvt_pk_bf16_f32 {v(YP+i)}, {v(XF+2*i)}, {v(XF+2*i+1)}")
    k.I(f"s_lshl_b32 {s(S_T0)}, {s(S_TB)}, 15")
    k.I(f"s_lshl_b32 {s(S_T1)}, {s(S_B32)}, 11")
    k.I(f"s_add_u32 {s(S_T0)}, {s(S_T0)}, {s(S_T1)}")
    k.I(f"s_add_u32 {s(S_T0)}, {s(S_T0)}, {WS_Y}")
    k.I(f"v_add_u32 v12, {s(S_T0)}, {v(V_L16)}")
    k.I(f"buffer_store_dwordx4 {v(YP,4)}, v12, {srd(S_WS)}, 0 offen sc1", tag="yst")
    k.I(f"buffer_store_dwordx4 {v(YP+4,4)}, v12, {srd(S_WS)}, 0 offen offset:1024 sc1", tag="yst")
    for i in range(8):
        k.I(f"v_dot2c_f32_bf16 v40, {v(X1+i)}, v42")
        k.I(f"v_dot2c_f32_bf16 v41, {v(X1+i)}, {v(X1+i)}")
    k.half_total(40, 43)
    k.half_total(41, 43)
    k.I(f"s_lshl_b32 {s(S_T0)}, {s(S_TB)}, 4")
    k.I(f"s_add_u32 {s(S_T0)}, {s(S_T0)}, {s(S_B32)}")
    k.I(f"s_lshl_b32 {s(S_T0)}, {s(S_T0)}, 8")
    k.I(f"s_add_u32 {s(S_T0)}, {s(S_T0)}, {WS_STATS}")
    k.I(f"v_lshlrev_b32 v12, 3, {v(V_LANE)}")
    k.I(f"v_add_u32 v12, {s(S_T0)}, v12")
    k.I("s_mov_b32 exec_hi, 0")
    k.I(f"buffer_store_dwordx2 v[40:41], v12, {srd(S_WS)}, 0 offen sc1", tag="yst")
    k.I("s_mov_b64 exec, -1")
    k.stamp("y stored")
    ring_some(OPT.get("ring_pre", 8))
    k.stamp("ring b")
    for i in range(8):
        k.I(f"v_accvgpr_write_b32 {a_(248+i)}, {v(X1+i)}")
    k.wait_vm("yst")
    k.I(f"s_lshl_b32 {s(S_T0)}, {s(S_M2)}, 4")
    k.I(f"s_add_u32 {s(S_T0)}, {s(S_T0)}, {s(S_J2)}")
    k.I(f"s_lshl_b32 {s(S_T0)}, {s(S_T0)}, 7")
    k.I(f"s_add_u32 {s(S_T0)}, {s(S_T0)}, {WS_FY}")
    k.signal(S_T0, "fy")
    noe = k.newlabel("noepoch")
    k.I("s_cmp_eq_u32 s2, 0")
    k.I(f"s_cbranch_scc0 {noe}")
    k.wave_is(0, noe)
    k.cond_begin()
    k.I("v_mov_b32 v12, 0")
    k.I("s_mov_b64 exec, 1")
    k.I(f"buffer_store_dword {v(V_TAG)}, v12, {srd(S_WS)}, 0 offen sc1")
    k.I("s_mov_b64 exec, -1")
    k.cond_end()
    k.label(noe)
    k.stamp("y published")
    ring_some(len(ring))
    ub_compute(k)
    k.stamp("ub")


def p3_tail(k, ST, AE, BE):
    it = [lambda: k.wait_vm("st")]
    for i in range(1, 8):
        it.append(f"v_add_f32 v16, v16, {v(ST+2*i)}")
        it.append(f"v_add_f32 v17, v17, {v(ST+2*i+1)}")
    for r in (16, 17):
        it += [f"v_mov_b32 v18, {v(r)}", "s_nop 1", f"v_permlane32_swap_b32 {v(r)}, v18", f"v_add_f32 {v(r)}, {v(r)}, v18"]
    it += ["v_mul_f32 v16, 0x3b000000, v16", "v_mul_f32 v17, 0x3b000000, v17", "v_fma_f32 v17, -v16, v16, v17",
           "v_max_f32 v17, 0, v17", "v_add_f32 v17, 0x3727c5ac, v17", "v_rsq_f32 v18, v17", "v_sub_f32 v16, 0, v16",
           "v_mul_f32 v19, v17, v18", "v_mul_f32 v20, v18, v18", "v_cvt_pk_bf16_f32 v22, v16, v19",
           "v_lshlrev_b32 v24, 16, v22", f"v_and_b32 v25, {s(S_MASK)}, v22", "v_sub_f32 v24, v16, v24", "v_sub_f32 v25, v19, v25",
           "v_cvt_pk_bf16_f32 v23, v24, v25",
           f"s_mov_b32 {s(S_T1)}, 0x01000100", f"v_perm_b32 {v(BE)}, v22, v22, {s(S_T1)}",
           f"s_mov_b32 {s(S_T1)}, 0x07060100", f"v_perm_b32 {v(BE+1)}, v22, v23, {s(S_T1)}",
           f"s_mov_b32 {s(S_T1)}, 0x07060302", f"v_perm_b32 {v(BE+2)}, v23, v22, {s(S_T1)}",
           f"v_mov_b32 {v(BE+3)}, 0", f"v_cmp_gt_u32 vcc, 32, {v(V_LANE)}"]
    it.append(lambda: [k.I(f"v_cndmask_b32 {v(BE+i)}, 0, {v(BE+i)}, vcc") for i in range(3)])
    regs = [AE + 28 * h + 4 * b for h in range(2) for b in range(7)]
    it.append(lambda: k.granule_verify(regs, [14] * 7 + [15] * 7, "wext", 4, (3,), [256 * b for b in range(7)] * 2, "wext"))
    it += [f"v_mov_b32 {v(r+3)}, 0" for r in regs]
    return it


def p3(k):
    Y0, ACC = 16, 144
    VTR = (11, 12, 13)
    lane_fields(k, s_=14, r_=15)
    k.I("v_lshl_add_u32 v14, v14, 4, v15")
    k.I("v_mul_u32_u24 v14, 224, v14")
    k.I(f"v_bfe_u32 v15, {v(V_LANE)}, 4, 1")
    k.I(f"v_mul_u32_u24 v15, {UOFF}, v15")
    k.I("v_add_u32 v14, v14, v15")
    k.I(f"v_and_b32 v15, 1, {v(V_LANE)}")
    k.I("v_lshl_add_u32 v14, v15, 4, v14")
    k.I(f"v_bfe_u32 v15, {v(V_LANE)}, 1, 1")
    k.I(f"v_lshl_add_u32 {v(VTR[0])}, v15, 3, v14")
    k.I(f"v_add_u32 {v(VTR[1])}, {4*SLAB}, {v(VTR[0])}")
    k.I(f"v_add_u32 {v(VTR[2])}, {8*SLAB}, {v(VTR[0])}")
    k.I(f"s_lshl_b32 {s(S_T0)}, {s(S_M)}, 11")
    k.I(f"s_add_u32 {s(S_T0)}, {s(S_T0)}, {WS_FY}")
    k.wait_vm_all()
    k.poll_flags(S_T0, 16, "py")
    k.stamp("y flags seen")
    S_TB3 = S_T2
    k.I(f"s_lshl_b32 {s(S_TB3)}, {s(S_M)}, 2")
    k.I(f"s_add_u32 {s(S_TB3)}, {s(S_TB3)}, {s(S_W)}")
    k.I(f"s_lshl_b32 {s(S_T3)}, {s(S_TB3)}, 15")
    k.I(f"s_add_u32 {s(S_T3)}, {s(S_T3)}, {WS_Y}")

    def ld_y(kap):
        out = []
        if kap and kap & 3 == 0:
            out.append((f"s_add_u32 {s(S_T3)}, {s(S_T3)}, 4096", None))
        out.append((f"buffer_load_dwordx4 {v(Y0+4*kap,4)}, {v(V_L16)}, {srd(S_WS)}, {s(S_T3)} offen offset:{(kap&3)*1024} sc1", f"y{kap}"))
        return out

    if OPT.get("coop", 0):
        k.I(f"v_and_b32 v14, 31, {v(V_LANE)}")
        k.I("v_lshlrev_b32 v14, 7, v14")
        k.I(f"s_and_b32 {s(S_T0)}, {s(S_J)}, 7")
        k.I(f"s_lshl_b32 {s(S_T0)}, {s(S_T0)}, 12")
        k.I(f"v_add_u32 v14, {s(S_T0)}, v14")
        k.I(f"buffer_load_dword v0, v14, {srd(S_WS)}, {s(S_T3)} offen", tag="t")
    NY0 = OPT.get('ny0', 20)
    for kap in range(NY0):
        for t, tg in ld_y(kap):
            k.I(t, tag=tg)

    def rd_w(kap, beta):
        B, a = kap >> 1, kap & 1
        P = B >> 1
        slot = (P % 5) * 2 + (B & 1)
        base = VTR[slot >> 2]
        return [(f"ds_read_b64_tr_b16 {a_(28*(kap&1) + 4*beta + 2*rd, 2)}, {v(base)} offset:{(slot & 3) * SLAB + (8*a + 4*rd)*224 + 32*beta}", f"w{kap}_{beta}") for rd in range(2)]

    ub_publish(k)
    for beta in range(7):
        for t, tg in rd_w(0, beta):
            k.I(t, tag=tg)
    side = []
    tail = []
    ST, AE, BE = 16, 32, 28
    for kap in range(32):
        P = kap >> 2
        if kap & 3 == 3 and P < 7:
            k.wait_vm(f"W{P+1}")
            if not OPT.get("x_nobar"):
                k.barrier()
            if 1 <= P <= 3 and not OPT.get("x_noring"):
                side += ring_pair(k, P + 4, as_list=True)
        if kap + NY0 < 32:
            side = ld_y(kap + NY0) + side
        if OPT["touch"] and kap == OPT.get("twdk", 24) and not OPT.get("map24"):
            side.append((f"s_lshl_b32 {s(S_T0)}, {s(S_I)}, 2", None))
            side.append((f"s_add_u32 {s(S_T0)}, {s(S_T0)}, {s(S_W)}", None))
            side.append((f"s_mul_i32 {s(S_T0)}, {s(S_T0)}, {112*128}", None))
            side.append((f"v_min_u32 v7, 55, {v(V_LANE)}", None))
            side.append(("v_lshlrev_b32 v7, 7, v7", None))
            side.append((f"buffer_load_dword v0, v7, {srd(S_WD)}, {s(S_T0)} offen", "t"))
            side.append((f"s_add_u32 {s(S_T0)}, {s(S_T0)}, {56*128}", None))
            side.append((f"buffer_load_dword v0, v7, {srd(S_WD)}, {s(S_T0)} offen", "t"))
        if kap == OPT.get('kst', 18):
            side.append((f"s_lshl_b32 {s(S_T0)}, {s(S_TB3)}, 12", None))
            side.append((f"s_add_u32 {s(S_T0)}, {s(S_T0)}, {WS_STATS}", None))
            side.append((f"v_and_b32 v14, 31, {v(V_LANE)}", None))
            side.append(("v_lshlrev_b32 v14, 3, v14", None))
            side.append((f"v_lshrrev_b32 v15, 5, {v(V_LANE)}", None))
            side.append(("v_lshl_add_u32 v14, v15, 11, v14", None))
            side.append((f"v_add_u32 v14, {s(S_T0)}, v14", None))
            for i in range(8):
                side.append((f"buffer_load_dwordx2 {v(ST+2*i,2)}, v14, {srd(S_WS)}, 0 offen offset:{i*256} sc1", "st"))
        if kap == OPT.get('kwx', 22):
            for t in (f"v_bfe_u32 v14, {v(V_LANE)}, 2, 1", "v_lshlrev_b32 v14, 3, v14", f"v_bfe_u32 v15, {v(V_LANE)}, 3, 1",
                      "v_lshl_add_u32 v14, v15, 2, v14", f"v_and_b32 v15, 3, {v(V_LANE)}", "v_add_u32 v14, v14, v15",
                      f"v_bfe_u32 v15, {v(V_LANE)}, 4, 1", "v_mul_u32_u24 v15, 1792, v15", "v_add_u32 v14, v14, v15",
                      f"s_mul_i32 {s(S_T0)}, {s(S_J)}, 112", f"v_add_u32 v14, {s(S_T0)}, v14", "v_lshlrev_b32 v14, 4, v14",
                      f"v_add_u32 v14, {WS_WEXT}, v14", f"v_add_u32 v15, {3584*16}, v14"):
                side.append((t, None))
            for h in range(2):
                for b in range(7):
                    side.append((f"buffer_load_dwordx4 {v(AE+28*h+4*b,4)}, {v(14+h)}, {srd(S_WS)}, 0 offen offset:{256*b} sc1", "wext"))
        if kap == OPT.get('kwd', 20):
            side += [(t, None) for t in wd_setup_items()]
        if kap == 23 and OPT.get("g0loop"):
            for it in wd_dma(0, WD_G1):
                side += it
        if kap == 26:
            tail = p3_tail(k, ST, AE, BE)
        k.wait_vm(f"y{kap}")
        if kap in (1, 8, 16, 24):
            k.stamp(f"p3 k{kap}")
        for beta in range(7):
            k.wait_lg(f"w{kap}_{beta}")
            k.mfma32(v(ACC + 16 * beta, 16), a_(28 * (kap & 1) + 4 * beta, 4), v(Y0 + 4 * kap, 4), "0" if kap == 0 else None)
            if kap + 1 < 32 and not OPT.get("x_notr"):
                for t, tg in rd_w(kap + 1, beta):
                    k.I(t, tag=tg)
            for _ in range(2):
                if tail:
                    it = tail.pop(0)
                    it() if callable(it) else k.I(it)
            nvm = 0
            while side and nvm < 1:
                t, tg = side.pop(0)
                k.I(t, tag=tg)
                if t.startswith("buffer_"):
                    nvm += 1
    for t, tg in side:
        k.I(t, tag=tg)
    assert not tail
    for h in range(2):
        for b in range(7):
            k.mfma32(v(ACC + 16 * b, 16), v(AE + 28 * h + 4 * b, 4), v(BE, 4))
    k.stamp("gate/up gemm")
    k.barrier()
    if OPT.get("wdshare"):
        wd_bases(k)
        k.I(f"s_mul_i32 {s(S_T0)}, {s(S_TB3)}, 112")
        k.I(f"s_mul_i32 {s(S_T1)}, {s(S_J)}, 7")
        k.I(f"s_add_u32 {s(S_T0)}, {s(S_T0)}, {s(S_T1)}")
        k.I(f"s_lshl_b32 {s(S_T0)}, {s(S_T0)}, 10")
        k.I(f"s_add_u32 {s(S_AO)}, {s(S_T0)}, {WS_ACT}")
        for b in range(7):
            G = ACC + 16 * b
            U = G + 8
            o = 96 + 4 * b
            for e in range(0, 8, 2):
                k.I(f"v_pk_mul_f32 {v(U+e,2)}, {v(U+e,2)}, v[20:21] op_sel_hi:[1,0]")
            for e in range(8):
                k.I(f"v_max_f32 {v(G+e)}, 0, {v(G+e)}")
            for e in range(0, 8, 2):
                k.I(f"v_pk_mul_f32 {v(G+e,2)}, {v(G+e,2)}, {v(U+e,2)}")
            for e in range(0, 8, 2):
                k.I(f"v_cvt_pk_bf16_f32 {v(o+e//2)}, {v(G+e)}, {v(G+e+1)}")
            k.I(f"buffer_store_dwordx4 {v(o,4)}, {v(V_L16)}, {srd(S_WS)}, {s(S_AO)} offen offset:{(b&3)*1024} sc1", tag="ast")
            if b == 3:
                k.I(f"s_add_u32 {s(S_AO)}, {s(S_AO)}, 4096")
        k.stamp("act stored")
        NPRE = OPT.get("wd_pre", 6)
        own = wd_dma(0, WD_G1)

        def share(n0, n1):
            for n in range(n0, n1):
                k.I(f"s_sub_u32 {s(S_T0)}, {s(S_W)}, 1")
                k.I(f"s_mul_i32 {s(S_T0)}, {s(S_T0)}, 13")
                k.I(f"s_add_u32 {s(S_T0)}, {s(S_T0)}, {n}")
                k.I(f"s_min_u32 {s(S_T0)}, {s(S_T0)}, 37")
                k.I(f"s_lshl_b32 {s(S_OFF)}, {s(S_T0)}, 13")
                k.I(f"s_lshl_b32 {s(S_T0)}, {s(S_T0)}, 10")
                k.I(f"s_add_u32 {s(S_T1)}, {s(S_T0)}, {WD_TOP}")
                k.I(f"s_sub_u32 m0, {s(S_T0)}, {18*1024}")
                k.I(f"s_cmp_lt_u32 {s(S_T0)}, {18*1024}")
                k.I(f"s_cselect_b32 m0, {s(S_T1)}, m0")
                k.I(f"buffer_load_dwordx4 v4, {srd(S_WD)}, {s(S_OFF)} offen lds")

        l0, l1 = k.newlabel("wdp"), k.newlabel("wdp")
        k.cond_begin()
        k.wave_is(0, l0)
        k.I("s_waitcnt vmcnt(0)")
        k.I(f"s_branch {l1}")
        k.label(l0)
        share(0, NPRE)
        k.I(f"s_waitcnt vmcnt({NPRE})")
        k.label(l1)
        k.cond_end()
        k.vmq = []
        k.I(f"s_lshl_b32 {s(S_T0)}, {s(S_M)}, 4")
        k.I(f"s_add_u32 {s(S_T0)}, {s(S_T0)}, {s(S_J)}")
        k.I(f"s_lshl_b32 {s(S_T0)}, {s(S_T0)}, 7")
        k.I(f"s_add_u32 {s(S_T0)}, {s(S_T0)}, {WS_FA}")
        k.signal(S_T0, "fa")
        k.stamp("act published")
        l0 = k.newlabel("wdq")
        k.I(f"s_cmp_eq_u32 {s(S_W)}, 0")
        k.I(f"s_cbranch_scc1 {l0}")
        k.cond_begin()
        share(NPRE, 13)
        for it in own:
            for t, tg in it:
                k.I(t, tag=tg)
        if OPT.get("g1pre", 1):
            for it in wd_dma(WD_G1, WD_G2):
                for t, tg in it:
                    k.I(t, tag=tg)
            k.I(f"s_waitcnt vmcnt({2*(WD_G2-WD_G1)})")
        else:
            k.I("s_waitcnt vmcnt(0)")
        k.cond_end()
        k.label(l0)
    else:
        wd_bases(k)
        dm = wd_dma(WD_G1, WD_G2) if OPT.get("g0loop") else wd_dma(0, WD_G2)
        k.I(f"s_mul_i32 {s(S_T0)}, {s(S_TB3)}, 112")
        k.I(f"s_mul_i32 {s(S_T1)}, {s(S_J)}, 7")
        k.I(f"s_add_u32 {s(S_T0)}, {s(S_T0)}, {s(S_T1)}")
        k.I(f"s_lshl_b32 {s(S_T0)}, {s(S_T0)}, 10")
        k.I(f"s_add_u32 {s(S_AO)}, {s(S_T0)}, {WS_ACT}")

        def dma_some(n):
            for _ in range(n):
                for t, tg in dm.pop(0):
                    k.I(t, tag=tg)

        for b in range(7):
            G = ACC + 16 * b
            U = G + 8
            o = 96 + 4 * b
            for e in range(0, 8, 2):
                k.I(f"v_pk_mul_f32 {v(U+e,2)}, {v(U+e,2)}, v[20:21] op_sel_hi:[1,0]")
            for e in range(8):
                k.I(f"v_max_f32 {v(G+e)}, 0, {v(G+e)}")
            for e in range(0, 8, 2):
                k.I(f"v_pk_mul_f32 {v(G+e,2)}, {v(G+e,2)}, {v(U+e,2)}")
            for e in range(0, 8, 2):
                k.I(f"v_cvt_pk_bf16_f32 {v(o+e//2)}, {v(G+e)}, {v(G+e+1)}")
            k.I(f"buffer_store_dwordx4 {v(o,4)}, {v(V_L16)}, {srd(S_WS)}, {s(S_AO)} offen offset:{(b&3)*1024} sc1", tag="ast")
            if b == 3:
                k.I(f"s_add_u32 {s(S_AO)}, {s(S_AO)}, 4096")
            if b < 6:
                dma_some(OPT.get("wd_mix", 2))
        k.stamp("act stored")
        dma_some(OPT.get("wd_pre", 8))

        def g0_reads():
            k.wait_vm(f"wd{WD_G1-1}")
            for kl in range(WD_G1):
                for t, tg in wd_reads(kl):
                    k.I(t, tag=tg)
                if kl % 2 == 1:
                    k.I("s_waitcnt lgkmcnt(4)")
        k.wait_vm("ast")
        k.I(f"s_lshl_b32 {s(S_T0)}, {s(S_M)}, 4")
        k.I(f"s_add_u32 {s(S_T0)}, {s(S_T0)}, {s(S_J)}")
        k.I(f"s_lshl_b32 {s(S_T0)}, {s(S_T0)}, 7")
        k.I(f"s_add_u32 {s(S_T0)}, {s(S_T0)}, {WS_FA}")
        k.signal(S_T0, "fa")
        k.stamp("act published")
        dma_some(len(dm))
        g0_reads()
        k.wait_lg_all()
        k.stamp("wf0 read")


S_AO = 91


S_WDB, S_WDT = 90, 12
S_WDO = 3
WD_TOP = 87552
WD_G1, WD_G2 = 9, 19
V_WD = 4
V_WB, V_WT = 5, 10


def wd_setup_items():
    return [f"s_and_b32 {s(S_T0)}, {s(S_J2)}, 7", f"s_lshl_b32 {s(S_T0)}, {s(S_T0)}, 7",
            f"v_lshrrev_b32 v4, 3, {v(V_LANE)}", "v_lshlrev_b32 v4, 10, v4", f"v_and_b32 v5, 7, {v(V_LANE)}",
            f"v_bfe_u32 v6, {v(V_LANE)}, 4, 1", "v_lshlrev_b32 v6, 2, v6", "v_xor_b32 v5, v5, v6",
            "v_lshl_add_u32 v4, v5, 4, v4", f"v_add_u32 v4, {s(S_T0)}, v4",
            f"s_mul_i32 {s(S_WDB)}, {s(S_W)}, 20480", f"s_mul_i32 {s(S_WDT)}, {s(S_W)}, 18432",
            f"s_add_u32 {s(S_WDT)}, {s(S_WDT)}, {WD_TOP}", f"s_mul_i32 {s(S_WDO)}, {s(S_W)}, {448*1024}"]


def wd_bases(k):
    swz128_base(k, 5, cbk_imm=0, s_mul=8)
    k.I(f"v_add_u32 v10, {s(S_WDT)}, v5")
    k.I("v_xor_b32 v11, 64, v10")
    k.I(f"v_add_u32 v5, {s(S_WDB)}, v5")
    k.I("v_xor_b32 v6, 64, v5")


def wd_slot(kl):
    if kl < WD_G1:
        return S_WDT, V_WT, kl * 2048
    if kl < WD_G2:
        return S_WDB, V_WB, (kl - WD_G1) * 2048
    return S_WDT, V_WT, (kl - WD_G2) * 2048


def wd_dma(k0, k1):
    out = []
    for kl in range(k0, k1):
        sb, _, off = wd_slot(kl)
        for h in range(2):
            out.append([(f"s_add_u32 {s(S_OFF)}, {s(S_WDO)}, {(16*kl + 8*h)*1024}", None),
                        (f"s_add_u32 m0, {s(sb)}, {off + h*1024}", None),
                        (f"buffer_load_dwordx4 v4, {srd(S_WD)}, {s(S_OFF)} offen lds", f"wd{kl}")])
    return out


def wd_reads(kl):
    _, vb, off = wd_slot(kl)
    return [(f"ds_read_b64_tr_b16 {a_((2*kl + cbk)*4 + 2*rd, 2)}, {v(vb+cbk)} offset:{off + rd*512}", f"wf{kl}")
            for cbk in range(2) for rd in range(2)]


def p4(k):
    GB = 176
    k.I(f"v_lshrrev_b32 v8, 5, {v(V_LANE)}")
    k.I("v_lshlrev_b32 v8, 6, v8")
    k.I(f"s_lshl_b32 {s(S_T0)}, {s(S_B32)}, 7")
    k.I(f"s_add_u32 {s(S_T0)}, {s(S_T0)}, {WS_MODG + 1280*8}")
    k.I(f"v_add_u32 v8, {s(S_T0)}, v8")
    greg = [GB + 4 * i for i in range(4)]
    if not OPT.get("wdshare"):
        for it in wd_dma(WD_G2, 28):
            for t, tg in it:
                k.I(t, tag=tg)
    k.I(f"s_lshl_b32 {s(S_T0)}, {s(S_M2)}, 11")
    k.I(f"s_add_u32 {s(S_T0)}, {s(S_T0)}, {WS_FA}")
    k.poll_flags(S_T0, 16, "pa")
    k.stamp("act flags seen")
    k.I(f"s_sub_u32 {s(S_T0)}, {s(S_TB)}, {s(S_TBL)}")
    k.I(f"s_mul_i32 {s(S_T0)}, {s(S_T0)}, {112*1024}")
    k.I(f"s_mul_i32 {s(S_T1)}, {s(S_W)}, {28*1024}")
    k.I(f"s_add_u32 {s(S_T0)}, {s(S_T0)}, {s(S_T1)}")
    S_A0, S_A1 = S_T3, S_T4
    k.I(f"s_add_u32 {s(S_A0)}, {s(S_T0)}, {WS_ACT}")
    k.I(f"s_add_u32 {s(S_A1)}, {s(S_A0)}, {112*1024}")
    NB = OPT.get("nb4", 12)
    AB = 16
    ACC = 192

    def ld(kl):
        out = []
        for tbl in range(2):
            r = AB + 8 * (kl % NB) + 4 * tbl
            out.append((f"buffer_load_dwordx4 {v(r,4)}, {v(V_L16)}, {srd(S_WS)}, {s(S_A0 + tbl)} offen offset:{(kl&3)*1024} sc1", f"a{kl}"))
        if kl & 3 == 3:
            out.append((f"s_add_u32 {s(S_A0)}, {s(S_A0)}, 4096", None))
            out.append((f"s_add_u32 {s(S_A1)}, {s(S_A1)}, 4096", None))
        return out

    for kl in range(NB):
        for t, tg in ld(kl):
            k.I(t, tag=tg)
    g2 = []
    if OPT.get("wdshare"):
        if not OPT.get("g1pre", 1):
            l0 = k.newlabel("wdr")
            k.I(f"s_cmp_eq_u32 {s(S_W)}, 0")
            k.I(f"s_cbranch_scc1 {l0}")
            k.cond_begin()
            for it in wd_dma(WD_G1, WD_G2):
                for t, tg in it:
                    k.I(t, tag=tg)
            k.cond_end()
            k.label(l0)
        for kl in range(WD_G1):
            for t, tg in wd_reads(kl):
                k.I(t, tag=tg)
            if kl % 2 == 1:
                k.I("s_waitcnt lgkmcnt(4)")
        k.wait_lg_all()
        k.stamp("wf0 read")
        g2 = wd_dma(WD_G2, 28)
    k.granule_loads(greg, [8] * 4, 4, [0, 16, 32, 48], "gb")
    GBF, X1F = 112, 128
    pre = [lambda: k.granule_verify(greg, [8] * 4, "gb", 4, (1, 3), [0, 16, 32, 48], "gb")]
    for i in range(8):
        g = GB + 4 * (i >> 1) + 2 * (i & 1)
        pre += [f"v_lshlrev_b32 {v(GBF+2*i)}, 16, {v(g)}", f"v_and_b32 {v(GBF+2*i+1)}, {s(S_MASK)}, {v(g)}",
                f"v_accvgpr_read_b32 v144, {a_(248+i)}", f"v_lshlrev_b32 {v(X1F+2*i)}, 16, v144", f"v_and_b32 {v(X1F+2*i+1)}, {s(S_MASK)}, v144"]
    for kl in range(28):
        k.wait_vm(f"a{kl}")
        if kl in (1, 7, 14, 21):
            k.stamp(f"p4 k{kl}")
        rds = wd_reads(kl + 3) if WD_G1 <= kl + 3 < 28 else []
        if kl >= WD_G1:
            k.wait_lg(f"wf{kl}")
        nxt = ld(kl + NB) if kl + NB < 28 else []
        if OPT.get("wdshare"):
            if kl + 3 == WD_G1 and not OPT.get("g1pre", 1):
                k.wait_vm("gb")
            if kl + 3 == WD_G2:
                k.wait_vm("wd27")
            for _ in range(OPT.get("g2rate", 4)):
                if g2:
                    for t, tg in g2.pop(0):
                        k.I(t, tag=tg)
        for tbl in range(2):
            for cbk in range(2):
                r = AB + 8 * (kl % NB) + 4 * tbl
                k.mfma32(v(ACC + 16 * (2 * cbk + tbl), 16), a_((2 * kl + cbk) * 4, 4), v(r, 4), "0" if kl == 0 else None)
                if rds:
                    t, tg = rds.pop(0)
                    k.I(t, tag=tg)
                if tbl == 1 and nxt:
                    t, tg = nxt.pop(0)
                    k.I(t, tag=tg)
                if kl >= 10 and pre:
                    it = pre.pop(0)
                    it() if callable(it) else k.I(it)
        for t, tg in nxt:
            k.I(t, tag=tg)
    assert not pre
    k.stamp("down gemm")
    k.wait_lg_all()
    k.barrier()
    k.I(f"s_lshl_b32 {s(S_T0)}, {s(S_W)}, 12")
    k.I(f"v_add_u32 v8, {s(S_T0)}, {v(V_L16)}")
    k.I(f"v_add_u32 v9, 32768, v8")
    for q in range(4):
        sk = k.newlabel("r4w")
        k.I(f"s_cmp_eq_u32 {s(S_W)}, {q}")
        k.I(f"s_cbranch_scc1 {sk}")
        k.cond_begin()
        for i in range(4):
            base = 8 if q < 2 else 9
            k.I(f"ds_write_b128 {v(base)}, {v(ACC+16*q+4*i,4)} offset:{(q&1)*16384 + i*1024}")
        k.cond_end()
        k.label(sk)
    k.wait_lg_all()
    k.barrier()
    k.I(f"s_lshl_b32 {s(S_T0)}, {s(S_W)}, 14")
    k.I(f"v_add_u32 v8, {s(S_T0)}, {v(V_L16)}")
    for d in range(1, 4):
        k.I(f"s_add_u32 {s(S_T1)}, {s(S_W)}, {d}")
        k.I(f"s_and_b32 {s(S_T1)}, {s(S_T1)}, 3")
        k.I(f"s_lshl_b32 {s(S_T1)}, {s(S_T1)}, 12")
        k.I(f"v_add_u32 v9, {s(S_T1)}, v8")
        for i in range(4):
            k.I(f"ds_read_b128 {v(32+16*(d-1)+4*i,4)}, v9 offset:{i*1024}")
    for q in range(4):
        sk = k.newlabel("r4m")
        k.I(f"s_cmp_eq_u32 {s(S_W)}, {q}")
        k.I(f"s_cbranch_scc0 {sk}")
        for i in range(0, 16, 2):
            k.I(f"v_pk_mul_f32 {v(16+i,2)}, {v(ACC+16*q+i,2)}, 1.0 op_sel_hi:[1,0]")
        k.label(sk)
    k.wait_lg_all()
    for d in range(3):
        for i in range(0, 16, 2):
            k.I(f"v_pk_add_f32 {v(16+i,2)}, {v(16+i,2)}, {v(32+16*d+i,2)}")
    for i in range(16):
        k.I(f"v_fmac_f32 {v(X1F+i)}, {v(GBF+i)}, {v(16+i)}")
    for i in range(8):
        k.I(f"v_cvt_pk_bf16_f32 {v(88+i)}, {v(X1F+2*i)}, {v(X1F+2*i+1)}")
    k.I(f"v_and_b32 v8, 31, {v(V_LANE)}")
    k.I("v_lshlrev_b32 v8, 10, v8")
    k.I(f"v_lshrrev_b32 v9, 5, {v(V_LANE)}")
    k.I("v_lshl_add_u32 v8, v9, 5, v8")
    k.I(f"s_lshl_b32 {s(S_T0)}, {s(S_TB)}, 15")
    k.I(f"s_lshl_b32 {s(S_T1)}, {s(S_B32)}, 6")
    k.I(f"s_add_u32 {s(S_T0)}, {s(S_T0)}, {s(S_T1)}")
    k.I(f"v_add_u32 v8, {s(S_T0)}, v8")
    fl = {0: "", 1: " sc1", 2: " nt", 3: " sc0 sc1"}[OPT.get("outst", 0)]
    k.I(f"buffer_store_dwordx4 v[88:91], v8, {srd(S_OUT)}, 0 offen{fl}")
    k.I(f"buffer_store_dwordx4 v[92:95], v8, {srd(S_OUT)}, 0 offen offset:16{fl}")
    k.stamp("out stored")


def finish(k):
    if k.diag == "dbg":
        sk = k.newlabel("fin")
        k.wave_is(0, sk)
        k.I("s_load_dwordx2 s[92:93], s[0:1], 88")
        k.I("s_waitcnt lgkmcnt(0)")
        k.I("s_mov_b32 s94, 256")
        k.I("s_mov_b32 s95, 0x20000")
        k.I("s_mov_b64 exec, 1")
        sel = k.dbg_sel
        for slot, i in enumerate(sel):
            k.I(f"v_mov_b32 v9, {s(S_STAMP+i)}")
            if slot == 0:
                k.I("v_not_b32 v9, v9")
            k.I(f"v_mov_b32 v8, {4*slot}")
            k.I(f"buffer_atomic_umax v9, v8, s[92:95], 0 offen")
        k.label(sk)
    elif k.diag:
        sk = k.newlabel("fin")
        k.wave_is(0, sk)
        k.I(f"s_lshl_b32 {s(S_T0)}, s2, 7")
        k.I(f"s_add_u32 {s(S_T0)}, {s(S_T0)}, {WS_STAMP}")
        k.I(f"v_mov_b32 v8, {s(S_T0)}")
        k.I("s_mov_b64 exec, 1")
        for i in range(k.nstamp):
            k.I(f"v_mov_b32 v9, {s(S_STAMP+i)}")
            k.I(f"buffer_store_dword v9, v8, {srd(S_WS)}, 0 offen offset:{4*i}")
        k.label(sk)
    k.label("L_end")
    k.I("s_endpgm")


def build(diag=False, stop=None):
    k = K(diag, stop)
    phases = [prologue, start_phase, p1_prologue, p1_main, p1_epilogue,
              kv_combine_and_o, p2, p3, p4]
    for ph in phases:
        k.comment(f"======== {ph.__name__} ========")
        ph(k)
        if stop == ph.__name__:
            break
    k.dbg_sel = list(range(min(k.nstamp, 16)))
    if k.nstamp > 16:
        k.dbg_sel = [0, 1, 3, 4, 5, 7, 8, 9, 10, 11, 12, 13, 14, 15, 16, 17][:16]
    finish(k)
    hdr = open("cdna_kernels/" + NAME + ".s.ref").read().split("; Override launch geometry")[0]
    txt = hdr
    txt += f"; @launch grid=(256,1,1) block=(256,1,1) lds={LDS_BYTES}\n"
    txt += '.amdgcn_target "amdgcn-amd-amdhsa--gfx950"\n.text\n'
    txt += f".globl {NAME}_kernel\n.p2align 8\n.type {NAME}_kernel,@function\n{NAME}_kernel:\n"
    txt += k.text()
    txt += f""".section .rodata,"a"
.p2align 6
.amdhsa_kernel {NAME}_kernel
  .amdhsa_next_free_vgpr 512
  .amdhsa_next_free_sgpr 102
  .amdhsa_accum_offset 256
  .amdhsa_group_segment_fixed_size 0
  .amdhsa_kernarg_size 104
  .amdhsa_user_sgpr_count 2
  .amdhsa_user_sgpr_kernarg_segment_ptr 1
  .amdhsa_system_sgpr_workgroup_id_x 1
.end_amdhsa_kernel
"""
    return txt, k


if __name__ == "__main__":
    out = sys.argv[1] if len(sys.argv) > 1 else "k.s"
    for a in sys.argv:
        if a.startswith("--opt="):
            for kv in a[6:].split(","):
                kk, vv = kv.split("=")
                OPT[kk] = int(vv)
    diag = "--diag" in sys.argv
    if "--dbg" in sys.argv:
        diag = "dbg"
    stop = None
    for a in sys.argv:
        if a.startswith("--stop="):
            stop = a.split("=")[1]
    txt, k = build(diag, stop)
    open(out, "w").write(txt)
    if OPT.get("tmo"):
        open(out + ".tmo", "w").write("\n".join(k.tmo_names) + "\n")
    if diag:
        open(out + ".stamps", "w").write("\n".join(k.stamp_names) + "\n")
    print(f"wrote {out}: {len(txt)} bytes, {sum(1 for l in k.out if l.startswith(chr(9)))} instructions, {k.nops} hazard nops")
```

```python
import sys
from asmlib import Asm

NAME = "adaLN_cond__linear_kernel_hedgehog__glu_gated_reglu__prompt"

WS_E = 0
WS_MODG = 0x1000
WS_FKV = 0x4000
WS_FO = 0xC000
WS_FY = 0x14000
WS_FA = 0x1C000
WS_STAMP = 0x30000
WS_WEXT = 0x40000
WS_STATS = 0x80000
WS_MODC = 0x60000
WS_KVP = 0x100000
WS_O = 0x200000
WS_Y = 0x400000
WS_ACT = 0x800000

L_XI = 0
L_WI = 0
L_WM = 131072
L_S = 158720
L_RT = 159744
L_WMN = 114688
L_KVI = 0
L_QI = 65536
L_GP = 148480
L_CT = 139264
L_PHI = 153600
L_ZERO = 154624
L_RED = 0
L_KVF = 149504
L_Z = 151552
L_UB = 145920
L_CS = 162304
L_WO = 0
L_OI = 98304
SLAB = 14592
UOFF = 7296
LDS_BYTES = 163840

S_X, S_WQKV, S_WPHI, S_WO, S_WG, S_WU, S_WD, S_C, S_WMOD, S_OUT, S_WS = 4, 8, 12, 16, 20, 24, 28, 32, 36, 40, 44
S_XCD, S_I, S_M, S_J, S_W, S_TAG, S_MASK = 48, 49, 50, 51, 52, 53, 54
S_T0, S_T1, S_T2, S_T3, S_T4 = 55, 56, 57, 58, 59
S_CLK = 60
S_L2E = 62
S_SPIN = 64
S_OFF = 65
S_VALID = 66
S_EX = 68
S_M2, S_J2 = 70, 71
S_STAMP = 72
S_SEL = 92
S_HP = S_J

LOG2E = 0x3FB8AA3B
SPIN_MAX = 200000


def srd(i):
    return f"s[{i}:{i+3}]"


def v(i, n=1):
    return f"v{i}" if n == 1 else f"v[{i}:{i+n-1}]"


def a_(i, n=1):
    return f"a{i}" if n == 1 else f"a[{i}:{i+n-1}]"


def s(i, n=1):
    return f"s{i}" if n == 1 else f"s[{i}:{i+n-1}]"


V_LANE, V_L16, V_TAG = 1, 2, 3
V_DUMMY = 15
OPT = dict(ny0=14, nb4=7, qstats=0, tloop=0, qloop=2, xunroll=11, codepf=1, touch=1, tw0=1, mall=0, nt_wm=1, tmn_nt=0, kst=16, kwx=18, kwd=22, twdk=20)


import os
STAMPS = os.environ.get('STAMPS', 'start,wmod landed,x in regs,mod arrived,P1 ready,p1 main,kv published,q softmax,kv flags seen,o published,o flags seen,wo gemm,y published,y flags seen,gate/up gemm,act published,act flags seen,out stored').split(',')


class K(Asm):
    def __init__(self, diag=False, stop=None):
        super().__init__()
        self.diag = diag
        self.stop = stop
        self.nstamp = 0

    def stamp(self, name, cyc=False):
        if not self.diag:
            return
        if STAMPS is not None and name not in STAMPS:
            return
        if cyc:
            self.wait_lg_all()
            self.I(f"s_memtime {s(S_CLK, 2)}")
            self.I("s_waitcnt lgkmcnt(0)")
            self.I(f"s_mov_b32 {s(S_STAMP + self.nstamp)}, {s(S_CLK)}")
            self.stamp_names = getattr(self, "stamp_names", []) + [name + " (cyc)"]
            self.nstamp += 1
            return
        self.wait_lg_all()
        self.I(f"s_memrealtime {s(S_CLK, 2)}")
        self.I("s_waitcnt lgkmcnt(0)")
        self.I(f"s_mov_b32 {s(S_STAMP + self.nstamp)}, {s(S_CLK)}")
        self.stamp_names = getattr(self, "stamp_names", []) + [name]
        self.nstamp += 1
        assert self.nstamp <= 18, self.stamp_names

    def wave_is(self, w, label_else):
        self.I(f"s_cmp_eq_u32 {s(S_W)}, {w}")
        self.I(f"s_cbranch_scc0 {label_else}")

    def mfma32(self, d, a, b, c=None):
        c = d if c is None else c
        self.I(f"v_mfma_f32_32x32x16_bf16 {d}, {a}, {b}, {c}")

    def test_delay(self, which):
        if OPT.get("x_delay") != which:
            return
        l = self.newlabel("dly")
        d = self.newlabel("dly_done")
        self.I("s_and_b32 s55, s2, 31")
        self.I("s_cmp_eq_u32 s55, 5")
        self.I(f"s_cbranch_scc0 {d}")
        self.I("s_mov_b32 s55, 200")
        self.label(l)
        self.I("s_sleep 8")
        self.I("s_sub_u32 s55, s55, 1")
        self.I("s_cmp_lg_u32 s55, 0")
        self.I(f"s_cbranch_scc1 {l}")
        self.label(d)

    def spin_init(self):
        self.I(f"s_mov_b32 {s(S_SPIN)}, {SPIN_MAX}")

    def spin_back(self, loop, done):
        self.I(f"s_cbranch_vccz {done}")
        self.I(f"s_sub_u32 {s(S_SPIN)}, {s(S_SPIN)}, 1")
        self.I(f"s_cmp_lg_u32 {s(S_SPIN)}, 0")
        self.I(f"s_cbranch_scc1 {loop}")
        if OPT.get("tmo"):
            self.ntmo = getattr(self, "ntmo", 0) + 1
            self.tmo_names = getattr(self, "tmo_names", []) + [loop]
            self.I(f"s_lshl_b32 {s(S_EX)}, s2, 2")
            self.I(f"s_add_u32 {s(S_EX)}, {s(S_EX)}, {s(S_W)}")
            self.I(f"s_lshl_b32 {s(S_EX)}, {s(S_EX)}, 6")
            self.I(f"s_add_u32 {s(S_EX)}, {s(S_EX)}, {0x70000 + 4*self.ntmo}")
            self.I(f"v_mov_b32 v250, {s(S_EX)}")
            self.I(f"s_mov_b32 {s(S_EX)}, vcc_lo")
            self.I(f"v_mov_b32 v251, {s(S_EX)}")
            self.I(f"buffer_store_dword v251, v250, {srd(S_WS)}, 0 offen sc1")

    def unpack(self, lo, hi, src):
        self.I(f"v_lshlrev_b32 {v(lo)}, 16, {v(src)}")
        self.I(f"v_and_b32 {v(hi)}, {s(S_MASK)}, {v(src)}")

    def half_total(self, r, tmp):
        self.I(f"v_mov_b32 {v(tmp)}, {v(r)}")
        self.I(f"v_permlane32_swap_b32 {v(r)}, {v(tmp)}")
        self.I(f"v_add_f32 {v(r)}, {v(r)}, {v(tmp)}")

    def dma(self, voff, rsrc, soff, sc1=False):
        nt = " nt" if OPT.get("nt_" + str(self._tag)) else ""
        self.I(f"buffer_load_dwordx4 {v(voff)}, {srd(rsrc)}, {soff} offen{' sc1' if sc1 else ''}{nt} lds", tag=self._tag)

    _tag = None

    def touch(self, rsrc, voff, soff, tag="t", dst=None):
        nt = " nt" if OPT.get("nt_t") else ""
        self.I(f"buffer_load_dword {v(V_DUMMY if dst is None else dst)}, {v(voff)}, {srd(rsrc)}, {soff} offen{nt}", tag=tag)

    def poll_flags(self, base_sreg, n, stem, tmp=14):
        done = self.newlabel(stem + "_skip")
        loop = self.newlabel(stem + "_loop")
        ok = self.newlabel(stem + "_ok")
        self.wave_is(0, done)
        self.cond_begin()
        self.I(f"v_min_u32 {v(tmp)}, {n-1}, {v(V_LANE)}")
        self.I(f"v_lshlrev_b32 {v(tmp)}, 7, {v(tmp)}")
        self.I(f"v_add_u32 {v(tmp)}, {s(base_sreg)}, {v(tmp)}")
        self.spin_init()
        if OPT.get("poll2"):
            alt = OPT.get("poll2_reg", 0)
            self.I(f"buffer_load_dword {v(tmp+1)}, {v(tmp)}, {srd(S_WS)}, 0 offen sc1")
            self.label(loop)
            self.I("s_nop 15")
            self.I("s_nop 15")
            self.I(f"buffer_load_dword {v(alt)}, {v(tmp)}, {srd(S_WS)}, 0 offen sc1")
            self.I("s_waitcnt vmcnt(1)")
            self.I(f"v_cmp_ne_u32 vcc, {s(S_TAG)}, {v(tmp+1)}")
            self.I(f"s_cbranch_vccz {ok}")
            self.I(f"buffer_load_dword {v(tmp+1)}, {v(tmp)}, {srd(S_WS)}, 0 offen sc1")
            self.I("s_waitcnt vmcnt(1)")
            self.I(f"v_cmp_ne_u32 vcc, {s(S_TAG)}, {v(alt)}")
            self.spin_back(loop, ok)
            self.label(ok + "_w")
        else:
            self.label(loop)
            self.I(f"buffer_load_dword {v(tmp+1)}, {v(tmp)}, {srd(S_WS)}, 0 offen sc1")
            self.I("s_waitcnt vmcnt(0)")
            self.I(f"v_cmp_ne_u32 vcc, {s(S_TAG)}, {v(tmp+1)}")
            self.spin_back(loop, ok)
        self.label(ok)
        if OPT.get("poll2"):
            self.I("s_waitcnt vmcnt(0)")
        self.cond_end()
        self.label(done)
        self.barrier()

    def signal(self, off_sreg, stem, tmp=14):
        self.barrier()
        done = self.newlabel(stem + "_sig")
        self.wave_is(0, done)
        self.cond_begin()
        self.I(f"v_mov_b32 {v(tmp)}, {s(off_sreg)}")
        self.I(f"s_mov_b64 exec, 1")
        self.I(f"buffer_store_dword {v(V_TAG)}, {v(tmp)}, {srd(S_WS)}, 0 offen sc1")
        self.I(f"s_mov_b64 exec, -1")
        self.cond_end()
        self.label(done)

    def granule_loads(self, regs, addr_regs, width, imm, tag):
        sfx = {2: "dwordx2", 4: "dwordx4"}[width]
        for i, (r, ad) in enumerate(zip(regs, addr_regs)):
            off = imm[i] if imm else 0
            self.I(f"buffer_load_{sfx} {v(r, width)}, {v(ad)}, {srd(S_WS)}, 0 offen offset:{off} sc1", tag=tag)

    def granule_verify(self, regs, addr_regs, stem, width, tagpos, imm, tag):
        loop = self.newlabel(stem + "_loop")
        chk = self.newlabel(stem + "_chk")
        ok = self.newlabel(stem + "_ok")
        self.spin_init()
        if self.cond:
            self.I("s_waitcnt vmcnt(0)")
        else:
            self.wait_vm(tag)
        self.I(f"s_branch {chk}")
        self.label(loop)
        self.cond_begin()
        self.granule_loads(regs, addr_regs, width, imm, None)
        self.I("s_waitcnt vmcnt(0)")
        self.cond_end()
        self.label(chk)
        first = True
        for r in regs:
            for tp in tagpos:
                if first:
                    self.I(f"v_cmp_ne_u32 vcc, {s(S_TAG)}, {v(r+tp)}")
                    first = False
                else:
                    self.I(f"v_cmp_ne_u32 {s(S_EX, 2)}, {s(S_TAG)}, {v(r+tp)}")
                    self.I(f"s_or_b64 vcc, vcc, {s(S_EX, 2)}")
        self.spin_back(loop, ok)
        self.label(ok)

    def load_granules_checked(self, regs, addr_regs, stem, width=2, tagpos=(1,), imm=None):
        self.granule_loads(regs, addr_regs, width, imm, stem)
        self.granule_verify(regs, addr_regs, stem, width, tagpos, imm, stem)


S_CODE = 0


def code_touch(k, wave, dst, t=(8, 9)):
    if not OPT.get("codepf"):
        return
    sk = k.newlabel("cpf")
    k.wave_is(wave, sk)
    k.cond_begin()
    a0, a1 = t
    k.I(f"v_min_u32 {v(a0)}, 11, {v(V_LANE)}")
    k.I(f"v_lshlrev_b32 {v(a0)}, 7, {v(a0)}")
    k.I(f"v_min_u32 {v(a0)}, {s(S_CODN)}, {v(a0)}")
    k.I(f"v_mov_b32 {v(a1)}, {s(S_CODE+1)}")
    k.I(f"v_add_co_u32 {v(a0)}, vcc, {s(S_CODE)}, {v(a0)}")
    k.I(f"v_addc_co_u32 {v(a1)}, vcc, 0, {v(a1)}, vcc")
    k.I(f"global_load_dword {v(dst)}, v[{a0}:{a1}], off")
    k.cond_end()
    k.label(sk)


S_CODN = 101


def prologue(k):
    if k.diag and "entry" in STAMPS:
        k.I("s_memrealtime s[96:97]")
    k.I("s_cmp_ge_u32 s2, 256")
    k.I("s_cbranch_scc1 L_end")
    k.I("s_load_dwordx16 s[64:79], s[0:1], 0")
    k.I("s_load_dwordx8 s[80:87], s[0:1], 64")
    k.I("s_load_dwordx2 s[88:89], s[0:1], 96")
    if OPT.get("codepf"):
        k.I("s_getpc_b64 s[90:91]")
        k.label("L_pc")
        k.I(f"s_mov_b32 {s(S_T1)}, L_end-L_pc")
        k.I(f"s_lshr_b32 {s(S_T1)}, {s(S_T1)}, 7")
        k.I(f"s_sub_u32 {s(S_T1)}, {s(S_T1)}, 1")
        k.I(f"s_lshr_b32 {s(S_T0)}, s2, 3")
        k.I(f"s_mul_i32 {s(S_T0)}, {s(S_T0)}, 12")
        k.I(f"s_min_u32 {s(S_T0)}, {s(S_T0)}, {s(S_T1)}")
        k.I(f"s_sub_u32 {s(S_CODN)}, {s(S_T1)}, {s(S_T0)}")
        k.I(f"s_lshl_b32 {s(S_CODN)}, {s(S_CODN)}, 7")
        k.I(f"s_lshl_b32 {s(S_T0)}, {s(S_T0)}, 7")
        k.I(f"s_add_u32 s90, s90, {s(S_T0)}")
        k.I("s_addc_u32 s91, s91, 0")
        k.I("v_min_u32 v8, 11, v0")
        k.I("v_lshlrev_b32 v8, 7, v8")
        k.I(f"v_min_u32 v8, {s(S_CODN)}, v8")
        k.I("v_mov_b32 v9, s91")
        k.I("v_add_co_u32 v8, vcc, s90, v8")
        k.I("v_addc_co_u32 v9, vcc, 0, v9, vcc")
        k.I("global_load_dword v177, v[8:9], off", tag="cp")
    k.I(f"v_and_b32 {v(V_LANE)}, 63, v0")
    k.I("v_lshrrev_b32 v4, 6, v0")
    k.I(f"v_lshlrev_b32 {v(V_L16)}, 4, {v(V_LANE)}")
    k.I(f"v_readfirstlane_b32 {s(S_W)}, v4")
    k.I(f"s_and_b32 {s(S_XCD)}, s2, 7")
    k.I(f"s_lshr_b32 {s(S_I)}, s2, 3")
    k.I(f"s_lshr_b32 {s(S_T0)}, {s(S_XCD)}, 1")
    k.I(f"s_lshl_b32 {s(S_T0)}, {s(S_T0)}, 2")
    k.I(f"s_lshr_b32 {s(S_T1)}, {s(S_I)}, 3")
    k.I(f"s_add_u32 {s(S_M)}, {s(S_T0)}, {s(S_T1)}")
    k.I(f"s_and_b32 {s(S_T0)}, {s(S_XCD)}, 1")
    k.I(f"s_lshl_b32 {s(S_T0)}, {s(S_T0)}, 3")
    k.I(f"s_and_b32 {s(S_T1)}, {s(S_I)}, 7")
    k.I(f"s_add_u32 {s(S_J)}, {s(S_T0)}, {s(S_T1)}")
    k.I(f"s_mov_b32 {s(S_MASK)}, 0xffff0000")
    k.I(f"s_mov_b32 {s(S_L2E)}, {LOG2E:#x}")
    k.I(f"s_mov_b32 {s(S_L2E+1)}, {LOG2E:#x}")
    k.I("s_waitcnt lgkmcnt(0)")
    if OPT.get("codepf"):
        k.I(f"s_mov_b32 {s(S_CODE)}, s90")
        k.I(f"s_mov_b32 {s(S_CODE+1)}, s91")
    bufs = [(S_X, 64, 2097152), (S_WQKV, 66, 1572864), (S_WPHI, 68, 16384), (S_WO, 70, 524288),
            (S_WG, 74, 1835008), (S_WU, 76, 1835008), (S_WD, 78, 1835008), (S_C, 80, 1024),
            (S_WMOD, 82, 3145728), (S_OUT, 84, 2097152), (S_WS, 88, 268435456)]
    for r, p, n in bufs:
        k.I(f"s_mov_b32 {s(r)}, {s(p)}")
        k.I(f"s_mov_b32 {s(r+1)}, {s(p+1)}")
        k.I(f"s_mov_b32 {s(r+2)}, {n}")
        k.I(f"s_mov_b32 {s(r+3)}, 0x20000")
    if OPT.get("map24"):
        k.I(f"s_mov_b32 {s(S_M2)}, {s(S_M)}")
        k.I(f"s_bfe_u32 {s(S_T0)}, {s(S_I)}, {(1 << 16) | 2}")
        k.I(f"s_lshl_b32 {s(S_J2)}, {s(S_T0)}, 3")
        k.I(f"s_and_b32 {s(S_T0)}, {s(S_XCD)}, 1")
        k.I(f"s_lshl_b32 {s(S_T0)}, {s(S_T0)}, 2")
        k.I(f"s_add_u32 {s(S_J2)}, {s(S_J2)}, {s(S_T0)}")
        k.I(f"s_and_b32 {s(S_T0)}, {s(S_I)}, 3")
        k.I(f"s_add_u32 {s(S_J2)}, {s(S_J2)}, {s(S_T0)}")
    else:
        k.I(f"s_lshr_b32 {s(S_T0)}, {s(S_I)}, 4")
        k.I(f"s_lshl_b32 {s(S_M2)}, {s(S_XCD)}, 1")
        k.I(f"s_add_u32 {s(S_M2)}, {s(S_M2)}, {s(S_T0)}")
        k.I(f"s_and_b32 {s(S_J2)}, {s(S_I)}, 15")
    if k.diag and "entry" in STAMPS:
        k.I(f"s_mov_b32 {s(S_STAMP + k.nstamp)}, s96")
        k.stamp_names = getattr(k, "stamp_names", []) + ["entry"]
        k.nstamp += 1
    k.I("v_mov_b32 v4, 0")
    k.I(f"buffer_load_dword {v(V_TAG)}, v4, {srd(S_WS)}, 0 offen sc1", tag="E")
    k.stamp("start")


S_G = 100
S_GC = 3


def x_rows(k):
    k.I(f"s_lshl_b32 {s(S_T2)}, {s(S_M)}, 17")
    k.I(f"s_and_b32 {s(S_T3)}, {s(S_J)}, 7")
    k.I(f"s_lshl_b32 {s(S_T3)}, {s(S_T3)}, 4")
    k.I(f"s_add_u32 {s(S_T3)}, {s(S_T3)}, {s(S_W)}")
    k.I(f"s_sub_u32 {s(S_T3)}, {s(S_T3)}, 1")
    U = OPT.get("xunroll", 4)
    k.I(f"s_mov_b32 {s(S_T4)}, {44 // U}")
    loop = k.newlabel("xrow")
    k.label(loop)
    for u in range(U):
        k.I(f"s_and_b32 {s(S_T0)}, {s(S_T3)}, 127")
        k.I(f"s_and_b32 {s(S_T1)}, {s(S_T0)}, 15")
        k.I(f"s_lshl_b32 {s(S_T1)}, {s(S_T1)}, 4")
        k.I(f"v_xor_b32 v9, {s(S_T1)}, {v(V_L16)}")
        k.I(f"s_lshl_b32 m0, {s(S_T0)}, 10")
        k.I(f"s_add_u32 {s(S_OFF)}, m0, {s(S_T2)}")
        k.dma(9, S_X, s(S_OFF))
        k.I(f"s_add_u32 {s(S_T3)}, {s(S_T3)}, 3")
    k.I(f"s_sub_u32 {s(S_T4)}, {s(S_T4)}, 1")
    k.I(f"s_cmp_lg_u32 {s(S_T4)}, 0")
    k.I(f"s_cbranch_scc1 {loop}")


def touch_wqkv(k):
    if OPT["touch"]:
        k.I(f"v_lshrrev_b32 v13, 2, {v(V_LANE)}")
        k.I("v_mul_u32_u24 v13, 3072, v13")
        k.I(f"v_and_b32 v14, 3, {v(V_LANE)}")
        k.I("v_lshl_add_u32 v13, v14, 7, v13")
        k.I(f"s_mul_i32 {s(S_OFF)}, {s(S_I)}, {16*3072}")
        k.I(f"s_sub_u32 {s(S_T0)}, {s(S_W)}, 1")
        k.I(f"s_lshl_b32 {s(S_T0)}, {s(S_T0)}, 10")
        k.I(f"s_add_u32 {s(S_OFF)}, {s(S_OFF)}, {s(S_T0)}")
        k.I(f"s_and_b32 {s(S_T0)}, {s(S_XCD)}, 1")
        k.I(f"s_lshl_b32 {s(S_T0)}, {s(S_T0)}, 9")
        k.I(f"s_add_u32 {s(S_OFF)}, {s(S_OFF)}, {s(S_T0)}")
        k.touch(S_WQKV, 13, s(S_OFF), dst=176)


def mod_group(k):
    k.I(f"s_lshr_b32 {s(S_T0)}, {s(S_I)}, 2")
    k.I(f"s_lshl_b32 {s(S_T0)}, {s(S_T0)}, 3")
    k.I(f"s_add_u32 {s(S_T0)}, {s(S_T0)}, {s(S_XCD)}")
    k.I(f"s_lshl_b32 {s(S_T0)}, {s(S_T0)}, 2")
    k.I(f"s_and_b32 {s(S_T1)}, {s(S_I)}, 3")
    k.I(f"s_add_u32 {s(S_G)}, {s(S_T0)}, {s(S_T1)}")


def wm_voff(k, dst, tmp):
    k.I(f"v_lshrrev_b32 {v(dst)}, 1, {v(V_LANE)}")
    k.I(f"v_mul_u32_u24 {v(dst)}, 6144, {v(dst)}")
    k.I(f"v_and_b32 {v(tmp)}, 1, {v(V_LANE)}")
    k.I(f"v_lshlrev_b32 {v(tmp)}, 4, {v(tmp)}")
    k.I(f"s_lshl_b32 {s(S_T0)}, {s(S_G)}, 5")
    k.I(f"v_add3_u32 {v(dst)}, {v(dst)}, {v(tmp)}, {s(S_T0)}")


def gemv16(k, lds_base, nq=16, partial=False, nbuf=112):
    k.I(f"v_lshrrev_b32 v8, 4, {v(V_LANE)}")
    k.I("v_lshlrev_b32 v8, 3, v8")
    k.I(f"v_add_u32 v8, {L_S}, v8")
    if partial:
        k.I(f"s_and_b32 {s(S_T0)}, {s(S_I)}, 3")
        k.I(f"s_lshl_b32 {s(S_T0)}, {s(S_T0)}, 8")
        k.I(f"v_add_u32 v8, {s(S_T0)}, v8")
    k.I(f"v_lshlrev_b32 v10, 3, {v(V_LANE)}")
    k.I(f"v_add_u32 v10, {lds_base}, v10")
    for q in range(nq + 2):
        if q < nq:
            b = nbuf + 8 * (q & 3)
            k.I(f"ds_read_b64_tr_b16 {v(b+4, 2)}, v10 offset:{q*1024}")
            k.I(f"ds_read_b64_tr_b16 {v(b+6, 2)}, v10 offset:{q*1024+512}")
            k.I(f"ds_read_b64 {v(b, 2)}, v8 offset:{q*64}")
            k.I(f"ds_read_b64 {v(b+2, 2)}, v8 offset:{q*64+32}")
        if q >= 2:
            k.I(f"s_waitcnt lgkmcnt({8 if q < nq else (4 if q == nq else 0)})")
            bb = nbuf + 8 * ((q - 2) & 3)
            acc = 144 + 4 * (q & 1)
            c = "0" if q < 4 else v(acc, 4)
            k.I(f"v_mfma_f32_16x16x32_bf16 {v(acc, 4)}, {v(bb, 4)}, {v(bb+4, 4)}, {c}")
    k.test_delay(1 if partial else 2)
    k.I("v_add_f32 v144, v144, v148")
    k.I("v_mov_b32_dpp v145, v144 quad_perm:[1,0,3,2] row_mask:0xf bank_mask:0xf")
    if partial:
        k.I(f"v_mov_b32 v146, {v(V_TAG)}")
        k.I("v_mov_b32 v147, 0")
        k.I(f"v_lshlrev_b32 v8, 3, {v(V_LANE)}")
        k.I(f"s_and_b32 {s(S_T0)}, {s(S_I)}, 3")
        k.I(f"s_lshl_b32 {s(S_T0)}, {s(S_T0)}, 13")
        k.I(f"s_lshl_b32 {s(S_T1)}, {s(S_GC)}, 7")
        k.I(f"s_add_u32 {s(S_T0)}, {s(S_T0)}, {s(S_T1)}")
        k.I(f"s_add_u32 {s(S_T0)}, {s(S_T0)}, {WS_MODC}")
        k.I(f"v_add_u32 v8, {s(S_T0)}, v8")
        k.I("s_mov_b64 exec, 0x5555")
        k.I(f"buffer_store_dwordx4 v[144:147], v8, {srd(S_WS)}, 0 offen sc1")
    else:
        k.I("v_cvt_pk_bf16_f32 v144, v144, v145")
        k.I(f"v_mov_b32 v145, {v(V_TAG)}")
        k.I(f"v_lshlrev_b32 v8, 2, {v(V_LANE)}")
        k.I(f"s_lshl_b32 {s(S_T0)}, {s(S_G)}, 6")
        k.I(f"s_add_u32 {s(S_T0)}, {s(S_T0)}, {WS_MODG}")
        k.I(f"v_add_u32 v8, {s(S_T0)}, v8")
        k.I("s_mov_b64 exec, 0x5555")
        k.I(f"buffer_store_dwordx2 v[144:145], v8, {srd(S_WS)}, 0 offen sc1")
    k.I("s_mov_b64 exec, -1")


def mall_touch(k):
    k.I(f"v_min_u32 v9, 55, {v(V_LANE)}")
    k.I("v_lshlrev_b32 v9, 7, v9")
    k.I(f"s_mul_i32 {s(S_OFF)}, s2, {56*128}")
    for r in (S_WG, S_WU, S_WD):
        k.touch(r, 9, s(S_OFF), dst=176)
    k.I(f"v_and_b32 v9, 15, {v(V_LANE)}")
    k.I("v_lshlrev_b32 v9, 7, v9")
    k.I(f"s_lshl_b32 {s(S_OFF)}, s2, 11")
    k.touch(S_WO, 9, s(S_OFF), dst=176)
    k.I(f"v_lshrrev_b32 v9, 5, {v(V_LANE)}")
    k.I("v_mul_u32_u24 v9, 6144, v9")
    k.I(f"v_and_b32 v10, 31, {v(V_LANE)}")
    k.I("v_lshl_add_u32 v9, v10, 7, v9")
    k.I(f"s_mul_i32 {s(S_OFF)}, s2, {2*6144}")
    k.I(f"s_add_u32 {s(S_OFF)}, {s(S_OFF)}, 2048")
    k.touch(S_WMOD, 9, s(S_OFF), dst=176)


def start_phase(k):
    mod_group(k)
    k.I(f"s_lshr_b32 {s(S_T0)}, {s(S_I)}, 4")
    k.I(f"s_lshl_b32 {s(S_T0)}, {s(S_T0)}, 3")
    k.I(f"s_add_u32 {s(S_T0)}, {s(S_T0)}, {s(S_XCD)}")
    k.I(f"s_lshl_b32 {s(S_T0)}, {s(S_T0)}, 2")
    k.I(f"s_bfe_u32 {s(S_T1)}, {s(S_I)}, {(2 << 16) | 2}")
    k.I(f"s_add_u32 {s(S_GC)}, {s(S_T0)}, {s(S_T1)}")
    k.cond_begin()
    wa, wb = k.newlabel("st_b"), k.newlabel("st_j")
    k.wave_is(0, wa)
    k.I(f"buffer_load_dwordx4 v[24:27], {v(V_L16)}, {srd(S_C)}, 0 offen")
    k.I(f"v_lshrrev_b32 v7, 1, {v(V_LANE)}")
    k.I("v_mul_u32_u24 v7, 6144, v7")
    k.I(f"v_and_b32 v8, 1, {v(V_LANE)}")
    k.I("v_lshlrev_b32 v8, 4, v8")
    k.I(f"s_lshl_b32 {s(S_T0)}, {s(S_GC)}, 5")
    k.I(f"v_add3_u32 v7, v7, v8, {s(S_T0)}")
    k.I(f"s_and_b32 {s(S_OFF)}, {s(S_I)}, 3")
    k.I(f"s_mul_i32 {s(S_OFF)}, {s(S_OFF)}, {128*6144}")
    k.I(f"s_mov_b32 m0, {L_WM}")
    k._tag = "wm"
    for n in range(4):
        k.dma(7, S_WMOD, s(S_OFF))
        if n < 3:
            k.I(f"s_add_u32 m0, m0, 1024")
            k.I(f"s_add_u32 {s(S_OFF)}, {s(S_OFF)}, 196608")
    k._tag = None
    k.I(f"s_branch {wb}")
    k.label(wa)
    k.I(f"s_lshl_b32 {s(S_OFF)}, {s(S_HP)}, 10")
    k.I(f"s_mov_b32 m0, {L_PHI}")
    k.dma(V_L16, S_WPHI, s(S_OFF))
    touch_wqkv(k)
    x_rows(k)
    if OPT.get("tlbpf"):
        k.I(f"v_min_u32 v9, 7, {v(V_LANE)}")
        k.I("v_lshlrev_b32 v9, 21, v9")
        k.I(f"buffer_load_dword v178, v9, {srd(S_WS)}, 0 offen offset:2048")
        k.I(f"buffer_load_dword v178, {v(V_L16)}, {srd(S_OUT)}, 0 offen")
    k.label(wb)
    k.cond_end()
    k.vmq = []


def start_finish(k):
    k.cond_begin()
    wa, wb = k.newlabel("sf_b"), k.newlabel("sf_j")
    k.wave_is(0, wa)
    k.I("s_waitcnt vmcnt(4)")
    k.I(f"v_add_u32 {v(V_TAG)}, 1, {v(V_TAG)}")
    for i in range(4):
        k.unpack(28 + 2 * i, 29 + 2 * i, 24 + i)
    for i in range(8):
        k.I(f"v_mul_f32 {v(36+i)}, {s(S_L2E)}, {v(28+i)}")
    for i in range(8):
        k.I(f"v_exp_f32 {v(36+i)}, -{v(36+i)}")
    for i in range(8):
        k.I(f"v_add_f32 {v(36+i)}, 1.0, {v(36+i)}")
    for i in range(8):
        k.I(f"v_rcp_f32 {v(36+i)}, {v(36+i)}")
    for i in range(8):
        k.I(f"v_mul_f32 {v(28+i)}, {v(28+i)}, {v(36+i)}")
    for i in range(4):
        k.I(f"v_cvt_pk_bf16_f32 {v(24+i)}, {v(28+2*i)}, {v(29+2*i)}")
    k.I(f"v_add_u32 v8, {L_S}, {v(V_L16)}")
    k.I("ds_write_b128 v8, v[24:27]")
    k.I("s_waitcnt vmcnt(0) lgkmcnt(0)")
    gemv16(k, L_WM, nq=4, partial=True)
    if OPT["mall"]:
        mall_touch(k)
    k.I(f"s_branch {wb}")
    k.label(wa)
    k.I("s_waitcnt vmcnt(0)")
    k.I(f"v_add_u32 {v(V_TAG)}, 1, {v(V_TAG)}")
    k.label(wb)
    k.cond_end()
    k.I(f"v_readfirstlane_b32 {s(S_TAG)}, {v(V_TAG)}")
    k.stamp("mod published")
    k.lgq = []
    k.barrier()


def modn_compute(k):
    skip = k.newlabel("mn_c")
    k.I("s_sub_u32 s55, s2, 64")
    k.I("s_cmp_ge_u32 s55, 128")
    k.I(f"s_cbranch_scc1 {skip}")
    k.wave_is(2, skip)
    k.cond_begin()
    gemv16(k, L_WMN)
    k.cond_end()
    k.label(skip)


X0 = 16
AQ, AK, AV = 144, 160, 176
DM = 144
DG = 192
EB = (200, 204)
BEXT = 208
MSK = 212
V_TRK, V_TRV, V_TAB, V_R, V_TRQ = 220, 221, 222, 223, 4


def lane_fields(k, t_r=None, s_=None, r_=None, c_=None, nh=None):
    if s_ is not None:
        k.I(f"v_lshrrev_b32 {v(s_)}, 5, {v(V_LANE)}")
    if nh is not None:
        k.I(f"v_bfe_u32 {v(nh)}, {v(V_LANE)}, 4, 1")
    if r_ is not None:
        k.I(f"v_bfe_u32 {v(r_)}, {v(V_LANE)}, 2, 2")
    if c_ is not None:
        k.I(f"v_and_b32 {v(c_)}, 3, {v(V_LANE)}")


def lbase_bytes(k, dst, nh, c, t0, t1):
    k.I(f"v_and_b32 {v(t0)}, 1, {v(c)}")
    k.I(f"v_lshlrev_b32 {v(t0)}, 5, {v(t0)}")
    k.I(f"v_lshrrev_b32 {v(t1)}, 1, {v(c)}")
    k.I(f"v_lshlrev_b32 {v(t1)}, 3, {v(t1)}")
    k.I(f"v_lshl_add_u32 {v(dst)}, {v(nh)}, 4, {v(t0)}")
    k.I(f"v_add_u32 {v(dst)}, {v(dst)}, {v(t1)}")


MODA_REGS = [144 + 4 * i for i in range(8)]
MODA_ADDR = [202, 203, 204, 205, 206, 207, 241, 242]


def p1_prologue(k):
    k.I("v_mov_b32 v8, 0")
    k.I(f"v_lshlrev_b32 v9, 2, {v(V_LANE)}")
    k.I(f"v_and_b32 v9, 60, v9")
    k.I(f"v_add_u32 v9, {L_ZERO}, v9")
    k.I("ds_write_b32 v9, v8")
    p1_static(k)
    k.I(f"v_and_b32 v8, 31, {v(V_LANE)}")
    k.I(f"s_lshl_b32 {s(S_T0)}, {s(S_W)}, 5")
    k.I(f"v_add_u32 v9, {s(S_T0)}, v8")
    k.I("v_lshlrev_b32 v9, 10, v9")
    k.I("v_and_b32 v8, 15, v8")
    k.I(f"v_lshrrev_b32 v10, 5, {v(V_LANE)}")
    for q in range(8):
        k.I(f"v_add_u32 v11, {2*q}, v10")
        k.I("v_xor_b32 v11, v11, v8")
        k.I(f"v_lshl_add_u32 {v(192+q)}, v11, 4, v9")
    k.I(f"v_lshrrev_b32 v8, 3, {v(V_LANE)}")
    k.I("v_mul_u32_u24 v8, 3072, v8")
    k.I(f"v_and_b32 v9, 7, {v(V_LANE)}")
    k.I(f"v_bfe_u32 v10, {v(V_LANE)}, 4, 1")
    k.I("v_lshlrev_b32 v10, 2, v10")
    k.I("v_xor_b32 v9, v9, v10")
    k.I("v_lshrrev_b32 v10, 2, v9")
    k.I("v_lshlrev_b32 v10, 10, v10")
    k.I("v_and_b32 v9, 3, v9")
    k.I("v_lshl_add_u32 v10, v9, 4, v10")
    k.I(f"s_lshl_b32 {s(S_T0)}, {s(S_HP)}, 6")
    k.I(f"s_add_u32 {s(S_T1)}, {s(S_T0)}, 1024")
    k.I(f"v_add3_u32 v200, v8, v10, {s(S_T1)}")
    k.I(f"v_lshrrev_b32 v8, 2, {v(V_LANE)}")
    k.I("v_mul_u32_u24 v8, 3072, v8")
    k.I(f"v_and_b32 v9, 3, {v(V_LANE)}")
    k.I("v_lshl_add_u32 v8, v9, 4, v8")
    k.I(f"v_add_u32 v6, {s(S_T0)}, v8")
    k.I("v_lshlrev_b32 v202, 4, v0")
    k.I(f"v_add_u32 v202, {WS_MODC}, v202")
    k.I(f"v_add_u32 v203, 8192, v202")
    k.I(f"v_add_u32 v204, 16384, v202")
    k.I(f"v_add_u32 v205, 24576, v202")
    k.I(f"v_add_u32 v206, 4096, v202")
    k.I(f"v_add_u32 v207, 4096, v203")
    k.I(f"v_add_u32 v241, 4096, v204")
    k.I(f"v_add_u32 v242, 4096, v205")
    start_finish(k)
    k.I("v_mov_b32 v8, 0x3f803f80")
    for r in range(10, 14):
        k.I(f"v_mov_b32 {v(r)}, 0")
    dots = []
    for i in range(128):
        dots.append(f"v_dot2c_f32_bf16 {v(10 + (i & 1))}, {v(X0+i)}, v8")
        dots.append(f"v_dot2c_f32_bf16 {v(12 + (i & 1))}, {v(X0+i)}, {v(X0+i)}")
    LAG = 6
    NEARLY = OPT.get("dots_early", 20)
    for j in range(32):
        k.I(f"ds_read_b128 {v(X0+4*j, 4)}, {v(192+(j&7))} offset:{L_XI + (j>>3)*256}", tag=f"xf{j}")
        q = j - LAG
        if 0 <= q < NEARLY:
            k.wait_lg(f"xf{q}")
            for _ in range(8):
                k.I(dots.pop(0))
        elif j % 8 == 7 and j < 31:
            k.I("s_waitcnt lgkmcnt(8)")
    k.wait_lg_all()
    k.barrier()
    k.stamp("x in regs")
    k.I(f"s_mul_i32 {s(S_T2)}, {s(S_W)}, {128*3072}")
    k.I(f"s_lshl_b32 {s(S_T3)}, {s(S_W)}, 14")
    if L_KVI:
        k.I(f"s_add_u32 {s(S_T3)}, {s(S_T3)}, {L_KVI}")

    def some_dots(n):
        for _ in range(min(n, len(dots))):
            k.I(dots.pop(0))

    k._tag = "w"
    for n in range(16):
        k.I(f"s_add_u32 {s(S_OFF)}, {s(S_T2)}, {n*8*3072}")
        k.I(f"s_add_u32 m0, {s(S_T3)}, {n*1024}")
        k.dma(200, S_WQKV, s(S_OFF))
        some_dots(4)
    k._tag = None
    for r, ad in zip(MODA_REGS, MODA_ADDR):
        k.granule_loads([r], [ad], 4, None, "modA")
        some_dots(3)
    if OPT.get("qstats"):
        for it in q_image_items(k):
            for t, tg in it:
                k.I(t, tag=tg)
            some_dots(2)
    k.side_items = p1_side(k, regs=(243, 244, 245, 246))
    if not OPT.get("tloop") and not OPT.get("qloop"):
        for it in k.side_items:
            for t, tg in it:
                k.I(t, tag=tg)
            some_dots(3)
        k.side_items = []
    for t in dots:
        k.I(t)
    k.I("v_add_f32 v10, v10, v11")
    k.I("v_add_f32 v12, v12, v13")
    k.half_total(10, 11)
    k.half_total(12, 13)
    k.I("v_mul_f32 v10, 0x3b000000, v10")
    k.I("v_mul_f32 v12, 0x3b000000, v12")
    k.I("v_fma_f32 v12, -v10, v10, v12")
    k.I("v_max_f32 v12, 0, v12")
    k.I("v_add_f32 v12, 0x3727c5ac, v12")
    k.I(f"v_rsq_f32 {v(V_R)}, v12")
    k.I("v_sub_f32 v10, 0, v10")
    k.I(f"v_mul_f32 v11, v12, {v(V_R)}")
    k.I("v_cvt_pk_bf16_f32 v12, v10, v11")
    k.unpack(8, 9, 12)
    k.I("v_sub_f32 v8, v10, v8")
    k.I("v_sub_f32 v9, v11, v9")
    k.I("v_cvt_pk_bf16_f32 v13, v8, v9")
    k.I(f"s_mov_b32 {s(S_T0)}, 0x01000100")
    k.I(f"s_mov_b32 {s(S_T1)}, 0x03020302")
    k.I(f"v_perm_b32 {v(BEXT)}, v12, v12, {s(S_T0)}")
    k.I(f"v_perm_b32 {v(BEXT+1)}, v13, v13, {s(S_T0)}")
    k.I(f"v_perm_b32 {v(BEXT+2)}, v12, v12, {s(S_T1)}")
    k.I(f"v_perm_b32 {v(BEXT+3)}, v13, v13, {s(S_T1)}")
    k.I(f"v_cmp_gt_u32 vcc, 32, {v(V_LANE)}")
    for i in range(4):
        k.I(f"v_cndmask_b32 {v(BEXT+i)}, 0, {v(BEXT+i)}, vcc")
    k.stamp("stats")
    p1_rv(k)
    k.granule_verify(MODA_REGS, MODA_ADDR, "modA", 4, (2,), None, "modA")
    k.stamp("mod arrived")
    for base in (144, 160):
        k.I(f"v_pk_add_f32 {v(base,2)}, {v(base,2)}, {v(base+4,2)}")
        k.I(f"v_pk_add_f32 {v(base+8,2)}, {v(base+8,2)}, {v(base+12,2)}")
        k.I(f"v_pk_add_f32 {v(base,2)}, {v(base,2)}, {v(base+8,2)}")
    k.I("v_cvt_pk_bf16_f32 v204, v144, v145")
    k.I("v_cvt_pk_bf16_f32 v206, v160, v161")
    k.unpack(192, 193, 206)
    k.I("v_add_f32 v192, 1.0, v192")
    k.I("v_add_f32 v193, 1.0, v193")
    k.I("v_cvt_pk_bf16_f32 v12, v192, v193")
    k.I("v_and_b32 v192, 0xffff, v12")
    k.I("v_and_b32 v194, 0xffff, v204")
    k.I(f"v_and_b32 v196, {s(S_MASK)}, v12")
    k.I(f"v_and_b32 v198, {s(S_MASK)}, v204")
    for r in (192, 194, 196, 198):
        k.I(f"v_mov_b32 {v(r+1)}, {v(r)}")
    k.I("v_lshlrev_b32 v8, 5, v0")
    k.I(f"v_add_u32 v8, {L_CT}, v8")
    k.I("ds_write_b128 v8, v[192:195]")
    k.I("ds_write_b128 v8, v[196:199] offset:16")
    k.vmq = [t for t in k.vmq if t in ("wq", "t")]
    k.wait_lg_all()
    k.barrier()
    k.stamp("P1 ready")
    k.stamp("c0", cyc=True) if STAMPS and "c0" in STAMPS else None


def p1_static(k):
    k.I(f"v_bfe_u32 v8, {v(V_LANE)}, 1, 2")
    k.I(f"v_bfe_u32 v9, {v(V_LANE)}, 4, 1")
    k.I("v_lshl_add_u32 v8, v9, 2, v8")
    k.I(f"v_bfe_u32 v9, {v(V_LANE)}, 3, 1")
    k.I(f"v_lshrrev_b32 v10, 5, {v(V_LANE)}")
    k.I("v_xor_b32 v9, v9, v10")
    k.I("v_lshl_add_u32 v8, v9, 3, v8")
    for i in range(8):
        k.I(f"v_cmp_eq_u32 vcc, {i}, v8")
        k.I(f"v_cndmask_b32 {v(MSK+i)}, 0, -1, vcc")
    lane_fields(k, s_=8, r_=9, c_=10, nh=11)
    lbase_bytes(k, 12, 11, 10, 13, 14)
    k.I("v_lshl_add_u32 v8, v8, 2, v9")
    k.I("v_lshlrev_b32 v13, 7, v8")
    k.I("v_lshrrev_b32 v9, 1, v9")
    k.I("v_lshl_add_u32 v13, v9, 6, v13")
    k.I(f"v_add_u32 {v(V_TRK)}, v13, v12")
    k.I(f"v_xor_b32 {v(V_TRV)}, 64, {v(V_TRK)}")
    k.I("v_lshlrev_b32 v13, 6, v8")
    k.I("v_add_u32 v13, v13, v12")
    k.I(f"v_add_u32 {v(V_TRQ)}, {L_QI}, v13")
    k.I(f"v_and_b32 v8, 31, {v(V_LANE)}")
    k.I("v_lshlrev_b32 v8, 4, v8")
    k.I(f"v_add_u32 {v(V_TAB)}, {L_CT}, v8")
    p1_sel(k)


def p1_w(j, p):
    if p == 0:
        return V_TRQ, j * 1024, 512
    return (V_TRK if p == 1 else V_TRV), L_KVI + j * 2048, 1024


def p1_main(k):
    def rd_e(B):
        return [(f"ds_read_b128 {v(EB[B & 1], 4)}, {v(V_TAB)} offset:{B*512}", f"e{B}")]

    def rd_w(B):
        out = []
        for a in range(2):
            for pi, p in enumerate((1, 2)):
                base, off, st = p1_w(2 * B + a, p)
                for rd in range(2):
                    out.append((f"ds_read_b64_tr_b16 {a_(16*(B&1) + 8*a + 4*pi + 2*rd, 2)}, {v(base)} offset:{off + rd*st}", f"w{B}_{a}{pi}"))
        return out

    def diag(B):
        return [f"v_and_b32 {v(DG+i)}, {v(EB[B & 1])}, {v(MSK+i)}" for i in range(8)]

    def pack(B):
        return [f"v_cvt_pk_bf16_f32 {v(X0 + 8*B + i)}, {v(DM + 2*i)}, {v(DM + 2*i + 1)}" for i in range(8)]

    def mod_mfma(B, i):
        if i < 2:
            k.mfma32(v(DM, 16), v(DG + 4 * i, 4), v(X0 + 8 * B + 4 * i, 4), "0" if i == 0 else None)
        else:
            k.mfma32(v(DM, 16), v(EB[B & 1], 4), v(BEXT, 4))

    def emit(items):
        for it in items:
            if isinstance(it, tuple):
                k.I(it[0], tag=it[1])
            else:
                k.I(it)

    side = k.side_items
    if OPT.get("qloop"):
        side = q_image_items(k) + side
    emit(rd_e(0) + rd_e(1) + rd_w(0))
    k.wait_lg("e0")
    emit(diag(0))
    for i in range(3):
        mod_mfma(0, i)
    k.wait_lg("e1")
    emit(diag(1))
    emit(pack(0))
    for B in range(16):
        nxt = B + 1 < 16
        w = rd_w(B + 1) if nxt else []
        e = rd_e(B + 2) if B + 2 < 16 else []
        dg = diag(B + 2) if B + 2 < 16 else []
        pk = pack(B + 1) if nxt else []

        def g(a, pi):
            k.wait_lg(f"w{B}_{a}{pi}")
            wf = a_(16 * (B & 1) + 8 * a + 4 * pi, 4)
            h = v(X0 + 8 * B + 4 * a, 4)
            c0 = "0" if (B == 0 and a == 0) else None
            if pi == 0:
                k.mfma32(v(AK, 16), wf, h, c0)
            else:
                k.mfma32(v(AV, 16), h, wf, c0)

        cut = (1, 4, 7) if OPT.get("p1ord", 1) else (2, 4, 6)
        if nxt:
            mod_mfma(B + 1, 0)
        emit(e + w[0:cut[0]])
        if nxt:
            mod_mfma(B + 1, 1)
        emit(w[cut[0]:cut[1]])
        if nxt:
            mod_mfma(B + 1, 2)
        emit(w[cut[1]:cut[2]])
        g(0, 0)
        emit(w[cut[2]:8])
        if dg:
            k.wait_lg(f"e{B+2}")
        emit(dg[0:3])
        g(0, 1)
        emit(dg[3:8])
        g(1, 0)
        emit(pk[0:4])
        g(1, 1)
        emit(pk[4:8])
        for _ in range(2 if (OPT.get("qloop") == 2 and B < 4) else 1):
            if side:
                emit(side.pop(0))
    assert not side
    k.stamp("p1 main")
    k.stamp("c1", cyc=True) if STAMPS and "c1" in STAMPS else None


def p1_q(k):
    def rd(j):
        base, off, st = p1_w(j, 0)
        return [(f"ds_read_b64_tr_b16 {a_(4*(j % 6) + 2*rd, 2)}, {v(base)} offset:{off + rd*st}", f"q{j}") for rd in range(2)]
    for j in range(32 + 4):
        if j < 32:
            for t, tg in rd(j):
                k.I(t, tag=tg)
        q = j - 4
        if q >= 0:
            k.wait_lg(f"q{q}")
            k.mfma32(v(AQ, 16), a_(4 * (q % 6), 4), v(X0 + 4 * q, 4), "0" if q == 0 else None)


def softmax16(k, P, E, outp, outn, t, filler=None, every=4):
    mx, mn = t, t + 2
    k.I(f"v_max3_f32 {v(mx)}, {v(P)}, {v(P+1)}, {v(P+2)}")
    k.I(f"v_min3_f32 {v(mn)}, {v(P)}, {v(P+1)}, {v(P+2)}")
    for i in range(3, 15, 2):
        k.I(f"v_max3_f32 {v(mx)}, {v(mx)}, {v(P+i)}, {v(P+i+1)}")
        k.I(f"v_min3_f32 {v(mn)}, {v(mn)}, {v(P+i)}, {v(P+i+1)}")
    k.I(f"v_max_f32 {v(mx)}, {v(mx)}, {v(P+15)}")
    k.I(f"v_min_f32 {v(mn)}, {v(mn)}, {v(P+15)}")
    k.I(f"v_mul_f32 {v(mx)}, {s(S_L2E)}, {v(mx)}")
    k.I(f"v_mul_f32 {v(mn)}, {s(S_L2E)}, {v(mn)}")
    for sign, m, out in ((+1, mx, outp), (-1, mn, outn)):
        for i in range(0, 16, 2):
            if sign > 0:
                k.I(f"v_pk_fma_f32 {v(E+i,2)}, {v(P+i,2)}, {s(S_L2E,2)}, {v(m,2)} op_sel_hi:[1,1,0] neg_lo:[0,0,1] neg_hi:[0,0,1]")
            else:
                k.I(f"v_pk_fma_f32 {v(E+i,2)}, {v(P+i,2)}, {s(S_L2E,2)}, {v(m,2)} op_sel_hi:[1,1,0] neg_lo:[1,0,0] neg_hi:[1,0,0]")
        for i in range(16):
            k.I(f"v_exp_f32 {v(E+i)}, {v(E+i)}")
            if filler and i % every == every - 1:
                for tt, tg in filler.pop(0):
                    k.I(tt, tag=tg)
        sm = t + 4
        k.I(f"v_pk_add_f32 {v(sm,2)}, {v(E,2)}, {v(E+2,2)}")
        for i in range(4, 16, 2):
            k.I(f"v_pk_add_f32 {v(sm,2)}, {v(sm,2)}, {v(E+i,2)}")
        k.I(f"v_add_f32 {v(sm)}, {v(sm)}, {v(sm+1)}")
        k.I(f"v_rcp_f32 {v(sm)}, {v(sm)}")
        for i in range(0, 16, 2):
            k.I(f"v_pk_mul_f32 {v(E+i,2)}, {v(E+i,2)}, {v(sm,2)} op_sel_hi:[1,0]")
        for i in range(8):
            k.I(f"v_cvt_pk_bf16_f32 {v(out+i)}, {v(E+2*i)}, {v(E+2*i+1)}")


PHI_A, PHI_B = 224, 228
SEL0, SEL1, SELN0, SELN1 = 232, 236, 240, 244
RV = 224
PK, VP = 144, 152
PP = 160
EE = 192
TMP = 208
FP, FN = 224, 232
TP, TN = 176, 160
KVA, KVB = 192, 240
QP, QN = 96, 104


def p1_sel(k):
    k.I(f"v_bfe_u32 v8, {v(V_LANE)}, 3, 1")
    k.I(f"v_and_b32 v9, 3, {v(V_LANE)}")
    k.I("v_lshl_add_u32 v8, v8, 2, v9")
    k.I("v_and_b32 v9, 1, v8")
    k.I("v_lshlrev_b32 v9, 4, v9")
    k.I("v_mov_b32 v10, 0x3f80")
    k.I("v_lshlrev_b32 v9, v9, v10")
    k.I("v_lshrrev_b32 v8, 1, v8")
    k.I(f"v_bfe_u32 v10, {v(V_LANE)}, 4, 1")
    k.I(f"v_bfe_u32 v11, {v(V_LANE)}, 2, 1")
    k.I(f"v_lshrrev_b32 v12, 5, {v(V_LANE)}")
    k.I("v_xor_b32 v11, v11, v12")
    k.I(f"v_cmp_eq_u32 {s(S_VALID,2)}, 0, v11")
    k.I("v_lshl_add_u32 v13, v10, 2, v8")
    k.I("v_lshl_add_u32 v13, v11, 3, v13")
    for neg, base in ((0, SEL0), (1, SELN0)):
        for a in range(2):
            for d in range(4):
                k.I(f"v_cmp_eq_u32 vcc, {8*neg + 4*a + d}, v13")
                k.I(f"v_cndmask_b32 v14, 0, v9, vcc")
                k.I(f"v_accvgpr_write_b32 {a_(base + 4*a + d)}, v14")


def p1_rv(k):
    k.wait_vm("phi")
    lane_fields(k, s_=8, r_=9, c_=10, nh=11)
    k.I("v_lshlrev_b32 v12, 9, v8")
    k.I("v_lshl_add_u32 v12, v9, 5, v12")
    k.I("v_lshlrev_b32 v13, 1, v11")
    k.I("v_lshrrev_b32 v14, 1, v10")
    k.I("v_add_u32 v13, v13, v14")
    k.I("v_lshl_add_u32 v12, v13, 3, v12")
    k.I(f"v_add_u32 v12, {L_PHI}, v12")
    k.I("v_and_b32 v13, 1, v10")
    k.I("v_cmp_eq_u32 vcc, v13, v8")
    for a in range(2):
        for rd in range(2):
            k.I(f"v_add_u32 v14, {(8*a+4*rd)*32}, v12")
            k.I(f"v_mov_b32 v15, {L_ZERO}")
            k.I("v_cndmask_b32 v14, v15, v14, vcc")
            k.I(f"ds_read_b64_tr_b16 {a_(PHI_A + 4*a + 2*rd, 2)}, v14", tag="phif")
    k.I(f"v_and_b32 v8, 31, {v(V_LANE)}")
    k.I("v_lshlrev_b32 v8, 2, v8")
    k.I(f"s_lshl_b32 {s(S_T0)}, {s(S_W)}, 7")
    k.I(f"s_add_u32 {s(S_T0)}, {s(S_T0)}, {L_RT}")
    k.I(f"v_add_u32 v8, {s(S_T0)}, v8")
    k.I(f"ds_write_b32 v8, {v(V_R)}", tag="rw")
    k.I(f"v_lshrrev_b32 v9, 5, {v(V_LANE)}")
    k.I("v_lshlrev_b32 v9, 4, v9")
    k.I(f"v_add_u32 v9, {s(S_T0)}, v9")
    k.wait_lg("rw")
    for q in range(4):
        k.I(f"ds_read_b128 {v(RV+4*q,4)}, v9 offset:{32*q}", tag="rv")
    k.wait_lg_all()


def p1_epilogue(k):
    k.barrier()
    for i in range(16):
        k.I(f"v_mul_f32 {v(AK+i)}, {v(V_R)}, {v(AK+i)}")
    for i in range(8):
        k.I(f"v_cvt_pk_bf16_f32 {v(PK+i)}, {v(AK+2*i)}, {v(AK+2*i+1)}")
    k.mfma32(v(PP, 16), a_(PHI_A, 4), v(PK, 4), "0")
    k.mfma32(v(PP, 16), a_(PHI_B, 4), v(PK + 4, 4))
    for i in range(16):
        k.I(f"v_mul_f32 {v(AV+i)}, {v(RV+i)}, {v(AV+i)}")
    for i in range(8):
        k.I(f"v_cvt_pk_bf16_f32 {v(VP+i)}, {v(AV+2*i)}, {v(AV+2*i+1)}")
    k.stamp("k proj")
    softmax16(k, PP, EE, FP, FN, TMP, filler=None if (OPT.get("qloop") or OPT.get("qstats")) else q_image_items(k))
    k.stamp("k softmax")
    k.mfma32(v(TP, 16), v(FP, 4), a_(SEL0, 4), "0")
    k.mfma32(v(TN, 16), v(FN, 4), a_(SELN0, 4), "0")
    k.mfma32(v(TP, 16), v(FP + 4, 4), a_(SEL1, 4))
    k.mfma32(v(TN, 16), v(FN + 4, 4), a_(SELN1, 4))
    for src, pk, z in ((TP, FP, TMP), (TN, FN, TMP + 2)):
        for i in range(8):
            k.I(f"v_cvt_pk_bf16_f32 {v(pk+i)}, {v(src+2*i)}, {v(src+2*i+1)}")
        if src == TP:
            k.mfma32(v(KVA, 16), v(FP, 4), v(VP, 4), "0")
            k.mfma32(v(KVA, 16), v(FP + 4, 4), v(VP + 4, 4))
        else:
            k.mfma32(v(KVB, 16), v(FN, 4), v(VP, 4), "0")
            k.mfma32(v(KVB, 16), v(FN + 4, 4), v(VP + 4, 4))
    for src, z in ((TP, TMP), (TN, TMP + 2)):
        k.I(f"v_add_f32 {v(z)}, {v(src)}, {v(src+1)}")
        k.I(f"v_add_f32 {v(z+1)}, {v(src+2)}, {v(src+3)}")
        for i in range(4, 16, 2):
            k.I(f"v_add_f32 {v(z)}, {v(z)}, {v(src+i)}")
            k.I(f"v_add_f32 {v(z+1)}, {v(z+1)}, {v(src+i+1)}")
    k.I(f"v_add_f32 {v(TMP+4)}, {v(TMP)}, {v(TMP+1)}")
    k.I(f"v_add_f32 {v(TMP+5)}, {v(TMP+2)}, {v(TMP+3)}")
    for i in range(16):
        k.I(f"v_cndmask_b32 {v(KVA+i)}, {v(KVB+i)}, {v(KVA+i)}, {s(S_VALID,2)}")
    k.stamp("kv mfma")
    k.I(f"s_mul_i32 {s(S_T0)}, {s(S_W)}, 4608")
    k.I(f"s_add_u32 {s(S_T0)}, {s(S_T0)}, {L_RED}")
    k.I(f"v_add_u32 v8, {s(S_T0)}, {v(V_L16)}")
    for q in range(4):
        k.I(f"ds_write_b128 v8, {v(KVA+4*q,4)} offset:{q*1024}")
    k.I(f"v_lshlrev_b32 v9, 3, {v(V_LANE)}")
    k.I(f"v_add_u32 v9, {s(S_T0)}, v9")
    k.I(f"ds_write_b64 v9, {v(TMP+4,2)} offset:4096")
    k.wait_lg_all()
    k.barrier()
    k.stamp("red barrier")
    k.I(f"s_lshl_b32 {s(S_T0)}, {s(S_W)}, 10")
    k.I(f"s_add_u32 {s(S_T0)}, {s(S_T0)}, {L_RED}")
    k.I(f"v_add_u32 v8, {s(S_T0)}, {v(V_L16)}")
    for ww in range(4):
        k.I(f"ds_read_b128 {v(KVA+4*ww,4)}, v8 offset:{ww*4608}")
    k.I(f"v_lshlrev_b32 v9, 3, {v(V_LANE)}")
    k.I(f"v_add_u32 v9, {L_RED + 4096}, v9")
    for ww in range(4):
        k.I(f"ds_read_b64 {v(KVB+2*ww,2)}, v9 offset:{ww*4608}")
    k.wait_lg_all()
    for h in (0, 2):
        k.I(f"v_pk_add_f32 {v(KVA+h,2)}, {v(KVA+h,2)}, {v(KVA+4+h,2)}")
        k.I(f"v_pk_add_f32 {v(KVA+8+h,2)}, {v(KVA+8+h,2)}, {v(KVA+12+h,2)}")
        k.I(f"v_pk_add_f32 {v(KVA+h,2)}, {v(KVA+h,2)}, {v(KVA+8+h,2)}")
    k.I(f"v_cvt_pk_bf16_f32 {v(KVA)}, {v(KVA)}, {v(KVA+1)}")
    k.I(f"v_cvt_pk_bf16_f32 {v(KVA+1)}, {v(KVA+2)}, {v(KVA+3)}")
    k.I(f"v_pk_add_f32 {v(KVB,2)}, {v(KVB,2)}, {v(KVB+2,2)}")
    k.I(f"v_pk_add_f32 {v(KVB+4,2)}, {v(KVB+4,2)}, {v(KVB+6,2)}")
    k.I(f"v_pk_add_f32 {v(KVB,2)}, {v(KVB,2)}, {v(KVB+4,2)}")
    k.I(f"v_cvt_pk_bf16_f32 {v(KVB)}, {v(KVB)}, {v(KVB+1)}")
    k.test_delay(3)
    k.I(f"v_mov_b32 {v(KVA+2)}, {v(KVB)}")
    k.I(f"v_mov_b32 {v(KVA+3)}, {v(V_TAG)}")
    k.I(f"s_lshl_b32 {s(S_T0)}, {s(S_HP)}, 4")
    k.I(f"s_add_u32 {s(S_T0)}, {s(S_T0)}, {s(S_M)}")
    k.I(f"s_lshl_b32 {s(S_T1)}, {s(S_T0)}, 12")
    k.I(f"s_lshl_b32 {s(S_T2)}, {s(S_W)}, 10")
    k.I(f"s_add_u32 {s(S_T1)}, {s(S_T1)}, {s(S_T2)}")
    k.I(f"s_add_u32 {s(S_T1)}, {s(S_T1)}, {WS_KVP}")
    k.I(f"buffer_store_dwordx4 {v(KVA,4)}, {v(V_L16)}, {srd(S_WS)}, {s(S_T1)} offen sc1", tag="kvst")
    k.wait_vm("wq")
    k.barrier()
    k.stamp("kv published")
    modn_issue(k)
    p1_q(k)
    k.stamp("q gemm")
    kv_addr(k)
    kv_loads(k, "kvp")
    for i in range(16):
        k.I(f"v_mul_f32 {v(AQ+i)}, {v(V_R)}, {v(AQ+i)}")
    for i in range(8):
        k.I(f"v_cvt_pk_bf16_f32 {v(160+i)}, {v(AQ+2*i)}, {v(AQ+2*i+1)}")
    k.mfma32(v(176, 16), a_(PHI_A, 4), v(160, 4), "0")
    k.mfma32(v(176, 16), a_(PHI_B, 4), v(164, 4))
    quad_ids(k)
    softmax16(k, 176, EE, QP, QN, TMP, filler=None if OPT.get("wo_kv", 1) else wo_items(k), every=2)
    k.stamp("q softmax")


S_UB = 101


S_UBO, S_MNO = 90, 91


def p1_side(k, regs):
    ra, rb, rc, rt = regs
    touch_setup(k, ra, rb, rc, rt)
    k.I(f"v_and_b32 {v(rc)}, 31, {v(V_LANE)}")
    k.I(f"v_mul_u32_u24 {v(rc)}, 6144, {v(rc)}")
    k.I(f"s_lshr_b32 {s(S_T0)}, {s(S_G)}, 2")
    k.I(f"s_lshl_b32 {s(S_T0)}, {s(S_T0)}, 7")
    k.I(f"s_and_b32 {s(S_T1)}, {s(S_G)}, 3")
    k.I(f"s_lshl_b32 {s(S_T1)}, {s(S_T1)}, 2")
    k.I(f"s_add_u32 {s(S_T1)}, {s(S_T1)}, {s(S_W)}")
    k.I(f"s_mul_i32 {s(S_T1)}, {s(S_T1)}, {32*6144}")
    k.I(f"s_add_u32 {s(S_MNO)}, {s(S_T0)}, {s(S_T1)}")
    k.I("s_sub_u32 s55, s2, 64")
    k.I("s_cmp_ge_u32 s55, 128")
    k.I(f"s_cselect_b32 {s(S_MNO)}, 0x7ff00000, {s(S_MNO)}")
    items = []
    if OPT["touch"]:
        if OPT.get("tmn", 1):
            items.append([(f"buffer_load_dword v5, {v(rc)}, {srd(S_WMOD)}, {s(S_MNO)} offen{' nt' if OPT.get('tmn_nt', 1) else ''}", "t")])
        if OPT.get("map24"):
            items.append([(f"s_lshl_b32 {s(S_T0)}, {s(S_I)}, 2", None), (f"s_add_u32 {s(S_T0)}, {s(S_T0)}, {s(S_W)}", None),
                          (f"s_and_b32 {s(S_T1)}, {s(S_XCD)}, 1", None), (f"s_lshl_b32 {s(S_T1)}, {s(S_T1)}, 9", None),
                          (f"v_min_u32 {v(rt)}, 55, {v(V_LANE)}", None), (f"v_lshrrev_b32 {v(ra)}, 2, {v(rt)}", None),
                          (f"v_lshlrev_b32 {v(ra)}, 10, {v(ra)}", None), (f"v_and_b32 {v(rt)}, 3, {v(rt)}", None),
                          (f"v_lshl_add_u32 {v(ra)}, {v(rt)}, 7, {v(ra)}", None), (f"v_add_u32 {v(ra)}, {s(S_T1)}, {v(ra)}", None),
                          (f"s_mul_i32 {s(S_T1)}, {s(S_T0)}, {14*1024}", None),
                          (f"buffer_load_dword v5, {v(ra)}, {srd(S_WD)}, {s(S_T1)} offen", "t"),
                          (f"v_and_b32 {v(ra)}, 0xfff, {v(ra)}", None), (f"s_lshl_b32 {s(S_T1)}, {s(S_T0)}, 12", None),
                          (f"buffer_load_dword v5, {v(ra)}, {srd(S_WO)}, {s(S_T1)} offen", "t")])
            for r in (S_WG, S_WU):
                items.append([(f"buffer_load_dword v5, {v(rb)}, {srd(r)}, 0 offen", "t")])
        else:
            for r, a in ((S_WO, ra), (S_WG, rb), (S_WU, rb)):
                items.append([(f"buffer_load_dword v5, {v(a)}, {srd(r)}, 0 offen", "t")])
        if OPT.get("twd", 0):
            items.append([(f"s_lshl_b32 {s(S_T0)}, s2, 2", None), (f"s_add_u32 {s(S_T0)}, {s(S_T0)}, {s(S_W)}", None),
                          (f"s_mul_i32 {s(S_T0)}, {s(S_T0)}, {14*128}", None), (f"v_min_u32 {v(rt)}, 13, {v(V_LANE)}", None),
                          (f"v_lshlrev_b32 {v(rt)}, 7, {v(rt)}", None),
                          (f"buffer_load_dword v5, {v(rt)}, {srd(S_WD)}, {s(S_T0)} offen", "t")])
    return items


def q_image_items(k):
    k.I(f"s_mul_i32 {s(S_T3)}, {s(S_W)}, {128*3072}")
    k.I(f"s_lshl_b32 {s(S_T4)}, {s(S_W)}, 13")
    k.I(f"s_add_u32 {s(S_T4)}, {s(S_T4)}, {L_QI}")
    return [[(f"s_add_u32 {s(S_OFF)}, {s(S_T3)}, {n*16*3072}", None), (f"s_add_u32 m0, {s(S_T4)}, {n*1024}", None),
             (f"buffer_load_dwordx4 v6, {srd(S_WQKV)}, {s(S_OFF)} offen lds", "wq")] for n in range(8)]


def modn_issue(k):
    skip = k.newlabel("mn_i")
    k.I("s_sub_u32 s55, s2, 64")
    k.I("s_cmp_ge_u32 s55, 128")
    k.I(f"s_cbranch_scc1 {skip}")
    k.cond_begin()
    wm_voff(k, 7, 8)
    k.I(f"s_mul_i32 {s(S_OFF)}, {s(S_W)}, {4*196608}")
    k.I(f"s_lshl_b32 {s(S_T0)}, {s(S_W)}, 12")
    k.I(f"s_add_u32 m0, {s(S_T0)}, {L_WMN}")
    for n in range(4):
        k.I(f"buffer_load_dwordx4 v7, {srd(S_WMOD)}, {s(S_OFF)} offen lds")
        if n < 3:
            k.I(f"s_add_u32 m0, m0, 1024")
            k.I(f"s_add_u32 {s(S_OFF)}, {s(S_OFF)}, 196608")
    k.cond_end()
    k.label(skip)


def ub_compute(k):
    skip = k.newlabel("ubc_skip")
    k.I(f"s_cmp_ge_u32 {s(S_I)}, 28")
    k.I(f"s_cbranch_scc1 {skip}")
    k.I(f"s_cmp_lt_u32 {s(S_W)}, 2")
    k.I(f"s_cbranch_scc1 {skip}")
    k.cond_begin()
    S_JOB, S_KH, S_BLK = S_T2, S_T3, S_T4
    k.I(f"s_lshr_b32 {s(S_T0)}, {s(S_XCD)}, 1")
    k.I(f"s_mul_i32 {s(S_JOB)}, {s(S_T0)}, 28")
    k.I(f"s_add_u32 {s(S_JOB)}, {s(S_JOB)}, {s(S_I)}")
    k.I(f"s_cmp_ge_u32 {s(S_JOB)}, 56")
    k.I(f"s_cselect_b32 {s(S_KH)}, 1, 0")
    k.I(f"s_mul_i32 {s(S_T0)}, {s(S_KH)}, 56")
    k.I(f"s_sub_u32 {s(S_BLK)}, {s(S_JOB)}, {s(S_T0)}")
    k.I(f"s_cmp_lt_u32 {s(S_BLK)}, 28")
    for i in range(4):
        k.I(f"s_cselect_b32 {s(S_UBS+i)}, {s(S_WG+i)}, {s(S_WU+i)}")
    k.I(f"s_cselect_b32 {s(S_T0)}, 0, 28")
    k.I(f"s_cselect_b32 {s(S_T1)}, 0, 56")
    k.I(f"s_sub_u32 {s(S_BLK)}, {s(S_BLK)}, {s(S_T0)}")
    k.I(f"s_and_b32 {s(S_T0)}, {s(S_XCD)}, 1")
    k.I(f"s_mul_i32 {s(S_T0)}, {s(S_T0)}, 28")
    k.I(f"s_add_u32 {s(S_BLK)}, {s(S_BLK)}, {s(S_T0)}")
    k.I(f"s_add_u32 {s(S_JOB)}, {s(S_BLK)}, {s(S_T1)}")
    k.I(f"v_lshrrev_b32 v112, 2, {v(V_LANE)}")
    k.I("v_mul_u32_u24 v112, 3584, v112")
    k.I(f"v_and_b32 v113, 3, {v(V_LANE)}")
    k.I("v_lshl_add_u32 v112, v113, 4, v112")
    k.I(f"s_lshl_b32 {s(S_T0)}, {s(S_BLK)}, 6")
    k.I(f"v_add_u32 v112, {s(S_T0)}, v112")
    k.I(f"s_mul_i32 {s(S_OFF)}, {s(S_KH)}, {256*3584}")
    k.I(f"s_and_b32 {s(S_T0)}, {s(S_W)}, 1")
    k.I(f"s_mul_i32 {s(S_T1)}, {s(S_T0)}, {128*3584}")
    k.I(f"s_add_u32 {s(S_OFF)}, {s(S_OFF)}, {s(S_T1)}")
    k.I(f"s_lshl_b32 {s(S_UBH)}, {s(S_T0)}, 13")
    k.I(f"s_add_u32 m0, {s(S_UBH)}, {L_UB}")
    for n in range(8):
        k.dma(112, S_UBS, s(S_OFF))
        if n < 7:
            k.I("s_add_u32 m0, m0, 1024")
            k.I(f"s_add_u32 {s(S_OFF)}, {s(S_OFF)}, {16*3584}")
    k.I(f"s_lshl_b32 {s(S_T0)}, {s(S_KH)}, 10")
    k.I(f"v_add_u32 v114, {s(S_T0)}, {v(V_L16)}")
    k.I(f"v_add_u32 v114, {WS_MODG + 768*8}, v114")
    k.load_granules_checked([116, 120], [114] * 2, "modU", width=4, tagpos=(1, 3), imm=[0, 2048])
    for i, r in enumerate((120, 122)):
        k.unpack(124, 125, r)
        k.I("v_add_f32 v124, 1.0, v124")
        k.I("v_add_f32 v125, 1.0, v125")
        k.I(f"v_cvt_pk_bf16_f32 {v(128+i)}, v124, v125")
    k.I("v_mov_b32 v130, v116")
    k.I("v_mov_b32 v131, v118")
    k.I("v_mov_b32 v132, 0")
    k.I("v_mov_b32 v133, 0")
    k.I(f"v_lshlrev_b32 v113, 3, {v(V_LANE)}")
    k.I(f"v_add_u32 v113, {L_CS}, v113")
    k.I("ds_write_b64 v113, v[128:129]")
    k.I("ds_write_b64 v113, v[130:131] offset:512")
    k.I("ds_write_b64 v113, v[132:133] offset:1024")
    k.I(f"v_and_b32 v113, 31, {v(V_LANE)}")
    k.I("v_min_u32 v113, 2, v113")
    k.I("v_lshlrev_b32 v113, 9, v113")
    k.I(f"v_lshrrev_b32 v114, 5, {v(V_LANE)}")
    k.I("v_lshl_add_u32 v113, v114, 4, v113")
    k.I(f"v_add_u32 v113, {L_CS}, v113")
    k.I(f"s_lshr_b32 {s(S_T0)}, {s(S_UBH)}, 5")
    k.I(f"v_add_u32 v113, {s(S_T0)}, v113")
    lane_fields(k, s_=114, r_=115, c_=116, nh=117)
    k.I("v_lshl_add_u32 v114, v114, 3, v115")
    k.I("v_lshlrev_b32 v114, 6, v114")
    k.I("v_lshl_add_u32 v114, v117, 5, v114")
    k.I("v_lshl_add_u32 v114, v116, 3, v114")
    k.I(f"v_add_u32 v114, {L_UB}, v114")
    k.I(f"v_add_u32 v114, {s(S_UBH)}, v114")
    k.I("s_waitcnt vmcnt(0) lgkmcnt(0)")
    for j in range(8 + 2):
        if j < 8:
            b = 116 + 8 * (j & 3)
            k.I(f"ds_read_b64_tr_b16 {v(b+4,2)}, v114 offset:{j*1024}")
            k.I(f"ds_read_b64_tr_b16 {v(b+6,2)}, v114 offset:{j*1024 + 256}")
            k.I(f"ds_read_b128 {v(b,4)}, v113 offset:{j*32}")
        if j >= 2:
            k.I(f"s_waitcnt lgkmcnt({6 if j < 8 else (3 if j == 8 else 0)})")
            bb = 116 + 8 * ((j - 2) & 3)
            k.mfma32(v(152, 16), v(bb, 4), v(bb + 4, 4), "0" if j == 2 else None)
    w3 = k.newlabel("ub_w3")
    k.wave_is(2, w3)
    k.I(f"v_lshlrev_b32 v113, 3, {v(V_LANE)}")
    k.I(f"v_add_u32 v113, {L_UBP}, v113")
    k.I("ds_write_b64 v113, v[152:153]")
    k.I("s_waitcnt lgkmcnt(0)")
    k.label(w3)
    k.I("v_accvgpr_write_b32 a244, v152")
    k.I("v_accvgpr_write_b32 a245, v153")
    k.I(f"s_mov_b32 {s(S_UBJ)}, {s(S_JOB)}")
    k.I(f"s_mov_b32 {s(S_UBK)}, {s(S_KH)}")
    k.cond_end()
    k.label(skip)


def ub_publish(k):
    skip = k.newlabel("ubp_skip")
    k.I(f"s_cmp_ge_u32 {s(S_I)}, 28")
    k.I(f"s_cbranch_scc1 {skip}")
    k.wave_is(3, skip)
    k.cond_begin()
    S_JOB, S_KH = S_UBJ, S_UBK
    k.test_delay(4)
    k.I(f"v_lshlrev_b32 v174, 3, {v(V_LANE)}")
    k.I(f"v_add_u32 v174, {L_UBP}, v174")
    k.I("ds_read_b64 v[154:155], v174")
    k.I("v_accvgpr_read_b32 v152, a244")
    k.I("v_accvgpr_read_b32 v153, a245")
    k.I("s_waitcnt lgkmcnt(0)")
    k.I("v_add_f32 v152, v152, v154")
    k.I("v_add_f32 v153, v153, v155")
    k.I("v_cvt_pk_bf16_f32 v168, v152, v153")
    k.unpack(170, 171, 168)
    k.I("v_sub_f32 v172, v152, v170")
    k.I("v_sub_f32 v173, v153, v171")
    k.I("v_cvt_pk_bf16_f32 v169, v172, v173")
    k.I(f"s_mov_b32 {s(S_T0)}, 0x05040100")
    k.I(f"s_mov_b32 {s(S_T1)}, 0x07060302")
    k.I(f"v_perm_b32 v176, v169, v168, {s(S_T0)}")
    k.I("v_mov_b32 v177, v168")
    k.I(f"v_perm_b32 v178, v168, v169, {s(S_T1)}")
    k.I(f"v_mov_b32 v179, {v(V_TAG)}")
    k.I(f"s_mul_i32 {s(S_T0)}, {s(S_KH)}, {3584*16}")
    k.I(f"s_lshl_b32 {s(S_T1)}, {s(S_JOB)}, 9")
    k.I(f"s_add_u32 {s(S_T0)}, {s(S_T0)}, {s(S_T1)}")
    k.I(f"s_add_u32 {s(S_T0)}, {s(S_T0)}, {WS_WEXT}")
    k.I(f"v_add_u32 v174, {s(S_T0)}, {v(V_L16)}")
    k.I("s_mov_b32 exec_hi, 0")
    k.I(f"buffer_store_dwordx4 v[176:179], v174, {srd(S_WS)}, 0 offen sc1")
    k.I("s_mov_b64 exec, -1")
    k.cond_end()
    k.label(skip)


S_UBH, S_UBJ, S_UBK = 32, 33, 34
L_UBP = L_UB
S_UBS = 12


def touch_setup(k, ra, rb, rc, rt):
    k.I(f"v_and_b32 {v(ra)}, 31, {v(V_LANE)}")
    k.I(f"v_lshlrev_b32 {v(ra)}, 7, {v(ra)}")
    k.I(f"s_lshl_b32 {s(S_T0)}, {s(S_I)}, 2")
    k.I(f"s_add_u32 {s(S_T0)}, {s(S_T0)}, {s(S_W)}")
    k.I(f"s_lshl_b32 {s(S_T1)}, {s(S_T0)}, 12")
    k.I(f"v_add_u32 {v(ra)}, {s(S_T1)}, {v(ra)}")
    k.I(f"v_min_u32 {v(rb)}, 55, {v(V_LANE)}")
    k.I(f"v_mul_u32_u24 {v(rc)}, 4682, {v(rb)}")
    k.I(f"v_lshrrev_b32 {v(rc)}, 16, {v(rc)}")
    k.I(f"v_mul_u32_u24 {v(rt)}, 14, {v(rc)}")
    k.I(f"v_sub_u32 {v(rb)}, {v(rb)}, {v(rt)}")
    k.I(f"v_lshlrev_b32 {v(rb)}, 7, {v(rb)}")
    k.I(f"v_mul_u32_u24 {v(rc)}, 3584, {v(rc)}")
    k.I(f"v_add_u32 {v(rb)}, {v(rb)}, {v(rc)}")
    k.I(f"s_mul_i32 {s(S_T0)}, {s(S_T0)}, {4*3584}")
    k.I(f"s_and_b32 {s(S_T1)}, {s(S_XCD)}, 1")
    k.I(f"s_mul_i32 {s(S_T1)}, {s(S_T1)}, 1792")
    k.I(f"s_add_u32 {s(S_T0)}, {s(S_T0)}, {s(S_T1)}")
    k.I(f"v_add_u32 {v(rb)}, {s(S_T0)}, {v(rb)}")


def wo_items(k):
    k.I(f"s_and_b32 {s(S_T0)}, {s(S_J2)}, 7")
    k.I(f"s_lshl_b32 {s(S_T0)}, {s(S_T0)}, 7")
    k.I(f"v_lshrrev_b32 v12, 3, {v(V_LANE)}")
    k.I("v_lshlrev_b32 v12, 10, v12")
    k.I(f"v_and_b32 v13, 7, {v(V_LANE)}")
    k.I(f"v_bfe_u32 v14, {v(V_LANE)}, 4, 1")
    k.I("v_lshlrev_b32 v14, 2, v14")
    k.I("v_xor_b32 v13, v13, v14")
    k.I("v_lshl_add_u32 v12, v13, 4, v12")
    k.I(f"v_add_u32 v12, {s(S_T0)}, v12")
    k.I(f"s_lshl_b32 {s(S_T3)}, {s(S_W)}, 17")
    k.I(f"s_lshl_b32 {s(S_T4)}, {s(S_W)}, 14")
    if L_WO:
        k.I(f"s_add_u32 {s(S_T4)}, {s(S_T4)}, {L_WO}")
    return [[(f"s_add_u32 {s(S_OFF)}, {s(S_T3)}, {n*8192}", None), (f"s_add_u32 m0, {s(S_T4)}, {n*1024}", None),
             (f"buffer_load_dwordx4 v12, {srd(S_WO)}, {s(S_OFF)} offen lds", "wo")] for n in range(16)]


def swz128_base(k, dst, cbk_sreg=None, cbk_imm=None, s_mul=16):
    lane_fields(k, s_=8, r_=9, c_=10, nh=11)
    lbase_bytes(k, 12, 11, 10, 13, 14)
    k.I(f"v_mul_u32_u24 v8, {s_mul}, v8")
    k.I("v_add_u32 v8, v8, v9")
    k.I("v_lshlrev_b32 v8, 7, v8")
    k.I("v_lshrrev_b32 v9, 1, v9")
    if cbk_sreg is not None:
        k.I(f"v_xor_b32 v9, {s(cbk_sreg)}, v9")
    elif cbk_imm:
        k.I(f"v_xor_b32 v9, {cbk_imm}, v9")
    k.I("v_lshl_add_u32 v8, v9, 6, v8")
    k.I(f"v_add_u32 {v(dst)}, v8, v12")


KV_PB = 16


def kv_addr(k):
    k.I(f"s_lshl_b32 {s(S_KVB)}, {s(S_HP)}, 16")
    k.I(f"s_lshl_b32 {s(S_T2)}, {s(S_W)}, 10")
    k.I(f"s_add_u32 {s(S_KVB)}, {s(S_KVB)}, {s(S_T2)}")
    k.I(f"s_add_u32 {s(S_KVB)}, {s(S_KVB)}, {WS_KVP}")


def kv_loads(k, tag):
    k.I(f"s_mov_b32 {s(S_OFF)}, {s(S_KVB)}")
    for mm in range(16):
        k.I(f"buffer_load_dwordx4 {v(KV_PB+4*mm,4)}, {v(V_L16)}, {srd(S_WS)}, {s(S_OFF)} offen sc1", tag=tag)
        if mm < 15:
            k.I(f"s_add_u32 {s(S_OFF)}, {s(S_OFF)}, 4096")


S_KVB = 35


def kv_combine_and_o(k):
    PB = KV_PB

    def check():
        k.I(f"v_cmp_ne_u32 vcc, {s(S_TAG)}, {v(PB+3)}")
        for mm in range(1, 16):
            k.I(f"v_cmp_ne_u32 {s(S_EX, 2)}, {s(S_TAG)}, {v(PB+4*mm+3)}")
            k.I(f"s_or_b64 vcc, vcc, {s(S_EX, 2)}")

    probe, ok, full, done = (k.newlabel(x) for x in ("kvp_probe", "kvp_seen", "kvp_full", "kvp_done"))
    k.I("v_mov_b32 v10, 0x3f80")
    k.I("v_mov_b32 v11, 0x3f800000")
    for r in range(176, 182):
        k.I(f"v_mov_b32 {v(r)}, 0")
    k.wait_vm("kvp")
    check()
    k.I(f"s_cbranch_vccz {done}")
    k.cond_begin()
    k.I(f"v_min_u32 v14, 15, {v(V_LANE)}")
    k.I("v_lshlrev_b32 v14, 12, v14")
    k.I(f"v_add_u32 v14, {s(S_KVB)}, v14")
    k.spin_init()
    k.label(probe)
    k.I(f"buffer_load_dword v15, v14, {srd(S_WS)}, 0 offen offset:12 sc1")
    k.I("s_waitcnt vmcnt(0)")
    k.I(f"v_cmp_ne_u32 vcc, {s(S_TAG)}, v15")
    k.spin_back(probe, ok)
    k.label(ok)
    k.label(full)
    kv_loads(k, None)
    k.I("s_waitcnt vmcnt(0)")
    check()
    k.spin_back(full, done)
    k.cond_end()
    k.label(done)
    k.stamp("kvp landed")
    wo = wo_items(k) if OPT.get("wo_kv", 1) else []
    for mm in range(16):
        for d in range(2):
            k.I(f"v_dot2c_f32_bf16 {v(176+2*d)}, {v(PB+4*mm+d)}, v10")
            k.I(f"v_dot2c_f32_bf16 {v(177+2*d)}, {v(PB+4*mm+d)}, v11")
        if wo and mm % 2 == 1:
            for t, tg in wo.pop(0):
                k.I(t, tag=tg)
    k.wo_rest = wo
    zs = k.newlabel("zsum")
    k.wave_is(0, zs)
    for mm in range(16):
        k.I(f"v_dot2c_f32_bf16 v180, {v(PB+4*mm+2)}, v10")
        k.I(f"v_dot2c_f32_bf16 v181, {v(PB+4*mm+2)}, v11")
    k.label(zs)
    k.I("s_nop 2")
    for i in range(6):
        k.I(f"v_mov_b32 {v(160+i)}, {v(176+i)}")
    k.I("v_cvt_pk_bf16_f32 v160, v160, v161")
    k.I("v_cvt_pk_bf16_f32 v161, v162, v163")
    k.I(f"v_lshlrev_b32 v8, 5, {v(V_LANE)}")
    k.I(f"s_lshl_b32 {s(S_T0)}, {s(S_W)}, 3")
    k.I(f"s_add_u32 {s(S_T0)}, {s(S_T0)}, {L_KVF}")
    k.I(f"v_add_u32 v8, {s(S_T0)}, v8")
    k.I("ds_write_b64 v8, v[160:161]")
    k.half_total(164, 166)
    k.half_total(165, 166)
    k.I("v_cvt_pk_bf16_f32 v164, v164, v165")
    k.I(f"v_bfe_u32 v8, {v(V_LANE)}, 2, 1")
    k.I(f"v_bfe_u32 v9, {v(V_LANE)}, 3, 2")
    k.I(f"v_and_b32 v10, 3, {v(V_LANE)}")
    k.I("v_lshl_add_u32 v9, v9, 2, v10")
    k.I("v_lshlrev_b32 v9, 1, v9")
    k.I("v_lshl_add_u32 v10, v8, 5, v9")
    k.I(f"v_add_u32 v10, {L_Z}, v10")
    k.I("v_xor_b32 v8, 1, v8")
    k.I("v_lshl_add_u32 v11, v8, 5, v9")
    k.I(f"v_add_u32 v11, {L_Z + 64}, v11")
    w0 = k.newlabel("zw")
    k.wave_is(0, w0)
    k.cond_begin()
    k.I("ds_write_b16 v10, v164")
    k.I("ds_write_b16_d16_hi v11, v164")
    k.cond_end()
    k.label(w0)
    for it in k.wo_rest[:4]:
        for t, tg in it:
            k.I(t, tag=tg)
    k.wait_lg_all()
    k.barrier()
    k.stamp("kvf barrier")
    k.I(f"v_lshlrev_b32 v8, 5, {v(V_LANE)}")
    k.I(f"v_add_u32 v8, {L_KVF}, v8")
    k.I(f"v_xor_b32 v9, 32, {v(V_LANE)}")
    k.I("v_lshlrev_b32 v9, 5, v9")
    k.I(f"v_add_u32 v9, {L_KVF}, v9")
    k.I(f"v_mov_b32 v10, {L_ZERO}")
    k.I(f"v_cndmask_b32 v8, v10, v8, {s(S_VALID,2)}")
    k.I(f"v_cndmask_b32 v9, v10, v9, {s(S_VALID,2)}")
    k.I(f"v_lshrrev_b32 v10, 5, {v(V_LANE)}")
    k.I("v_lshlrev_b32 v10, 5, v10")
    k.I(f"v_add_u32 v10, {L_Z}, v10")
    PF, NF, ZP, ZN = 112, 120, 128, 136
    k.I(f"ds_read_b128 {v(PF,4)}, v8")
    k.I(f"ds_read_b128 {v(PF+4,4)}, v8 offset:16")
    k.I(f"ds_read_b128 {v(NF,4)}, v9")
    k.I(f"ds_read_b128 {v(NF+4,4)}, v9 offset:16")
    k.I(f"ds_read_b128 {v(ZP,4)}, v10")
    k.I(f"ds_read_b128 {v(ZP+4,4)}, v10 offset:16")
    k.I(f"ds_read_b128 {v(ZN,4)}, v10 offset:64")
    k.I(f"ds_read_b128 {v(ZN+4,4)}, v10 offset:80")
    k.wait_lg_all()
    for it in k.wo_rest[4:]:
        for t, tg in it:
            k.I(t, tag=tg)
    NUM = 144
    k.mfma32(v(NUM, 16), v(PF, 4), v(QP, 4), "0")
    k.mfma32(v(NUM, 16), v(PF + 4, 4), v(QP + 4, 4))
    k.mfma32(v(NUM, 16), v(NF, 4), v(QN, 4))
    k.mfma32(v(NUM, 16), v(NF + 4, 4), v(QN + 4, 4))
    k.I("v_mov_b32 v10, 0")
    k.I("v_mov_b32 v11, 0")
    for i in range(8):
        k.I(f"v_dot2c_f32_bf16 v10, {v(QP+i)}, {v(ZP+i)}")
        k.I(f"v_dot2c_f32_bf16 v11, {v(QN+i)}, {v(ZN+i)}")
    k.I("v_add_f32 v10, v10, v11")
    k.I("v_add_f32 v10, 0x358637bd, v10")
    k.I("v_rcp_f32 v10, v10")
    for i in range(0, 16, 2):
        k.I(f"v_pk_mul_f32 {v(NUM+i,2)}, {v(NUM+i,2)}, v[10:11] op_sel_hi:[1,0]")
    for i in range(8):
        k.I(f"v_cvt_pk_bf16_f32 {v(160+i)}, {v(NUM+2*i)}, {v(NUM+2*i+1)}")
    k.stamp("o computed")
    k.I(f"s_lshl_b32 {s(S_T0)}, {s(S_M)}, 2")
    k.I(f"s_add_u32 {s(S_T0)}, {s(S_T0)}, {s(S_W)}")
    k.I(f"s_lshl_b32 {s(S_T0)}, {s(S_T0)}, 15")
    k.I(f"s_lshl_b32 {s(S_T1)}, {s(S_HP)}, 11")
    k.I(f"s_add_u32 {s(S_T0)}, {s(S_T0)}, {s(S_T1)}")
    k.I(f"s_add_u32 {s(S_T0)}, {s(S_T0)}, {WS_O}")
    k.I(f"v_add_u32 v8, {s(S_T0)}, {v(V_L16)}")
    k.I(f"buffer_store_dwordx4 v[160:163], v8, {srd(S_WS)}, 0 offen sc1")
    k.I(f"buffer_store_dwordx4 v[164:167], v8, {srd(S_WS)}, 0 offen offset:1024 sc1")
    k.wait_vm_all()
    k.I(f"s_lshl_b32 {s(S_T0)}, {s(S_M)}, 4")
    k.I(f"s_add_u32 {s(S_T0)}, {s(S_T0)}, {s(S_J)}")
    k.I(f"s_lshl_b32 {s(S_T0)}, {s(S_T0)}, 7")
    k.I(f"s_add_u32 {s(S_T0)}, {s(S_T0)}, {WS_FO}")
    k.signal(S_T0, "fo")
    k.stamp("o published")
    code_touch(k, 1, 0, t=(12, 13))


S_TBL, S_CBK, S_TB, S_B32 = 96, 97, 98, 99


def quad_ids(k):
    k.I(f"s_and_b32 {s(S_TBL)}, {s(S_W)}, 1")
    k.I(f"s_lshr_b32 {s(S_CBK)}, {s(S_W)}, 1")
    k.I(f"s_lshr_b32 {s(S_T0)}, {s(S_J2)}, 3")
    k.I(f"s_lshl_b32 {s(S_T0)}, {s(S_T0)}, 1")
    k.I(f"s_lshl_b32 {s(S_TB)}, {s(S_M2)}, 2")
    k.I(f"s_add_u32 {s(S_TB)}, {s(S_TB)}, {s(S_T0)}")
    k.I(f"s_add_u32 {s(S_TB)}, {s(S_TB)}, {s(S_TBL)}")
    k.I(f"s_and_b32 {s(S_B32)}, {s(S_J2)}, 7")
    k.I(f"s_lshl_b32 {s(S_B32)}, {s(S_B32)}, 1")
    k.I(f"s_add_u32 {s(S_B32)}, {s(S_B32)}, {s(S_CBK)}")


def mod16(k, dst_regs, gran0, stem):
    k.I(f"v_lshrrev_b32 v8, 5, {v(V_LANE)}")
    k.I("v_lshlrev_b32 v8, 6, v8")
    k.I(f"s_lshl_b32 {s(S_T0)}, {s(S_B32)}, 7")
    k.I(f"s_add_u32 {s(S_T0)}, {s(S_T0)}, {WS_MODG + gran0*8}")
    k.I(f"v_add_u32 v8, {s(S_T0)}, v8")
    k.load_granules_checked([dst_regs + 4 * i for i in range(4)], [8] * 4, stem, width=4, tagpos=(1, 3), imm=[0, 16, 32, 48])


VD = 4
S_M0, S_SO = 90, 91


def ring_setup(k):
    k.I(f"s_and_b32 {s(S_T0)}, {s(S_W)}, 1")
    k.I(f"s_cmp_eq_u32 {s(S_T0)}, 0")
    for i in range(4):
        k.I(f"s_cselect_b32 {s(S_SEL+i)}, {s(S_WG+i)}, {s(S_WU+i)}")
    for n in range(7):
        k.I(f"v_add_u32 v14, {64*n}, {v(V_LANE)}")
        k.I("v_mul_u32_u24 v15, 4682, v14")
        k.I("v_lshrrev_b32 v15, 16, v15")
        k.I(f"v_mul_u32_u24 {v(VD+n)}, 14, v15")
        k.I(f"v_sub_u32 v14, v14, {v(VD+n)}")
        k.I("v_mul_u32_u24 v15, 3584, v15")
        k.I("v_lshl_add_u32 v15, v14, 4, v15")
        k.I(f"s_mul_i32 {s(S_T0)}, {s(S_J)}, 224")
        k.I(f"v_add_u32 {v(VD+n)}, {s(S_T0)}, v15")
    for z in range(448):
        assert (z * 4682) >> 16 == z // 14
    k.I(f"s_lshr_b32 {s(S_T0)}, {s(S_W)}, 1")
    k.I(f"s_mul_i32 {s(S_M0)}, {s(S_T0)}, {SLAB}")
    k.I(f"s_and_b32 {s(S_T1)}, {s(S_W)}, 1")
    k.I(f"s_mul_i32 {s(S_T1)}, {s(S_T1)}, {UOFF}")
    k.I(f"s_add_u32 {s(S_M0)}, {s(S_M0)}, {s(S_T1)}")
    k.I(f"s_mul_i32 {s(S_SO)}, {s(S_T0)}, {32*3584}")


def ring_pair(k, P, as_list=False):
    out = [(f"s_add_u32 m0, {s(S_M0)}, {(P % 5) * 2 * SLAB}", None),
           (f"s_add_u32 {s(S_OFF)}, {s(S_SO)}, {P * 2 * 32 * 3584}", None)]
    for n in range(7):
        out.append((f"buffer_load_dwordx4 {v(VD+n)}, {srd(S_SEL)}, {s(S_OFF)} offen lds", f"W{P}"))
        if n < 6:
            out.append(("s_add_u32 m0, m0, 1024", None))
    if as_list:
        return out
    for t, tg in out:
        k.I(t, tag=tg)


def p2(k):
    XR, GA, CBR = 64, 72, 88
    k.I(f"v_and_b32 v12, 31, {v(V_LANE)}")
    k.I("v_lshlrev_b32 v12, 10, v12")
    k.I(f"v_lshrrev_b32 v13, 5, {v(V_LANE)}")
    k.I("v_lshl_add_u32 v12, v13, 5, v12")
    k.I(f"s_lshl_b32 {s(S_T0)}, {s(S_TB)}, 15")
    k.I(f"s_lshl_b32 {s(S_T1)}, {s(S_B32)}, 6")
    k.I(f"s_add_u32 {s(S_T0)}, {s(S_T0)}, {s(S_T1)}")
    k.I(f"v_add_u32 v12, {s(S_T0)}, v12")
    k.I(f"buffer_load_dwordx4 {v(XR,4)}, v12, {srd(S_X)}, 0 offen", tag="xr")
    k.I(f"buffer_load_dwordx4 {v(XR+4,4)}, v12, {srd(S_X)}, 0 offen offset:16", tag="xr")
    swz128_base(k, 15, cbk_sreg=S_CBK)
    for kap in range(32):
        hp, a = kap >> 1, kap & 1
        for rd in range(2):
            k.I(f"ds_read_b64_tr_b16 {a_(4*kap + 2*rd, 2)}, v15 offset:{L_WO + (32*hp + 8*a + 4*rd)*128}", tag="wof")
        if kap % 4 == 3:
            k.I("s_waitcnt lgkmcnt(6)")
    k.wait_lg_all()
    k.stamp("wof read")
    modn_compute(k)
    k.stamp("modn")
    ring_setup(k)
    k.I(f"v_lshrrev_b32 v13, 5, {v(V_LANE)}")
    k.I("v_lshlrev_b32 v13, 6, v13")
    k.I(f"s_lshl_b32 {s(S_T0)}, {s(S_B32)}, 7")
    k.I(f"s_add_u32 {s(S_T0)}, {s(S_T0)}, {WS_MODG}")
    k.I(f"v_add_u32 v13, {s(S_T0)}, v13")
    k.I(f"v_add_u32 v12, {512*8}, v13")
    k.I(f"v_add_u32 v13, {1024*8}, v13")
    gr = ([GA + 4 * i for i in range(4)] + [CBR + 4 * i for i in range(4)], [12] * 4 + [13] * 4)
    gimm = [0, 16, 32, 48] * 2
    k.I(f"s_lshl_b32 {s(S_T0)}, {s(S_M2)}, 11")
    k.I(f"s_add_u32 {s(S_T0)}, {s(S_T0)}, {WS_FO}")
    k.poll_flags(S_T0, 16, "po")
    k.stamp("o flags seen")
    k.I(f"s_sub_u32 {s(S_T0)}, {s(S_TB)}, {s(S_TBL)}")
    k.I(f"s_lshl_b32 {s(S_T0)}, {s(S_T0)}, 15")
    k.I(f"s_lshl_b32 {s(S_T1)}, {s(S_W)}, 14")
    k.I(f"s_add_u32 {s(S_T2)}, {s(S_T0)}, {s(S_T1)}")
    k.I(f"s_add_u32 {s(S_T2)}, {s(S_T2)}, {WS_O}")
    k.I(f"s_add_u32 {s(S_T3)}, {s(S_T1)}, {L_OI}")
    k.I(f"s_and_b32 {s(S_T4)}, {s(S_J2)}, 7")
    k.I(f"s_lshl_b32 {s(S_T4)}, {s(S_T4)}, 11")
    k._tag = "of"
    for n in range(16):
        k.I(f"s_add_u32 {s(S_T0)}, {s(S_T4)}, {n*1024}")
        k.I(f"s_and_b32 {s(S_T0)}, {s(S_T0)}, 0x3fff")
        k.I(f"s_add_u32 m0, {s(S_T3)}, {s(S_T0)}")
        k.I(f"s_add_u32 {s(S_OFF)}, {s(S_T2)}, {s(S_T0)}")
        k.dma(V_L16, S_WS, s(S_OFF), sc1=True)
    k._tag = None
    k.granule_loads(gr[0], gr[1], 4, gimm, "gacb")
    ring_a = []
    for P in range(3):
        cur = []
        for t, tg in ring_pair(k, P, as_list=True):
            cur.append((t, tg))
            if t.startswith("buffer_"):
                ring_a.append(cur)
                cur = []
    for _ in range(OPT.get("ring_a0", 8)):
        for t, tg in ring_a.pop(0):
            k.I(t, tag=tg)
    k.I(f"s_lshl_b32 {s(S_T0)}, {s(S_TBL)}, 15")
    k.I(f"s_add_u32 {s(S_T0)}, {s(S_T0)}, {L_OI}")
    k.I(f"v_add_u32 v14, {s(S_T0)}, {v(V_L16)}")
    k.wait_vm("of")
    k.barrier()
    k.stamp("o landed")
    GAF, C2F, XF = 144, 160, 176
    pre = [lambda: k.granule_verify(gr[0], gr[1], "gacb", 4, (1, 3), gimm, "gacb")]
    for i in range(8):
        g = GA + 4 * (i >> 1) + 2 * (i & 1)
        c = CBR + 4 * (i >> 1) + 2 * (i & 1)
        pre += [f"v_lshlrev_b32 {v(GAF+2*i)}, 16, {v(g)}", f"v_and_b32 {v(GAF+2*i+1)}, {s(S_MASK)}, {v(g)}",
                f"v_lshlrev_b32 {v(XF+2*i)}, 16, {v(XR+i)}", f"v_and_b32 {v(XF+2*i+1)}, {s(S_MASK)}, {v(XR+i)}",
                f"v_lshlrev_b32 {v(C2F+2*i)}, 16, {v(c)}", f"v_and_b32 {v(C2F+2*i+1)}, {s(S_MASK)}, {v(c)}",
                f"v_add_f32 {v(C2F+2*i)}, 1.0, {v(C2F+2*i)}", f"v_add_f32 {v(C2F+2*i+1)}, 1.0, {v(C2F+2*i+1)}",
                f"v_cvt_pk_bf16_f32 {v(c)}, {v(C2F+2*i)}, {v(C2F+2*i+1)}",
                f"v_lshlrev_b32 {v(C2F+2*i)}, 16, {v(c)}", f"v_and_b32 {v(C2F+2*i+1)}, {s(S_MASK)}, {v(c)}"]
    ACC = 112
    nb = 6
    for kap in range(32 + nb - 2):
        if kap < 32:
            k.I(f"ds_read_b128 {v(16 + 4*(kap % nb), 4)}, v14 offset:{kap*1024}", tag=f"o{kap}")
        q = kap - (nb - 2)
        if q >= 0:
            k.wait_lg(f"o{q}")
            k.mfma32(v(ACC, 16), a_(4 * q, 4), v(16 + 4 * (q % nb), 4), "0" if q == 0 else None)
            if ring_a and q % 2 == 0:
                for t, tg in ring_a.pop(0):
                    k.I(t, tag=tg)
            if q >= 6:
                for _ in range(4):
                    if pre:
                        it = pre.pop(0)
                        it() if callable(it) else k.I(it)
    assert not ring_a and not pre
    k.stamp("wo gemm")
    k.barrier()
    k.stamp("gacb ok")
    ring = []
    for P in range(3, 5):
        items = ring_pair(k, P, as_list=True)
        cur = []
        for t, tg in items:
            cur.append((t, tg))
            if t.startswith("buffer_"):
                ring.append(cur)
                cur = []

    def ring_some(n):
        for _ in range(min(n, len(ring))):
            for t, tg in ring.pop(0):
                k.I(t, tag=tg)

    T = 128
    X1 = 136
    YP = 128
    k.I("v_mov_b32 v40, 0")
    k.I("v_mov_b32 v41, 0")
    k.I("v_mov_b32 v42, 0x3f803f80")
    for i in range(16):
        k.I(f"v_fmac_f32 {v(XF+i)}, {v(GAF+i)}, {v(ACC+i)}")
    for i in range(8):
        k.I(f"v_cvt_pk_bf16_f32 {v(X1+i)}, {v(XF+2*i)}, {v(XF+2*i+1)}")
    ring_some(2)
    for i in range(8):
        k.unpack(XF + 2 * i, XF + 2 * i + 1, X1 + i)
    for i in range(8):
        k.I(f"v_pk_mul_f32 {v(XF+2*i,2)}, {v(XF+2*i,2)}, {v(C2F+2*i,2)}")
    for i in range(8):
        k.I(f"v_cvt_pk_bf16_f32 {v(YP+i)}, {v(XF+2*i)}, {v(XF+2*i+1)}")
    k.I(f"s_lshl_b32 {s(S_T0)}, {s(S_TB)}, 15")
    k.I(f"s_lshl_b32 {s(S_T1)}, {s(S_B32)}, 11")
    k.I(f"s_add_u32 {s(S_T0)}, {s(S_T0)}, {s(S_T1)}")
    k.I(f"s_add_u32 {s(S_T0)}, {s(S_T0)}, {WS_Y}")
    k.I(f"v_add_u32 v12, {s(S_T0)}, {v(V_L16)}")
    k.I(f"buffer_store_dwordx4 {v(YP,4)}, v12, {srd(S_WS)}, 0 offen sc1", tag="yst")
    k.I(f"buffer_store_dwordx4 {v(YP+4,4)}, v12, {srd(S_WS)}, 0 offen offset:1024 sc1", tag="yst")
    for i in range(8):
        k.I(f"v_dot2c_f32_bf16 v40, {v(X1+i)}, v42")
        k.I(f"v_dot2c_f32_bf16 v41, {v(X1+i)}, {v(X1+i)}")
    k.half_total(40, 43)
    k.half_total(41, 43)
    k.I(f"s_lshl_b32 {s(S_T0)}, {s(S_TB)}, 4")
    k.I(f"s_add_u32 {s(S_T0)}, {s(S_T0)}, {s(S_B32)}")
    k.I(f"s_lshl_b32 {s(S_T0)}, {s(S_T0)}, 8")
    k.I(f"s_add_u32 {s(S_T0)}, {s(S_T0)}, {WS_STATS}")
    k.I(f"v_lshlrev_b32 v12, 3, {v(V_LANE)}")
    k.I(f"v_add_u32 v12, {s(S_T0)}, v12")
    k.I("s_mov_b32 exec_hi, 0")
    k.I(f"buffer_store_dwordx2 v[40:41], v12, {srd(S_WS)}, 0 offen sc1", tag="yst")
    k.I("s_mov_b64 exec, -1")
    k.stamp("y stored")
    ring_some(OPT.get("ring_pre", 8))
    k.stamp("ring b")
    for i in range(8):
        k.I(f"v_accvgpr_write_b32 {a_(248+i)}, {v(X1+i)}")
    k.wait_vm("yst")
    k.I(f"s_lshl_b32 {s(S_T0)}, {s(S_M2)}, 4")
    k.I(f"s_add_u32 {s(S_T0)}, {s(S_T0)}, {s(S_J2)}")
    k.I(f"s_lshl_b32 {s(S_T0)}, {s(S_T0)}, 7")
    k.I(f"s_add_u32 {s(S_T0)}, {s(S_T0)}, {WS_FY}")
    k.signal(S_T0, "fy")
    noe = k.newlabel("noepoch")
    k.I("s_cmp_eq_u32 s2, 0")
    k.I(f"s_cbranch_scc0 {noe}")
    k.wave_is(0, noe)
    k.cond_begin()
    k.I("v_mov_b32 v12, 0")
    k.I("s_mov_b64 exec, 1")
    k.I(f"buffer_store_dword {v(V_TAG)}, v12, {srd(S_WS)}, 0 offen sc1")
    k.I("s_mov_b64 exec, -1")
    k.cond_end()
    k.label(noe)
    k.stamp("y published")
    ring_some(len(ring))
    ub_compute(k)
    k.stamp("ub")


def p3_tail(k, ST, AE, BE):
    it = [lambda: k.wait_vm("st")]
    for i in range(1, 8):
        it.append(f"v_add_f32 v16, v16, {v(ST+2*i)}")
        it.append(f"v_add_f32 v17, v17, {v(ST+2*i+1)}")
    for r in (16, 17):
        it += [f"v_mov_b32 v18, {v(r)}", "s_nop 1", f"v_permlane32_swap_b32 {v(r)}, v18", f"v_add_f32 {v(r)}, {v(r)}, v18"]
    it += ["v_mul_f32 v16, 0x3b000000, v16", "v_mul_f32 v17, 0x3b000000, v17", "v_fma_f32 v17, -v16, v16, v17",
           "v_max_f32 v17, 0, v17", "v_add_f32 v17, 0x3727c5ac, v17", "v_rsq_f32 v18, v17", "v_sub_f32 v16, 0, v16",
           "v_mul_f32 v19, v17, v18", "v_mul_f32 v20, v18, v18", "v_cvt_pk_bf16_f32 v22, v16, v19",
           "v_lshlrev_b32 v24, 16, v22", f"v_and_b32 v25, {s(S_MASK)}, v22", "v_sub_f32 v24, v16, v24", "v_sub_f32 v25, v19, v25",
           "v_cvt_pk_bf16_f32 v23, v24, v25",
           f"s_mov_b32 {s(S_T1)}, 0x01000100", f"v_perm_b32 {v(BE)}, v22, v22, {s(S_T1)}",
           f"s_mov_b32 {s(S_T1)}, 0x07060100", f"v_perm_b32 {v(BE+1)}, v22, v23, {s(S_T1)}",
           f"s_mov_b32 {s(S_T1)}, 0x07060302", f"v_perm_b32 {v(BE+2)}, v23, v22, {s(S_T1)}",
           f"v_mov_b32 {v(BE+3)}, 0", f"v_cmp_gt_u32 vcc, 32, {v(V_LANE)}"]
    it.append(lambda: [k.I(f"v_cndmask_b32 {v(BE+i)}, 0, {v(BE+i)}, vcc") for i in range(3)])
    regs = [AE + 28 * h + 4 * b for h in range(2) for b in range(7)]
    it.append(lambda: k.granule_verify(regs, [14] * 7 + [15] * 7, "wext", 4, (3,), [256 * b for b in range(7)] * 2, "wext"))
    it += [f"v_mov_b32 {v(r+3)}, 0" for r in regs]
    return it


def p3(k):
    Y0, ACC = 16, 144
    VTR = (11, 12, 13)
    lane_fields(k, s_=14, r_=15)
    k.I("v_lshl_add_u32 v14, v14, 4, v15")
    k.I("v_mul_u32_u24 v14, 224, v14")
    k.I(f"v_bfe_u32 v15, {v(V_LANE)}, 4, 1")
    k.I(f"v_mul_u32_u24 v15, {UOFF}, v15")
    k.I("v_add_u32 v14, v14, v15")
    k.I(f"v_and_b32 v15, 1, {v(V_LANE)}")
    k.I("v_lshl_add_u32 v14, v15, 4, v14")
    k.I(f"v_bfe_u32 v15, {v(V_LANE)}, 1, 1")
    k.I(f"v_lshl_add_u32 {v(VTR[0])}, v15, 3, v14")
    k.I(f"v_add_u32 {v(VTR[1])}, {4*SLAB}, {v(VTR[0])}")
    k.I(f"v_add_u32 {v(VTR[2])}, {8*SLAB}, {v(VTR[0])}")
    k.I(f"s_lshl_b32 {s(S_T0)}, {s(S_M)}, 11")
    k.I(f"s_add_u32 {s(S_T0)}, {s(S_T0)}, {WS_FY}")
    k.wait_vm_all()
    k.poll_flags(S_T0, 16, "py")
    k.stamp("y flags seen")
    S_TB3 = S_T2
    k.I(f"s_lshl_b32 {s(S_TB3)}, {s(S_M)}, 2")
    k.I(f"s_add_u32 {s(S_TB3)}, {s(S_TB3)}, {s(S_W)}")
    k.I(f"s_lshl_b32 {s(S_T3)}, {s(S_TB3)}, 15")
    k.I(f"s_add_u32 {s(S_T3)}, {s(S_T3)}, {WS_Y}")

    def ld_y(kap):
        out = []
        if kap and kap & 3 == 0:
            out.append((f"s_add_u32 {s(S_T3)}, {s(S_T3)}, 4096", None))
        out.append((f"buffer_load_dwordx4 {v(Y0+4*kap,4)}, {v(V_L16)}, {srd(S_WS)}, {s(S_T3)} offen offset:{(kap&3)*1024} sc1", f"y{kap}"))
        return out

    if OPT.get("coop", 0):
        k.I(f"v_and_b32 v14, 31, {v(V_LANE)}")
        k.I("v_lshlrev_b32 v14, 7, v14")
        k.I(f"s_and_b32 {s(S_T0)}, {s(S_J)}, 7")
        k.I(f"s_lshl_b32 {s(S_T0)}, {s(S_T0)}, 12")
        k.I(f"v_add_u32 v14, {s(S_T0)}, v14")
        k.I(f"buffer_load_dword v0, v14, {srd(S_WS)}, {s(S_T3)} offen", tag="t")
    NY0 = OPT.get('ny0', 20)
    for kap in range(NY0):
        for t, tg in ld_y(kap):
            k.I(t, tag=tg)

    def rd_w(kap, beta):
        B, a = kap >> 1, kap & 1
        P = B >> 1
        slot = (P % 5) * 2 + (B & 1)
        base = VTR[slot >> 2]
        return [(f"ds_read_b64_tr_b16 {a_(28*(kap&1) + 4*beta + 2*rd, 2)}, {v(base)} offset:{(slot & 3) * SLAB + (8*a + 4*rd)*224 + 32*beta}", f"w{kap}_{beta}") for rd in range(2)]

    ub_publish(k)
    for beta in range(7):
        for t, tg in rd_w(0, beta):
            k.I(t, tag=tg)
    side = []
    tail = []
    ST, AE, BE = 16, 32, 28
    for kap in range(32):
        P = kap >> 2
        if kap & 3 == 3 and P < 7:
            k.wait_vm(f"W{P+1}")
            if not OPT.get("x_nobar"):
                k.barrier()
            if 1 <= P <= 3 and not OPT.get("x_noring"):
                side += ring_pair(k, P + 4, as_list=True)
        if kap + NY0 < 32:
            side = ld_y(kap + NY0) + side
        if OPT["touch"] and kap == OPT.get("twdk", 24) and not OPT.get("map24"):
            side.append((f"s_lshl_b32 {s(S_T0)}, {s(S_I)}, 2", None))
            side.append((f"s_add_u32 {s(S_T0)}, {s(S_T0)}, {s(S_W)}", None))
            side.append((f"s_mul_i32 {s(S_T0)}, {s(S_T0)}, {112*128}", None))
            side.append((f"v_min_u32 v7, 55, {v(V_LANE)}", None))
            side.append(("v_lshlrev_b32 v7, 7, v7", None))
            side.append((f"buffer_load_dword v0, v7, {srd(S_WD)}, {s(S_T0)} offen", "t"))
            side.append((f"s_add_u32 {s(S_T0)}, {s(S_T0)}, {56*128}", None))
            side.append((f"buffer_load_dword v0, v7, {srd(S_WD)}, {s(S_T0)} offen", "t"))
        if kap == OPT.get('kst', 18):
            side.append((f"s_lshl_b32 {s(S_T0)}, {s(S_TB3)}, 12", None))
            side.append((f"s_add_u32 {s(S_T0)}, {s(S_T0)}, {WS_STATS}", None))
            side.append((f"v_and_b32 v14, 31, {v(V_LANE)}", None))
            side.append(("v_lshlrev_b32 v14, 3, v14", None))
            side.append((f"v_lshrrev_b32 v15, 5, {v(V_LANE)}", None))
            side.append(("v_lshl_add_u32 v14, v15, 11, v14", None))
            side.append((f"v_add_u32 v14, {s(S_T0)}, v14", None))
            for i in range(8):
                side.append((f"buffer_load_dwordx2 {v(ST+2*i,2)}, v14, {srd(S_WS)}, 0 offen offset:{i*256} sc1", "st"))
        if kap == OPT.get('kwx', 22):
            for t in (f"v_bfe_u32 v14, {v(V_LANE)}, 2, 1", "v_lshlrev_b32 v14, 3, v14", f"v_bfe_u32 v15, {v(V_LANE)}, 3, 1",
                      "v_lshl_add_u32 v14, v15, 2, v14", f"v_and_b32 v15, 3, {v(V_LANE)}", "v_add_u32 v14, v14, v15",
                      f"v_bfe_u32 v15, {v(V_LANE)}, 4, 1", "v_mul_u32_u24 v15, 1792, v15", "v_add_u32 v14, v14, v15",
                      f"s_mul_i32 {s(S_T0)}, {s(S_J)}, 112", f"v_add_u32 v14, {s(S_T0)}, v14", "v_lshlrev_b32 v14, 4, v14",
                      f"v_add_u32 v14, {WS_WEXT}, v14", f"v_add_u32 v15, {3584*16}, v14"):
                side.append((t, None))
            for h in range(2):
                for b in range(7):
                    side.append((f"buffer_load_dwordx4 {v(AE+28*h+4*b,4)}, {v(14+h)}, {srd(S_WS)}, 0 offen offset:{256*b} sc1", "wext"))
        if kap == OPT.get('kwd', 20):
            side += [(t, None) for t in wd_setup_items()]
        if kap == 23 and OPT.get("g0loop"):
            for it in wd_dma(0, WD_G1):
                side += it
        if kap == 26:
            tail = p3_tail(k, ST, AE, BE)
        k.wait_vm(f"y{kap}")
        if kap in (1, 8, 16, 24):
            k.stamp(f"p3 k{kap}")
        for beta in range(7):
            k.wait_lg(f"w{kap}_{beta}")
            k.mfma32(v(ACC + 16 * beta, 16), a_(28 * (kap & 1) + 4 * beta, 4), v(Y0 + 4 * kap, 4), "0" if kap == 0 else None)
            if kap + 1 < 32 and not OPT.get("x_notr"):
                for t, tg in rd_w(kap + 1, beta):
                    k.I(t, tag=tg)
            for _ in range(2):
                if tail:
                    it = tail.pop(0)
                    it() if callable(it) else k.I(it)
            nvm = 0
            while side and nvm < 1:
                t, tg = side.pop(0)
                k.I(t, tag=tg)
                if t.startswith("buffer_"):
                    nvm += 1
    for t, tg in side:
        k.I(t, tag=tg)
    assert not tail
    for h in range(2):
        for b in range(7):
            k.mfma32(v(ACC + 16 * b, 16), v(AE + 28 * h + 4 * b, 4), v(BE, 4))
    k.stamp("gate/up gemm")
    k.barrier()
    if OPT.get("wdshare"):
        wd_bases(k)
        k.I(f"s_mul_i32 {s(S_T0)}, {s(S_TB3)}, 112")
        k.I(f"s_mul_i32 {s(S_T1)}, {s(S_J)}, 7")
        k.I(f"s_add_u32 {s(S_T0)}, {s(S_T0)}, {s(S_T1)}")
        k.I(f"s_lshl_b32 {s(S_T0)}, {s(S_T0)}, 10")
        k.I(f"s_add_u32 {s(S_AO)}, {s(S_T0)}, {WS_ACT}")
        for b in range(7):
            G = ACC + 16 * b
            U = G + 8
            o = 96 + 4 * b
            for e in range(0, 8, 2):
                k.I(f"v_pk_mul_f32 {v(U+e,2)}, {v(U+e,2)}, v[20:21] op_sel_hi:[1,0]")
            for e in range(8):
                k.I(f"v_max_f32 {v(G+e)}, 0, {v(G+e)}")
            for e in range(0, 8, 2):
                k.I(f"v_pk_mul_f32 {v(G+e,2)}, {v(G+e,2)}, {v(U+e,2)}")
            for e in range(0, 8, 2):
                k.I(f"v_cvt_pk_bf16_f32 {v(o+e//2)}, {v(G+e)}, {v(G+e+1)}")
            k.I(f"buffer_store_dwordx4 {v(o,4)}, {v(V_L16)}, {srd(S_WS)}, {s(S_AO)} offen offset:{(b&3)*1024} sc1", tag="ast")
            if b == 3:
                k.I(f"s_add_u32 {s(S_AO)}, {s(S_AO)}, 4096")
        k.stamp("act stored")
        NPRE = OPT.get("wd_pre", 6)
        own = wd_dma(0, WD_G1)

        def share(n0, n1):
            for n in range(n0, n1):
                k.I(f"s_sub_u32 {s(S_T0)}, {s(S_W)}, 1")
                k.I(f"s_mul_i32 {s(S_T0)}, {s(S_T0)}, 13")
                k.I(f"s_add_u32 {s(S_T0)}, {s(S_T0)}, {n}")
                k.I(f"s_min_u32 {s(S_T0)}, {s(S_T0)}, 37")
                k.I(f"s_lshl_b32 {s(S_OFF)}, {s(S_T0)}, 13")
                k.I(f"s_lshl_b32 {s(S_T0)}, {s(S_T0)}, 10")
                k.I(f"s_add_u32 {s(S_T1)}, {s(S_T0)}, {WD_TOP}")
                k.I(f"s_sub_u32 m0, {s(S_T0)}, {18*1024}")
                k.I(f"s_cmp_lt_u32 {s(S_T0)}, {18*1024}")
                k.I(f"s_cselect_b32 m0, {s(S_T1)}, m0")
                k.I(f"buffer_load_dwordx4 v4, {srd(S_WD)}, {s(S_OFF)} offen lds")

        l0, l1 = k.newlabel("wdp"), k.newlabel("wdp")
        k.cond_begin()
        k.wave_is(0, l0)
        k.I("s_waitcnt vmcnt(0)")
        k.I(f"s_branch {l1}")
        k.label(l0)
        share(0, NPRE)
        k.I(f"s_waitcnt vmcnt({NPRE})")
        k.label(l1)
        k.cond_end()
        k.vmq = []
        k.I(f"s_lshl_b32 {s(S_T0)}, {s(S_M)}, 4")
        k.I(f"s_add_u32 {s(S_T0)}, {s(S_T0)}, {s(S_J)}")
        k.I(f"s_lshl_b32 {s(S_T0)}, {s(S_T0)}, 7")
        k.I(f"s_add_u32 {s(S_T0)}, {s(S_T0)}, {WS_FA}")
        k.signal(S_T0, "fa")
        k.stamp("act published")
        l0 = k.newlabel("wdq")
        k.I(f"s_cmp_eq_u32 {s(S_W)}, 0")
        k.I(f"s_cbranch_scc1 {l0}")
        k.cond_begin()
        share(NPRE, 13)
        for it in own:
            for t, tg in it:
                k.I(t, tag=tg)
        if OPT.get("g1pre", 1):
            for it in wd_dma(WD_G1, WD_G2):
                for t, tg in it:
                    k.I(t, tag=tg)
            k.I(f"s_waitcnt vmcnt({2*(WD_G2-WD_G1)})")
        else:
            k.I("s_waitcnt vmcnt(0)")
        k.cond_end()
        k.label(l0)
    else:
        wd_bases(k)
        dm = wd_dma(WD_G1, WD_G2) if OPT.get("g0loop") else wd_dma(0, WD_G2)
        k.I(f"s_mul_i32 {s(S_T0)}, {s(S_TB3)}, 112")
        k.I(f"s_mul_i32 {s(S_T1)}, {s(S_J)}, 7")
        k.I(f"s_add_u32 {s(S_T0)}, {s(S_T0)}, {s(S_T1)}")
        k.I(f"s_lshl_b32 {s(S_T0)}, {s(S_T0)}, 10")
        k.I(f"s_add_u32 {s(S_AO)}, {s(S_T0)}, {WS_ACT}")

        def dma_some(n):
            for _ in range(n):
                for t, tg in dm.pop(0):
                    k.I(t, tag=tg)

        for b in range(7):
            G = ACC + 16 * b
            U = G + 8
            o = 96 + 4 * b
            for e in range(0, 8, 2):
                k.I(f"v_pk_mul_f32 {v(U+e,2)}, {v(U+e,2)}, v[20:21] op_sel_hi:[1,0]")
            for e in range(8):
                k.I(f"v_max_f32 {v(G+e)}, 0, {v(G+e)}")
            for e in range(0, 8, 2):
                k.I(f"v_pk_mul_f32 {v(G+e,2)}, {v(G+e,2)}, {v(U+e,2)}")
            for e in range(0, 8, 2):
                k.I(f"v_cvt_pk_bf16_f32 {v(o+e//2)}, {v(G+e)}, {v(G+e+1)}")
            k.I(f"buffer_store_dwordx4 {v(o,4)}, {v(V_L16)}, {srd(S_WS)}, {s(S_AO)} offen offset:{(b&3)*1024} sc1", tag="ast")
            if b == 3:
                k.I(f"s_add_u32 {s(S_AO)}, {s(S_AO)}, 4096")
            if b < 6:
                dma_some(OPT.get("wd_mix", 2))
        k.stamp("act stored")
        dma_some(OPT.get("wd_pre", 8))

        def g0_reads():
            k.wait_vm(f"wd{WD_G1-1}")
            for kl in range(WD_G1):
                for t, tg in wd_reads(kl):
                    k.I(t, tag=tg)
                if kl % 2 == 1:
                    k.I("s_waitcnt lgkmcnt(4)")
        k.wait_vm("ast")
        k.I(f"s_lshl_b32 {s(S_T0)}, {s(S_M)}, 4")
        k.I(f"s_add_u32 {s(S_T0)}, {s(S_T0)}, {s(S_J)}")
        k.I(f"s_lshl_b32 {s(S_T0)}, {s(S_T0)}, 7")
        k.I(f"s_add_u32 {s(S_T0)}, {s(S_T0)}, {WS_FA}")
        k.signal(S_T0, "fa")
        k.stamp("act published")
        dma_some(len(dm))
        g0_reads()
        k.wait_lg_all()
        k.stamp("wf0 read")


S_AO = 91


S_WDB, S_WDT = 90, 12
S_WDO = 3
WD_TOP = 87552
WD_G1, WD_G2 = 9, 19
V_WD = 4
V_WB, V_WT = 5, 10


def wd_setup_items():
    return [f"s_and_b32 {s(S_T0)}, {s(S_J2)}, 7", f"s_lshl_b32 {s(S_T0)}, {s(S_T0)}, 7",
            f"v_lshrrev_b32 v4, 3, {v(V_LANE)}", "v_lshlrev_b32 v4, 10, v4", f"v_and_b32 v5, 7, {v(V_LANE)}",
            f"v_bfe_u32 v6, {v(V_LANE)}, 4, 1", "v_lshlrev_b32 v6, 2, v6", "v_xor_b32 v5, v5, v6",
            "v_lshl_add_u32 v4, v5, 4, v4", f"v_add_u32 v4, {s(S_T0)}, v4",
            f"s_mul_i32 {s(S_WDB)}, {s(S_W)}, 20480", f"s_mul_i32 {s(S_WDT)}, {s(S_W)}, 18432",
            f"s_add_u32 {s(S_WDT)}, {s(S_WDT)}, {WD_TOP}", f"s_mul_i32 {s(S_WDO)}, {s(S_W)}, {448*1024}"]


def wd_bases(k):
    swz128_base(k, 5, cbk_imm=0, s_mul=8)
    k.I(f"v_add_u32 v10, {s(S_WDT)}, v5")
    k.I("v_xor_b32 v11, 64, v10")
    k.I(f"v_add_u32 v5, {s(S_WDB)}, v5")
    k.I("v_xor_b32 v6, 64, v5")


def wd_slot(kl):
    if kl < WD_G1:
        return S_WDT, V_WT, kl * 2048
    if kl < WD_G2:
        return S_WDB, V_WB, (kl - WD_G1) * 2048
    return S_WDT, V_WT, (kl - WD_G2) * 2048


def wd_dma(k0, k1):
    out = []
    for kl in range(k0, k1):
        sb, _, off = wd_slot(kl)
        for h in range(2):
            out.append([(f"s_add_u32 {s(S_OFF)}, {s(S_WDO)}, {(16*kl + 8*h)*1024}", None),
                        (f"s_add_u32 m0, {s(sb)}, {off + h*1024}", None),
                        (f"buffer_load_dwordx4 v4, {srd(S_WD)}, {s(S_OFF)} offen lds", f"wd{kl}")])
    return out


def wd_reads(kl):
    _, vb, off = wd_slot(kl)
    return [(f"ds_read_b64_tr_b16 {a_((2*kl + cbk)*4 + 2*rd, 2)}, {v(vb+cbk)} offset:{off + rd*512}", f"wf{kl}")
            for cbk in range(2) for rd in range(2)]


def p4(k):
    GB = 176
    k.I(f"v_lshrrev_b32 v8, 5, {v(V_LANE)}")
    k.I("v_lshlrev_b32 v8, 6, v8")
    k.I(f"s_lshl_b32 {s(S_T0)}, {s(S_B32)}, 7")
    k.I(f"s_add_u32 {s(S_T0)}, {s(S_T0)}, {WS_MODG + 1280*8}")
    k.I(f"v_add_u32 v8, {s(S_T0)}, v8")
    greg = [GB + 4 * i for i in range(4)]
    if not OPT.get("wdshare"):
        for it in wd_dma(WD_G2, 28):
            for t, tg in it:
                k.I(t, tag=tg)
    k.I(f"s_lshl_b32 {s(S_T0)}, {s(S_M2)}, 11")
    k.I(f"s_add_u32 {s(S_T0)}, {s(S_T0)}, {WS_FA}")
    k.poll_flags(S_T0, 16, "pa")
    k.stamp("act flags seen")
    k.I(f"s_sub_u32 {s(S_T0)}, {s(S_TB)}, {s(S_TBL)}")
    k.I(f"s_mul_i32 {s(S_T0)}, {s(S_T0)}, {112*1024}")
    k.I(f"s_mul_i32 {s(S_T1)}, {s(S_W)}, {28*1024}")
    k.I(f"s_add_u32 {s(S_T0)}, {s(S_T0)}, {s(S_T1)}")
    S_A0, S_A1 = S_T3, S_T4
    k.I(f"s_add_u32 {s(S_A0)}, {s(S_T0)}, {WS_ACT}")
    k.I(f"s_add_u32 {s(S_A1)}, {s(S_A0)}, {112*1024}")
    NB = OPT.get("nb4", 12)
    AB = 16
    ACC = 192

    def ld(kl):
        out = []
        for tbl in range(2):
            r = AB + 8 * (kl % NB) + 4 * tbl
            out.append((f"buffer_load_dwordx4 {v(r,4)}, {v(V_L16)}, {srd(S_WS)}, {s(S_A0 + tbl)} offen offset:{(kl&3)*1024} sc1", f"a{kl}"))
        if kl & 3 == 3:
            out.append((f"s_add_u32 {s(S_A0)}, {s(S_A0)}, 4096", None))
            out.append((f"s_add_u32 {s(S_A1)}, {s(S_A1)}, 4096", None))
        return out

    for kl in range(NB):
        for t, tg in ld(kl):
            k.I(t, tag=tg)
    g2 = []
    if OPT.get("wdshare"):
        if not OPT.get("g1pre", 1):
            l0 = k.newlabel("wdr")
            k.I(f"s_cmp_eq_u32 {s(S_W)}, 0")
            k.I(f"s_cbranch_scc1 {l0}")
            k.cond_begin()
            for it in wd_dma(WD_G1, WD_G2):
                for t, tg in it:
                    k.I(t, tag=tg)
            k.cond_end()
            k.label(l0)
        for kl in range(WD_G1):
            for t, tg in wd_reads(kl):
                k.I(t, tag=tg)
            if kl % 2 == 1:
                k.I("s_waitcnt lgkmcnt(4)")
        k.wait_lg_all()
        k.stamp("wf0 read")
        g2 = wd_dma(WD_G2, 28)
    k.granule_loads(greg, [8] * 4, 4, [0, 16, 32, 48], "gb")
    GBF, X1F = 112, 128
    pre = [lambda: k.granule_verify(greg, [8] * 4, "gb", 4, (1, 3), [0, 16, 32, 48], "gb")]
    for i in range(8):
        g = GB + 4 * (i >> 1) + 2 * (i & 1)
        pre += [f"v_lshlrev_b32 {v(GBF+2*i)}, 16, {v(g)}", f"v_and_b32 {v(GBF+2*i+1)}, {s(S_MASK)}, {v(g)}",
                f"v_accvgpr_read_b32 v144, {a_(248+i)}", f"v_lshlrev_b32 {v(X1F+2*i)}, 16, v144", f"v_and_b32 {v(X1F+2*i+1)}, {s(S_MASK)}, v144"]
    for kl in range(28):
        k.wait_vm(f"a{kl}")
        if kl in (1, 7, 14, 21):
            k.stamp(f"p4 k{kl}")
        rds = wd_reads(kl + 3) if WD_G1 <= kl + 3 < 28 else []
        if kl >= WD_G1:
            k.wait_lg(f"wf{kl}")
        nxt = ld(kl + NB) if kl + NB < 28 else []
        if OPT.get("wdshare"):
            if kl + 3 == WD_G1 and not OPT.get("g1pre", 1):
                k.wait_vm("gb")
            if kl + 3 == WD_G2:
                k.wait_vm("wd27")
            for _ in range(OPT.get("g2rate", 4)):
                if g2:
                    for t, tg in g2.pop(0):
                        k.I(t, tag=tg)
        for tbl in range(2):
            for cbk in range(2):
                r = AB + 8 * (kl % NB) + 4 * tbl
                k.mfma32(v(ACC + 16 * (2 * cbk + tbl), 16), a_((2 * kl + cbk) * 4, 4), v(r, 4), "0" if kl == 0 else None)
                if rds:
                    t, tg = rds.pop(0)
                    k.I(t, tag=tg)
                if tbl == 1 and nxt:
                    t, tg = nxt.pop(0)
                    k.I(t, tag=tg)
                if kl >= 10 and pre:
                    it = pre.pop(0)
                    it() if callable(it) else k.I(it)
        for t, tg in nxt:
            k.I(t, tag=tg)
    assert not pre
    k.stamp("down gemm")
    k.wait_lg_all()
    k.barrier()
    k.I(f"s_lshl_b32 {s(S_T0)}, {s(S_W)}, 12")
    k.I(f"v_add_u32 v8, {s(S_T0)}, {v(V_L16)}")
    k.I(f"v_add_u32 v9, 32768, v8")
    for q in range(4):
        sk = k.newlabel("r4w")
        k.I(f"s_cmp_eq_u32 {s(S_W)}, {q}")
        k.I(f"s_cbranch_scc1 {sk}")
        k.cond_begin()
        for i in range(4):
            base = 8 if q < 2 else 9
            k.I(f"ds_write_b128 {v(base)}, {v(ACC+16*q+4*i,4)} offset:{(q&1)*16384 + i*1024}")
        k.cond_end()
        k.label(sk)
    k.wait_lg_all()
    k.barrier()
    k.I(f"s_lshl_b32 {s(S_T0)}, {s(S_W)}, 14")
    k.I(f"v_add_u32 v8, {s(S_T0)}, {v(V_L16)}")
    for d in range(1, 4):
        k.I(f"s_add_u32 {s(S_T1)}, {s(S_W)}, {d}")
        k.I(f"s_and_b32 {s(S_T1)}, {s(S_T1)}, 3")
        k.I(f"s_lshl_b32 {s(S_T1)}, {s(S_T1)}, 12")
        k.I(f"v_add_u32 v9, {s(S_T1)}, v8")
        for i in range(4):
            k.I(f"ds_read_b128 {v(32+16*(d-1)+4*i,4)}, v9 offset:{i*1024}")
    for q in range(4):
        sk = k.newlabel("r4m")
        k.I(f"s_cmp_eq_u32 {s(S_W)}, {q}")
        k.I(f"s_cbranch_scc0 {sk}")
        for i in range(0, 16, 2):
            k.I(f"v_pk_mul_f32 {v(16+i,2)}, {v(ACC+16*q+i,2)}, 1.0 op_sel_hi:[1,0]")
        k.label(sk)
    k.wait_lg_all()
    for d in range(3):
        for i in range(0, 16, 2):
            k.I(f"v_pk_add_f32 {v(16+i,2)}, {v(16+i,2)}, {v(32+16*d+i,2)}")
    for i in range(16):
        k.I(f"v_fmac_f32 {v(X1F+i)}, {v(GBF+i)}, {v(16+i)}")
    for i in range(8):
        k.I(f"v_cvt_pk_bf16_f32 {v(88+i)}, {v(X1F+2*i)}, {v(X1F+2*i+1)}")
    k.I(f"v_and_b32 v8, 31, {v(V_LANE)}")
    k.I("v_lshlrev_b32 v8, 10, v8")
    k.I(f"v_lshrrev_b32 v9, 5, {v(V_LANE)}")
    k.I("v_lshl_add_u32 v8, v9, 5, v8")
    k.I(f"s_lshl_b32 {s(S_T0)}, {s(S_TB)}, 15")
    k.I(f"s_lshl_b32 {s(S_T1)}, {s(S_B32)}, 6")
    k.I(f"s_add_u32 {s(S_T0)}, {s(S_T0)}, {s(S_T1)}")
    k.I(f"v_add_u32 v8, {s(S_T0)}, v8")
    fl = {0: "", 1: " sc1", 2: " nt", 3: " sc0 sc1"}[OPT.get("outst", 0)]
    k.I(f"buffer_store_dwordx4 v[88:91], v8, {srd(S_OUT)}, 0 offen{fl}")
    k.I(f"buffer_store_dwordx4 v[92:95], v8, {srd(S_OUT)}, 0 offen offset:16{fl}")
    k.stamp("out stored")


def finish(k):
    if k.diag == "dbg":
        sk = k.newlabel("fin")
        k.wave_is(0, sk)
        k.I("s_load_dwordx2 s[92:93], s[0:1], 88")
        k.I("s_waitcnt lgkmcnt(0)")
        k.I("s_mov_b32 s94, 256")
        k.I("s_mov_b32 s95, 0x20000")
        k.I("s_mov_b64 exec, 1")
        sel = k.dbg_sel
        for slot, i in enumerate(sel):
            k.I(f"v_mov_b32 v9, {s(S_STAMP+i)}")
            if slot == 0:
                k.I("v_not_b32 v9, v9")
            k.I(f"v_mov_b32 v8, {4*slot}")
            k.I(f"buffer_atomic_umax v9, v8, s[92:95], 0 offen")
        k.label(sk)
    elif k.diag:
        sk = k.newlabel("fin")
        k.wave_is(0, sk)
        k.I(f"s_lshl_b32 {s(S_T0)}, s2, 7")
        k.I(f"s_add_u32 {s(S_T0)}, {s(S_T0)}, {WS_STAMP}")
        k.I(f"v_mov_b32 v8, {s(S_T0)}")
        k.I("s_mov_b64 exec, 1")
        for i in range(k.nstamp):
            k.I(f"v_mov_b32 v9, {s(S_STAMP+i)}")
            k.I(f"buffer_store_dword v9, v8, {srd(S_WS)}, 0 offen offset:{4*i}")
        k.label(sk)
    k.label("L_end")
    k.I("s_endpgm")


def build(diag=False, stop=None):
    k = K(diag, stop)
    phases = [prologue, start_phase, p1_prologue, p1_main, p1_epilogue,
              kv_combine_and_o, p2, p3, p4]
    for ph in phases:
        k.comment(f"======== {ph.__name__} ========")
        ph(k)
        if stop == ph.__name__:
            break
    k.dbg_sel = list(range(min(k.nstamp, 16)))
    if k.nstamp > 16:
        k.dbg_sel = [0, 1, 3, 4, 5, 7, 8, 9, 10, 11, 12, 13, 14, 15, 16, 17][:16]
    finish(k)
    hdr = open("cdna_kernels/" + NAME + ".s.ref").read().split("; Override launch geometry")[0]
    txt = hdr
    txt += f"; @launch grid=(256,1,1) block=(256,1,1) lds={LDS_BYTES}\n"
    txt += '.amdgcn_target "amdgcn-amd-amdhsa--gfx950"\n.text\n'
    txt += f".globl {NAME}_kernel\n.p2align 8\n.type {NAME}_kernel,@function\n{NAME}_kernel:\n"
    txt += k.text()
    txt += f""".section .rodata,"a"
.p2align 6
.amdhsa_kernel {NAME}_kernel
  .amdhsa_next_free_vgpr 512
  .amdhsa_next_free_sgpr 102
  .amdhsa_accum_offset 256
  .amdhsa_group_segment_fixed_size 0
  .amdhsa_kernarg_size 104
  .amdhsa_user_sgpr_count 2
  .amdhsa_user_sgpr_kernarg_segment_ptr 1
  .amdhsa_system_sgpr_workgroup_id_x 1
.end_amdhsa_kernel
"""
    return txt, k


if __name__ == "__main__":
    out = sys.argv[1] if len(sys.argv) > 1 else "k.s"
    for a in sys.argv:
        if a.startswith("--opt="):
            for kv in a[6:].split(","):
                kk, vv = kv.split("=")
                OPT[kk] = int(vv)
    diag = "--diag" in sys.argv
    if "--dbg" in sys.argv:
        diag = "dbg"
    stop = None
    for a in sys.argv:
        if a.startswith("--stop="):
            stop = a.split("=")[1]
    txt, k = build(diag, stop)
    open(out, "w").write(txt)
    if OPT.get("tmo"):
        open(out + ".tmo", "w").write("\n".join(k.tmo_names) + "\n")
    if diag:
        open(out + ".stamps", "w").write("\n".join(k.stamp_names) + "\n")
    print(f"wrote {out}: {len(txt)} bytes, {sum(1 for l in k.out if l.startswith(chr(9)))} instructions, {k.nops} hazard nops")
```

```python
import sys
from asmlib import Asm

NAME = "adaLN_cond__linear_kernel_hedgehog__glu_gated_reglu__prompt"

WS_E = 0
WS_MODG = 0x1000
WS_FKV = 0x4000
WS_FO = 0xC000
WS_FY = 0x14000
WS_FA = 0x1C000
WS_STAMP = 0x30000
WS_WEXT = 0x40000
WS_STATS = 0x80000
WS_MODC = 0x60000
WS_KVP = 0x100000
WS_O = 0x200000
WS_Y = 0x400000
WS_ACT = 0x800000

L_XI = 0
L_WI = 0
L_WM = 131072
L_S = 158720
L_RT = 159744
L_WMN = 114688
L_KVI = 0
L_QI = 65536
L_GP = 148480
L_CT = 139264
L_PHI = 153600
L_ZERO = 154624
L_RED = 0
L_KVF = 149504
L_Z = 151552
L_UB = 145920
L_CS = 162304
L_WO = 0
L_OI = 98304
SLAB = 14592
UOFF = 7296
LDS_BYTES = 163840

S_X, S_WQKV, S_WPHI, S_WO, S_WG, S_WU, S_WD, S_C, S_WMOD, S_OUT, S_WS = 4, 8, 12, 16, 20, 24, 28, 32, 36, 40, 44
S_XCD, S_I, S_M, S_J, S_W, S_TAG, S_MASK = 48, 49, 50, 51, 52, 53, 54
S_T0, S_T1, S_T2, S_T3, S_T4 = 55, 56, 57, 58, 59
S_CLK = 60
S_L2E = 62
S_SPIN = 64
S_OFF = 65
S_VALID = 66
S_EX = 68
S_M2, S_J2 = 70, 71
S_STAMP = 72
S_SEL = 92
S_HP = S_J

LOG2E = 0x3FB8AA3B
SPIN_MAX = 200000


def srd(i):
    return f"s[{i}:{i+3}]"


def v(i, n=1):
    return f"v{i}" if n == 1 else f"v[{i}:{i+n-1}]"


def a_(i, n=1):
    return f"a{i}" if n == 1 else f"a[{i}:{i+n-1}]"


def s(i, n=1):
    return f"s{i}" if n == 1 else f"s[{i}:{i+n-1}]"


V_LANE, V_L16, V_TAG = 1, 2, 3
V_DUMMY = 15
OPT = dict(wd_mix=0, ring_a0=6, ny0=14, nb4=7, qstats=0, tloop=0, qloop=2, xunroll=11, codepf=1, touch=1, tw0=1, mall=0, nt_wm=1, tmn_nt=0, ktail=21, tailrate=1, kst=14, kwx=18, kwd=22, twdk=20)


import os
STAMPS = os.environ.get('STAMPS', 'start,wmod landed,x in regs,mod arrived,P1 ready,p1 main,kv published,q softmax,kv flags seen,o published,o flags seen,wo gemm,y published,y flags seen,gate/up gemm,act published,act flags seen,out stored').split(',')


class K(Asm):
    def __init__(self, diag=False, stop=None):
        super().__init__()
        self.diag = diag
        self.stop = stop
        self.nstamp = 0

    def stamp(self, name, cyc=False):
        if not self.diag:
            return
        if STAMPS is not None and name not in STAMPS:
            return
        if cyc:
            self.wait_lg_all()
            self.I(f"s_memtime {s(S_CLK, 2)}")
            self.I("s_waitcnt lgkmcnt(0)")
            self.I(f"s_mov_b32 {s(S_STAMP + self.nstamp)}, {s(S_CLK)}")
            self.stamp_names = getattr(self, "stamp_names", []) + [name + " (cyc)"]
            self.nstamp += 1
            return
        self.wait_lg_all()
        self.I(f"s_memrealtime {s(S_CLK, 2)}")
        self.I("s_waitcnt lgkmcnt(0)")
        self.I(f"s_mov_b32 {s(S_STAMP + self.nstamp)}, {s(S_CLK)}")
        self.stamp_names = getattr(self, "stamp_names", []) + [name]
        self.nstamp += 1
        assert self.nstamp <= 18, self.stamp_names

    def wave_is(self, w, label_else):
        self.I(f"s_cmp_eq_u32 {s(S_W)}, {w}")
        self.I(f"s_cbranch_scc0 {label_else}")

    def mfma32(self, d, a, b, c=None):
        c = d if c is None else c
        self.I(f"v_mfma_f32_32x32x16_bf16 {d}, {a}, {b}, {c}")

    def test_delay(self, which):
        if OPT.get("x_delay") != which:
            return
        l = self.newlabel("dly")
        d = self.newlabel("dly_done")
        self.I("s_and_b32 s55, s2, 31")
        self.I("s_cmp_eq_u32 s55, 5")
        self.I(f"s_cbranch_scc0 {d}")
        self.I("s_mov_b32 s55, 200")
        self.label(l)
        self.I("s_sleep 8")
        self.I("s_sub_u32 s55, s55, 1")
        self.I("s_cmp_lg_u32 s55, 0")
        self.I(f"s_cbranch_scc1 {l}")
        self.label(d)

    def spin_init(self):
        self.I(f"s_mov_b32 {s(S_SPIN)}, {SPIN_MAX}")

    def spin_back(self, loop, done):
        self.I(f"s_cbranch_vccz {done}")
        self.I(f"s_sub_u32 {s(S_SPIN)}, {s(S_SPIN)}, 1")
        self.I(f"s_cmp_lg_u32 {s(S_SPIN)}, 0")
        self.I(f"s_cbranch_scc1 {loop}")
        if OPT.get("tmo"):
            self.ntmo = getattr(self, "ntmo", 0) + 1
            self.tmo_names = getattr(self, "tmo_names", []) + [loop]
            self.I(f"s_lshl_b32 {s(S_EX)}, s2, 2")
            self.I(f"s_add_u32 {s(S_EX)}, {s(S_EX)}, {s(S_W)}")
            self.I(f"s_lshl_b32 {s(S_EX)}, {s(S_EX)}, 6")
            self.I(f"s_add_u32 {s(S_EX)}, {s(S_EX)}, {0x70000 + 4*self.ntmo}")
            self.I(f"v_mov_b32 v250, {s(S_EX)}")
            self.I(f"s_mov_b32 {s(S_EX)}, vcc_lo")
            self.I(f"v_mov_b32 v251, {s(S_EX)}")
            self.I(f"buffer_store_dword v251, v250, {srd(S_WS)}, 0 offen sc1")

    def unpack(self, lo, hi, src):
        self.I(f"v_lshlrev_b32 {v(lo)}, 16, {v(src)}")
        self.I(f"v_and_b32 {v(hi)}, {s(S_MASK)}, {v(src)}")

    def half_total(self, r, tmp):
        self.I(f"v_mov_b32 {v(tmp)}, {v(r)}")
        self.I(f"v_permlane32_swap_b32 {v(r)}, {v(tmp)}")
        self.I(f"v_add_f32 {v(r)}, {v(r)}, {v(tmp)}")

    def dma(self, voff, rsrc, soff, sc1=False):
        nt = " nt" if OPT.get("nt_" + str(self._tag)) else ""
        self.I(f"buffer_load_dwordx4 {v(voff)}, {srd(rsrc)}, {soff} offen{' sc1' if sc1 else ''}{nt} lds", tag=self._tag)

    _tag = None

    def touch(self, rsrc, voff, soff, tag="t", dst=None):
        nt = " nt" if OPT.get("nt_t") else ""
        self.I(f"buffer_load_dword {v(V_DUMMY if dst is None else dst)}, {v(voff)}, {srd(rsrc)}, {soff} offen{nt}", tag=tag)

    def poll_flags(self, base_sreg, n, stem, tmp=14):
        done = self.newlabel(stem + "_skip")
        loop = self.newlabel(stem + "_loop")
        ok = self.newlabel(stem + "_ok")
        self.wave_is(0, done)
        self.cond_begin()
        self.I(f"v_min_u32 {v(tmp)}, {n-1}, {v(V_LANE)}")
        self.I(f"v_lshlrev_b32 {v(tmp)}, 7, {v(tmp)}")
        self.I(f"v_add_u32 {v(tmp)}, {s(base_sreg)}, {v(tmp)}")
        self.spin_init()
        if OPT.get("poll2"):
            alt = OPT.get("poll2_reg", 0)
            self.I(f"buffer_load_dword {v(tmp+1)}, {v(tmp)}, {srd(S_WS)}, 0 offen sc1")
            self.label(loop)
            self.I("s_nop 15")
            self.I("s_nop 15")
            self.I(f"buffer_load_dword {v(alt)}, {v(tmp)}, {srd(S_WS)}, 0 offen sc1")
            self.I("s_waitcnt vmcnt(1)")
            self.I(f"v_cmp_ne_u32 vcc, {s(S_TAG)}, {v(tmp+1)}")
            self.I(f"s_cbranch_vccz {ok}")
            self.I(f"buffer_load_dword {v(tmp+1)}, {v(tmp)}, {srd(S_WS)}, 0 offen sc1")
            self.I("s_waitcnt vmcnt(1)")
            self.I(f"v_cmp_ne_u32 vcc, {s(S_TAG)}, {v(alt)}")
            self.spin_back(loop, ok)
            self.label(ok + "_w")
        else:
            self.label(loop)
            self.I(f"buffer_load_dword {v(tmp+1)}, {v(tmp)}, {srd(S_WS)}, 0 offen sc1")
            self.I("s_waitcnt vmcnt(0)")
            self.I(f"v_cmp_ne_u32 vcc, {s(S_TAG)}, {v(tmp+1)}")
            self.spin_back(loop, ok)
        self.label(ok)
        if OPT.get("poll2"):
            self.I("s_waitcnt vmcnt(0)")
        self.cond_end()
        self.label(done)
        self.barrier()

    def signal(self, off_sreg, stem, tmp=14):
        self.barrier()
        done = self.newlabel(stem + "_sig")
        self.wave_is(0, done)
        self.cond_begin()
        self.I(f"v_mov_b32 {v(tmp)}, {s(off_sreg)}")
        self.I(f"s_mov_b64 exec, 1")
        self.I(f"buffer_store_dword {v(V_TAG)}, {v(tmp)}, {srd(S_WS)}, 0 offen sc1")
        self.I(f"s_mov_b64 exec, -1")
        self.cond_end()
        self.label(done)

    def granule_loads(self, regs, addr_regs, width, imm, tag):
        sfx = {2: "dwordx2", 4: "dwordx4"}[width]
        for i, (r, ad) in enumerate(zip(regs, addr_regs)):
            off = imm[i] if imm else 0
            self.I(f"buffer_load_{sfx} {v(r, width)}, {v(ad)}, {srd(S_WS)}, 0 offen offset:{off} sc1", tag=tag)

    def granule_verify(self, regs, addr_regs, stem, width, tagpos, imm, tag):
        loop = self.newlabel(stem + "_loop")
        chk = self.newlabel(stem + "_chk")
        ok = self.newlabel(stem + "_ok")
        self.spin_init()
        if self.cond:
            self.I("s_waitcnt vmcnt(0)")
        else:
            self.wait_vm(tag)
        self.I(f"s_branch {chk}")
        self.label(loop)
        self.cond_begin()
        self.granule_loads(regs, addr_regs, width, imm, None)
        self.I("s_waitcnt vmcnt(0)")
        self.cond_end()
        self.label(chk)
        first = True
        for r in regs:
            for tp in tagpos:
                if first:
                    self.I(f"v_cmp_ne_u32 vcc, {s(S_TAG)}, {v(r+tp)}")
                    first = False
                else:
                    self.I(f"v_cmp_ne_u32 {s(S_EX, 2)}, {s(S_TAG)}, {v(r+tp)}")
                    self.I(f"s_or_b64 vcc, vcc, {s(S_EX, 2)}")
        self.spin_back(loop, ok)
        self.label(ok)

    def load_granules_checked(self, regs, addr_regs, stem, width=2, tagpos=(1,), imm=None):
        self.granule_loads(regs, addr_regs, width, imm, stem)
        self.granule_verify(regs, addr_regs, stem, width, tagpos, imm, stem)


S_CODE = 0


def code_touch(k, wave, dst, t=(8, 9)):
    if not OPT.get("codepf"):
        return
    sk = k.newlabel("cpf")
    k.wave_is(wave, sk)
    k.cond_begin()
    a0, a1 = t
    k.I(f"v_min_u32 {v(a0)}, 11, {v(V_LANE)}")
    k.I(f"v_lshlrev_b32 {v(a0)}, 7, {v(a0)}")
    k.I(f"v_min_u32 {v(a0)}, {s(S_CODN)}, {v(a0)}")
    k.I(f"v_mov_b32 {v(a1)}, {s(S_CODE+1)}")
    k.I(f"v_add_co_u32 {v(a0)}, vcc, {s(S_CODE)}, {v(a0)}")
    k.I(f"v_addc_co_u32 {v(a1)}, vcc, 0, {v(a1)}, vcc")
    k.I(f"global_load_dword {v(dst)}, v[{a0}:{a1}], off")
    k.cond_end()
    k.label(sk)


S_CODN = 101


def prologue(k):
    if k.diag and "entry" in STAMPS:
        k.I("s_memrealtime s[96:97]")
    k.I("s_cmp_ge_u32 s2, 256")
    k.I("s_cbranch_scc1 L_end")
    k.I("s_load_dwordx16 s[64:79], s[0:1], 0")
    k.I("s_load_dwordx8 s[80:87], s[0:1], 64")
    k.I("s_load_dwordx2 s[88:89], s[0:1], 96")
    if OPT.get("codepf"):
        k.I("s_getpc_b64 s[90:91]")
        k.label("L_pc")
        k.I(f"s_mov_b32 {s(S_T1)}, L_end-L_pc")
        k.I(f"s_lshr_b32 {s(S_T1)}, {s(S_T1)}, 7")
        k.I(f"s_sub_u32 {s(S_T1)}, {s(S_T1)}, 1")
        k.I(f"s_lshr_b32 {s(S_T0)}, s2, 3")
        k.I(f"s_mul_i32 {s(S_T0)}, {s(S_T0)}, 12")
        k.I(f"s_min_u32 {s(S_T0)}, {s(S_T0)}, {s(S_T1)}")
        k.I(f"s_sub_u32 {s(S_CODN)}, {s(S_T1)}, {s(S_T0)}")
        k.I(f"s_lshl_b32 {s(S_CODN)}, {s(S_CODN)}, 7")
        k.I(f"s_lshl_b32 {s(S_T0)}, {s(S_T0)}, 7")
        k.I(f"s_add_u32 s90, s90, {s(S_T0)}")
        k.I("s_addc_u32 s91, s91, 0")
        k.I("v_min_u32 v8, 11, v0")
        k.I("v_lshlrev_b32 v8, 7, v8")
        k.I(f"v_min_u32 v8, {s(S_CODN)}, v8")
        k.I("v_mov_b32 v9, s91")
        k.I("v_add_co_u32 v8, vcc, s90, v8")
        k.I("v_addc_co_u32 v9, vcc, 0, v9, vcc")
        k.I("global_load_dword v177, v[8:9], off", tag="cp")
    k.I(f"v_and_b32 {v(V_LANE)}, 63, v0")
    k.I("v_lshrrev_b32 v4, 6, v0")
    k.I(f"v_lshlrev_b32 {v(V_L16)}, 4, {v(V_LANE)}")
    k.I(f"v_readfirstlane_b32 {s(S_W)}, v4")
    k.I(f"s_and_b32 {s(S_XCD)}, s2, 7")
    k.I(f"s_lshr_b32 {s(S_I)}, s2, 3")
    k.I(f"s_lshr_b32 {s(S_T0)}, {s(S_XCD)}, 1")
    k.I(f"s_lshl_b32 {s(S_T0)}, {s(S_T0)}, 2")
    k.I(f"s_lshr_b32 {s(S_T1)}, {s(S_I)}, 3")
    k.I(f"s_add_u32 {s(S_M)}, {s(S_T0)}, {s(S_T1)}")
    k.I(f"s_and_b32 {s(S_T0)}, {s(S_XCD)}, 1")
    k.I(f"s_lshl_b32 {s(S_T0)}, {s(S_T0)}, 3")
    k.I(f"s_and_b32 {s(S_T1)}, {s(S_I)}, 7")
    k.I(f"s_add_u32 {s(S_J)}, {s(S_T0)}, {s(S_T1)}")
    k.I(f"s_mov_b32 {s(S_MASK)}, 0xffff0000")
    k.I(f"s_mov_b32 {s(S_L2E)}, {LOG2E:#x}")
    k.I(f"s_mov_b32 {s(S_L2E+1)}, {LOG2E:#x}")
    k.I("s_waitcnt lgkmcnt(0)")
    if OPT.get("codepf"):
        k.I(f"s_mov_b32 {s(S_CODE)}, s90")
        k.I(f"s_mov_b32 {s(S_CODE+1)}, s91")
    bufs = [(S_X, 64, 2097152), (S_WQKV, 66, 1572864), (S_WPHI, 68, 16384), (S_WO, 70, 524288),
            (S_WG, 74, 1835008), (S_WU, 76, 1835008), (S_WD, 78, 1835008), (S_C, 80, 1024),
            (S_WMOD, 82, 3145728), (S_OUT, 84, 2097152), (S_WS, 88, 268435456)]
    for r, p, n in bufs:
        k.I(f"s_mov_b32 {s(r)}, {s(p)}")
        k.I(f"s_mov_b32 {s(r+1)}, {s(p+1)}")
        k.I(f"s_mov_b32 {s(r+2)}, {n}")
        k.I(f"s_mov_b32 {s(r+3)}, 0x20000")
    if OPT.get("map24"):
        k.I(f"s_mov_b32 {s(S_M2)}, {s(S_M)}")
        k.I(f"s_bfe_u32 {s(S_T0)}, {s(S_I)}, {(1 << 16) | 2}")
        k.I(f"s_lshl_b32 {s(S_J2)}, {s(S_T0)}, 3")
        k.I(f"s_and_b32 {s(S_T0)}, {s(S_XCD)}, 1")
        k.I(f"s_lshl_b32 {s(S_T0)}, {s(S_T0)}, 2")
        k.I(f"s_add_u32 {s(S_J2)}, {s(S_J2)}, {s(S_T0)}")
        k.I(f"s_and_b32 {s(S_T0)}, {s(S_I)}, 3")
        k.I(f"s_add_u32 {s(S_J2)}, {s(S_J2)}, {s(S_T0)}")
    else:
        k.I(f"s_lshr_b32 {s(S_T0)}, {s(S_I)}, 4")
        k.I(f"s_lshl_b32 {s(S_M2)}, {s(S_XCD)}, 1")
        k.I(f"s_add_u32 {s(S_M2)}, {s(S_M2)}, {s(S_T0)}")
        k.I(f"s_and_b32 {s(S_J2)}, {s(S_I)}, 15")
    if k.diag and "entry" in STAMPS:
        k.I(f"s_mov_b32 {s(S_STAMP + k.nstamp)}, s96")
        k.stamp_names = getattr(k, "stamp_names", []) + ["entry"]
        k.nstamp += 1
    k.I("v_mov_b32 v4, 0")
    k.I(f"buffer_load_dword {v(V_TAG)}, v4, {srd(S_WS)}, 0 offen sc1", tag="E")
    k.stamp("start")


S_G = 100
S_GC = 3


def x_rows(k):
    k.I(f"s_lshl_b32 {s(S_T2)}, {s(S_M)}, 17")
    k.I(f"s_and_b32 {s(S_T3)}, {s(S_J)}, 7")
    k.I(f"s_lshl_b32 {s(S_T3)}, {s(S_T3)}, 4")
    k.I(f"s_add_u32 {s(S_T3)}, {s(S_T3)}, {s(S_W)}")
    k.I(f"s_sub_u32 {s(S_T3)}, {s(S_T3)}, 1")
    U = OPT.get("xunroll", 4)
    k.I(f"s_mov_b32 {s(S_T4)}, {44 // U}")
    loop = k.newlabel("xrow")
    k.label(loop)
    for u in range(U):
        k.I(f"s_and_b32 {s(S_T0)}, {s(S_T3)}, 127")
        k.I(f"s_and_b32 {s(S_T1)}, {s(S_T0)}, 15")
        k.I(f"s_lshl_b32 {s(S_T1)}, {s(S_T1)}, 4")
        k.I(f"v_xor_b32 v9, {s(S_T1)}, {v(V_L16)}")
        k.I(f"s_lshl_b32 m0, {s(S_T0)}, 10")
        k.I(f"s_add_u32 {s(S_OFF)}, m0, {s(S_T2)}")
        k.dma(9, S_X, s(S_OFF))
        k.I(f"s_add_u32 {s(S_T3)}, {s(S_T3)}, 3")
    k.I(f"s_sub_u32 {s(S_T4)}, {s(S_T4)}, 1")
    k.I(f"s_cmp_lg_u32 {s(S_T4)}, 0")
    k.I(f"s_cbranch_scc1 {loop}")


def touch_wqkv(k):
    if OPT["touch"]:
        k.I(f"v_lshrrev_b32 v13, 2, {v(V_LANE)}")
        k.I("v_mul_u32_u24 v13, 3072, v13")
        k.I(f"v_and_b32 v14, 3, {v(V_LANE)}")
        k.I("v_lshl_add_u32 v13, v14, 7, v13")
        k.I(f"s_mul_i32 {s(S_OFF)}, {s(S_I)}, {16*3072}")
        k.I(f"s_sub_u32 {s(S_T0)}, {s(S_W)}, 1")
        k.I(f"s_lshl_b32 {s(S_T0)}, {s(S_T0)}, 10")
        k.I(f"s_add_u32 {s(S_OFF)}, {s(S_OFF)}, {s(S_T0)}")
        k.I(f"s_and_b32 {s(S_T0)}, {s(S_XCD)}, 1")
        k.I(f"s_lshl_b32 {s(S_T0)}, {s(S_T0)}, 9")
        k.I(f"s_add_u32 {s(S_OFF)}, {s(S_OFF)}, {s(S_T0)}")
        k.touch(S_WQKV, 13, s(S_OFF), dst=176)


def mod_group(k):
    k.I(f"s_lshr_b32 {s(S_T0)}, {s(S_I)}, 2")
    k.I(f"s_lshl_b32 {s(S_T0)}, {s(S_T0)}, 3")
    k.I(f"s_add_u32 {s(S_T0)}, {s(S_T0)}, {s(S_XCD)}")
    k.I(f"s_lshl_b32 {s(S_T0)}, {s(S_T0)}, 2")
    k.I(f"s_and_b32 {s(S_T1)}, {s(S_I)}, 3")
    k.I(f"s_add_u32 {s(S_G)}, {s(S_T0)}, {s(S_T1)}")


def wm_voff(k, dst, tmp):
    k.I(f"v_lshrrev_b32 {v(dst)}, 1, {v(V_LANE)}")
    k.I(f"v_mul_u32_u24 {v(dst)}, 6144, {v(dst)}")
    k.I(f"v_and_b32 {v(tmp)}, 1, {v(V_LANE)}")
    k.I(f"v_lshlrev_b32 {v(tmp)}, 4, {v(tmp)}")
    k.I(f"s_lshl_b32 {s(S_T0)}, {s(S_G)}, 5")
    k.I(f"v_add3_u32 {v(dst)}, {v(dst)}, {v(tmp)}, {s(S_T0)}")


def gemv16(k, lds_base, nq=16, partial=False, nbuf=112):
    k.I(f"v_lshrrev_b32 v8, 4, {v(V_LANE)}")
    k.I("v_lshlrev_b32 v8, 3, v8")
    k.I(f"v_add_u32 v8, {L_S}, v8")
    if partial:
        k.I(f"s_and_b32 {s(S_T0)}, {s(S_I)}, 3")
        k.I(f"s_lshl_b32 {s(S_T0)}, {s(S_T0)}, 8")
        k.I(f"v_add_u32 v8, {s(S_T0)}, v8")
    k.I(f"v_lshlrev_b32 v10, 3, {v(V_LANE)}")
    k.I(f"v_add_u32 v10, {lds_base}, v10")
    for q in range(nq + 2):
        if q < nq:
            b = nbuf + 8 * (q & 3)
            k.I(f"ds_read_b64_tr_b16 {v(b+4, 2)}, v10 offset:{q*1024}")
            k.I(f"ds_read_b64_tr_b16 {v(b+6, 2)}, v10 offset:{q*1024+512}")
            k.I(f"ds_read_b64 {v(b, 2)}, v8 offset:{q*64}")
            k.I(f"ds_read_b64 {v(b+2, 2)}, v8 offset:{q*64+32}")
        if q >= 2:
            k.I(f"s_waitcnt lgkmcnt({8 if q < nq else (4 if q == nq else 0)})")
            bb = nbuf + 8 * ((q - 2) & 3)
            acc = 144 + 4 * (q & 1)
            c = "0" if q < 4 else v(acc, 4)
            k.I(f"v_mfma_f32_16x16x32_bf16 {v(acc, 4)}, {v(bb, 4)}, {v(bb+4, 4)}, {c}")
    k.test_delay(1 if partial else 2)
    k.I("v_add_f32 v144, v144, v148")
    k.I("v_mov_b32_dpp v145, v144 quad_perm:[1,0,3,2] row_mask:0xf bank_mask:0xf")
    if partial:
        k.I(f"v_mov_b32 v146, {v(V_TAG)}")
        k.I("v_mov_b32 v147, 0")
        k.I(f"v_lshlrev_b32 v8, 3, {v(V_LANE)}")
        k.I(f"s_and_b32 {s(S_T0)}, {s(S_I)}, 3")
        k.I(f"s_lshl_b32 {s(S_T0)}, {s(S_T0)}, 13")
        k.I(f"s_lshl_b32 {s(S_T1)}, {s(S_GC)}, 7")
        k.I(f"s_add_u32 {s(S_T0)}, {s(S_T0)}, {s(S_T1)}")
        k.I(f"s_add_u32 {s(S_T0)}, {s(S_T0)}, {WS_MODC}")
        k.I(f"v_add_u32 v8, {s(S_T0)}, v8")
        k.I("s_mov_b64 exec, 0x5555")
        k.I(f"buffer_store_dwordx4 v[144:147], v8, {srd(S_WS)}, 0 offen sc1")
    else:
        k.I("v_cvt_pk_bf16_f32 v144, v144, v145")
        k.I(f"v_mov_b32 v145, {v(V_TAG)}")
        k.I(f"v_lshlrev_b32 v8, 2, {v(V_LANE)}")
        k.I(f"s_lshl_b32 {s(S_T0)}, {s(S_G)}, 6")
        k.I(f"s_add_u32 {s(S_T0)}, {s(S_T0)}, {WS_MODG}")
        k.I(f"v_add_u32 v8, {s(S_T0)}, v8")
        k.I("s_mov_b64 exec, 0x5555")
        k.I(f"buffer_store_dwordx2 v[144:145], v8, {srd(S_WS)}, 0 offen sc1")
    k.I("s_mov_b64 exec, -1")


def mall_touch(k):
    k.I(f"v_min_u32 v9, 55, {v(V_LANE)}")
    k.I("v_lshlrev_b32 v9, 7, v9")
    k.I(f"s_mul_i32 {s(S_OFF)}, s2, {56*128}")
    for r in (S_WG, S_WU, S_WD):
        k.touch(r, 9, s(S_OFF), dst=176)
    k.I(f"v_and_b32 v9, 15, {v(V_LANE)}")
    k.I("v_lshlrev_b32 v9, 7, v9")
    k.I(f"s_lshl_b32 {s(S_OFF)}, s2, 11")
    k.touch(S_WO, 9, s(S_OFF), dst=176)
    k.I(f"v_lshrrev_b32 v9, 5, {v(V_LANE)}")
    k.I("v_mul_u32_u24 v9, 6144, v9")
    k.I(f"v_and_b32 v10, 31, {v(V_LANE)}")
    k.I("v_lshl_add_u32 v9, v10, 7, v9")
    k.I(f"s_mul_i32 {s(S_OFF)}, s2, {2*6144}")
    k.I(f"s_add_u32 {s(S_OFF)}, {s(S_OFF)}, 2048")
    k.touch(S_WMOD, 9, s(S_OFF), dst=176)


def start_phase(k):
    mod_group(k)
    k.I(f"s_lshr_b32 {s(S_T0)}, {s(S_I)}, 4")
    k.I(f"s_lshl_b32 {s(S_T0)}, {s(S_T0)}, 3")
    k.I(f"s_add_u32 {s(S_T0)}, {s(S_T0)}, {s(S_XCD)}")
    k.I(f"s_lshl_b32 {s(S_T0)}, {s(S_T0)}, 2")
    k.I(f"s_bfe_u32 {s(S_T1)}, {s(S_I)}, {(2 << 16) | 2}")
    k.I(f"s_add_u32 {s(S_GC)}, {s(S_T0)}, {s(S_T1)}")
    k.cond_begin()
    wa, wb = k.newlabel("st_b"), k.newlabel("st_j")
    k.wave_is(0, wa)
    k.I(f"buffer_load_dwordx4 v[24:27], {v(V_L16)}, {srd(S_C)}, 0 offen")
    k.I(f"v_lshrrev_b32 v7, 1, {v(V_LANE)}")
    k.I("v_mul_u32_u24 v7, 6144, v7")
    k.I(f"v_and_b32 v8, 1, {v(V_LANE)}")
    k.I("v_lshlrev_b32 v8, 4, v8")
    k.I(f"s_lshl_b32 {s(S_T0)}, {s(S_GC)}, 5")
    k.I(f"v_add3_u32 v7, v7, v8, {s(S_T0)}")
    k.I(f"s_and_b32 {s(S_OFF)}, {s(S_I)}, 3")
    k.I(f"s_mul_i32 {s(S_OFF)}, {s(S_OFF)}, {128*6144}")
    k.I(f"s_mov_b32 m0, {L_WM}")
    k._tag = "wm"
    for n in range(4):
        k.dma(7, S_WMOD, s(S_OFF))
        if n < 3:
            k.I(f"s_add_u32 m0, m0, 1024")
            k.I(f"s_add_u32 {s(S_OFF)}, {s(S_OFF)}, 196608")
    k._tag = None
    k.I(f"s_branch {wb}")
    k.label(wa)
    k.I(f"s_lshl_b32 {s(S_OFF)}, {s(S_HP)}, 10")
    k.I(f"s_mov_b32 m0, {L_PHI}")
    k.dma(V_L16, S_WPHI, s(S_OFF))
    touch_wqkv(k)
    x_rows(k)
    if OPT.get("tlbpf"):
        k.I(f"v_min_u32 v9, 7, {v(V_LANE)}")
        k.I("v_lshlrev_b32 v9, 21, v9")
        k.I(f"buffer_load_dword v178, v9, {srd(S_WS)}, 0 offen offset:2048")
        k.I(f"buffer_load_dword v178, {v(V_L16)}, {srd(S_OUT)}, 0 offen")
    k.label(wb)
    k.cond_end()
    k.vmq = []


def start_finish(k):
    k.cond_begin()
    wa, wb = k.newlabel("sf_b"), k.newlabel("sf_j")
    k.wave_is(0, wa)
    k.I("s_waitcnt vmcnt(4)")
    k.I(f"v_add_u32 {v(V_TAG)}, 1, {v(V_TAG)}")
    for i in range(4):
        k.unpack(28 + 2 * i, 29 + 2 * i, 24 + i)
    for i in range(8):
        k.I(f"v_mul_f32 {v(36+i)}, {s(S_L2E)}, {v(28+i)}")
    for i in range(8):
        k.I(f"v_exp_f32 {v(36+i)}, -{v(36+i)}")
    for i in range(8):
        k.I(f"v_add_f32 {v(36+i)}, 1.0, {v(36+i)}")
    for i in range(8):
        k.I(f"v_rcp_f32 {v(36+i)}, {v(36+i)}")
    for i in range(8):
        k.I(f"v_mul_f32 {v(28+i)}, {v(28+i)}, {v(36+i)}")
    for i in range(4):
        k.I(f"v_cvt_pk_bf16_f32 {v(24+i)}, {v(28+2*i)}, {v(29+2*i)}")
    k.I(f"v_add_u32 v8, {L_S}, {v(V_L16)}")
    k.I("ds_write_b128 v8, v[24:27]")
    k.I("s_waitcnt vmcnt(0) lgkmcnt(0)")
    gemv16(k, L_WM, nq=4, partial=True)
    if OPT["mall"]:
        mall_touch(k)
    k.I(f"s_branch {wb}")
    k.label(wa)
    k.I("s_waitcnt vmcnt(0)")
    k.I(f"v_add_u32 {v(V_TAG)}, 1, {v(V_TAG)}")
    k.label(wb)
    k.cond_end()
    k.I(f"v_readfirstlane_b32 {s(S_TAG)}, {v(V_TAG)}")
    k.stamp("mod published")
    k.lgq = []
    k.barrier()


def modn_compute(k):
    skip = k.newlabel("mn_c")
    k.I("s_sub_u32 s55, s2, 64")
    k.I("s_cmp_ge_u32 s55, 128")
    k.I(f"s_cbranch_scc1 {skip}")
    k.wave_is(2, skip)
    k.cond_begin()
    gemv16(k, L_WMN)
    k.cond_end()
    k.label(skip)


X0 = 16
AQ, AK, AV = 144, 160, 176
DM = 144
DG = 192
EB = (200, 204)
BEXT = 208
MSK = 212
V_TRK, V_TRV, V_TAB, V_R, V_TRQ = 220, 221, 222, 223, 4


def lane_fields(k, t_r=None, s_=None, r_=None, c_=None, nh=None):
    if s_ is not None:
        k.I(f"v_lshrrev_b32 {v(s_)}, 5, {v(V_LANE)}")
    if nh is not None:
        k.I(f"v_bfe_u32 {v(nh)}, {v(V_LANE)}, 4, 1")
    if r_ is not None:
        k.I(f"v_bfe_u32 {v(r_)}, {v(V_LANE)}, 2, 2")
    if c_ is not None:
        k.I(f"v_and_b32 {v(c_)}, 3, {v(V_LANE)}")


def lbase_bytes(k, dst, nh, c, t0, t1):
    k.I(f"v_and_b32 {v(t0)}, 1, {v(c)}")
    k.I(f"v_lshlrev_b32 {v(t0)}, 5, {v(t0)}")
    k.I(f"v_lshrrev_b32 {v(t1)}, 1, {v(c)}")
    k.I(f"v_lshlrev_b32 {v(t1)}, 3, {v(t1)}")
    k.I(f"v_lshl_add_u32 {v(dst)}, {v(nh)}, 4, {v(t0)}")
    k.I(f"v_add_u32 {v(dst)}, {v(dst)}, {v(t1)}")


MODA_REGS = [144 + 4 * i for i in range(8)]
MODA_ADDR = [202, 203, 204, 205, 206, 207, 241, 242]


def p1_prologue(k):
    k.I("v_mov_b32 v8, 0")
    k.I(f"v_lshlrev_b32 v9, 2, {v(V_LANE)}")
    k.I(f"v_and_b32 v9, 60, v9")
    k.I(f"v_add_u32 v9, {L_ZERO}, v9")
    k.I("ds_write_b32 v9, v8")
    p1_static(k)
    k.I(f"v_and_b32 v8, 31, {v(V_LANE)}")
    k.I(f"s_lshl_b32 {s(S_T0)}, {s(S_W)}, 5")
    k.I(f"v_add_u32 v9, {s(S_T0)}, v8")
    k.I("v_lshlrev_b32 v9, 10, v9")
    k.I("v_and_b32 v8, 15, v8")
    k.I(f"v_lshrrev_b32 v10, 5, {v(V_LANE)}")
    for q in range(8):
        k.I(f"v_add_u32 v11, {2*q}, v10")
        k.I("v_xor_b32 v11, v11, v8")
        k.I(f"v_lshl_add_u32 {v(192+q)}, v11, 4, v9")
    k.I(f"v_lshrrev_b32 v8, 3, {v(V_LANE)}")
    k.I("v_mul_u32_u24 v8, 3072, v8")
    k.I(f"v_and_b32 v9, 7, {v(V_LANE)}")
    k.I(f"v_bfe_u32 v10, {v(V_LANE)}, 4, 1")
    k.I("v_lshlrev_b32 v10, 2, v10")
    k.I("v_xor_b32 v9, v9, v10")
    k.I("v_lshrrev_b32 v10, 2, v9")
    k.I("v_lshlrev_b32 v10, 10, v10")
    k.I("v_and_b32 v9, 3, v9")
    k.I("v_lshl_add_u32 v10, v9, 4, v10")
    k.I(f"s_lshl_b32 {s(S_T0)}, {s(S_HP)}, 6")
    k.I(f"s_add_u32 {s(S_T1)}, {s(S_T0)}, 1024")
    k.I(f"v_add3_u32 v200, v8, v10, {s(S_T1)}")
    k.I(f"v_lshrrev_b32 v8, 2, {v(V_LANE)}")
    k.I("v_mul_u32_u24 v8, 3072, v8")
    k.I(f"v_and_b32 v9, 3, {v(V_LANE)}")
    k.I("v_lshl_add_u32 v8, v9, 4, v8")
    k.I(f"v_add_u32 v6, {s(S_T0)}, v8")
    k.I("v_lshlrev_b32 v202, 4, v0")
    k.I(f"v_add_u32 v202, {WS_MODC}, v202")
    k.I(f"v_add_u32 v203, 8192, v202")
    k.I(f"v_add_u32 v204, 16384, v202")
    k.I(f"v_add_u32 v205, 24576, v202")
    k.I(f"v_add_u32 v206, 4096, v202")
    k.I(f"v_add_u32 v207, 4096, v203")
    k.I(f"v_add_u32 v241, 4096, v204")
    k.I(f"v_add_u32 v242, 4096, v205")
    start_finish(k)
    k.I("v_mov_b32 v8, 0x3f803f80")
    for r in range(10, 14):
        k.I(f"v_mov_b32 {v(r)}, 0")
    dots = []
    for i in range(128):
        dots.append(f"v_dot2c_f32_bf16 {v(10 + (i & 1))}, {v(X0+i)}, v8")
        dots.append(f"v_dot2c_f32_bf16 {v(12 + (i & 1))}, {v(X0+i)}, {v(X0+i)}")
    LAG = 6
    NEARLY = OPT.get("dots_early", 20)
    for j in range(32):
        k.I(f"ds_read_b128 {v(X0+4*j, 4)}, {v(192+(j&7))} offset:{L_XI + (j>>3)*256}", tag=f"xf{j}")
        q = j - LAG
        if 0 <= q < NEARLY:
            k.wait_lg(f"xf{q}")
            for _ in range(8):
                k.I(dots.pop(0))
        elif j % 8 == 7 and j < 31:
            k.I("s_waitcnt lgkmcnt(8)")
    k.wait_lg_all()
    k.barrier()
    k.stamp("x in regs")
    k.I(f"s_mul_i32 {s(S_T2)}, {s(S_W)}, {128*3072}")
    k.I(f"s_lshl_b32 {s(S_T3)}, {s(S_W)}, 14")
    if L_KVI:
        k.I(f"s_add_u32 {s(S_T3)}, {s(S_T3)}, {L_KVI}")

    def some_dots(n):
        for _ in range(min(n, len(dots))):
            k.I(dots.pop(0))

    def kv_image():
        k._tag = "w"
        for n in range(16):
            k.I(f"s_add_u32 {s(S_OFF)}, {s(S_T2)}, {n*8*3072}")
            k.I(f"s_add_u32 m0, {s(S_T3)}, {n*1024}")
            k.dma(200, S_WQKV, s(S_OFF))
            some_dots(4)
        k._tag = None

    def mod_partials():
        for r, ad in zip(MODA_REGS, MODA_ADDR):
            k.granule_loads([r], [ad], 4, None, "modA")
            some_dots(3)

    if OPT.get("modfirst", 1):
        mod_partials()
        kv_image()
    else:
        kv_image()
        mod_partials()
    if OPT.get("qstats"):
        for it in q_image_items(k):
            for t, tg in it:
                k.I(t, tag=tg)
            some_dots(2)
    k.side_items = p1_side(k, regs=(243, 244, 245, 246))
    if not OPT.get("tloop") and not OPT.get("qloop"):
        for it in k.side_items:
            for t, tg in it:
                k.I(t, tag=tg)
            some_dots(3)
        k.side_items = []
    for t in dots:
        k.I(t)
    k.I("v_add_f32 v10, v10, v11")
    k.I("v_add_f32 v12, v12, v13")
    k.half_total(10, 11)
    k.half_total(12, 13)
    k.I("v_mul_f32 v10, 0x3b000000, v10")
    k.I("v_mul_f32 v12, 0x3b000000, v12")
    k.I("v_fma_f32 v12, -v10, v10, v12")
    k.I("v_max_f32 v12, 0, v12")
    k.I("v_add_f32 v12, 0x3727c5ac, v12")
    k.I(f"v_rsq_f32 {v(V_R)}, v12")
    k.I("v_sub_f32 v10, 0, v10")
    k.I(f"v_mul_f32 v11, v12, {v(V_R)}")
    k.I("v_cvt_pk_bf16_f32 v12, v10, v11")
    k.unpack(8, 9, 12)
    k.I("v_sub_f32 v8, v10, v8")
    k.I("v_sub_f32 v9, v11, v9")
    k.I("v_cvt_pk_bf16_f32 v13, v8, v9")
    k.I(f"s_mov_b32 {s(S_T0)}, 0x01000100")
    k.I(f"s_mov_b32 {s(S_T1)}, 0x03020302")
    k.I(f"v_perm_b32 {v(BEXT)}, v12, v12, {s(S_T0)}")
    k.I(f"v_perm_b32 {v(BEXT+1)}, v13, v13, {s(S_T0)}")
    k.I(f"v_perm_b32 {v(BEXT+2)}, v12, v12, {s(S_T1)}")
    k.I(f"v_perm_b32 {v(BEXT+3)}, v13, v13, {s(S_T1)}")
    k.I(f"v_cmp_gt_u32 vcc, 32, {v(V_LANE)}")
    for i in range(4):
        k.I(f"v_cndmask_b32 {v(BEXT+i)}, 0, {v(BEXT+i)}, vcc")
    k.stamp("stats")
    p1_rv(k)
    k.granule_verify(MODA_REGS, MODA_ADDR, "modA", 4, (2,), None, "modA")
    k.stamp("mod arrived")
    for base in (144, 160):
        k.I(f"v_pk_add_f32 {v(base,2)}, {v(base,2)}, {v(base+4,2)}")
        k.I(f"v_pk_add_f32 {v(base+8,2)}, {v(base+8,2)}, {v(base+12,2)}")
        k.I(f"v_pk_add_f32 {v(base,2)}, {v(base,2)}, {v(base+8,2)}")
    k.I("v_cvt_pk_bf16_f32 v204, v144, v145")
    k.I("v_cvt_pk_bf16_f32 v206, v160, v161")
    k.unpack(192, 193, 206)
    k.I("v_add_f32 v192, 1.0, v192")
    k.I("v_add_f32 v193, 1.0, v193")
    k.I("v_cvt_pk_bf16_f32 v12, v192, v193")
    k.I("v_and_b32 v192, 0xffff, v12")
    k.I("v_and_b32 v194, 0xffff, v204")
    k.I(f"v_and_b32 v196, {s(S_MASK)}, v12")
    k.I(f"v_and_b32 v198, {s(S_MASK)}, v204")
    for r in (192, 194, 196, 198):
        k.I(f"v_mov_b32 {v(r+1)}, {v(r)}")
    k.I("v_lshlrev_b32 v8, 5, v0")
    k.I(f"v_add_u32 v8, {L_CT}, v8")
    k.I("ds_write_b128 v8, v[192:195]")
    k.I("ds_write_b128 v8, v[196:199] offset:16")
    k.wait_vm("w")
    k.vmq = [t for t in k.vmq if t in ("wq", "t")]
    k.wait_lg_all()
    k.barrier()
    k.stamp("P1 ready")
    k.stamp("c0", cyc=True) if STAMPS and "c0" in STAMPS else None


def p1_static(k):
    k.I(f"v_bfe_u32 v8, {v(V_LANE)}, 1, 2")
    k.I(f"v_bfe_u32 v9, {v(V_LANE)}, 4, 1")
    k.I("v_lshl_add_u32 v8, v9, 2, v8")
    k.I(f"v_bfe_u32 v9, {v(V_LANE)}, 3, 1")
    k.I(f"v_lshrrev_b32 v10, 5, {v(V_LANE)}")
    k.I("v_xor_b32 v9, v9, v10")
    k.I("v_lshl_add_u32 v8, v9, 3, v8")
    for i in range(8):
        k.I(f"v_cmp_eq_u32 vcc, {i}, v8")
        k.I(f"v_cndmask_b32 {v(MSK+i)}, 0, -1, vcc")
    lane_fields(k, s_=8, r_=9, c_=10, nh=11)
    lbase_bytes(k, 12, 11, 10, 13, 14)
    k.I("v_lshl_add_u32 v8, v8, 2, v9")
    k.I("v_lshlrev_b32 v13, 7, v8")
    k.I("v_lshrrev_b32 v9, 1, v9")
    k.I("v_lshl_add_u32 v13, v9, 6, v13")
    k.I(f"v_add_u32 {v(V_TRK)}, v13, v12")
    k.I(f"v_xor_b32 {v(V_TRV)}, 64, {v(V_TRK)}")
    k.I("v_lshlrev_b32 v13, 6, v8")
    k.I("v_add_u32 v13, v13, v12")
    k.I(f"v_add_u32 {v(V_TRQ)}, {L_QI}, v13")
    k.I(f"v_and_b32 v8, 31, {v(V_LANE)}")
    k.I("v_lshlrev_b32 v8, 4, v8")
    k.I(f"v_add_u32 {v(V_TAB)}, {L_CT}, v8")
    p1_sel(k)


def p1_w(j, p):
    if p == 0:
        return V_TRQ, j * 1024, 512
    return (V_TRK if p == 1 else V_TRV), L_KVI + j * 2048, 1024


def p1_main(k):
    def rd_e(B):
        return [(f"ds_read_b128 {v(EB[B & 1], 4)}, {v(V_TAB)} offset:{B*512}", f"e{B}")]

    def rd_w(B):
        out = []
        for a in range(2):
            for pi, p in enumerate((1, 2)):
                base, off, st = p1_w(2 * B + a, p)
                for rd in range(2):
                    out.append((f"ds_read_b64_tr_b16 {a_(16*(B&1) + 8*a + 4*pi + 2*rd, 2)}, {v(base)} offset:{off + rd*st}", f"w{B}_{a}{pi}"))
        return out

    def diag(B):
        return [f"v_and_b32 {v(DG+i)}, {v(EB[B & 1])}, {v(MSK+i)}" for i in range(8)]

    def pack(B):
        return [f"v_cvt_pk_bf16_f32 {v(X0 + 8*B + i)}, {v(DM + 2*i)}, {v(DM + 2*i + 1)}" for i in range(8)]

    def mod_mfma(B, i):
        if i < 2:
            k.mfma32(v(DM, 16), v(DG + 4 * i, 4), v(X0 + 8 * B + 4 * i, 4), "0" if i == 0 else None)
        else:
            k.mfma32(v(DM, 16), v(EB[B & 1], 4), v(BEXT, 4))

    def emit(items):
        for it in items:
            if isinstance(it, tuple):
                k.I(it[0], tag=it[1])
            else:
                k.I(it)

    side = k.side_items
    if OPT.get("qloop"):
        side = q_image_items(k) + side
    emit(rd_e(0) + rd_e(1) + rd_w(0))
    k.wait_lg("e0")
    emit(diag(0))
    for i in range(3):
        mod_mfma(0, i)
    k.wait_lg("e1")
    emit(diag(1))
    emit(pack(0))
    for B in range(16):
        nxt = B + 1 < 16
        w = rd_w(B + 1) if nxt else []
        e = rd_e(B + 2) if B + 2 < 16 else []
        dg = diag(B + 2) if B + 2 < 16 else []
        pk = pack(B + 1) if nxt else []

        def g(a, pi):
            k.wait_lg(f"w{B}_{a}{pi}")
            wf = a_(16 * (B & 1) + 8 * a + 4 * pi, 4)
            h = v(X0 + 8 * B + 4 * a, 4)
            c0 = "0" if (B == 0 and a == 0) else None
            if pi == 0:
                k.mfma32(v(AK, 16), wf, h, c0)
            else:
                k.mfma32(v(AV, 16), h, wf, c0)

        cut = (1, 4, 7) if OPT.get("p1ord", 1) else (2, 4, 6)
        if nxt:
            mod_mfma(B + 1, 0)
        emit(e + w[0:cut[0]])
        if nxt:
            mod_mfma(B + 1, 1)
        emit(w[cut[0]:cut[1]])
        if nxt:
            mod_mfma(B + 1, 2)
        emit(w[cut[1]:cut[2]])
        g(0, 0)
        emit(w[cut[2]:8])
        if dg:
            k.wait_lg(f"e{B+2}")
        emit(dg[0:3])
        g(0, 1)
        emit(dg[3:8])
        g(1, 0)
        emit(pk[0:4])
        g(1, 1)
        emit(pk[4:8])
        for _ in range(2 if (OPT.get("qloop") == 2 and B < 4) else 1):
            if side:
                emit(side.pop(0))
    assert not side
    k.stamp("p1 main")
    k.stamp("c1", cyc=True) if STAMPS and "c1" in STAMPS else None


def p1_q(k):
    def rd(j):
        base, off, st = p1_w(j, 0)
        return [(f"ds_read_b64_tr_b16 {a_(4*(j % 6) + 2*rd, 2)}, {v(base)} offset:{off + rd*st}", f"q{j}") for rd in range(2)]
    for j in range(32 + 4):
        if j < 32:
            for t, tg in rd(j):
                k.I(t, tag=tg)
        q = j - 4
        if q >= 0:
            k.wait_lg(f"q{q}")
            k.mfma32(v(AQ, 16), a_(4 * (q % 6), 4), v(X0 + 4 * q, 4), "0" if q == 0 else None)


def softmax16(k, P, E, outp, outn, t, filler=None, every=4):
    mx, mn = t, t + 2
    k.I(f"v_max3_f32 {v(mx)}, {v(P)}, {v(P+1)}, {v(P+2)}")
    k.I(f"v_min3_f32 {v(mn)}, {v(P)}, {v(P+1)}, {v(P+2)}")
    for i in range(3, 15, 2):
        k.I(f"v_max3_f32 {v(mx)}, {v(mx)}, {v(P+i)}, {v(P+i+1)}")
        k.I(f"v_min3_f32 {v(mn)}, {v(mn)}, {v(P+i)}, {v(P+i+1)}")
    k.I(f"v_max_f32 {v(mx)}, {v(mx)}, {v(P+15)}")
    k.I(f"v_min_f32 {v(mn)}, {v(mn)}, {v(P+15)}")
    k.I(f"v_mul_f32 {v(mx)}, {s(S_L2E)}, {v(mx)}")
    k.I(f"v_mul_f32 {v(mn)}, {s(S_L2E)}, {v(mn)}")
    for sign, m, out in ((+1, mx, outp), (-1, mn, outn)):
        for i in range(0, 16, 2):
            if sign > 0:
                k.I(f"v_pk_fma_f32 {v(E+i,2)}, {v(P+i,2)}, {s(S_L2E,2)}, {v(m,2)} op_sel_hi:[1,1,0] neg_lo:[0,0,1] neg_hi:[0,0,1]")
            else:
                k.I(f"v_pk_fma_f32 {v(E+i,2)}, {v(P+i,2)}, {s(S_L2E,2)}, {v(m,2)} op_sel_hi:[1,1,0] neg_lo:[1,0,0] neg_hi:[1,0,0]")
        for i in range(16):
            k.I(f"v_exp_f32 {v(E+i)}, {v(E+i)}")
            if filler and i % every == every - 1:
                for tt, tg in filler.pop(0):
                    k.I(tt, tag=tg)
        sm = t + 4
        k.I(f"v_pk_add_f32 {v(sm,2)}, {v(E,2)}, {v(E+2,2)}")
        for i in range(4, 16, 2):
            k.I(f"v_pk_add_f32 {v(sm,2)}, {v(sm,2)}, {v(E+i,2)}")
        k.I(f"v_add_f32 {v(sm)}, {v(sm)}, {v(sm+1)}")
        k.I(f"v_rcp_f32 {v(sm)}, {v(sm)}")
        for i in range(0, 16, 2):
            k.I(f"v_pk_mul_f32 {v(E+i,2)}, {v(E+i,2)}, {v(sm,2)} op_sel_hi:[1,0]")
        for i in range(8):
            k.I(f"v_cvt_pk_bf16_f32 {v(out+i)}, {v(E+2*i)}, {v(E+2*i+1)}")


PHI_A, PHI_B = 224, 228
SEL0, SEL1, SELN0, SELN1 = 232, 236, 240, 244
RV = 224
PK, VP = 144, 152
PP = 160
EE = 192
TMP = 208
FP, FN = 224, 232
TP, TN = 176, 160
KVA, KVB = 192, 240
QP, QN = 96, 104


def p1_sel(k):
    k.I(f"v_bfe_u32 v8, {v(V_LANE)}, 3, 1")
    k.I(f"v_and_b32 v9, 3, {v(V_LANE)}")
    k.I("v_lshl_add_u32 v8, v8, 2, v9")
    k.I("v_and_b32 v9, 1, v8")
    k.I("v_lshlrev_b32 v9, 4, v9")
    k.I("v_mov_b32 v10, 0x3f80")
    k.I("v_lshlrev_b32 v9, v9, v10")
    k.I("v_lshrrev_b32 v8, 1, v8")
    k.I(f"v_bfe_u32 v10, {v(V_LANE)}, 4, 1")
    k.I(f"v_bfe_u32 v11, {v(V_LANE)}, 2, 1")
    k.I(f"v_lshrrev_b32 v12, 5, {v(V_LANE)}")
    k.I("v_xor_b32 v11, v11, v12")
    k.I(f"v_cmp_eq_u32 {s(S_VALID,2)}, 0, v11")
    k.I("v_lshl_add_u32 v13, v10, 2, v8")
    k.I("v_lshl_add_u32 v13, v11, 3, v13")
    for neg, base in ((0, SEL0), (1, SELN0)):
        for a in range(2):
            for d in range(4):
                k.I(f"v_cmp_eq_u32 vcc, {8*neg + 4*a + d}, v13")
                k.I(f"v_cndmask_b32 v14, 0, v9, vcc")
                k.I(f"v_accvgpr_write_b32 {a_(base + 4*a + d)}, v14")


def p1_rv(k):
    k.wait_vm("phi")
    lane_fields(k, s_=8, r_=9, c_=10, nh=11)
    k.I("v_lshlrev_b32 v12, 9, v8")
    k.I("v_lshl_add_u32 v12, v9, 5, v12")
    k.I("v_lshlrev_b32 v13, 1, v11")
    k.I("v_lshrrev_b32 v14, 1, v10")
    k.I("v_add_u32 v13, v13, v14")
    k.I("v_lshl_add_u32 v12, v13, 3, v12")
    k.I(f"v_add_u32 v12, {L_PHI}, v12")
    k.I("v_and_b32 v13, 1, v10")
    k.I("v_cmp_eq_u32 vcc, v13, v8")
    for a in range(2):
        for rd in range(2):
            k.I(f"v_add_u32 v14, {(8*a+4*rd)*32}, v12")
            k.I(f"v_mov_b32 v15, {L_ZERO}")
            k.I("v_cndmask_b32 v14, v15, v14, vcc")
            k.I(f"ds_read_b64_tr_b16 {a_(PHI_A + 4*a + 2*rd, 2)}, v14", tag="phif")
    k.I(f"v_and_b32 v8, 31, {v(V_LANE)}")
    k.I("v_lshlrev_b32 v8, 2, v8")
    k.I(f"s_lshl_b32 {s(S_T0)}, {s(S_W)}, 7")
    k.I(f"s_add_u32 {s(S_T0)}, {s(S_T0)}, {L_RT}")
    k.I(f"v_add_u32 v8, {s(S_T0)}, v8")
    k.I(f"ds_write_b32 v8, {v(V_R)}", tag="rw")
    k.I(f"v_lshrrev_b32 v9, 5, {v(V_LANE)}")
    k.I("v_lshlrev_b32 v9, 4, v9")
    k.I(f"v_add_u32 v9, {s(S_T0)}, v9")
    k.wait_lg("rw")
    for q in range(4):
        k.I(f"ds_read_b128 {v(RV+4*q,4)}, v9 offset:{32*q}", tag="rv")
    k.wait_lg_all()


def p1_epilogue(k):
    k.barrier()
    for i in range(16):
        k.I(f"v_mul_f32 {v(AK+i)}, {v(V_R)}, {v(AK+i)}")
    for i in range(8):
        k.I(f"v_cvt_pk_bf16_f32 {v(PK+i)}, {v(AK+2*i)}, {v(AK+2*i+1)}")
    k.mfma32(v(PP, 16), a_(PHI_A, 4), v(PK, 4), "0")
    k.mfma32(v(PP, 16), a_(PHI_B, 4), v(PK + 4, 4))
    for i in range(16):
        k.I(f"v_mul_f32 {v(AV+i)}, {v(RV+i)}, {v(AV+i)}")
    for i in range(8):
        k.I(f"v_cvt_pk_bf16_f32 {v(VP+i)}, {v(AV+2*i)}, {v(AV+2*i+1)}")
    k.stamp("k proj")
    softmax16(k, PP, EE, FP, FN, TMP, filler=None if (OPT.get("qloop") or OPT.get("qstats")) else q_image_items(k))
    k.stamp("k softmax")
    k.mfma32(v(TP, 16), v(FP, 4), a_(SEL0, 4), "0")
    k.mfma32(v(TN, 16), v(FN, 4), a_(SELN0, 4), "0")
    k.mfma32(v(TP, 16), v(FP + 4, 4), a_(SEL1, 4))
    k.mfma32(v(TN, 16), v(FN + 4, 4), a_(SELN1, 4))
    for src, pk, z in ((TP, FP, TMP), (TN, FN, TMP + 2)):
        for i in range(8):
            k.I(f"v_cvt_pk_bf16_f32 {v(pk+i)}, {v(src+2*i)}, {v(src+2*i+1)}")
        if src == TP:
            k.mfma32(v(KVA, 16), v(FP, 4), v(VP, 4), "0")
            k.mfma32(v(KVA, 16), v(FP + 4, 4), v(VP + 4, 4))
        else:
            k.mfma32(v(KVB, 16), v(FN, 4), v(VP, 4), "0")
            k.mfma32(v(KVB, 16), v(FN + 4, 4), v(VP + 4, 4))
    for src, z in ((TP, TMP), (TN, TMP + 2)):
        k.I(f"v_add_f32 {v(z)}, {v(src)}, {v(src+1)}")
        k.I(f"v_add_f32 {v(z+1)}, {v(src+2)}, {v(src+3)}")
        for i in range(4, 16, 2):
            k.I(f"v_add_f32 {v(z)}, {v(z)}, {v(src+i)}")
            k.I(f"v_add_f32 {v(z+1)}, {v(z+1)}, {v(src+i+1)}")
    k.I(f"v_add_f32 {v(TMP+4)}, {v(TMP)}, {v(TMP+1)}")
    k.I(f"v_add_f32 {v(TMP+5)}, {v(TMP+2)}, {v(TMP+3)}")
    for i in range(16):
        k.I(f"v_cndmask_b32 {v(KVA+i)}, {v(KVB+i)}, {v(KVA+i)}, {s(S_VALID,2)}")
    k.stamp("kv mfma")
    k.I(f"s_mul_i32 {s(S_T0)}, {s(S_W)}, 4608")
    k.I(f"s_add_u32 {s(S_T0)}, {s(S_T0)}, {L_RED}")
    k.I(f"v_add_u32 v8, {s(S_T0)}, {v(V_L16)}")
    for q in range(4):
        k.I(f"ds_write_b128 v8, {v(KVA+4*q,4)} offset:{q*1024}")
    k.I(f"v_lshlrev_b32 v9, 3, {v(V_LANE)}")
    k.I(f"v_add_u32 v9, {s(S_T0)}, v9")
    k.I(f"ds_write_b64 v9, {v(TMP+4,2)} offset:4096")
    k.wait_lg_all()
    k.barrier()
    k.stamp("red barrier")
    k.I(f"s_lshl_b32 {s(S_T0)}, {s(S_W)}, 10")
    k.I(f"s_add_u32 {s(S_T0)}, {s(S_T0)}, {L_RED}")
    k.I(f"v_add_u32 v8, {s(S_T0)}, {v(V_L16)}")
    for ww in range(4):
        k.I(f"ds_read_b128 {v(KVA+4*ww,4)}, v8 offset:{ww*4608}")
    k.I(f"v_lshlrev_b32 v9, 3, {v(V_LANE)}")
    k.I(f"v_add_u32 v9, {L_RED + 4096}, v9")
    for ww in range(4):
        k.I(f"ds_read_b64 {v(KVB+2*ww,2)}, v9 offset:{ww*4608}")
    k.wait_lg_all()
    for h in (0, 2):
        k.I(f"v_pk_add_f32 {v(KVA+h,2)}, {v(KVA+h,2)}, {v(KVA+4+h,2)}")
        k.I(f"v_pk_add_f32 {v(KVA+8+h,2)}, {v(KVA+8+h,2)}, {v(KVA+12+h,2)}")
        k.I(f"v_pk_add_f32 {v(KVA+h,2)}, {v(KVA+h,2)}, {v(KVA+8+h,2)}")
    k.I(f"v_cvt_pk_bf16_f32 {v(KVA)}, {v(KVA)}, {v(KVA+1)}")
    k.I(f"v_cvt_pk_bf16_f32 {v(KVA+1)}, {v(KVA+2)}, {v(KVA+3)}")
    k.I(f"v_pk_add_f32 {v(KVB,2)}, {v(KVB,2)}, {v(KVB+2,2)}")
    k.I(f"v_pk_add_f32 {v(KVB+4,2)}, {v(KVB+4,2)}, {v(KVB+6,2)}")
    k.I(f"v_pk_add_f32 {v(KVB,2)}, {v(KVB,2)}, {v(KVB+4,2)}")
    k.I(f"v_cvt_pk_bf16_f32 {v(KVB)}, {v(KVB)}, {v(KVB+1)}")
    k.test_delay(3)
    k.I(f"v_mov_b32 {v(KVA+2)}, {v(KVB)}")
    k.I(f"v_mov_b32 {v(KVA+3)}, {v(V_TAG)}")
    k.I(f"s_lshl_b32 {s(S_T0)}, {s(S_HP)}, 4")
    k.I(f"s_add_u32 {s(S_T0)}, {s(S_T0)}, {s(S_M)}")
    k.I(f"s_lshl_b32 {s(S_T1)}, {s(S_T0)}, 12")
    k.I(f"s_lshl_b32 {s(S_T2)}, {s(S_W)}, 10")
    k.I(f"s_add_u32 {s(S_T1)}, {s(S_T1)}, {s(S_T2)}")
    k.I(f"s_add_u32 {s(S_T1)}, {s(S_T1)}, {WS_KVP}")
    k.I(f"buffer_store_dwordx4 {v(KVA,4)}, {v(V_L16)}, {srd(S_WS)}, {s(S_T1)} offen sc1", tag="kvst")
    k.wait_vm("wq")
    k.barrier()
    k.stamp("kv published")
    modn_issue(k)
    p1_q(k)
    k.stamp("q gemm")
    kv_addr(k)
    kv_loads(k, "kvp")
    for i in range(16):
        k.I(f"v_mul_f32 {v(AQ+i)}, {v(V_R)}, {v(AQ+i)}")
    for i in range(8):
        k.I(f"v_cvt_pk_bf16_f32 {v(160+i)}, {v(AQ+2*i)}, {v(AQ+2*i+1)}")
    k.mfma32(v(176, 16), a_(PHI_A, 4), v(160, 4), "0")
    k.mfma32(v(176, 16), a_(PHI_B, 4), v(164, 4))
    quad_ids(k)
    softmax16(k, 176, EE, QP, QN, TMP, filler=None if OPT.get("wo_kv", 1) else wo_items(k), every=2)
    k.stamp("q softmax")


S_UB = 101


S_UBO, S_MNO = 90, 91


def p1_side(k, regs):
    ra, rb, rc, rt = regs
    touch_setup(k, ra, rb, rc, rt)
    k.I(f"v_and_b32 {v(rc)}, 31, {v(V_LANE)}")
    k.I(f"v_mul_u32_u24 {v(rc)}, 6144, {v(rc)}")
    k.I(f"s_lshr_b32 {s(S_T0)}, {s(S_G)}, 2")
    k.I(f"s_lshl_b32 {s(S_T0)}, {s(S_T0)}, 7")
    k.I(f"s_and_b32 {s(S_T1)}, {s(S_G)}, 3")
    k.I(f"s_lshl_b32 {s(S_T1)}, {s(S_T1)}, 2")
    k.I(f"s_add_u32 {s(S_T1)}, {s(S_T1)}, {s(S_W)}")
    k.I(f"s_mul_i32 {s(S_T1)}, {s(S_T1)}, {32*6144}")
    k.I(f"s_add_u32 {s(S_MNO)}, {s(S_T0)}, {s(S_T1)}")
    k.I("s_sub_u32 s55, s2, 64")
    k.I("s_cmp_ge_u32 s55, 128")
    k.I(f"s_cselect_b32 {s(S_MNO)}, 0x7ff00000, {s(S_MNO)}")
    items = []
    if OPT["touch"]:
        if OPT.get("tmn", 1):
            items.append([(f"buffer_load_dword v5, {v(rc)}, {srd(S_WMOD)}, {s(S_MNO)} offen{' nt' if OPT.get('tmn_nt', 1) else ''}", "t")])
        if OPT.get("map24"):
            items.append([(f"s_lshl_b32 {s(S_T0)}, {s(S_I)}, 2", None), (f"s_add_u32 {s(S_T0)}, {s(S_T0)}, {s(S_W)}", None),
                          (f"s_and_b32 {s(S_T1)}, {s(S_XCD)}, 1", None), (f"s_lshl_b32 {s(S_T1)}, {s(S_T1)}, 9", None),
                          (f"v_min_u32 {v(rt)}, 55, {v(V_LANE)}", None), (f"v_lshrrev_b32 {v(ra)}, 2, {v(rt)}", None),
                          (f"v_lshlrev_b32 {v(ra)}, 10, {v(ra)}", None), (f"v_and_b32 {v(rt)}, 3, {v(rt)}", None),
                          (f"v_lshl_add_u32 {v(ra)}, {v(rt)}, 7, {v(ra)}", None), (f"v_add_u32 {v(ra)}, {s(S_T1)}, {v(ra)}", None),
                          (f"s_mul_i32 {s(S_T1)}, {s(S_T0)}, {14*1024}", None),
                          (f"buffer_load_dword v5, {v(ra)}, {srd(S_WD)}, {s(S_T1)} offen", "t"),
                          (f"v_and_b32 {v(ra)}, 0xfff, {v(ra)}", None), (f"s_lshl_b32 {s(S_T1)}, {s(S_T0)}, 12", None),
                          (f"buffer_load_dword v5, {v(ra)}, {srd(S_WO)}, {s(S_T1)} offen", "t")])
            for r in (S_WG, S_WU):
                items.append([(f"buffer_load_dword v5, {v(rb)}, {srd(r)}, 0 offen", "t")])
        else:
            for r, a in ((S_WO, ra), (S_WG, rb), (S_WU, rb)):
                items.append([(f"buffer_load_dword v5, {v(a)}, {srd(r)}, 0 offen", "t")])
        if OPT.get("twd", 0):
            items.append([(f"s_lshl_b32 {s(S_T0)}, s2, 2", None), (f"s_add_u32 {s(S_T0)}, {s(S_T0)}, {s(S_W)}", None),
                          (f"s_mul_i32 {s(S_T0)}, {s(S_T0)}, {14*128}", None), (f"v_min_u32 {v(rt)}, 13, {v(V_LANE)}", None),
                          (f"v_lshlrev_b32 {v(rt)}, 7, {v(rt)}", None),
                          (f"buffer_load_dword v5, {v(rt)}, {srd(S_WD)}, {s(S_T0)} offen", "t")])
    return items


def q_image_items(k):
    k.I(f"s_mul_i32 {s(S_T3)}, {s(S_W)}, {128*3072}")
    k.I(f"s_lshl_b32 {s(S_T4)}, {s(S_W)}, 13")
    k.I(f"s_add_u32 {s(S_T4)}, {s(S_T4)}, {L_QI}")
    return [[(f"s_add_u32 {s(S_OFF)}, {s(S_T3)}, {n*16*3072}", None), (f"s_add_u32 m0, {s(S_T4)}, {n*1024}", None),
             (f"buffer_load_dwordx4 v6, {srd(S_WQKV)}, {s(S_OFF)} offen lds", "wq")] for n in range(8)]


def modn_issue(k):
    skip = k.newlabel("mn_i")
    k.I("s_sub_u32 s55, s2, 64")
    k.I("s_cmp_ge_u32 s55, 128")
    k.I(f"s_cbranch_scc1 {skip}")
    k.cond_begin()
    wm_voff(k, 7, 8)
    k.I(f"s_mul_i32 {s(S_OFF)}, {s(S_W)}, {4*196608}")
    k.I(f"s_lshl_b32 {s(S_T0)}, {s(S_W)}, 12")
    k.I(f"s_add_u32 m0, {s(S_T0)}, {L_WMN}")
    for n in range(4):
        k.I(f"buffer_load_dwordx4 v7, {srd(S_WMOD)}, {s(S_OFF)} offen lds")
        if n < 3:
            k.I(f"s_add_u32 m0, m0, 1024")
            k.I(f"s_add_u32 {s(S_OFF)}, {s(S_OFF)}, 196608")
    k.cond_end()
    k.label(skip)


def ub_compute(k):
    skip = k.newlabel("ubc_skip")
    k.I(f"s_cmp_ge_u32 {s(S_I)}, 28")
    k.I(f"s_cbranch_scc1 {skip}")
    k.I(f"s_cmp_lt_u32 {s(S_W)}, 2")
    k.I(f"s_cbranch_scc1 {skip}")
    k.cond_begin()
    S_JOB, S_KH, S_BLK = S_T2, S_T3, S_T4
    k.I(f"s_lshr_b32 {s(S_T0)}, {s(S_XCD)}, 1")
    k.I(f"s_mul_i32 {s(S_JOB)}, {s(S_T0)}, 28")
    k.I(f"s_add_u32 {s(S_JOB)}, {s(S_JOB)}, {s(S_I)}")
    k.I(f"s_cmp_ge_u32 {s(S_JOB)}, 56")
    k.I(f"s_cselect_b32 {s(S_KH)}, 1, 0")
    k.I(f"s_mul_i32 {s(S_T0)}, {s(S_KH)}, 56")
    k.I(f"s_sub_u32 {s(S_BLK)}, {s(S_JOB)}, {s(S_T0)}")
    k.I(f"s_cmp_lt_u32 {s(S_BLK)}, 28")
    for i in range(4):
        k.I(f"s_cselect_b32 {s(S_UBS+i)}, {s(S_WG+i)}, {s(S_WU+i)}")
    k.I(f"s_cselect_b32 {s(S_T0)}, 0, 28")
    k.I(f"s_cselect_b32 {s(S_T1)}, 0, 56")
    k.I(f"s_sub_u32 {s(S_BLK)}, {s(S_BLK)}, {s(S_T0)}")
    k.I(f"s_and_b32 {s(S_T0)}, {s(S_XCD)}, 1")
    k.I(f"s_mul_i32 {s(S_T0)}, {s(S_T0)}, 28")
    k.I(f"s_add_u32 {s(S_BLK)}, {s(S_BLK)}, {s(S_T0)}")
    k.I(f"s_add_u32 {s(S_JOB)}, {s(S_BLK)}, {s(S_T1)}")
    k.I(f"v_lshrrev_b32 v112, 2, {v(V_LANE)}")
    k.I("v_mul_u32_u24 v112, 3584, v112")
    k.I(f"v_and_b32 v113, 3, {v(V_LANE)}")
    k.I("v_lshl_add_u32 v112, v113, 4, v112")
    k.I(f"s_lshl_b32 {s(S_T0)}, {s(S_BLK)}, 6")
    k.I(f"v_add_u32 v112, {s(S_T0)}, v112")
    k.I(f"s_mul_i32 {s(S_OFF)}, {s(S_KH)}, {256*3584}")
    k.I(f"s_and_b32 {s(S_T0)}, {s(S_W)}, 1")
    k.I(f"s_mul_i32 {s(S_T1)}, {s(S_T0)}, {128*3584}")
    k.I(f"s_add_u32 {s(S_OFF)}, {s(S_OFF)}, {s(S_T1)}")
    k.I(f"s_lshl_b32 {s(S_UBH)}, {s(S_T0)}, 13")
    k.I(f"s_add_u32 m0, {s(S_UBH)}, {L_UB}")
    for n in range(8):
        k.dma(112, S_UBS, s(S_OFF))
        if n < 7:
            k.I("s_add_u32 m0, m0, 1024")
            k.I(f"s_add_u32 {s(S_OFF)}, {s(S_OFF)}, {16*3584}")
    k.I(f"s_lshl_b32 {s(S_T0)}, {s(S_KH)}, 10")
    k.I(f"v_add_u32 v114, {s(S_T0)}, {v(V_L16)}")
    k.I(f"v_add_u32 v114, {WS_MODG + 768*8}, v114")
    k.load_granules_checked([116, 120], [114] * 2, "modU", width=4, tagpos=(1, 3), imm=[0, 2048])
    for i, r in enumerate((120, 122)):
        k.unpack(124, 125, r)
        k.I("v_add_f32 v124, 1.0, v124")
        k.I("v_add_f32 v125, 1.0, v125")
        k.I(f"v_cvt_pk_bf16_f32 {v(128+i)}, v124, v125")
    k.I("v_mov_b32 v130, v116")
    k.I("v_mov_b32 v131, v118")
    k.I("v_mov_b32 v132, 0")
    k.I("v_mov_b32 v133, 0")
    k.I(f"v_lshlrev_b32 v113, 3, {v(V_LANE)}")
    k.I(f"v_add_u32 v113, {L_CS}, v113")
    k.I("ds_write_b64 v113, v[128:129]")
    k.I("ds_write_b64 v113, v[130:131] offset:512")
    k.I("ds_write_b64 v113, v[132:133] offset:1024")
    k.I(f"v_and_b32 v113, 31, {v(V_LANE)}")
    k.I("v_min_u32 v113, 2, v113")
    k.I("v_lshlrev_b32 v113, 9, v113")
    k.I(f"v_lshrrev_b32 v114, 5, {v(V_LANE)}")
    k.I("v_lshl_add_u32 v113, v114, 4, v113")
    k.I(f"v_add_u32 v113, {L_CS}, v113")
    k.I(f"s_lshr_b32 {s(S_T0)}, {s(S_UBH)}, 5")
    k.I(f"v_add_u32 v113, {s(S_T0)}, v113")
    lane_fields(k, s_=114, r_=115, c_=116, nh=117)
    k.I("v_lshl_add_u32 v114, v114, 3, v115")
    k.I("v_lshlrev_b32 v114, 6, v114")
    k.I("v_lshl_add_u32 v114, v117, 5, v114")
    k.I("v_lshl_add_u32 v114, v116, 3, v114")
    k.I(f"v_add_u32 v114, {L_UB}, v114")
    k.I(f"v_add_u32 v114, {s(S_UBH)}, v114")
    k.I("s_waitcnt vmcnt(0) lgkmcnt(0)")
    for j in range(8 + 2):
        if j < 8:
            b = 116 + 8 * (j & 3)
            k.I(f"ds_read_b64_tr_b16 {v(b+4,2)}, v114 offset:{j*1024}")
            k.I(f"ds_read_b64_tr_b16 {v(b+6,2)}, v114 offset:{j*1024 + 256}")
            k.I(f"ds_read_b128 {v(b,4)}, v113 offset:{j*32}")
        if j >= 2:
            k.I(f"s_waitcnt lgkmcnt({6 if j < 8 else (3 if j == 8 else 0)})")
            bb = 116 + 8 * ((j - 2) & 3)
            k.mfma32(v(152, 16), v(bb, 4), v(bb + 4, 4), "0" if j == 2 else None)
    w3 = k.newlabel("ub_w3")
    k.wave_is(2, w3)
    k.I(f"v_lshlrev_b32 v113, 3, {v(V_LANE)}")
    k.I(f"v_add_u32 v113, {L_UBP}, v113")
    k.I("ds_write_b64 v113, v[152:153]")
    k.I("s_waitcnt lgkmcnt(0)")
    k.label(w3)
    k.I("v_accvgpr_write_b32 a244, v152")
    k.I("v_accvgpr_write_b32 a245, v153")
    k.I(f"s_mov_b32 {s(S_UBJ)}, {s(S_JOB)}")
    k.I(f"s_mov_b32 {s(S_UBK)}, {s(S_KH)}")
    k.cond_end()
    k.label(skip)


def ub_publish(k):
    skip = k.newlabel("ubp_skip")
    k.I(f"s_cmp_ge_u32 {s(S_I)}, 28")
    k.I(f"s_cbranch_scc1 {skip}")
    k.wave_is(3, skip)
    k.cond_begin()
    S_JOB, S_KH = S_UBJ, S_UBK
    k.test_delay(4)
    k.I(f"v_lshlrev_b32 v174, 3, {v(V_LANE)}")
    k.I(f"v_add_u32 v174, {L_UBP}, v174")
    k.I("ds_read_b64 v[154:155], v174")
    k.I("v_accvgpr_read_b32 v152, a244")
    k.I("v_accvgpr_read_b32 v153, a245")
    k.I("s_waitcnt lgkmcnt(0)")
    k.I("v_add_f32 v152, v152, v154")
    k.I("v_add_f32 v153, v153, v155")
    k.I("v_cvt_pk_bf16_f32 v168, v152, v153")
    k.unpack(170, 171, 168)
    k.I("v_sub_f32 v172, v152, v170")
    k.I("v_sub_f32 v173, v153, v171")
    k.I("v_cvt_pk_bf16_f32 v169, v172, v173")
    k.I(f"s_mov_b32 {s(S_T0)}, 0x05040100")
    k.I(f"s_mov_b32 {s(S_T1)}, 0x07060302")
    k.I(f"v_perm_b32 v176, v169, v168, {s(S_T0)}")
    k.I("v_mov_b32 v177, v168")
    k.I(f"v_perm_b32 v178, v168, v169, {s(S_T1)}")
    k.I(f"v_mov_b32 v179, {v(V_TAG)}")
    k.I(f"s_mul_i32 {s(S_T0)}, {s(S_KH)}, {3584*16}")
    k.I(f"s_lshl_b32 {s(S_T1)}, {s(S_JOB)}, 9")
    k.I(f"s_add_u32 {s(S_T0)}, {s(S_T0)}, {s(S_T1)}")
    k.I(f"s_add_u32 {s(S_T0)}, {s(S_T0)}, {WS_WEXT}")
    k.I(f"v_add_u32 v174, {s(S_T0)}, {v(V_L16)}")
    k.I("s_mov_b32 exec_hi, 0")
    k.I(f"buffer_store_dwordx4 v[176:179], v174, {srd(S_WS)}, 0 offen sc1")
    k.I("s_mov_b64 exec, -1")
    k.cond_end()
    k.label(skip)


S_UBH, S_UBJ, S_UBK = 32, 33, 34
L_UBP = L_UB
S_UBS = 12


def touch_setup(k, ra, rb, rc, rt):
    k.I(f"v_and_b32 {v(ra)}, 31, {v(V_LANE)}")
    k.I(f"v_lshlrev_b32 {v(ra)}, 7, {v(ra)}")
    k.I(f"s_lshl_b32 {s(S_T0)}, {s(S_I)}, 2")
    k.I(f"s_add_u32 {s(S_T0)}, {s(S_T0)}, {s(S_W)}")
    k.I(f"s_lshl_b32 {s(S_T1)}, {s(S_T0)}, 12")
    k.I(f"v_add_u32 {v(ra)}, {s(S_T1)}, {v(ra)}")
    k.I(f"v_min_u32 {v(rb)}, 55, {v(V_LANE)}")
    k.I(f"v_mul_u32_u24 {v(rc)}, 4682, {v(rb)}")
    k.I(f"v_lshrrev_b32 {v(rc)}, 16, {v(rc)}")
    k.I(f"v_mul_u32_u24 {v(rt)}, 14, {v(rc)}")
    k.I(f"v_sub_u32 {v(rb)}, {v(rb)}, {v(rt)}")
    k.I(f"v_lshlrev_b32 {v(rb)}, 7, {v(rb)}")
    k.I(f"v_mul_u32_u24 {v(rc)}, 3584, {v(rc)}")
    k.I(f"v_add_u32 {v(rb)}, {v(rb)}, {v(rc)}")
    k.I(f"s_mul_i32 {s(S_T0)}, {s(S_T0)}, {4*3584}")
    k.I(f"s_and_b32 {s(S_T1)}, {s(S_XCD)}, 1")
    k.I(f"s_mul_i32 {s(S_T1)}, {s(S_T1)}, 1792")
    k.I(f"s_add_u32 {s(S_T0)}, {s(S_T0)}, {s(S_T1)}")
    k.I(f"v_add_u32 {v(rb)}, {s(S_T0)}, {v(rb)}")


def wo_items(k):
    k.I(f"s_and_b32 {s(S_T0)}, {s(S_J2)}, 7")
    k.I(f"s_lshl_b32 {s(S_T0)}, {s(S_T0)}, 7")
    k.I(f"v_lshrrev_b32 v12, 3, {v(V_LANE)}")
    k.I("v_lshlrev_b32 v12, 10, v12")
    k.I(f"v_and_b32 v13, 7, {v(V_LANE)}")
    k.I(f"v_bfe_u32 v14, {v(V_LANE)}, 4, 1")
    k.I("v_lshlrev_b32 v14, 2, v14")
    k.I("v_xor_b32 v13, v13, v14")
    k.I("v_lshl_add_u32 v12, v13, 4, v12")
    k.I(f"v_add_u32 v12, {s(S_T0)}, v12")
    k.I(f"s_lshl_b32 {s(S_T3)}, {s(S_W)}, 17")
    k.I(f"s_lshl_b32 {s(S_T4)}, {s(S_W)}, 14")
    if L_WO:
        k.I(f"s_add_u32 {s(S_T4)}, {s(S_T4)}, {L_WO}")
    return [[(f"s_add_u32 {s(S_OFF)}, {s(S_T3)}, {n*8192}", None), (f"s_add_u32 m0, {s(S_T4)}, {n*1024}", None),
             (f"buffer_load_dwordx4 v12, {srd(S_WO)}, {s(S_OFF)} offen lds", "wo")] for n in range(16)]


def swz128_base(k, dst, cbk_sreg=None, cbk_imm=None, s_mul=16):
    lane_fields(k, s_=8, r_=9, c_=10, nh=11)
    lbase_bytes(k, 12, 11, 10, 13, 14)
    k.I(f"v_mul_u32_u24 v8, {s_mul}, v8")
    k.I("v_add_u32 v8, v8, v9")
    k.I("v_lshlrev_b32 v8, 7, v8")
    k.I("v_lshrrev_b32 v9, 1, v9")
    if cbk_sreg is not None:
        k.I(f"v_xor_b32 v9, {s(cbk_sreg)}, v9")
    elif cbk_imm:
        k.I(f"v_xor_b32 v9, {cbk_imm}, v9")
    k.I("v_lshl_add_u32 v8, v9, 6, v8")
    k.I(f"v_add_u32 {v(dst)}, v8, v12")


KV_PB = 16


def kv_addr(k):
    k.I(f"s_lshl_b32 {s(S_KVB)}, {s(S_HP)}, 16")
    k.I(f"s_lshl_b32 {s(S_T2)}, {s(S_W)}, 10")
    k.I(f"s_add_u32 {s(S_KVB)}, {s(S_KVB)}, {s(S_T2)}")
    k.I(f"s_add_u32 {s(S_KVB)}, {s(S_KVB)}, {WS_KVP}")


def kv_loads(k, tag):
    k.I(f"s_mov_b32 {s(S_OFF)}, {s(S_KVB)}")
    for mm in range(16):
        k.I(f"buffer_load_dwordx4 {v(KV_PB+4*mm,4)}, {v(V_L16)}, {srd(S_WS)}, {s(S_OFF)} offen sc1", tag=tag)
        if mm < 15:
            k.I(f"s_add_u32 {s(S_OFF)}, {s(S_OFF)}, 4096")


S_KVB = 35


def kv_combine_and_o(k):
    PB = KV_PB

    def check():
        k.I(f"v_cmp_ne_u32 vcc, {s(S_TAG)}, {v(PB+3)}")
        for mm in range(1, 16):
            k.I(f"v_cmp_ne_u32 {s(S_EX, 2)}, {s(S_TAG)}, {v(PB+4*mm+3)}")
            k.I(f"s_or_b64 vcc, vcc, {s(S_EX, 2)}")

    probe, ok, full, done = (k.newlabel(x) for x in ("kvp_probe", "kvp_seen", "kvp_full", "kvp_done"))
    k.I("v_mov_b32 v10, 0x3f80")
    k.I("v_mov_b32 v11, 0x3f800000")
    for r in range(176, 182):
        k.I(f"v_mov_b32 {v(r)}, 0")
    k.wait_vm("kvp")
    check()
    k.I(f"s_cbranch_vccz {done}")
    k.cond_begin()
    k.I(f"v_min_u32 v14, 15, {v(V_LANE)}")
    k.I("v_lshlrev_b32 v14, 12, v14")
    k.I(f"v_add_u32 v14, {s(S_KVB)}, v14")
    k.spin_init()
    k.label(probe)
    k.I(f"buffer_load_dword v15, v14, {srd(S_WS)}, 0 offen offset:12 sc1")
    k.I("s_waitcnt vmcnt(0)")
    k.I(f"v_cmp_ne_u32 vcc, {s(S_TAG)}, v15")
    k.spin_back(probe, ok)
    k.label(ok)
    k.label(full)
    kv_loads(k, None)
    k.I("s_waitcnt vmcnt(0)")
    check()
    k.spin_back(full, done)
    k.cond_end()
    k.label(done)
    k.stamp("kvp landed")
    wo = wo_items(k) if OPT.get("wo_kv", 1) else []
    for mm in range(16):
        for d in range(2):
            k.I(f"v_dot2c_f32_bf16 {v(176+2*d)}, {v(PB+4*mm+d)}, v10")
            k.I(f"v_dot2c_f32_bf16 {v(177+2*d)}, {v(PB+4*mm+d)}, v11")
        if wo and mm % 2 == 1:
            for t, tg in wo.pop(0):
                k.I(t, tag=tg)
    k.wo_rest = wo
    zs = k.newlabel("zsum")
    k.wave_is(0, zs)
    for mm in range(16):
        k.I(f"v_dot2c_f32_bf16 v180, {v(PB+4*mm+2)}, v10")
        k.I(f"v_dot2c_f32_bf16 v181, {v(PB+4*mm+2)}, v11")
    k.label(zs)
    k.I("s_nop 2")
    for i in range(6):
        k.I(f"v_mov_b32 {v(160+i)}, {v(176+i)}")
    k.I("v_cvt_pk_bf16_f32 v160, v160, v161")
    k.I("v_cvt_pk_bf16_f32 v161, v162, v163")
    k.I(f"v_lshlrev_b32 v8, 5, {v(V_LANE)}")
    k.I(f"s_lshl_b32 {s(S_T0)}, {s(S_W)}, 3")
    k.I(f"s_add_u32 {s(S_T0)}, {s(S_T0)}, {L_KVF}")
    k.I(f"v_add_u32 v8, {s(S_T0)}, v8")
    k.I("ds_write_b64 v8, v[160:161]")
    k.half_total(164, 166)
    k.half_total(165, 166)
    k.I("v_cvt_pk_bf16_f32 v164, v164, v165")
    k.I(f"v_bfe_u32 v8, {v(V_LANE)}, 2, 1")
    k.I(f"v_bfe_u32 v9, {v(V_LANE)}, 3, 2")
    k.I(f"v_and_b32 v10, 3, {v(V_LANE)}")
    k.I("v_lshl_add_u32 v9, v9, 2, v10")
    k.I("v_lshlrev_b32 v9, 1, v9")
    k.I("v_lshl_add_u32 v10, v8, 5, v9")
    k.I(f"v_add_u32 v10, {L_Z}, v10")
    k.I("v_xor_b32 v8, 1, v8")
    k.I("v_lshl_add_u32 v11, v8, 5, v9")
    k.I(f"v_add_u32 v11, {L_Z + 64}, v11")
    w0 = k.newlabel("zw")
    k.wave_is(0, w0)
    k.cond_begin()
    k.I("ds_write_b16 v10, v164")
    k.I("ds_write_b16_d16_hi v11, v164")
    k.cond_end()
    k.label(w0)
    for it in k.wo_rest[:4]:
        for t, tg in it:
            k.I(t, tag=tg)
    k.wait_lg_all()
    k.barrier()
    k.stamp("kvf barrier")
    k.I(f"v_lshlrev_b32 v8, 5, {v(V_LANE)}")
    k.I(f"v_add_u32 v8, {L_KVF}, v8")
    k.I(f"v_xor_b32 v9, 32, {v(V_LANE)}")
    k.I("v_lshlrev_b32 v9, 5, v9")
    k.I(f"v_add_u32 v9, {L_KVF}, v9")
    k.I(f"v_mov_b32 v10, {L_ZERO}")
    k.I(f"v_cndmask_b32 v8, v10, v8, {s(S_VALID,2)}")
    k.I(f"v_cndmask_b32 v9, v10, v9, {s(S_VALID,2)}")
    k.I(f"v_lshrrev_b32 v10, 5, {v(V_LANE)}")
    k.I("v_lshlrev_b32 v10, 5, v10")
    k.I(f"v_add_u32 v10, {L_Z}, v10")
    PF, NF, ZP, ZN = 112, 120, 128, 136
    k.I(f"ds_read_b128 {v(PF,4)}, v8")
    k.I(f"ds_read_b128 {v(PF+4,4)}, v8 offset:16")
    k.I(f"ds_read_b128 {v(NF,4)}, v9")
    k.I(f"ds_read_b128 {v(NF+4,4)}, v9 offset:16")
    k.I(f"ds_read_b128 {v(ZP,4)}, v10")
    k.I(f"ds_read_b128 {v(ZP+4,4)}, v10 offset:16")
    k.I(f"ds_read_b128 {v(ZN,4)}, v10 offset:64")
    k.I(f"ds_read_b128 {v(ZN+4,4)}, v10 offset:80")
    k.wait_lg_all()
    for it in k.wo_rest[4:]:
        for t, tg in it:
            k.I(t, tag=tg)
    NUM = 144
    k.mfma32(v(NUM, 16), v(PF, 4), v(QP, 4), "0")
    k.mfma32(v(NUM, 16), v(PF + 4, 4), v(QP + 4, 4))
    k.mfma32(v(NUM, 16), v(NF, 4), v(QN, 4))
    k.mfma32(v(NUM, 16), v(NF + 4, 4), v(QN + 4, 4))
    k.I("v_mov_b32 v10, 0")
    k.I("v_mov_b32 v11, 0")
    for i in range(8):
        k.I(f"v_dot2c_f32_bf16 v10, {v(QP+i)}, {v(ZP+i)}")
        k.I(f"v_dot2c_f32_bf16 v11, {v(QN+i)}, {v(ZN+i)}")
    k.I("v_add_f32 v10, v10, v11")
    k.I("v_add_f32 v10, 0x358637bd, v10")
    k.I("v_rcp_f32 v10, v10")
    for i in range(0, 16, 2):
        k.I(f"v_pk_mul_f32 {v(NUM+i,2)}, {v(NUM+i,2)}, v[10:11] op_sel_hi:[1,0]")
    for i in range(8):
        k.I(f"v_cvt_pk_bf16_f32 {v(160+i)}, {v(NUM+2*i)}, {v(NUM+2*i+1)}")
    k.stamp("o computed")
    k.I(f"s_lshl_b32 {s(S_T0)}, {s(S_M)}, 2")
    k.I(f"s_add_u32 {s(S_T0)}, {s(S_T0)}, {s(S_W)}")
    k.I(f"s_lshl_b32 {s(S_T0)}, {s(S_T0)}, 15")
    k.I(f"s_lshl_b32 {s(S_T1)}, {s(S_HP)}, 11")
    k.I(f"s_add_u32 {s(S_T0)}, {s(S_T0)}, {s(S_T1)}")
    k.I(f"s_add_u32 {s(S_T0)}, {s(S_T0)}, {WS_O}")
    k.I(f"v_add_u32 v8, {s(S_T0)}, {v(V_L16)}")
    k.I(f"buffer_store_dwordx4 v[160:163], v8, {srd(S_WS)}, 0 offen sc1")
    k.I(f"buffer_store_dwordx4 v[164:167], v8, {srd(S_WS)}, 0 offen offset:1024 sc1")
    k.wait_vm_all()
    k.I(f"s_lshl_b32 {s(S_T0)}, {s(S_M)}, 4")
    k.I(f"s_add_u32 {s(S_T0)}, {s(S_T0)}, {s(S_J)}")
    k.I(f"s_lshl_b32 {s(S_T0)}, {s(S_T0)}, 7")
    k.I(f"s_add_u32 {s(S_T0)}, {s(S_T0)}, {WS_FO}")
    k.signal(S_T0, "fo")
    k.stamp("o published")
    code_touch(k, 1, 0, t=(12, 13))


S_TBL, S_CBK, S_TB, S_B32 = 96, 97, 98, 99


def quad_ids(k):
    k.I(f"s_and_b32 {s(S_TBL)}, {s(S_W)}, 1")
    k.I(f"s_lshr_b32 {s(S_CBK)}, {s(S_W)}, 1")
    k.I(f"s_lshr_b32 {s(S_T0)}, {s(S_J2)}, 3")
    k.I(f"s_lshl_b32 {s(S_T0)}, {s(S_T0)}, 1")
    k.I(f"s_lshl_b32 {s(S_TB)}, {s(S_M2)}, 2")
    k.I(f"s_add_u32 {s(S_TB)}, {s(S_TB)}, {s(S_T0)}")
    k.I(f"s_add_u32 {s(S_TB)}, {s(S_TB)}, {s(S_TBL)}")
    k.I(f"s_and_b32 {s(S_B32)}, {s(S_J2)}, 7")
    k.I(f"s_lshl_b32 {s(S_B32)}, {s(S_B32)}, 1")
    k.I(f"s_add_u32 {s(S_B32)}, {s(S_B32)}, {s(S_CBK)}")


def mod16(k, dst_regs, gran0, stem):
    k.I(f"v_lshrrev_b32 v8, 5, {v(V_LANE)}")
    k.I("v_lshlrev_b32 v8, 6, v8")
    k.I(f"s_lshl_b32 {s(S_T0)}, {s(S_B32)}, 7")
    k.I(f"s_add_u32 {s(S_T0)}, {s(S_T0)}, {WS_MODG + gran0*8}")
    k.I(f"v_add_u32 v8, {s(S_T0)}, v8")
    k.load_granules_checked([dst_regs + 4 * i for i in range(4)], [8] * 4, stem, width=4, tagpos=(1, 3), imm=[0, 16, 32, 48])


VD = 4
S_M0, S_SO = 90, 91


def ring_setup(k):
    k.I(f"s_and_b32 {s(S_T0)}, {s(S_W)}, 1")
    k.I(f"s_cmp_eq_u32 {s(S_T0)}, 0")
    for i in range(4):
        k.I(f"s_cselect_b32 {s(S_SEL+i)}, {s(S_WG+i)}, {s(S_WU+i)}")
    for n in range(7):
        k.I(f"v_add_u32 v14, {64*n}, {v(V_LANE)}")
        k.I("v_mul_u32_u24 v15, 4682, v14")
        k.I("v_lshrrev_b32 v15, 16, v15")
        k.I(f"v_mul_u32_u24 {v(VD+n)}, 14, v15")
        k.I(f"v_sub_u32 v14, v14, {v(VD+n)}")
        k.I("v_mul_u32_u24 v15, 3584, v15")
        k.I("v_lshl_add_u32 v15, v14, 4, v15")
        k.I(f"s_mul_i32 {s(S_T0)}, {s(S_J)}, 224")
        k.I(f"v_add_u32 {v(VD+n)}, {s(S_T0)}, v15")
    for z in range(448):
        assert (z * 4682) >> 16 == z // 14
    k.I(f"s_lshr_b32 {s(S_T0)}, {s(S_W)}, 1")
    k.I(f"s_mul_i32 {s(S_M0)}, {s(S_T0)}, {SLAB}")
    k.I(f"s_and_b32 {s(S_T1)}, {s(S_W)}, 1")
    k.I(f"s_mul_i32 {s(S_T1)}, {s(S_T1)}, {UOFF}")
    k.I(f"s_add_u32 {s(S_M0)}, {s(S_M0)}, {s(S_T1)}")
    k.I(f"s_mul_i32 {s(S_SO)}, {s(S_T0)}, {32*3584}")


def ring_pair(k, P, as_list=False):
    out = [(f"s_add_u32 m0, {s(S_M0)}, {(P % 5) * 2 * SLAB}", None),
           (f"s_add_u32 {s(S_OFF)}, {s(S_SO)}, {P * 2 * 32 * 3584}", None)]
    for n in range(7):
        out.append((f"buffer_load_dwordx4 {v(VD+n)}, {srd(S_SEL)}, {s(S_OFF)} offen lds", f"W{P}"))
        if n < 6:
            out.append(("s_add_u32 m0, m0, 1024", None))
    if as_list:
        return out
    for t, tg in out:
        k.I(t, tag=tg)


def p2(k):
    XR, GA, CBR = 64, 72, 88
    k.I(f"v_and_b32 v12, 31, {v(V_LANE)}")
    k.I("v_lshlrev_b32 v12, 10, v12")
    k.I(f"v_lshrrev_b32 v13, 5, {v(V_LANE)}")
    k.I("v_lshl_add_u32 v12, v13, 5, v12")
    k.I(f"s_lshl_b32 {s(S_T0)}, {s(S_TB)}, 15")
    k.I(f"s_lshl_b32 {s(S_T1)}, {s(S_B32)}, 6")
    k.I(f"s_add_u32 {s(S_T0)}, {s(S_T0)}, {s(S_T1)}")
    k.I(f"v_add_u32 v12, {s(S_T0)}, v12")
    k.I(f"buffer_load_dwordx4 {v(XR,4)}, v12, {srd(S_X)}, 0 offen", tag="xr")
    k.I(f"buffer_load_dwordx4 {v(XR+4,4)}, v12, {srd(S_X)}, 0 offen offset:16", tag="xr")
    swz128_base(k, 15, cbk_sreg=S_CBK)
    for kap in range(32):
        hp, a = kap >> 1, kap & 1
        for rd in range(2):
            k.I(f"ds_read_b64_tr_b16 {a_(4*kap + 2*rd, 2)}, v15 offset:{L_WO + (32*hp + 8*a + 4*rd)*128}", tag="wof")
        if kap % 4 == 3:
            k.I("s_waitcnt lgkmcnt(6)")
    k.wait_lg_all()
    k.stamp("wof read")
    modn_compute(k)
    k.stamp("modn")
    ring_setup(k)
    k.I(f"v_lshrrev_b32 v13, 5, {v(V_LANE)}")
    k.I("v_lshlrev_b32 v13, 6, v13")
    k.I(f"s_lshl_b32 {s(S_T0)}, {s(S_B32)}, 7")
    k.I(f"s_add_u32 {s(S_T0)}, {s(S_T0)}, {WS_MODG}")
    k.I(f"v_add_u32 v13, {s(S_T0)}, v13")
    k.I(f"v_add_u32 v12, {512*8}, v13")
    k.I(f"v_add_u32 v13, {1024*8}, v13")
    gr = ([GA + 4 * i for i in range(4)] + [CBR + 4 * i for i in range(4)], [12] * 4 + [13] * 4)
    gimm = [0, 16, 32, 48] * 2
    k.I(f"s_lshl_b32 {s(S_T0)}, {s(S_M2)}, 11")
    k.I(f"s_add_u32 {s(S_T0)}, {s(S_T0)}, {WS_FO}")
    k.poll_flags(S_T0, 16, "po")
    k.stamp("o flags seen")
    k.I(f"s_sub_u32 {s(S_T0)}, {s(S_TB)}, {s(S_TBL)}")
    k.I(f"s_lshl_b32 {s(S_T0)}, {s(S_T0)}, 15")
    k.I(f"s_lshl_b32 {s(S_T1)}, {s(S_W)}, 14")
    k.I(f"s_add_u32 {s(S_T2)}, {s(S_T0)}, {s(S_T1)}")
    k.I(f"s_add_u32 {s(S_T2)}, {s(S_T2)}, {WS_O}")
    k.I(f"s_add_u32 {s(S_T3)}, {s(S_T1)}, {L_OI}")
    k.I(f"s_and_b32 {s(S_T4)}, {s(S_J2)}, 7")
    k.I(f"s_lshl_b32 {s(S_T4)}, {s(S_T4)}, 11")
    k._tag = "of"
    for n in range(16):
        k.I(f"s_add_u32 {s(S_T0)}, {s(S_T4)}, {n*1024}")
        k.I(f"s_and_b32 {s(S_T0)}, {s(S_T0)}, 0x3fff")
        k.I(f"s_add_u32 m0, {s(S_T3)}, {s(S_T0)}")
        k.I(f"s_add_u32 {s(S_OFF)}, {s(S_T2)}, {s(S_T0)}")
        k.dma(V_L16, S_WS, s(S_OFF), sc1=True)
    k._tag = None
    k.granule_loads(gr[0], gr[1], 4, gimm, "gacb")
    ring_a = []
    for P in range(3):
        cur = []
        for t, tg in ring_pair(k, P, as_list=True):
            cur.append((t, tg))
            if t.startswith("buffer_"):
                ring_a.append(cur)
                cur = []
    for _ in range(OPT.get("ring_a0", 8)):
        for t, tg in ring_a.pop(0):
            k.I(t, tag=tg)
    k.I(f"s_lshl_b32 {s(S_T0)}, {s(S_TBL)}, 15")
    k.I(f"s_add_u32 {s(S_T0)}, {s(S_T0)}, {L_OI}")
    k.I(f"v_add_u32 v14, {s(S_T0)}, {v(V_L16)}")
    k.wait_vm("of")
    k.barrier()
    k.stamp("o landed")
    GAF, C2F, XF = 144, 160, 176
    pre = [lambda: k.granule_verify(gr[0], gr[1], "gacb", 4, (1, 3), gimm, "gacb")]
    for i in range(8):
        g = GA + 4 * (i >> 1) + 2 * (i & 1)
        c = CBR + 4 * (i >> 1) + 2 * (i & 1)
        pre += [f"v_lshlrev_b32 {v(GAF+2*i)}, 16, {v(g)}", f"v_and_b32 {v(GAF+2*i+1)}, {s(S_MASK)}, {v(g)}",
                f"v_lshlrev_b32 {v(XF+2*i)}, 16, {v(XR+i)}", f"v_and_b32 {v(XF+2*i+1)}, {s(S_MASK)}, {v(XR+i)}",
                f"v_lshlrev_b32 {v(C2F+2*i)}, 16, {v(c)}", f"v_and_b32 {v(C2F+2*i+1)}, {s(S_MASK)}, {v(c)}",
                f"v_add_f32 {v(C2F+2*i)}, 1.0, {v(C2F+2*i)}", f"v_add_f32 {v(C2F+2*i+1)}, 1.0, {v(C2F+2*i+1)}",
                f"v_cvt_pk_bf16_f32 {v(c)}, {v(C2F+2*i)}, {v(C2F+2*i+1)}",
                f"v_lshlrev_b32 {v(C2F+2*i)}, 16, {v(c)}", f"v_and_b32 {v(C2F+2*i+1)}, {s(S_MASK)}, {v(c)}"]
    ACC = 112
    nb = 6
    for kap in range(32 + nb - 2):
        if kap < 32:
            k.I(f"ds_read_b128 {v(16 + 4*(kap % nb), 4)}, v14 offset:{kap*1024}", tag=f"o{kap}")
        q = kap - (nb - 2)
        if q >= 0:
            k.wait_lg(f"o{q}")
            k.mfma32(v(ACC, 16), a_(4 * q, 4), v(16 + 4 * (q % nb), 4), "0" if q == 0 else None)
            if ring_a and (q % 2 == 0 or len(ring_a) > (31 - q) // 2 + 1):
                for t, tg in ring_a.pop(0):
                    k.I(t, tag=tg)
            if q >= 6:
                for _ in range(4):
                    if pre:
                        it = pre.pop(0)
                        it() if callable(it) else k.I(it)
    assert not ring_a and not pre
    k.stamp("wo gemm")
    k.barrier()
    k.stamp("gacb ok")
    ring = []
    for P in range(3, 5):
        items = ring_pair(k, P, as_list=True)
        cur = []
        for t, tg in items:
            cur.append((t, tg))
            if t.startswith("buffer_"):
                ring.append(cur)
                cur = []

    def ring_some(n):
        for _ in range(min(n, len(ring))):
            for t, tg in ring.pop(0):
                k.I(t, tag=tg)

    T = 128
    X1 = 136
    YP = 128
    k.I("v_mov_b32 v40, 0")
    k.I("v_mov_b32 v41, 0")
    k.I("v_mov_b32 v42, 0x3f803f80")
    for i in range(16):
        k.I(f"v_fmac_f32 {v(XF+i)}, {v(GAF+i)}, {v(ACC+i)}")
    for i in range(8):
        k.I(f"v_cvt_pk_bf16_f32 {v(X1+i)}, {v(XF+2*i)}, {v(XF+2*i+1)}")
    ring_some(2)
    for i in range(8):
        k.unpack(XF + 2 * i, XF + 2 * i + 1, X1 + i)
    for i in range(8):
        k.I(f"v_pk_mul_f32 {v(XF+2*i,2)}, {v(XF+2*i,2)}, {v(C2F+2*i,2)}")
    for i in range(8):
        k.I(f"v_cvt_pk_bf16_f32 {v(YP+i)}, {v(XF+2*i)}, {v(XF+2*i+1)}")
    k.I(f"s_lshl_b32 {s(S_T0)}, {s(S_TB)}, 15")
    k.I(f"s_lshl_b32 {s(S_T1)}, {s(S_B32)}, 11")
    k.I(f"s_add_u32 {s(S_T0)}, {s(S_T0)}, {s(S_T1)}")
    k.I(f"s_add_u32 {s(S_T0)}, {s(S_T0)}, {WS_Y}")
    k.I(f"v_add_u32 v12, {s(S_T0)}, {v(V_L16)}")
    k.I(f"buffer_store_dwordx4 {v(YP,4)}, v12, {srd(S_WS)}, 0 offen sc1", tag="yst")
    k.I(f"buffer_store_dwordx4 {v(YP+4,4)}, v12, {srd(S_WS)}, 0 offen offset:1024 sc1", tag="yst")
    for i in range(8):
        k.I(f"v_dot2c_f32_bf16 v40, {v(X1+i)}, v42")
        k.I(f"v_dot2c_f32_bf16 v41, {v(X1+i)}, {v(X1+i)}")
    k.half_total(40, 43)
    k.half_total(41, 43)
    k.I(f"s_lshl_b32 {s(S_T0)}, {s(S_TB)}, 4")
    k.I(f"s_add_u32 {s(S_T0)}, {s(S_T0)}, {s(S_B32)}")
    k.I(f"s_lshl_b32 {s(S_T0)}, {s(S_T0)}, 8")
    k.I(f"s_add_u32 {s(S_T0)}, {s(S_T0)}, {WS_STATS}")
    k.I(f"v_lshlrev_b32 v12, 3, {v(V_LANE)}")
    k.I(f"v_add_u32 v12, {s(S_T0)}, v12")
    k.I("s_mov_b32 exec_hi, 0")
    k.I(f"buffer_store_dwordx2 v[40:41], v12, {srd(S_WS)}, 0 offen sc1", tag="yst")
    k.I("s_mov_b64 exec, -1")
    k.stamp("y stored")
    ring_some(OPT.get("ring_pre", 8))
    k.stamp("ring b")
    for i in range(8):
        k.I(f"v_accvgpr_write_b32 {a_(248+i)}, {v(X1+i)}")
    k.wait_vm("yst")
    k.I(f"s_lshl_b32 {s(S_T0)}, {s(S_M2)}, 4")
    k.I(f"s_add_u32 {s(S_T0)}, {s(S_T0)}, {s(S_J2)}")
    k.I(f"s_lshl_b32 {s(S_T0)}, {s(S_T0)}, 7")
    k.I(f"s_add_u32 {s(S_T0)}, {s(S_T0)}, {WS_FY}")
    k.signal(S_T0, "fy")
    noe = k.newlabel("noepoch")
    k.I("s_cmp_eq_u32 s2, 0")
    k.I(f"s_cbranch_scc0 {noe}")
    k.wave_is(0, noe)
    k.cond_begin()
    k.I("v_mov_b32 v12, 0")
    k.I("s_mov_b64 exec, 1")
    k.I(f"buffer_store_dword {v(V_TAG)}, v12, {srd(S_WS)}, 0 offen sc1")
    k.I("s_mov_b64 exec, -1")
    k.cond_end()
    k.label(noe)
    k.stamp("y published")
    ring_some(len(ring))
    ub_compute(k)
    k.stamp("ub")


def p3_tail(k, ST, AE, BE):
    it = [lambda: k.wait_vm("st")]
    for i in range(1, 8):
        it.append(f"v_add_f32 v16, v16, {v(ST+2*i)}")
        it.append(f"v_add_f32 v17, v17, {v(ST+2*i+1)}")
    for r in (16, 17):
        it += [f"v_mov_b32 v18, {v(r)}", "s_nop 1", f"v_permlane32_swap_b32 {v(r)}, v18", f"v_add_f32 {v(r)}, {v(r)}, v18"]
    it += ["v_mul_f32 v16, 0x3b000000, v16", "v_mul_f32 v17, 0x3b000000, v17", "v_fma_f32 v17, -v16, v16, v17",
           "v_max_f32 v17, 0, v17", "v_add_f32 v17, 0x3727c5ac, v17", "v_rsq_f32 v18, v17", "v_sub_f32 v16, 0, v16",
           "v_mul_f32 v19, v17, v18", "v_mul_f32 v20, v18, v18", "v_cvt_pk_bf16_f32 v22, v16, v19",
           "v_lshlrev_b32 v24, 16, v22", f"v_and_b32 v25, {s(S_MASK)}, v22", "v_sub_f32 v24, v16, v24", "v_sub_f32 v25, v19, v25",
           "v_cvt_pk_bf16_f32 v23, v24, v25",
           f"s_mov_b32 {s(S_T1)}, 0x01000100", f"v_perm_b32 {v(BE)}, v22, v22, {s(S_T1)}",
           f"s_mov_b32 {s(S_T1)}, 0x07060100", f"v_perm_b32 {v(BE+1)}, v22, v23, {s(S_T1)}",
           f"s_mov_b32 {s(S_T1)}, 0x07060302", f"v_perm_b32 {v(BE+2)}, v23, v22, {s(S_T1)}",
           f"v_mov_b32 {v(BE+3)}, 0", f"v_cmp_gt_u32 vcc, 32, {v(V_LANE)}"]
    it.append(lambda: [k.I(f"v_cndmask_b32 {v(BE+i)}, 0, {v(BE+i)}, vcc") for i in range(3)])
    regs = [AE + 28 * h + 4 * b for h in range(2) for b in range(7)]
    it.append(lambda: k.granule_verify(regs, [14] * 7 + [15] * 7, "wext", 4, (3,), [256 * b for b in range(7)] * 2, "wext"))
    it += [f"v_mov_b32 {v(r+3)}, 0" for r in regs]
    return it


def p3(k):
    Y0, ACC = 16, 144
    VTR = (11, 12, 13)
    lane_fields(k, s_=14, r_=15)
    k.I("v_lshl_add_u32 v14, v14, 4, v15")
    k.I("v_mul_u32_u24 v14, 224, v14")
    k.I(f"v_bfe_u32 v15, {v(V_LANE)}, 4, 1")
    k.I(f"v_mul_u32_u24 v15, {UOFF}, v15")
    k.I("v_add_u32 v14, v14, v15")
    k.I(f"v_and_b32 v15, 1, {v(V_LANE)}")
    k.I("v_lshl_add_u32 v14, v15, 4, v14")
    k.I(f"v_bfe_u32 v15, {v(V_LANE)}, 1, 1")
    k.I(f"v_lshl_add_u32 {v(VTR[0])}, v15, 3, v14")
    k.I(f"v_add_u32 {v(VTR[1])}, {4*SLAB}, {v(VTR[0])}")
    k.I(f"v_add_u32 {v(VTR[2])}, {8*SLAB}, {v(VTR[0])}")
    k.I(f"s_lshl_b32 {s(S_T0)}, {s(S_M)}, 11")
    k.I(f"s_add_u32 {s(S_T0)}, {s(S_T0)}, {WS_FY}")
    k.wait_vm_all()
    k.poll_flags(S_T0, 16, "py")
    k.stamp("y flags seen")
    S_TB3 = S_T2
    k.I(f"s_lshl_b32 {s(S_TB3)}, {s(S_M)}, 2")
    k.I(f"s_add_u32 {s(S_TB3)}, {s(S_TB3)}, {s(S_W)}")
    k.I(f"s_lshl_b32 {s(S_T3)}, {s(S_TB3)}, 15")
    k.I(f"s_add_u32 {s(S_T3)}, {s(S_T3)}, {WS_Y}")

    def ld_y(kap):
        out = []
        if kap and kap & 3 == 0:
            out.append((f"s_add_u32 {s(S_T3)}, {s(S_T3)}, 4096", None))
        out.append((f"buffer_load_dwordx4 {v(Y0+4*kap,4)}, {v(V_L16)}, {srd(S_WS)}, {s(S_T3)} offen offset:{(kap&3)*1024} sc1", f"y{kap}"))
        return out

    if OPT.get("coop", 0):
        k.I(f"v_and_b32 v14, 31, {v(V_LANE)}")
        k.I("v_lshlrev_b32 v14, 7, v14")
        k.I(f"s_and_b32 {s(S_T0)}, {s(S_J)}, 7")
        k.I(f"s_lshl_b32 {s(S_T0)}, {s(S_T0)}, 12")
        k.I(f"v_add_u32 v14, {s(S_T0)}, v14")
        k.I(f"buffer_load_dword v0, v14, {srd(S_WS)}, {s(S_T3)} offen", tag="t")
    NY0 = OPT.get('ny0', 20)
    for kap in range(NY0):
        for t, tg in ld_y(kap):
            k.I(t, tag=tg)

    def rd_w(kap, beta):
        B, a = kap >> 1, kap & 1
        P = B >> 1
        slot = (P % 5) * 2 + (B & 1)
        base = VTR[slot >> 2]
        return [(f"ds_read_b64_tr_b16 {a_(28*(kap&1) + 4*beta + 2*rd, 2)}, {v(base)} offset:{(slot & 3) * SLAB + (8*a + 4*rd)*224 + 32*beta}", f"w{kap}_{beta}") for rd in range(2)]

    ub_publish(k)
    for beta in range(7):
        for t, tg in rd_w(0, beta):
            k.I(t, tag=tg)
    side = []
    tail = []
    ST, AE, BE = 16, 32, 28
    for kap in range(32):
        P = kap >> 2
        if kap & 3 == 3 and P < 7:
            k.wait_vm(f"W{P+1}")
            if not OPT.get("x_nobar"):
                k.barrier()
            if 1 <= P <= 3 and not OPT.get("x_noring"):
                side += ring_pair(k, P + 4, as_list=True)
        if kap + NY0 < 32:
            side = ld_y(kap + NY0) + side
        if OPT["touch"] and kap == OPT.get("twdk", 24) and not OPT.get("map24"):
            side.append((f"s_lshl_b32 {s(S_T0)}, {s(S_I)}, 2", None))
            side.append((f"s_add_u32 {s(S_T0)}, {s(S_T0)}, {s(S_W)}", None))
            side.append((f"s_mul_i32 {s(S_T0)}, {s(S_T0)}, {112*128}", None))
            side.append((f"v_min_u32 v7, 55, {v(V_LANE)}", None))
            side.append(("v_lshlrev_b32 v7, 7, v7", None))
            side.append((f"buffer_load_dword v0, v7, {srd(S_WD)}, {s(S_T0)} offen", "t"))
            side.append((f"s_add_u32 {s(S_T0)}, {s(S_T0)}, {56*128}", None))
            side.append((f"buffer_load_dword v0, v7, {srd(S_WD)}, {s(S_T0)} offen", "t"))
        if kap == OPT.get('kst', 18):
            side.append((f"s_lshl_b32 {s(S_T0)}, {s(S_TB3)}, 12", None))
            side.append((f"s_add_u32 {s(S_T0)}, {s(S_T0)}, {WS_STATS}", None))
            side.append((f"v_and_b32 v14, 31, {v(V_LANE)}", None))
            side.append(("v_lshlrev_b32 v14, 3, v14", None))
            side.append((f"v_lshrrev_b32 v15, 5, {v(V_LANE)}", None))
            side.append(("v_lshl_add_u32 v14, v15, 11, v14", None))
            side.append((f"v_add_u32 v14, {s(S_T0)}, v14", None))
            for i in range(8):
                side.append((f"buffer_load_dwordx2 {v(ST+2*i,2)}, v14, {srd(S_WS)}, 0 offen offset:{i*256} sc1", "st"))
        if kap == OPT.get('kwx', 22):
            for t in (f"v_bfe_u32 v14, {v(V_LANE)}, 2, 1", "v_lshlrev_b32 v14, 3, v14", f"v_bfe_u32 v15, {v(V_LANE)}, 3, 1",
                      "v_lshl_add_u32 v14, v15, 2, v14", f"v_and_b32 v15, 3, {v(V_LANE)}", "v_add_u32 v14, v14, v15",
                      f"v_bfe_u32 v15, {v(V_LANE)}, 4, 1", "v_mul_u32_u24 v15, 1792, v15", "v_add_u32 v14, v14, v15",
                      f"s_mul_i32 {s(S_T0)}, {s(S_J)}, 112", f"v_add_u32 v14, {s(S_T0)}, v14", "v_lshlrev_b32 v14, 4, v14",
                      f"v_add_u32 v14, {WS_WEXT}, v14", f"v_add_u32 v15, {3584*16}, v14"):
                side.append((t, None))
            for h in range(2):
                for b in range(7):
                    side.append((f"buffer_load_dwordx4 {v(AE+28*h+4*b,4)}, {v(14+h)}, {srd(S_WS)}, 0 offen offset:{256*b} sc1", "wext"))
        if kap == OPT.get('kwd', 20):
            side += [(t, None) for t in wd_setup_items()]
        if kap == 23 and OPT.get("g0loop"):
            for it in wd_dma(0, WD_G1):
                side += it
        if kap == 23 and OPT.get("codepf3"):
            code_touch(k, 1, 0, t=(8, 9))
        if kap == OPT.get("ktail", 26):
            tail = p3_tail(k, ST, AE, BE)
        k.wait_vm(f"y{kap}")
        if kap in (1, 8, 16, 24):
            k.stamp(f"p3 k{kap}")
        for beta in range(7):
            k.wait_lg(f"w{kap}_{beta}")
            k.mfma32(v(ACC + 16 * beta, 16), a_(28 * (kap & 1) + 4 * beta, 4), v(Y0 + 4 * kap, 4), "0" if kap == 0 else None)
            if kap + 1 < 32 and not OPT.get("x_notr"):
                for t, tg in rd_w(kap + 1, beta):
                    k.I(t, tag=tg)
            for _ in range(OPT.get("tailrate", 2)):
                if tail:
                    it = tail.pop(0)
                    it() if callable(it) else k.I(it)
            nvm = 0
            while side and nvm < 1:
                t, tg = side.pop(0)
                k.I(t, tag=tg)
                if t.startswith("buffer_"):
                    nvm += 1
    for t, tg in side:
        k.I(t, tag=tg)
    assert not tail
    for h in range(2):
        for b in range(7):
            k.mfma32(v(ACC + 16 * b, 16), v(AE + 28 * h + 4 * b, 4), v(BE, 4))
    k.stamp("gate/up gemm")
    k.barrier()
    if OPT.get("wdshare"):
        wd_bases(k)
        k.I(f"s_mul_i32 {s(S_T0)}, {s(S_TB3)}, 112")
        k.I(f"s_mul_i32 {s(S_T1)}, {s(S_J)}, 7")
        k.I(f"s_add_u32 {s(S_T0)}, {s(S_T0)}, {s(S_T1)}")
        k.I(f"s_lshl_b32 {s(S_T0)}, {s(S_T0)}, 10")
        k.I(f"s_add_u32 {s(S_AO)}, {s(S_T0)}, {WS_ACT}")
        for b in range(7):
            G = ACC + 16 * b
            U = G + 8
            o = 96 + 4 * b
            for e in range(0, 8, 2):
                k.I(f"v_pk_mul_f32 {v(U+e,2)}, {v(U+e,2)}, v[20:21] op_sel_hi:[1,0]")
            for e in range(8):
                k.I(f"v_max_f32 {v(G+e)}, 0, {v(G+e)}")
            for e in range(0, 8, 2):
                k.I(f"v_pk_mul_f32 {v(G+e,2)}, {v(G+e,2)}, {v(U+e,2)}")
            for e in range(0, 8, 2):
                k.I(f"v_cvt_pk_bf16_f32 {v(o+e//2)}, {v(G+e)}, {v(G+e+1)}")
            k.I(f"buffer_store_dwordx4 {v(o,4)}, {v(V_L16)}, {srd(S_WS)}, {s(S_AO)} offen offset:{(b&3)*1024} sc1", tag="ast")
            if b == 3:
                k.I(f"s_add_u32 {s(S_AO)}, {s(S_AO)}, 4096")
        k.stamp("act stored")
        NPRE = OPT.get("wd_pre", 6)
        own = wd_dma(0, WD_G1)

        def share(n0, n1):
            for n in range(n0, n1):
                k.I(f"s_sub_u32 {s(S_T0)}, {s(S_W)}, 1")
                k.I(f"s_mul_i32 {s(S_T0)}, {s(S_T0)}, 13")
                k.I(f"s_add_u32 {s(S_T0)}, {s(S_T0)}, {n}")
                k.I(f"s_min_u32 {s(S_T0)}, {s(S_T0)}, 37")
                k.I(f"s_lshl_b32 {s(S_OFF)}, {s(S_T0)}, 13")
                k.I(f"s_lshl_b32 {s(S_T0)}, {s(S_T0)}, 10")
                k.I(f"s_add_u32 {s(S_T1)}, {s(S_T0)}, {WD_TOP}")
                k.I(f"s_sub_u32 m0, {s(S_T0)}, {18*1024}")
                k.I(f"s_cmp_lt_u32 {s(S_T0)}, {18*1024}")
                k.I(f"s_cselect_b32 m0, {s(S_T1)}, m0")
                k.I(f"buffer_load_dwordx4 v4, {srd(S_WD)}, {s(S_OFF)} offen lds")

        l0, l1 = k.newlabel("wdp"), k.newlabel("wdp")
        k.cond_begin()
        k.wave_is(0, l0)
        k.I("s_waitcnt vmcnt(0)")
        k.I(f"s_branch {l1}")
        k.label(l0)
        share(0, NPRE)
        k.I(f"s_waitcnt vmcnt({NPRE})")
        k.label(l1)
        k.cond_end()
        k.vmq = []
        k.I(f"s_lshl_b32 {s(S_T0)}, {s(S_M)}, 4")
        k.I(f"s_add_u32 {s(S_T0)}, {s(S_T0)}, {s(S_J)}")
        k.I(f"s_lshl_b32 {s(S_T0)}, {s(S_T0)}, 7")
        k.I(f"s_add_u32 {s(S_T0)}, {s(S_T0)}, {WS_FA}")
        k.signal(S_T0, "fa")
        k.stamp("act published")
        l0 = k.newlabel("wdq")
        k.I(f"s_cmp_eq_u32 {s(S_W)}, 0")
        k.I(f"s_cbranch_scc1 {l0}")
        k.cond_begin()
        share(NPRE, 13)
        for it in own:
            for t, tg in it:
                k.I(t, tag=tg)
        if OPT.get("g1pre", 1):
            for it in wd_dma(WD_G1, WD_G2):
                for t, tg in it:
                    k.I(t, tag=tg)
            k.I(f"s_waitcnt vmcnt({2*(WD_G2-WD_G1)})")
        else:
            k.I("s_waitcnt vmcnt(0)")
        k.cond_end()
        k.label(l0)
    else:
        wd_bases(k)
        dm = wd_dma(WD_G1, WD_G2) if OPT.get("g0loop") else wd_dma(0, WD_G2)
        k.I(f"s_mul_i32 {s(S_T0)}, {s(S_TB3)}, 112")
        k.I(f"s_mul_i32 {s(S_T1)}, {s(S_J)}, 7")
        k.I(f"s_add_u32 {s(S_T0)}, {s(S_T0)}, {s(S_T1)}")
        k.I(f"s_lshl_b32 {s(S_T0)}, {s(S_T0)}, 10")
        k.I(f"s_add_u32 {s(S_AO)}, {s(S_T0)}, {WS_ACT}")

        def dma_some(n):
            for _ in range(n):
                for t, tg in dm.pop(0):
                    k.I(t, tag=tg)

        for b in range(7):
            G = ACC + 16 * b
            U = G + 8
            o = 96 + 4 * b
            for e in range(0, 8, 2):
                k.I(f"v_pk_mul_f32 {v(U+e,2)}, {v(U+e,2)}, v[20:21] op_sel_hi:[1,0]")
            for e in range(8):
                k.I(f"v_max_f32 {v(G+e)}, 0, {v(G+e)}")
            for e in range(0, 8, 2):
                k.I(f"v_pk_mul_f32 {v(G+e,2)}, {v(G+e,2)}, {v(U+e,2)}")
            for e in range(0, 8, 2):
                k.I(f"v_cvt_pk_bf16_f32 {v(o+e//2)}, {v(G+e)}, {v(G+e+1)}")
            k.I(f"buffer_store_dwordx4 {v(o,4)}, {v(V_L16)}, {srd(S_WS)}, {s(S_AO)} offen offset:{(b&3)*1024} sc1", tag="ast")
            if b == 3:
                k.I(f"s_add_u32 {s(S_AO)}, {s(S_AO)}, 4096")
            if b < 6:
                dma_some(OPT.get("wd_mix", 2))
        k.stamp("act stored")
        dma_some(OPT.get("wd_pre", 8))

        def g0_reads():
            k.wait_vm(f"wd{WD_G1-1}")
            for kl in range(WD_G1):
                for t, tg in wd_reads(kl):
                    k.I(t, tag=tg)
                if kl % 2 == 1:
                    k.I("s_waitcnt lgkmcnt(4)")
        k.wait_vm("ast")
        k.I(f"s_lshl_b32 {s(S_T0)}, {s(S_M)}, 4")
        k.I(f"s_add_u32 {s(S_T0)}, {s(S_T0)}, {s(S_J)}")
        k.I(f"s_lshl_b32 {s(S_T0)}, {s(S_T0)}, 7")
        k.I(f"s_add_u32 {s(S_T0)}, {s(S_T0)}, {WS_FA}")
        k.signal(S_T0, "fa")
        k.stamp("act published")
        dma_some(len(dm))
        g0_reads()
        k.wait_lg_all()
        k.stamp("wf0 read")


S_AO = 91


S_WDB, S_WDT = 90, 12
S_WDO = 3
WD_TOP = 87552
WD_G1, WD_G2 = 9, 19
V_WD = 4
V_WB, V_WT = 5, 10


def wd_setup_items():
    return [f"s_and_b32 {s(S_T0)}, {s(S_J2)}, 7", f"s_lshl_b32 {s(S_T0)}, {s(S_T0)}, 7",
            f"v_lshrrev_b32 v4, 3, {v(V_LANE)}", "v_lshlrev_b32 v4, 10, v4", f"v_and_b32 v5, 7, {v(V_LANE)}",
            f"v_bfe_u32 v6, {v(V_LANE)}, 4, 1", "v_lshlrev_b32 v6, 2, v6", "v_xor_b32 v5, v5, v6",
            "v_lshl_add_u32 v4, v5, 4, v4", f"v_add_u32 v4, {s(S_T0)}, v4",
            f"s_mul_i32 {s(S_WDB)}, {s(S_W)}, 20480", f"s_mul_i32 {s(S_WDT)}, {s(S_W)}, 18432",
            f"s_add_u32 {s(S_WDT)}, {s(S_WDT)}, {WD_TOP}", f"s_mul_i32 {s(S_WDO)}, {s(S_W)}, {448*1024}"]


def wd_bases(k):
    swz128_base(k, 5, cbk_imm=0, s_mul=8)
    k.I(f"v_add_u32 v10, {s(S_WDT)}, v5")
    k.I("v_xor_b32 v11, 64, v10")
    k.I(f"v_add_u32 v5, {s(S_WDB)}, v5")
    k.I("v_xor_b32 v6, 64, v5")


def wd_slot(kl):
    if kl < WD_G1:
        return S_WDT, V_WT, kl * 2048
    if kl < WD_G2:
        return S_WDB, V_WB, (kl - WD_G1) * 2048
    return S_WDT, V_WT, (kl - WD_G2) * 2048


def wd_dma(k0, k1):
    out = []
    for kl in range(k0, k1):
        sb, _, off = wd_slot(kl)
        for h in range(2):
            out.append([(f"s_add_u32 {s(S_OFF)}, {s(S_WDO)}, {(16*kl + 8*h)*1024}", None),
                        (f"s_add_u32 m0, {s(sb)}, {off + h*1024}", None),
                        (f"buffer_load_dwordx4 v4, {srd(S_WD)}, {s(S_OFF)} offen lds", f"wd{kl}")])
    return out


def wd_reads(kl):
    _, vb, off = wd_slot(kl)
    return [(f"ds_read_b64_tr_b16 {a_((2*kl + cbk)*4 + 2*rd, 2)}, {v(vb+cbk)} offset:{off + rd*512}", f"wf{kl}")
            for cbk in range(2) for rd in range(2)]


def p4(k):
    GB = 176
    k.I(f"v_lshrrev_b32 v8, 5, {v(V_LANE)}")
    k.I("v_lshlrev_b32 v8, 6, v8")
    k.I(f"s_lshl_b32 {s(S_T0)}, {s(S_B32)}, 7")
    k.I(f"s_add_u32 {s(S_T0)}, {s(S_T0)}, {WS_MODG + 1280*8}")
    k.I(f"v_add_u32 v8, {s(S_T0)}, v8")
    greg = [GB + 4 * i for i in range(4)]
    if not OPT.get("wdshare"):
        for it in wd_dma(WD_G2, 28):
            for t, tg in it:
                k.I(t, tag=tg)
    k.I(f"s_lshl_b32 {s(S_T0)}, {s(S_M2)}, 11")
    k.I(f"s_add_u32 {s(S_T0)}, {s(S_T0)}, {WS_FA}")
    k.poll_flags(S_T0, 16, "pa")
    k.stamp("act flags seen")
    k.I(f"s_sub_u32 {s(S_T0)}, {s(S_TB)}, {s(S_TBL)}")
    k.I(f"s_mul_i32 {s(S_T0)}, {s(S_T0)}, {112*1024}")
    k.I(f"s_mul_i32 {s(S_T1)}, {s(S_W)}, {28*1024}")
    k.I(f"s_add_u32 {s(S_T0)}, {s(S_T0)}, {s(S_T1)}")
    S_A0, S_A1 = S_T3, S_T4
    k.I(f"s_add_u32 {s(S_A0)}, {s(S_T0)}, {WS_ACT}")
    k.I(f"s_add_u32 {s(S_A1)}, {s(S_A0)}, {112*1024}")
    NB = OPT.get("nb4", 12)
    AB = 16
    ACC = 192

    def ld(kl):
        out = []
        for tbl in range(2):
            r = AB + 8 * (kl % NB) + 4 * tbl
            out.append((f"buffer_load_dwordx4 {v(r,4)}, {v(V_L16)}, {srd(S_WS)}, {s(S_A0 + tbl)} offen offset:{(kl&3)*1024} sc1", f"a{kl}"))
        if kl & 3 == 3:
            out.append((f"s_add_u32 {s(S_A0)}, {s(S_A0)}, 4096", None))
            out.append((f"s_add_u32 {s(S_A1)}, {s(S_A1)}, 4096", None))
        return out

    for kl in range(NB):
        for t, tg in ld(kl):
            k.I(t, tag=tg)
    g2 = []
    if OPT.get("wdshare"):
        if not OPT.get("g1pre", 1):
            l0 = k.newlabel("wdr")
            k.I(f"s_cmp_eq_u32 {s(S_W)}, 0")
            k.I(f"s_cbranch_scc1 {l0}")
            k.cond_begin()
            for it in wd_dma(WD_G1, WD_G2):
                for t, tg in it:
                    k.I(t, tag=tg)
            k.cond_end()
            k.label(l0)
        for kl in range(WD_G1):
            for t, tg in wd_reads(kl):
                k.I(t, tag=tg)
            if kl % 2 == 1:
                k.I("s_waitcnt lgkmcnt(4)")
        k.wait_lg_all()
        k.stamp("wf0 read")
        g2 = wd_dma(WD_G2, 28)
    k.granule_loads(greg, [8] * 4, 4, [0, 16, 32, 48], "gb")
    GBF, X1F = 112, 128
    pre = [lambda: k.granule_verify(greg, [8] * 4, "gb", 4, (1, 3), [0, 16, 32, 48], "gb")]
    for i in range(8):
        g = GB + 4 * (i >> 1) + 2 * (i & 1)
        pre += [f"v_lshlrev_b32 {v(GBF+2*i)}, 16, {v(g)}", f"v_and_b32 {v(GBF+2*i+1)}, {s(S_MASK)}, {v(g)}",
                f"v_accvgpr_read_b32 v144, {a_(248+i)}", f"v_lshlrev_b32 {v(X1F+2*i)}, 16, v144", f"v_and_b32 {v(X1F+2*i+1)}, {s(S_MASK)}, v144"]
    for kl in range(28):
        k.wait_vm(f"a{kl}")
        if kl in (1, 7, 14, 21):
            k.stamp(f"p4 k{kl}")
        rds = wd_reads(kl + 3) if WD_G1 <= kl + 3 < 28 else []
        if kl >= WD_G1:
            k.wait_lg(f"wf{kl}")
        nxt = ld(kl + NB) if kl + NB < 28 else []
        if OPT.get("wdshare"):
            if kl + 3 == WD_G1 and not OPT.get("g1pre", 1):
                k.wait_vm("gb")
            if kl + 3 == WD_G2:
                k.wait_vm("wd27")
            for _ in range(OPT.get("g2rate", 4)):
                if g2:
                    for t, tg in g2.pop(0):
                        k.I(t, tag=tg)
        for tbl in range(2):
            for cbk in range(2):
                r = AB + 8 * (kl % NB) + 4 * tbl
                k.mfma32(v(ACC + 16 * (2 * cbk + tbl), 16), a_((2 * kl + cbk) * 4, 4), v(r, 4), "0" if kl == 0 else None)
                if rds:
                    t, tg = rds.pop(0)
                    k.I(t, tag=tg)
                if tbl == 1 and nxt:
                    t, tg = nxt.pop(0)
                    k.I(t, tag=tg)
                if kl >= 10 and pre:
                    it = pre.pop(0)
                    it() if callable(it) else k.I(it)
        for t, tg in nxt:
            k.I(t, tag=tg)
    assert not pre
    k.stamp("down gemm")
    k.wait_lg_all()
    k.barrier()
    k.I(f"s_lshl_b32 {s(S_T0)}, {s(S_W)}, 12")
    k.I(f"v_add_u32 v8, {s(S_T0)}, {v(V_L16)}")
    k.I(f"v_add_u32 v9, 32768, v8")
    for q in range(4):
        sk = k.newlabel("r4w")
        k.I(f"s_cmp_eq_u32 {s(S_W)}, {q}")
        k.I(f"s_cbranch_scc1 {sk}")
        k.cond_begin()
        for i in range(4):
            base = 8 if q < 2 else 9
            k.I(f"ds_write_b128 {v(base)}, {v(ACC+16*q+4*i,4)} offset:{(q&1)*16384 + i*1024}")
        k.cond_end()
        k.label(sk)
    k.wait_lg_all()
    k.barrier()
    k.I(f"s_lshl_b32 {s(S_T0)}, {s(S_W)}, 14")
    k.I(f"v_add_u32 v8, {s(S_T0)}, {v(V_L16)}")
    for d in range(1, 4):
        k.I(f"s_add_u32 {s(S_T1)}, {s(S_W)}, {d}")
        k.I(f"s_and_b32 {s(S_T1)}, {s(S_T1)}, 3")
        k.I(f"s_lshl_b32 {s(S_T1)}, {s(S_T1)}, 12")
        k.I(f"v_add_u32 v9, {s(S_T1)}, v8")
        for i in range(4):
            k.I(f"ds_read_b128 {v(32+16*(d-1)+4*i,4)}, v9 offset:{i*1024}")
    for q in range(4):
        sk = k.newlabel("r4m")
        k.I(f"s_cmp_eq_u32 {s(S_W)}, {q}")
        k.I(f"s_cbranch_scc0 {sk}")
        for i in range(0, 16, 2):
            k.I(f"v_pk_mul_f32 {v(16+i,2)}, {v(ACC+16*q+i,2)}, 1.0 op_sel_hi:[1,0]")
        k.label(sk)
    k.wait_lg_all()
    for d in range(3):
        for i in range(0, 16, 2):
            k.I(f"v_pk_add_f32 {v(16+i,2)}, {v(16+i,2)}, {v(32+16*d+i,2)}")
    for i in range(16):
        k.I(f"v_fmac_f32 {v(X1F+i)}, {v(GBF+i)}, {v(16+i)}")
    for i in range(8):
        k.I(f"v_cvt_pk_bf16_f32 {v(88+i)}, {v(X1F+2*i)}, {v(X1F+2*i+1)}")
    k.I(f"v_and_b32 v8, 31, {v(V_LANE)}")
    k.I("v_lshlrev_b32 v8, 10, v8")
    k.I(f"v_lshrrev_b32 v9, 5, {v(V_LANE)}")
    k.I("v_lshl_add_u32 v8, v9, 5, v8")
    k.I(f"s_lshl_b32 {s(S_T0)}, {s(S_TB)}, 15")
    k.I(f"s_lshl_b32 {s(S_T1)}, {s(S_B32)}, 6")
    k.I(f"s_add_u32 {s(S_T0)}, {s(S_T0)}, {s(S_T1)}")
    k.I(f"v_add_u32 v8, {s(S_T0)}, v8")
    fl = {0: "", 1: " sc1", 2: " nt", 3: " sc0 sc1"}[OPT.get("outst", 0)]
    k.I(f"buffer_store_dwordx4 v[88:91], v8, {srd(S_OUT)}, 0 offen{fl}")
    k.I(f"buffer_store_dwordx4 v[92:95], v8, {srd(S_OUT)}, 0 offen offset:16{fl}")
    k.stamp("out stored")


def finish(k):
    if k.diag == "dbg":
        sk = k.newlabel("fin")
        k.wave_is(0, sk)
        k.I("s_load_dwordx2 s[92:93], s[0:1], 88")
        k.I("s_waitcnt lgkmcnt(0)")
        k.I("s_mov_b32 s94, 256")
        k.I("s_mov_b32 s95, 0x20000")
        k.I("s_mov_b64 exec, 1")
        sel = k.dbg_sel
        for slot, i in enumerate(sel):
            k.I(f"v_mov_b32 v9, {s(S_STAMP+i)}")
            if slot == 0:
                k.I("v_not_b32 v9, v9")
            k.I(f"v_mov_b32 v8, {4*slot}")
            k.I(f"buffer_atomic_umax v9, v8, s[92:95], 0 offen")
        k.label(sk)
    elif k.diag:
        sk = k.newlabel("fin")
        k.wave_is(0, sk)
        k.I(f"s_lshl_b32 {s(S_T0)}, s2, 7")
        k.I(f"s_add_u32 {s(S_T0)}, {s(S_T0)}, {WS_STAMP}")
        k.I(f"v_mov_b32 v8, {s(S_T0)}")
        k.I("s_mov_b64 exec, 1")
        for i in range(k.nstamp):
            k.I(f"v_mov_b32 v9, {s(S_STAMP+i)}")
            k.I(f"buffer_store_dword v9, v8, {srd(S_WS)}, 0 offen offset:{4*i}")
        k.label(sk)
    k.label("L_end")
    k.I("s_endpgm")


HEADER = """;
; Hand-off tags are E + 1, where E is the word at d_ws + 0 found on entry; workgroup 0 stores the tag there once every
;
"""


def build(diag=False, stop=None):
    k = K(diag, stop)
    phases = [prologue, start_phase, p1_prologue, p1_main, p1_epilogue,
              kv_combine_and_o, p2, p3, p4]
    for ph in phases:
        k.comment(f"======== {ph.__name__} ========")
        ph(k)
        if stop == ph.__name__:
            break
    k.dbg_sel = list(range(min(k.nstamp, 16)))
    if k.nstamp > 16:
        k.dbg_sel = [0, 1, 3, 4, 5, 7, 8, 9, 10, 11, 12, 13, 14, 15, 16, 17][:16]
    finish(k)
    hdr = open("cdna_kernels/" + NAME + ".s.ref").read().split("; Override launch geometry")[0]
    txt = hdr
    txt += HEADER
    txt += f"; @launch grid=(256,1,1) block=(256,1,1) lds={LDS_BYTES}\n"
    txt += '.amdgcn_target "amdgcn-amd-amdhsa--gfx950"\n.text\n'
    txt += f".globl {NAME}_kernel\n.p2align 8\n.type {NAME}_kernel,@function\n{NAME}_kernel:\n"
    txt += k.text()
    txt += f""".section .rodata,"a"
.p2align 6
.amdhsa_kernel {NAME}_kernel
  .amdhsa_next_free_vgpr 512
  .amdhsa_next_free_sgpr 102
  .amdhsa_accum_offset 256
  .amdhsa_group_segment_fixed_size 0
  .amdhsa_kernarg_size 104
  .amdhsa_user_sgpr_count 2
  .amdhsa_user_sgpr_kernarg_segment_ptr 1
  .amdhsa_system_sgpr_workgroup_id_x 1
.end_amdhsa_kernel
"""
    return txt, k


if __name__ == "__main__":
    out = sys.argv[1] if len(sys.argv) > 1 else "k.s"
    for a in sys.argv:
        if a.startswith("--opt="):
            for kv in a[6:].split(","):
                kk, vv = kv.split("=")
                OPT[kk] = int(vv)
    diag = "--diag" in sys.argv
    if "--dbg" in sys.argv:
        diag = "dbg"
    stop = None
    for a in sys.argv:
        if a.startswith("--stop="):
            stop = a.split("=")[1]
    txt, k = build(diag, stop)
    open(out, "w").write(txt)
    if OPT.get("tmo"):
        open(out + ".tmo", "w").write("\n".join(k.tmo_names) + "\n")
    if diag:
        open(out + ".stamps", "w").write("\n".join(k.stamp_names) + "\n")
    print(f"wrote {out}: {len(txt)} bytes, {sum(1 for l in k.out if l.startswith(chr(9)))} instructions, {k.nops} hazard nops")
```

```python
import sys
from asmlib import Asm

NAME = "adaLN_cond__linear_kernel_hedgehog__glu_gated_reglu__prompt"

WS_E = 0
WS_MODG = 0x1000
WS_FKV = 0x4000
WS_FO = 0xC000
WS_FY = 0x14000
WS_FA = 0x1C000
WS_STAMP = 0x30000
WS_WEXT = 0x40000
WS_STATS = 0x80000
WS_MODC = 0x60000
WS_KVP = 0x100000
WS_O = 0x200000
WS_Y = 0x400000
WS_ACT = 0x800000

L_XI = 0
L_WI = 0
L_WM = 131072
L_S = 158720
L_RT = 159744
L_WMN = 114688
L_KVI = 0
L_QI = 65536
L_GP = 148480
L_CT = 139264
L_PHI = 153600
L_ZERO = 154624
L_RED = 0
L_KVF = 149504
L_Z = 151552
L_UB = 145920
L_CS = 162304
L_WO = 0
L_OI = 98304
SLAB = 14592
UOFF = 7296
LDS_BYTES = 163840

S_X, S_WQKV, S_WPHI, S_WO, S_WG, S_WU, S_WD, S_C, S_WMOD, S_OUT, S_WS = 4, 8, 12, 16, 20, 24, 28, 32, 36, 40, 44
S_XCD, S_I, S_M, S_J, S_W, S_TAG, S_MASK = 48, 49, 50, 51, 52, 53, 54
S_T0, S_T1, S_T2, S_T3, S_T4 = 55, 56, 57, 58, 59
S_CLK = 60
S_L2E = 62
S_SPIN = 64
S_OFF = 65
S_VALID = 66
S_EX = 68
S_M2, S_J2 = 70, 71
S_STAMP = 72
S_SEL = 92
S_HP = S_J

LOG2E = 0x3FB8AA3B
SPIN_MAX = 200000


def srd(i):
    return f"s[{i}:{i+3}]"


def v(i, n=1):
    return f"v{i}" if n == 1 else f"v[{i}:{i+n-1}]"


def a_(i, n=1):
    return f"a{i}" if n == 1 else f"a[{i}:{i+n-1}]"


def s(i, n=1):
    return f"s{i}" if n == 1 else f"s[{i}:{i+n-1}]"


V_LANE, V_L16, V_TAG = 1, 2, 3
V_DUMMY = 15
OPT = dict(wd_mix=0, ring_a0=6, ny0=14, nb4=7, qstats=0, tloop=0, qloop=2, xunroll=11, codepf=1, touch=1, tw0=1, mall=0, nt_wm=1, tmn_nt=0, ktail=21, tailrate=1, kst=14, kwx=18, kwd=22, twdk=20)


import os
STAMPS = os.environ.get('STAMPS', 'start,wmod landed,x in regs,mod arrived,P1 ready,p1 main,kv published,q softmax,kv flags seen,o published,o flags seen,wo gemm,y published,y flags seen,gate/up gemm,act published,act flags seen,out stored').split(',')


class K(Asm):
    def __init__(self, diag=False, stop=None):
        super().__init__()
        self.diag = diag
        self.stop = stop
        self.nstamp = 0

    def stamp(self, name, cyc=False):
        if not self.diag:
            return
        if STAMPS is not None and name not in STAMPS:
            return
        if cyc:
            self.wait_lg_all()
            self.I(f"s_memtime {s(S_CLK, 2)}")
            self.I("s_waitcnt lgkmcnt(0)")
            self.I(f"s_mov_b32 {s(S_STAMP + self.nstamp)}, {s(S_CLK)}")
            self.stamp_names = getattr(self, "stamp_names", []) + [name + " (cyc)"]
            self.nstamp += 1
            return
        self.wait_lg_all()
        self.I(f"s_memrealtime {s(S_CLK, 2)}")
        self.I("s_waitcnt lgkmcnt(0)")
        self.I(f"s_mov_b32 {s(S_STAMP + self.nstamp)}, {s(S_CLK)}")
        self.stamp_names = getattr(self, "stamp_names", []) + [name]
        self.nstamp += 1
        assert self.nstamp <= 18, self.stamp_names

    def wave_is(self, w, label_else):
        self.I(f"s_cmp_eq_u32 {s(S_W)}, {w}")
        self.I(f"s_cbranch_scc0 {label_else}")

    def mfma32(self, d, a, b, c=None):
        c = d if c is None else c
        self.I(f"v_mfma_f32_32x32x16_bf16 {d}, {a}, {b}, {c}")

    def test_delay(self, which):
        if OPT.get("x_delay") != which:
            return
        l = self.newlabel("dly")
        d = self.newlabel("dly_done")
        self.I("s_and_b32 s55, s2, 31")
        self.I("s_cmp_eq_u32 s55, 5")
        self.I(f"s_cbranch_scc0 {d}")
        self.I("s_mov_b32 s55, 200")
        self.label(l)
        self.I("s_sleep 8")
        self.I("s_sub_u32 s55, s55, 1")
        self.I("s_cmp_lg_u32 s55, 0")
        self.I(f"s_cbranch_scc1 {l}")
        self.label(d)

    def spin_init(self):
        self.I(f"s_mov_b32 {s(S_SPIN)}, {SPIN_MAX}")

    def spin_back(self, loop, done):
        self.I(f"s_cbranch_vccz {done}")
        self.I(f"s_sub_u32 {s(S_SPIN)}, {s(S_SPIN)}, 1")
        self.I(f"s_cmp_lg_u32 {s(S_SPIN)}, 0")
        self.I(f"s_cbranch_scc1 {loop}")
        if OPT.get("tmo"):
            self.ntmo = getattr(self, "ntmo", 0) + 1
            self.tmo_names = getattr(self, "tmo_names", []) + [loop]
            self.I(f"s_lshl_b32 {s(S_EX)}, s2, 2")
            self.I(f"s_add_u32 {s(S_EX)}, {s(S_EX)}, {s(S_W)}")
            self.I(f"s_lshl_b32 {s(S_EX)}, {s(S_EX)}, 6")
            self.I(f"s_add_u32 {s(S_EX)}, {s(S_EX)}, {0x70000 + 4*self.ntmo}")
            self.I(f"v_mov_b32 v250, {s(S_EX)}")
            self.I(f"s_mov_b32 {s(S_EX)}, vcc_lo")
            self.I(f"v_mov_b32 v251, {s(S_EX)}")
            self.I(f"buffer_store_dword v251, v250, {srd(S_WS)}, 0 offen sc1")

    def unpack(self, lo, hi, src):
        self.I(f"v_lshlrev_b32 {v(lo)}, 16, {v(src)}")
        self.I(f"v_and_b32 {v(hi)}, {s(S_MASK)}, {v(src)}")

    def half_total(self, r, tmp):
        self.I(f"v_mov_b32 {v(tmp)}, {v(r)}")
        self.I(f"v_permlane32_swap_b32 {v(r)}, {v(tmp)}")
        self.I(f"v_add_f32 {v(r)}, {v(r)}, {v(tmp)}")

    def dma(self, voff, rsrc, soff, sc1=False):
        nt = " nt" if OPT.get("nt_" + str(self._tag)) else ""
        self.I(f"buffer_load_dwordx4 {v(voff)}, {srd(rsrc)}, {soff} offen{' sc1' if sc1 else ''}{nt} lds", tag=self._tag)

    _tag = None

    def touch(self, rsrc, voff, soff, tag="t", dst=None):
        nt = " nt" if OPT.get("nt_t") else ""
        self.I(f"buffer_load_dword {v(V_DUMMY if dst is None else dst)}, {v(voff)}, {srd(rsrc)}, {soff} offen{nt}", tag=tag)

    def poll_flags(self, base_sreg, n, stem, tmp=14):
        done = self.newlabel(stem + "_skip")
        loop = self.newlabel(stem + "_loop")
        ok = self.newlabel(stem + "_ok")
        self.wave_is(0, done)
        self.cond_begin()
        self.I(f"v_min_u32 {v(tmp)}, {n-1}, {v(V_LANE)}")
        self.I(f"v_lshlrev_b32 {v(tmp)}, 7, {v(tmp)}")
        self.I(f"v_add_u32 {v(tmp)}, {s(base_sreg)}, {v(tmp)}")
        self.spin_init()
        if OPT.get("poll2"):
            alt = OPT.get("poll2_reg", 0)
            self.I(f"buffer_load_dword {v(tmp+1)}, {v(tmp)}, {srd(S_WS)}, 0 offen sc1")
            self.label(loop)
            self.I("s_nop 15")
            self.I("s_nop 15")
            self.I(f"buffer_load_dword {v(alt)}, {v(tmp)}, {srd(S_WS)}, 0 offen sc1")
            self.I("s_waitcnt vmcnt(1)")
            self.I(f"v_cmp_ne_u32 vcc, {s(S_TAG)}, {v(tmp+1)}")
            self.I(f"s_cbranch_vccz {ok}")
            self.I(f"buffer_load_dword {v(tmp+1)}, {v(tmp)}, {srd(S_WS)}, 0 offen sc1")
            self.I("s_waitcnt vmcnt(1)")
            self.I(f"v_cmp_ne_u32 vcc, {s(S_TAG)}, {v(alt)}")
            self.spin_back(loop, ok)
            self.label(ok + "_w")
        else:
            self.label(loop)
            self.I(f"buffer_load_dword {v(tmp+1)}, {v(tmp)}, {srd(S_WS)}, 0 offen sc1")
            self.I("s_waitcnt vmcnt(0)")
            self.I(f"v_cmp_ne_u32 vcc, {s(S_TAG)}, {v(tmp+1)}")
            self.spin_back(loop, ok)
        self.label(ok)
        if OPT.get("poll2"):
            self.I("s_waitcnt vmcnt(0)")
        self.cond_end()
        self.label(done)
        self.barrier()

    def signal(self, off_sreg, stem, tmp=14):
        self.barrier()
        done = self.newlabel(stem + "_sig")
        self.wave_is(0, done)
        self.cond_begin()
        self.I(f"v_mov_b32 {v(tmp)}, {s(off_sreg)}")
        self.I(f"s_mov_b64 exec, 1")
        self.I(f"buffer_store_dword {v(V_TAG)}, {v(tmp)}, {srd(S_WS)}, 0 offen sc1")
        self.I(f"s_mov_b64 exec, -1")
        self.cond_end()
        self.label(done)

    def granule_loads(self, regs, addr_regs, width, imm, tag):
        sfx = {2: "dwordx2", 4: "dwordx4"}[width]
        for i, (r, ad) in enumerate(zip(regs, addr_regs)):
            off = imm[i] if imm else 0
            self.I(f"buffer_load_{sfx} {v(r, width)}, {v(ad)}, {srd(S_WS)}, 0 offen offset:{off} sc1", tag=tag)

    def granule_verify(self, regs, addr_regs, stem, width, tagpos, imm, tag):
        loop = self.newlabel(stem + "_loop")
        chk = self.newlabel(stem + "_chk")
        ok = self.newlabel(stem + "_ok")
        self.spin_init()
        if self.cond:
            self.I("s_waitcnt vmcnt(0)")
        else:
            self.wait_vm(tag)
        self.I(f"s_branch {chk}")
        self.label(loop)
        self.cond_begin()
        self.granule_loads(regs, addr_regs, width, imm, None)
        self.I("s_waitcnt vmcnt(0)")
        self.cond_end()
        self.label(chk)
        first = True
        for r in regs:
            for tp in tagpos:
                if first:
                    self.I(f"v_cmp_ne_u32 vcc, {s(S_TAG)}, {v(r+tp)}")
                    first = False
                else:
                    self.I(f"v_cmp_ne_u32 {s(S_EX, 2)}, {s(S_TAG)}, {v(r+tp)}")
                    self.I(f"s_or_b64 vcc, vcc, {s(S_EX, 2)}")
        self.spin_back(loop, ok)
        self.label(ok)

    def load_granules_checked(self, regs, addr_regs, stem, width=2, tagpos=(1,), imm=None):
        self.granule_loads(regs, addr_regs, width, imm, stem)
        self.granule_verify(regs, addr_regs, stem, width, tagpos, imm, stem)


S_CODE = 0


def code_touch(k, wave, dst, t=(8, 9)):
    if not OPT.get("codepf"):
        return
    sk = k.newlabel("cpf")
    k.wave_is(wave, sk)
    k.cond_begin()
    a0, a1 = t
    k.I(f"v_min_u32 {v(a0)}, 11, {v(V_LANE)}")
    k.I(f"v_lshlrev_b32 {v(a0)}, 7, {v(a0)}")
    k.I(f"v_min_u32 {v(a0)}, {s(S_CODN)}, {v(a0)}")
    k.I(f"v_mov_b32 {v(a1)}, {s(S_CODE+1)}")
    k.I(f"v_add_co_u32 {v(a0)}, vcc, {s(S_CODE)}, {v(a0)}")
    k.I(f"v_addc_co_u32 {v(a1)}, vcc, 0, {v(a1)}, vcc")
    k.I(f"global_load_dword {v(dst)}, v[{a0}:{a1}], off")
    k.cond_end()
    k.label(sk)


S_CODN = 101


def prologue(k):
    if k.diag and "entry" in STAMPS:
        k.I("s_memrealtime s[96:97]")
    k.I("s_cmp_ge_u32 s2, 256")
    k.I("s_cbranch_scc1 L_end")
    k.I("s_load_dwordx16 s[64:79], s[0:1], 0")
    k.I("s_load_dwordx8 s[80:87], s[0:1], 64")
    k.I("s_load_dwordx2 s[88:89], s[0:1], 96")
    if OPT.get("codepf"):
        k.I("s_getpc_b64 s[90:91]")
        k.label("L_pc")
        k.I(f"s_mov_b32 {s(S_T1)}, L_end-L_pc")
        k.I(f"s_lshr_b32 {s(S_T1)}, {s(S_T1)}, 7")
        k.I(f"s_sub_u32 {s(S_T1)}, {s(S_T1)}, 1")
        k.I(f"s_lshr_b32 {s(S_T0)}, s2, 3")
        k.I(f"s_mul_i32 {s(S_T0)}, {s(S_T0)}, 12")
        k.I(f"s_min_u32 {s(S_T0)}, {s(S_T0)}, {s(S_T1)}")
        k.I(f"s_sub_u32 {s(S_CODN)}, {s(S_T1)}, {s(S_T0)}")
        k.I(f"s_lshl_b32 {s(S_CODN)}, {s(S_CODN)}, 7")
        k.I(f"s_lshl_b32 {s(S_T0)}, {s(S_T0)}, 7")
        k.I(f"s_add_u32 s90, s90, {s(S_T0)}")
        k.I("s_addc_u32 s91, s91, 0")
        k.I("v_min_u32 v8, 11, v0")
        k.I("v_lshlrev_b32 v8, 7, v8")
        k.I(f"v_min_u32 v8, {s(S_CODN)}, v8")
        k.I("v_mov_b32 v9, s91")
        k.I("v_add_co_u32 v8, vcc, s90, v8")
        k.I("v_addc_co_u32 v9, vcc, 0, v9, vcc")
        k.I("global_load_dword v177, v[8:9], off", tag="cp")
    k.I(f"v_and_b32 {v(V_LANE)}, 63, v0")
    k.I("v_lshrrev_b32 v4, 6, v0")
    k.I(f"v_lshlrev_b32 {v(V_L16)}, 4, {v(V_LANE)}")
    k.I(f"v_readfirstlane_b32 {s(S_W)}, v4")
    k.I(f"s_and_b32 {s(S_XCD)}, s2, 7")
    k.I(f"s_lshr_b32 {s(S_I)}, s2, 3")
    k.I(f"s_lshr_b32 {s(S_T0)}, {s(S_XCD)}, 1")
    k.I(f"s_lshl_b32 {s(S_T0)}, {s(S_T0)}, 2")
    k.I(f"s_lshr_b32 {s(S_T1)}, {s(S_I)}, 3")
    k.I(f"s_add_u32 {s(S_M)}, {s(S_T0)}, {s(S_T1)}")
    k.I(f"s_and_b32 {s(S_T0)}, {s(S_XCD)}, 1")
    k.I(f"s_lshl_b32 {s(S_T0)}, {s(S_T0)}, 3")
    k.I(f"s_and_b32 {s(S_T1)}, {s(S_I)}, 7")
    k.I(f"s_add_u32 {s(S_J)}, {s(S_T0)}, {s(S_T1)}")
    k.I(f"s_mov_b32 {s(S_MASK)}, 0xffff0000")
    k.I(f"s_mov_b32 {s(S_L2E)}, {LOG2E:#x}")
    k.I(f"s_mov_b32 {s(S_L2E+1)}, {LOG2E:#x}")
    k.I("s_waitcnt lgkmcnt(0)")
    if OPT.get("codepf"):
        k.I(f"s_mov_b32 {s(S_CODE)}, s90")
        k.I(f"s_mov_b32 {s(S_CODE+1)}, s91")
    bufs = [(S_X, 64, 2097152), (S_WQKV, 66, 1572864), (S_WPHI, 68, 16384), (S_WO, 70, 524288),
            (S_WG, 74, 1835008), (S_WU, 76, 1835008), (S_WD, 78, 1835008), (S_C, 80, 1024),
            (S_WMOD, 82, 3145728), (S_OUT, 84, 2097152), (S_WS, 88, 268435456)]
    for r, p, n in bufs:
        k.I(f"s_mov_b32 {s(r)}, {s(p)}")
        k.I(f"s_mov_b32 {s(r+1)}, {s(p+1)}")
        k.I(f"s_mov_b32 {s(r+2)}, {n}")
        k.I(f"s_mov_b32 {s(r+3)}, 0x20000")
    if OPT.get("map24"):
        k.I(f"s_mov_b32 {s(S_M2)}, {s(S_M)}")
        k.I(f"s_bfe_u32 {s(S_T0)}, {s(S_I)}, {(1 << 16) | 2}")
        k.I(f"s_lshl_b32 {s(S_J2)}, {s(S_T0)}, 3")
        k.I(f"s_and_b32 {s(S_T0)}, {s(S_XCD)}, 1")
        k.I(f"s_lshl_b32 {s(S_T0)}, {s(S_T0)}, 2")
        k.I(f"s_add_u32 {s(S_J2)}, {s(S_J2)}, {s(S_T0)}")
        k.I(f"s_and_b32 {s(S_T0)}, {s(S_I)}, 3")
        k.I(f"s_add_u32 {s(S_J2)}, {s(S_J2)}, {s(S_T0)}")
    else:
        k.I(f"s_lshr_b32 {s(S_T0)}, {s(S_I)}, 4")
        k.I(f"s_lshl_b32 {s(S_M2)}, {s(S_XCD)}, 1")
        k.I(f"s_add_u32 {s(S_M2)}, {s(S_M2)}, {s(S_T0)}")
        k.I(f"s_and_b32 {s(S_J2)}, {s(S_I)}, 15")
    if k.diag and "entry" in STAMPS:
        k.I(f"s_mov_b32 {s(S_STAMP + k.nstamp)}, s96")
        k.stamp_names = getattr(k, "stamp_names", []) + ["entry"]
        k.nstamp += 1
    k.I("v_mov_b32 v4, 0")
    k.I(f"buffer_load_dword {v(V_TAG)}, v4, {srd(S_WS)}, 0 offen sc1", tag="E")
    k.stamp("start")


S_G = 100
S_GC = 3


def x_rows(k):
    k.I(f"s_lshl_b32 {s(S_T2)}, {s(S_M)}, 17")
    k.I(f"s_and_b32 {s(S_T3)}, {s(S_J)}, 7")
    k.I(f"s_lshl_b32 {s(S_T3)}, {s(S_T3)}, 4")
    k.I(f"s_add_u32 {s(S_T3)}, {s(S_T3)}, {s(S_W)}")
    k.I(f"s_sub_u32 {s(S_T3)}, {s(S_T3)}, 1")
    U = OPT.get("xunroll", 4)
    k.I(f"s_mov_b32 {s(S_T4)}, {44 // U}")
    loop = k.newlabel("xrow")
    k.label(loop)
    for u in range(U):
        k.I(f"s_and_b32 {s(S_T0)}, {s(S_T3)}, 127")
        k.I(f"s_and_b32 {s(S_T1)}, {s(S_T0)}, 15")
        k.I(f"s_lshl_b32 {s(S_T1)}, {s(S_T1)}, 4")
        k.I(f"v_xor_b32 v9, {s(S_T1)}, {v(V_L16)}")
        k.I(f"s_lshl_b32 m0, {s(S_T0)}, 10")
        k.I(f"s_add_u32 {s(S_OFF)}, m0, {s(S_T2)}")
        k.dma(9, S_X, s(S_OFF))
        k.I(f"s_add_u32 {s(S_T3)}, {s(S_T3)}, 3")
    k.I(f"s_sub_u32 {s(S_T4)}, {s(S_T4)}, 1")
    k.I(f"s_cmp_lg_u32 {s(S_T4)}, 0")
    k.I(f"s_cbranch_scc1 {loop}")


def touch_wqkv(k):
    if OPT["touch"]:
        k.I(f"v_lshrrev_b32 v13, 2, {v(V_LANE)}")
        k.I("v_mul_u32_u24 v13, 3072, v13")
        k.I(f"v_and_b32 v14, 3, {v(V_LANE)}")
        k.I("v_lshl_add_u32 v13, v14, 7, v13")
        k.I(f"s_mul_i32 {s(S_OFF)}, {s(S_I)}, {16*3072}")
        k.I(f"s_sub_u32 {s(S_T0)}, {s(S_W)}, 1")
        k.I(f"s_lshl_b32 {s(S_T0)}, {s(S_T0)}, 10")
        k.I(f"s_add_u32 {s(S_OFF)}, {s(S_OFF)}, {s(S_T0)}")
        k.I(f"s_and_b32 {s(S_T0)}, {s(S_XCD)}, 1")
        k.I(f"s_lshl_b32 {s(S_T0)}, {s(S_T0)}, 9")
        k.I(f"s_add_u32 {s(S_OFF)}, {s(S_OFF)}, {s(S_T0)}")
        k.touch(S_WQKV, 13, s(S_OFF), dst=176)


def mod_group(k):
    k.I(f"s_lshr_b32 {s(S_T0)}, {s(S_I)}, 2")
    k.I(f"s_lshl_b32 {s(S_T0)}, {s(S_T0)}, 3")
    k.I(f"s_add_u32 {s(S_T0)}, {s(S_T0)}, {s(S_XCD)}")
    k.I(f"s_lshl_b32 {s(S_T0)}, {s(S_T0)}, 2")
    k.I(f"s_and_b32 {s(S_T1)}, {s(S_I)}, 3")
    k.I(f"s_add_u32 {s(S_G)}, {s(S_T0)}, {s(S_T1)}")


def wm_voff(k, dst, tmp):
    k.I(f"v_lshrrev_b32 {v(dst)}, 1, {v(V_LANE)}")
    k.I(f"v_mul_u32_u24 {v(dst)}, 6144, {v(dst)}")
    k.I(f"v_and_b32 {v(tmp)}, 1, {v(V_LANE)}")
    k.I(f"v_lshlrev_b32 {v(tmp)}, 4, {v(tmp)}")
    k.I(f"s_lshl_b32 {s(S_T0)}, {s(S_G)}, 5")
    k.I(f"v_add3_u32 {v(dst)}, {v(dst)}, {v(tmp)}, {s(S_T0)}")


def gemv16(k, lds_base, nq=16, partial=False, nbuf=112):
    k.I(f"v_lshrrev_b32 v8, 4, {v(V_LANE)}")
    k.I("v_lshlrev_b32 v8, 3, v8")
    k.I(f"v_add_u32 v8, {L_S}, v8")
    if partial:
        k.I(f"s_and_b32 {s(S_T0)}, {s(S_I)}, 3")
        k.I(f"s_lshl_b32 {s(S_T0)}, {s(S_T0)}, 8")
        k.I(f"v_add_u32 v8, {s(S_T0)}, v8")
    k.I(f"v_lshlrev_b32 v10, 3, {v(V_LANE)}")
    k.I(f"v_add_u32 v10, {lds_base}, v10")
    for q in range(nq + 2):
        if q < nq:
            b = nbuf + 8 * (q & 3)
            k.I(f"ds_read_b64_tr_b16 {v(b+4, 2)}, v10 offset:{q*1024}")
            k.I(f"ds_read_b64_tr_b16 {v(b+6, 2)}, v10 offset:{q*1024+512}")
            k.I(f"ds_read_b64 {v(b, 2)}, v8 offset:{q*64}")
            k.I(f"ds_read_b64 {v(b+2, 2)}, v8 offset:{q*64+32}")
        if q >= 2:
            k.I(f"s_waitcnt lgkmcnt({8 if q < nq else (4 if q == nq else 0)})")
            bb = nbuf + 8 * ((q - 2) & 3)
            acc = 144 + 4 * (q & 1)
            c = "0" if q < 4 else v(acc, 4)
            k.I(f"v_mfma_f32_16x16x32_bf16 {v(acc, 4)}, {v(bb, 4)}, {v(bb+4, 4)}, {c}")
    k.test_delay(1 if partial else 2)
    k.I("v_add_f32 v144, v144, v148")
    k.I("v_mov_b32_dpp v145, v144 quad_perm:[1,0,3,2] row_mask:0xf bank_mask:0xf")
    if partial:
        k.I(f"v_mov_b32 v146, {v(V_TAG)}")
        k.I("v_mov_b32 v147, 0")
        k.I(f"v_lshlrev_b32 v8, 3, {v(V_LANE)}")
        k.I(f"s_and_b32 {s(S_T0)}, {s(S_I)}, 3")
        k.I(f"s_lshl_b32 {s(S_T0)}, {s(S_T0)}, 13")
        k.I(f"s_lshl_b32 {s(S_T1)}, {s(S_GC)}, 7")
        k.I(f"s_add_u32 {s(S_T0)}, {s(S_T0)}, {s(S_T1)}")
        k.I(f"s_add_u32 {s(S_T0)}, {s(S_T0)}, {WS_MODC}")
        k.I(f"v_add_u32 v8, {s(S_T0)}, v8")
        k.I("s_mov_b64 exec, 0x5555")
        k.I(f"buffer_store_dwordx4 v[144:147], v8, {srd(S_WS)}, 0 offen sc1")
    else:
        k.I("v_cvt_pk_bf16_f32 v144, v144, v145")
        k.I(f"v_mov_b32 v145, {v(V_TAG)}")
        k.I(f"v_lshlrev_b32 v8, 2, {v(V_LANE)}")
        k.I(f"s_lshl_b32 {s(S_T0)}, {s(S_G)}, 6")
        k.I(f"s_add_u32 {s(S_T0)}, {s(S_T0)}, {WS_MODG}")
        k.I(f"v_add_u32 v8, {s(S_T0)}, v8")
        k.I("s_mov_b64 exec, 0x5555")
        k.I(f"buffer_store_dwordx2 v[144:145], v8, {srd(S_WS)}, 0 offen sc1")
    k.I("s_mov_b64 exec, -1")


def mall_touch(k):
    k.I(f"v_min_u32 v9, 55, {v(V_LANE)}")
    k.I("v_lshlrev_b32 v9, 7, v9")
    k.I(f"s_mul_i32 {s(S_OFF)}, s2, {56*128}")
    for r in (S_WG, S_WU, S_WD):
        k.touch(r, 9, s(S_OFF), dst=176)
    k.I(f"v_and_b32 v9, 15, {v(V_LANE)}")
    k.I("v_lshlrev_b32 v9, 7, v9")
    k.I(f"s_lshl_b32 {s(S_OFF)}, s2, 11")
    k.touch(S_WO, 9, s(S_OFF), dst=176)
    k.I(f"v_lshrrev_b32 v9, 5, {v(V_LANE)}")
    k.I("v_mul_u32_u24 v9, 6144, v9")
    k.I(f"v_and_b32 v10, 31, {v(V_LANE)}")
    k.I("v_lshl_add_u32 v9, v10, 7, v9")
    k.I(f"s_mul_i32 {s(S_OFF)}, s2, {2*6144}")
    k.I(f"s_add_u32 {s(S_OFF)}, {s(S_OFF)}, 2048")
    k.touch(S_WMOD, 9, s(S_OFF), dst=176)


def start_phase(k):
    mod_group(k)
    k.I(f"s_lshr_b32 {s(S_T0)}, {s(S_I)}, 4")
    k.I(f"s_lshl_b32 {s(S_T0)}, {s(S_T0)}, 3")
    k.I(f"s_add_u32 {s(S_T0)}, {s(S_T0)}, {s(S_XCD)}")
    k.I(f"s_lshl_b32 {s(S_T0)}, {s(S_T0)}, 2")
    k.I(f"s_bfe_u32 {s(S_T1)}, {s(S_I)}, {(2 << 16) | 2}")
    k.I(f"s_add_u32 {s(S_GC)}, {s(S_T0)}, {s(S_T1)}")
    k.cond_begin()
    wa, wb = k.newlabel("st_b"), k.newlabel("st_j")
    k.wave_is(0, wa)
    k.I(f"buffer_load_dwordx4 v[24:27], {v(V_L16)}, {srd(S_C)}, 0 offen")
    k.I(f"v_lshrrev_b32 v7, 1, {v(V_LANE)}")
    k.I("v_mul_u32_u24 v7, 6144, v7")
    k.I(f"v_and_b32 v8, 1, {v(V_LANE)}")
    k.I("v_lshlrev_b32 v8, 4, v8")
    k.I(f"s_lshl_b32 {s(S_T0)}, {s(S_GC)}, 5")
    k.I(f"v_add3_u32 v7, v7, v8, {s(S_T0)}")
    k.I(f"s_and_b32 {s(S_OFF)}, {s(S_I)}, 3")
    k.I(f"s_mul_i32 {s(S_OFF)}, {s(S_OFF)}, {128*6144}")
    k.I(f"s_mov_b32 m0, {L_WM}")
    k._tag = "wm"
    for n in range(4):
        k.dma(7, S_WMOD, s(S_OFF))
        if n < 3:
            k.I(f"s_add_u32 m0, m0, 1024")
            k.I(f"s_add_u32 {s(S_OFF)}, {s(S_OFF)}, 196608")
    k._tag = None
    k.I(f"s_branch {wb}")
    k.label(wa)
    k.I(f"s_lshl_b32 {s(S_OFF)}, {s(S_HP)}, 10")
    k.I(f"s_mov_b32 m0, {L_PHI}")
    k.dma(V_L16, S_WPHI, s(S_OFF))
    touch_wqkv(k)
    x_rows(k)
    if OPT.get("tlbpf"):
        k.I(f"v_min_u32 v9, 7, {v(V_LANE)}")
        k.I("v_lshlrev_b32 v9, 21, v9")
        k.I(f"buffer_load_dword v178, v9, {srd(S_WS)}, 0 offen offset:2048")
        k.I(f"buffer_load_dword v178, {v(V_L16)}, {srd(S_OUT)}, 0 offen")
    k.label(wb)
    k.cond_end()
    k.vmq = []


def start_finish(k):
    k.cond_begin()
    wa, wb = k.newlabel("sf_b"), k.newlabel("sf_j")
    k.wave_is(0, wa)
    k.I("s_waitcnt vmcnt(4)")
    k.I(f"v_add_u32 {v(V_TAG)}, 1, {v(V_TAG)}")
    for i in range(4):
        k.unpack(28 + 2 * i, 29 + 2 * i, 24 + i)
    for i in range(8):
        k.I(f"v_mul_f32 {v(36+i)}, {s(S_L2E)}, {v(28+i)}")
    for i in range(8):
        k.I(f"v_exp_f32 {v(36+i)}, -{v(36+i)}")
    for i in range(8):
        k.I(f"v_add_f32 {v(36+i)}, 1.0, {v(36+i)}")
    for i in range(8):
        k.I(f"v_rcp_f32 {v(36+i)}, {v(36+i)}")
    for i in range(8):
        k.I(f"v_mul_f32 {v(28+i)}, {v(28+i)}, {v(36+i)}")
    for i in range(4):
        k.I(f"v_cvt_pk_bf16_f32 {v(24+i)}, {v(28+2*i)}, {v(29+2*i)}")
    k.I(f"v_add_u32 v8, {L_S}, {v(V_L16)}")
    k.I("ds_write_b128 v8, v[24:27]")
    k.I("s_waitcnt vmcnt(0) lgkmcnt(0)")
    gemv16(k, L_WM, nq=4, partial=True)
    if OPT["mall"]:
        mall_touch(k)
    k.I(f"s_branch {wb}")
    k.label(wa)
    k.I("s_waitcnt vmcnt(0)")
    k.I(f"v_add_u32 {v(V_TAG)}, 1, {v(V_TAG)}")
    k.label(wb)
    k.cond_end()
    k.I(f"v_readfirstlane_b32 {s(S_TAG)}, {v(V_TAG)}")
    k.stamp("mod published")
    k.lgq = []
    k.barrier()


def modn_compute(k):
    skip = k.newlabel("mn_c")
    k.I("s_sub_u32 s55, s2, 64")
    k.I("s_cmp_ge_u32 s55, 128")
    k.I(f"s_cbranch_scc1 {skip}")
    k.wave_is(2, skip)
    k.cond_begin()
    gemv16(k, L_WMN)
    k.cond_end()
    k.label(skip)


X0 = 16
AQ, AK, AV = 144, 160, 176
DM = 144
DG = 192
EB = (200, 204)
BEXT = 208
MSK = 212
V_TRK, V_TRV, V_TAB, V_R, V_TRQ = 220, 221, 222, 223, 4


def lane_fields(k, t_r=None, s_=None, r_=None, c_=None, nh=None):
    if s_ is not None:
        k.I(f"v_lshrrev_b32 {v(s_)}, 5, {v(V_LANE)}")
    if nh is not None:
        k.I(f"v_bfe_u32 {v(nh)}, {v(V_LANE)}, 4, 1")
    if r_ is not None:
        k.I(f"v_bfe_u32 {v(r_)}, {v(V_LANE)}, 2, 2")
    if c_ is not None:
        k.I(f"v_and_b32 {v(c_)}, 3, {v(V_LANE)}")


def lbase_bytes(k, dst, nh, c, t0, t1):
    k.I(f"v_and_b32 {v(t0)}, 1, {v(c)}")
    k.I(f"v_lshlrev_b32 {v(t0)}, 5, {v(t0)}")
    k.I(f"v_lshrrev_b32 {v(t1)}, 1, {v(c)}")
    k.I(f"v_lshlrev_b32 {v(t1)}, 3, {v(t1)}")
    k.I(f"v_lshl_add_u32 {v(dst)}, {v(nh)}, 4, {v(t0)}")
    k.I(f"v_add_u32 {v(dst)}, {v(dst)}, {v(t1)}")


MODA_REGS = [144 + 4 * i for i in range(8)]
MODA_ADDR = [202, 203, 204, 205, 206, 207, 241, 242]


def p1_prologue(k):
    k.I("v_mov_b32 v8, 0")
    k.I(f"v_lshlrev_b32 v9, 2, {v(V_LANE)}")
    k.I(f"v_and_b32 v9, 60, v9")
    k.I(f"v_add_u32 v9, {L_ZERO}, v9")
    k.I("ds_write_b32 v9, v8")
    p1_static(k)
    k.I(f"v_and_b32 v8, 31, {v(V_LANE)}")
    k.I(f"s_lshl_b32 {s(S_T0)}, {s(S_W)}, 5")
    k.I(f"v_add_u32 v9, {s(S_T0)}, v8")
    k.I("v_lshlrev_b32 v9, 10, v9")
    k.I("v_and_b32 v8, 15, v8")
    k.I(f"v_lshrrev_b32 v10, 5, {v(V_LANE)}")
    for q in range(8):
        k.I(f"v_add_u32 v11, {2*q}, v10")
        k.I("v_xor_b32 v11, v11, v8")
        k.I(f"v_lshl_add_u32 {v(192+q)}, v11, 4, v9")
    k.I(f"v_lshrrev_b32 v8, 3, {v(V_LANE)}")
    k.I("v_mul_u32_u24 v8, 3072, v8")
    k.I(f"v_and_b32 v9, 7, {v(V_LANE)}")
    k.I(f"v_bfe_u32 v10, {v(V_LANE)}, 4, 1")
    k.I("v_lshlrev_b32 v10, 2, v10")
    k.I("v_xor_b32 v9, v9, v10")
    k.I("v_lshrrev_b32 v10, 2, v9")
    k.I("v_lshlrev_b32 v10, 10, v10")
    k.I("v_and_b32 v9, 3, v9")
    k.I("v_lshl_add_u32 v10, v9, 4, v10")
    k.I(f"s_lshl_b32 {s(S_T0)}, {s(S_HP)}, 6")
    k.I(f"s_add_u32 {s(S_T1)}, {s(S_T0)}, 1024")
    k.I(f"v_add3_u32 v200, v8, v10, {s(S_T1)}")
    k.I(f"v_lshrrev_b32 v8, 2, {v(V_LANE)}")
    k.I("v_mul_u32_u24 v8, 3072, v8")
    k.I(f"v_and_b32 v9, 3, {v(V_LANE)}")
    k.I("v_lshl_add_u32 v8, v9, 4, v8")
    k.I(f"v_add_u32 v6, {s(S_T0)}, v8")
    k.I("v_lshlrev_b32 v202, 4, v0")
    k.I(f"v_add_u32 v202, {WS_MODC}, v202")
    k.I(f"v_add_u32 v203, 8192, v202")
    k.I(f"v_add_u32 v204, 16384, v202")
    k.I(f"v_add_u32 v205, 24576, v202")
    k.I(f"v_add_u32 v206, 4096, v202")
    k.I(f"v_add_u32 v207, 4096, v203")
    k.I(f"v_add_u32 v241, 4096, v204")
    k.I(f"v_add_u32 v242, 4096, v205")
    start_finish(k)
    k.I("v_mov_b32 v8, 0x3f803f80")
    for r in range(10, 14):
        k.I(f"v_mov_b32 {v(r)}, 0")
    dots = []
    for i in range(128):
        dots.append(f"v_dot2c_f32_bf16 {v(10 + (i & 1))}, {v(X0+i)}, v8")
        dots.append(f"v_dot2c_f32_bf16 {v(12 + (i & 1))}, {v(X0+i)}, {v(X0+i)}")
    LAG = 6
    NEARLY = OPT.get("dots_early", 20)
    for j in range(32):
        k.I(f"ds_read_b128 {v(X0+4*j, 4)}, {v(192+(j&7))} offset:{L_XI + (j>>3)*256}", tag=f"xf{j}")
        q = j - LAG
        if 0 <= q < NEARLY:
            k.wait_lg(f"xf{q}")
            for _ in range(8):
                k.I(dots.pop(0))
        elif j % 8 == 7 and j < 31:
            k.I("s_waitcnt lgkmcnt(8)")
    k.wait_lg_all()
    k.barrier()
    k.stamp("x in regs")
    k.I(f"s_mul_i32 {s(S_T2)}, {s(S_W)}, {128*3072}")
    k.I(f"s_lshl_b32 {s(S_T3)}, {s(S_W)}, 14")
    if L_KVI:
        k.I(f"s_add_u32 {s(S_T3)}, {s(S_T3)}, {L_KVI}")

    def some_dots(n):
        for _ in range(min(n, len(dots))):
            k.I(dots.pop(0))

    def kv_image():
        k._tag = "w"
        for n in range(16):
            k.I(f"s_add_u32 {s(S_OFF)}, {s(S_T2)}, {n*8*3072}")
            k.I(f"s_add_u32 m0, {s(S_T3)}, {n*1024}")
            k.dma(200, S_WQKV, s(S_OFF))
            some_dots(4)
        k._tag = None

    def mod_partials():
        for r, ad in zip(MODA_REGS, MODA_ADDR):
            k.granule_loads([r], [ad], 4, None, "modA")
            some_dots(3)

    if OPT.get("modfirst", 1):
        mod_partials()
        kv_image()
    else:
        kv_image()
        mod_partials()
    if OPT.get("qstats"):
        for it in q_image_items(k):
            for t, tg in it:
                k.I(t, tag=tg)
            some_dots(2)
    k.side_items = p1_side(k, regs=(243, 244, 245, 246))
    if not OPT.get("tloop") and not OPT.get("qloop"):
        for it in k.side_items:
            for t, tg in it:
                k.I(t, tag=tg)
            some_dots(3)
        k.side_items = []
    for t in dots:
        k.I(t)
    k.I("v_add_f32 v10, v10, v11")
    k.I("v_add_f32 v12, v12, v13")
    k.half_total(10, 11)
    k.half_total(12, 13)
    k.I("v_mul_f32 v10, 0x3b000000, v10")
    k.I("v_mul_f32 v12, 0x3b000000, v12")
    k.I("v_fma_f32 v12, -v10, v10, v12")
    k.I("v_max_f32 v12, 0, v12")
    k.I("v_add_f32 v12, 0x3727c5ac, v12")
    k.I(f"v_rsq_f32 {v(V_R)}, v12")
    k.I("v_sub_f32 v10, 0, v10")
    k.I(f"v_mul_f32 v11, v12, {v(V_R)}")
    k.I("v_cvt_pk_bf16_f32 v12, v10, v11")
    k.unpack(8, 9, 12)
    k.I("v_sub_f32 v8, v10, v8")
    k.I("v_sub_f32 v9, v11, v9")
    k.I("v_cvt_pk_bf16_f32 v13, v8, v9")
    k.I(f"s_mov_b32 {s(S_T0)}, 0x01000100")
    k.I(f"s_mov_b32 {s(S_T1)}, 0x03020302")
    k.I(f"v_perm_b32 {v(BEXT)}, v12, v12, {s(S_T0)}")
    k.I(f"v_perm_b32 {v(BEXT+1)}, v13, v13, {s(S_T0)}")
    k.I(f"v_perm_b32 {v(BEXT+2)}, v12, v12, {s(S_T1)}")
    k.I(f"v_perm_b32 {v(BEXT+3)}, v13, v13, {s(S_T1)}")
    k.I(f"v_cmp_gt_u32 vcc, 32, {v(V_LANE)}")
    for i in range(4):
        k.I(f"v_cndmask_b32 {v(BEXT+i)}, 0, {v(BEXT+i)}, vcc")
    k.stamp("stats")
    p1_rv(k)
    k.granule_verify(MODA_REGS, MODA_ADDR, "modA", 4, (2,), None, "modA")
    k.stamp("mod arrived")
    for base in (144, 160):
        k.I(f"v_pk_add_f32 {v(base,2)}, {v(base,2)}, {v(base+4,2)}")
        k.I(f"v_pk_add_f32 {v(base+8,2)}, {v(base+8,2)}, {v(base+12,2)}")
        k.I(f"v_pk_add_f32 {v(base,2)}, {v(base,2)}, {v(base+8,2)}")
    k.I("v_cvt_pk_bf16_f32 v204, v144, v145")
    k.I("v_cvt_pk_bf16_f32 v206, v160, v161")
    k.unpack(192, 193, 206)
    k.I("v_add_f32 v192, 1.0, v192")
    k.I("v_add_f32 v193, 1.0, v193")
    k.I("v_cvt_pk_bf16_f32 v12, v192, v193")
    k.I("v_and_b32 v192, 0xffff, v12")
    k.I("v_and_b32 v194, 0xffff, v204")
    k.I(f"v_and_b32 v196, {s(S_MASK)}, v12")
    k.I(f"v_and_b32 v198, {s(S_MASK)}, v204")
    for r in (192, 194, 196, 198):
        k.I(f"v_mov_b32 {v(r+1)}, {v(r)}")
    k.I("v_lshlrev_b32 v8, 5, v0")
    k.I(f"v_add_u32 v8, {L_CT}, v8")
    k.I("ds_write_b128 v8, v[192:195]")
    k.I("ds_write_b128 v8, v[196:199] offset:16")
    k.wait_vm("w")
    k.vmq = [t for t in k.vmq if t in ("wq", "t")]
    k.wait_lg_all()
    k.barrier()
    k.stamp("P1 ready")
    k.stamp("c0", cyc=True) if STAMPS and "c0" in STAMPS else None


def p1_static(k):
    k.I(f"v_bfe_u32 v8, {v(V_LANE)}, 1, 2")
    k.I(f"v_bfe_u32 v9, {v(V_LANE)}, 4, 1")
    k.I("v_lshl_add_u32 v8, v9, 2, v8")
    k.I(f"v_bfe_u32 v9, {v(V_LANE)}, 3, 1")
    k.I(f"v_lshrrev_b32 v10, 5, {v(V_LANE)}")
    k.I("v_xor_b32 v9, v9, v10")
    k.I("v_lshl_add_u32 v8, v9, 3, v8")
    for i in range(8):
        k.I(f"v_cmp_eq_u32 vcc, {i}, v8")
        k.I(f"v_cndmask_b32 {v(MSK+i)}, 0, -1, vcc")
    lane_fields(k, s_=8, r_=9, c_=10, nh=11)
    lbase_bytes(k, 12, 11, 10, 13, 14)
    k.I("v_lshl_add_u32 v8, v8, 2, v9")
    k.I("v_lshlrev_b32 v13, 7, v8")
    k.I("v_lshrrev_b32 v9, 1, v9")
    k.I("v_lshl_add_u32 v13, v9, 6, v13")
    k.I(f"v_add_u32 {v(V_TRK)}, v13, v12")
    k.I(f"v_xor_b32 {v(V_TRV)}, 64, {v(V_TRK)}")
    k.I("v_lshlrev_b32 v13, 6, v8")
    k.I("v_add_u32 v13, v13, v12")
    k.I(f"v_add_u32 {v(V_TRQ)}, {L_QI}, v13")
    k.I(f"v_and_b32 v8, 31, {v(V_LANE)}")
    k.I("v_lshlrev_b32 v8, 4, v8")
    k.I(f"v_add_u32 {v(V_TAB)}, {L_CT}, v8")
    p1_sel(k)


def p1_w(j, p):
    if p == 0:
        return V_TRQ, j * 1024, 512
    return (V_TRK if p == 1 else V_TRV), L_KVI + j * 2048, 1024


def p1_main(k):
    def rd_e(B):
        return [(f"ds_read_b128 {v(EB[B & 1], 4)}, {v(V_TAB)} offset:{B*512}", f"e{B}")]

    def rd_w(B):
        out = []
        for a in range(2):
            for pi, p in enumerate((1, 2)):
                base, off, st = p1_w(2 * B + a, p)
                for rd in range(2):
                    out.append((f"ds_read_b64_tr_b16 {a_(16*(B&1) + 8*a + 4*pi + 2*rd, 2)}, {v(base)} offset:{off + rd*st}", f"w{B}_{a}{pi}"))
        return out

    def diag(B):
        return [f"v_and_b32 {v(DG+i)}, {v(EB[B & 1])}, {v(MSK+i)}" for i in range(8)]

    def pack(B):
        return [f"v_cvt_pk_bf16_f32 {v(X0 + 8*B + i)}, {v(DM + 2*i)}, {v(DM + 2*i + 1)}" for i in range(8)]

    def mod_mfma(B, i):
        if i < 2:
            k.mfma32(v(DM, 16), v(DG + 4 * i, 4), v(X0 + 8 * B + 4 * i, 4), "0" if i == 0 else None)
        else:
            k.mfma32(v(DM, 16), v(EB[B & 1], 4), v(BEXT, 4))

    def emit(items):
        for it in items:
            if isinstance(it, tuple):
                k.I(it[0], tag=it[1])
            else:
                k.I(it)

    side = k.side_items
    if OPT.get("qloop"):
        side = q_image_items(k) + side
    emit(rd_e(0) + rd_e(1) + rd_w(0))
    k.wait_lg("e0")
    emit(diag(0))
    for i in range(3):
        mod_mfma(0, i)
    k.wait_lg("e1")
    emit(diag(1))
    emit(pack(0))
    for B in range(16):
        nxt = B + 1 < 16
        w = rd_w(B + 1) if nxt else []
        e = rd_e(B + 2) if B + 2 < 16 else []
        dg = diag(B + 2) if B + 2 < 16 else []
        pk = pack(B + 1) if nxt else []

        def g(a, pi):
            k.wait_lg(f"w{B}_{a}{pi}")
            wf = a_(16 * (B & 1) + 8 * a + 4 * pi, 4)
            h = v(X0 + 8 * B + 4 * a, 4)
            c0 = "0" if (B == 0 and a == 0) else None
            if pi == 0:
                k.mfma32(v(AK, 16), wf, h, c0)
            else:
                k.mfma32(v(AV, 16), h, wf, c0)

        cut = (1, 4, 7) if OPT.get("p1ord", 1) else (2, 4, 6)
        if nxt:
            mod_mfma(B + 1, 0)
        emit(e + w[0:cut[0]])
        if nxt:
            mod_mfma(B + 1, 1)
        emit(w[cut[0]:cut[1]])
        if nxt:
            mod_mfma(B + 1, 2)
        emit(w[cut[1]:cut[2]])
        g(0, 0)
        emit(w[cut[2]:8])
        if dg:
            k.wait_lg(f"e{B+2}")
        emit(dg[0:3])
        g(0, 1)
        emit(dg[3:8])
        g(1, 0)
        emit(pk[0:4])
        g(1, 1)
        emit(pk[4:8])
        for _ in range(2 if (OPT.get("qloop") == 2 and B < 4) else 1):
            if side:
                emit(side.pop(0))
    assert not side
    k.stamp("p1 main")
    k.stamp("c1", cyc=True) if STAMPS and "c1" in STAMPS else None


def p1_q(k):
    def rd(j):
        base, off, st = p1_w(j, 0)
        return [(f"ds_read_b64_tr_b16 {a_(4*(j % 6) + 2*rd, 2)}, {v(base)} offset:{off + rd*st}", f"q{j}") for rd in range(2)]
    for j in range(32 + 4):
        if j < 32:
            for t, tg in rd(j):
                k.I(t, tag=tg)
        q = j - 4
        if q >= 0:
            k.wait_lg(f"q{q}")
            k.mfma32(v(AQ, 16), a_(4 * (q % 6), 4), v(X0 + 4 * q, 4), "0" if q == 0 else None)


def softmax16(k, P, E, outp, outn, t, filler=None, every=4):
    mx, mn = t, t + 2
    k.I(f"v_max3_f32 {v(mx)}, {v(P)}, {v(P+1)}, {v(P+2)}")
    k.I(f"v_min3_f32 {v(mn)}, {v(P)}, {v(P+1)}, {v(P+2)}")
    for i in range(3, 15, 2):
        k.I(f"v_max3_f32 {v(mx)}, {v(mx)}, {v(P+i)}, {v(P+i+1)}")
        k.I(f"v_min3_f32 {v(mn)}, {v(mn)}, {v(P+i)}, {v(P+i+1)}")
    k.I(f"v_max_f32 {v(mx)}, {v(mx)}, {v(P+15)}")
    k.I(f"v_min_f32 {v(mn)}, {v(mn)}, {v(P+15)}")
    k.I(f"v_mul_f32 {v(mx)}, {s(S_L2E)}, {v(mx)}")
    k.I(f"v_mul_f32 {v(mn)}, {s(S_L2E)}, {v(mn)}")
    for sign, m, out in ((+1, mx, outp), (-1, mn, outn)):
        for i in range(0, 16, 2):
            if sign > 0:
                k.I(f"v_pk_fma_f32 {v(E+i,2)}, {v(P+i,2)}, {s(S_L2E,2)}, {v(m,2)} op_sel_hi:[1,1,0] neg_lo:[0,0,1] neg_hi:[0,0,1]")
            else:
                k.I(f"v_pk_fma_f32 {v(E+i,2)}, {v(P+i,2)}, {s(S_L2E,2)}, {v(m,2)} op_sel_hi:[1,1,0] neg_lo:[1,0,0] neg_hi:[1,0,0]")
        for i in range(16):
            k.I(f"v_exp_f32 {v(E+i)}, {v(E+i)}")
            if filler and i % every == every - 1:
                for tt, tg in filler.pop(0):
                    k.I(tt, tag=tg)
        sm = t + 4
        k.I(f"v_pk_add_f32 {v(sm,2)}, {v(E,2)}, {v(E+2,2)}")
        for i in range(4, 16, 2):
            k.I(f"v_pk_add_f32 {v(sm,2)}, {v(sm,2)}, {v(E+i,2)}")
        k.I(f"v_add_f32 {v(sm)}, {v(sm)}, {v(sm+1)}")
        k.I(f"v_rcp_f32 {v(sm)}, {v(sm)}")
        for i in range(0, 16, 2):
            k.I(f"v_pk_mul_f32 {v(E+i,2)}, {v(E+i,2)}, {v(sm,2)} op_sel_hi:[1,0]")
        for i in range(8):
            k.I(f"v_cvt_pk_bf16_f32 {v(out+i)}, {v(E+2*i)}, {v(E+2*i+1)}")


PHI_A, PHI_B = 224, 228
SEL0, SEL1, SELN0, SELN1 = 232, 236, 240, 244
RV = 224
PK, VP = 144, 152
PP = 160
EE = 192
TMP = 208
FP, FN = 224, 232
TP, TN = 176, 160
KVA, KVB = 192, 240
QP, QN = 96, 104


def p1_sel(k):
    k.I(f"v_bfe_u32 v8, {v(V_LANE)}, 3, 1")
    k.I(f"v_and_b32 v9, 3, {v(V_LANE)}")
    k.I("v_lshl_add_u32 v8, v8, 2, v9")
    k.I("v_and_b32 v9, 1, v8")
    k.I("v_lshlrev_b32 v9, 4, v9")
    k.I("v_mov_b32 v10, 0x3f80")
    k.I("v_lshlrev_b32 v9, v9, v10")
    k.I("v_lshrrev_b32 v8, 1, v8")
    k.I(f"v_bfe_u32 v10, {v(V_LANE)}, 4, 1")
    k.I(f"v_bfe_u32 v11, {v(V_LANE)}, 2, 1")
    k.I(f"v_lshrrev_b32 v12, 5, {v(V_LANE)}")
    k.I("v_xor_b32 v11, v11, v12")
    k.I(f"v_cmp_eq_u32 {s(S_VALID,2)}, 0, v11")
    k.I("v_lshl_add_u32 v13, v10, 2, v8")
    k.I("v_lshl_add_u32 v13, v11, 3, v13")
    for neg, base in ((0, SEL0), (1, SELN0)):
        for a in range(2):
            for d in range(4):
                k.I(f"v_cmp_eq_u32 vcc, {8*neg + 4*a + d}, v13")
                k.I(f"v_cndmask_b32 v14, 0, v9, vcc")
                k.I(f"v_accvgpr_write_b32 {a_(base + 4*a + d)}, v14")


def p1_rv(k):
    k.wait_vm("phi")
    lane_fields(k, s_=8, r_=9, c_=10, nh=11)
    k.I("v_lshlrev_b32 v12, 9, v8")
    k.I("v_lshl_add_u32 v12, v9, 5, v12")
    k.I("v_lshlrev_b32 v13, 1, v11")
    k.I("v_lshrrev_b32 v14, 1, v10")
    k.I("v_add_u32 v13, v13, v14")
    k.I("v_lshl_add_u32 v12, v13, 3, v12")
    k.I(f"v_add_u32 v12, {L_PHI}, v12")
    k.I("v_and_b32 v13, 1, v10")
    k.I("v_cmp_eq_u32 vcc, v13, v8")
    for a in range(2):
        for rd in range(2):
            k.I(f"v_add_u32 v14, {(8*a+4*rd)*32}, v12")
            k.I(f"v_mov_b32 v15, {L_ZERO}")
            k.I("v_cndmask_b32 v14, v15, v14, vcc")
            k.I(f"ds_read_b64_tr_b16 {a_(PHI_A + 4*a + 2*rd, 2)}, v14", tag="phif")
    k.I(f"v_and_b32 v8, 31, {v(V_LANE)}")
    k.I("v_lshlrev_b32 v8, 2, v8")
    k.I(f"s_lshl_b32 {s(S_T0)}, {s(S_W)}, 7")
    k.I(f"s_add_u32 {s(S_T0)}, {s(S_T0)}, {L_RT}")
    k.I(f"v_add_u32 v8, {s(S_T0)}, v8")
    k.I(f"ds_write_b32 v8, {v(V_R)}", tag="rw")
    k.I(f"v_lshrrev_b32 v9, 5, {v(V_LANE)}")
    k.I("v_lshlrev_b32 v9, 4, v9")
    k.I(f"v_add_u32 v9, {s(S_T0)}, v9")
    k.wait_lg("rw")
    for q in range(4):
        k.I(f"ds_read_b128 {v(RV+4*q,4)}, v9 offset:{32*q}", tag="rv")
    k.wait_lg_all()


def p1_epilogue(k):
    k.barrier()
    for i in range(16):
        k.I(f"v_mul_f32 {v(AK+i)}, {v(V_R)}, {v(AK+i)}")
    for i in range(8):
        k.I(f"v_cvt_pk_bf16_f32 {v(PK+i)}, {v(AK+2*i)}, {v(AK+2*i+1)}")
    k.mfma32(v(PP, 16), a_(PHI_A, 4), v(PK, 4), "0")
    k.mfma32(v(PP, 16), a_(PHI_B, 4), v(PK + 4, 4))
    for i in range(16):
        k.I(f"v_mul_f32 {v(AV+i)}, {v(RV+i)}, {v(AV+i)}")
    for i in range(8):
        k.I(f"v_cvt_pk_bf16_f32 {v(VP+i)}, {v(AV+2*i)}, {v(AV+2*i+1)}")
    k.stamp("k proj")
    softmax16(k, PP, EE, FP, FN, TMP, filler=None if (OPT.get("qloop") or OPT.get("qstats")) else q_image_items(k))
    k.stamp("k softmax")
    k.mfma32(v(TP, 16), v(FP, 4), a_(SEL0, 4), "0")
    k.mfma32(v(TN, 16), v(FN, 4), a_(SELN0, 4), "0")
    k.mfma32(v(TP, 16), v(FP + 4, 4), a_(SEL1, 4))
    k.mfma32(v(TN, 16), v(FN + 4, 4), a_(SELN1, 4))
    for src, pk, z in ((TP, FP, TMP), (TN, FN, TMP + 2)):
        for i in range(8):
            k.I(f"v_cvt_pk_bf16_f32 {v(pk+i)}, {v(src+2*i)}, {v(src+2*i+1)}")
        if src == TP:
            k.mfma32(v(KVA, 16), v(FP, 4), v(VP, 4), "0")
            k.mfma32(v(KVA, 16), v(FP + 4, 4), v(VP + 4, 4))
        else:
            k.mfma32(v(KVB, 16), v(FN, 4), v(VP, 4), "0")
            k.mfma32(v(KVB, 16), v(FN + 4, 4), v(VP + 4, 4))
    for src, z in ((TP, TMP), (TN, TMP + 2)):
        k.I(f"v_add_f32 {v(z)}, {v(src)}, {v(src+1)}")
        k.I(f"v_add_f32 {v(z+1)}, {v(src+2)}, {v(src+3)}")
        for i in range(4, 16, 2):
            k.I(f"v_add_f32 {v(z)}, {v(z)}, {v(src+i)}")
            k.I(f"v_add_f32 {v(z+1)}, {v(z+1)}, {v(src+i+1)}")
    k.I(f"v_add_f32 {v(TMP+4)}, {v(TMP)}, {v(TMP+1)}")
    k.I(f"v_add_f32 {v(TMP+5)}, {v(TMP+2)}, {v(TMP+3)}")
    for i in range(16):
        k.I(f"v_cndmask_b32 {v(KVA+i)}, {v(KVB+i)}, {v(KVA+i)}, {s(S_VALID,2)}")
    k.stamp("kv mfma")
    k.I(f"s_mul_i32 {s(S_T0)}, {s(S_W)}, 4608")
    k.I(f"s_add_u32 {s(S_T0)}, {s(S_T0)}, {L_RED}")
    k.I(f"v_add_u32 v8, {s(S_T0)}, {v(V_L16)}")
    for q in range(4):
        k.I(f"ds_write_b128 v8, {v(KVA+4*q,4)} offset:{q*1024}")
    k.I(f"v_lshlrev_b32 v9, 3, {v(V_LANE)}")
    k.I(f"v_add_u32 v9, {s(S_T0)}, v9")
    k.I(f"ds_write_b64 v9, {v(TMP+4,2)} offset:4096")
    k.wait_lg_all()
    k.barrier()
    k.stamp("red barrier")
    k.I(f"s_lshl_b32 {s(S_T0)}, {s(S_W)}, 10")
    k.I(f"s_add_u32 {s(S_T0)}, {s(S_T0)}, {L_RED}")
    k.I(f"v_add_u32 v8, {s(S_T0)}, {v(V_L16)}")
    for ww in range(4):
        k.I(f"ds_read_b128 {v(KVA+4*ww,4)}, v8 offset:{ww*4608}")
    k.I(f"v_lshlrev_b32 v9, 3, {v(V_LANE)}")
    k.I(f"v_add_u32 v9, {L_RED + 4096}, v9")
    for ww in range(4):
        k.I(f"ds_read_b64 {v(KVB+2*ww,2)}, v9 offset:{ww*4608}")
    k.wait_lg_all()
    for h in (0, 2):
        k.I(f"v_pk_add_f32 {v(KVA+h,2)}, {v(KVA+h,2)}, {v(KVA+4+h,2)}")
        k.I(f"v_pk_add_f32 {v(KVA+8+h,2)}, {v(KVA+8+h,2)}, {v(KVA+12+h,2)}")
        k.I(f"v_pk_add_f32 {v(KVA+h,2)}, {v(KVA+h,2)}, {v(KVA+8+h,2)}")
    k.I(f"v_cvt_pk_bf16_f32 {v(KVA)}, {v(KVA)}, {v(KVA+1)}")
    k.I(f"v_cvt_pk_bf16_f32 {v(KVA+1)}, {v(KVA+2)}, {v(KVA+3)}")
    k.I(f"v_pk_add_f32 {v(KVB,2)}, {v(KVB,2)}, {v(KVB+2,2)}")
    k.I(f"v_pk_add_f32 {v(KVB+4,2)}, {v(KVB+4,2)}, {v(KVB+6,2)}")
    k.I(f"v_pk_add_f32 {v(KVB,2)}, {v(KVB,2)}, {v(KVB+4,2)}")
    k.I(f"v_cvt_pk_bf16_f32 {v(KVB)}, {v(KVB)}, {v(KVB+1)}")
    k.test_delay(3)
    k.I(f"v_mov_b32 {v(KVA+2)}, {v(KVB)}")
    k.I(f"v_mov_b32 {v(KVA+3)}, {v(V_TAG)}")
    k.I(f"s_lshl_b32 {s(S_T0)}, {s(S_HP)}, 4")
    k.I(f"s_add_u32 {s(S_T0)}, {s(S_T0)}, {s(S_M)}")
    k.I(f"s_lshl_b32 {s(S_T1)}, {s(S_T0)}, 12")
    k.I(f"s_lshl_b32 {s(S_T2)}, {s(S_W)}, 10")
    k.I(f"s_add_u32 {s(S_T1)}, {s(S_T1)}, {s(S_T2)}")
    k.I(f"s_add_u32 {s(S_T1)}, {s(S_T1)}, {WS_KVP}")
    k.I(f"buffer_store_dwordx4 {v(KVA,4)}, {v(V_L16)}, {srd(S_WS)}, {s(S_T1)} offen sc1", tag="kvst")
    k.wait_vm("wq")
    k.barrier()
    k.stamp("kv published")
    modn_issue(k)
    p1_q(k)
    k.stamp("q gemm")
    kv_addr(k)
    kv_loads(k, "kvp")
    for i in range(16):
        k.I(f"v_mul_f32 {v(AQ+i)}, {v(V_R)}, {v(AQ+i)}")
    for i in range(8):
        k.I(f"v_cvt_pk_bf16_f32 {v(160+i)}, {v(AQ+2*i)}, {v(AQ+2*i+1)}")
    k.mfma32(v(176, 16), a_(PHI_A, 4), v(160, 4), "0")
    k.mfma32(v(176, 16), a_(PHI_B, 4), v(164, 4))
    quad_ids(k)
    softmax16(k, 176, EE, QP, QN, TMP, filler=None if OPT.get("wo_kv", 1) else wo_items(k), every=2)
    k.stamp("q softmax")


S_UB = 101


S_UBO, S_MNO = 90, 91


def p1_side(k, regs):
    ra, rb, rc, rt = regs
    touch_setup(k, ra, rb, rc, rt)
    k.I(f"v_and_b32 {v(rc)}, 31, {v(V_LANE)}")
    k.I(f"v_mul_u32_u24 {v(rc)}, 6144, {v(rc)}")
    k.I(f"s_lshr_b32 {s(S_T0)}, {s(S_G)}, 2")
    k.I(f"s_lshl_b32 {s(S_T0)}, {s(S_T0)}, 7")
    k.I(f"s_and_b32 {s(S_T1)}, {s(S_G)}, 3")
    k.I(f"s_lshl_b32 {s(S_T1)}, {s(S_T1)}, 2")
    k.I(f"s_add_u32 {s(S_T1)}, {s(S_T1)}, {s(S_W)}")
    k.I(f"s_mul_i32 {s(S_T1)}, {s(S_T1)}, {32*6144}")
    k.I(f"s_add_u32 {s(S_MNO)}, {s(S_T0)}, {s(S_T1)}")
    k.I("s_sub_u32 s55, s2, 64")
    k.I("s_cmp_ge_u32 s55, 128")
    k.I(f"s_cselect_b32 {s(S_MNO)}, 0x7ff00000, {s(S_MNO)}")
    items = []
    if OPT["touch"]:
        if OPT.get("tmn", 1):
            items.append([(f"buffer_load_dword v5, {v(rc)}, {srd(S_WMOD)}, {s(S_MNO)} offen{' nt' if OPT.get('tmn_nt', 1) else ''}", "t")])
        if OPT.get("map24"):
            items.append([(f"s_lshl_b32 {s(S_T0)}, {s(S_I)}, 2", None), (f"s_add_u32 {s(S_T0)}, {s(S_T0)}, {s(S_W)}", None),
                          (f"s_and_b32 {s(S_T1)}, {s(S_XCD)}, 1", None), (f"s_lshl_b32 {s(S_T1)}, {s(S_T1)}, 9", None),
                          (f"v_min_u32 {v(rt)}, 55, {v(V_LANE)}", None), (f"v_lshrrev_b32 {v(ra)}, 2, {v(rt)}", None),
                          (f"v_lshlrev_b32 {v(ra)}, 10, {v(ra)}", None), (f"v_and_b32 {v(rt)}, 3, {v(rt)}", None),
                          (f"v_lshl_add_u32 {v(ra)}, {v(rt)}, 7, {v(ra)}", None), (f"v_add_u32 {v(ra)}, {s(S_T1)}, {v(ra)}", None),
                          (f"s_mul_i32 {s(S_T1)}, {s(S_T0)}, {14*1024}", None),
                          (f"buffer_load_dword v5, {v(ra)}, {srd(S_WD)}, {s(S_T1)} offen", "t"),
                          (f"v_and_b32 {v(ra)}, 0xfff, {v(ra)}", None), (f"s_lshl_b32 {s(S_T1)}, {s(S_T0)}, 12", None),
                          (f"buffer_load_dword v5, {v(ra)}, {srd(S_WO)}, {s(S_T1)} offen", "t")])
            for r in (S_WG, S_WU):
                items.append([(f"buffer_load_dword v5, {v(rb)}, {srd(r)}, 0 offen", "t")])
        else:
            for r, a in ((S_WO, ra), (S_WG, rb), (S_WU, rb)):
                items.append([(f"buffer_load_dword v5, {v(a)}, {srd(r)}, 0 offen", "t")])
        if OPT.get("twd", 0):
            items.append([(f"s_lshl_b32 {s(S_T0)}, s2, 2", None), (f"s_add_u32 {s(S_T0)}, {s(S_T0)}, {s(S_W)}", None),
                          (f"s_mul_i32 {s(S_T0)}, {s(S_T0)}, {14*128}", None), (f"v_min_u32 {v(rt)}, 13, {v(V_LANE)}", None),
                          (f"v_lshlrev_b32 {v(rt)}, 7, {v(rt)}", None),
                          (f"buffer_load_dword v5, {v(rt)}, {srd(S_WD)}, {s(S_T0)} offen", "t")])
    return items


def q_image_items(k):
    k.I(f"s_mul_i32 {s(S_T3)}, {s(S_W)}, {128*3072}")
    k.I(f"s_lshl_b32 {s(S_T4)}, {s(S_W)}, 13")
    k.I(f"s_add_u32 {s(S_T4)}, {s(S_T4)}, {L_QI}")
    return [[(f"s_add_u32 {s(S_OFF)}, {s(S_T3)}, {n*16*3072}", None), (f"s_add_u32 m0, {s(S_T4)}, {n*1024}", None),
             (f"buffer_load_dwordx4 v6, {srd(S_WQKV)}, {s(S_OFF)} offen lds", "wq")] for n in range(8)]


def modn_issue(k):
    skip = k.newlabel("mn_i")
    k.I("s_sub_u32 s55, s2, 64")
    k.I("s_cmp_ge_u32 s55, 128")
    k.I(f"s_cbranch_scc1 {skip}")
    k.cond_begin()
    wm_voff(k, 7, 8)
    k.I(f"s_mul_i32 {s(S_OFF)}, {s(S_W)}, {4*196608}")
    k.I(f"s_lshl_b32 {s(S_T0)}, {s(S_W)}, 12")
    k.I(f"s_add_u32 m0, {s(S_T0)}, {L_WMN}")
    for n in range(4):
        k.I(f"buffer_load_dwordx4 v7, {srd(S_WMOD)}, {s(S_OFF)} offen lds")
        if n < 3:
            k.I(f"s_add_u32 m0, m0, 1024")
            k.I(f"s_add_u32 {s(S_OFF)}, {s(S_OFF)}, 196608")
    k.cond_end()
    k.label(skip)


def ub_compute(k):
    skip = k.newlabel("ubc_skip")
    k.I(f"s_cmp_ge_u32 {s(S_I)}, 28")
    k.I(f"s_cbranch_scc1 {skip}")
    k.I(f"s_cmp_lt_u32 {s(S_W)}, 2")
    k.I(f"s_cbranch_scc1 {skip}")
    k.cond_begin()
    S_JOB, S_KH, S_BLK = S_T2, S_T3, S_T4
    k.I(f"s_lshr_b32 {s(S_T0)}, {s(S_XCD)}, 1")
    k.I(f"s_mul_i32 {s(S_JOB)}, {s(S_T0)}, 28")
    k.I(f"s_add_u32 {s(S_JOB)}, {s(S_JOB)}, {s(S_I)}")
    k.I(f"s_cmp_ge_u32 {s(S_JOB)}, 56")
    k.I(f"s_cselect_b32 {s(S_KH)}, 1, 0")
    k.I(f"s_mul_i32 {s(S_T0)}, {s(S_KH)}, 56")
    k.I(f"s_sub_u32 {s(S_BLK)}, {s(S_JOB)}, {s(S_T0)}")
    k.I(f"s_cmp_lt_u32 {s(S_BLK)}, 28")
    for i in range(4):
        k.I(f"s_cselect_b32 {s(S_UBS+i)}, {s(S_WG+i)}, {s(S_WU+i)}")
    k.I(f"s_cselect_b32 {s(S_T0)}, 0, 28")
    k.I(f"s_cselect_b32 {s(S_T1)}, 0, 56")
    k.I(f"s_sub_u32 {s(S_BLK)}, {s(S_BLK)}, {s(S_T0)}")
    k.I(f"s_and_b32 {s(S_T0)}, {s(S_XCD)}, 1")
    k.I(f"s_mul_i32 {s(S_T0)}, {s(S_T0)}, 28")
    k.I(f"s_add_u32 {s(S_BLK)}, {s(S_BLK)}, {s(S_T0)}")
    k.I(f"s_add_u32 {s(S_JOB)}, {s(S_BLK)}, {s(S_T1)}")
    k.I(f"v_lshrrev_b32 v112, 2, {v(V_LANE)}")
    k.I("v_mul_u32_u24 v112, 3584, v112")
    k.I(f"v_and_b32 v113, 3, {v(V_LANE)}")
    k.I("v_lshl_add_u32 v112, v113, 4, v112")
    k.I(f"s_lshl_b32 {s(S_T0)}, {s(S_BLK)}, 6")
    k.I(f"v_add_u32 v112, {s(S_T0)}, v112")
    k.I(f"s_mul_i32 {s(S_OFF)}, {s(S_KH)}, {256*3584}")
    k.I(f"s_and_b32 {s(S_T0)}, {s(S_W)}, 1")
    k.I(f"s_mul_i32 {s(S_T1)}, {s(S_T0)}, {128*3584}")
    k.I(f"s_add_u32 {s(S_OFF)}, {s(S_OFF)}, {s(S_T1)}")
    k.I(f"s_lshl_b32 {s(S_UBH)}, {s(S_T0)}, 13")
    k.I(f"s_add_u32 m0, {s(S_UBH)}, {L_UB}")
    for n in range(8):
        k.dma(112, S_UBS, s(S_OFF))
        if n < 7:
            k.I("s_add_u32 m0, m0, 1024")
            k.I(f"s_add_u32 {s(S_OFF)}, {s(S_OFF)}, {16*3584}")
    k.I(f"s_lshl_b32 {s(S_T0)}, {s(S_KH)}, 10")
    k.I(f"v_add_u32 v114, {s(S_T0)}, {v(V_L16)}")
    k.I(f"v_add_u32 v114, {WS_MODG + 768*8}, v114")
    k.load_granules_checked([116, 120], [114] * 2, "modU", width=4, tagpos=(1, 3), imm=[0, 2048])
    for i, r in enumerate((120, 122)):
        k.unpack(124, 125, r)
        k.I("v_add_f32 v124, 1.0, v124")
        k.I("v_add_f32 v125, 1.0, v125")
        k.I(f"v_cvt_pk_bf16_f32 {v(128+i)}, v124, v125")
    k.I("v_mov_b32 v130, v116")
    k.I("v_mov_b32 v131, v118")
    k.I("v_mov_b32 v132, 0")
    k.I("v_mov_b32 v133, 0")
    k.I(f"v_lshlrev_b32 v113, 3, {v(V_LANE)}")
    k.I(f"v_add_u32 v113, {L_CS}, v113")
    k.I("ds_write_b64 v113, v[128:129]")
    k.I("ds_write_b64 v113, v[130:131] offset:512")
    k.I("ds_write_b64 v113, v[132:133] offset:1024")
    k.I(f"v_and_b32 v113, 31, {v(V_LANE)}")
    k.I("v_min_u32 v113, 2, v113")
    k.I("v_lshlrev_b32 v113, 9, v113")
    k.I(f"v_lshrrev_b32 v114, 5, {v(V_LANE)}")
    k.I("v_lshl_add_u32 v113, v114, 4, v113")
    k.I(f"v_add_u32 v113, {L_CS}, v113")
    k.I(f"s_lshr_b32 {s(S_T0)}, {s(S_UBH)}, 5")
    k.I(f"v_add_u32 v113, {s(S_T0)}, v113")
    lane_fields(k, s_=114, r_=115, c_=116, nh=117)
    k.I("v_lshl_add_u32 v114, v114, 3, v115")
    k.I("v_lshlrev_b32 v114, 6, v114")
    k.I("v_lshl_add_u32 v114, v117, 5, v114")
    k.I("v_lshl_add_u32 v114, v116, 3, v114")
    k.I(f"v_add_u32 v114, {L_UB}, v114")
    k.I(f"v_add_u32 v114, {s(S_UBH)}, v114")
    k.I("s_waitcnt vmcnt(0) lgkmcnt(0)")
    for j in range(8 + 2):
        if j < 8:
            b = 116 + 8 * (j & 3)
            k.I(f"ds_read_b64_tr_b16 {v(b+4,2)}, v114 offset:{j*1024}")
            k.I(f"ds_read_b64_tr_b16 {v(b+6,2)}, v114 offset:{j*1024 + 256}")
            k.I(f"ds_read_b128 {v(b,4)}, v113 offset:{j*32}")
        if j >= 2:
            k.I(f"s_waitcnt lgkmcnt({6 if j < 8 else (3 if j == 8 else 0)})")
            bb = 116 + 8 * ((j - 2) & 3)
            k.mfma32(v(152, 16), v(bb, 4), v(bb + 4, 4), "0" if j == 2 else None)
    w3 = k.newlabel("ub_w3")
    k.I("s_nop 11")
    k.wave_is(2, w3)
    k.I(f"v_lshlrev_b32 v113, 3, {v(V_LANE)}")
    k.I(f"v_add_u32 v113, {L_UBP}, v113")
    k.I("ds_write_b64 v113, v[152:153]")
    k.I("s_waitcnt lgkmcnt(0)")
    k.label(w3)
    k.I("v_accvgpr_write_b32 a244, v152")
    k.I("v_accvgpr_write_b32 a245, v153")
    k.I(f"s_mov_b32 {s(S_UBJ)}, {s(S_JOB)}")
    k.I(f"s_mov_b32 {s(S_UBK)}, {s(S_KH)}")
    k.cond_end()
    k.label(skip)


def ub_publish(k):
    skip = k.newlabel("ubp_skip")
    k.I(f"s_cmp_ge_u32 {s(S_I)}, 28")
    k.I(f"s_cbranch_scc1 {skip}")
    k.wave_is(3, skip)
    k.cond_begin()
    S_JOB, S_KH = S_UBJ, S_UBK
    k.test_delay(4)
    k.I(f"v_lshlrev_b32 v174, 3, {v(V_LANE)}")
    k.I(f"v_add_u32 v174, {L_UBP}, v174")
    k.I("ds_read_b64 v[154:155], v174")
    k.I("v_accvgpr_read_b32 v152, a244")
    k.I("v_accvgpr_read_b32 v153, a245")
    k.I("s_waitcnt lgkmcnt(0)")
    k.I("v_add_f32 v152, v152, v154")
    k.I("v_add_f32 v153, v153, v155")
    k.I("v_cvt_pk_bf16_f32 v168, v152, v153")
    k.unpack(170, 171, 168)
    k.I("v_sub_f32 v172, v152, v170")
    k.I("v_sub_f32 v173, v153, v171")
    k.I("v_cvt_pk_bf16_f32 v169, v172, v173")
    k.I(f"s_mov_b32 {s(S_T0)}, 0x05040100")
    k.I(f"s_mov_b32 {s(S_T1)}, 0x07060302")
    k.I(f"v_perm_b32 v176, v169, v168, {s(S_T0)}")
    k.I("v_mov_b32 v177, v168")
    k.I(f"v_perm_b32 v178, v168, v169, {s(S_T1)}")
    k.I(f"v_mov_b32 v179, {v(V_TAG)}")
    k.I(f"s_mul_i32 {s(S_T0)}, {s(S_KH)}, {3584*16}")
    k.I(f"s_lshl_b32 {s(S_T1)}, {s(S_JOB)}, 9")
    k.I(f"s_add_u32 {s(S_T0)}, {s(S_T0)}, {s(S_T1)}")
    k.I(f"s_add_u32 {s(S_T0)}, {s(S_T0)}, {WS_WEXT}")
    k.I(f"v_add_u32 v174, {s(S_T0)}, {v(V_L16)}")
    k.I("s_mov_b32 exec_hi, 0")
    k.I(f"buffer_store_dwordx4 v[176:179], v174, {srd(S_WS)}, 0 offen sc1")
    k.I("s_mov_b64 exec, -1")
    k.cond_end()
    k.label(skip)


S_UBH, S_UBJ, S_UBK = 32, 33, 34
L_UBP = L_UB
S_UBS = 12


def touch_setup(k, ra, rb, rc, rt):
    k.I(f"v_and_b32 {v(ra)}, 31, {v(V_LANE)}")
    k.I(f"v_lshlrev_b32 {v(ra)}, 7, {v(ra)}")
    k.I(f"s_lshl_b32 {s(S_T0)}, {s(S_I)}, 2")
    k.I(f"s_add_u32 {s(S_T0)}, {s(S_T0)}, {s(S_W)}")
    k.I(f"s_lshl_b32 {s(S_T1)}, {s(S_T0)}, 12")
    k.I(f"v_add_u32 {v(ra)}, {s(S_T1)}, {v(ra)}")
    k.I(f"v_min_u32 {v(rb)}, 55, {v(V_LANE)}")
    k.I(f"v_mul_u32_u24 {v(rc)}, 4682, {v(rb)}")
    k.I(f"v_lshrrev_b32 {v(rc)}, 16, {v(rc)}")
    k.I(f"v_mul_u32_u24 {v(rt)}, 14, {v(rc)}")
    k.I(f"v_sub_u32 {v(rb)}, {v(rb)}, {v(rt)}")
    k.I(f"v_lshlrev_b32 {v(rb)}, 7, {v(rb)}")
    k.I(f"v_mul_u32_u24 {v(rc)}, 3584, {v(rc)}")
    k.I(f"v_add_u32 {v(rb)}, {v(rb)}, {v(rc)}")
    k.I(f"s_mul_i32 {s(S_T0)}, {s(S_T0)}, {4*3584}")
    k.I(f"s_and_b32 {s(S_T1)}, {s(S_XCD)}, 1")
    k.I(f"s_mul_i32 {s(S_T1)}, {s(S_T1)}, 1792")
    k.I(f"s_add_u32 {s(S_T0)}, {s(S_T0)}, {s(S_T1)}")
    k.I(f"v_add_u32 {v(rb)}, {s(S_T0)}, {v(rb)}")


def wo_items(k):
    k.I(f"s_and_b32 {s(S_T0)}, {s(S_J2)}, 7")
    k.I(f"s_lshl_b32 {s(S_T0)}, {s(S_T0)}, 7")
    k.I(f"v_lshrrev_b32 v12, 3, {v(V_LANE)}")
    k.I("v_lshlrev_b32 v12, 10, v12")
    k.I(f"v_and_b32 v13, 7, {v(V_LANE)}")
    k.I(f"v_bfe_u32 v14, {v(V_LANE)}, 4, 1")
    k.I("v_lshlrev_b32 v14, 2, v14")
    k.I("v_xor_b32 v13, v13, v14")
    k.I("v_lshl_add_u32 v12, v13, 4, v12")
    k.I(f"v_add_u32 v12, {s(S_T0)}, v12")
    k.I(f"s_lshl_b32 {s(S_T3)}, {s(S_W)}, 17")
    k.I(f"s_lshl_b32 {s(S_T4)}, {s(S_W)}, 14")
    if L_WO:
        k.I(f"s_add_u32 {s(S_T4)}, {s(S_T4)}, {L_WO}")
    return [[(f"s_add_u32 {s(S_OFF)}, {s(S_T3)}, {n*8192}", None), (f"s_add_u32 m0, {s(S_T4)}, {n*1024}", None),
             (f"buffer_load_dwordx4 v12, {srd(S_WO)}, {s(S_OFF)} offen lds", "wo")] for n in range(16)]


def swz128_base(k, dst, cbk_sreg=None, cbk_imm=None, s_mul=16):
    lane_fields(k, s_=8, r_=9, c_=10, nh=11)
    lbase_bytes(k, 12, 11, 10, 13, 14)
    k.I(f"v_mul_u32_u24 v8, {s_mul}, v8")
    k.I("v_add_u32 v8, v8, v9")
    k.I("v_lshlrev_b32 v8, 7, v8")
    k.I("v_lshrrev_b32 v9, 1, v9")
    if cbk_sreg is not None:
        k.I(f"v_xor_b32 v9, {s(cbk_sreg)}, v9")
    elif cbk_imm:
        k.I(f"v_xor_b32 v9, {cbk_imm}, v9")
    k.I("v_lshl_add_u32 v8, v9, 6, v8")
    k.I(f"v_add_u32 {v(dst)}, v8, v12")


KV_PB = 16


def kv_addr(k):
    k.I(f"s_lshl_b32 {s(S_KVB)}, {s(S_HP)}, 16")
    k.I(f"s_lshl_b32 {s(S_T2)}, {s(S_W)}, 10")
    k.I(f"s_add_u32 {s(S_KVB)}, {s(S_KVB)}, {s(S_T2)}")
    k.I(f"s_add_u32 {s(S_KVB)}, {s(S_KVB)}, {WS_KVP}")


def kv_loads(k, tag):
    k.I(f"s_mov_b32 {s(S_OFF)}, {s(S_KVB)}")
    for mm in range(16):
        k.I(f"buffer_load_dwordx4 {v(KV_PB+4*mm,4)}, {v(V_L16)}, {srd(S_WS)}, {s(S_OFF)} offen sc1", tag=tag)
        if mm < 15:
            k.I(f"s_add_u32 {s(S_OFF)}, {s(S_OFF)}, 4096")


S_KVB = 35


def kv_combine_and_o(k):
    PB = KV_PB

    def check():
        k.I(f"v_cmp_ne_u32 vcc, {s(S_TAG)}, {v(PB+3)}")
        for mm in range(1, 16):
            k.I(f"v_cmp_ne_u32 {s(S_EX, 2)}, {s(S_TAG)}, {v(PB+4*mm+3)}")
            k.I(f"s_or_b64 vcc, vcc, {s(S_EX, 2)}")

    probe, ok, full, done = (k.newlabel(x) for x in ("kvp_probe", "kvp_seen", "kvp_full", "kvp_done"))
    k.I("v_mov_b32 v10, 0x3f80")
    k.I("v_mov_b32 v11, 0x3f800000")
    for r in range(176, 182):
        k.I(f"v_mov_b32 {v(r)}, 0")
    k.wait_vm("kvp")
    check()
    k.I(f"s_cbranch_vccz {done}")
    k.cond_begin()
    k.I(f"v_min_u32 v14, 15, {v(V_LANE)}")
    k.I("v_lshlrev_b32 v14, 12, v14")
    k.I(f"v_add_u32 v14, {s(S_KVB)}, v14")
    k.spin_init()
    k.label(probe)
    k.I(f"buffer_load_dword v15, v14, {srd(S_WS)}, 0 offen offset:12 sc1")
    k.I("s_waitcnt vmcnt(0)")
    k.I(f"v_cmp_ne_u32 vcc, {s(S_TAG)}, v15")
    k.spin_back(probe, ok)
    k.label(ok)
    k.label(full)
    kv_loads(k, None)
    k.I("s_waitcnt vmcnt(0)")
    check()
    k.spin_back(full, done)
    k.cond_end()
    k.label(done)
    k.stamp("kvp landed")
    wo = wo_items(k) if OPT.get("wo_kv", 1) else []
    for mm in range(16):
        for d in range(2):
            k.I(f"v_dot2c_f32_bf16 {v(176+2*d)}, {v(PB+4*mm+d)}, v10")
            k.I(f"v_dot2c_f32_bf16 {v(177+2*d)}, {v(PB+4*mm+d)}, v11")
        if wo and mm % 2 == 1:
            for t, tg in wo.pop(0):
                k.I(t, tag=tg)
    k.wo_rest = wo
    zs = k.newlabel("zsum")
    k.wave_is(0, zs)
    for mm in range(16):
        k.I(f"v_dot2c_f32_bf16 v180, {v(PB+4*mm+2)}, v10")
        k.I(f"v_dot2c_f32_bf16 v181, {v(PB+4*mm+2)}, v11")
    k.label(zs)
    k.I("s_nop 2")
    for i in range(6):
        k.I(f"v_mov_b32 {v(160+i)}, {v(176+i)}")
    k.I("v_cvt_pk_bf16_f32 v160, v160, v161")
    k.I("v_cvt_pk_bf16_f32 v161, v162, v163")
    k.I(f"v_lshlrev_b32 v8, 5, {v(V_LANE)}")
    k.I(f"s_lshl_b32 {s(S_T0)}, {s(S_W)}, 3")
    k.I(f"s_add_u32 {s(S_T0)}, {s(S_T0)}, {L_KVF}")
    k.I(f"v_add_u32 v8, {s(S_T0)}, v8")
    k.I("ds_write_b64 v8, v[160:161]")
    k.half_total(164, 166)
    k.half_total(165, 166)
    k.I("v_cvt_pk_bf16_f32 v164, v164, v165")
    k.I(f"v_bfe_u32 v8, {v(V_LANE)}, 2, 1")
    k.I(f"v_bfe_u32 v9, {v(V_LANE)}, 3, 2")
    k.I(f"v_and_b32 v10, 3, {v(V_LANE)}")
    k.I("v_lshl_add_u32 v9, v9, 2, v10")
    k.I("v_lshlrev_b32 v9, 1, v9")
    k.I("v_lshl_add_u32 v10, v8, 5, v9")
    k.I(f"v_add_u32 v10, {L_Z}, v10")
    k.I("v_xor_b32 v8, 1, v8")
    k.I("v_lshl_add_u32 v11, v8, 5, v9")
    k.I(f"v_add_u32 v11, {L_Z + 64}, v11")
    w0 = k.newlabel("zw")
    k.wave_is(0, w0)
    k.cond_begin()
    k.I("ds_write_b16 v10, v164")
    k.I("ds_write_b16_d16_hi v11, v164")
    k.cond_end()
    k.label(w0)
    for it in k.wo_rest[:4]:
        for t, tg in it:
            k.I(t, tag=tg)
    k.wait_lg_all()
    k.barrier()
    k.stamp("kvf barrier")
    k.I(f"v_lshlrev_b32 v8, 5, {v(V_LANE)}")
    k.I(f"v_add_u32 v8, {L_KVF}, v8")
    k.I(f"v_xor_b32 v9, 32, {v(V_LANE)}")
    k.I("v_lshlrev_b32 v9, 5, v9")
    k.I(f"v_add_u32 v9, {L_KVF}, v9")
    k.I(f"v_mov_b32 v10, {L_ZERO}")
    k.I(f"v_cndmask_b32 v8, v10, v8, {s(S_VALID,2)}")
    k.I(f"v_cndmask_b32 v9, v10, v9, {s(S_VALID,2)}")
    k.I(f"v_lshrrev_b32 v10, 5, {v(V_LANE)}")
    k.I("v_lshlrev_b32 v10, 5, v10")
    k.I(f"v_add_u32 v10, {L_Z}, v10")
    PF, NF, ZP, ZN = 112, 120, 128, 136
    k.I(f"ds_read_b128 {v(PF,4)}, v8")
    k.I(f"ds_read_b128 {v(PF+4,4)}, v8 offset:16")
    k.I(f"ds_read_b128 {v(NF,4)}, v9")
    k.I(f"ds_read_b128 {v(NF+4,4)}, v9 offset:16")
    k.I(f"ds_read_b128 {v(ZP,4)}, v10")
    k.I(f"ds_read_b128 {v(ZP+4,4)}, v10 offset:16")
    k.I(f"ds_read_b128 {v(ZN,4)}, v10 offset:64")
    k.I(f"ds_read_b128 {v(ZN+4,4)}, v10 offset:80")
    k.wait_lg_all()
    for it in k.wo_rest[4:]:
        for t, tg in it:
            k.I(t, tag=tg)
    NUM = 144
    k.mfma32(v(NUM, 16), v(PF, 4), v(QP, 4), "0")
    k.mfma32(v(NUM, 16), v(PF + 4, 4), v(QP + 4, 4))
    k.mfma32(v(NUM, 16), v(NF, 4), v(QN, 4))
    k.mfma32(v(NUM, 16), v(NF + 4, 4), v(QN + 4, 4))
    k.I("v_mov_b32 v10, 0")
    k.I("v_mov_b32 v11, 0")
    for i in range(8):
        k.I(f"v_dot2c_f32_bf16 v10, {v(QP+i)}, {v(ZP+i)}")
        k.I(f"v_dot2c_f32_bf16 v11, {v(QN+i)}, {v(ZN+i)}")
    k.I("v_add_f32 v10, v10, v11")
    k.I("v_add_f32 v10, 0x358637bd, v10")
    k.I("v_rcp_f32 v10, v10")
    for i in range(0, 16, 2):
        k.I(f"v_pk_mul_f32 {v(NUM+i,2)}, {v(NUM+i,2)}, v[10:11] op_sel_hi:[1,0]")
    for i in range(8):
        k.I(f"v_cvt_pk_bf16_f32 {v(160+i)}, {v(NUM+2*i)}, {v(NUM+2*i+1)}")
    k.stamp("o computed")
    k.I(f"s_lshl_b32 {s(S_T0)}, {s(S_M)}, 2")
    k.I(f"s_add_u32 {s(S_T0)}, {s(S_T0)}, {s(S_W)}")
    k.I(f"s_lshl_b32 {s(S_T0)}, {s(S_T0)}, 15")
    k.I(f"s_lshl_b32 {s(S_T1)}, {s(S_HP)}, 11")
    k.I(f"s_add_u32 {s(S_T0)}, {s(S_T0)}, {s(S_T1)}")
    k.I(f"s_add_u32 {s(S_T0)}, {s(S_T0)}, {WS_O}")
    k.I(f"v_add_u32 v8, {s(S_T0)}, {v(V_L16)}")
    k.I(f"buffer_store_dwordx4 v[160:163], v8, {srd(S_WS)}, 0 offen sc1")
    k.I(f"buffer_store_dwordx4 v[164:167], v8, {srd(S_WS)}, 0 offen offset:1024 sc1")
    k.wait_vm_all()
    k.I(f"s_lshl_b32 {s(S_T0)}, {s(S_M)}, 4")
    k.I(f"s_add_u32 {s(S_T0)}, {s(S_T0)}, {s(S_J)}")
    k.I(f"s_lshl_b32 {s(S_T0)}, {s(S_T0)}, 7")
    k.I(f"s_add_u32 {s(S_T0)}, {s(S_T0)}, {WS_FO}")
    k.signal(S_T0, "fo")
    k.stamp("o published")
    code_touch(k, 1, 0, t=(12, 13))


S_TBL, S_CBK, S_TB, S_B32 = 96, 97, 98, 99


def quad_ids(k):
    k.I(f"s_and_b32 {s(S_TBL)}, {s(S_W)}, 1")
    k.I(f"s_lshr_b32 {s(S_CBK)}, {s(S_W)}, 1")
    k.I(f"s_lshr_b32 {s(S_T0)}, {s(S_J2)}, 3")
    k.I(f"s_lshl_b32 {s(S_T0)}, {s(S_T0)}, 1")
    k.I(f"s_lshl_b32 {s(S_TB)}, {s(S_M2)}, 2")
    k.I(f"s_add_u32 {s(S_TB)}, {s(S_TB)}, {s(S_T0)}")
    k.I(f"s_add_u32 {s(S_TB)}, {s(S_TB)}, {s(S_TBL)}")
    k.I(f"s_and_b32 {s(S_B32)}, {s(S_J2)}, 7")
    k.I(f"s_lshl_b32 {s(S_B32)}, {s(S_B32)}, 1")
    k.I(f"s_add_u32 {s(S_B32)}, {s(S_B32)}, {s(S_CBK)}")


def mod16(k, dst_regs, gran0, stem):
    k.I(f"v_lshrrev_b32 v8, 5, {v(V_LANE)}")
    k.I("v_lshlrev_b32 v8, 6, v8")
    k.I(f"s_lshl_b32 {s(S_T0)}, {s(S_B32)}, 7")
    k.I(f"s_add_u32 {s(S_T0)}, {s(S_T0)}, {WS_MODG + gran0*8}")
    k.I(f"v_add_u32 v8, {s(S_T0)}, v8")
    k.load_granules_checked([dst_regs + 4 * i for i in range(4)], [8] * 4, stem, width=4, tagpos=(1, 3), imm=[0, 16, 32, 48])


VD = 4
S_M0, S_SO = 90, 91


def ring_setup(k):
    k.I(f"s_and_b32 {s(S_T0)}, {s(S_W)}, 1")
    k.I(f"s_cmp_eq_u32 {s(S_T0)}, 0")
    for i in range(4):
        k.I(f"s_cselect_b32 {s(S_SEL+i)}, {s(S_WG+i)}, {s(S_WU+i)}")
    for n in range(7):
        k.I(f"v_add_u32 v14, {64*n}, {v(V_LANE)}")
        k.I("v_mul_u32_u24 v15, 4682, v14")
        k.I("v_lshrrev_b32 v15, 16, v15")
        k.I(f"v_mul_u32_u24 {v(VD+n)}, 14, v15")
        k.I(f"v_sub_u32 v14, v14, {v(VD+n)}")
        k.I("v_mul_u32_u24 v15, 3584, v15")
        k.I("v_lshl_add_u32 v15, v14, 4, v15")
        k.I(f"s_mul_i32 {s(S_T0)}, {s(S_J)}, 224")
        k.I(f"v_add_u32 {v(VD+n)}, {s(S_T0)}, v15")
    for z in range(448):
        assert (z * 4682) >> 16 == z // 14
    k.I(f"s_lshr_b32 {s(S_T0)}, {s(S_W)}, 1")
    k.I(f"s_mul_i32 {s(S_M0)}, {s(S_T0)}, {SLAB}")
    k.I(f"s_and_b32 {s(S_T1)}, {s(S_W)}, 1")
    k.I(f"s_mul_i32 {s(S_T1)}, {s(S_T1)}, {UOFF}")
    k.I(f"s_add_u32 {s(S_M0)}, {s(S_M0)}, {s(S_T1)}")
    k.I(f"s_mul_i32 {s(S_SO)}, {s(S_T0)}, {32*3584}")


def ring_pair(k, P, as_list=False):
    out = []
    for n in range(7):
        out.append((f"s_add_u32 m0, {s(S_M0)}, {(P % 5) * 2 * SLAB + n * 1024}", None))
        if n == 0 or OPT.get("ring_fo"):
            out.append((f"s_add_u32 {s(S_OFF)}, {s(S_SO)}, {P * 2 * 32 * 3584}", None))
        out.append((f"buffer_load_dwordx4 {v(VD+n)}, {srd(S_SEL)}, {s(S_OFF)} offen lds", f"W{P}"))
    if as_list:
        return out
    for t, tg in out:
        k.I(t, tag=tg)


def p2(k):
    XR, GA, CBR = 64, 72, 88
    k.I(f"v_and_b32 v12, 31, {v(V_LANE)}")
    k.I("v_lshlrev_b32 v12, 10, v12")
    k.I(f"v_lshrrev_b32 v13, 5, {v(V_LANE)}")
    k.I("v_lshl_add_u32 v12, v13, 5, v12")
    k.I(f"s_lshl_b32 {s(S_T0)}, {s(S_TB)}, 15")
    k.I(f"s_lshl_b32 {s(S_T1)}, {s(S_B32)}, 6")
    k.I(f"s_add_u32 {s(S_T0)}, {s(S_T0)}, {s(S_T1)}")
    k.I(f"v_add_u32 v12, {s(S_T0)}, v12")
    k.I(f"buffer_load_dwordx4 {v(XR,4)}, v12, {srd(S_X)}, 0 offen", tag="xr")
    k.I(f"buffer_load_dwordx4 {v(XR+4,4)}, v12, {srd(S_X)}, 0 offen offset:16", tag="xr")
    swz128_base(k, 15, cbk_sreg=S_CBK)
    for kap in range(32):
        hp, a = kap >> 1, kap & 1
        for rd in range(2):
            k.I(f"ds_read_b64_tr_b16 {a_(4*kap + 2*rd, 2)}, v15 offset:{L_WO + (32*hp + 8*a + 4*rd)*128}", tag="wof")
        if kap % 4 == 3:
            k.I("s_waitcnt lgkmcnt(6)")
    k.wait_lg_all()
    k.stamp("wof read")
    if OPT.get("ring_fo"):
        k.barrier()
    modn_compute(k)
    k.stamp("modn")
    ring_setup(k)
    k.I(f"v_lshrrev_b32 v13, 5, {v(V_LANE)}")
    k.I("v_lshlrev_b32 v13, 6, v13")
    k.I(f"s_lshl_b32 {s(S_T0)}, {s(S_B32)}, 7")
    k.I(f"s_add_u32 {s(S_T0)}, {s(S_T0)}, {WS_MODG}")
    k.I(f"v_add_u32 v13, {s(S_T0)}, v13")
    k.I(f"v_add_u32 v12, {512*8}, v13")
    k.I(f"v_add_u32 v13, {1024*8}, v13")
    gr = ([GA + 4 * i for i in range(4)] + [CBR + 4 * i for i in range(4)], [12] * 4 + [13] * 4)
    gimm = [0, 16, 32, 48] * 2
    ring_a = []
    for P in range(3):
        cur = []
        for t, tg in ring_pair(k, P, as_list=True):
            cur.append((t, tg))
            if t.startswith("buffer_"):
                ring_a.append(cur)
                cur = []
    k.I(f"s_lshl_b32 {s(S_T0)}, {s(S_M2)}, 11")
    k.I(f"s_add_u32 {s(S_T0)}, {s(S_T0)}, {WS_FO}")
    NF = OPT.get("ring_fo", 0)
    if NF:
        l1, lp, ok, done = (k.newlabel(x) for x in ("po_a", "po_loop", "po_ok", "po_done"))
        k.wave_is(0, l1)
        k.cond_begin()
        k.I(f"v_min_u32 v14, 15, {v(V_LANE)}")
        k.I("v_lshlrev_b32 v14, 7, v14")
        k.I(f"v_add_u32 v14, {s(S_T0)}, v14")
        k.I(f"buffer_load_dword v15, v14, {srd(S_WS)}, 0 offen sc1")
        k.cond_end()
        k.label(l1)
        for _ in range(NF):
            for t, tg in ring_a.pop(0):
                k.I(t, tag=tg)
        k.wave_is(0, done)
        k.cond_begin()
        k.spin_init()
        k.I(f"s_waitcnt vmcnt({NF})")
        k.I(f"v_cmp_ne_u32 vcc, {s(S_TAG)}, v15")
        k.I(f"s_cbranch_vccz {done}")
        k.label(lp)
        k.I(f"buffer_load_dword v15, v14, {srd(S_WS)}, 0 offen sc1")
        k.I("s_waitcnt vmcnt(0)")
        k.I(f"v_cmp_ne_u32 vcc, {s(S_TAG)}, v15")
        k.spin_back(lp, ok)
        k.label(ok)
        k.cond_end()
        k.label(done)
        k.barrier()
    else:
        k.poll_flags(S_T0, 16, "po")
    k.stamp("o flags seen")
    k.I(f"s_sub_u32 {s(S_T0)}, {s(S_TB)}, {s(S_TBL)}")
    k.I(f"s_lshl_b32 {s(S_T0)}, {s(S_T0)}, 15")
    k.I(f"s_lshl_b32 {s(S_T1)}, {s(S_W)}, 14")
    k.I(f"s_add_u32 {s(S_T2)}, {s(S_T0)}, {s(S_T1)}")
    k.I(f"s_add_u32 {s(S_T2)}, {s(S_T2)}, {WS_O}")
    k.I(f"s_add_u32 {s(S_T3)}, {s(S_T1)}, {L_OI}")
    k.I(f"s_and_b32 {s(S_T4)}, {s(S_J2)}, 7")
    k.I(f"s_lshl_b32 {s(S_T4)}, {s(S_T4)}, 11")
    k._tag = "of"
    for n in range(16):
        k.I(f"s_add_u32 {s(S_T0)}, {s(S_T4)}, {n*1024}")
        k.I(f"s_and_b32 {s(S_T0)}, {s(S_T0)}, 0x3fff")
        k.I(f"s_add_u32 m0, {s(S_T3)}, {s(S_T0)}")
        k.I(f"s_add_u32 {s(S_OFF)}, {s(S_T2)}, {s(S_T0)}")
        k.dma(V_L16, S_WS, s(S_OFF), sc1=True)
    k._tag = None
    k.granule_loads(gr[0], gr[1], 4, gimm, "gacb")
    for _ in range(OPT.get("ring_a0", 8)):
        for t, tg in ring_a.pop(0):
            k.I(t, tag=tg)
    k.I(f"s_lshl_b32 {s(S_T0)}, {s(S_TBL)}, 15")
    k.I(f"s_add_u32 {s(S_T0)}, {s(S_T0)}, {L_OI}")
    k.I(f"v_add_u32 v14, {s(S_T0)}, {v(V_L16)}")
    k.wait_vm("of")
    k.barrier()
    k.stamp("o landed")
    GAF, C2F, XF = 144, 160, 176
    pre = [lambda: k.granule_verify(gr[0], gr[1], "gacb", 4, (1, 3), gimm, "gacb")]
    for i in range(8):
        g = GA + 4 * (i >> 1) + 2 * (i & 1)
        c = CBR + 4 * (i >> 1) + 2 * (i & 1)
        pre += [f"v_lshlrev_b32 {v(GAF+2*i)}, 16, {v(g)}", f"v_and_b32 {v(GAF+2*i+1)}, {s(S_MASK)}, {v(g)}",
                f"v_lshlrev_b32 {v(XF+2*i)}, 16, {v(XR+i)}", f"v_and_b32 {v(XF+2*i+1)}, {s(S_MASK)}, {v(XR+i)}",
                f"v_lshlrev_b32 {v(C2F+2*i)}, 16, {v(c)}", f"v_and_b32 {v(C2F+2*i+1)}, {s(S_MASK)}, {v(c)}",
                f"v_add_f32 {v(C2F+2*i)}, 1.0, {v(C2F+2*i)}", f"v_add_f32 {v(C2F+2*i+1)}, 1.0, {v(C2F+2*i+1)}",
                f"v_cvt_pk_bf16_f32 {v(c)}, {v(C2F+2*i)}, {v(C2F+2*i+1)}",
                f"v_lshlrev_b32 {v(C2F+2*i)}, 16, {v(c)}", f"v_and_b32 {v(C2F+2*i+1)}, {s(S_MASK)}, {v(c)}"]
    ACC = 112
    nb = 6
    for kap in range(32 + nb - 2):
        if kap < 32:
            k.I(f"ds_read_b128 {v(16 + 4*(kap % nb), 4)}, v14 offset:{kap*1024}", tag=f"o{kap}")
        q = kap - (nb - 2)
        if q >= 0:
            k.wait_lg(f"o{q}")
            k.mfma32(v(ACC, 16), a_(4 * q, 4), v(16 + 4 * (q % nb), 4), "0" if q == 0 else None)
            if ring_a and (q % 2 == 0 or len(ring_a) > (31 - q) // 2 + 1):
                for t, tg in ring_a.pop(0):
                    k.I(t, tag=tg)
            if q >= 6:
                for _ in range(4):
                    if pre:
                        it = pre.pop(0)
                        it() if callable(it) else k.I(it)
    assert not ring_a and not pre
    k.stamp("wo gemm")
    k.barrier()
    k.stamp("gacb ok")
    ring = []
    for P in range(3, 5):
        items = ring_pair(k, P, as_list=True)
        cur = []
        for t, tg in items:
            cur.append((t, tg))
            if t.startswith("buffer_"):
                ring.append(cur)
                cur = []

    def ring_some(n):
        for _ in range(min(n, len(ring))):
            for t, tg in ring.pop(0):
                k.I(t, tag=tg)

    T = 128
    X1 = 136
    YP = 128
    k.I("v_mov_b32 v40, 0")
    k.I("v_mov_b32 v41, 0")
    k.I("v_mov_b32 v42, 0x3f803f80")
    for i in range(16):
        k.I(f"v_fmac_f32 {v(XF+i)}, {v(GAF+i)}, {v(ACC+i)}")
    for i in range(8):
        k.I(f"v_cvt_pk_bf16_f32 {v(X1+i)}, {v(XF+2*i)}, {v(XF+2*i+1)}")
    ring_some(2)
    for i in range(8):
        k.unpack(XF + 2 * i, XF + 2 * i + 1, X1 + i)
    for i in range(8):
        k.I(f"v_pk_mul_f32 {v(XF+2*i,2)}, {v(XF+2*i,2)}, {v(C2F+2*i,2)}")
    for i in range(8):
        k.I(f"v_cvt_pk_bf16_f32 {v(YP+i)}, {v(XF+2*i)}, {v(XF+2*i+1)}")
    k.I(f"s_lshl_b32 {s(S_T0)}, {s(S_TB)}, 15")
    k.I(f"s_lshl_b32 {s(S_T1)}, {s(S_B32)}, 11")
    k.I(f"s_add_u32 {s(S_T0)}, {s(S_T0)}, {s(S_T1)}")
    k.I(f"s_add_u32 {s(S_T0)}, {s(S_T0)}, {WS_Y}")
    k.I(f"v_add_u32 v12, {s(S_T0)}, {v(V_L16)}")
    k.I(f"buffer_store_dwordx4 {v(YP,4)}, v12, {srd(S_WS)}, 0 offen sc1", tag="yst")
    k.I(f"buffer_store_dwordx4 {v(YP+4,4)}, v12, {srd(S_WS)}, 0 offen offset:1024 sc1", tag="yst")
    for i in range(8):
        k.I(f"v_dot2c_f32_bf16 v40, {v(X1+i)}, v42")
        k.I(f"v_dot2c_f32_bf16 v41, {v(X1+i)}, {v(X1+i)}")
    k.half_total(40, 43)
    k.half_total(41, 43)
    k.I(f"s_lshl_b32 {s(S_T0)}, {s(S_TB)}, 4")
    k.I(f"s_add_u32 {s(S_T0)}, {s(S_T0)}, {s(S_B32)}")
    k.I(f"s_lshl_b32 {s(S_T0)}, {s(S_T0)}, 8")
    k.I(f"s_add_u32 {s(S_T0)}, {s(S_T0)}, {WS_STATS}")
    k.I(f"v_lshlrev_b32 v12, 3, {v(V_LANE)}")
    k.I(f"v_add_u32 v12, {s(S_T0)}, v12")
    k.I("s_mov_b32 exec_hi, 0")
    k.I(f"buffer_store_dwordx2 v[40:41], v12, {srd(S_WS)}, 0 offen sc1", tag="yst")
    k.I("s_mov_b64 exec, -1")
    k.stamp("y stored")
    ring_some(OPT.get("ring_pre", 8))
    k.stamp("ring b")
    for i in range(8):
        k.I(f"v_accvgpr_write_b32 {a_(248+i)}, {v(X1+i)}")
    k.wait_vm("yst")
    k.I(f"s_lshl_b32 {s(S_T0)}, {s(S_M2)}, 4")
    k.I(f"s_add_u32 {s(S_T0)}, {s(S_T0)}, {s(S_J2)}")
    k.I(f"s_lshl_b32 {s(S_T0)}, {s(S_T0)}, 7")
    k.I(f"s_add_u32 {s(S_T0)}, {s(S_T0)}, {WS_FY}")
    k.signal(S_T0, "fy")
    noe = k.newlabel("noepoch")
    k.I("s_cmp_eq_u32 s2, 0")
    k.I(f"s_cbranch_scc0 {noe}")
    k.wave_is(0, noe)
    k.cond_begin()
    k.I("v_mov_b32 v12, 0")
    k.I("s_mov_b64 exec, 1")
    k.I(f"buffer_store_dword {v(V_TAG)}, v12, {srd(S_WS)}, 0 offen sc1")
    k.I("s_mov_b64 exec, -1")
    k.cond_end()
    k.label(noe)
    k.stamp("y published")
    ring_some(len(ring))
    ub_compute(k)
    k.stamp("ub")


def p3_tail(k, ST, AE, BE):
    it = [lambda: k.wait_vm("st")]
    for i in range(1, 8):
        it.append(f"v_add_f32 v16, v16, {v(ST+2*i)}")
        it.append(f"v_add_f32 v17, v17, {v(ST+2*i+1)}")
    for r in (16, 17):
        it += [f"v_mov_b32 v18, {v(r)}", "s_nop 1", f"v_permlane32_swap_b32 {v(r)}, v18", f"v_add_f32 {v(r)}, {v(r)}, v18"]
    it += ["v_mul_f32 v16, 0x3b000000, v16", "v_mul_f32 v17, 0x3b000000, v17", "v_fma_f32 v17, -v16, v16, v17",
           "v_max_f32 v17, 0, v17", "v_add_f32 v17, 0x3727c5ac, v17", "v_rsq_f32 v18, v17", "v_sub_f32 v16, 0, v16",
           "v_mul_f32 v19, v17, v18", "v_mul_f32 v20, v18, v18", "v_cvt_pk_bf16_f32 v22, v16, v19",
           "v_lshlrev_b32 v24, 16, v22", f"v_and_b32 v25, {s(S_MASK)}, v22", "v_sub_f32 v24, v16, v24", "v_sub_f32 v25, v19, v25",
           "v_cvt_pk_bf16_f32 v23, v24, v25",
           f"s_mov_b32 {s(S_T1)}, 0x01000100", f"v_perm_b32 {v(BE)}, v22, v22, {s(S_T1)}",
           f"s_mov_b32 {s(S_T1)}, 0x07060100", f"v_perm_b32 {v(BE+1)}, v22, v23, {s(S_T1)}",
           f"s_mov_b32 {s(S_T1)}, 0x07060302", f"v_perm_b32 {v(BE+2)}, v23, v22, {s(S_T1)}",
           f"v_mov_b32 {v(BE+3)}, 0", f"v_cmp_gt_u32 vcc, 32, {v(V_LANE)}"]
    it.append(lambda: [k.I(f"v_cndmask_b32 {v(BE+i)}, 0, {v(BE+i)}, vcc") for i in range(3)])
    regs = [AE + 28 * h + 4 * b for h in range(2) for b in range(7)]
    it.append(lambda: k.granule_verify(regs, [14] * 7 + [15] * 7, "wext", 4, (3,), [256 * b for b in range(7)] * 2, "wext"))
    it += [f"v_mov_b32 {v(r+3)}, 0" for r in regs]
    return it


def p3(k):
    Y0, ACC = 16, 144
    VTR = (11, 12, 13)
    lane_fields(k, s_=14, r_=15)
    k.I("v_lshl_add_u32 v14, v14, 4, v15")
    k.I("v_mul_u32_u24 v14, 224, v14")
    k.I(f"v_bfe_u32 v15, {v(V_LANE)}, 4, 1")
    k.I(f"v_mul_u32_u24 v15, {UOFF}, v15")
    k.I("v_add_u32 v14, v14, v15")
    k.I(f"v_and_b32 v15, 1, {v(V_LANE)}")
    k.I("v_lshl_add_u32 v14, v15, 4, v14")
    k.I(f"v_bfe_u32 v15, {v(V_LANE)}, 1, 1")
    k.I(f"v_lshl_add_u32 {v(VTR[0])}, v15, 3, v14")
    k.I(f"v_add_u32 {v(VTR[1])}, {4*SLAB}, {v(VTR[0])}")
    k.I(f"v_add_u32 {v(VTR[2])}, {8*SLAB}, {v(VTR[0])}")
    k.I(f"s_lshl_b32 {s(S_T0)}, {s(S_M)}, 11")
    k.I(f"s_add_u32 {s(S_T0)}, {s(S_T0)}, {WS_FY}")
    k.wait_vm_all()
    k.poll_flags(S_T0, 16, "py")
    k.stamp("y flags seen")
    S_TB3 = S_T2
    k.I(f"s_lshl_b32 {s(S_TB3)}, {s(S_M)}, 2")
    k.I(f"s_add_u32 {s(S_TB3)}, {s(S_TB3)}, {s(S_W)}")
    k.I(f"s_lshl_b32 {s(S_T3)}, {s(S_TB3)}, 15")
    k.I(f"s_add_u32 {s(S_T3)}, {s(S_T3)}, {WS_Y}")

    def ld_y(kap):
        out = []
        if kap and kap & 3 == 0:
            out.append((f"s_add_u32 {s(S_T3)}, {s(S_T3)}, 4096", None))
        out.append((f"buffer_load_dwordx4 {v(Y0+4*kap,4)}, {v(V_L16)}, {srd(S_WS)}, {s(S_T3)} offen offset:{(kap&3)*1024} sc1", f"y{kap}"))
        return out

    if OPT.get("coop", 0):
        k.I(f"v_and_b32 v14, 31, {v(V_LANE)}")
        k.I("v_lshlrev_b32 v14, 7, v14")
        k.I(f"s_and_b32 {s(S_T0)}, {s(S_J)}, 7")
        k.I(f"s_lshl_b32 {s(S_T0)}, {s(S_T0)}, 12")
        k.I(f"v_add_u32 v14, {s(S_T0)}, v14")
        k.I(f"buffer_load_dword v0, v14, {srd(S_WS)}, {s(S_T3)} offen", tag="t")
    NY0 = OPT.get('ny0', 20)
    for kap in range(NY0):
        for t, tg in ld_y(kap):
            k.I(t, tag=tg)

    def rd_w(kap, beta):
        B, a = kap >> 1, kap & 1
        P = B >> 1
        slot = (P % 5) * 2 + (B & 1)
        base = VTR[slot >> 2]
        return [(f"ds_read_b64_tr_b16 {a_(28*(kap&1) + 4*beta + 2*rd, 2)}, {v(base)} offset:{(slot & 3) * SLAB + (8*a + 4*rd)*224 + 32*beta}", f"w{kap}_{beta}") for rd in range(2)]

    ub_publish(k)
    for beta in range(7):
        for t, tg in rd_w(0, beta):
            k.I(t, tag=tg)
    side = []
    tail = []
    ST, AE, BE = 16, 32, 28
    for kap in range(32):
        P = kap >> 2
        if kap & 3 == 3 and P < 7:
            k.wait_vm(f"W{P+1}")
            if not OPT.get("x_nobar"):
                k.barrier()
            if 1 <= P <= 3 and not OPT.get("x_noring"):
                side += ring_pair(k, P + 4, as_list=True)
        if kap + NY0 < 32:
            side = ld_y(kap + NY0) + side
        if OPT["touch"] and kap == OPT.get("twdk", 24) and not OPT.get("map24"):
            side.append((f"s_lshl_b32 {s(S_T0)}, {s(S_I)}, 2", None))
            side.append((f"s_add_u32 {s(S_T0)}, {s(S_T0)}, {s(S_W)}", None))
            side.append((f"s_mul_i32 {s(S_T0)}, {s(S_T0)}, {112*128}", None))
            side.append((f"v_min_u32 v7, 55, {v(V_LANE)}", None))
            side.append(("v_lshlrev_b32 v7, 7, v7", None))
            side.append((f"buffer_load_dword v0, v7, {srd(S_WD)}, {s(S_T0)} offen", "t"))
            side.append((f"s_add_u32 {s(S_T0)}, {s(S_T0)}, {56*128}", None))
            side.append((f"buffer_load_dword v0, v7, {srd(S_WD)}, {s(S_T0)} offen", "t"))
        if kap == OPT.get('kst', 18):
            side.append((f"s_lshl_b32 {s(S_T0)}, {s(S_TB3)}, 12", None))
            side.append((f"s_add_u32 {s(S_T0)}, {s(S_T0)}, {WS_STATS}", None))
            side.append((f"v_and_b32 v14, 31, {v(V_LANE)}", None))
            side.append(("v_lshlrev_b32 v14, 3, v14", None))
            side.append((f"v_lshrrev_b32 v15, 5, {v(V_LANE)}", None))
            side.append(("v_lshl_add_u32 v14, v15, 11, v14", None))
            side.append((f"v_add_u32 v14, {s(S_T0)}, v14", None))
            for i in range(8):
                side.append((f"buffer_load_dwordx2 {v(ST+2*i,2)}, v14, {srd(S_WS)}, 0 offen offset:{i*256} sc1", "st"))
        if kap == OPT.get('kwx', 22):
            for t in (f"v_bfe_u32 v14, {v(V_LANE)}, 2, 1", "v_lshlrev_b32 v14, 3, v14", f"v_bfe_u32 v15, {v(V_LANE)}, 3, 1",
                      "v_lshl_add_u32 v14, v15, 2, v14", f"v_and_b32 v15, 3, {v(V_LANE)}", "v_add_u32 v14, v14, v15",
                      f"v_bfe_u32 v15, {v(V_LANE)}, 4, 1", "v_mul_u32_u24 v15, 1792, v15", "v_add_u32 v14, v14, v15",
                      f"s_mul_i32 {s(S_T0)}, {s(S_J)}, 112", f"v_add_u32 v14, {s(S_T0)}, v14", "v_lshlrev_b32 v14, 4, v14",
                      f"v_add_u32 v14, {WS_WEXT}, v14", f"v_add_u32 v15, {3584*16}, v14"):
                side.append((t, None))
            for h in range(2):
                for b in range(7):
                    side.append((f"buffer_load_dwordx4 {v(AE+28*h+4*b,4)}, {v(14+h)}, {srd(S_WS)}, 0 offen offset:{256*b} sc1", "wext"))
        if kap == OPT.get('kwd', 20):
            side += [(t, None) for t in wd_setup_items()]
        if kap == 23 and OPT.get("g0loop"):
            for it in wd_dma(0, WD_G1):
                side += it
        if kap == 23 and OPT.get("codepf3"):
            code_touch(k, 1, 0, t=(8, 9))
        if kap == OPT.get("ktail", 26):
            tail = p3_tail(k, ST, AE, BE)
        k.wait_vm(f"y{kap}")
        if kap in (1, 8, 16, 24):
            k.stamp(f"p3 k{kap}")
        for beta in range(7):
            k.wait_lg(f"w{kap}_{beta}")
            k.mfma32(v(ACC + 16 * beta, 16), a_(28 * (kap & 1) + 4 * beta, 4), v(Y0 + 4 * kap, 4), "0" if kap == 0 else None)
            if kap + 1 < 32 and not OPT.get("x_notr"):
                for t, tg in rd_w(kap + 1, beta):
                    k.I(t, tag=tg)
            for _ in range(OPT.get("tailrate", 2)):
                if tail:
                    it = tail.pop(0)
                    it() if callable(it) else k.I(it)
            nvm = 0
            while side and nvm < 1:
                t, tg = side.pop(0)
                k.I(t, tag=tg)
                if t.startswith("buffer_"):
                    nvm += 1
    for t, tg in side:
        k.I(t, tag=tg)
    assert not tail
    for h in range(2):
        for b in range(7):
            k.mfma32(v(ACC + 16 * b, 16), v(AE + 28 * h + 4 * b, 4), v(BE, 4))
    k.stamp("gate/up gemm")
    k.barrier()
    if OPT.get("wdshare"):
        wd_bases(k)
        k.I(f"s_mul_i32 {s(S_T0)}, {s(S_TB3)}, 112")
        k.I(f"s_mul_i32 {s(S_T1)}, {s(S_J)}, 7")
        k.I(f"s_add_u32 {s(S_T0)}, {s(S_T0)}, {s(S_T1)}")
        k.I(f"s_lshl_b32 {s(S_T0)}, {s(S_T0)}, 10")
        k.I(f"s_add_u32 {s(S_AO)}, {s(S_T0)}, {WS_ACT}")
        for b in range(7):
            G = ACC + 16 * b
            U = G + 8
            o = 96 + 4 * b
            for e in range(0, 8, 2):
                k.I(f"v_pk_mul_f32 {v(U+e,2)}, {v(U+e,2)}, v[20:21] op_sel_hi:[1,0]")
            for e in range(8):
                k.I(f"v_max_f32 {v(G+e)}, 0, {v(G+e)}")
            for e in range(0, 8, 2):
                k.I(f"v_pk_mul_f32 {v(G+e,2)}, {v(G+e,2)}, {v(U+e,2)}")
            for e in range(0, 8, 2):
                k.I(f"v_cvt_pk_bf16_f32 {v(o+e//2)}, {v(G+e)}, {v(G+e+1)}")
            k.I(f"buffer_store_dwordx4 {v(o,4)}, {v(V_L16)}, {srd(S_WS)}, {s(S_AO)} offen offset:{(b&3)*1024} sc1", tag="ast")
            if b == 3:
                k.I(f"s_add_u32 {s(S_AO)}, {s(S_AO)}, 4096")
        k.stamp("act stored")
        NPRE = OPT.get("wd_pre", 6)
        own = wd_dma(0, WD_G1)

        def share(n0, n1):
            for n in range(n0, n1):
                k.I(f"s_sub_u32 {s(S_T0)}, {s(S_W)}, 1")
                k.I(f"s_mul_i32 {s(S_T0)}, {s(S_T0)}, 13")
                k.I(f"s_add_u32 {s(S_T0)}, {s(S_T0)}, {n}")
                k.I(f"s_min_u32 {s(S_T0)}, {s(S_T0)}, 37")
                k.I(f"s_lshl_b32 {s(S_OFF)}, {s(S_T0)}, 13")
                k.I(f"s_lshl_b32 {s(S_T0)}, {s(S_T0)}, 10")
                k.I(f"s_add_u32 {s(S_T1)}, {s(S_T0)}, {WD_TOP}")
                k.I(f"s_sub_u32 m0, {s(S_T0)}, {18*1024}")
                k.I(f"s_cmp_lt_u32 {s(S_T0)}, {18*1024}")
                k.I(f"s_cselect_b32 m0, {s(S_T1)}, m0")
                k.I(f"buffer_load_dwordx4 v4, {srd(S_WD)}, {s(S_OFF)} offen lds")

        l0, l1 = k.newlabel("wdp"), k.newlabel("wdp")
        k.cond_begin()
        k.wave_is(0, l0)
        k.I("s_waitcnt vmcnt(0)")
        k.I(f"s_branch {l1}")
        k.label(l0)
        share(0, NPRE)
        k.I(f"s_waitcnt vmcnt({NPRE})")
        k.label(l1)
        k.cond_end()
        k.vmq = []
        k.I(f"s_lshl_b32 {s(S_T0)}, {s(S_M)}, 4")
        k.I(f"s_add_u32 {s(S_T0)}, {s(S_T0)}, {s(S_J)}")
        k.I(f"s_lshl_b32 {s(S_T0)}, {s(S_T0)}, 7")
        k.I(f"s_add_u32 {s(S_T0)}, {s(S_T0)}, {WS_FA}")
        k.signal(S_T0, "fa")
        k.stamp("act published")
        l0 = k.newlabel("wdq")
        k.I(f"s_cmp_eq_u32 {s(S_W)}, 0")
        k.I(f"s_cbranch_scc1 {l0}")
        k.cond_begin()
        share(NPRE, 13)
        for it in own:
            for t, tg in it:
                k.I(t, tag=tg)
        if OPT.get("g1pre", 1):
            for it in wd_dma(WD_G1, WD_G2):
                for t, tg in it:
                    k.I(t, tag=tg)
            k.I(f"s_waitcnt vmcnt({2*(WD_G2-WD_G1)})")
        else:
            k.I("s_waitcnt vmcnt(0)")
        k.cond_end()
        k.label(l0)
    else:
        wd_bases(k)
        dm = wd_dma(WD_G1, WD_G2) if OPT.get("g0loop") else wd_dma(0, WD_G2)
        k.I(f"s_mul_i32 {s(S_T0)}, {s(S_TB3)}, 112")
        k.I(f"s_mul_i32 {s(S_T1)}, {s(S_J)}, 7")
        k.I(f"s_add_u32 {s(S_T0)}, {s(S_T0)}, {s(S_T1)}")
        k.I(f"s_lshl_b32 {s(S_T0)}, {s(S_T0)}, 10")
        k.I(f"s_add_u32 {s(S_AO)}, {s(S_T0)}, {WS_ACT}")

        def dma_some(n):
            for _ in range(n):
                for t, tg in dm.pop(0):
                    k.I(t, tag=tg)

        for b in range(7):
            G = ACC + 16 * b
            U = G + 8
            o = 96 + 4 * b
            for e in range(0, 8, 2):
                k.I(f"v_pk_mul_f32 {v(U+e,2)}, {v(U+e,2)}, v[20:21] op_sel_hi:[1,0]")
            for e in range(8):
                k.I(f"v_max_f32 {v(G+e)}, 0, {v(G+e)}")
            for e in range(0, 8, 2):
                k.I(f"v_pk_mul_f32 {v(G+e,2)}, {v(G+e,2)}, {v(U+e,2)}")
            for e in range(0, 8, 2):
                k.I(f"v_cvt_pk_bf16_f32 {v(o+e//2)}, {v(G+e)}, {v(G+e+1)}")
            k.I(f"buffer_store_dwordx4 {v(o,4)}, {v(V_L16)}, {srd(S_WS)}, {s(S_AO)} offen offset:{(b&3)*1024} sc1", tag="ast")
            if b == 3:
                k.I(f"s_add_u32 {s(S_AO)}, {s(S_AO)}, 4096")
            if b < 6:
                dma_some(OPT.get("wd_mix", 2))
        k.stamp("act stored")
        dma_some(OPT.get("wd_pre", 8))

        def g0_reads():
            k.wait_vm(f"wd{WD_G1-1}")
            for kl in range(WD_G1):
                for t, tg in wd_reads(kl):
                    k.I(t, tag=tg)
                if kl % 2 == 1:
                    k.I("s_waitcnt lgkmcnt(4)")
        k.wait_vm("ast")
        k.I(f"s_lshl_b32 {s(S_T0)}, {s(S_M)}, 4")
        k.I(f"s_add_u32 {s(S_T0)}, {s(S_T0)}, {s(S_J)}")
        k.I(f"s_lshl_b32 {s(S_T0)}, {s(S_T0)}, 7")
        k.I(f"s_add_u32 {s(S_T0)}, {s(S_T0)}, {WS_FA}")
        k.signal(S_T0, "fa")
        k.stamp("act published")
        dma_some(len(dm))
        g0_reads()
        k.wait_lg_all()
        k.stamp("wf0 read")


S_AO = 91


S_WDB, S_WDT = 90, 12
S_WDO = 3
WD_TOP = 87552
WD_G1, WD_G2 = 9, 19
V_WD = 4
V_WB, V_WT = 5, 10


def wd_setup_items():
    return [f"s_and_b32 {s(S_T0)}, {s(S_J2)}, 7", f"s_lshl_b32 {s(S_T0)}, {s(S_T0)}, 7",
            f"v_lshrrev_b32 v4, 3, {v(V_LANE)}", "v_lshlrev_b32 v4, 10, v4", f"v_and_b32 v5, 7, {v(V_LANE)}",
            f"v_bfe_u32 v6, {v(V_LANE)}, 4, 1", "v_lshlrev_b32 v6, 2, v6", "v_xor_b32 v5, v5, v6",
            "v_lshl_add_u32 v4, v5, 4, v4", f"v_add_u32 v4, {s(S_T0)}, v4",
            f"s_mul_i32 {s(S_WDB)}, {s(S_W)}, 20480", f"s_mul_i32 {s(S_WDT)}, {s(S_W)}, 18432",
            f"s_add_u32 {s(S_WDT)}, {s(S_WDT)}, {WD_TOP}", f"s_mul_i32 {s(S_WDO)}, {s(S_W)}, {448*1024}"]


def wd_bases(k):
    swz128_base(k, 5, cbk_imm=0, s_mul=8)
    k.I(f"v_add_u32 v10, {s(S_WDT)}, v5")
    k.I("v_xor_b32 v11, 64, v10")
    k.I(f"v_add_u32 v5, {s(S_WDB)}, v5")
    k.I("v_xor_b32 v6, 64, v5")


def wd_slot(kl):
    if kl < WD_G1:
        return S_WDT, V_WT, kl * 2048
    if kl < WD_G2:
        return S_WDB, V_WB, (kl - WD_G1) * 2048
    return S_WDT, V_WT, (kl - WD_G2) * 2048


def wd_dma(k0, k1):
    out = []
    for kl in range(k0, k1):
        sb, _, off = wd_slot(kl)
        for h in range(2):
            out.append([(f"s_add_u32 {s(S_OFF)}, {s(S_WDO)}, {(16*kl + 8*h)*1024}", None),
                        (f"s_add_u32 m0, {s(sb)}, {off + h*1024}", None),
                        (f"buffer_load_dwordx4 v4, {srd(S_WD)}, {s(S_OFF)} offen lds", f"wd{kl}")])
    return out


def wd_reads(kl):
    _, vb, off = wd_slot(kl)
    return [(f"ds_read_b64_tr_b16 {a_((2*kl + cbk)*4 + 2*rd, 2)}, {v(vb+cbk)} offset:{off + rd*512}", f"wf{kl}")
            for cbk in range(2) for rd in range(2)]


def p4(k):
    GB = 176
    k.I(f"v_lshrrev_b32 v8, 5, {v(V_LANE)}")
    k.I("v_lshlrev_b32 v8, 6, v8")
    k.I(f"s_lshl_b32 {s(S_T0)}, {s(S_B32)}, 7")
    k.I(f"s_add_u32 {s(S_T0)}, {s(S_T0)}, {WS_MODG + 1280*8}")
    k.I(f"v_add_u32 v8, {s(S_T0)}, v8")
    greg = [GB + 4 * i for i in range(4)]
    k.I(f"s_lshl_b32 {s(S_T0)}, {s(S_M2)}, 11")
    k.I(f"s_add_u32 {s(S_T0)}, {s(S_T0)}, {WS_FA}")
    if OPT.get("early_pa", 0):
        g2 = wd_dma(WD_G2, 28)
        l1, lp, ok, done = (k.newlabel(x) for x in ("pa_a", "pa_loop", "pa_ok", "pa_done"))
        k.wave_is(0, l1)
        k.cond_begin()
        k.I(f"v_min_u32 v14, 15, {v(V_LANE)}")
        k.I("v_lshlrev_b32 v14, 7, v14")
        k.I(f"v_add_u32 v14, {s(S_T0)}, v14")
        k.I(f"buffer_load_dword v15, v14, {srd(S_WS)}, 0 offen sc1")
        k.cond_end()
        k.label(l1)
        for it in g2:
            for t, tg in it:
                k.I(t, tag=tg)
        k.wave_is(0, done)
        k.cond_begin()
        k.spin_init()
        k.I(f"s_waitcnt vmcnt({len(g2)})")
        k.I(f"v_cmp_ne_u32 vcc, {s(S_TAG)}, v15")
        k.I(f"s_cbranch_vccz {done}")
        k.label(lp)
        k.I(f"buffer_load_dword v15, v14, {srd(S_WS)}, 0 offen sc1")
        k.I("s_waitcnt vmcnt(0)")
        k.I(f"v_cmp_ne_u32 vcc, {s(S_TAG)}, v15")
        k.spin_back(lp, ok)
        k.label(ok)
        k.cond_end()
        k.label(done)
        k.barrier()
    else:
        for it in wd_dma(WD_G2, 28):
            for t, tg in it:
                k.I(t, tag=tg)
        k.poll_flags(S_T0, 16, "pa")
    k.stamp("act flags seen")
    k.I(f"s_sub_u32 {s(S_T0)}, {s(S_TB)}, {s(S_TBL)}")
    k.I(f"s_mul_i32 {s(S_T0)}, {s(S_T0)}, {112*1024}")
    k.I(f"s_mul_i32 {s(S_T1)}, {s(S_W)}, {28*1024}")
    k.I(f"s_add_u32 {s(S_T0)}, {s(S_T0)}, {s(S_T1)}")
    S_A0, S_A1 = S_T3, S_T4
    k.I(f"s_add_u32 {s(S_A0)}, {s(S_T0)}, {WS_ACT}")
    k.I(f"s_add_u32 {s(S_A1)}, {s(S_A0)}, {112*1024}")
    NB = OPT.get("nb4", 12)
    AB = 16
    ACC = 192

    def ld(kl):
        out = []
        for tbl in range(2):
            r = AB + 8 * (kl % NB) + 4 * tbl
            out.append((f"buffer_load_dwordx4 {v(r,4)}, {v(V_L16)}, {srd(S_WS)}, {s(S_A0 + tbl)} offen offset:{(kl&3)*1024} sc1", f"a{kl}"))
        if kl & 3 == 3:
            out.append((f"s_add_u32 {s(S_A0)}, {s(S_A0)}, 4096", None))
            out.append((f"s_add_u32 {s(S_A1)}, {s(S_A1)}, 4096", None))
        return out

    for kl in range(NB):
        for t, tg in ld(kl):
            k.I(t, tag=tg)
    g2 = []
    if OPT.get("wdshare"):
        if not OPT.get("g1pre", 1):
            l0 = k.newlabel("wdr")
            k.I(f"s_cmp_eq_u32 {s(S_W)}, 0")
            k.I(f"s_cbranch_scc1 {l0}")
            k.cond_begin()
            for it in wd_dma(WD_G1, WD_G2):
                for t, tg in it:
                    k.I(t, tag=tg)
            k.cond_end()
            k.label(l0)
        for kl in range(WD_G1):
            for t, tg in wd_reads(kl):
                k.I(t, tag=tg)
            if kl % 2 == 1:
                k.I("s_waitcnt lgkmcnt(4)")
        k.wait_lg_all()
        k.stamp("wf0 read")
        g2 = wd_dma(WD_G2, 28)
    k.granule_loads(greg, [8] * 4, 4, [0, 16, 32, 48], "gb")
    GBF, X1F = 112, 128
    pre = [lambda: k.granule_verify(greg, [8] * 4, "gb", 4, (1, 3), [0, 16, 32, 48], "gb")]
    for i in range(8):
        g = GB + 4 * (i >> 1) + 2 * (i & 1)
        pre += [f"v_lshlrev_b32 {v(GBF+2*i)}, 16, {v(g)}", f"v_and_b32 {v(GBF+2*i+1)}, {s(S_MASK)}, {v(g)}",
                f"v_accvgpr_read_b32 v144, {a_(248+i)}", f"v_lshlrev_b32 {v(X1F+2*i)}, 16, v144", f"v_and_b32 {v(X1F+2*i+1)}, {s(S_MASK)}, v144"]
    for kl in range(28):
        k.wait_vm(f"a{kl}")
        if kl in (1, 7, 14, 21):
            k.stamp(f"p4 k{kl}")
        rds = wd_reads(kl + 3) if WD_G1 <= kl + 3 < 28 else []
        if kl >= WD_G1:
            k.wait_lg(f"wf{kl}")
        nxt = ld(kl + NB) if kl + NB < 28 else []
        if OPT.get("wdshare"):
            if kl + 3 == WD_G1 and not OPT.get("g1pre", 1):
                k.wait_vm("gb")
            if kl + 3 == WD_G2:
                k.wait_vm("wd27")
            for _ in range(OPT.get("g2rate", 4)):
                if g2:
                    for t, tg in g2.pop(0):
                        k.I(t, tag=tg)
        for tbl in range(2):
            for cbk in range(2):
                r = AB + 8 * (kl % NB) + 4 * tbl
                k.mfma32(v(ACC + 16 * (2 * cbk + tbl), 16), a_((2 * kl + cbk) * 4, 4), v(r, 4), "0" if kl == 0 else None)
                if rds:
                    t, tg = rds.pop(0)
                    k.I(t, tag=tg)
                if tbl == 1 and nxt:
                    t, tg = nxt.pop(0)
                    k.I(t, tag=tg)
                if kl >= 10 and pre:
                    it = pre.pop(0)
                    it() if callable(it) else k.I(it)
        for t, tg in nxt:
            k.I(t, tag=tg)
    assert not pre
    k.stamp("down gemm")
    k.wait_lg_all()
    k.barrier()
    k.I("s_nop 3")
    k.I(f"s_lshl_b32 {s(S_T0)}, {s(S_W)}, 12")
    k.I(f"v_add_u32 v8, {s(S_T0)}, {v(V_L16)}")
    k.I(f"v_add_u32 v9, 32768, v8")
    for q in range(4):
        sk = k.newlabel("r4w")
        k.I(f"s_cmp_eq_u32 {s(S_W)}, {q}")
        k.I(f"s_cbranch_scc1 {sk}")
        k.cond_begin()
        for i in range(4):
            base = 8 if q < 2 else 9
            k.I(f"ds_write_b128 {v(base)}, {v(ACC+16*q+4*i,4)} offset:{(q&1)*16384 + i*1024}")
        k.cond_end()
        k.label(sk)
    k.wait_lg_all()
    k.barrier()
    k.I(f"s_lshl_b32 {s(S_T0)}, {s(S_W)}, 14")
    k.I(f"v_add_u32 v8, {s(S_T0)}, {v(V_L16)}")
    for d in range(1, 4):
        k.I(f"s_add_u32 {s(S_T1)}, {s(S_W)}, {d}")
        k.I(f"s_and_b32 {s(S_T1)}, {s(S_T1)}, 3")
        k.I(f"s_lshl_b32 {s(S_T1)}, {s(S_T1)}, 12")
        k.I(f"v_add_u32 v9, {s(S_T1)}, v8")
        for i in range(4):
            k.I(f"ds_read_b128 {v(32+16*(d-1)+4*i,4)}, v9 offset:{i*1024}")
    for q in range(4):
        sk = k.newlabel("r4m")
        k.I(f"s_cmp_eq_u32 {s(S_W)}, {q}")
        k.I(f"s_cbranch_scc0 {sk}")
        for i in range(0, 16, 2):
            k.I(f"v_pk_mul_f32 {v(16+i,2)}, {v(ACC+16*q+i,2)}, 1.0 op_sel_hi:[1,0]")
        k.label(sk)
    k.wait_lg_all()
    for d in range(3):
        for i in range(0, 16, 2):
            k.I(f"v_pk_add_f32 {v(16+i,2)}, {v(16+i,2)}, {v(32+16*d+i,2)}")
    for i in range(16):
        k.I(f"v_fmac_f32 {v(X1F+i)}, {v(GBF+i)}, {v(16+i)}")
    for i in range(8):
        k.I(f"v_cvt_pk_bf16_f32 {v(88+i)}, {v(X1F+2*i)}, {v(X1F+2*i+1)}")
    k.I(f"v_and_b32 v8, 31, {v(V_LANE)}")
    k.I("v_lshlrev_b32 v8, 10, v8")
    k.I(f"v_lshrrev_b32 v9, 5, {v(V_LANE)}")
    k.I("v_lshl_add_u32 v8, v9, 5, v8")
    k.I(f"s_lshl_b32 {s(S_T0)}, {s(S_TB)}, 15")
    k.I(f"s_lshl_b32 {s(S_T1)}, {s(S_B32)}, 6")
    k.I(f"s_add_u32 {s(S_T0)}, {s(S_T0)}, {s(S_T1)}")
    k.I(f"v_add_u32 v8, {s(S_T0)}, v8")
    fl = {0: "", 1: " sc1", 2: " nt", 3: " sc0 sc1"}[OPT.get("outst", 0)]
    k.I(f"buffer_store_dwordx4 v[88:91], v8, {srd(S_OUT)}, 0 offen{fl}")
    k.I(f"buffer_store_dwordx4 v[92:95], v8, {srd(S_OUT)}, 0 offen offset:16{fl}")
    k.stamp("out stored")


def finish(k):
    if k.diag == "dbg":
        sk = k.newlabel("fin")
        k.wave_is(0, sk)
        k.I("s_load_dwordx2 s[92:93], s[0:1], 88")
        k.I("s_waitcnt lgkmcnt(0)")
        k.I("s_mov_b32 s94, 256")
        k.I("s_mov_b32 s95, 0x20000")
        k.I("s_mov_b64 exec, 1")
        sel = k.dbg_sel
        for slot, i in enumerate(sel):
            k.I(f"v_mov_b32 v9, {s(S_STAMP+i)}")
            if slot == 0:
                k.I("v_not_b32 v9, v9")
            k.I(f"v_mov_b32 v8, {4*slot}")
            k.I(f"buffer_atomic_umax v9, v8, s[92:95], 0 offen")
        k.label(sk)
    elif k.diag:
        sk = k.newlabel("fin")
        k.wave_is(0, sk)
        k.I(f"s_lshl_b32 {s(S_T0)}, s2, 7")
        k.I(f"s_add_u32 {s(S_T0)}, {s(S_T0)}, {WS_STAMP}")
        k.I(f"v_mov_b32 v8, {s(S_T0)}")
        k.I("s_mov_b64 exec, 1")
        for i in range(k.nstamp):
            k.I(f"v_mov_b32 v9, {s(S_STAMP+i)}")
            k.I(f"buffer_store_dword v9, v8, {srd(S_WS)}, 0 offen offset:{4*i}")
        k.label(sk)
    k.label("L_end")
    k.I("s_endpgm")


HEADER = """;
; Hand-off tags are E + 1, where E is the word at d_ws + 0 found on entry; workgroup 0 stores the tag there once every
;
"""


def build(diag=False, stop=None):
    k = K(diag, stop)
    phases = [prologue, start_phase, p1_prologue, p1_main, p1_epilogue,
              kv_combine_and_o, p2, p3, p4]
    for ph in phases:
        k.comment(f"======== {ph.__name__} ========")
        ph(k)
        if stop == ph.__name__:
            break
    k.dbg_sel = list(range(min(k.nstamp, 16)))
    if k.nstamp > 16:
        k.dbg_sel = [0, 1, 3, 4, 5, 7, 8, 9, 10, 11, 12, 13, 14, 15, 16, 17][:16]
    finish(k)
    hdr = open("cdna_kernels/" + NAME + ".s.ref").read().split("; Override launch geometry")[0]
    txt = hdr
    txt += HEADER
    txt += f"; @launch grid=(256,1,1) block=(256,1,1) lds={LDS_BYTES}\n"
    txt += '.amdgcn_target "amdgcn-amd-amdhsa--gfx950"\n.text\n'
    txt += f".globl {NAME}_kernel\n.p2align 8\n.type {NAME}_kernel,@function\n{NAME}_kernel:\n"
    txt += k.text()
    txt += f""".section .rodata,"a"
.p2align 6
.amdhsa_kernel {NAME}_kernel
  .amdhsa_next_free_vgpr 512
  .amdhsa_next_free_sgpr 102
  .amdhsa_accum_offset 256
  .amdhsa_group_segment_fixed_size 0
  .amdhsa_kernarg_size 104
  .amdhsa_user_sgpr_count 2
  .amdhsa_user_sgpr_kernarg_segment_ptr 1
  .amdhsa_system_sgpr_workgroup_id_x 1
.end_amdhsa_kernel
"""
    return txt, k


if __name__ == "__main__":
    out = sys.argv[1] if len(sys.argv) > 1 else "k.s"
    for a in sys.argv:
        if a.startswith("--opt="):
            for kv in a[6:].split(","):
                kk, vv = kv.split("=")
                OPT[kk] = int(vv)
    diag = "--diag" in sys.argv
    if "--dbg" in sys.argv:
        diag = "dbg"
    stop = None
    for a in sys.argv:
        if a.startswith("--stop="):
            stop = a.split("=")[1]
    txt, k = build(diag, stop)
    open(out, "w").write(txt)
    if OPT.get("tmo"):
        open(out + ".tmo", "w").write("\n".join(k.tmo_names) + "\n")
    if diag:
        open(out + ".stamps", "w").write("\n".join(k.stamp_names) + "\n")
    print(f"wrote {out}: {len(txt)} bytes, {sum(1 for l in k.out if l.startswith(chr(9)))} instructions, {k.nops} hazard nops")
```
